```python
import torch

def _softmax(x, axis=-1):
    return torch.softmax(x, dim=axis)
def _gelu(x):
    return torch.nn.functional.gelu(x, approximate="tanh")
def _silu(x):
    return torch.nn.functional.silu(x)
def _sigmoid(x):
    return torch.sigmoid(x)
def _layernorm(x, axis=-1, eps=1e-5):
    m = x.mean(dim=axis, keepdim=True)
    v = x.var(dim=axis, keepdim=True, unbiased=False)
    return (x - m) / torch.sqrt(v + eps)
def _scatter_add(tgt, idx, src, axis=0):
    return tgt.clone().index_add_(axis, idx, src)
def _segment_sum(src, seg, n):
    out = torch.zeros((n,) + src.shape[1:], dtype=src.dtype)
    return out.index_add_(0, seg, src)
def _pad(x, pw):
    flat = tuple(v for pair in reversed(pw) for v in pair)
    return torch.nn.functional.pad(x, flat)

kernel_name = 'sequential_preLN__mha_block_cached__geglu_ffn__decode'

def setup_inputs():

    _w = (lambda a: (lambda t: t.to(torch.bfloat16) if t.is_floating_point() else t)(torch.as_tensor(a)))
    def _A_setup():
        B, Sq, D = 8, 1, 1024
        H, Sk, Dh = 32, 4096, 128
        return {
            "x": _w((lambda *s: torch.randn(*s, dtype=torch.bfloat16) * 0.05)(B, Sq, D)),
            "k_cache": _w((lambda *s: torch.randn(*s, dtype=torch.bfloat16) * 3.2)(B, H, Sk, Dh)),
            "v_cache": _w((lambda *s: torch.randn(*s, dtype=torch.bfloat16) * 0.4)(B, H, Sk, Dh)),
            "wq": _w((lambda *s: torch.randn(*s, dtype=torch.bfloat16) * 3.2)(D, H * Dh) * (D ** -0.5)),
            "wo": _w((lambda *s: torch.randn(*s, dtype=torch.bfloat16) * 0.4)(H * Dh, D) * ((H * Dh) ** -0.5)),
        }
    _A_in = _A_setup()

    def _B_setup():
        B, S, D, F = 8, 1, 1024, 3584
        return {
            "x": _w((lambda *s: torch.randn(*s, dtype=torch.bfloat16) * 0.05)(B, S, D)),
            "w_gate": _w((lambda *s: torch.randn(*s, dtype=torch.bfloat16) * 0.05)(D, F)),
            "w_up": _w((lambda *s: torch.randn(*s, dtype=torch.bfloat16) * 0.05)(D, F)),
            "w_down": _w((lambda *s: torch.randn(*s, dtype=torch.bfloat16) * 0.05)(F, D)),
        }
    _B_in = _B_setup()

    return {
        "A_x": _A_in["x"],
        "A_k_cache": _A_in["k_cache"],
        "A_v_cache": _A_in["v_cache"],
        "A_wq": _A_in["wq"],
        "A_wo": _A_in["wo"],
        "B_x": _B_in["x"],
        "B_w_gate": _B_in["w_gate"],
        "B_w_up": _B_in["w_up"],
        "B_w_down": _B_in["w_down"],
    }

def reference(A_x, A_k_cache, A_v_cache, A_wq, A_wo, B_x, B_w_gate, B_w_up, B_w_down):
    def _A_ref(x, k_cache, v_cache, wq, wo):
        B, Sq, D = x.shape
        H, Dh = 32, 128
        q = (lambda x, *d: x.permute(*d))((x @ wq).reshape(B, Sq, H, Dh), 0, 2, 1, 3)
        scores = torch.einsum("bhqd,bhkd->bhqk", q, k_cache) * (Dh ** -0.5)
        p = _softmax(scores, axis=-1)
        o = torch.einsum("bhqk,bhkd->bhqd", p, v_cache)
        return (lambda x, *d: x.permute(*d))(o, 0, 2, 1, 3).reshape(B, Sq, H * Dh) @ wo

    def _B_ref(x, w_gate, w_up, w_down):
        return (_gelu(x @ w_gate) * (x @ w_up)) @ w_down

    x = A_x
    h = x + _A_ref(_layernorm(x, axis=-1), A_k_cache, A_v_cache, A_wq, A_wo)
    h2 = h + _B_ref(_layernorm(h, axis=-1), B_w_gate, B_w_up, B_w_down)
    return h2
```

```python
import sys

KNAME = "sequential_preLN__mha_block_cached__geglu_ffn__decode_kernel"

class Cfg:
    NS = 6
    KVFLAGS = "nt"
    WFLAGS = "nt"
    FASTMODE = True
    SPIN = 1 << 20
    STAMPS = False

L_WO   = 0
L_WG   = 32768
L_WU   = 65536
L_WD   = 98304
L_WQ   = 126976
L_SC   = 126976
L_RED  = 143360
L_LNA  = 159744
L_QS   = 161792
L_ML   = 162048
L_HS   = 162112
L_END  = 162176
L_LNB  = L_SC
LDS_BYTES = 163840

W_QP  = 0x000000
W_OB  = 0x100000
W_AP  = 0x120000
W_HB  = 0x1A0000
W_GP  = 0x1C0000
W_ACT = 0x2A0000
W_DP  = 0x2B0000
W_STAMP = 0x400000

D_CLR = 32*4
D_XCC = 40*4

S_ID=2; S_W=3; S_X=4; S_R=5; S_H=6; S_B=7
P_X=16; P_K=18; P_V=20; P_WQ=22; P_WO=24; P_WG=28; P_WU=30; P_WD=32; P_OUT=34; P_DBG=36; P_WS=38
SRD_K=40; SRD_V=44
S_KOFF=48
S_FAST=49
S_SPIN=50
S_T0=52; S_T1=53; S_T2=54; S_T3=55; S_T4=56; S_T5=57
S_B0=58
S_B1=60
S_EX=62
S_M=64
S_M2=66
S_SCALE=68; S_LOG2E=69
S_ST=70

V_TID=0; V_LANE=1
V_MASK=16
V_KOFF=20; V_VOFF=21; V_SCW=22; V_PPR=23; V_MAX=24
V_QA=32
V_SACC=48
V_OACC=52
V_A0=56; V_A1=60
V_PP0=64; V_PP1=68
V_T=72
V_RING=96
V_X=208

class Asm:
    def __init__(self):
        self.L=[]; self.n=0
    def __call__(self, s):
        for line in s.split("\n"):
            line=line.strip()
            if line: self.L.append(("" if line.endswith(":") else "  ")+line)
    def label(self, base):
        self.n+=1
        return f"L_{base}_{self.n}"
    def text(self): return "\n".join(self.L)+"\n"

def vr(b,n): return f"v[{b}:{b+n-1}]"
def sr(b,n): return f"s[{b}:{b+n-1}]"

def wave_sum(a, v, tmp, op="add"):
    ins = "v_add_f32" if op=="add" else "v_max_f32"
    for k in (8,4,2,1):
        a(f"s_nop 1")
        a(f"{ins}_dpp {'v%d'%v}, v{v}, v{v} row_ror:{k} row_mask:0xf bank_mask:0xf")
    a("s_nop 1")
    a(f"v_readlane_b32 s{S_T0}, v{v}, 0")
    a(f"v_readlane_b32 s{S_T1}, v{v}, 16")
    a(f"v_readlane_b32 s{S_T2}, v{v}, 32")
    a(f"v_readlane_b32 s{S_T3}, v{v}, 48")
    a("s_nop 1")
    a(f"v_mov_b32 v{v}, s{S_T0}")
    a(f"{ins} v{v}, s{S_T1}, v{v}")
    a(f"{ins} v{v}, s{S_T2}, v{v}")
    a(f"{ins} v{v}, s{S_T3}, v{v}")

def round_bf16(a, dst, src):
    a(f"v_cvt_pk_bf16_f32 v{dst}, v{src}, v{src}")
    a(f"v_and_b32 v{dst}, 0xffff0000, v{dst}")

def layernorm(a, vin, vf, vout, t):
    for i in range(8):
        a(f"v_lshlrev_b32 v{vf+2*i}, 16, v{vin+i}")
        a(f"v_and_b32 v{vf+2*i+1}, 0xffff0000, v{vin+i}")
    a(f"v_add_f32 v{t}, v{vf}, v{vf+1}")
    for i in range(2,16):
        a(f"v_add_f32 v{t}, v{t}, v{vf+i}")
    wave_sum(a, t, t+1)
    a(f"v_mul_f32 v{t}, 0x3a800000, v{t}")
    a(f"v_sub_f32 v{t+1}, v{vf}, v{t}")
    a(f"v_mul_f32 v{t+2}, v{t+1}, v{t+1}")
    for i in range(1,16):
        a(f"v_sub_f32 v{t+1}, v{vf+i}, v{t}")
        a(f"v_fmac_f32 v{t+2}, v{t+1}, v{t+1}")
    wave_sum(a, t+2, t+1)
    a(f"v_mul_f32 v{t+2}, 0x3a800000, v{t+2}")
    round_bf16(a, t, t)
    round_bf16(a, t+2, t+2)
    a(f"v_add_f32 v{t+2}, 0x3727c5ac, v{t+2}")
    round_bf16(a, t+2, t+2)
    a(f"v_sqrt_f32 v{t+2}, v{t+2}")
    a("s_nop 0")
    round_bf16(a, t+2, t+2)
    a(f"v_rcp_f32 v{t+2}, v{t+2}")
    a("s_nop 0")
    for i in range(8):
        a(f"v_sub_f32 v{vf+2*i}, v{vf+2*i}, v{t}")
        a(f"v_sub_f32 v{vf+2*i+1}, v{vf+2*i+1}, v{t}")
        a(f"v_cvt_pk_bf16_f32 v{t+1}, v{vf+2*i}, v{vf+2*i+1}")
        a(f"v_lshlrev_b32 v{vf+2*i}, 16, v{t+1}")
        a(f"v_and_b32 v{vf+2*i+1}, 0xffff0000, v{t+1}")
        a(f"v_mul_f32 v{vf+2*i}, v{vf+2*i}, v{t+2}")
        a(f"v_mul_f32 v{vf+2*i+1}, v{vf+2*i+1}, v{t+2}")
        a(f"v_cvt_pk_bf16_f32 v{vout+i}, v{vf+2*i}, v{vf+2*i+1}")

def set_exec(a, lo, hi):
    a(f"s_mov_b32 exec_lo, {lo}")
    a(f"s_mov_b32 exec_hi, {hi}")
def full_exec(a):
    a("s_mov_b64 exec, -1")

def poll_loop(a, name, loads, regs, cfg):
    lp=a.label(name+"_poll"); dn=a.label(name+"_ok")
    a(f"s_mov_b32 s{S_SPIN}, {cfg.SPIN}")
    a(f"{lp}:")
    loads()
    a("s_waitcnt vmcnt(0)")
    t=V_T+23
    rs=list(regs)
    a(f"v_max_u32 v{t}, v{rs[0]}, v{rs[1] if len(rs)>1 else rs[0]}")
    i=2
    while i<len(rs):
        if i+1<len(rs):
            a(f"v_max3_u32 v{t}, v{t}, v{rs[i]}, v{rs[i+1]}"); i+=2
        else:
            a(f"v_max_u32 v{t}, v{t}, v{rs[i]}"); i+=1
    a(f"v_cmp_eq_u32 vcc, -1, v{t}")
    a(f"s_cbranch_vccz {dn}")
    a(f"s_sub_u32 s{S_SPIN}, s{S_SPIN}, 1")
    a(f"s_cmp_lg_u32 s{S_SPIN}, 0")
    a(f"s_cbranch_scc1 {lp}")
    a(f"{dn}:")

def store_mode(a, instr, intra):
    if not intra:
        a(instr+" sc1"); return
    l1=a.label("st_slow"); l2=a.label("st_done")
    a(f"s_cmp_eq_u32 s{S_FAST}, 0")
    a(f"s_cbranch_scc1 {l1}")
    a(instr)
    a(f"s_branch {l2}")
    a(f"{l1}:")
    a(instr+" sc1")
    a(f"{l2}:")

def stamp(a, cfg, idx):
    if not cfg.STAMPS: return
    a(f"s_memrealtime s[{72+2*idx}:{73+2*idx}]")

def gen(cfg):
    a=Asm()
    NS=cfg.NS
    D=4*NS
    a(f"{KNAME}:")
    a(f"s_cmp_ge_u32 s{S_ID}, 256")
    a("s_cbranch_scc1 L_exit")
    a("s_load_dwordx16 s[16:31], s[0:1], 0")
    a("s_load_dwordx8 s[32:39], s[0:1], 64")
    stamp(a,cfg,0)
    a(f"v_lshrrev_b32 v2, 6, v0")
    a(f"v_and_b32 v{V_LANE}, 63, v0")
    a(f"s_and_b32 s{S_X}, s{S_ID}, 7")
    a(f"v_readfirstlane_b32 s{S_W}, v2")
    a(f"s_lshr_b32 s{S_R}, s{S_ID}, 3")
    a(f"s_lshr_b32 s{S_T0}, s{S_R}, 3")
    a(f"s_lshl_b32 s{S_H}, s{S_X}, 2")
    a(f"s_add_u32 s{S_H}, s{S_H}, s{S_T0}")
    a(f"s_and_b32 s{S_B}, s{S_R}, 7")
    a(f"v_and_b32 v2, 15, v{V_LANE}")
    a(f"v_lshrrev_b32 v3, 4, v{V_LANE}")
    a(f"v_lshlrev_b32 v{V_VOFF}, 4, v{V_LANE}")
    a(f"v_lshrrev_b32 v4, 2, v2")
    a(f"v_and_b32 v5, 3, v2")
    a(f"v_lshlrev_b32 v6, 8, v4")
    a(f"v_lshlrev_b32 v7, 6, v3")
    a(f"v_lshlrev_b32 v8, 4, v5")
    a(f"v_add3_u32 v{V_KOFF}, v6, v7, v8")
    a("s_waitcnt lgkmcnt(0)")
    a(f"s_lshl_b32 s{S_T0}, s{S_B}, 5")
    a(f"s_add_u32 s{S_T0}, s{S_T0}, s{S_H}")
    a(f"s_lshl_b32 s{S_T0}, s{S_T0}, 20")
    for srd,p in ((SRD_K,P_K),(SRD_V,P_V)):
        a(f"s_add_u32 s{srd}, s{p}, s{S_T0}")
        a(f"s_addc_u32 s{srd+1}, s{p+1}, 0")
        a(f"s_and_b32 s{srd+1}, s{srd+1}, 0xffff")
        a(f"s_mov_b32 s{srd+2}, 0x100000")
        a(f"s_mov_b32 s{srd+3}, 0x20000")
    a(f"s_lshl_b32 s{S_T0}, s{S_W}, 11")
    a(f"v_lshlrev_b32 v9, 5, v{V_LANE}")
    a(f"v_add_u32 v9, s{S_T0}, v9")
    a(f"global_load_dwordx4 {vr(V_X,4)}, v9, {sr(P_X,2)}")
    a(f"global_load_dwordx4 {vr(V_X+4,4)}, v9, {sr(P_X,2)} offset:16")
    a(f"s_lshl_b32 s{S_KOFF}, s{S_W}, 12")
    a(f"s_cmp_lt_u32 s{S_W}, 4")
    a("s_cbranch_scc1 L_lowwaves")

    a(f"v_lshrrev_b32 v10, 3, v{V_LANE}")
    a(f"v_and_b32 v11, 7, v{V_LANE}")
    a(f"v_lshlrev_b32 v11, 4, v11")
    a(f"s_lshr_b32 s{S_T4}, s{S_R}, 4")
    a(f"s_and_b32 s{S_T5}, s{S_R}, 15")
    a(f"s_cmp_eq_u32 s{S_W}, 4")
    a("s_cbranch_scc1 L_dma_wo")
    a(f"s_cmp_eq_u32 s{S_W}, 7")
    a("s_cbranch_scc1 L_dma_wd")
    a(f"s_cmp_ge_u32 s{S_R}, 28")
    a("s_cbranch_scc1 L_dma_done")
    a(f"s_mul_i32 s{S_T0}, s{S_R}, 37")
    a(f"s_lshr_b32 s{S_T0}, s{S_T0}, 8")
    a(f"s_mul_i32 s{S_T1}, s{S_T0}, 7")
    a(f"s_sub_u32 s{S_T1}, s{S_R}, s{S_T1}")
    a(f"s_mul_i32 s{S_T0}, s{S_T0}, {256*7168}")
    a(f"s_mul_i32 s{S_T2}, s{S_X}, 896")
    a(f"s_lshl_b32 s{S_T1}, s{S_T1}, 7")
    a(f"s_add_u32 s{S_T0}, s{S_T0}, s{S_T2}")
    a(f"s_add_u32 s{S_T0}, s{S_T0}, s{S_T1}")
    a(f"s_cmp_eq_u32 s{S_W}, 5")
    a(f"s_cselect_b32 s{S_B0}, s{P_WG}, s{P_WU}")
    a(f"s_cselect_b32 s{S_B0+1}, s{P_WG+1}, s{P_WU+1}")
    a(f"s_mov_b32 s{S_T3}, {L_WU}")
    a(f"s_cselect_b32 s{S_T3}, {L_WG}, s{S_T3}")
    a(f"s_add_u32 s{S_B0}, s{S_B0}, s{S_T0}")
    a(f"s_addc_u32 s{S_B0+1}, s{S_B0+1}, 0")
    a(f"s_mov_b32 s{S_T0}, 7168")
    a(f"s_mov_b32 s{S_T1}, 32")
    a("s_branch L_dma_go")
    a("L_dma_wo:")
    a(f"s_lshl_b32 s{S_T0}, s{S_X}, 1")
    a(f"s_add_u32 s{S_T0}, s{S_T0}, s{S_T4}")
    a(f"s_lshl_b32 s{S_T0}, s{S_T0}, 19")
    a(f"s_lshl_b32 s{S_T1}, s{S_T5}, 7")
    a(f"s_add_u32 s{S_T0}, s{S_T0}, s{S_T1}")
    a(f"s_add_u32 s{S_B0}, s{P_WO}, s{S_T0}")
    a(f"s_addc_u32 s{S_B0+1}, s{P_WO+1}, 0")
    a(f"s_mov_b32 s{S_T3}, {L_WO}")
    a(f"s_mov_b32 s{S_T0}, 2048")
    a(f"s_mov_b32 s{S_T1}, 32")
    a("s_branch L_dma_go")
    a("L_dma_wd:")
    a(f"s_lshl_b32 s{S_T0}, s{S_X}, 1")
    a(f"s_add_u32 s{S_T0}, s{S_T0}, s{S_T4}")
    a(f"s_mul_i32 s{S_T0}, s{S_T0}, {224*2048}")
    a(f"s_lshl_b32 s{S_T1}, s{S_T5}, 7")
    a(f"s_add_u32 s{S_T0}, s{S_T0}, s{S_T1}")
    a(f"s_add_u32 s{S_B0}, s{P_WD}, s{S_T0}")
    a(f"s_addc_u32 s{S_B0+1}, s{P_WD+1}, 0")
    a(f"s_mov_b32 s{S_T3}, {L_WD}")
    a(f"s_mov_b32 s{S_T0}, 2048")
    a(f"s_mov_b32 s{S_T1}, 28")
    a("L_dma_go:")
    a(f"v_mul_lo_u32 v10, v10, s{S_T0}")
    a(f"s_lshl_b32 s{S_T0}, s{S_T0}, 3")
    a(f"v_add_u32 v10, v10, v11")
    a(f"s_mov_b32 m0, s{S_T3}")
    a("s_nop 0")
    a("L_dma_loop:")
    a(f"global_load_lds_dwordx4 v10, {sr(S_B0,2)} {cfg.WFLAGS}")
    a(f"s_add_u32 s{S_B0}, s{S_B0}, s{S_T0}")
    a(f"s_addc_u32 s{S_B0+1}, s{S_B0+1}, 0")
    a(f"s_add_u32 m0, m0, 1024")
    a(f"s_sub_u32 s{S_T1}, s{S_T1}, 1")
    a(f"s_cmp_lg_u32 s{S_T1}, 0")
    a("s_cbranch_scc1 L_dma_loop")
    a("L_dma_done:")
    def issue_tile(T):
        slot=T%NS
        srd,voff=(SRD_K,V_KOFF) if T<32 else (SRD_V,V_VOFF)
        if T==32:
            a(f"s_lshl_b32 s{S_KOFF}, s{S_W}, 12")
        for n in range(4):
            reg=V_RING+slot*16+n*4
            a(f"buffer_load_dwordx4 {vr(reg,4)}, v{voff}, {sr(srd,4)}, s{S_KOFF} offen offset:{n*1024} {cfg.KVFLAGS}")
        a(f"s_add_u32 s{S_KOFF}, s{S_KOFF}, 32768")
    for T in range(NS): issue_tile(T)
    a(f"s_cmp_ge_u32 s{S_R}, 28")
    a("s_cbranch_scc1 L_hw_r28")
    a(f"s_cmp_eq_u32 s{S_W}, 7")
    a("s_cbranch_scc1 L_hw_28")
    a(f"s_waitcnt vmcnt({32+D})")
    a("s_branch L_ln1")
    a("L_hw_r28:")
    a(f"s_cmp_eq_u32 s{S_W}, 4")
    a("s_cbranch_scc1 L_hw_32")
    a(f"s_cmp_eq_u32 s{S_W}, 7")
    a("s_cbranch_scc1 L_hw_28")
    a(f"s_waitcnt vmcnt({D})")
    a("s_branch L_ln1")
    a("L_hw_32:")
    a(f"s_waitcnt vmcnt({32+D})")
    a("s_branch L_ln1")
    a("L_hw_28:")
    a(f"s_waitcnt vmcnt({28+D})")
    a("s_branch L_ln1")

    a("L_lowwaves:")
    a(f"v_lshlrev_b32 v10, 13, v3")
    a(f"v_lshlrev_b32 v11, 4, v2")
    a(f"v_add_u32 v10, v10, v11")
    a(f"s_lshl_b32 s{S_T0}, s{S_B}, 7")
    a(f"s_lshl_b32 s{S_T1}, s{S_W}, 5")
    a(f"s_add_u32 s{S_T0}, s{S_T0}, s{S_T1}")
    a(f"s_lshl_b32 s{S_T0}, s{S_T0}, 13")
    a(f"s_lshl_b32 s{S_T1}, s{S_H}, 8")
    a(f"s_add_u32 s{S_T0}, s{S_T0}, s{S_T1}")
    a(f"s_add_u32 s{S_B0}, s{P_WQ}, s{S_T0}")
    a(f"s_addc_u32 s{S_B0+1}, s{P_WQ+1}, 0")
    a(f"s_lshl_b32 s{S_T1}, s{S_W}, 13")
    a(f"s_add_u32 m0, s{S_T1}, {L_WQ}")
    a("s_nop 0")
    for n in range(8):
        a(f"global_load_lds_dwordx4 v10, {sr(S_B0,2)} {cfg.WFLAGS}")
        if n<7:
            a(f"s_add_u32 m0, m0, 1024")
            a(f"s_add_u32 s{S_B0}, s{S_B0}, {4*8192}")
            a(f"s_addc_u32 s{S_B0+1}, s{S_B0+1}, 0")
    a(f"v_mov_b32 v12, -1\nv_mov_b32 v13, -1\nv_mov_b32 v14, -1\nv_mov_b32 v15, -1")
    a(f"s_lshr_b32 s{S_T4}, s{S_R}, 4")
    a(f"s_and_b32 s{S_T5}, s{S_R}, 15")
    a(f"s_cmp_eq_u32 s{S_W}, 2")
    a("s_cbranch_scc1 L_clr_gp")
    a(f"s_cmp_eq_u32 s{S_W}, 3")
    a("s_cbranch_scc1 L_clr_small")
    a(f"s_mov_b32 s{S_T0}, {W_DP}")
    a(f"s_cmp_eq_u32 s{S_W}, 0")
    a(f"s_cselect_b32 s{S_T0}, {W_AP}, s{S_T0}")
    a(f"s_lshl_b32 s{S_T1}, s{S_X}, 1")
    a(f"s_add_u32 s{S_T1}, s{S_T1}, s{S_T4}")
    a(f"s_lshl_b32 s{S_T1}, s{S_T1}, 15")
    a(f"s_add_u32 s{S_T0}, s{S_T0}, s{S_T1}")
    a(f"s_lshl_b32 s{S_T1}, s{S_T5}, 8")
    a(f"s_add_u32 s{S_T0}, s{S_T0}, s{S_T1}")
    a(f"v_lshlrev_b32 v10, 12, v3")
    a(f"v_lshlrev_b32 v11, 4, v2")
    a(f"v_add3_u32 v10, v10, v11, s{S_T0}")
    a(f"global_store_dwordx4 v10, v[12:15], {sr(P_WS,2)} sc1")
    a(f"v_add_u32 v10, {4*4096}, v10")
    a(f"global_store_dwordx4 v10, v[12:15], {sr(P_WS,2)} sc1")
    a("s_branch L_clr_done")
    a("L_clr_gp:")
    a(f"s_cmp_ge_u32 s{S_R}, 28")
    a("s_cbranch_scc1 L_clr_done")
    a(f"s_mul_i32 s{S_T0}, s{S_X}, 28")
    a(f"s_add_u32 s{S_T0}, s{S_T0}, s{S_R}")
    a(f"s_lshl_b32 s{S_T0}, s{S_T0}, 12")
    a(f"s_add_u32 s{S_T0}, s{S_T0}, {W_GP}")
    a(f"v_add_u32 v10, s{S_T0}, v{V_VOFF}")
    for n in range(4):
        a(f"global_store_dwordx4 v10, v[12:15], {sr(P_WS,2)} offset:{n*1024} sc1")
    a("s_branch L_clr_done")
    a("L_clr_small:")
    a(f"s_lshl_b32 s{S_T0}, s{S_H}, 3")
    a(f"s_add_u32 s{S_T0}, s{S_T0}, s{S_B}")
    a(f"s_lshl_b32 s{S_T0}, s{S_T0}, 8")
    a(f"s_add_u32 s{S_T0}, s{S_T0}, {W_OB}")
    a(f"v_add_u32 v10, s{S_T0}, v{V_VOFF}")
    set_exec(a, "0xffff", 0)
    a(f"global_store_dwordx4 v10, v[12:15], {sr(P_WS,2)} sc1")
    full_exec(a)
    a(f"s_lshr_b32 s{S_T0}, s{S_R}, 2")
    a(f"s_lshl_b32 s{S_T1}, s{S_X}, 3")
    a(f"s_add_u32 s{S_T0}, s{S_T0}, s{S_T1}")
    a(f"s_lshl_b32 s{S_T0}, s{S_T0}, 11")
    a(f"s_and_b32 s{S_T1}, s{S_R}, 3")
    a(f"s_lshl_b32 s{S_T1}, s{S_T1}, 9")
    a(f"s_add_u32 s{S_T0}, s{S_T0}, s{S_T1}")
    a(f"s_add_u32 s{S_T0}, s{S_T0}, {W_HB}")
    a(f"v_add_u32 v10, s{S_T0}, v{V_VOFF}")
    set_exec(a, -1, 0)
    a(f"global_store_dwordx4 v10, v[12:15], {sr(P_WS,2)} sc1")
    full_exec(a)
    a(f"s_cmp_ge_u32 s{S_R}, 28")
    a("s_cbranch_scc1 L_clr_done")
    a(f"s_mul_i32 s{S_T0}, s{S_R}, 37")
    a(f"s_lshr_b32 s{S_T0}, s{S_T0}, 8")
    a(f"s_mul_i32 s{S_T1}, s{S_T0}, 7")
    a(f"s_sub_u32 s{S_T1}, s{S_R}, s{S_T1}")
    a(f"s_lshl_b32 s{S_T0}, s{S_T0}, 1")
    a(f"s_lshl_b32 s{S_T2}, s{S_X}, 3")
    a(f"s_add_u32 s{S_T0}, s{S_T0}, s{S_T2}")
    a(f"s_mul_i32 s{S_T0}, s{S_T0}, 896")
    a(f"s_lshl_b32 s{S_T1}, s{S_T1}, 7")
    a(f"s_add_u32 s{S_T0}, s{S_T0}, s{S_T1}")
    a(f"s_add_u32 s{S_T0}, s{S_T0}, {W_ACT}")
    a(f"v_lshrrev_b32 v10, 3, v{V_LANE}")
    a(f"v_mul_u32_u24 v10, 896, v10")
    a(f"v_and_b32 v11, 7, v{V_LANE}")
    a(f"v_lshlrev_b32 v11, 4, v11")
    a(f"v_add3_u32 v10, v10, v11, s{S_T0}")
    set_exec(a, "0xffff", 0)
    a(f"global_store_dwordx4 v10, v[12:15], {sr(P_WS,2)} sc1")
    full_exec(a)
    a("L_clr_done:")
    a(f"s_cmp_lg_u32 s{S_W}, 0")
    a("s_cbranch_scc1 L_xcc_done")
    a(f"s_getreg_b32 s{S_T0}, hwreg(HW_REG_XCC_ID, 0, 4)")
    a(f"s_lshl_b32 s{S_T0}, 1, s{S_T0}")
    a(f"s_lshl_b32 s{S_T1}, s{S_X}, 2")
    a(f"s_add_u32 s{S_T1}, s{S_T1}, {D_XCC}")
    a(f"v_mov_b32 v10, s{S_T1}")
    a(f"v_mov_b32 v11, s{S_T0}")
    set_exec(a, 1, 0)
    a(f"global_atomic_or v10, v11, {sr(P_DBG,2)} sc1")
    full_exec(a)
    a("L_xcc_done:")
    a("s_waitcnt vmcnt(0)")

    a("L_ln1:")
    layernorm(a, V_X, V_X+8, V_X+24, V_T)
    a(f"s_lshl_b32 s{S_T0}, s{S_B}, 3")
    a(f"v_subrev_u32 v10, s{S_T0}, v{V_LANE}")
    a(f"v_cmp_gt_u32 vcc, 8, v10")
    a(f"s_lshl_b32 s{S_T1}, s{S_W}, 8")
    a(f"s_add_u32 s{S_T1}, s{S_T1}, {L_LNA}")
    a(f"v_lshlrev_b32 v10, 5, v10")
    a(f"v_add_u32 v10, s{S_T1}, v10")
    a(f"s_and_saveexec_b64 {sr(S_EX,2)}, vcc")
    a(f"ds_write_b128 v10, {vr(V_X+24,4)}")
    a(f"ds_write_b128 v10, {vr(V_X+28,4)} offset:16")
    a(f"s_mov_b64 exec, {sr(S_EX,2)}")
    a("s_waitcnt lgkmcnt(0)")
    a("s_barrier")
    stamp(a,cfg,1)
    a(f"s_cmp_ge_u32 s{S_W}, 4")
    a("s_cbranch_scc1 L_q_b2")
    a(f"s_cmp_lg_u32 s{S_W}, 0")
    a("s_cbranch_scc1 L_q_mm")
    a(f"v_mov_b32 v10, {D_CLR}")
    a(f"v_mov_b32 v11, 1")
    set_exec(a, 1, 0)
    a(f"global_atomic_add v10, v11, {sr(P_DBG,2)} sc1")
    full_exec(a)
    a("L_q_mm:")
    a(f"v_and_b32 v10, 7, v{V_LANE}")
    a(f"v_lshlrev_b32 v10, 8, v10")
    a(f"v_lshlrev_b32 v11, 4, v3")
    a(f"v_add_u32 v10, v10, v11")
    a(f"v_add_u32 v10, {L_LNA}, v10")
    for s in range(4):
        a(f"ds_read_b128 {vr(V_X+4*s,4)}, v10 offset:{64*s}")
    a(f"v_lshlrev_b32 v11, 3, v3")
    a(f"v_add_u32 v11, v11, v4")
    a(f"v_lshlrev_b32 v11, 8, v11")
    a(f"v_lshlrev_b32 v12, 3, v5")
    a(f"s_lshl_b32 s{S_T0}, s{S_W}, 6")
    a(f"s_add_u32 s{S_T0}, s{S_T0}, {L_WQ}")
    a(f"v_add3_u32 v11, v11, v12, s{S_T0}")
    for tt in range(2):
        for s in range(4):
            for hf in range(2):
                reg=V_X+16+tt*16+s*4+hf*2
                a(f"ds_read_b64_tr_b16 {vr(reg,2)}, v11 offset:{(32*s+4*hf)*256+32*tt}")
    a("s_waitcnt lgkmcnt(0)")
    for tt in range(2):
        for s in range(4):
            c = "0" if s==0 else vr(V_T+4*tt,4)
            a(f"v_mfma_f32_16x16x32_bf16 {vr(V_T+4*tt,4)}, {vr(V_X+16+tt*16+s*4,4)}, {vr(V_X+4*s,4)}, {c}")
    a(f"s_lshl_b32 s{S_T0}, s{S_H}, 3")
    a(f"s_add_u32 s{S_T0}, s{S_T0}, s{S_B}")
    a(f"s_lshl_b32 s{S_T0}, s{S_T0}, 12")
    a(f"s_lshl_b32 s{S_T1}, s{S_W}, 7")
    a(f"s_add_u32 s{S_T0}, s{S_T0}, s{S_T1}")
    a(f"s_add_u32 s{S_T0}, s{S_T0}, {W_QP}")
    a(f"v_lshlrev_b32 v10, 9, v2")
    a(f"v_lshlrev_b32 v11, 4, v3")
    a(f"v_add3_u32 v10, v10, v11, s{S_T0}")
    a("s_nop 7")
    set_exec(a, "0x00ff00ff", "0x00ff00ff")
    a(f"global_store_dwordx4 v10, {vr(V_T,4)}, {sr(P_WS,2)} sc1")
    a(f"global_store_dwordx4 v10, {vr(V_T+4,4)}, {sr(P_WS,2)} offset:64 sc1")
    full_exec(a)
    a("s_waitcnt vmcnt(0)")
    a("L_q_b2:")
    a("s_barrier")
    a(f"s_cmp_ge_u32 s{S_W}, 4")
    a("s_cbranch_scc1 L_q_b3")
    a(f"s_cmp_eq_u32 s{S_W}, 0")
    a("s_cbranch_scc1 L_q_w0")
    for T in range(NS): issue_tile(T)
    a("s_branch L_q_b3")
    a("L_q_w0:")
    a(f"s_lshl_b32 s{S_T0}, s{S_H}, 2")
    a(f"v_mov_b32 v10, s{S_T0}")
    a(f"v_mov_b32 v11, 1")
    set_exec(a, 1, 0)
    a(f"global_atomic_add v10, v11, {sr(P_DBG,2)} sc1")
    lp=a.label("qpoll"); dn=a.label("qok")
    a(f"s_mov_b32 s{S_SPIN}, {cfg.SPIN}")
    a(f"{lp}:")
    a(f"global_load_dword v11, v10, {sr(P_DBG,2)} sc1")
    a("s_waitcnt vmcnt(0)")
    a(f"v_cmp_gt_u32 vcc, 8, v11")
    a(f"s_cbranch_vccz {dn}")
    a(f"s_sub_u32 s{S_SPIN}, s{S_SPIN}, 1")
    a(f"s_cmp_lg_u32 s{S_SPIN}, 0")
    a(f"s_cbranch_scc1 {lp}")
    a(f"{dn}:")
    full_exec(a)
    a(f"s_lshl_b32 s{S_T0}, s{S_H}, 15")
    a(f"s_lshl_b32 s{S_T1}, s{S_B}, 9")
    a(f"s_add_u32 s{S_T0}, s{S_T0}, s{S_T1}")
    a(f"s_add_u32 s{S_T0}, s{S_T0}, {W_QP}")
    a(f"v_lshrrev_b32 v10, 5, v{V_LANE}")
    a(f"v_lshlrev_b32 v10, 12, v10")
    a(f"v_and_b32 v11, 31, v{V_LANE}")
    a(f"v_lshlrev_b32 v11, 4, v11")
    a(f"v_add3_u32 v10, v10, v11, s{S_T0}")
    for u in range(4):
        a(f"global_load_dwordx4 {vr(V_X+4*u,4)}, v10, {sr(P_WS,2)} sc1")
        if u<3: a(f"v_add_u32 v10, 8192, v10")
    a("s_waitcnt vmcnt(0)")
    for c in range(4):
        a(f"v_add_f32 v{V_X+c}, v{V_X+c}, v{V_X+4+c}")
        a(f"v_add_f32 v{V_X+8+c}, v{V_X+8+c}, v{V_X+12+c}")
    for c in range(4):
        a(f"v_add_f32 v{V_X+c}, v{V_X+c}, v{V_X+8+c}")
    for c in range(4):
        a(f"v_mov_b32 v{V_X+4+c}, v{V_X+c}")
    a("s_nop 1")
    for c in range(4):
        a(f"v_permlane32_swap_b32 v{V_X+c}, v{V_X+4+c}")
    for c in range(4):
        a(f"v_add_f32 v{V_X+c}, v{V_X+c}, v{V_X+4+c}")
    a(f"v_cvt_pk_bf16_f32 v{V_X+8}, v{V_X}, v{V_X+1}")
    a(f"v_cvt_pk_bf16_f32 v{V_X+9}, v{V_X+2}, v{V_X+3}")
    a(f"v_and_b32 v11, 31, v{V_LANE}")
    a(f"v_lshlrev_b32 v11, 3, v11")
    a(f"v_add_u32 v11, {L_QS}, v11")
    a(f"ds_write_b64 v11, {vr(V_X+8,2)}")
    for T in range(NS): issue_tile(T)
    a("s_waitcnt lgkmcnt(0)")
    a("L_q_b3:")
    a("s_barrier")
    stamp(a,cfg,2)
    a(f"v_lshlrev_b32 v10, 2, v3")
    a(f"v_add_u32 v10, v10, v5")
    a(f"v_lshlrev_b32 v10, 4, v10")
    a(f"v_add_u32 v10, {L_QS}, v10")
    a(f"ds_read_b128 {vr(V_T,4)}, v10")
    a(f"v_and_b32 v10, 1, v2")
    a(f"v_cmp_eq_u32 vcc, 1, v10")
    a(f"v_mov_b32 v11, 0xffff")
    a(f"v_mov_b32 v12, 0xffff0000")
    a(f"v_cndmask_b32 v11, v11, v12, vcc")
    a(f"v_lshrrev_b32 v10, 1, v2")
    for w in range(4):
        a(f"v_cmp_eq_u32 vcc, {w}, v10")
        a("s_nop 1")
        a(f"v_cndmask_b32 v{V_MASK+w}, 0, v11, vcc")
    a(f"s_lshl_b32 s{S_T0}, s{S_W}, 11")
    a(f"s_add_u32 s{S_T0}, s{S_T0}, {L_SC}")
    a(f"v_lshlrev_b32 v10, 4, v4")
    a(f"v_lshlrev_b32 v11, 2, v3")
    a(f"v_add3_u32 v{V_SCW}, v10, v11, s{S_T0}")
    a(f"v_lshlrev_b32 v10, 4, v3")
    a(f"v_add_u32 v{V_PPR}, s{S_T0}, v10")
    a(f"v_mov_b32 v{V_MAX}, 0xff800000")
    a(f"s_mov_b32 s{S_SCALE}, 0x3db504f3")
    a(f"s_mov_b32 s{S_LOG2E}, 0x3fb8aa3b")
    a("s_waitcnt lgkmcnt(0)")
    for n in range(4):
        a(f"v_cmp_eq_u32 vcc, {n}, v4")
        a("s_nop 1")
        for c in range(4):
            a(f"v_cndmask_b32 v{V_QA+4*n+c}, 0, v{V_T+c}, vcc")

    def outstanding_after(T):
        return 4*(min(T+NS-1,63)-T)
    for T in range(32):
        slot=T%NS
        a(f"s_waitcnt vmcnt({outstanding_after(T)})")
        for n in range(4):
            c="0" if n==0 else vr(V_SACC,4)
            a(f"v_mfma_f32_16x16x32_bf16 {vr(V_SACC,4)}, {vr(V_QA+4*n,4)}, {vr(V_RING+slot*16+4*n,4)}, {c}")
        if T+NS<64: issue_tile(T+NS)
        a("s_nop 7")
        t=V_T
        a(f"v_mov_b32_dpp v{t}, v{V_SACC} quad_perm:[0,0,0,0] row_mask:0xf bank_mask:0xf")
        for n in range(1,4):
            a(f"v_add_f32_dpp v{t}, v{V_SACC+n}, v{t} quad_perm:[{n},{n},{n},{n}] row_mask:0xf bank_mask:0xf")
        round_bf16(a,t,t)
        a(f"v_mul_f32 v{t}, s{S_SCALE}, v{t}")
        round_bf16(a,t,t)
        a(f"v_max_f32 v{V_MAX}, v{V_MAX}, v{t}")
        a(f"ds_write_b32 v{V_SCW}, v{t} offset:{T*64}")
    stamp(a,cfg,3)
    wave_sum(a, V_MAX, V_T, op="max")
    a(f"s_lshl_b32 s{S_T4}, s{S_W}, 11")
    a(f"s_add_u32 s{S_T4}, s{S_T4}, {L_SC}")
    a(f"v_lshlrev_b32 v10, 5, v{V_LANE}")
    a(f"v_add_u32 v10, s{S_T4}, v10")
    a("s_waitcnt lgkmcnt(0)")
    a(f"ds_read_b128 {vr(V_T,4)}, v10")
    a(f"ds_read_b128 {vr(V_T+4,4)}, v10 offset:16")
    a("s_waitcnt lgkmcnt(0)")
    for i in range(8):
        a(f"v_sub_f32 v{V_T+8+i}, v{V_T+i}, v{V_MAX}")
        a(f"v_mul_f32 v{V_T+8+i}, s{S_LOG2E}, v{V_T+8+i}")
        a(f"v_exp_f32 v{V_T+8+i}, v{V_T+8+i}")
    a("s_nop 0")
    a(f"v_add_f32 v{V_T+16}, v{V_T+8}, v{V_T+9}")
    for i in range(2,8):
        a(f"v_add_f32 v{V_T+16}, v{V_T+16}, v{V_T+8+i}")
    wave_sum(a, V_T+16, V_T+17)
    a(f"v_mov_b32 v{V_T+17}, v{V_MAX}")
    a(f"v_mov_b32 v{V_T+18}, v{V_T+16}")
    a(f"s_lshl_b32 s{S_T0}, s{S_W}, 3")
    a(f"s_add_u32 s{S_T0}, s{S_T0}, {L_ML}")
    a(f"v_mov_b32 v11, s{S_T0}")
    set_exec(a, 1, 0)
    a(f"ds_write_b64 v11, {vr(V_T+17,2)}") if (V_T+17)%2==0 else None
    if (V_T+17)%2!=0:
        a(f"ds_write_b32 v11, v{V_T+17}")
        a(f"ds_write_b32 v11, v{V_T+18} offset:4")
    full_exec(a)
    a("s_waitcnt lgkmcnt(0)")
    a("s_barrier")
    a(f"v_mov_b32 v11, {L_ML}")
    for k in range(4):
        a(f"ds_read_b128 {vr(V_X+4*k,4)}, v11 offset:{16*k}")
    a("s_waitcnt lgkmcnt(0)")
    a(f"v_max_f32 v{V_MAX}, v{V_X}, v{V_X+2}")
    for k in range(2,8):
        a(f"v_max_f32 v{V_MAX}, v{V_MAX}, v{V_X+2*k}")
    for k in range(8):
        a(f"v_sub_f32 v{V_X+2*k}, v{V_X+2*k}, v{V_MAX}")
        a(f"v_mul_f32 v{V_X+2*k}, s{S_LOG2E}, v{V_X+2*k}")
        a(f"v_exp_f32 v{V_X+2*k}, v{V_X+2*k}")
    a("s_nop 0")
    a(f"v_mul_f32 v{V_T+16}, v{V_X}, v{V_X+1}")
    for k in range(1,8):
        a(f"v_fmac_f32 v{V_T+16}, v{V_X+2*k}, v{V_X+2*k+1}")
    a(f"v_rcp_f32 v{V_T+17}, v{V_T+16}")
    a("s_nop 0")
    a(f"v_fma_f32 v{V_T+18}, -v{V_T+16}, v{V_T+17}, 1.0")
    a(f"v_fma_f32 v{V_T+17}, v{V_T+18}, v{V_T+17}, v{V_T+17}")
    for i in range(8):
        a(f"v_sub_f32 v{V_T+8+i}, v{V_T+i}, v{V_MAX}")
        a(f"v_mul_f32 v{V_T+8+i}, s{S_LOG2E}, v{V_T+8+i}")
        a(f"v_exp_f32 v{V_T+8+i}, v{V_T+8+i}")
    a("s_nop 0")
    for i in range(8):
        a(f"v_mul_f32 v{V_T+8+i}, v{V_T+8+i}, v{V_T+17}")
        a(f"v_cvt_pk_bf16_f32 v{V_T+8+i}, v{V_T+8+i}, v{V_T+8+i}")
    a(f"ds_write_b128 v10, {vr(V_T+8,4)}")
    a(f"ds_write_b128 v10, {vr(V_T+12,4)} offset:16")
    for c in range(4):
        a(f"v_mov_b32 v{V_OACC+c}, 0")
    a("s_waitcnt lgkmcnt(0)")
    stamp(a,cfg,4)
    a(f"ds_read_b128 {vr(V_PP0,4)}, v{V_PPR}")
    for T in range(32,64):
        t=T-32
        slot=T%NS
        pp = V_PP0 if t%2==0 else V_PP1
        ppn = V_PP1 if t%2==0 else V_PP0
        if t<31:
            a(f"ds_read_b128 {vr(ppn,4)}, v{V_PPR} offset:{(t+1)*64}")
            a(f"s_waitcnt vmcnt({outstanding_after(T)}) lgkmcnt(1)")
        else:
            a(f"s_waitcnt vmcnt({outstanding_after(T)}) lgkmcnt(0)")
        def ands(dst,n):
            for w in range(4):
                a(f"v_and_b32 v{dst+w}, v{pp+n}, v{V_MASK+w}")
        def mm(A,n):
            a(f"v_mfma_f32_16x16x32_bf16 {vr(V_OACC,4)}, {vr(A,4)}, {vr(V_RING+slot*16+4*n,4)}, {vr(V_OACC,4)}")
        ands(V_A0,0); ands(V_A1,1)
        mm(V_A0,0)
        ands(V_A0,2)
        mm(V_A1,1)
        ands(V_A1,3)
        mm(V_A0,2)
        a("s_nop 0")
        mm(V_A1,3)
        if T+NS<64: issue_tile(T+NS)
    stamp(a,cfg,5)
    return a, issue_tile


def gen_tail(a, cfg):
    NS=cfg.NS
    WB=V_RING
    WO_F=WB; GU_F=WB+16; WD_F=WB+48
    TT=V_RING+64
    a(f"v_lshlrev_b32 v10, 2, v2")
    a(f"v_add_u32 v10, {D_CLR}, v10")
    a(f"global_load_dword v{TT+40}, v10, {sr(P_DBG,2)} sc1")
    a(f"s_lshr_b32 s{S_T0}, s{S_R}, 2")
    a(f"s_lshl_b32 s{S_T0}, s{S_T0}, 11")
    a(f"s_and_b32 s{S_T1}, s{S_R}, 3")
    a(f"s_lshl_b32 s{S_T1}, s{S_T1}, 9")
    a(f"s_add_u32 s{S_T0}, s{S_T0}, s{S_T1}")
    a(f"v_lshlrev_b32 v11, 3, v{V_LANE}")
    a(f"v_add_u32 v11, s{S_T0}, v11")
    a(f"global_load_dwordx2 {vr(TT+42,2)}, v11, {sr(P_X,2)}")
    a(f"s_lshl_b32 s{S_T0}, s{S_W}, 9")
    a(f"s_add_u32 s{S_T0}, s{S_T0}, {L_RED}")
    a(f"v_lshlrev_b32 v10, 5, v2")
    a(f"v_lshlrev_b32 v11, 4, v3")
    a(f"v_add3_u32 v10, v10, v11, s{S_T0}")
    a("s_nop 4")
    set_exec(a, -1, 0)
    a(f"ds_write_b128 v10, {vr(V_OACC,4)}")
    full_exec(a)
    a(f"v_lshlrev_b32 v12, 3, v3")
    a(f"v_add_u32 v12, v12, v4")
    a(f"v_lshlrev_b32 v12, 7, v12")
    a(f"v_lshlrev_b32 v13, 3, v5")
    a(f"v_add_u32 v12, v12, v13")
    a(f"s_lshl_b32 s{S_T0}, s{S_W}, 12")
    a(f"s_add_u32 s{S_T1}, s{S_T0}, {L_WO}")
    a(f"v_add_u32 v13, s{S_T1}, v12")
    for t in range(4):
        for hf in range(2):
            a(f"ds_read_b64_tr_b16 {vr(WO_F+4*t+2*hf,2)}, v13 offset:{hf*4*128+32*t}")
    a(f"s_add_u32 s{S_T1}, s{S_T0}, {L_WD}")
    a(f"v_add_u32 v13, s{S_T1}, v12")
    for t in range(4):
        for hf in range(2):
            a(f"ds_read_b64_tr_b16 {vr(WD_F+4*t+2*hf,2)}, v13 offset:{hf*4*128+32*t}")
    a("s_waitcnt lgkmcnt(0)")
    a("s_barrier")
    a(f"s_lshr_b32 s{S_T0}, s{S_W}, 2")
    a(f"s_lshl_b32 s{S_T0}, s{S_T0}, 15")
    a(f"s_and_b32 s{S_T1}, s{S_W}, 3")
    a(f"s_lshl_b32 s{S_T1}, s{S_T1}, 5")
    a(f"s_add_u32 s{S_T0}, s{S_T0}, s{S_T1}")
    a(f"s_add_u32 s{S_T0}, s{S_T0}, {L_WG}")
    a(f"v_add_u32 v13, s{S_T0}, v12")
    a(f"s_cmp_lg_u32 s{S_W}, 0")
    a("s_cbranch_scc1 L_t1_skip")
    a(f"v_lshlrev_b32 v10, 3, v{V_LANE}")
    a(f"v_add_u32 v10, {L_RED}, v10")
    for w in range(8):
        a(f"ds_read_b64 {vr(TT+2*w,2)}, v10 offset:{w*512}")
    a("s_waitcnt lgkmcnt(0)")
    for w in range(1,8):
        a(f"v_add_f32 v{TT}, v{TT}, v{TT+2*w}")
        a(f"v_add_f32 v{TT+1}, v{TT+1}, v{TT+2*w+1}")
    a(f"v_cvt_pk_bf16_f32 v{TT}, v{TT}, v{TT+1}")
    a(f"v_min_u32 v{TT}, -2, v{TT}")
    a(f"s_lshl_b32 s{S_T0}, s{S_H}, 3")
    a(f"s_add_u32 s{S_T0}, s{S_T0}, s{S_B}")
    a(f"s_lshl_b32 s{S_T0}, s{S_T0}, 8")
    a(f"s_add_u32 s{S_T0}, s{S_T0}, {W_OB}")
    a(f"v_lshlrev_b32 v10, 2, v{V_LANE}")
    a(f"v_add_u32 v10, s{S_T0}, v10")
    a("L_t1_skip:")
    lp=a.label("mode"); dn=a.label("modeok")
    a(f"s_mov_b32 s{S_SPIN}, {cfg.SPIN}")
    a(f"{lp}:")
    a("s_waitcnt vmcnt(0)")
    a(f"v_readlane_b32 s{S_T0}, v{TT+40}, 0")
    a("s_nop 1")
    a(f"s_cmp_ge_u32 s{S_T0}, 256")
    a(f"s_cbranch_scc1 {dn}")
    a(f"v_lshlrev_b32 v11, 2, v2")
    a(f"v_add_u32 v11, {D_CLR}, v11")
    a(f"global_load_dword v{TT+40}, v11, {sr(P_DBG,2)} sc1")
    a(f"s_sub_u32 s{S_SPIN}, s{S_SPIN}, 1")
    a(f"s_cmp_lg_u32 s{S_SPIN}, 0")
    a(f"s_cbranch_scc1 {lp}")
    a(f"{dn}:")
    a(f"s_mov_b32 s{S_FAST}, {1 if cfg.FASTMODE else 0}")
    for k in range(8):
        a(f"v_readlane_b32 s{8+k}, v{TT+40}, {8+k}")
    a("s_nop 1")
    for k in range(8):
        a(f"s_bcnt1_i32_b32 s{8+k}, s{8+k}")
        a(f"s_cmp_eq_u32 s{8+k}, 1")
        a(f"s_cselect_b32 s{S_FAST}, s{S_FAST}, 0")
    a(f"s_cmp_lg_u32 s{S_W}, 0")
    a("s_cbranch_scc1 L_t1_done")
    store_mode(a, f"global_store_dword v10, v{TT}, {sr(P_WS,2)}", True)
    a("L_t1_done:")
    stamp(a,cfg,6)
    for s in range(8):
        for hf in range(2):
            a(f"ds_read_b64_tr_b16 {vr(GU_F+4*s+2*hf,2)}, v13 offset:{(32*s+4*hf)*128}")
    a(f"s_lshr_b32 s{S_T4}, s{S_R}, 4")
    a(f"s_and_b32 s{S_T5}, s{S_R}, 15")
    a(f"s_lshl_b32 s{S_T0}, s{S_X}, 2")
    a(f"s_lshl_b32 s{S_T1}, s{S_T4}, 1")
    a(f"s_add_u32 s{S_T0}, s{S_T0}, s{S_T1}")
    a(f"s_lshr_b32 s{S_T1}, s{S_W}, 2")
    a(f"s_add_u32 s{S_T0}, s{S_T0}, s{S_T1}")
    a(f"s_lshl_b32 s{S_T0}, s{S_T0}, 11")
    a(f"s_and_b32 s{S_T1}, s{S_W}, 3")
    a(f"s_lshl_b32 s{S_T1}, s{S_T1}, 6")
    a(f"s_add_u32 s{S_T0}, s{S_T0}, s{S_T1}")
    a(f"s_add_u32 s{S_T0}, s{S_T0}, {W_OB}")
    a(f"v_and_b32 v14, 7, v{V_LANE}")
    a(f"v_lshlrev_b32 v10, 8, v14")
    a(f"v_lshlrev_b32 v11, 4, v3")
    a(f"v_add3_u32 v10, v10, v11, s{S_T0}")
    poll_loop(a,"t2", lambda: a(f"global_load_dwordx4 {vr(TT,4)}, v10, {sr(P_WS,2)} sc1"), range(TT,TT+4), cfg)
    a("s_waitcnt lgkmcnt(0)")
    def gemm4_reduce_publish(F, wbase, pname, nw, lab, LR):
        for t in range(4):
            a(f"v_mfma_f32_16x16x32_bf16 {vr(TT+4+4*t,4)}, {vr(F+4*t,4)}, {vr(TT,4)}, 0")
        a(f"s_lshl_b32 s{S_T0}, s{S_W}, 11")
        a(f"s_add_u32 s{S_T0}, s{S_T0}, {LR}")
        a(f"v_lshlrev_b32 v10, 8, v2")
        a(f"v_lshlrev_b32 v11, 4, v3")
        a(f"v_add3_u32 v10, v10, v11, s{S_T0}")
        a("s_nop 3")
        if nw<8:
            a(f"s_cmp_ge_u32 s{S_W}, {nw}")
            a(f"s_cbranch_scc1 {lab}_nw")
        set_exec(a, "0x00ff00ff", "0x00ff00ff")
        for t in range(4):
            a(f"ds_write_b128 v10, {vr(TT+4+4*t,4)} offset:{64*t}")
        full_exec(a)
        a(f"{lab}_nw:")
        a("s_waitcnt lgkmcnt(0)")
        a("s_barrier")
        a(f"s_cmp_ge_u32 s{S_W}, 2")
        a(f"s_cbranch_scc1 {lab}_skip")
        a(f"v_lshlrev_b32 v10, 4, v{V_TID}")
        a(f"v_add_u32 v10, {LR}, v10")
        for w in range(nw):
            a(f"ds_read_b128 {vr(TT+4+4*w,4)}, v10 offset:{w*2048}")
        a("s_waitcnt lgkmcnt(0)")
        for w in range(1,nw):
            for c in range(4):
                a(f"v_add_f32 v{TT+4+c}, v{TT+4+c}, v{TT+4+4*w+c}")
        for c in range(4):
            a(f"v_min_u32 v{TT+4+c}, -2, v{TT+4+c}")
        a(f"s_lshl_b32 s{S_T0}, s{S_X}, 1")
        a(f"s_add_u32 s{S_T0}, s{S_T0}, s{S_T4}")
        a(f"s_lshl_b32 s{S_T0}, s{S_T0}, 15")
        a(f"s_lshl_b32 s{S_T1}, s{S_T5}, 8")
        a(f"s_add_u32 s{S_T0}, s{S_T0}, s{S_T1}")
        a(f"s_add_u32 s{S_T0}, s{S_T0}, {wbase}")
        a(f"v_lshrrev_b32 v10, 4, v{V_TID}")
        a(f"v_lshlrev_b32 v10, 12, v10")
        a(f"v_lshlrev_b32 v11, 4, v2")
        a(f"v_add3_u32 v10, v10, v11, s{S_T0}")
        a(f"global_store_dwordx4 v10, {vr(TT+4,4)}, {sr(P_WS,2)} sc1")
        a(f"{lab}_skip:")
    gemm4_reduce_publish(WO_F, W_AP, "AP", 8, "L_t2", L_SC)
    stamp(a,cfg,7)
    a(f"s_lshr_b32 s{S_T0}, s{S_R}, 2")
    a(f"s_lshl_b32 s{S_T0}, s{S_T0}, 12")
    a(f"s_and_b32 s{S_T1}, s{S_R}, 3")
    a(f"s_lshl_b32 s{S_T1}, s{S_T1}, 10")
    a(f"s_add_u32 s{S_T0}, s{S_T0}, s{S_T1}")
    a(f"s_lshl_b32 s{S_T1}, s{S_W}, 16")
    a(f"s_add_u32 s{S_T0}, s{S_T0}, s{S_T1}")
    a(f"s_add_u32 s{S_T0}, s{S_T0}, {W_AP}")
    a(f"v_add_u32 v10, s{S_T0}, v{V_VOFF}")
    a(f"v_add_u32 v11, 32768, v10")
    def ld3():
        a(f"global_load_dwordx4 {vr(TT,4)}, v10, {sr(P_WS,2)} sc1")
        a(f"global_load_dwordx4 {vr(TT+4,4)}, v11, {sr(P_WS,2)} sc1")
    poll_loop(a,"t3", ld3, range(TT,TT+8), cfg)
    for c in range(4):
        a(f"v_add_f32 v{TT+c}, v{TT+c}, v{TT+4+c}")
    RED3=L_RED+4096
    a(f"s_lshl_b32 s{S_T0}, s{S_W}, 10")
    a(f"s_add_u32 s{S_T0}, s{S_T0}, {RED3}")
    a(f"v_add_u32 v10, s{S_T0}, v{V_VOFF}")
    a(f"ds_write_b128 v10, {vr(TT,4)}")
    a("s_waitcnt lgkmcnt(0)")
    a("s_barrier")
    a(f"s_cmp_lg_u32 s{S_W}, 0")
    a("s_cbranch_scc1 L_t3_skip")
    a(f"v_add_u32 v10, {RED3}, v{V_VOFF}")
    for w in range(8):
        a(f"ds_read_b128 {vr(TT+4*w,4)}, v10 offset:{w*1024}")
    a("s_waitcnt lgkmcnt(0)")
    for w in range(1,8):
        for c in range(4):
            a(f"v_add_f32 v{TT+c}, v{TT+c}, v{TT+4*w+c}")
    a(f"v_cvt_pk_bf16_f32 v{TT+4}, v{TT}, v{TT+1}")
    a(f"v_cvt_pk_bf16_f32 v{TT+5}, v{TT+2}, v{TT+3}")
    for d in range(2):
        a(f"v_lshlrev_b32 v{TT+8}, 16, v{TT+4+d}")
        a(f"v_and_b32 v{TT+9}, 0xffff0000, v{TT+4+d}")
        a(f"v_lshlrev_b32 v{TT+10}, 16, v{TT+42+d}")
        a(f"v_and_b32 v{TT+11}, 0xffff0000, v{TT+42+d}")
        a(f"v_add_f32 v{TT+8}, v{TT+8}, v{TT+10}")
        a(f"v_add_f32 v{TT+9}, v{TT+9}, v{TT+11}")
        a(f"v_cvt_pk_bf16_f32 v{TT+6+d}, v{TT+8}, v{TT+9}")
        a(f"v_min_u32 v{TT+6+d}, -2, v{TT+6+d}")
    a(f"s_lshr_b32 s{S_T0}, s{S_R}, 2")
    a(f"s_lshl_b32 s{S_T1}, s{S_X}, 3")
    a(f"s_add_u32 s{S_T0}, s{S_T0}, s{S_T1}")
    a(f"s_lshl_b32 s{S_T0}, s{S_T0}, 11")
    a(f"s_and_b32 s{S_T1}, s{S_R}, 3")
    a(f"s_lshl_b32 s{S_T1}, s{S_T1}, 9")
    a(f"s_add_u32 s{S_T0}, s{S_T0}, s{S_T1}")
    a(f"s_add_u32 s{S_T0}, s{S_T0}, {W_HB}")
    a(f"v_lshlrev_b32 v10, 3, v{V_LANE}")
    a(f"v_add_u32 v10, s{S_T0}, v10")
    store_mode(a, f"global_store_dwordx2 v10, {vr(TT+6,2)}, {sr(P_WS,2)}", True)
    a("L_t3_skip:")
    stamp(a,cfg,8)
    a(f"s_lshl_b32 s{S_T0}, s{S_X}, 3")
    a(f"s_add_u32 s{S_T0}, s{S_T0}, s{S_W}")
    a(f"s_lshl_b32 s{S_T0}, s{S_T0}, 11")
    a(f"s_add_u32 s{S_T0}, s{S_T0}, {W_HB}")
    a(f"v_lshlrev_b32 v10, 5, v{V_LANE}")
    a(f"v_add_u32 v10, s{S_T0}, v10")
    def ld4():
        a(f"global_load_dwordx4 {vr(TT,4)}, v10, {sr(P_WS,2)} sc1")
        a(f"global_load_dwordx4 {vr(TT+4,4)}, v10, {sr(P_WS,2)} offset:16 sc1")
    poll_loop(a,"t4", ld4, range(TT,TT+8), cfg)
    a(f"s_cmp_lg_u32 s{S_W}, s{S_X}")
    a("s_cbranch_scc1 L_t4_nohs")
    a(f"s_lshl_b32 s{S_T0}, s{S_R}, 1")
    a(f"v_subrev_u32 v10, s{S_T0}, v{V_LANE}")
    a(f"v_cmp_gt_u32 vcc, 2, v10")
    a(f"v_lshlrev_b32 v10, 5, v10")
    a(f"v_add_u32 v10, {L_HS}, v10")
    a(f"s_and_saveexec_b64 {sr(S_EX,2)}, vcc")
    a(f"ds_write_b128 v10, {vr(TT,4)}")
    a(f"ds_write_b128 v10, {vr(TT+4,4)} offset:16")
    a(f"s_mov_b64 exec, {sr(S_EX,2)}")
    a("L_t4_nohs:")
    a(f"s_cmp_ge_u32 s{S_R}, 28")
    a("s_cbranch_scc1 L_t5_skip_all")
    layernorm(a, TT, TT+8, TT+24, V_T)
    a(f"s_mul_i32 s{S_T4}, s{S_R}, 37")
    a(f"s_lshr_b32 s{S_T4}, s{S_T4}, 8")
    a(f"s_mul_i32 s{S_T5}, s{S_T4}, 7")
    a(f"s_sub_u32 s{S_T5}, s{S_R}, s{S_T5}")
    a(f"s_lshl_b32 s{S_T0}, s{S_T4}, 4")
    a(f"v_subrev_u32 v10, s{S_T0}, v{V_LANE}")
    a(f"v_cmp_gt_u32 vcc, 16, v10")
    a(f"s_lshl_b32 s{S_T1}, s{S_W}, 9")
    a(f"s_add_u32 s{S_T1}, s{S_T1}, {L_LNB}")
    a(f"v_lshlrev_b32 v10, 5, v10")
    a(f"v_add_u32 v10, s{S_T1}, v10")
    a(f"s_and_saveexec_b64 {sr(S_EX,2)}, vcc")
    a(f"ds_write_b128 v10, {vr(TT+24,4)}")
    a(f"ds_write_b128 v10, {vr(TT+28,4)} offset:16")
    a(f"s_mov_b64 exec, {sr(S_EX,2)}")
    a("s_waitcnt lgkmcnt(0)")
    a("s_barrier")
    stamp(a,cfg,9)
    a(f"v_lshlrev_b32 v10, 9, v14")
    a(f"v_lshlrev_b32 v11, 4, v3")
    a(f"v_add_u32 v10, v10, v11")
    a(f"v_add_u32 v10, {L_LNB}, v10")
    for s in range(8):
        a(f"ds_read_b128 {vr(TT+4*s,4)}, v10 offset:{64*s}")
    a("s_waitcnt lgkmcnt(0)")
    for s in range(8):
        c="0" if s==0 else vr(V_T,4)
        a(f"v_mfma_f32_16x16x32_bf16 {vr(V_T,4)}, {vr(GU_F+4*s,4)}, {vr(TT+4*s,4)}, {c}")
    a(f"s_mul_i32 s{S_T0}, s{S_X}, 28")
    a(f"s_add_u32 s{S_T0}, s{S_T0}, s{S_R}")
    a(f"s_lshl_b32 s{S_T0}, s{S_T0}, 12")
    a(f"s_lshr_b32 s{S_T1}, s{S_W}, 2")
    a(f"s_lshl_b32 s{S_T1}, s{S_T1}, 11")
    a(f"s_add_u32 s{S_T0}, s{S_T0}, s{S_T1}")
    a(f"s_and_b32 s{S_T1}, s{S_W}, 3")
    a(f"s_lshl_b32 s{S_T1}, s{S_T1}, 6")
    a(f"s_add_u32 s{S_T0}, s{S_T0}, s{S_T1}")
    a(f"s_add_u32 s{S_T0}, s{S_T0}, {W_GP}")
    a(f"v_lshlrev_b32 v10, 8, v2")
    a(f"v_lshlrev_b32 v11, 4, v3")
    a(f"v_add3_u32 v10, v10, v11, s{S_T0}")
    a("s_nop 1")
    for c in range(4):
        a(f"v_min_u32 v{V_T+c}, -2, v{V_T+c}")
    set_exec(a, "0x00ff00ff", "0x00ff00ff")
    store_mode(a, f"global_store_dwordx4 v10, {vr(V_T,4)}, {sr(P_WS,2)}", True)
    full_exec(a)
    a(f"s_cmp_lg_u32 s{S_W}, 0")
    a("s_cbranch_scc1 L_t5_skip_all")
    a(f"s_mul_i32 s{S_T0}, s{S_X}, 28")
    a(f"s_add_u32 s{S_T0}, s{S_T0}, s{S_T5}")
    a(f"s_lshl_b32 s{S_T0}, s{S_T0}, 12")
    a(f"s_lshl_b32 s{S_T1}, s{S_T4}, 9")
    a(f"s_add_u32 s{S_T0}, s{S_T0}, s{S_T1}")
    a(f"s_add_u32 s{S_T0}, s{S_T0}, {W_GP}")
    a(f"v_lshrrev_b32 v10, 5, v{V_LANE}")
    a(f"v_lshlrev_b32 v10, 8, v10")
    a(f"v_and_b32 v11, 31, v{V_LANE}")
    a(f"v_lshlrev_b32 v11, 3, v11")
    a(f"v_add3_u32 v10, v10, v11, s{S_T0}")
    for k in range(1,4):
        a(f"v_add_u32 v{TT+32+k}, {k*7*4096}, v10")
    a(f"v_mov_b32 v{TT+32}, v10")
    def ld5():
        for k in range(4):
            for m in range(2):
                a(f"global_load_dwordx2 {vr(TT+ (k*2+m)*2,2)}, v{TT+32+k}, {sr(P_WS,2)} offset:{m*2048} sc1")
    poll_loop(a,"t5", ld5, range(TT,TT+16), cfg)
    for k in range(1,4):
        for c in range(4):
            a(f"v_add_f32 v{TT+c}, v{TT+c}, v{TT+4*k+c}")
    G=TT; U=TT+2; X=TT+4
    for c in range(2):
        round_bf16(a,G+c,G+c)
        round_bf16(a,U+c,U+c)
    a(f"s_mov_b32 s{S_T0}, 0x3d372713")
    a(f"s_mov_b32 s{S_T1}, 0xc0135761")
    for c in range(2):
        a(f"v_mul_f32 v{X+c}, v{G+c}, v{G+c}")
        a(f"v_mul_f32 v{X+c}, v{X+c}, v{G+c}")
        a(f"v_fma_f32 v{X+c}, v{X+c}, s{S_T0}, v{G+c}")
        a(f"v_mul_f32 v{X+c}, s{S_T1}, v{X+c}")
        a(f"v_exp_f32 v{X+c}, v{X+c}")
        a("s_nop 0")
        a(f"v_add_f32 v{X+c}, 1.0, v{X+c}")
        a(f"v_rcp_f32 v{X+c}, v{X+c}")
        a("s_nop 0")
        a(f"v_mul_f32 v{X+c}, v{X+c}, v{G+c}")
        round_bf16(a,X+c,X+c)
        a(f"v_mul_f32 v{X+c}, v{X+c}, v{U+c}")
    a(f"v_cvt_pk_bf16_f32 v{X}, v{X}, v{X+1}")
    a(f"v_min_u32 v{X}, -2, v{X}")
    a(f"s_lshl_b32 s{S_T0}, s{S_X}, 3")
    a(f"s_lshl_b32 s{S_T1}, s{S_T4}, 1")
    a(f"s_add_u32 s{S_T0}, s{S_T0}, s{S_T1}")
    a(f"s_mul_i32 s{S_T0}, s{S_T0}, 896")
    a(f"s_lshl_b32 s{S_T1}, s{S_T5}, 7")
    a(f"s_add_u32 s{S_T0}, s{S_T0}, s{S_T1}")
    a(f"s_add_u32 s{S_T0}, s{S_T0}, {W_ACT}")
    a(f"v_lshrrev_b32 v10, 5, v{V_LANE}")
    a(f"v_mul_u32_u24 v10, 896, v10")
    a(f"v_and_b32 v11, 31, v{V_LANE}")
    a(f"v_lshlrev_b32 v11, 2, v11")
    a(f"v_add3_u32 v10, v10, v11, s{S_T0}")
    store_mode(a, f"global_store_dword v10, v{X}, {sr(P_WS,2)}", True)
    a("L_t5_skip_all:")
    stamp(a,cfg,10)
    a(f"s_lshr_b32 s{S_T4}, s{S_R}, 4")
    a(f"s_and_b32 s{S_T5}, s{S_R}, 15")
    a(f"s_cmp_ge_u32 s{S_W}, 7")
    a("s_cbranch_scc1 L_t6_nopoll")
    a(f"s_mul_i32 s{S_T0}, s{S_X}, {8*896}")
    a(f"s_mul_i32 s{S_T1}, s{S_T4}, 448")
    a(f"s_add_u32 s{S_T0}, s{S_T0}, s{S_T1}")
    a(f"s_lshl_b32 s{S_T1}, s{S_W}, 6")
    a(f"s_add_u32 s{S_T0}, s{S_T0}, s{S_T1}")
    a(f"s_add_u32 s{S_T0}, s{S_T0}, {W_ACT}")
    a(f"v_mul_u32_u24 v10, 896, v14")
    a(f"v_lshlrev_b32 v11, 4, v3")
    a(f"v_add3_u32 v10, v10, v11, s{S_T0}")
    poll_loop(a,"t6", lambda: a(f"global_load_dwordx4 {vr(TT,4)}, v10, {sr(P_WS,2)} sc1"), range(TT,TT+4), cfg)
    a("L_t6_nopoll:")
    gemm4_reduce_publish(WD_F, W_DP, "DP", 7, "L_t6", L_RED)
    stamp(a,cfg,11)
    a(f"s_cmp_lg_u32 s{S_W}, 0")
    a("s_cbranch_scc1 L_exit")
    a(f"s_lshl_b32 s{S_T0}, s{S_X}, 12")
    a(f"s_lshl_b32 s{S_T1}, s{S_R}, 7")
    a(f"s_add_u32 s{S_T0}, s{S_T0}, s{S_T1}")
    a(f"s_add_u32 s{S_T0}, s{S_T0}, {W_DP}")
    a(f"v_lshrrev_b32 v10, 5, v{V_LANE}")
    a(f"v_lshlrev_b32 v10, 18, v10")
    a(f"v_and_b32 v11, 31, v{V_LANE}")
    a(f"v_lshlrev_b32 v11, 2, v11")
    a(f"v_add3_u32 v10, v10, v11, s{S_T0}")
    for k in range(8):
        a(f"v_add_u32 v{TT+16+k}, {k*32768}, v10")
    def ld7():
        for k in range(8):
            a(f"global_load_dword v{TT+k}, v{TT+16+k}, {sr(P_WS,2)} sc1")
    poll_loop(a,"t7", ld7, range(TT,TT+8), cfg)
    for k in range(1,8):
        a(f"v_add_f32 v{TT}, v{TT}, v{TT+k}")
    a(f"v_mov_b32 v{TT+1}, v{TT}")
    a(f"v_and_b32 v11, 31, v{V_LANE}")
    a(f"v_lshlrev_b32 v11, 1, v11")
    a(f"v_add_u32 v11, {L_HS}, v11")
    a(f"ds_read_u16 v{TT+2}, v11")
    a(f"v_permlane32_swap_b32 v{TT}, v{TT+1}")
    a(f"v_add_f32 v{TT}, v{TT}, v{TT+1}")
    round_bf16(a,TT,TT)
    a("s_waitcnt lgkmcnt(0)")
    a(f"v_lshlrev_b32 v{TT+2}, 16, v{TT+2}")
    a(f"v_add_f32 v{TT}, v{TT}, v{TT+2}")
    a(f"v_cvt_pk_bf16_f32 v{TT}, v{TT}, v{TT}")
    a(f"s_lshl_b32 s{S_T0}, s{S_X}, 11")
    a(f"s_lshl_b32 s{S_T1}, s{S_R}, 6")
    a(f"s_add_u32 s{S_T0}, s{S_T0}, s{S_T1}")
    a(f"v_and_b32 v11, 31, v{V_LANE}")
    a(f"v_lshlrev_b32 v11, 1, v11")
    a(f"v_add_u32 v11, s{S_T0}, v11")
    set_exec(a, -1, 0)
    a(f"global_store_short v11, v{TT}, {sr(P_OUT,2)}")
    full_exec(a)
    if cfg.STAMPS:
        stamp(a,cfg,12)
        a("s_waitcnt lgkmcnt(0)")
        for k in range(13):
            a(f"v_mov_b32 v{TT}, s{72+2*k}")
            a(f"v_mov_b32 v{TT+1}, s{73+2*k}")
            a(f"s_lshl_b32 s{S_T0}, s{S_ID}, 7")
            a(f"s_add_u32 s{S_T0}, s{S_T0}, {W_STAMP+8*k}")
            a(f"v_mov_b32 v10, s{S_T0}")
            set_exec(a,1,0)
            a(f"global_store_dwordx2 v10, {vr(TT,2)}, {sr(P_WS,2)}")
            full_exec(a)
    a("L_exit:")
    a("s_endpgm")

HEADER = open("sequential_preLN__mha_block_cached__geglu_ffn__decode.s.ref").read().split("; Override launch geometry")[0]

def build(cfg, path):
    a,_=gen(cfg)
    gen_tail(a,cfg)
    txt = HEADER
    txt += "; Override launch geometry by editing the next line (default: block=256,\n"
    txt += f"; @launch grid=(256,1,1) block=(512,1,1) lds={LDS_BYTES}\n"
    txt += f""".amdgcn_target "amdgcn-amd-amdhsa--gfx950"
.text
.globl {KNAME}
.p2align 8
.type {KNAME},@function
"""
    txt += a.text()
    txt += f""".section .rodata,"a"
.p2align 6
.amdhsa_kernel {KNAME}
  .amdhsa_next_free_vgpr 256
  .amdhsa_next_free_sgpr 102
  .amdhsa_accum_offset 256
  .amdhsa_group_segment_fixed_size 0
  .amdhsa_kernarg_size 96
  .amdhsa_user_sgpr_count 2
  .amdhsa_user_sgpr_kernarg_segment_ptr 1
  .amdhsa_system_sgpr_workgroup_id_x 1
  .amdhsa_float_denorm_mode_32 3
.end_amdhsa_kernel
"""
    open(path,"w").write(txt)

if __name__=="__main__":
    cfg=Cfg()
    out=sys.argv[1]
    for kv in sys.argv[2:]:
        k,v=kv.split("=")
        setattr(cfg,k,eval(v))
    build(cfg,out)
```

```python
import sys

KNAME = "sequential_preLN__mha_block_cached__geglu_ffn__decode_kernel"

class Cfg:
    NS = 6
    KFLAGS = "nt"
    VFLAGS = "nt"
    WFLAGS = "nt"
    FASTMODE = True
    SPIN = 1 << 20
    STAMPS = False

L_WO   = 0
L_WG   = 32768
L_WU   = 65536
L_WD   = 98304
L_WQ   = 126976
L_SC   = 126976
L_RED  = 143360
L_LNA  = 159744
L_QS   = 161792
L_ML   = 162048
L_HS   = 162112
L_END  = 162176
L_LNB  = L_SC
LDS_BYTES = 163840

W_QP  = 0x000000
W_OB  = 0x100000
W_AP  = 0x120000
W_HB  = 0x1A0000
W_GP  = 0x1C0000
W_ACT = 0x2A0000
W_DP  = 0x2B0000
W_STAMP = 0x400000

D_CLR = 32*4
D_XCC = 40*4

S_ID=2; S_W=3; S_X=4; S_R=5; S_H=6; S_B=7
P_X=16; P_K=18; P_V=20; P_WQ=22; P_WO=24; P_WG=28; P_WU=30; P_WD=32; P_OUT=34; P_DBG=36; P_WS=38
SRD_K=40; SRD_V=44
S_KOFF=48
S_FAST=49
S_SPIN=50
S_T0=52; S_T1=53; S_T2=54; S_T3=55; S_T4=56; S_T5=57
S_B0=58
S_B1=60
S_EX=62
S_M=64
S_M2=66
S_SCALE=68; S_LOG2E=69
S_ST=70

V_TID=0; V_LANE=1
V_MASK=16
V_KOFF=20; V_VOFF=21; V_SCW=22; V_PPR=23; V_MAX=24
V_QA=32
V_SACC=48
V_OACC=52
V_A0=56; V_A1=60
V_PP0=64; V_PP1=68
V_T=72
V_RING=96
V_X=208

class Asm:
    def __init__(self):
        self.L=[]; self.n=0
    def __call__(self, s):
        for line in s.split("\n"):
            line=line.strip()
            if line: self.L.append(("" if line.endswith(":") else "  ")+line)
    def label(self, base):
        self.n+=1
        return f"L_{base}_{self.n}"
    def text(self): return "\n".join(self.L)+"\n"

def vr(b,n): return f"v[{b}:{b+n-1}]"
def sr(b,n): return f"s[{b}:{b+n-1}]"

def wave_sum(a, v, tmp, op="add"):
    ins = "v_add_f32" if op=="add" else "v_max_f32"
    for k in (8,4,2,1):
        a(f"s_nop 1")
        a(f"{ins}_dpp {'v%d'%v}, v{v}, v{v} row_ror:{k} row_mask:0xf bank_mask:0xf")
    a("s_nop 1")
    a(f"v_readlane_b32 s{S_T0}, v{v}, 0")
    a(f"v_readlane_b32 s{S_T1}, v{v}, 16")
    a(f"v_readlane_b32 s{S_T2}, v{v}, 32")
    a(f"v_readlane_b32 s{S_T3}, v{v}, 48")
    a("s_nop 1")
    a(f"v_mov_b32 v{v}, s{S_T0}")
    a(f"{ins} v{v}, s{S_T1}, v{v}")
    a(f"{ins} v{v}, s{S_T2}, v{v}")
    a(f"{ins} v{v}, s{S_T3}, v{v}")

def round_bf16(a, dst, src):
    a(f"v_cvt_pk_bf16_f32 v{dst}, v{src}, v{src}")
    a(f"v_and_b32 v{dst}, 0xffff0000, v{dst}")

def layernorm(a, vin, vf, vout, t):
    for i in range(8):
        a(f"v_lshlrev_b32 v{vf+2*i}, 16, v{vin+i}")
        a(f"v_and_b32 v{vf+2*i+1}, 0xffff0000, v{vin+i}")
    a(f"v_add_f32 v{t}, v{vf}, v{vf+1}")
    for i in range(2,16):
        a(f"v_add_f32 v{t}, v{t}, v{vf+i}")
    wave_sum(a, t, t+1)
    a(f"v_mul_f32 v{t}, 0x3a800000, v{t}")
    a(f"v_sub_f32 v{t+1}, v{vf}, v{t}")
    a(f"v_mul_f32 v{t+2}, v{t+1}, v{t+1}")
    for i in range(1,16):
        a(f"v_sub_f32 v{t+1}, v{vf+i}, v{t}")
        a(f"v_fmac_f32 v{t+2}, v{t+1}, v{t+1}")
    wave_sum(a, t+2, t+1)
    a(f"v_mul_f32 v{t+2}, 0x3a800000, v{t+2}")
    round_bf16(a, t, t)
    round_bf16(a, t+2, t+2)
    a(f"v_add_f32 v{t+2}, 0x3727c5ac, v{t+2}")
    round_bf16(a, t+2, t+2)
    a(f"v_sqrt_f32 v{t+2}, v{t+2}")
    a("s_nop 0")
    round_bf16(a, t+2, t+2)
    a(f"v_rcp_f32 v{t+2}, v{t+2}")
    a("s_nop 0")
    for i in range(8):
        a(f"v_sub_f32 v{vf+2*i}, v{vf+2*i}, v{t}")
        a(f"v_sub_f32 v{vf+2*i+1}, v{vf+2*i+1}, v{t}")
        a(f"v_cvt_pk_bf16_f32 v{t+1}, v{vf+2*i}, v{vf+2*i+1}")
        a(f"v_lshlrev_b32 v{vf+2*i}, 16, v{t+1}")
        a(f"v_and_b32 v{vf+2*i+1}, 0xffff0000, v{t+1}")
        a(f"v_mul_f32 v{vf+2*i}, v{vf+2*i}, v{t+2}")
        a(f"v_mul_f32 v{vf+2*i+1}, v{vf+2*i+1}, v{t+2}")
        a(f"v_cvt_pk_bf16_f32 v{vout+i}, v{vf+2*i}, v{vf+2*i+1}")

def set_exec(a, lo, hi):
    a(f"s_mov_b32 exec_lo, {lo}")
    a(f"s_mov_b32 exec_hi, {hi}")
def full_exec(a):
    a("s_mov_b64 exec, -1")

def poll_loop(a, name, loads, regs, cfg):
    lp=a.label(name+"_poll"); dn=a.label(name+"_ok")
    a(f"s_mov_b32 s{S_SPIN}, {cfg.SPIN}")
    a(f"{lp}:")
    loads()
    a("s_waitcnt vmcnt(0)")
    t=V_T+23
    rs=list(regs)
    a(f"v_max_u32 v{t}, v{rs[0]}, v{rs[1] if len(rs)>1 else rs[0]}")
    i=2
    while i<len(rs):
        if i+1<len(rs):
            a(f"v_max3_u32 v{t}, v{t}, v{rs[i]}, v{rs[i+1]}"); i+=2
        else:
            a(f"v_max_u32 v{t}, v{t}, v{rs[i]}"); i+=1
    a(f"v_cmp_eq_u32 vcc, -1, v{t}")
    a(f"s_cbranch_vccz {dn}")
    a(f"s_sub_u32 s{S_SPIN}, s{S_SPIN}, 1")
    a(f"s_cmp_lg_u32 s{S_SPIN}, 0")
    a(f"s_cbranch_scc1 {lp}")
    a(f"{dn}:")

def store_mode(a, instr, intra):
    if not intra:
        a(instr+" sc1"); return
    l1=a.label("st_slow"); l2=a.label("st_done")
    a(f"s_cmp_eq_u32 s{S_FAST}, 0")
    a(f"s_cbranch_scc1 {l1}")
    a(instr)
    a(f"s_branch {l2}")
    a(f"{l1}:")
    a(instr+" sc1")
    a(f"{l2}:")

def stamp(a, cfg, idx):
    if not cfg.STAMPS: return
    a(f"s_memrealtime s[{72+2*idx}:{73+2*idx}]")

def gen(cfg):
    a=Asm()
    NS=cfg.NS
    D=4*NS
    a(f"{KNAME}:")
    a(f"s_cmp_ge_u32 s{S_ID}, 256")
    a("s_cbranch_scc1 L_exit")
    a("s_load_dwordx16 s[16:31], s[0:1], 0")
    a("s_load_dwordx8 s[32:39], s[0:1], 64")
    stamp(a,cfg,0)
    a(f"v_lshrrev_b32 v2, 6, v0")
    a(f"v_and_b32 v{V_LANE}, 63, v0")
    a(f"s_and_b32 s{S_X}, s{S_ID}, 7")
    a(f"v_readfirstlane_b32 s{S_W}, v2")
    a(f"s_lshr_b32 s{S_R}, s{S_ID}, 3")
    a(f"s_lshr_b32 s{S_T0}, s{S_R}, 3")
    a(f"s_lshl_b32 s{S_H}, s{S_X}, 2")
    a(f"s_add_u32 s{S_H}, s{S_H}, s{S_T0}")
    a(f"s_and_b32 s{S_B}, s{S_R}, 7")
    a(f"v_and_b32 v2, 15, v{V_LANE}")
    a(f"v_lshrrev_b32 v3, 4, v{V_LANE}")
    a(f"v_lshlrev_b32 v{V_VOFF}, 4, v{V_LANE}")
    a(f"v_lshrrev_b32 v4, 2, v2")
    a(f"v_and_b32 v5, 3, v2")
    a(f"v_lshlrev_b32 v6, 8, v4")
    a(f"v_lshlrev_b32 v7, 6, v3")
    a(f"v_lshlrev_b32 v8, 4, v5")
    a(f"v_add3_u32 v{V_KOFF}, v6, v7, v8")
    a("s_waitcnt lgkmcnt(0)")
    a(f"s_lshl_b32 s{S_T0}, s{S_B}, 5")
    a(f"s_add_u32 s{S_T0}, s{S_T0}, s{S_H}")
    a(f"s_lshl_b32 s{S_T0}, s{S_T0}, 20")
    for srd,p in ((SRD_K,P_K),(SRD_V,P_V)):
        a(f"s_add_u32 s{srd}, s{p}, s{S_T0}")
        a(f"s_addc_u32 s{srd+1}, s{p+1}, 0")
        a(f"s_and_b32 s{srd+1}, s{srd+1}, 0xffff")
        a(f"s_mov_b32 s{srd+2}, 0x100000")
        a(f"s_mov_b32 s{srd+3}, 0x20000")
    a(f"s_lshl_b32 s{S_T0}, s{S_W}, 11")
    a(f"v_lshlrev_b32 v9, 5, v{V_LANE}")
    a(f"v_add_u32 v9, s{S_T0}, v9")
    a(f"global_load_dwordx4 {vr(V_X,4)}, v9, {sr(P_X,2)}")
    a(f"global_load_dwordx4 {vr(V_X+4,4)}, v9, {sr(P_X,2)} offset:16")
    a(f"s_lshl_b32 s{S_KOFF}, s{S_W}, 12")
    a(f"s_cmp_lt_u32 s{S_W}, 4")
    a("s_cbranch_scc1 L_lowwaves")

    a(f"v_lshrrev_b32 v10, 3, v{V_LANE}")
    a(f"v_and_b32 v11, 7, v{V_LANE}")
    a(f"v_lshlrev_b32 v11, 4, v11")
    a(f"s_lshr_b32 s{S_T4}, s{S_R}, 4")
    a(f"s_and_b32 s{S_T5}, s{S_R}, 15")
    a(f"s_cmp_eq_u32 s{S_W}, 4")
    a("s_cbranch_scc1 L_dma_wo")
    a(f"s_cmp_eq_u32 s{S_W}, 7")
    a("s_cbranch_scc1 L_dma_wd")
    a(f"s_cmp_ge_u32 s{S_R}, 28")
    a("s_cbranch_scc1 L_dma_done")
    a(f"s_mul_i32 s{S_T0}, s{S_R}, 37")
    a(f"s_lshr_b32 s{S_T0}, s{S_T0}, 8")
    a(f"s_mul_i32 s{S_T1}, s{S_T0}, 7")
    a(f"s_sub_u32 s{S_T1}, s{S_R}, s{S_T1}")
    a(f"s_mul_i32 s{S_T0}, s{S_T0}, {256*7168}")
    a(f"s_mul_i32 s{S_T2}, s{S_X}, 896")
    a(f"s_lshl_b32 s{S_T1}, s{S_T1}, 7")
    a(f"s_add_u32 s{S_T0}, s{S_T0}, s{S_T2}")
    a(f"s_add_u32 s{S_T0}, s{S_T0}, s{S_T1}")
    a(f"s_cmp_eq_u32 s{S_W}, 5")
    a(f"s_cselect_b32 s{S_B0}, s{P_WG}, s{P_WU}")
    a(f"s_cselect_b32 s{S_B0+1}, s{P_WG+1}, s{P_WU+1}")
    a(f"s_mov_b32 s{S_T3}, {L_WU}")
    a(f"s_cselect_b32 s{S_T3}, {L_WG}, s{S_T3}")
    a(f"s_add_u32 s{S_B0}, s{S_B0}, s{S_T0}")
    a(f"s_addc_u32 s{S_B0+1}, s{S_B0+1}, 0")
    a(f"s_mov_b32 s{S_T0}, 7168")
    a(f"s_mov_b32 s{S_T1}, 32")
    a("s_branch L_dma_go")
    a("L_dma_wo:")
    a(f"s_lshl_b32 s{S_T0}, s{S_X}, 1")
    a(f"s_add_u32 s{S_T0}, s{S_T0}, s{S_T4}")
    a(f"s_lshl_b32 s{S_T0}, s{S_T0}, 19")
    a(f"s_lshl_b32 s{S_T1}, s{S_T5}, 7")
    a(f"s_add_u32 s{S_T0}, s{S_T0}, s{S_T1}")
    a(f"s_add_u32 s{S_B0}, s{P_WO}, s{S_T0}")
    a(f"s_addc_u32 s{S_B0+1}, s{P_WO+1}, 0")
    a(f"s_mov_b32 s{S_T3}, {L_WO}")
    a(f"s_mov_b32 s{S_T0}, 2048")
    a(f"s_mov_b32 s{S_T1}, 32")
    a("s_branch L_dma_go")
    a("L_dma_wd:")
    a(f"s_lshl_b32 s{S_T0}, s{S_X}, 1")
    a(f"s_add_u32 s{S_T0}, s{S_T0}, s{S_T4}")
    a(f"s_mul_i32 s{S_T0}, s{S_T0}, {224*2048}")
    a(f"s_lshl_b32 s{S_T1}, s{S_T5}, 7")
    a(f"s_add_u32 s{S_T0}, s{S_T0}, s{S_T1}")
    a(f"s_add_u32 s{S_B0}, s{P_WD}, s{S_T0}")
    a(f"s_addc_u32 s{S_B0+1}, s{P_WD+1}, 0")
    a(f"s_mov_b32 s{S_T3}, {L_WD}")
    a(f"s_mov_b32 s{S_T0}, 2048")
    a(f"s_mov_b32 s{S_T1}, 28")
    a("L_dma_go:")
    a(f"v_mul_lo_u32 v10, v10, s{S_T0}")
    a(f"s_lshl_b32 s{S_T0}, s{S_T0}, 3")
    a(f"v_add_u32 v10, v10, v11")
    a(f"s_mov_b32 m0, s{S_T3}")
    a("s_nop 0")
    a("L_dma_loop:")
    a(f"global_load_lds_dwordx4 v10, {sr(S_B0,2)} {cfg.WFLAGS}")
    a(f"s_add_u32 s{S_B0}, s{S_B0}, s{S_T0}")
    a(f"s_addc_u32 s{S_B0+1}, s{S_B0+1}, 0")
    a(f"s_add_u32 m0, m0, 1024")
    a(f"s_sub_u32 s{S_T1}, s{S_T1}, 1")
    a(f"s_cmp_lg_u32 s{S_T1}, 0")
    a("s_cbranch_scc1 L_dma_loop")
    a("L_dma_done:")
    def issue_tile(T):
        slot=T%NS
        srd,voff,fl=(SRD_K,V_KOFF,cfg.KFLAGS) if T<32 else (SRD_V,V_VOFF,cfg.VFLAGS)
        if T==32:
            a(f"s_lshl_b32 s{S_KOFF}, s{S_W}, 12")
        for n in range(4):
            reg=V_RING+slot*16+n*4
            a(f"buffer_load_dwordx4 {vr(reg,4)}, v{voff}, {sr(srd,4)}, s{S_KOFF} offen offset:{n*1024} {fl}")
        a(f"s_add_u32 s{S_KOFF}, s{S_KOFF}, 32768")
    for T in range(NS): issue_tile(T)
    a(f"s_cmp_ge_u32 s{S_R}, 28")
    a("s_cbranch_scc1 L_hw_r28")
    a(f"s_cmp_eq_u32 s{S_W}, 7")
    a("s_cbranch_scc1 L_hw_28")
    a(f"s_waitcnt vmcnt({32+D})")
    a("s_branch L_ln1")
    a("L_hw_r28:")
    a(f"s_cmp_eq_u32 s{S_W}, 4")
    a("s_cbranch_scc1 L_hw_32")
    a(f"s_cmp_eq_u32 s{S_W}, 7")
    a("s_cbranch_scc1 L_hw_28")
    a(f"s_waitcnt vmcnt({D})")
    a("s_branch L_ln1")
    a("L_hw_32:")
    a(f"s_waitcnt vmcnt({32+D})")
    a("s_branch L_ln1")
    a("L_hw_28:")
    a(f"s_waitcnt vmcnt({28+D})")
    a("s_branch L_ln1")

    a("L_lowwaves:")
    a(f"v_lshlrev_b32 v10, 13, v3")
    a(f"v_lshlrev_b32 v11, 4, v2")
    a(f"v_add_u32 v10, v10, v11")
    a(f"s_lshl_b32 s{S_T0}, s{S_B}, 7")
    a(f"s_lshl_b32 s{S_T1}, s{S_W}, 5")
    a(f"s_add_u32 s{S_T0}, s{S_T0}, s{S_T1}")
    a(f"s_lshl_b32 s{S_T0}, s{S_T0}, 13")
    a(f"s_lshl_b32 s{S_T1}, s{S_H}, 8")
    a(f"s_add_u32 s{S_T0}, s{S_T0}, s{S_T1}")
    a(f"s_add_u32 s{S_B0}, s{P_WQ}, s{S_T0}")
    a(f"s_addc_u32 s{S_B0+1}, s{P_WQ+1}, 0")
    a(f"s_lshl_b32 s{S_T1}, s{S_W}, 13")
    a(f"s_add_u32 m0, s{S_T1}, {L_WQ}")
    a("s_nop 0")
    for n in range(8):
        a(f"global_load_lds_dwordx4 v10, {sr(S_B0,2)} {cfg.WFLAGS}")
        if n<7:
            a(f"s_add_u32 m0, m0, 1024")
            a(f"s_add_u32 s{S_B0}, s{S_B0}, {4*8192}")
            a(f"s_addc_u32 s{S_B0+1}, s{S_B0+1}, 0")
    a(f"v_mov_b32 v12, -1\nv_mov_b32 v13, -1\nv_mov_b32 v14, -1\nv_mov_b32 v15, -1")
    a(f"s_lshr_b32 s{S_T4}, s{S_R}, 4")
    a(f"s_and_b32 s{S_T5}, s{S_R}, 15")
    a(f"s_cmp_eq_u32 s{S_W}, 2")
    a("s_cbranch_scc1 L_clr_gp")
    a(f"s_cmp_eq_u32 s{S_W}, 3")
    a("s_cbranch_scc1 L_clr_small")
    a(f"s_mov_b32 s{S_T0}, {W_DP}")
    a(f"s_cmp_eq_u32 s{S_W}, 0")
    a(f"s_cselect_b32 s{S_T0}, {W_AP}, s{S_T0}")
    a(f"s_lshl_b32 s{S_T1}, s{S_X}, 1")
    a(f"s_add_u32 s{S_T1}, s{S_T1}, s{S_T4}")
    a(f"s_lshl_b32 s{S_T1}, s{S_T1}, 15")
    a(f"s_add_u32 s{S_T0}, s{S_T0}, s{S_T1}")
    a(f"s_lshl_b32 s{S_T1}, s{S_T5}, 8")
    a(f"s_add_u32 s{S_T0}, s{S_T0}, s{S_T1}")
    a(f"v_lshlrev_b32 v10, 12, v3")
    a(f"v_lshlrev_b32 v11, 4, v2")
    a(f"v_add3_u32 v10, v10, v11, s{S_T0}")
    a(f"global_store_dwordx4 v10, v[12:15], {sr(P_WS,2)} sc1")
    a(f"v_add_u32 v10, {4*4096}, v10")
    a(f"global_store_dwordx4 v10, v[12:15], {sr(P_WS,2)} sc1")
    a("s_branch L_clr_done")
    a("L_clr_gp:")
    a(f"s_cmp_ge_u32 s{S_R}, 28")
    a("s_cbranch_scc1 L_clr_done")
    a(f"s_mul_i32 s{S_T0}, s{S_X}, 28")
    a(f"s_add_u32 s{S_T0}, s{S_T0}, s{S_R}")
    a(f"s_lshl_b32 s{S_T0}, s{S_T0}, 12")
    a(f"s_add_u32 s{S_T0}, s{S_T0}, {W_GP}")
    a(f"v_add_u32 v10, s{S_T0}, v{V_VOFF}")
    for n in range(4):
        a(f"global_store_dwordx4 v10, v[12:15], {sr(P_WS,2)} offset:{n*1024} sc1")
    a("s_branch L_clr_done")
    a("L_clr_small:")
    a(f"s_lshl_b32 s{S_T0}, s{S_H}, 3")
    a(f"s_add_u32 s{S_T0}, s{S_T0}, s{S_B}")
    a(f"s_lshl_b32 s{S_T0}, s{S_T0}, 8")
    a(f"s_add_u32 s{S_T0}, s{S_T0}, {W_OB}")
    a(f"v_add_u32 v10, s{S_T0}, v{V_VOFF}")
    set_exec(a, "0xffff", 0)
    a(f"global_store_dwordx4 v10, v[12:15], {sr(P_WS,2)} sc1")
    full_exec(a)
    a(f"s_lshr_b32 s{S_T0}, s{S_R}, 2")
    a(f"s_lshl_b32 s{S_T1}, s{S_X}, 3")
    a(f"s_add_u32 s{S_T0}, s{S_T0}, s{S_T1}")
    a(f"s_lshl_b32 s{S_T0}, s{S_T0}, 11")
    a(f"s_and_b32 s{S_T1}, s{S_R}, 3")
    a(f"s_lshl_b32 s{S_T1}, s{S_T1}, 9")
    a(f"s_add_u32 s{S_T0}, s{S_T0}, s{S_T1}")
    a(f"s_add_u32 s{S_T0}, s{S_T0}, {W_HB}")
    a(f"v_add_u32 v10, s{S_T0}, v{V_VOFF}")
    set_exec(a, -1, 0)
    a(f"global_store_dwordx4 v10, v[12:15], {sr(P_WS,2)} sc1")
    full_exec(a)
    a(f"s_cmp_ge_u32 s{S_R}, 28")
    a("s_cbranch_scc1 L_clr_done")
    a(f"s_mul_i32 s{S_T0}, s{S_R}, 37")
    a(f"s_lshr_b32 s{S_T0}, s{S_T0}, 8")
    a(f"s_mul_i32 s{S_T1}, s{S_T0}, 7")
    a(f"s_sub_u32 s{S_T1}, s{S_R}, s{S_T1}")
    a(f"s_lshl_b32 s{S_T0}, s{S_T0}, 1")
    a(f"s_lshl_b32 s{S_T2}, s{S_X}, 3")
    a(f"s_add_u32 s{S_T0}, s{S_T0}, s{S_T2}")
    a(f"s_mul_i32 s{S_T0}, s{S_T0}, 896")
    a(f"s_lshl_b32 s{S_T1}, s{S_T1}, 7")
    a(f"s_add_u32 s{S_T0}, s{S_T0}, s{S_T1}")
    a(f"s_add_u32 s{S_T0}, s{S_T0}, {W_ACT}")
    a(f"v_lshrrev_b32 v10, 3, v{V_LANE}")
    a(f"v_mul_u32_u24 v10, 896, v10")
    a(f"v_and_b32 v11, 7, v{V_LANE}")
    a(f"v_lshlrev_b32 v11, 4, v11")
    a(f"v_add3_u32 v10, v10, v11, s{S_T0}")
    set_exec(a, "0xffff", 0)
    a(f"global_store_dwordx4 v10, v[12:15], {sr(P_WS,2)} sc1")
    full_exec(a)
    a("L_clr_done:")
    a(f"s_cmp_lg_u32 s{S_W}, 0")
    a("s_cbranch_scc1 L_xcc_done")
    a(f"s_getreg_b32 s{S_T0}, hwreg(HW_REG_XCC_ID, 0, 4)")
    a(f"s_lshl_b32 s{S_T0}, 1, s{S_T0}")
    a(f"s_lshl_b32 s{S_T1}, s{S_X}, 2")
    a(f"s_add_u32 s{S_T1}, s{S_T1}, {D_XCC}")
    a(f"v_mov_b32 v10, s{S_T1}")
    a(f"v_mov_b32 v11, s{S_T0}")
    set_exec(a, 1, 0)
    a(f"global_atomic_or v10, v11, {sr(P_DBG,2)} sc1")
    full_exec(a)
    a("L_xcc_done:")
    a("s_waitcnt vmcnt(0)")

    a("L_ln1:")
    layernorm(a, V_X, V_X+8, V_X+24, V_T)
    a(f"s_lshl_b32 s{S_T0}, s{S_B}, 3")
    a(f"v_subrev_u32 v10, s{S_T0}, v{V_LANE}")
    a(f"v_cmp_gt_u32 vcc, 8, v10")
    a(f"s_lshl_b32 s{S_T1}, s{S_W}, 8")
    a(f"s_add_u32 s{S_T1}, s{S_T1}, {L_LNA}")
    a(f"v_lshlrev_b32 v10, 5, v10")
    a(f"v_add_u32 v10, s{S_T1}, v10")
    a(f"s_and_saveexec_b64 {sr(S_EX,2)}, vcc")
    a(f"ds_write_b128 v10, {vr(V_X+24,4)}")
    a(f"ds_write_b128 v10, {vr(V_X+28,4)} offset:16")
    a(f"s_mov_b64 exec, {sr(S_EX,2)}")
    a("s_waitcnt lgkmcnt(0)")
    a("s_barrier")
    stamp(a,cfg,1)
    a(f"s_cmp_ge_u32 s{S_W}, 4")
    a("s_cbranch_scc1 L_q_b2")
    a(f"s_cmp_lg_u32 s{S_W}, 0")
    a("s_cbranch_scc1 L_q_mm")
    a(f"v_mov_b32 v10, {D_CLR}")
    a(f"v_mov_b32 v11, 1")
    set_exec(a, 1, 0)
    a(f"global_atomic_add v10, v11, {sr(P_DBG,2)} sc1")
    full_exec(a)
    a("L_q_mm:")
    a(f"v_and_b32 v10, 7, v{V_LANE}")
    a(f"v_lshlrev_b32 v10, 8, v10")
    a(f"v_lshlrev_b32 v11, 4, v3")
    a(f"v_add_u32 v10, v10, v11")
    a(f"v_add_u32 v10, {L_LNA}, v10")
    for s in range(4):
        a(f"ds_read_b128 {vr(V_X+4*s,4)}, v10 offset:{64*s}")
    a(f"v_lshlrev_b32 v11, 3, v3")
    a(f"v_add_u32 v11, v11, v4")
    a(f"v_lshlrev_b32 v11, 8, v11")
    a(f"v_lshlrev_b32 v12, 3, v5")
    a(f"s_lshl_b32 s{S_T0}, s{S_W}, 6")
    a(f"s_add_u32 s{S_T0}, s{S_T0}, {L_WQ}")
    a(f"v_add3_u32 v11, v11, v12, s{S_T0}")
    for tt in range(2):
        for s in range(4):
            for hf in range(2):
                reg=V_X+16+tt*16+s*4+hf*2
                a(f"ds_read_b64_tr_b16 {vr(reg,2)}, v11 offset:{(32*s+4*hf)*256+32*tt}")
    a("s_waitcnt lgkmcnt(0)")
    for tt in range(2):
        for s in range(4):
            c = "0" if s==0 else vr(V_T+4*tt,4)
            a(f"v_mfma_f32_16x16x32_bf16 {vr(V_T+4*tt,4)}, {vr(V_X+16+tt*16+s*4,4)}, {vr(V_X+4*s,4)}, {c}")
    a(f"s_lshl_b32 s{S_T0}, s{S_H}, 3")
    a(f"s_add_u32 s{S_T0}, s{S_T0}, s{S_B}")
    a(f"s_lshl_b32 s{S_T0}, s{S_T0}, 12")
    a(f"s_lshl_b32 s{S_T1}, s{S_W}, 7")
    a(f"s_add_u32 s{S_T0}, s{S_T0}, s{S_T1}")
    a(f"s_add_u32 s{S_T0}, s{S_T0}, {W_QP}")
    a(f"v_lshlrev_b32 v10, 9, v2")
    a(f"v_lshlrev_b32 v11, 4, v3")
    a(f"v_add3_u32 v10, v10, v11, s{S_T0}")
    a("s_nop 7")
    set_exec(a, "0x00ff00ff", "0x00ff00ff")
    a(f"global_store_dwordx4 v10, {vr(V_T,4)}, {sr(P_WS,2)} sc1")
    a(f"global_store_dwordx4 v10, {vr(V_T+4,4)}, {sr(P_WS,2)} offset:64 sc1")
    full_exec(a)
    a("s_waitcnt vmcnt(0)")
    a("L_q_b2:")
    a("s_barrier")
    a(f"s_cmp_ge_u32 s{S_W}, 4")
    a("s_cbranch_scc1 L_q_b3")
    a(f"s_cmp_eq_u32 s{S_W}, 0")
    a("s_cbranch_scc1 L_q_w0")
    for T in range(NS): issue_tile(T)
    a("s_branch L_q_b3")
    a("L_q_w0:")
    a(f"s_lshl_b32 s{S_T0}, s{S_H}, 2")
    a(f"v_mov_b32 v10, s{S_T0}")
    a(f"v_mov_b32 v11, 1")
    set_exec(a, 1, 0)
    a(f"global_atomic_add v10, v11, {sr(P_DBG,2)} sc1")
    lp=a.label("qpoll"); dn=a.label("qok")
    a(f"s_mov_b32 s{S_SPIN}, {cfg.SPIN}")
    a(f"{lp}:")
    a(f"global_load_dword v11, v10, {sr(P_DBG,2)} sc1")
    a("s_waitcnt vmcnt(0)")
    a(f"v_cmp_gt_u32 vcc, 8, v11")
    a(f"s_cbranch_vccz {dn}")
    a(f"s_sub_u32 s{S_SPIN}, s{S_SPIN}, 1")
    a(f"s_cmp_lg_u32 s{S_SPIN}, 0")
    a(f"s_cbranch_scc1 {lp}")
    a(f"{dn}:")
    full_exec(a)
    a(f"s_lshl_b32 s{S_T0}, s{S_H}, 15")
    a(f"s_lshl_b32 s{S_T1}, s{S_B}, 9")
    a(f"s_add_u32 s{S_T0}, s{S_T0}, s{S_T1}")
    a(f"s_add_u32 s{S_T0}, s{S_T0}, {W_QP}")
    a(f"v_lshrrev_b32 v10, 5, v{V_LANE}")
    a(f"v_lshlrev_b32 v10, 12, v10")
    a(f"v_and_b32 v11, 31, v{V_LANE}")
    a(f"v_lshlrev_b32 v11, 4, v11")
    a(f"v_add3_u32 v10, v10, v11, s{S_T0}")
    for u in range(4):
        a(f"global_load_dwordx4 {vr(V_X+4*u,4)}, v10, {sr(P_WS,2)} sc1")
        if u<3: a(f"v_add_u32 v10, 8192, v10")
    a("s_waitcnt vmcnt(0)")
    for c in range(4):
        a(f"v_add_f32 v{V_X+c}, v{V_X+c}, v{V_X+4+c}")
        a(f"v_add_f32 v{V_X+8+c}, v{V_X+8+c}, v{V_X+12+c}")
    for c in range(4):
        a(f"v_add_f32 v{V_X+c}, v{V_X+c}, v{V_X+8+c}")
    for c in range(4):
        a(f"v_mov_b32 v{V_X+4+c}, v{V_X+c}")
    a("s_nop 1")
    for c in range(4):
        a(f"v_permlane32_swap_b32 v{V_X+c}, v{V_X+4+c}")
    for c in range(4):
        a(f"v_add_f32 v{V_X+c}, v{V_X+c}, v{V_X+4+c}")
    a(f"v_cvt_pk_bf16_f32 v{V_X+8}, v{V_X}, v{V_X+1}")
    a(f"v_cvt_pk_bf16_f32 v{V_X+9}, v{V_X+2}, v{V_X+3}")
    a(f"v_and_b32 v11, 31, v{V_LANE}")
    a(f"v_lshlrev_b32 v11, 3, v11")
    a(f"v_add_u32 v11, {L_QS}, v11")
    a(f"ds_write_b64 v11, {vr(V_X+8,2)}")
    for T in range(NS): issue_tile(T)
    a("s_waitcnt lgkmcnt(0)")
    a("L_q_b3:")
    a("s_barrier")
    stamp(a,cfg,2)
    a(f"v_lshlrev_b32 v10, 2, v3")
    a(f"v_add_u32 v10, v10, v5")
    a(f"v_lshlrev_b32 v10, 4, v10")
    a(f"v_add_u32 v10, {L_QS}, v10")
    a(f"ds_read_b128 {vr(V_T,4)}, v10")
    a(f"v_and_b32 v10, 1, v2")
    a(f"v_cmp_eq_u32 vcc, 1, v10")
    a(f"v_mov_b32 v11, 0xffff")
    a(f"v_mov_b32 v12, 0xffff0000")
    a(f"v_cndmask_b32 v11, v11, v12, vcc")
    a(f"v_lshrrev_b32 v10, 1, v2")
    for w in range(4):
        a(f"v_cmp_eq_u32 vcc, {w}, v10")
        a("s_nop 1")
        a(f"v_cndmask_b32 v{V_MASK+w}, 0, v11, vcc")
    a(f"s_lshl_b32 s{S_T0}, s{S_W}, 11")
    a(f"s_add_u32 s{S_T0}, s{S_T0}, {L_SC}")
    a(f"v_lshlrev_b32 v10, 4, v4")
    a(f"v_lshlrev_b32 v11, 2, v3")
    a(f"v_add3_u32 v{V_SCW}, v10, v11, s{S_T0}")
    a(f"v_lshlrev_b32 v10, 4, v3")
    a(f"v_add_u32 v{V_PPR}, s{S_T0}, v10")
    a(f"v_mov_b32 v{V_MAX}, 0xff800000")
    a(f"s_mov_b32 s{S_SCALE}, 0x3db504f3")
    a(f"s_mov_b32 s{S_LOG2E}, 0x3fb8aa3b")
    a("s_waitcnt lgkmcnt(0)")
    for n in range(4):
        a(f"v_cmp_eq_u32 vcc, {n}, v4")
        a("s_nop 1")
        for c in range(4):
            a(f"v_cndmask_b32 v{V_QA+4*n+c}, 0, v{V_T+c}, vcc")

    def outstanding_after(T):
        return 4*(min(T+NS-1,63)-T)
    for T in range(32):
        slot=T%NS
        a(f"s_waitcnt vmcnt({outstanding_after(T)})")
        for n in range(4):
            c="0" if n==0 else vr(V_SACC,4)
            a(f"v_mfma_f32_16x16x32_bf16 {vr(V_SACC,4)}, {vr(V_QA+4*n,4)}, {vr(V_RING+slot*16+4*n,4)}, {c}")
        if T+NS<64: issue_tile(T+NS)
        a("s_nop 7")
        t=V_T
        a(f"v_mov_b32_dpp v{t}, v{V_SACC} quad_perm:[0,0,0,0] row_mask:0xf bank_mask:0xf")
        for n in range(1,4):
            a(f"v_add_f32_dpp v{t}, v{V_SACC+n}, v{t} quad_perm:[{n},{n},{n},{n}] row_mask:0xf bank_mask:0xf")
        round_bf16(a,t,t)
        a(f"v_mul_f32 v{t}, s{S_SCALE}, v{t}")
        round_bf16(a,t,t)
        a(f"v_max_f32 v{V_MAX}, v{V_MAX}, v{t}")
        a(f"ds_write_b32 v{V_SCW}, v{t} offset:{T*64}")
    stamp(a,cfg,3)
    wave_sum(a, V_MAX, V_T, op="max")
    a(f"s_lshl_b32 s{S_T4}, s{S_W}, 11")
    a(f"s_add_u32 s{S_T4}, s{S_T4}, {L_SC}")
    a(f"v_lshlrev_b32 v10, 5, v{V_LANE}")
    a(f"v_add_u32 v10, s{S_T4}, v10")
    a("s_waitcnt lgkmcnt(0)")
    a(f"ds_read_b128 {vr(V_T,4)}, v10")
    a(f"ds_read_b128 {vr(V_T+4,4)}, v10 offset:16")
    a("s_waitcnt lgkmcnt(0)")
    for i in range(8):
        a(f"v_sub_f32 v{V_T+8+i}, v{V_T+i}, v{V_MAX}")
        a(f"v_mul_f32 v{V_T+8+i}, s{S_LOG2E}, v{V_T+8+i}")
        a(f"v_exp_f32 v{V_T+8+i}, v{V_T+8+i}")
    a("s_nop 0")
    a(f"v_add_f32 v{V_T+16}, v{V_T+8}, v{V_T+9}")
    for i in range(2,8):
        a(f"v_add_f32 v{V_T+16}, v{V_T+16}, v{V_T+8+i}")
    wave_sum(a, V_T+16, V_T+17)
    a(f"v_mov_b32 v{V_T+17}, v{V_MAX}")
    a(f"v_mov_b32 v{V_T+18}, v{V_T+16}")
    a(f"s_lshl_b32 s{S_T0}, s{S_W}, 3")
    a(f"s_add_u32 s{S_T0}, s{S_T0}, {L_ML}")
    a(f"v_mov_b32 v11, s{S_T0}")
    set_exec(a, 1, 0)
    a(f"ds_write_b64 v11, {vr(V_T+17,2)}") if (V_T+17)%2==0 else None
    if (V_T+17)%2!=0:
        a(f"ds_write_b32 v11, v{V_T+17}")
        a(f"ds_write_b32 v11, v{V_T+18} offset:4")
    full_exec(a)
    a("s_waitcnt lgkmcnt(0)")
    a("s_barrier")
    a(f"v_mov_b32 v11, {L_ML}")
    for k in range(4):
        a(f"ds_read_b128 {vr(V_X+4*k,4)}, v11 offset:{16*k}")
    a("s_waitcnt lgkmcnt(0)")
    a(f"v_max_f32 v{V_MAX}, v{V_X}, v{V_X+2}")
    for k in range(2,8):
        a(f"v_max_f32 v{V_MAX}, v{V_MAX}, v{V_X+2*k}")
    for k in range(8):
        a(f"v_sub_f32 v{V_X+2*k}, v{V_X+2*k}, v{V_MAX}")
        a(f"v_mul_f32 v{V_X+2*k}, s{S_LOG2E}, v{V_X+2*k}")
        a(f"v_exp_f32 v{V_X+2*k}, v{V_X+2*k}")
    a("s_nop 0")
    a(f"v_mul_f32 v{V_T+16}, v{V_X}, v{V_X+1}")
    for k in range(1,8):
        a(f"v_fmac_f32 v{V_T+16}, v{V_X+2*k}, v{V_X+2*k+1}")
    a(f"v_rcp_f32 v{V_T+17}, v{V_T+16}")
    a("s_nop 0")
    a(f"v_fma_f32 v{V_T+18}, -v{V_T+16}, v{V_T+17}, 1.0")
    a(f"v_fma_f32 v{V_T+17}, v{V_T+18}, v{V_T+17}, v{V_T+17}")
    for i in range(8):
        a(f"v_sub_f32 v{V_T+8+i}, v{V_T+i}, v{V_MAX}")
        a(f"v_mul_f32 v{V_T+8+i}, s{S_LOG2E}, v{V_T+8+i}")
        a(f"v_exp_f32 v{V_T+8+i}, v{V_T+8+i}")
    a("s_nop 0")
    for i in range(8):
        a(f"v_mul_f32 v{V_T+8+i}, v{V_T+8+i}, v{V_T+17}")
        a(f"v_cvt_pk_bf16_f32 v{V_T+8+i}, v{V_T+8+i}, v{V_T+8+i}")
    a(f"ds_write_b128 v10, {vr(V_T+8,4)}")
    a(f"ds_write_b128 v10, {vr(V_T+12,4)} offset:16")
    for c in range(4):
        a(f"v_mov_b32 v{V_OACC+c}, 0")
    a("s_waitcnt lgkmcnt(0)")
    stamp(a,cfg,4)
    a(f"ds_read_b128 {vr(V_PP0,4)}, v{V_PPR}")
    for T in range(32,64):
        t=T-32
        slot=T%NS
        pp = V_PP0 if t%2==0 else V_PP1
        ppn = V_PP1 if t%2==0 else V_PP0
        if t<31:
            a(f"ds_read_b128 {vr(ppn,4)}, v{V_PPR} offset:{(t+1)*64}")
            a(f"s_waitcnt vmcnt({outstanding_after(T)}) lgkmcnt(1)")
        else:
            a(f"s_waitcnt vmcnt({outstanding_after(T)}) lgkmcnt(0)")
        def ands(dst,n):
            for w in range(4):
                a(f"v_and_b32 v{dst+w}, v{pp+n}, v{V_MASK+w}")
        def mm(A,n):
            a(f"v_mfma_f32_16x16x32_bf16 {vr(V_OACC,4)}, {vr(A,4)}, {vr(V_RING+slot*16+4*n,4)}, {vr(V_OACC,4)}")
        ands(V_A0,0); ands(V_A1,1)
        mm(V_A0,0)
        ands(V_A0,2)
        mm(V_A1,1)
        ands(V_A1,3)
        mm(V_A0,2)
        a("s_nop 0")
        mm(V_A1,3)
        if T+NS<64: issue_tile(T+NS)
    stamp(a,cfg,5)
    return a, issue_tile


def gen_tail(a, cfg):
    NS=cfg.NS
    WB=V_RING
    WO_F=WB; GU_F=WB+16; WD_F=WB+48
    TT=V_RING+64
    a(f"v_lshlrev_b32 v10, 2, v2")
    a(f"v_add_u32 v10, {D_CLR}, v10")
    a(f"global_load_dword v{TT+40}, v10, {sr(P_DBG,2)} sc1")
    a(f"s_lshr_b32 s{S_T0}, s{S_R}, 2")
    a(f"s_lshl_b32 s{S_T0}, s{S_T0}, 11")
    a(f"s_and_b32 s{S_T1}, s{S_R}, 3")
    a(f"s_lshl_b32 s{S_T1}, s{S_T1}, 9")
    a(f"s_add_u32 s{S_T0}, s{S_T0}, s{S_T1}")
    a(f"v_lshlrev_b32 v11, 3, v{V_LANE}")
    a(f"v_add_u32 v11, s{S_T0}, v11")
    a(f"global_load_dwordx2 {vr(TT+42,2)}, v11, {sr(P_X,2)}")
    a(f"s_lshl_b32 s{S_T0}, s{S_W}, 9")
    a(f"s_add_u32 s{S_T0}, s{S_T0}, {L_RED}")
    a(f"v_lshlrev_b32 v10, 5, v2")
    a(f"v_lshlrev_b32 v11, 4, v3")
    a(f"v_add3_u32 v10, v10, v11, s{S_T0}")
    a("s_nop 4")
    set_exec(a, -1, 0)
    a(f"ds_write_b128 v10, {vr(V_OACC,4)}")
    full_exec(a)
    a(f"v_lshlrev_b32 v12, 3, v3")
    a(f"v_add_u32 v12, v12, v4")
    a(f"v_lshlrev_b32 v12, 7, v12")
    a(f"v_lshlrev_b32 v13, 3, v5")
    a(f"v_add_u32 v12, v12, v13")
    a(f"s_lshl_b32 s{S_T0}, s{S_W}, 12")
    a(f"s_add_u32 s{S_T1}, s{S_T0}, {L_WO}")
    a(f"v_add_u32 v13, s{S_T1}, v12")
    for t in range(4):
        for hf in range(2):
            a(f"ds_read_b64_tr_b16 {vr(WO_F+4*t+2*hf,2)}, v13 offset:{hf*4*128+32*t}")
    a(f"s_add_u32 s{S_T1}, s{S_T0}, {L_WD}")
    a(f"v_add_u32 v13, s{S_T1}, v12")
    for t in range(4):
        for hf in range(2):
            a(f"ds_read_b64_tr_b16 {vr(WD_F+4*t+2*hf,2)}, v13 offset:{hf*4*128+32*t}")
    a("s_waitcnt lgkmcnt(0)")
    a("s_barrier")
    a(f"s_lshr_b32 s{S_T0}, s{S_W}, 2")
    a(f"s_lshl_b32 s{S_T0}, s{S_T0}, 15")
    a(f"s_and_b32 s{S_T1}, s{S_W}, 3")
    a(f"s_lshl_b32 s{S_T1}, s{S_T1}, 5")
    a(f"s_add_u32 s{S_T0}, s{S_T0}, s{S_T1}")
    a(f"s_add_u32 s{S_T0}, s{S_T0}, {L_WG}")
    a(f"v_add_u32 v13, s{S_T0}, v12")
    a(f"s_cmp_lg_u32 s{S_W}, 0")
    a("s_cbranch_scc1 L_t1_skip")
    a(f"v_lshlrev_b32 v10, 3, v{V_LANE}")
    a(f"v_add_u32 v10, {L_RED}, v10")
    for w in range(8):
        a(f"ds_read_b64 {vr(TT+2*w,2)}, v10 offset:{w*512}")
    a("s_waitcnt lgkmcnt(0)")
    for w in range(1,8):
        a(f"v_add_f32 v{TT}, v{TT}, v{TT+2*w}")
        a(f"v_add_f32 v{TT+1}, v{TT+1}, v{TT+2*w+1}")
    a(f"v_cvt_pk_bf16_f32 v{TT}, v{TT}, v{TT+1}")
    a(f"v_min_u32 v{TT}, -2, v{TT}")
    a(f"s_lshl_b32 s{S_T0}, s{S_H}, 3")
    a(f"s_add_u32 s{S_T0}, s{S_T0}, s{S_B}")
    a(f"s_lshl_b32 s{S_T0}, s{S_T0}, 8")
    a(f"s_add_u32 s{S_T0}, s{S_T0}, {W_OB}")
    a(f"v_lshlrev_b32 v10, 2, v{V_LANE}")
    a(f"v_add_u32 v10, s{S_T0}, v10")
    a("L_t1_skip:")
    lp=a.label("mode"); dn=a.label("modeok")
    a(f"s_mov_b32 s{S_SPIN}, {cfg.SPIN}")
    a(f"{lp}:")
    a("s_waitcnt vmcnt(0)")
    a(f"v_readlane_b32 s{S_T0}, v{TT+40}, 0")
    a("s_nop 1")
    a(f"s_cmp_ge_u32 s{S_T0}, 256")
    a(f"s_cbranch_scc1 {dn}")
    a(f"v_lshlrev_b32 v11, 2, v2")
    a(f"v_add_u32 v11, {D_CLR}, v11")
    a(f"global_load_dword v{TT+40}, v11, {sr(P_DBG,2)} sc1")
    a(f"s_sub_u32 s{S_SPIN}, s{S_SPIN}, 1")
    a(f"s_cmp_lg_u32 s{S_SPIN}, 0")
    a(f"s_cbranch_scc1 {lp}")
    a(f"{dn}:")
    a(f"s_mov_b32 s{S_FAST}, {1 if cfg.FASTMODE else 0}")
    for k in range(8):
        a(f"v_readlane_b32 s{8+k}, v{TT+40}, {8+k}")
    a("s_nop 1")
    for k in range(8):
        a(f"s_bcnt1_i32_b32 s{8+k}, s{8+k}")
        a(f"s_cmp_eq_u32 s{8+k}, 1")
        a(f"s_cselect_b32 s{S_FAST}, s{S_FAST}, 0")
    a(f"s_cmp_lg_u32 s{S_W}, 0")
    a("s_cbranch_scc1 L_t1_done")
    store_mode(a, f"global_store_dword v10, v{TT}, {sr(P_WS,2)}", True)
    a("L_t1_done:")
    stamp(a,cfg,6)
    for s in range(8):
        for hf in range(2):
            a(f"ds_read_b64_tr_b16 {vr(GU_F+4*s+2*hf,2)}, v13 offset:{(32*s+4*hf)*128}")
    a(f"s_lshr_b32 s{S_T4}, s{S_R}, 4")
    a(f"s_and_b32 s{S_T5}, s{S_R}, 15")
    a(f"s_lshl_b32 s{S_T0}, s{S_X}, 2")
    a(f"s_lshl_b32 s{S_T1}, s{S_T4}, 1")
    a(f"s_add_u32 s{S_T0}, s{S_T0}, s{S_T1}")
    a(f"s_lshr_b32 s{S_T1}, s{S_W}, 2")
    a(f"s_add_u32 s{S_T0}, s{S_T0}, s{S_T1}")
    a(f"s_lshl_b32 s{S_T0}, s{S_T0}, 11")
    a(f"s_and_b32 s{S_T1}, s{S_W}, 3")
    a(f"s_lshl_b32 s{S_T1}, s{S_T1}, 6")
    a(f"s_add_u32 s{S_T0}, s{S_T0}, s{S_T1}")
    a(f"s_add_u32 s{S_T0}, s{S_T0}, {W_OB}")
    a(f"v_and_b32 v14, 7, v{V_LANE}")
    a(f"v_lshlrev_b32 v10, 8, v14")
    a(f"v_lshlrev_b32 v11, 4, v3")
    a(f"v_add3_u32 v10, v10, v11, s{S_T0}")
    poll_loop(a,"t2", lambda: a(f"global_load_dwordx4 {vr(TT,4)}, v10, {sr(P_WS,2)} sc1"), range(TT,TT+4), cfg)
    a("s_waitcnt lgkmcnt(0)")
    def gemm4_reduce_publish(F, wbase, pname, nw, lab, LR):
        for t in range(4):
            a(f"v_mfma_f32_16x16x32_bf16 {vr(TT+4+4*t,4)}, {vr(F+4*t,4)}, {vr(TT,4)}, 0")
        a(f"s_lshl_b32 s{S_T0}, s{S_W}, 11")
        a(f"s_add_u32 s{S_T0}, s{S_T0}, {LR}")
        a(f"v_lshlrev_b32 v10, 8, v2")
        a(f"v_lshlrev_b32 v11, 4, v3")
        a(f"v_add3_u32 v10, v10, v11, s{S_T0}")
        a("s_nop 3")
        if nw<8:
            a(f"s_cmp_ge_u32 s{S_W}, {nw}")
            a(f"s_cbranch_scc1 {lab}_nw")
        set_exec(a, "0x00ff00ff", "0x00ff00ff")
        for t in range(4):
            a(f"ds_write_b128 v10, {vr(TT+4+4*t,4)} offset:{64*t}")
        full_exec(a)
        a(f"{lab}_nw:")
        a("s_waitcnt lgkmcnt(0)")
        a("s_barrier")
        a(f"s_cmp_ge_u32 s{S_W}, 2")
        a(f"s_cbranch_scc1 {lab}_skip")
        a(f"v_lshlrev_b32 v10, 4, v{V_TID}")
        a(f"v_add_u32 v10, {LR}, v10")
        for w in range(nw):
            a(f"ds_read_b128 {vr(TT+4+4*w,4)}, v10 offset:{w*2048}")
        a("s_waitcnt lgkmcnt(0)")
        for w in range(1,nw):
            for c in range(4):
                a(f"v_add_f32 v{TT+4+c}, v{TT+4+c}, v{TT+4+4*w+c}")
        for c in range(4):
            a(f"v_min_u32 v{TT+4+c}, -2, v{TT+4+c}")
        a(f"s_lshl_b32 s{S_T0}, s{S_X}, 1")
        a(f"s_add_u32 s{S_T0}, s{S_T0}, s{S_T4}")
        a(f"s_lshl_b32 s{S_T0}, s{S_T0}, 15")
        a(f"s_lshl_b32 s{S_T1}, s{S_T5}, 8")
        a(f"s_add_u32 s{S_T0}, s{S_T0}, s{S_T1}")
        a(f"s_add_u32 s{S_T0}, s{S_T0}, {wbase}")
        a(f"v_lshrrev_b32 v10, 4, v{V_TID}")
        a(f"v_lshlrev_b32 v10, 12, v10")
        a(f"v_lshlrev_b32 v11, 4, v2")
        a(f"v_add3_u32 v10, v10, v11, s{S_T0}")
        a(f"global_store_dwordx4 v10, {vr(TT+4,4)}, {sr(P_WS,2)} sc1")
        a(f"{lab}_skip:")
    gemm4_reduce_publish(WO_F, W_AP, "AP", 8, "L_t2", L_SC)
    stamp(a,cfg,7)
    a(f"s_lshr_b32 s{S_T0}, s{S_R}, 2")
    a(f"s_lshl_b32 s{S_T0}, s{S_T0}, 12")
    a(f"s_and_b32 s{S_T1}, s{S_R}, 3")
    a(f"s_lshl_b32 s{S_T1}, s{S_T1}, 10")
    a(f"s_add_u32 s{S_T0}, s{S_T0}, s{S_T1}")
    a(f"s_lshl_b32 s{S_T1}, s{S_W}, 16")
    a(f"s_add_u32 s{S_T0}, s{S_T0}, s{S_T1}")
    a(f"s_add_u32 s{S_T0}, s{S_T0}, {W_AP}")
    a(f"v_add_u32 v10, s{S_T0}, v{V_VOFF}")
    a(f"v_add_u32 v11, 32768, v10")
    def ld3():
        a(f"global_load_dwordx4 {vr(TT,4)}, v10, {sr(P_WS,2)} sc1")
        a(f"global_load_dwordx4 {vr(TT+4,4)}, v11, {sr(P_WS,2)} sc1")
    poll_loop(a,"t3", ld3, range(TT,TT+8), cfg)
    for c in range(4):
        a(f"v_add_f32 v{TT+c}, v{TT+c}, v{TT+4+c}")
    RED3=L_RED+4096
    a(f"s_lshl_b32 s{S_T0}, s{S_W}, 10")
    a(f"s_add_u32 s{S_T0}, s{S_T0}, {RED3}")
    a(f"v_add_u32 v10, s{S_T0}, v{V_VOFF}")
    a(f"ds_write_b128 v10, {vr(TT,4)}")
    a("s_waitcnt lgkmcnt(0)")
    a("s_barrier")
    a(f"s_cmp_lg_u32 s{S_W}, 0")
    a("s_cbranch_scc1 L_t3_skip")
    a(f"v_add_u32 v10, {RED3}, v{V_VOFF}")
    for w in range(8):
        a(f"ds_read_b128 {vr(TT+4*w,4)}, v10 offset:{w*1024}")
    a("s_waitcnt lgkmcnt(0)")
    for w in range(1,8):
        for c in range(4):
            a(f"v_add_f32 v{TT+c}, v{TT+c}, v{TT+4*w+c}")
    a(f"v_cvt_pk_bf16_f32 v{TT+4}, v{TT}, v{TT+1}")
    a(f"v_cvt_pk_bf16_f32 v{TT+5}, v{TT+2}, v{TT+3}")
    for d in range(2):
        a(f"v_lshlrev_b32 v{TT+8}, 16, v{TT+4+d}")
        a(f"v_and_b32 v{TT+9}, 0xffff0000, v{TT+4+d}")
        a(f"v_lshlrev_b32 v{TT+10}, 16, v{TT+42+d}")
        a(f"v_and_b32 v{TT+11}, 0xffff0000, v{TT+42+d}")
        a(f"v_add_f32 v{TT+8}, v{TT+8}, v{TT+10}")
        a(f"v_add_f32 v{TT+9}, v{TT+9}, v{TT+11}")
        a(f"v_cvt_pk_bf16_f32 v{TT+6+d}, v{TT+8}, v{TT+9}")
        a(f"v_min_u32 v{TT+6+d}, -2, v{TT+6+d}")
    a(f"s_lshr_b32 s{S_T0}, s{S_R}, 2")
    a(f"s_lshl_b32 s{S_T1}, s{S_X}, 3")
    a(f"s_add_u32 s{S_T0}, s{S_T0}, s{S_T1}")
    a(f"s_lshl_b32 s{S_T0}, s{S_T0}, 11")
    a(f"s_and_b32 s{S_T1}, s{S_R}, 3")
    a(f"s_lshl_b32 s{S_T1}, s{S_T1}, 9")
    a(f"s_add_u32 s{S_T0}, s{S_T0}, s{S_T1}")
    a(f"s_add_u32 s{S_T0}, s{S_T0}, {W_HB}")
    a(f"v_lshlrev_b32 v10, 3, v{V_LANE}")
    a(f"v_add_u32 v10, s{S_T0}, v10")
    store_mode(a, f"global_store_dwordx2 v10, {vr(TT+6,2)}, {sr(P_WS,2)}", True)
    a("L_t3_skip:")
    stamp(a,cfg,8)
    a(f"s_lshl_b32 s{S_T0}, s{S_X}, 3")
    a(f"s_add_u32 s{S_T0}, s{S_T0}, s{S_W}")
    a(f"s_lshl_b32 s{S_T0}, s{S_T0}, 11")
    a(f"s_add_u32 s{S_T0}, s{S_T0}, {W_HB}")
    a(f"v_lshlrev_b32 v10, 5, v{V_LANE}")
    a(f"v_add_u32 v10, s{S_T0}, v10")
    def ld4():
        a(f"global_load_dwordx4 {vr(TT,4)}, v10, {sr(P_WS,2)} sc1")
        a(f"global_load_dwordx4 {vr(TT+4,4)}, v10, {sr(P_WS,2)} offset:16 sc1")
    poll_loop(a,"t4", ld4, range(TT,TT+8), cfg)
    a(f"s_cmp_lg_u32 s{S_W}, s{S_X}")
    a("s_cbranch_scc1 L_t4_nohs")
    a(f"s_lshl_b32 s{S_T0}, s{S_R}, 1")
    a(f"v_subrev_u32 v10, s{S_T0}, v{V_LANE}")
    a(f"v_cmp_gt_u32 vcc, 2, v10")
    a(f"v_lshlrev_b32 v10, 5, v10")
    a(f"v_add_u32 v10, {L_HS}, v10")
    a(f"s_and_saveexec_b64 {sr(S_EX,2)}, vcc")
    a(f"ds_write_b128 v10, {vr(TT,4)}")
    a(f"ds_write_b128 v10, {vr(TT+4,4)} offset:16")
    a(f"s_mov_b64 exec, {sr(S_EX,2)}")
    a("L_t4_nohs:")
    a(f"s_cmp_ge_u32 s{S_R}, 28")
    a("s_cbranch_scc1 L_t5_skip_all")
    layernorm(a, TT, TT+8, TT+24, V_T)
    a(f"s_mul_i32 s{S_T4}, s{S_R}, 37")
    a(f"s_lshr_b32 s{S_T4}, s{S_T4}, 8")
    a(f"s_mul_i32 s{S_T5}, s{S_T4}, 7")
    a(f"s_sub_u32 s{S_T5}, s{S_R}, s{S_T5}")
    a(f"s_lshl_b32 s{S_T0}, s{S_T4}, 4")
    a(f"v_subrev_u32 v10, s{S_T0}, v{V_LANE}")
    a(f"v_cmp_gt_u32 vcc, 16, v10")
    a(f"s_lshl_b32 s{S_T1}, s{S_W}, 9")
    a(f"s_add_u32 s{S_T1}, s{S_T1}, {L_LNB}")
    a(f"v_lshlrev_b32 v10, 5, v10")
    a(f"v_add_u32 v10, s{S_T1}, v10")
    a(f"s_and_saveexec_b64 {sr(S_EX,2)}, vcc")
    a(f"ds_write_b128 v10, {vr(TT+24,4)}")
    a(f"ds_write_b128 v10, {vr(TT+28,4)} offset:16")
    a(f"s_mov_b64 exec, {sr(S_EX,2)}")
    a("s_waitcnt lgkmcnt(0)")
    a("s_barrier")
    stamp(a,cfg,9)
    a(f"v_lshlrev_b32 v10, 9, v14")
    a(f"v_lshlrev_b32 v11, 4, v3")
    a(f"v_add_u32 v10, v10, v11")
    a(f"v_add_u32 v10, {L_LNB}, v10")
    for s in range(8):
        a(f"ds_read_b128 {vr(TT+4*s,4)}, v10 offset:{64*s}")
    a("s_waitcnt lgkmcnt(0)")
    for s in range(8):
        c="0" if s==0 else vr(V_T,4)
        a(f"v_mfma_f32_16x16x32_bf16 {vr(V_T,4)}, {vr(GU_F+4*s,4)}, {vr(TT+4*s,4)}, {c}")
    a(f"s_mul_i32 s{S_T0}, s{S_X}, 28")
    a(f"s_add_u32 s{S_T0}, s{S_T0}, s{S_R}")
    a(f"s_lshl_b32 s{S_T0}, s{S_T0}, 12")
    a(f"s_lshr_b32 s{S_T1}, s{S_W}, 2")
    a(f"s_lshl_b32 s{S_T1}, s{S_T1}, 11")
    a(f"s_add_u32 s{S_T0}, s{S_T0}, s{S_T1}")
    a(f"s_and_b32 s{S_T1}, s{S_W}, 3")
    a(f"s_lshl_b32 s{S_T1}, s{S_T1}, 6")
    a(f"s_add_u32 s{S_T0}, s{S_T0}, s{S_T1}")
    a(f"s_add_u32 s{S_T0}, s{S_T0}, {W_GP}")
    a(f"v_lshlrev_b32 v10, 8, v2")
    a(f"v_lshlrev_b32 v11, 4, v3")
    a(f"v_add3_u32 v10, v10, v11, s{S_T0}")
    a("s_nop 1")
    for c in range(4):
        a(f"v_min_u32 v{V_T+c}, -2, v{V_T+c}")
    set_exec(a, "0x00ff00ff", "0x00ff00ff")
    store_mode(a, f"global_store_dwordx4 v10, {vr(V_T,4)}, {sr(P_WS,2)}", True)
    full_exec(a)
    a(f"s_cmp_lg_u32 s{S_W}, 0")
    a("s_cbranch_scc1 L_t5_skip_all")
    a(f"s_mul_i32 s{S_T0}, s{S_X}, 28")
    a(f"s_add_u32 s{S_T0}, s{S_T0}, s{S_T5}")
    a(f"s_lshl_b32 s{S_T0}, s{S_T0}, 12")
    a(f"s_lshl_b32 s{S_T1}, s{S_T4}, 9")
    a(f"s_add_u32 s{S_T0}, s{S_T0}, s{S_T1}")
    a(f"s_add_u32 s{S_T0}, s{S_T0}, {W_GP}")
    a(f"v_lshrrev_b32 v10, 5, v{V_LANE}")
    a(f"v_lshlrev_b32 v10, 8, v10")
    a(f"v_and_b32 v11, 31, v{V_LANE}")
    a(f"v_lshlrev_b32 v11, 3, v11")
    a(f"v_add3_u32 v10, v10, v11, s{S_T0}")
    for k in range(1,4):
        a(f"v_add_u32 v{TT+32+k}, {k*7*4096}, v10")
    a(f"v_mov_b32 v{TT+32}, v10")
    def ld5():
        for k in range(4):
            for m in range(2):
                a(f"global_load_dwordx2 {vr(TT+ (k*2+m)*2,2)}, v{TT+32+k}, {sr(P_WS,2)} offset:{m*2048} sc1")
    poll_loop(a,"t5", ld5, range(TT,TT+16), cfg)
    for k in range(1,4):
        for c in range(4):
            a(f"v_add_f32 v{TT+c}, v{TT+c}, v{TT+4*k+c}")
    G=TT; U=TT+2; X=TT+4
    for c in range(2):
        round_bf16(a,G+c,G+c)
        round_bf16(a,U+c,U+c)
    a(f"s_mov_b32 s{S_T0}, 0x3d372713")
    a(f"s_mov_b32 s{S_T1}, 0xc0135761")
    for c in range(2):
        a(f"v_mul_f32 v{X+c}, v{G+c}, v{G+c}")
        a(f"v_mul_f32 v{X+c}, v{X+c}, v{G+c}")
        a(f"v_fma_f32 v{X+c}, v{X+c}, s{S_T0}, v{G+c}")
        a(f"v_mul_f32 v{X+c}, s{S_T1}, v{X+c}")
        a(f"v_exp_f32 v{X+c}, v{X+c}")
        a("s_nop 0")
        a(f"v_add_f32 v{X+c}, 1.0, v{X+c}")
        a(f"v_rcp_f32 v{X+c}, v{X+c}")
        a("s_nop 0")
        a(f"v_mul_f32 v{X+c}, v{X+c}, v{G+c}")
        round_bf16(a,X+c,X+c)
        a(f"v_mul_f32 v{X+c}, v{X+c}, v{U+c}")
    a(f"v_cvt_pk_bf16_f32 v{X}, v{X}, v{X+1}")
    a(f"v_min_u32 v{X}, -2, v{X}")
    a(f"s_lshl_b32 s{S_T0}, s{S_X}, 3")
    a(f"s_lshl_b32 s{S_T1}, s{S_T4}, 1")
    a(f"s_add_u32 s{S_T0}, s{S_T0}, s{S_T1}")
    a(f"s_mul_i32 s{S_T0}, s{S_T0}, 896")
    a(f"s_lshl_b32 s{S_T1}, s{S_T5}, 7")
    a(f"s_add_u32 s{S_T0}, s{S_T0}, s{S_T1}")
    a(f"s_add_u32 s{S_T0}, s{S_T0}, {W_ACT}")
    a(f"v_lshrrev_b32 v10, 5, v{V_LANE}")
    a(f"v_mul_u32_u24 v10, 896, v10")
    a(f"v_and_b32 v11, 31, v{V_LANE}")
    a(f"v_lshlrev_b32 v11, 2, v11")
    a(f"v_add3_u32 v10, v10, v11, s{S_T0}")
    store_mode(a, f"global_store_dword v10, v{X}, {sr(P_WS,2)}", True)
    a("L_t5_skip_all:")
    stamp(a,cfg,10)
    a(f"s_lshr_b32 s{S_T4}, s{S_R}, 4")
    a(f"s_and_b32 s{S_T5}, s{S_R}, 15")
    a(f"s_cmp_ge_u32 s{S_W}, 7")
    a("s_cbranch_scc1 L_t6_nopoll")
    a(f"s_mul_i32 s{S_T0}, s{S_X}, {8*896}")
    a(f"s_mul_i32 s{S_T1}, s{S_T4}, 448")
    a(f"s_add_u32 s{S_T0}, s{S_T0}, s{S_T1}")
    a(f"s_lshl_b32 s{S_T1}, s{S_W}, 6")
    a(f"s_add_u32 s{S_T0}, s{S_T0}, s{S_T1}")
    a(f"s_add_u32 s{S_T0}, s{S_T0}, {W_ACT}")
    a(f"v_mul_u32_u24 v10, 896, v14")
    a(f"v_lshlrev_b32 v11, 4, v3")
    a(f"v_add3_u32 v10, v10, v11, s{S_T0}")
    poll_loop(a,"t6", lambda: a(f"global_load_dwordx4 {vr(TT,4)}, v10, {sr(P_WS,2)} sc1"), range(TT,TT+4), cfg)
    a("L_t6_nopoll:")
    gemm4_reduce_publish(WD_F, W_DP, "DP", 7, "L_t6", L_RED)
    stamp(a,cfg,11)
    a(f"s_cmp_lg_u32 s{S_W}, 0")
    a("s_cbranch_scc1 L_fin")
    a(f"s_lshl_b32 s{S_T0}, s{S_X}, 12")
    a(f"s_lshl_b32 s{S_T1}, s{S_R}, 7")
    a(f"s_add_u32 s{S_T0}, s{S_T0}, s{S_T1}")
    a(f"s_add_u32 s{S_T0}, s{S_T0}, {W_DP}")
    a(f"v_lshrrev_b32 v10, 5, v{V_LANE}")
    a(f"v_lshlrev_b32 v10, 18, v10")
    a(f"v_and_b32 v11, 31, v{V_LANE}")
    a(f"v_lshlrev_b32 v11, 2, v11")
    a(f"v_add3_u32 v10, v10, v11, s{S_T0}")
    for k in range(8):
        a(f"v_add_u32 v{TT+16+k}, {k*32768}, v10")
    def ld7():
        for k in range(8):
            a(f"global_load_dword v{TT+k}, v{TT+16+k}, {sr(P_WS,2)} sc1")
    poll_loop(a,"t7", ld7, range(TT,TT+8), cfg)
    for k in range(1,8):
        a(f"v_add_f32 v{TT}, v{TT}, v{TT+k}")
    a(f"v_mov_b32 v{TT+1}, v{TT}")
    a(f"v_and_b32 v11, 31, v{V_LANE}")
    a(f"v_lshlrev_b32 v11, 1, v11")
    a(f"v_add_u32 v11, {L_HS}, v11")
    a(f"ds_read_u16 v{TT+2}, v11")
    a(f"v_permlane32_swap_b32 v{TT}, v{TT+1}")
    a(f"v_add_f32 v{TT}, v{TT}, v{TT+1}")
    round_bf16(a,TT,TT)
    a("s_waitcnt lgkmcnt(0)")
    a(f"v_lshlrev_b32 v{TT+2}, 16, v{TT+2}")
    a(f"v_add_f32 v{TT}, v{TT}, v{TT+2}")
    a(f"v_cvt_pk_bf16_f32 v{TT}, v{TT}, v{TT}")
    a(f"s_lshl_b32 s{S_T0}, s{S_X}, 11")
    a(f"s_lshl_b32 s{S_T1}, s{S_R}, 6")
    a(f"s_add_u32 s{S_T0}, s{S_T0}, s{S_T1}")
    a(f"v_and_b32 v11, 31, v{V_LANE}")
    a(f"v_lshlrev_b32 v11, 1, v11")
    a(f"v_add_u32 v11, s{S_T0}, v11")
    set_exec(a, -1, 0)
    a(f"global_store_short v11, v{TT}, {sr(P_OUT,2)}")
    full_exec(a)
    a("L_fin:")
    if cfg.STAMPS:
        stamp(a,cfg,12)
        a("s_waitcnt lgkmcnt(0)")
        for k in range(13):
            a(f"v_mov_b32 v{TT}, s{72+2*k}")
            a(f"v_mov_b32 v{TT+1}, s{73+2*k}")
            a(f"s_lshl_b32 s{S_T0}, s{S_ID}, 3")
            a(f"s_add_u32 s{S_T0}, s{S_T0}, s{S_W}")
            a(f"s_lshl_b32 s{S_T0}, s{S_T0}, 7")
            a(f"s_add_u32 s{S_T0}, s{S_T0}, {W_STAMP+8*k}")
            a(f"v_mov_b32 v10, s{S_T0}")
            set_exec(a,1,0)
            a(f"global_store_dwordx2 v10, {vr(TT,2)}, {sr(P_WS,2)}")
            full_exec(a)
    a("L_exit:")
    a("s_endpgm")

HEADER = open("sequential_preLN__mha_block_cached__geglu_ffn__decode.s.ref").read().split("; Override launch geometry")[0]

def build(cfg, path):
    a,_=gen(cfg)
    gen_tail(a,cfg)
    txt = HEADER
    txt += "; Override launch geometry by editing the next line (default: block=256,\n"
    txt += f"; @launch grid=(256,1,1) block=(512,1,1) lds={LDS_BYTES}\n"
    txt += f""".amdgcn_target "amdgcn-amd-amdhsa--gfx950"
.text
.globl {KNAME}
.p2align 8
.type {KNAME},@function
"""
    txt += a.text()
    txt += f""".section .rodata,"a"
.p2align 6
.amdhsa_kernel {KNAME}
  .amdhsa_next_free_vgpr 256
  .amdhsa_next_free_sgpr 102
  .amdhsa_accum_offset 256
  .amdhsa_group_segment_fixed_size 0
  .amdhsa_kernarg_size 96
  .amdhsa_user_sgpr_count 2
  .amdhsa_user_sgpr_kernarg_segment_ptr 1
  .amdhsa_system_sgpr_workgroup_id_x 1
  .amdhsa_float_denorm_mode_32 3
.end_amdhsa_kernel
"""
    open(path,"w").write(txt)

if __name__=="__main__":
    cfg=Cfg()
    out=sys.argv[1]
    for kv in sys.argv[2:]:
        k,v=kv.split("=")
        setattr(cfg,k,eval(v))
    build(cfg,out)
```

```python
import sys

KNAME = "sequential_preLN__mha_block_cached__geglu_ffn__decode_kernel"

class Cfg:
    NS = 6
    KFLAGS = "nt"
    VFLAGS = "nt"
    WFLAGS = "nt"
    FASTMODE = True
    SPIN = 1 << 20
    STAMPS = False
    P0 = 12
    P = 12
    P1 = 8
    QSLEEP = 4
    DBGSTAMP = False

L_WO   = 0
L_WG   = 32768
L_WU   = 65536
L_WD   = 98304
L_WQ   = 126976
L_SC   = 126976
L_RED  = 143360
L_LNA  = 159744
L_QS   = 161792
L_ML   = 162048
L_HS   = 162112
L_CNT  = 162176
L_END  = 162192
L_LNB  = L_SC
LDS_BYTES = 163840

W_QP  = 0x500000
W_RDY = 0x000000
W_EPOCH = 0x010000
W_OB  = 0x100000
W_AP  = 0x120000
W_HB  = 0x1A0000
W_GP  = 0x1C0000
W_ACT = 0x2A0000
W_DP  = 0x2B0000
W_STAMP = 0x400000

D_CLR = 32*4
D_XCC = 40*4

S_ID=2; S_W=3; S_X=4; S_R=5; S_H=6; S_B=7
P_X=16; P_K=18; P_V=20; P_WQ=22; P_WO=24; P_WG=28; P_WU=30; P_WD=32; P_OUT=34; P_DBG=36; P_WS=38
SRD_K=40; SRD_V=44
S_KOFF=48
S_FAST=49
S_SPIN=50
S_T0=52; S_T1=53; S_T2=54; S_T3=55; S_T4=56; S_T5=57
S_B0=58
S_B1=60
S_EX=62
S_M=64
S_M2=66
S_SCALE=68; S_LOG2E=69
S_DN=12; S_DS=13; S_DM=14
S_TAG=98
S_TAG=66
S_ST=70

V_TID=0; V_LANE=1
V_MASK=16
V_KOFF=20; V_VOFF=21; V_SCW=22; V_PPR=23; V_MAX=24
V_DMA=25
V_QA=32
V_SACC=48
V_OACC=52
V_A0=56; V_A1=60
V_PP0=64; V_PP1=68
V_T=72
V_RING=96
V_X=208
V_RDY=248; V_XRES=252

class Asm:
    def __init__(self):
        self.L=[]; self.n=0
    def __call__(self, s):
        for line in s.split("\n"):
            line=line.strip()
            if line: self.L.append(("" if line.endswith(":") else "  ")+line)
    def label(self, base):
        self.n+=1
        return f"L_{base}_{self.n}"
    def text(self): return "\n".join(self.L)+"\n"

def vr(b,n): return f"v[{b}:{b+n-1}]"
def sr(b,n): return f"s[{b}:{b+n-1}]"

def wave_sum(a, v, tmp, op="add"):
    ins = "v_add_f32" if op=="add" else "v_max_f32"
    for k in (8,4,2,1):
        a(f"s_nop 1")
        a(f"{ins}_dpp {'v%d'%v}, v{v}, v{v} row_ror:{k} row_mask:0xf bank_mask:0xf")
    a("s_nop 1")
    a(f"v_readlane_b32 s{S_T0}, v{v}, 0")
    a(f"v_readlane_b32 s{S_T1}, v{v}, 16")
    a(f"v_readlane_b32 s{S_T2}, v{v}, 32")
    a(f"v_readlane_b32 s{S_T3}, v{v}, 48")
    a("s_nop 1")
    a(f"v_mov_b32 v{v}, s{S_T0}")
    a(f"{ins} v{v}, s{S_T1}, v{v}")
    a(f"{ins} v{v}, s{S_T2}, v{v}")
    a(f"{ins} v{v}, s{S_T3}, v{v}")

def round_bf16(a, dst, src):
    a(f"v_cvt_pk_bf16_f32 v{dst}, v{src}, v{src}")
    a(f"v_and_b32 v{dst}, 0xffff0000, v{dst}")

def layernorm(a, vin, vf, vout, t):
    for i in range(8):
        a(f"v_lshlrev_b32 v{vf+2*i}, 16, v{vin+i}")
        a(f"v_and_b32 v{vf+2*i+1}, 0xffff0000, v{vin+i}")
    a(f"v_add_f32 v{t}, v{vf}, v{vf+1}")
    for i in range(2,16):
        a(f"v_add_f32 v{t}, v{t}, v{vf+i}")
    wave_sum(a, t, t+1)
    a(f"v_mul_f32 v{t}, 0x3a800000, v{t}")
    a(f"v_sub_f32 v{t+1}, v{vf}, v{t}")
    a(f"v_mul_f32 v{t+2}, v{t+1}, v{t+1}")
    for i in range(1,16):
        a(f"v_sub_f32 v{t+1}, v{vf+i}, v{t}")
        a(f"v_fmac_f32 v{t+2}, v{t+1}, v{t+1}")
    wave_sum(a, t+2, t+1)
    a(f"v_mul_f32 v{t+2}, 0x3a800000, v{t+2}")
    round_bf16(a, t, t)
    round_bf16(a, t+2, t+2)
    a(f"v_add_f32 v{t+2}, 0x3727c5ac, v{t+2}")
    round_bf16(a, t+2, t+2)
    a(f"v_sqrt_f32 v{t+2}, v{t+2}")
    a("s_nop 0")
    round_bf16(a, t+2, t+2)
    a(f"v_rcp_f32 v{t+2}, v{t+2}")
    a("s_nop 0")
    for i in range(8):
        a(f"v_sub_f32 v{vf+2*i}, v{vf+2*i}, v{t}")
        a(f"v_sub_f32 v{vf+2*i+1}, v{vf+2*i+1}, v{t}")
        a(f"v_cvt_pk_bf16_f32 v{t+1}, v{vf+2*i}, v{vf+2*i+1}")
        a(f"v_lshlrev_b32 v{vf+2*i}, 16, v{t+1}")
        a(f"v_and_b32 v{vf+2*i+1}, 0xffff0000, v{t+1}")
        a(f"v_mul_f32 v{vf+2*i}, v{vf+2*i}, v{t+2}")
        a(f"v_mul_f32 v{vf+2*i+1}, v{vf+2*i+1}, v{t+2}")
        a(f"v_cvt_pk_bf16_f32 v{vout+i}, v{vf+2*i}, v{vf+2*i+1}")

def set_exec(a, lo, hi):
    a(f"s_mov_b32 exec_lo, {lo}")
    a(f"s_mov_b32 exec_hi, {hi}")
def full_exec(a):
    a("s_mov_b64 exec, -1")

def poll_loop(a, name, loads, regs, cfg):
    lp=a.label(name+"_poll"); dn=a.label(name+"_ok")
    a(f"s_mov_b32 s{S_SPIN}, {cfg.SPIN}")
    a(f"{lp}:")
    loads()
    a("s_waitcnt vmcnt(0)")
    t=V_T+23
    rs=list(regs)
    a(f"v_max_u32 v{t}, v{rs[0]}, v{rs[1] if len(rs)>1 else rs[0]}")
    i=2
    while i<len(rs):
        if i+1<len(rs):
            a(f"v_max3_u32 v{t}, v{t}, v{rs[i]}, v{rs[i+1]}"); i+=2
        else:
            a(f"v_max_u32 v{t}, v{t}, v{rs[i]}"); i+=1
    a(f"v_cmp_eq_u32 vcc, -1, v{t}")
    a(f"s_cbranch_vccz {dn}")
    a(f"s_sub_u32 s{S_SPIN}, s{S_SPIN}, 1")
    a(f"s_cmp_lg_u32 s{S_SPIN}, 0")
    a(f"s_cbranch_scc1 {lp}")
    a(f"{dn}:")

def store_mode(a, instr, intra):
    if not intra:
        a(instr+" sc1"); return
    l1=a.label("st_slow"); l2=a.label("st_done")
    a(f"s_cmp_eq_u32 s{S_FAST}, 0")
    a(f"s_cbranch_scc1 {l1}")
    a(instr)
    a(f"s_branch {l2}")
    a(f"{l1}:")
    a(instr+" sc1")
    a(f"{l2}:")

def stamp(a, cfg, idx):
    if not cfg.STAMPS: return
    a(f"s_memrealtime s[{72+2*idx}:{73+2*idx}]")


def emit_clears(a):
    a(f"v_mov_b32 v12, -1\nv_mov_b32 v13, -1\nv_mov_b32 v14, -1\nv_mov_b32 v15, -1")
    a(f"s_lshr_b32 s{S_T4}, s{S_R}, 4")
    a(f"s_and_b32 s{S_T5}, s{S_R}, 15")
    a(f"s_lshl_b32 s{S_T1}, s{S_X}, 1")
    a(f"s_add_u32 s{S_T1}, s{S_T1}, s{S_T4}")
    a(f"s_lshl_b32 s{S_T0}, s{S_T1}, 15")
    a(f"s_lshl_b32 s{S_T1}, s{S_T5}, 8")
    a(f"s_add_u32 s{S_T0}, s{S_T0}, s{S_T1}")
    a(f"v_lshlrev_b32 v10, 12, v3")
    a(f"v_lshlrev_b32 v11, 4, v2")
    a(f"v_add3_u32 v10, v10, v11, s{S_T0}")
    for base in (W_AP, W_DP):
        a(f"v_add_u32 v11, {base}, v10")
        a(f"global_store_dwordx4 v11, v[12:15], {sr(P_WS,2)} sc1")
        a(f"v_add_u32 v11, {base+4*4096}, v10")
        a(f"global_store_dwordx4 v11, v[12:15], {sr(P_WS,2)} sc1")
    a(f"s_lshl_b32 s{S_T0}, s{S_H}, 3")
    a(f"s_add_u32 s{S_T0}, s{S_T0}, s{S_B}")
    a(f"s_lshl_b32 s{S_T0}, s{S_T0}, 8")
    a(f"s_add_u32 s{S_T0}, s{S_T0}, {W_OB}")
    a(f"v_add_u32 v10, s{S_T0}, v{V_VOFF}")
    set_exec(a, "0xffff", 0)
    a(f"global_store_dwordx4 v10, v[12:15], {sr(P_WS,2)} sc1")
    full_exec(a)
    a(f"s_lshr_b32 s{S_T0}, s{S_R}, 2")
    a(f"s_lshl_b32 s{S_T1}, s{S_X}, 3")
    a(f"s_add_u32 s{S_T0}, s{S_T0}, s{S_T1}")
    a(f"s_lshl_b32 s{S_T0}, s{S_T0}, 11")
    a(f"s_and_b32 s{S_T1}, s{S_R}, 3")
    a(f"s_lshl_b32 s{S_T1}, s{S_T1}, 9")
    a(f"s_add_u32 s{S_T0}, s{S_T0}, s{S_T1}")
    a(f"s_add_u32 s{S_T0}, s{S_T0}, {W_HB}")
    a(f"v_add_u32 v10, s{S_T0}, v{V_VOFF}")
    set_exec(a, -1, 0)
    a(f"global_store_dwordx4 v10, v[12:15], {sr(P_WS,2)} sc1")
    full_exec(a)
    a(f"s_cmp_ge_u32 s{S_R}, 28")
    a("s_cbranch_scc1 L_clr_done")
    a(f"s_mul_i32 s{S_T0}, s{S_X}, 28")
    a(f"s_add_u32 s{S_T0}, s{S_T0}, s{S_R}")
    a(f"s_lshl_b32 s{S_T0}, s{S_T0}, 12")
    a(f"s_add_u32 s{S_T0}, s{S_T0}, {W_GP}")
    a(f"v_add_u32 v10, s{S_T0}, v{V_VOFF}")
    for n in range(4):
        a(f"global_store_dwordx4 v10, v[12:15], {sr(P_WS,2)} offset:{n*1024} sc1")
    a(f"s_mul_i32 s{S_T0}, s{S_R}, 37")
    a(f"s_lshr_b32 s{S_T0}, s{S_T0}, 8")
    a(f"s_mul_i32 s{S_T1}, s{S_T0}, 7")
    a(f"s_sub_u32 s{S_T1}, s{S_R}, s{S_T1}")
    a(f"s_lshl_b32 s{S_T0}, s{S_T0}, 1")
    a(f"s_lshl_b32 s{S_T2}, s{S_X}, 3")
    a(f"s_add_u32 s{S_T0}, s{S_T0}, s{S_T2}")
    a(f"s_mul_i32 s{S_T0}, s{S_T0}, 896")
    a(f"s_lshl_b32 s{S_T1}, s{S_T1}, 7")
    a(f"s_add_u32 s{S_T0}, s{S_T0}, s{S_T1}")
    a(f"s_add_u32 s{S_T0}, s{S_T0}, {W_ACT}")
    a(f"v_lshrrev_b32 v10, 3, v{V_LANE}")
    a(f"v_mul_u32_u24 v10, 896, v10")
    a(f"v_and_b32 v11, 7, v{V_LANE}")
    a(f"v_lshlrev_b32 v11, 4, v11")
    a(f"v_add3_u32 v10, v10, v11, s{S_T0}")
    set_exec(a, "0xffff", 0)
    a(f"global_store_dwordx4 v10, v[12:15], {sr(P_WS,2)} sc1")
    full_exec(a)
    a("L_clr_done:")


def emit_extras(a):
    a(f"s_lshl_b32 s{S_T0}, s{S_W}, 9")
    a(f"v_and_b32 v10, 31, v{V_LANE}")
    a(f"v_lshlrev_b32 v10, 4, v10")
    a(f"v_add_u32 v10, s{S_T0}, v10")
    a(f"v_add_u32 v9, {W_RDY}, v10")
    a(f"global_load_dwordx4 {vr(V_RDY,4)}, v9, {sr(P_WS,2)} sc1")
    a(f"s_lshr_b32 s{S_T0}, s{S_R}, 2")
    a(f"s_lshl_b32 s{S_T0}, s{S_T0}, 11")
    a(f"s_and_b32 s{S_T1}, s{S_R}, 3")
    a(f"s_lshl_b32 s{S_T1}, s{S_T1}, 9")
    a(f"s_add_u32 s{S_T0}, s{S_T0}, s{S_T1}")
    a(f"v_lshlrev_b32 v11, 3, v{V_LANE}")
    a(f"v_add_u32 v11, s{S_T0}, v11")
    a(f"global_load_dwordx2 {vr(V_XRES,2)}, v11, {sr(P_X,2)}")

def gen(cfg):
    a=Asm()
    NS=cfg.NS
    D=4*NS
    def issue_tile(T):
        slot=T%NS
        srd,voff,fl=(SRD_K,V_KOFF,cfg.KFLAGS) if T<32 else (SRD_V,V_VOFF,cfg.VFLAGS)
        if T==32:
            a(f"s_lshl_b32 s{S_KOFF}, s{S_W}, 12")
        for n in range(4):
            reg=V_RING+slot*16+n*4
            a(f"buffer_load_dwordx4 {vr(reg,4)}, v{voff}, {sr(srd,4)}, s{S_KOFF} offen offset:{n*1024} {fl}")
        a(f"s_add_u32 s{S_KOFF}, s{S_KOFF}, 32768")
    def preload(P):
        for T in range(NS):
            if 4*T+4>P: a(f"s_waitcnt vmcnt({max(P-4,0)})")
            issue_tile(T)
    a(f"{KNAME}:")
    a(f"s_cmp_ge_u32 s{S_ID}, 256")
    a("s_cbranch_scc1 L_exit")
    a("s_load_dwordx16 s[16:31], s[0:1], 0")
    a("s_load_dwordx8 s[32:39], s[0:1], 64")
    stamp(a,cfg,0)
    a(f"v_lshrrev_b32 v2, 6, v0")
    a(f"v_and_b32 v{V_LANE}, 63, v0")
    a(f"s_and_b32 s{S_X}, s{S_ID}, 7")
    a(f"v_readfirstlane_b32 s{S_W}, v2")
    a(f"s_lshr_b32 s{S_R}, s{S_ID}, 3")
    a(f"s_lshr_b32 s{S_T0}, s{S_R}, 3")
    a(f"s_lshl_b32 s{S_H}, s{S_X}, 2")
    a(f"s_add_u32 s{S_H}, s{S_H}, s{S_T0}")
    a(f"s_and_b32 s{S_B}, s{S_R}, 7")
    a(f"v_and_b32 v2, 15, v{V_LANE}")
    a(f"v_lshrrev_b32 v3, 4, v{V_LANE}")
    a(f"v_lshlrev_b32 v{V_VOFF}, 4, v{V_LANE}")
    a(f"v_lshrrev_b32 v4, 2, v2")
    a(f"v_and_b32 v5, 3, v2")
    a(f"v_lshlrev_b32 v6, 8, v4")
    a(f"v_lshlrev_b32 v7, 6, v3")
    a(f"v_lshlrev_b32 v8, 4, v5")
    a(f"v_add3_u32 v{V_KOFF}, v6, v7, v8")
    a(f"v_mov_b32 v{V_DMA}, 0")
    a("s_waitcnt lgkmcnt(0)")
    a(f"s_load_dwordx2 {sr(S_TAG,2)}, {sr(P_WS,2)}, {W_EPOCH}")
    a(f"s_lshl_b32 s{S_T0}, s{S_B}, 5")
    a(f"s_add_u32 s{S_T0}, s{S_T0}, s{S_H}")
    a(f"s_lshl_b32 s{S_T0}, s{S_T0}, 20")
    for srd,p in ((SRD_K,P_K),(SRD_V,P_V)):
        a(f"s_add_u32 s{srd}, s{p}, s{S_T0}")
        a(f"s_addc_u32 s{srd+1}, s{p+1}, 0")
        a(f"s_and_b32 s{srd+1}, s{srd+1}, 0xffff")
        a(f"s_mov_b32 s{srd+2}, 0x100000")
        a(f"s_mov_b32 s{srd+3}, 0x20000")
    a(f"s_lshl_b32 s{S_T0}, s{S_W}, 11")
    a(f"v_lshlrev_b32 v9, 5, v{V_LANE}")
    a(f"v_add_u32 v9, s{S_T0}, v9")
    a(f"global_load_dwordx4 {vr(V_X,4)}, v9, {sr(P_X,2)}")
    a(f"global_load_dwordx4 {vr(V_X+4,4)}, v9, {sr(P_X,2)} offset:16")
    a(f"s_lshl_b32 s{S_KOFF}, s{S_W}, 12")
    a(f"s_cmp_lt_u32 s{S_W}, 4")
    a("s_cbranch_scc1 L_lowwaves")

    a(f"v_lshrrev_b32 v10, 3, v{V_LANE}")
    a(f"v_and_b32 v11, 7, v{V_LANE}")
    a(f"v_lshlrev_b32 v11, 4, v11")
    a(f"s_lshr_b32 s{S_T4}, s{S_R}, 4")
    a(f"s_and_b32 s{S_T5}, s{S_R}, 15")
    a(f"s_cmp_eq_u32 s{S_W}, 4")
    a("s_cbranch_scc1 L_dma_wo")
    a(f"s_cmp_eq_u32 s{S_W}, 7")
    a("s_cbranch_scc1 L_dma_wd")
    a(f"s_cmp_ge_u32 s{S_R}, 28")
    a("s_cbranch_scc1 L_dma_done")
    a(f"s_mul_i32 s{S_T0}, s{S_R}, 37")
    a(f"s_lshr_b32 s{S_T0}, s{S_T0}, 8")
    a(f"s_mul_i32 s{S_T1}, s{S_T0}, 7")
    a(f"s_sub_u32 s{S_T1}, s{S_R}, s{S_T1}")
    a(f"s_mul_i32 s{S_T0}, s{S_T0}, {256*7168}")
    a(f"s_mul_i32 s{S_T2}, s{S_X}, 896")
    a(f"s_lshl_b32 s{S_T1}, s{S_T1}, 7")
    a(f"s_add_u32 s{S_T0}, s{S_T0}, s{S_T2}")
    a(f"s_add_u32 s{S_T0}, s{S_T0}, s{S_T1}")
    a(f"s_cmp_eq_u32 s{S_W}, 5")
    a(f"s_cselect_b32 s{S_B0}, s{P_WG}, s{P_WU}")
    a(f"s_cselect_b32 s{S_B0+1}, s{P_WG+1}, s{P_WU+1}")
    a(f"s_mov_b32 s{S_T3}, {L_WU}")
    a(f"s_cselect_b32 s{S_T3}, {L_WG}, s{S_T3}")
    a(f"s_add_u32 s{S_B0}, s{S_B0}, s{S_T0}")
    a(f"s_addc_u32 s{S_B0+1}, s{S_B0+1}, 0")
    a(f"s_mov_b32 s{S_T0}, 7168")
    a(f"s_mov_b32 s{S_T1}, 32")
    a("s_branch L_dma_go")
    a("L_dma_wo:")
    a(f"s_lshl_b32 s{S_T0}, s{S_X}, 1")
    a(f"s_add_u32 s{S_T0}, s{S_T0}, s{S_T4}")
    a(f"s_lshl_b32 s{S_T0}, s{S_T0}, 19")
    a(f"s_lshl_b32 s{S_T1}, s{S_T5}, 7")
    a(f"s_add_u32 s{S_T0}, s{S_T0}, s{S_T1}")
    a(f"s_add_u32 s{S_B0}, s{P_WO}, s{S_T0}")
    a(f"s_addc_u32 s{S_B0+1}, s{P_WO+1}, 0")
    a(f"s_mov_b32 s{S_T3}, {L_WO}")
    a(f"s_mov_b32 s{S_T0}, 2048")
    a(f"s_mov_b32 s{S_T1}, 32")
    a("s_branch L_dma_go")
    a("L_dma_wd:")
    a(f"s_lshl_b32 s{S_T0}, s{S_X}, 1")
    a(f"s_add_u32 s{S_T0}, s{S_T0}, s{S_T4}")
    a(f"s_mul_i32 s{S_T0}, s{S_T0}, {224*2048}")
    a(f"s_lshl_b32 s{S_T1}, s{S_T5}, 7")
    a(f"s_add_u32 s{S_T0}, s{S_T0}, s{S_T1}")
    a(f"s_add_u32 s{S_B0}, s{P_WD}, s{S_T0}")
    a(f"s_addc_u32 s{S_B0+1}, s{P_WD+1}, 0")
    a(f"s_mov_b32 s{S_T3}, {L_WD}")
    a(f"s_mov_b32 s{S_T0}, 2048")
    a(f"s_mov_b32 s{S_T1}, 28")
    a("L_dma_go:")
    a(f"v_mul_lo_u32 v10, v10, s{S_T0}")
    a(f"s_lshl_b32 s{S_T0}, s{S_T0}, 3")
    a(f"v_add_u32 v10, v10, v11")
    a(f"s_mov_b32 m0, s{S_T3}")
    a("s_nop 0")
    for n in range(cfg.P0):
        a(f"global_load_lds_dwordx4 v10, {sr(S_B0,2)} {cfg.WFLAGS}")
        a(f"s_add_u32 m0, m0, 1024")
        a(f"s_add_u32 s{S_B0}, s{S_B0}, s{S_T0}")
        a(f"s_addc_u32 s{S_B0+1}, s{S_B0+1}, 0")
    a(f"s_sub_u32 s{S_DN}, s{S_T1}, {cfg.P0}")
    a(f"s_mov_b32 s{S_DS}, s{S_T0}")
    a(f"s_mov_b32 s{S_DM}, m0")
    a(f"v_mov_b32 v{V_DMA}, v10")
    a(f"s_waitcnt vmcnt({cfg.P0})")
    a("s_branch L_ln1")
    a("L_dma_done:")
    a(f"s_mov_b32 s{S_DN}, 0")
    a(f"s_mov_b32 s{S_B0}, s{P_WS}")
    a(f"s_mov_b32 s{S_B0+1}, s{P_WS+1}")
    a(f"v_mov_b32 v{V_DMA}, 0")
    a("s_waitcnt vmcnt(0)")
    a("s_branch L_ln1")

    a("L_lowwaves:")
    a(f"v_lshlrev_b32 v10, 13, v3")
    a(f"v_lshlrev_b32 v11, 4, v2")
    a(f"v_add_u32 v10, v10, v11")
    a(f"s_lshl_b32 s{S_T0}, s{S_B}, 7")
    a(f"s_lshl_b32 s{S_T1}, s{S_W}, 5")
    a(f"s_add_u32 s{S_T0}, s{S_T0}, s{S_T1}")
    a(f"s_lshl_b32 s{S_T0}, s{S_T0}, 13")
    a(f"s_lshl_b32 s{S_T1}, s{S_H}, 8")
    a(f"s_add_u32 s{S_T0}, s{S_T0}, s{S_T1}")
    a(f"s_add_u32 s{S_B0}, s{P_WQ}, s{S_T0}")
    a(f"s_addc_u32 s{S_B0+1}, s{P_WQ+1}, 0")
    a(f"s_lshl_b32 s{S_T1}, s{S_W}, 13")
    a(f"s_add_u32 m0, s{S_T1}, {L_WQ}")
    a("s_nop 0")
    for n in range(8):
        a(f"global_load_lds_dwordx4 v10, {sr(S_B0,2)} {cfg.WFLAGS}")
        if n<7:
            a(f"s_add_u32 m0, m0, 1024")
            a(f"s_add_u32 s{S_B0}, s{S_B0}, {4*8192}")
            a(f"s_addc_u32 s{S_B0+1}, s{S_B0+1}, 0")
    a(f"s_waitcnt vmcnt(8)")
    a("s_branch L_ln1_low")
    a("L_ln1_low:")
    a("L_ln1:")
    layernorm(a, V_X, V_X+8, V_X+24, V_T)
    a(f"s_lshl_b32 s{S_T0}, s{S_B}, 3")
    a(f"v_subrev_u32 v10, s{S_T0}, v{V_LANE}")
    a(f"v_cmp_gt_u32 vcc, 8, v10")
    a(f"s_lshl_b32 s{S_T1}, s{S_W}, 8")
    a(f"s_add_u32 s{S_T1}, s{S_T1}, {L_LNA}")
    a(f"v_lshlrev_b32 v10, 5, v10")
    a(f"v_add_u32 v10, s{S_T1}, v10")
    a(f"s_and_saveexec_b64 {sr(S_EX,2)}, vcc")
    a(f"ds_write_b128 v10, {vr(V_X+24,4)}")
    a(f"ds_write_b128 v10, {vr(V_X+28,4)} offset:16")
    a(f"s_mov_b64 exec, {sr(S_EX,2)}")
    a(f"s_cmp_ge_u32 s{S_W}, 4")
    a("s_cbranch_scc1 L_b1")
    a("s_waitcnt vmcnt(0)")
    a("L_b1:")
    a("s_waitcnt lgkmcnt(0)")
    a("s_barrier")
    stamp(a,cfg,1)
    a(f"s_cmp_lt_u32 s{S_W}, 4")
    a("s_cbranch_scc1 L_q_low")
    a(f"s_add_u32 s{S_TAG}, s{S_TAG}, 1")
    a(f"s_addc_u32 s{S_TAG+1}, s{S_TAG+1}, 0")
    a(f"s_cmp_eq_u32 s{S_DN}, 0")
    a("s_cbranch_scc1 L_dma2_done")
    a("L_dma2_loop:")
    a(f"s_waitcnt vmcnt({cfg.P-1})")
    a(f"global_load_lds_dwordx4 v{V_DMA}, {sr(S_B0,2)} {cfg.WFLAGS}")
    a(f"s_add_u32 m0, m0, 1024")
    a(f"s_add_u32 s{S_B0}, s{S_B0}, s{S_DS}")
    a(f"s_addc_u32 s{S_B0+1}, s{S_B0+1}, 0")
    a(f"s_sub_u32 s{S_DN}, s{S_DN}, 1")
    a(f"s_cmp_lg_u32 s{S_DN}, 0")
    a("s_cbranch_scc1 L_dma2_loop")
    a("L_dma2_done:")
    stamp(a,cfg,13)
    for T in range(NS):
        a(f"s_waitcnt vmcnt({cfg.P-4})")
        issue_tile(T)
    stamp(a,cfg,14)
    a("s_branch L_q_b3")
    a("L_q_low:")
    a("L_q_mm:")
    a(f"v_and_b32 v10, 7, v{V_LANE}")
    a(f"v_lshlrev_b32 v10, 8, v10")
    a(f"v_lshlrev_b32 v11, 4, v3")
    a(f"v_add_u32 v10, v10, v11")
    a(f"v_add_u32 v10, {L_LNA}, v10")
    for s in range(4):
        a(f"ds_read_b128 {vr(V_X+4*s,4)}, v10 offset:{64*s}")
    a(f"v_lshlrev_b32 v11, 3, v3")
    a(f"v_add_u32 v11, v11, v4")
    a(f"v_lshlrev_b32 v11, 8, v11")
    a(f"v_lshlrev_b32 v12, 3, v5")
    a(f"s_lshl_b32 s{S_T0}, s{S_W}, 6")
    a(f"s_add_u32 s{S_T0}, s{S_T0}, {L_WQ}")
    a(f"v_add3_u32 v11, v11, v12, s{S_T0}")
    for tt in range(2):
        for s in range(4):
            for hf in range(2):
                reg=V_X+16+tt*16+s*4+hf*2
                a(f"ds_read_b64_tr_b16 {vr(reg,2)}, v11 offset:{(32*s+4*hf)*256+32*tt}")
    a("s_waitcnt lgkmcnt(0)")
    for tt in range(2):
        for s in range(4):
            c = "0" if s==0 else vr(V_T+4*tt,4)
            a(f"v_mfma_f32_16x16x32_bf16 {vr(V_T+4*tt,4)}, {vr(V_X+16+tt*16+s*4,4)}, {vr(V_X+4*s,4)}, {c}")
    a(f"s_lshl_b32 s{S_T0}, s{S_H}, 3")
    a(f"s_add_u32 s{S_T0}, s{S_T0}, s{S_B}")
    a(f"s_lshl_b32 s{S_T0}, s{S_T0}, 13")
    a(f"s_lshl_b32 s{S_T1}, s{S_W}, 8")
    a(f"s_add_u32 s{S_T0}, s{S_T0}, s{S_T1}")
    a(f"s_add_u32 s{S_T0}, s{S_T0}, {W_QP}")
    a(f"v_lshlrev_b32 v10, 10, v2")
    a(f"v_lshlrev_b32 v11, 5, v3")
    a(f"v_add3_u32 v10, v10, v11, s{S_T0}")
    a("s_waitcnt lgkmcnt(0)")
    a(f"s_add_u32 s{S_TAG}, s{S_TAG}, 1")
    a(f"s_addc_u32 s{S_TAG+1}, s{S_TAG+1}, 0")
    G=V_X
    a("s_nop 1")
    for tt in range(2):
        for hh in range(2):
            b=G+8*tt+4*hh
            a(f"v_mov_b32 v{b}, v{V_T+4*tt+2*hh}")
            a(f"v_mov_b32 v{b+1}, v{V_T+4*tt+2*hh+1}")
            a(f"v_mov_b32 v{b+2}, s{S_TAG}")
            a(f"v_mov_b32 v{b+3}, s{S_TAG+1}")
    set_exec(a, "0x00ff00ff", "0x00ff00ff")
    for tt in range(2):
        for hh in range(2):
            a(f"global_store_dwordx4 v10, {vr(G+8*tt+4*hh,4)}, {sr(P_WS,2)} offset:{128*tt+16*hh} sc1")
    full_exec(a)
    stamp(a,cfg,13)
    a(f"s_cmp_eq_u32 s{S_W}, 0")
    a("s_cbranch_scc1 L_q_w0")
    a(f"s_cmp_lg_u32 s{S_W}, 3")
    a("s_cbranch_scc1 L_q_noclr")
    emit_clears(a)
    a("L_q_noclr:")
    preload(cfg.P1)
    a(f"s_cmp_lg_u32 s{S_W}, 3")
    a("s_cbranch_scc1 L_q_nordy")
    a(f"s_getreg_b32 s{S_T0}, hwreg(HW_REG_XCC_ID, 0, 4)")
    a(f"s_lshl_b32 s{S_T1}, s{S_X}, 5")
    a(f"s_add_u32 s{S_T1}, s{S_T1}, s{S_R}")
    a(f"s_lshl_b32 s{S_T1}, s{S_T1}, 4")
    a(f"s_add_u32 s{S_T1}, s{S_T1}, {W_RDY}")
    a(f"v_mov_b32 v10, s{S_T1}")
    a(f"v_mov_b32 v12, s{S_T0}")
    a(f"v_mov_b32 v13, 0")
    a(f"v_mov_b32 v14, s{S_TAG}")
    a(f"v_mov_b32 v15, s{S_TAG+1}")
    set_exec(a, 1, 0)
    a(f"global_store_dwordx4 v10, v[12:15], {sr(P_WS,2)} sc1")
    full_exec(a)
    a("L_q_nordy:")
    stamp(a,cfg,14)
    a("s_branch L_q_b3")
    a("L_q_w0:")
    a(f"s_lshl_b32 s{S_T0}, s{S_H}, 16")
    a(f"s_lshl_b32 s{S_T1}, s{S_B}, 10")
    a(f"s_add_u32 s{S_T0}, s{S_T0}, s{S_T1}")
    a(f"s_add_u32 s{S_T0}, s{S_T0}, {W_QP}")
    a(f"v_add_u32 v10, s{S_T0}, v{V_VOFF}")
    for j in range(8):
        a(f"v_add_u32 v{V_T+8+j}, {j*8192}, v10")
    lp=a.label("qpoll"); dn=a.label("qok")
    a(f"s_mov_b32 s{S_SPIN}, {cfg.SPIN}")
    a(f"{lp}:")
    for j in range(8):
        a(f"global_load_dwordx4 {vr(V_X+4*j,4)}, v{V_T+8+j}, {sr(P_WS,2)} sc1")
    a("s_waitcnt vmcnt(0)")
    a(f"v_mov_b32 v11, 0")
    for j in range(8):
        a(f"v_xor_b32 v12, s{S_TAG}, v{V_X+4*j+2}")
        a(f"v_xor_b32 v13, s{S_TAG+1}, v{V_X+4*j+3}")
        a(f"v_or3_b32 v11, v11, v12, v13")
    a(f"v_cmp_ne_u32 vcc, 0, v11")
    a(f"s_cbranch_vccz {dn}")
    if cfg.QSLEEP: a(f"s_sleep {cfg.QSLEEP}")
    a(f"s_sub_u32 s{S_SPIN}, s{S_SPIN}, 1")
    a(f"s_cmp_lg_u32 s{S_SPIN}, 0")
    a(f"s_cbranch_scc1 {lp}")
    a(f"{dn}:")
    stamp(a,cfg,14)
    for j in range(1,8):
        a(f"v_add_f32 v{V_X}, v{V_X}, v{V_X+4*j}")
        a(f"v_add_f32 v{V_X+1}, v{V_X+1}, v{V_X+4*j+1}")
    a(f"v_cvt_pk_bf16_f32 v{V_X}, v{V_X}, v{V_X+1}")
    a(f"v_lshlrev_b32 v11, 2, v{V_LANE}")
    a(f"v_add_u32 v11, {L_QS}, v11")
    a(f"ds_write_b32 v11, v{V_X}")
    for T in range(NS): issue_tile(T)
    a("s_waitcnt lgkmcnt(0)")
    a("L_q_b3:")
    a("s_barrier")
    stamp(a,cfg,2)
    a(f"v_lshlrev_b32 v10, 2, v3")
    a(f"v_add_u32 v10, v10, v5")
    a(f"v_lshlrev_b32 v10, 4, v10")
    a(f"v_add_u32 v10, {L_QS}, v10")
    a(f"ds_read_b128 {vr(V_T,4)}, v10")
    a(f"v_and_b32 v10, 1, v2")
    a(f"v_cmp_eq_u32 vcc, 1, v10")
    a(f"v_mov_b32 v11, 0xffff")
    a(f"v_mov_b32 v12, 0xffff0000")
    a(f"v_cndmask_b32 v11, v11, v12, vcc")
    a(f"v_lshrrev_b32 v10, 1, v2")
    for w in range(4):
        a(f"v_cmp_eq_u32 vcc, {w}, v10")
        a("s_nop 1")
        a(f"v_cndmask_b32 v{V_MASK+w}, 0, v11, vcc")
    a(f"s_lshl_b32 s{S_T0}, s{S_W}, 11")
    a(f"s_add_u32 s{S_T0}, s{S_T0}, {L_SC}")
    a(f"v_lshlrev_b32 v10, 4, v4")
    a(f"v_lshlrev_b32 v11, 2, v3")
    a(f"v_add3_u32 v{V_SCW}, v10, v11, s{S_T0}")
    a(f"v_lshlrev_b32 v10, 4, v3")
    a(f"v_add_u32 v{V_PPR}, s{S_T0}, v10")
    a(f"v_mov_b32 v{V_MAX}, 0xff800000")
    a(f"s_mov_b32 s{S_SCALE}, 0x3db504f3")
    a(f"s_mov_b32 s{S_LOG2E}, 0x3fb8aa3b")
    a("s_waitcnt lgkmcnt(0)")
    for n in range(4):
        a(f"v_cmp_eq_u32 vcc, {n}, v4")
        a("s_nop 1")
        for c in range(4):
            a(f"v_cndmask_b32 v{V_QA+4*n+c}, 0, v{V_T+c}, vcc")

    def outstanding_after(T):
        return 4*(min(T+NS-1,63)-T) + (2 if T>63-NS else 0)
    for T in range(32):
        slot=T%NS
        a(f"s_waitcnt vmcnt({outstanding_after(T)})")
        for n in range(4):
            c="0" if n==0 else vr(V_SACC,4)
            a(f"v_mfma_f32_16x16x32_bf16 {vr(V_SACC,4)}, {vr(V_QA+4*n,4)}, {vr(V_RING+slot*16+4*n,4)}, {c}")
        if T+NS<64: issue_tile(T+NS)
        a("s_nop 7")
        t=V_T
        a(f"v_mov_b32_dpp v{t}, v{V_SACC} quad_perm:[0,0,0,0] row_mask:0xf bank_mask:0xf")
        for n in range(1,4):
            a(f"v_add_f32_dpp v{t}, v{V_SACC+n}, v{t} quad_perm:[{n},{n},{n},{n}] row_mask:0xf bank_mask:0xf")
        round_bf16(a,t,t)
        a(f"v_mul_f32 v{t}, s{S_SCALE}, v{t}")
        round_bf16(a,t,t)
        a(f"v_max_f32 v{V_MAX}, v{V_MAX}, v{t}")
        a(f"ds_write_b32 v{V_SCW}, v{t} offset:{T*64}")
    stamp(a,cfg,3)
    wave_sum(a, V_MAX, V_T, op="max")
    a(f"s_lshl_b32 s{S_T4}, s{S_W}, 11")
    a(f"s_add_u32 s{S_T4}, s{S_T4}, {L_SC}")
    a(f"v_lshlrev_b32 v10, 5, v{V_LANE}")
    a(f"v_add_u32 v10, s{S_T4}, v10")
    a("s_waitcnt lgkmcnt(0)")
    a(f"ds_read_b128 {vr(V_T,4)}, v10")
    a(f"ds_read_b128 {vr(V_T+4,4)}, v10 offset:16")
    a("s_waitcnt lgkmcnt(0)")
    for i in range(8):
        a(f"v_sub_f32 v{V_T+8+i}, v{V_T+i}, v{V_MAX}")
        a(f"v_mul_f32 v{V_T+8+i}, s{S_LOG2E}, v{V_T+8+i}")
        a(f"v_exp_f32 v{V_T+8+i}, v{V_T+8+i}")
    a("s_nop 0")
    a(f"v_add_f32 v{V_T+16}, v{V_T+8}, v{V_T+9}")
    for i in range(2,8):
        a(f"v_add_f32 v{V_T+16}, v{V_T+16}, v{V_T+8+i}")
    wave_sum(a, V_T+16, V_T+17)
    a(f"v_mov_b32 v{V_T+17}, v{V_MAX}")
    a(f"v_mov_b32 v{V_T+18}, v{V_T+16}")
    a(f"s_lshl_b32 s{S_T0}, s{S_W}, 3")
    a(f"s_add_u32 s{S_T0}, s{S_T0}, {L_ML}")
    a(f"v_mov_b32 v11, s{S_T0}")
    set_exec(a, 1, 0)
    a(f"ds_write_b64 v11, {vr(V_T+17,2)}") if (V_T+17)%2==0 else None
    if (V_T+17)%2!=0:
        a(f"ds_write_b32 v11, v{V_T+17}")
        a(f"ds_write_b32 v11, v{V_T+18} offset:4")
    full_exec(a)
    a("s_waitcnt lgkmcnt(0)")
    a("s_barrier")
    a(f"v_mov_b32 v11, {L_ML}")
    for k in range(4):
        a(f"ds_read_b128 {vr(V_X+4*k,4)}, v11 offset:{16*k}")
    a("s_waitcnt lgkmcnt(0)")
    a(f"v_max_f32 v{V_MAX}, v{V_X}, v{V_X+2}")
    for k in range(2,8):
        a(f"v_max_f32 v{V_MAX}, v{V_MAX}, v{V_X+2*k}")
    for k in range(8):
        a(f"v_sub_f32 v{V_X+2*k}, v{V_X+2*k}, v{V_MAX}")
        a(f"v_mul_f32 v{V_X+2*k}, s{S_LOG2E}, v{V_X+2*k}")
        a(f"v_exp_f32 v{V_X+2*k}, v{V_X+2*k}")
    a("s_nop 0")
    a(f"v_mul_f32 v{V_T+16}, v{V_X}, v{V_X+1}")
    for k in range(1,8):
        a(f"v_fmac_f32 v{V_T+16}, v{V_X+2*k}, v{V_X+2*k+1}")
    a(f"v_rcp_f32 v{V_T+17}, v{V_T+16}")
    a("s_nop 0")
    a(f"v_fma_f32 v{V_T+18}, -v{V_T+16}, v{V_T+17}, 1.0")
    a(f"v_fma_f32 v{V_T+17}, v{V_T+18}, v{V_T+17}, v{V_T+17}")
    for i in range(8):
        a(f"v_sub_f32 v{V_T+8+i}, v{V_T+i}, v{V_MAX}")
        a(f"v_mul_f32 v{V_T+8+i}, s{S_LOG2E}, v{V_T+8+i}")
        a(f"v_exp_f32 v{V_T+8+i}, v{V_T+8+i}")
    a("s_nop 0")
    for i in range(8):
        a(f"v_mul_f32 v{V_T+8+i}, v{V_T+8+i}, v{V_T+17}")
        a(f"v_cvt_pk_bf16_f32 v{V_T+8+i}, v{V_T+8+i}, v{V_T+8+i}")
    a(f"ds_write_b128 v10, {vr(V_T+8,4)}")
    a(f"ds_write_b128 v10, {vr(V_T+12,4)} offset:16")
    for c in range(4):
        a(f"v_mov_b32 v{V_OACC+c}, 0")
    a("s_waitcnt lgkmcnt(0)")
    stamp(a,cfg,4)
    a(f"ds_read_b128 {vr(V_PP0,4)}, v{V_PPR}")
    for T in range(32,64):
        t=T-32
        slot=T%NS
        pp = V_PP0 if t%2==0 else V_PP1
        ppn = V_PP1 if t%2==0 else V_PP0
        if t<31:
            a(f"ds_read_b128 {vr(ppn,4)}, v{V_PPR} offset:{(t+1)*64}")
            a(f"s_waitcnt vmcnt({outstanding_after(T)}) lgkmcnt(1)")
        else:
            a(f"s_waitcnt vmcnt({outstanding_after(T)}) lgkmcnt(0)")
        def ands(dst,n):
            for w in range(4):
                a(f"v_and_b32 v{dst+w}, v{pp+n}, v{V_MASK+w}")
        def mm(A,n):
            a(f"v_mfma_f32_16x16x32_bf16 {vr(V_OACC,4)}, {vr(A,4)}, {vr(V_RING+slot*16+4*n,4)}, {vr(V_OACC,4)}")
        ands(V_A0,0); ands(V_A1,1)
        mm(V_A0,0)
        ands(V_A0,2)
        mm(V_A1,1)
        ands(V_A1,3)
        mm(V_A0,2)
        a("s_nop 0")
        mm(V_A1,3)
        if T+NS<64: issue_tile(T+NS)
        if T+NS==63: emit_extras(a)
    stamp(a,cfg,5)
    return a, issue_tile


def gen_tail(a, cfg):
    NS=cfg.NS
    WB=V_RING
    WO_F=WB; GU_F=WB+16; WD_F=WB+48
    TT=V_RING+64
    a(f"s_lshl_b32 s{S_T0}, s{S_W}, 9")
    a(f"s_add_u32 s{S_T0}, s{S_T0}, {L_RED}")
    a(f"v_lshlrev_b32 v10, 5, v2")
    a(f"v_lshlrev_b32 v11, 4, v3")
    a(f"v_add3_u32 v10, v10, v11, s{S_T0}")
    a("s_nop 4")
    set_exec(a, -1, 0)
    a(f"ds_write_b128 v10, {vr(V_OACC,4)}")
    full_exec(a)
    a(f"v_lshlrev_b32 v12, 3, v3")
    a(f"v_add_u32 v12, v12, v4")
    a(f"v_lshlrev_b32 v12, 7, v12")
    a(f"v_lshlrev_b32 v13, 3, v5")
    a(f"v_add_u32 v12, v12, v13")
    a(f"s_lshl_b32 s{S_T0}, s{S_W}, 12")
    a(f"s_add_u32 s{S_T1}, s{S_T0}, {L_WO}")
    a(f"v_add_u32 v13, s{S_T1}, v12")
    for t in range(4):
        for hf in range(2):
            a(f"ds_read_b64_tr_b16 {vr(WO_F+4*t+2*hf,2)}, v13 offset:{hf*4*128+32*t}")
    a(f"s_add_u32 s{S_T1}, s{S_T0}, {L_WD}")
    a(f"v_add_u32 v13, s{S_T1}, v12")
    for t in range(4):
        for hf in range(2):
            a(f"ds_read_b64_tr_b16 {vr(WD_F+4*t+2*hf,2)}, v13 offset:{hf*4*128+32*t}")
    lp=a.label("mode"); dn=a.label("modeok")
    a(f"s_mov_b32 s{S_SPIN}, {cfg.SPIN}")
    a(f"{lp}:")
    a("s_waitcnt vmcnt(0)")
    a(f"v_xor_b32 v11, s{S_TAG}, v{V_RDY+2}")
    a(f"v_xor_b32 v15, s{S_TAG+1}, v{V_RDY+3}")
    a(f"v_or_b32 v11, v11, v15")
    a(f"v_cmp_ne_u32 vcc, 0, v11")
    a(f"s_cbranch_vccz {dn}")
    a(f"global_load_dwordx4 {vr(V_RDY,4)}, v9, {sr(P_WS,2)} sc1")
    a(f"s_sub_u32 s{S_SPIN}, s{S_SPIN}, 1")
    a(f"s_cmp_lg_u32 s{S_SPIN}, 0")
    a(f"s_cbranch_scc1 {lp}")
    a(f"{dn}:")
    a(f"v_readfirstlane_b32 s{S_T0}, v{V_RDY}")
    a("s_nop 1")
    a(f"v_cmp_ne_u32 vcc, s{S_T0}, v{V_RDY}")
    a(f"s_mov_b32 s{S_T1}, {1 if cfg.FASTMODE else 0}")
    a("s_nop 1")
    a(f"s_cmp_eq_u64 vcc, 0")
    a(f"s_cselect_b32 s{S_T1}, s{S_T1}, 0")
    a(f"s_lshl_b32 s{S_T0}, s{S_W}, 2")
    a(f"s_add_u32 s{S_T0}, s{S_T0}, {L_ML}")
    a(f"v_mov_b32 v10, s{S_T0}")
    a(f"v_mov_b32 v11, s{S_T1}")
    a(f"ds_write_b32 v10, v11")
    a("s_waitcnt lgkmcnt(0)")
    a("s_barrier")
    a(f"s_lshl_b32 s{S_T0}, s{S_X}, 2")
    a(f"s_add_u32 s{S_T0}, s{S_T0}, {L_ML}")
    a(f"v_mov_b32 v10, s{S_T0}")
    a(f"ds_read_b32 v11, v10")
    a(f"s_lshr_b32 s{S_T0}, s{S_W}, 2")
    a(f"s_lshl_b32 s{S_T0}, s{S_T0}, 15")
    a(f"s_and_b32 s{S_T1}, s{S_W}, 3")
    a(f"s_lshl_b32 s{S_T1}, s{S_T1}, 5")
    a(f"s_add_u32 s{S_T0}, s{S_T0}, s{S_T1}")
    a(f"s_add_u32 s{S_T0}, s{S_T0}, {L_WG}")
    a(f"v_add_u32 v13, s{S_T0}, v12")
    a(f"s_cmp_lg_u32 s{S_W}, 0")
    a("s_cbranch_scc1 L_t1_skip")
    a(f"v_lshlrev_b32 v10, 3, v{V_LANE}")
    a(f"v_add_u32 v10, {L_RED}, v10")
    for w in range(8):
        a(f"ds_read_b64 {vr(TT+2*w,2)}, v10 offset:{w*512}")
    a("s_waitcnt lgkmcnt(0)")
    for w in range(1,8):
        a(f"v_add_f32 v{TT}, v{TT}, v{TT+2*w}")
        a(f"v_add_f32 v{TT+1}, v{TT+1}, v{TT+2*w+1}")
    a(f"v_cvt_pk_bf16_f32 v{TT}, v{TT}, v{TT+1}")
    a(f"v_min_u32 v{TT}, -2, v{TT}")
    a(f"s_lshl_b32 s{S_T0}, s{S_H}, 3")
    a(f"s_add_u32 s{S_T0}, s{S_T0}, s{S_B}")
    a(f"s_lshl_b32 s{S_T0}, s{S_T0}, 8")
    a(f"s_add_u32 s{S_T0}, s{S_T0}, {W_OB}")
    a(f"v_lshlrev_b32 v10, 2, v{V_LANE}")
    a(f"v_add_u32 v10, s{S_T0}, v10")
    a("L_t1_skip:")
    a("s_waitcnt lgkmcnt(0)")
    a(f"v_readfirstlane_b32 s{S_FAST}, v11")
    a("s_nop 1")
    a(f"s_cmp_lg_u32 s{S_W}, 0")
    a("s_cbranch_scc1 L_t1_done")
    store_mode(a, f"global_store_dword v10, v{TT}, {sr(P_WS,2)}", True)
    a("L_t1_done:")
    stamp(a,cfg,6)
    for s in range(8):
        for hf in range(2):
            a(f"ds_read_b64_tr_b16 {vr(GU_F+4*s+2*hf,2)}, v13 offset:{(32*s+4*hf)*128}")
    a(f"s_lshr_b32 s{S_T4}, s{S_R}, 4")
    a(f"s_and_b32 s{S_T5}, s{S_R}, 15")
    a(f"s_lshl_b32 s{S_T0}, s{S_X}, 2")
    a(f"s_lshl_b32 s{S_T1}, s{S_T4}, 1")
    a(f"s_add_u32 s{S_T0}, s{S_T0}, s{S_T1}")
    a(f"s_lshr_b32 s{S_T1}, s{S_W}, 2")
    a(f"s_add_u32 s{S_T0}, s{S_T0}, s{S_T1}")
    a(f"s_lshl_b32 s{S_T0}, s{S_T0}, 11")
    a(f"s_and_b32 s{S_T1}, s{S_W}, 3")
    a(f"s_lshl_b32 s{S_T1}, s{S_T1}, 6")
    a(f"s_add_u32 s{S_T0}, s{S_T0}, s{S_T1}")
    a(f"s_add_u32 s{S_T0}, s{S_T0}, {W_OB}")
    a(f"v_and_b32 v14, 7, v{V_LANE}")
    a(f"v_lshlrev_b32 v10, 8, v14")
    a(f"v_lshlrev_b32 v11, 4, v3")
    a(f"v_add3_u32 v10, v10, v11, s{S_T0}")
    poll_loop(a,"t2", lambda: a(f"global_load_dwordx4 {vr(TT,4)}, v10, {sr(P_WS,2)} sc1"), range(TT,TT+4), cfg)
    a("s_waitcnt lgkmcnt(0)")
    def gemm4_reduce_publish(F, wbase, pname, nw, lab, LR):
        for t in range(4):
            a(f"v_mfma_f32_16x16x32_bf16 {vr(TT+4+4*t,4)}, {vr(F+4*t,4)}, {vr(TT,4)}, 0")
        a(f"s_lshl_b32 s{S_T0}, s{S_W}, 11")
        a(f"s_add_u32 s{S_T0}, s{S_T0}, {LR}")
        a(f"v_lshlrev_b32 v10, 8, v2")
        a(f"v_lshlrev_b32 v11, 4, v3")
        a(f"v_add3_u32 v10, v10, v11, s{S_T0}")
        a("s_nop 3")
        if nw<8:
            a(f"s_cmp_ge_u32 s{S_W}, {nw}")
            a(f"s_cbranch_scc1 {lab}_nw")
        set_exec(a, "0x00ff00ff", "0x00ff00ff")
        for t in range(4):
            a(f"ds_write_b128 v10, {vr(TT+4+4*t,4)} offset:{64*t}")
        full_exec(a)
        a(f"{lab}_nw:")
        a("s_waitcnt lgkmcnt(0)")
        a("s_barrier")
        a(f"s_cmp_ge_u32 s{S_W}, 2")
        a(f"s_cbranch_scc1 {lab}_skip")
        a(f"v_lshlrev_b32 v10, 4, v{V_TID}")
        a(f"v_add_u32 v10, {LR}, v10")
        for w in range(nw):
            a(f"ds_read_b128 {vr(TT+4+4*w,4)}, v10 offset:{w*2048}")
        a("s_waitcnt lgkmcnt(0)")
        for w in range(1,nw):
            for c in range(4):
                a(f"v_add_f32 v{TT+4+c}, v{TT+4+c}, v{TT+4+4*w+c}")
        for c in range(4):
            a(f"v_min_u32 v{TT+4+c}, -2, v{TT+4+c}")
        a(f"s_lshl_b32 s{S_T0}, s{S_X}, 1")
        a(f"s_add_u32 s{S_T0}, s{S_T0}, s{S_T4}")
        a(f"s_lshl_b32 s{S_T0}, s{S_T0}, 15")
        a(f"s_lshl_b32 s{S_T1}, s{S_T5}, 8")
        a(f"s_add_u32 s{S_T0}, s{S_T0}, s{S_T1}")
        a(f"s_add_u32 s{S_T0}, s{S_T0}, {wbase}")
        a(f"v_lshrrev_b32 v10, 4, v{V_TID}")
        a(f"v_lshlrev_b32 v10, 12, v10")
        a(f"v_lshlrev_b32 v11, 4, v2")
        a(f"v_add3_u32 v10, v10, v11, s{S_T0}")
        a(f"global_store_dwordx4 v10, {vr(TT+4,4)}, {sr(P_WS,2)} sc1")
        a(f"{lab}_skip:")
    gemm4_reduce_publish(WO_F, W_AP, "AP", 8, "L_t2", L_SC)
    stamp(a,cfg,7)
    a(f"s_lshr_b32 s{S_T0}, s{S_R}, 2")
    a(f"s_lshl_b32 s{S_T0}, s{S_T0}, 12")
    a(f"s_and_b32 s{S_T1}, s{S_R}, 3")
    a(f"s_lshl_b32 s{S_T1}, s{S_T1}, 10")
    a(f"s_add_u32 s{S_T0}, s{S_T0}, s{S_T1}")
    a(f"s_lshl_b32 s{S_T1}, s{S_W}, 16")
    a(f"s_add_u32 s{S_T0}, s{S_T0}, s{S_T1}")
    a(f"s_add_u32 s{S_T0}, s{S_T0}, {W_AP}")
    a(f"v_add_u32 v10, s{S_T0}, v{V_VOFF}")
    a(f"v_add_u32 v11, 32768, v10")
    def ld3():
        a(f"global_load_dwordx4 {vr(TT,4)}, v10, {sr(P_WS,2)} sc1")
        a(f"global_load_dwordx4 {vr(TT+4,4)}, v11, {sr(P_WS,2)} sc1")
    poll_loop(a,"t3", ld3, range(TT,TT+8), cfg)
    for c in range(4):
        a(f"v_add_f32 v{TT+c}, v{TT+c}, v{TT+4+c}")
    RED3=L_RED+4096
    a(f"s_lshl_b32 s{S_T0}, s{S_W}, 10")
    a(f"s_add_u32 s{S_T0}, s{S_T0}, {RED3}")
    a(f"v_add_u32 v10, s{S_T0}, v{V_VOFF}")
    a(f"ds_write_b128 v10, {vr(TT,4)}")
    a("s_waitcnt lgkmcnt(0)")
    a("s_barrier")
    a(f"s_cmp_lg_u32 s{S_W}, 0")
    a("s_cbranch_scc1 L_t3_skip")
    a(f"v_add_u32 v10, {RED3}, v{V_VOFF}")
    for w in range(8):
        a(f"ds_read_b128 {vr(TT+4*w,4)}, v10 offset:{w*1024}")
    a("s_waitcnt lgkmcnt(0)")
    for w in range(1,8):
        for c in range(4):
            a(f"v_add_f32 v{TT+c}, v{TT+c}, v{TT+4*w+c}")
    a(f"v_cvt_pk_bf16_f32 v{TT+4}, v{TT}, v{TT+1}")
    a(f"v_cvt_pk_bf16_f32 v{TT+5}, v{TT+2}, v{TT+3}")
    for d in range(2):
        a(f"v_lshlrev_b32 v{TT+8}, 16, v{TT+4+d}")
        a(f"v_and_b32 v{TT+9}, 0xffff0000, v{TT+4+d}")
        a(f"v_lshlrev_b32 v{TT+10}, 16, v{V_XRES+d}")
        a(f"v_and_b32 v{TT+11}, 0xffff0000, v{V_XRES+d}")
        a(f"v_add_f32 v{TT+8}, v{TT+8}, v{TT+10}")
        a(f"v_add_f32 v{TT+9}, v{TT+9}, v{TT+11}")
        a(f"v_cvt_pk_bf16_f32 v{TT+6+d}, v{TT+8}, v{TT+9}")
        a(f"v_min_u32 v{TT+6+d}, -2, v{TT+6+d}")
    a(f"s_lshr_b32 s{S_T0}, s{S_R}, 2")
    a(f"s_lshl_b32 s{S_T1}, s{S_X}, 3")
    a(f"s_add_u32 s{S_T0}, s{S_T0}, s{S_T1}")
    a(f"s_lshl_b32 s{S_T0}, s{S_T0}, 11")
    a(f"s_and_b32 s{S_T1}, s{S_R}, 3")
    a(f"s_lshl_b32 s{S_T1}, s{S_T1}, 9")
    a(f"s_add_u32 s{S_T0}, s{S_T0}, s{S_T1}")
    a(f"s_add_u32 s{S_T0}, s{S_T0}, {W_HB}")
    a(f"v_lshlrev_b32 v10, 3, v{V_LANE}")
    a(f"v_add_u32 v10, s{S_T0}, v10")
    store_mode(a, f"global_store_dwordx2 v10, {vr(TT+6,2)}, {sr(P_WS,2)}", True)
    a("L_t3_skip:")
    stamp(a,cfg,8)
    a(f"s_lshl_b32 s{S_T0}, s{S_X}, 3")
    a(f"s_add_u32 s{S_T0}, s{S_T0}, s{S_W}")
    a(f"s_lshl_b32 s{S_T0}, s{S_T0}, 11")
    a(f"s_add_u32 s{S_T0}, s{S_T0}, {W_HB}")
    a(f"v_lshlrev_b32 v10, 5, v{V_LANE}")
    a(f"v_add_u32 v10, s{S_T0}, v10")
    def ld4():
        a(f"global_load_dwordx4 {vr(TT,4)}, v10, {sr(P_WS,2)} sc1")
        a(f"global_load_dwordx4 {vr(TT+4,4)}, v10, {sr(P_WS,2)} offset:16 sc1")
    poll_loop(a,"t4", ld4, range(TT,TT+8), cfg)
    a(f"s_cmp_lg_u32 s{S_W}, s{S_X}")
    a("s_cbranch_scc1 L_t4_nohs")
    a(f"s_lshl_b32 s{S_T0}, s{S_R}, 1")
    a(f"v_subrev_u32 v10, s{S_T0}, v{V_LANE}")
    a(f"v_cmp_gt_u32 vcc, 2, v10")
    a(f"v_lshlrev_b32 v10, 5, v10")
    a(f"v_add_u32 v10, {L_HS}, v10")
    a(f"s_and_saveexec_b64 {sr(S_EX,2)}, vcc")
    a(f"ds_write_b128 v10, {vr(TT,4)}")
    a(f"ds_write_b128 v10, {vr(TT+4,4)} offset:16")
    a(f"s_mov_b64 exec, {sr(S_EX,2)}")
    a("L_t4_nohs:")
    a(f"s_cmp_ge_u32 s{S_R}, 28")
    a("s_cbranch_scc1 L_t5_skip_all")
    layernorm(a, TT, TT+8, TT+24, V_T)
    a(f"s_mul_i32 s{S_T4}, s{S_R}, 37")
    a(f"s_lshr_b32 s{S_T4}, s{S_T4}, 8")
    a(f"s_mul_i32 s{S_T5}, s{S_T4}, 7")
    a(f"s_sub_u32 s{S_T5}, s{S_R}, s{S_T5}")
    a(f"s_lshl_b32 s{S_T0}, s{S_T4}, 4")
    a(f"v_subrev_u32 v10, s{S_T0}, v{V_LANE}")
    a(f"v_cmp_gt_u32 vcc, 16, v10")
    a(f"s_lshl_b32 s{S_T1}, s{S_W}, 9")
    a(f"s_add_u32 s{S_T1}, s{S_T1}, {L_LNB}")
    a(f"v_lshlrev_b32 v10, 5, v10")
    a(f"v_add_u32 v10, s{S_T1}, v10")
    a(f"s_and_saveexec_b64 {sr(S_EX,2)}, vcc")
    a(f"ds_write_b128 v10, {vr(TT+24,4)}")
    a(f"ds_write_b128 v10, {vr(TT+28,4)} offset:16")
    a(f"s_mov_b64 exec, {sr(S_EX,2)}")
    a("s_waitcnt lgkmcnt(0)")
    a("s_barrier")
    stamp(a,cfg,9)
    a(f"v_lshlrev_b32 v10, 9, v14")
    a(f"v_lshlrev_b32 v11, 4, v3")
    a(f"v_add_u32 v10, v10, v11")
    a(f"v_add_u32 v10, {L_LNB}, v10")
    for s in range(8):
        a(f"ds_read_b128 {vr(TT+4*s,4)}, v10 offset:{64*s}")
    a("s_waitcnt lgkmcnt(0)")
    for s in range(8):
        c="0" if s==0 else vr(V_T,4)
        a(f"v_mfma_f32_16x16x32_bf16 {vr(V_T,4)}, {vr(GU_F+4*s,4)}, {vr(TT+4*s,4)}, {c}")
    a(f"s_mul_i32 s{S_T0}, s{S_X}, 28")
    a(f"s_add_u32 s{S_T0}, s{S_T0}, s{S_R}")
    a(f"s_lshl_b32 s{S_T0}, s{S_T0}, 12")
    a(f"s_lshr_b32 s{S_T1}, s{S_W}, 2")
    a(f"s_lshl_b32 s{S_T1}, s{S_T1}, 11")
    a(f"s_add_u32 s{S_T0}, s{S_T0}, s{S_T1}")
    a(f"s_and_b32 s{S_T1}, s{S_W}, 3")
    a(f"s_lshl_b32 s{S_T1}, s{S_T1}, 6")
    a(f"s_add_u32 s{S_T0}, s{S_T0}, s{S_T1}")
    a(f"s_add_u32 s{S_T0}, s{S_T0}, {W_GP}")
    a(f"v_lshlrev_b32 v10, 8, v2")
    a(f"v_lshlrev_b32 v11, 4, v3")
    a(f"v_add3_u32 v10, v10, v11, s{S_T0}")
    a("s_nop 1")
    for c in range(4):
        a(f"v_min_u32 v{V_T+c}, -2, v{V_T+c}")
    set_exec(a, "0x00ff00ff", "0x00ff00ff")
    store_mode(a, f"global_store_dwordx4 v10, {vr(V_T,4)}, {sr(P_WS,2)}", True)
    full_exec(a)
    a(f"s_cmp_lg_u32 s{S_W}, 0")
    a("s_cbranch_scc1 L_t5_skip_all")
    a(f"s_mul_i32 s{S_T0}, s{S_X}, 28")
    a(f"s_add_u32 s{S_T0}, s{S_T0}, s{S_T5}")
    a(f"s_lshl_b32 s{S_T0}, s{S_T0}, 12")
    a(f"s_lshl_b32 s{S_T1}, s{S_T4}, 9")
    a(f"s_add_u32 s{S_T0}, s{S_T0}, s{S_T1}")
    a(f"s_add_u32 s{S_T0}, s{S_T0}, {W_GP}")
    a(f"v_lshrrev_b32 v10, 5, v{V_LANE}")
    a(f"v_lshlrev_b32 v10, 8, v10")
    a(f"v_and_b32 v11, 31, v{V_LANE}")
    a(f"v_lshlrev_b32 v11, 3, v11")
    a(f"v_add3_u32 v10, v10, v11, s{S_T0}")
    for k in range(1,4):
        a(f"v_add_u32 v{TT+32+k}, {k*7*4096}, v10")
    a(f"v_mov_b32 v{TT+32}, v10")
    def ld5():
        for k in range(4):
            for m in range(2):
                a(f"global_load_dwordx2 {vr(TT+ (k*2+m)*2,2)}, v{TT+32+k}, {sr(P_WS,2)} offset:{m*2048} sc1")
    poll_loop(a,"t5", ld5, range(TT,TT+16), cfg)
    for k in range(1,4):
        for c in range(4):
            a(f"v_add_f32 v{TT+c}, v{TT+c}, v{TT+4*k+c}")
    G=TT; U=TT+2; X=TT+4
    for c in range(2):
        round_bf16(a,G+c,G+c)
        round_bf16(a,U+c,U+c)
    a(f"s_mov_b32 s{S_T0}, 0x3d372713")
    a(f"s_mov_b32 s{S_T1}, 0xc0135761")
    for c in range(2):
        a(f"v_mul_f32 v{X+c}, v{G+c}, v{G+c}")
        a(f"v_mul_f32 v{X+c}, v{X+c}, v{G+c}")
        a(f"v_fma_f32 v{X+c}, v{X+c}, s{S_T0}, v{G+c}")
        a(f"v_mul_f32 v{X+c}, s{S_T1}, v{X+c}")
        a(f"v_exp_f32 v{X+c}, v{X+c}")
        a("s_nop 0")
        a(f"v_add_f32 v{X+c}, 1.0, v{X+c}")
        a(f"v_rcp_f32 v{X+c}, v{X+c}")
        a("s_nop 0")
        a(f"v_mul_f32 v{X+c}, v{X+c}, v{G+c}")
        round_bf16(a,X+c,X+c)
        a(f"v_mul_f32 v{X+c}, v{X+c}, v{U+c}")
    a(f"v_cvt_pk_bf16_f32 v{X}, v{X}, v{X+1}")
    a(f"v_min_u32 v{X}, -2, v{X}")
    a(f"s_lshl_b32 s{S_T0}, s{S_X}, 3")
    a(f"s_lshl_b32 s{S_T1}, s{S_T4}, 1")
    a(f"s_add_u32 s{S_T0}, s{S_T0}, s{S_T1}")
    a(f"s_mul_i32 s{S_T0}, s{S_T0}, 896")
    a(f"s_lshl_b32 s{S_T1}, s{S_T5}, 7")
    a(f"s_add_u32 s{S_T0}, s{S_T0}, s{S_T1}")
    a(f"s_add_u32 s{S_T0}, s{S_T0}, {W_ACT}")
    a(f"v_lshrrev_b32 v10, 5, v{V_LANE}")
    a(f"v_mul_u32_u24 v10, 896, v10")
    a(f"v_and_b32 v11, 31, v{V_LANE}")
    a(f"v_lshlrev_b32 v11, 2, v11")
    a(f"v_add3_u32 v10, v10, v11, s{S_T0}")
    store_mode(a, f"global_store_dword v10, v{X}, {sr(P_WS,2)}", True)
    a("L_t5_skip_all:")
    stamp(a,cfg,10)
    a(f"s_lshr_b32 s{S_T4}, s{S_R}, 4")
    a(f"s_and_b32 s{S_T5}, s{S_R}, 15")
    a(f"s_cmp_ge_u32 s{S_W}, 7")
    a("s_cbranch_scc1 L_t6_nopoll")
    a(f"s_mul_i32 s{S_T0}, s{S_X}, {8*896}")
    a(f"s_mul_i32 s{S_T1}, s{S_T4}, 448")
    a(f"s_add_u32 s{S_T0}, s{S_T0}, s{S_T1}")
    a(f"s_lshl_b32 s{S_T1}, s{S_W}, 6")
    a(f"s_add_u32 s{S_T0}, s{S_T0}, s{S_T1}")
    a(f"s_add_u32 s{S_T0}, s{S_T0}, {W_ACT}")
    a(f"v_mul_u32_u24 v10, 896, v14")
    a(f"v_lshlrev_b32 v11, 4, v3")
    a(f"v_add3_u32 v10, v10, v11, s{S_T0}")
    poll_loop(a,"t6", lambda: a(f"global_load_dwordx4 {vr(TT,4)}, v10, {sr(P_WS,2)} sc1"), range(TT,TT+4), cfg)
    a("L_t6_nopoll:")
    gemm4_reduce_publish(WD_F, W_DP, "DP", 7, "L_t6", L_RED)
    stamp(a,cfg,11)
    a(f"s_cmp_lg_u32 s{S_W}, 0")
    a("s_cbranch_scc1 L_fin")
    a(f"s_lshl_b32 s{S_T0}, s{S_X}, 12")
    a(f"s_lshl_b32 s{S_T1}, s{S_R}, 7")
    a(f"s_add_u32 s{S_T0}, s{S_T0}, s{S_T1}")
    a(f"s_add_u32 s{S_T0}, s{S_T0}, {W_DP}")
    a(f"v_lshrrev_b32 v10, 5, v{V_LANE}")
    a(f"v_lshlrev_b32 v10, 18, v10")
    a(f"v_and_b32 v11, 31, v{V_LANE}")
    a(f"v_lshlrev_b32 v11, 2, v11")
    a(f"v_add3_u32 v10, v10, v11, s{S_T0}")
    for k in range(8):
        a(f"v_add_u32 v{TT+16+k}, {k*32768}, v10")
    def ld7():
        for k in range(8):
            a(f"global_load_dword v{TT+k}, v{TT+16+k}, {sr(P_WS,2)} sc1")
    poll_loop(a,"t7", ld7, range(TT,TT+8), cfg)
    for k in range(1,8):
        a(f"v_add_f32 v{TT}, v{TT}, v{TT+k}")
    a(f"v_mov_b32 v{TT+1}, v{TT}")
    a(f"v_and_b32 v11, 31, v{V_LANE}")
    a(f"v_lshlrev_b32 v11, 1, v11")
    a(f"v_add_u32 v11, {L_HS}, v11")
    a(f"ds_read_u16 v{TT+2}, v11")
    a(f"v_permlane32_swap_b32 v{TT}, v{TT+1}")
    a(f"v_add_f32 v{TT}, v{TT}, v{TT+1}")
    round_bf16(a,TT,TT)
    a("s_waitcnt lgkmcnt(0)")
    a(f"v_lshlrev_b32 v{TT+2}, 16, v{TT+2}")
    a(f"v_add_f32 v{TT}, v{TT}, v{TT+2}")
    a(f"v_cvt_pk_bf16_f32 v{TT}, v{TT}, v{TT}")
    a(f"s_lshl_b32 s{S_T0}, s{S_X}, 11")
    a(f"s_lshl_b32 s{S_T1}, s{S_R}, 6")
    a(f"s_add_u32 s{S_T0}, s{S_T0}, s{S_T1}")
    a(f"v_and_b32 v11, 31, v{V_LANE}")
    a(f"v_lshlrev_b32 v11, 1, v11")
    a(f"v_add_u32 v11, s{S_T0}, v11")
    set_exec(a, -1, 0)
    a(f"global_store_short v11, v{TT}, {sr(P_OUT,2)}")
    full_exec(a)
    a(f"s_cmp_lg_u32 s{S_ID}, 0")
    a("s_cbranch_scc1 L_fin")
    a(f"v_mov_b32 v10, {W_EPOCH}")
    a(f"v_mov_b32 v12, s{S_TAG}")
    a(f"v_mov_b32 v13, s{S_TAG+1}")
    set_exec(a, 1, 0)
    a(f"global_store_dwordx2 v10, v[12:13], {sr(P_WS,2)} sc1")
    full_exec(a)
    a("L_fin:")
    if cfg.STAMPS and cfg.DBGSTAMP:
        stamp(a,cfg,12)
        a("s_waitcnt lgkmcnt(0)")
        a(f"s_cmp_lg_u32 s{S_W}, 0")
        a("s_cbranch_scc1 L_exit")
        lst=[0,1,2,4,6,7,8,10,11,12]
        for i,k in enumerate(lst):
            if k==0:
                a(f"s_not_b32 s{S_T0}, s72")
                a(f"v_mov_b32 v{TT}, s{S_T0}")
            else:
                a(f"v_mov_b32 v{TT}, s{72+2*k}")
            a(f"v_mov_b32 v10, {4*i}")
            set_exec(a,1,0)
            a(f"global_atomic_umax v10, v{TT}, {sr(P_DBG,2)} sc1")
            full_exec(a)
        a(f"v_mov_b32 v{TT}, s72")
        a(f"v_mov_b32 v10, 40")
        set_exec(a,1,0)
        a(f"global_atomic_umax v10, v{TT}, {sr(P_DBG,2)} sc1")
        full_exec(a)
        a(f"s_not_b32 s{S_T0}, s{72+12}")
        a(f"v_mov_b32 v{TT}, s{S_T0}")
        a(f"v_mov_b32 v10, 44")
        set_exec(a,1,0)
        a(f"global_atomic_umax v10, v{TT}, {sr(P_DBG,2)} sc1")
        full_exec(a)
    elif cfg.STAMPS:
        stamp(a,cfg,12)
        a("s_waitcnt lgkmcnt(0)")
        for k in range(15):
            a(f"v_mov_b32 v{TT}, s{72+2*k}")
            a(f"v_mov_b32 v{TT+1}, s{73+2*k}")
            a(f"s_lshl_b32 s{S_T0}, s{S_ID}, 3")
            a(f"s_add_u32 s{S_T0}, s{S_T0}, s{S_W}")
            a(f"s_lshl_b32 s{S_T0}, s{S_T0}, 7")
            a(f"s_add_u32 s{S_T0}, s{S_T0}, {W_STAMP+8*k}")
            a(f"v_mov_b32 v10, s{S_T0}")
            set_exec(a,1,0)
            a(f"global_store_dwordx2 v10, {vr(TT,2)}, {sr(P_WS,2)}")
            full_exec(a)
    a("L_exit:")
    a("s_endpgm")

HEADER = open("sequential_preLN__mha_block_cached__geglu_ffn__decode.s.ref").read().split("; Override launch geometry")[0]

def build(cfg, path):
    a,_=gen(cfg)
    gen_tail(a,cfg)
    txt = HEADER
    txt += "; Override launch geometry by editing the next line (default: block=256,\n"
    txt += f"; @launch grid=(256,1,1) block=(512,1,1) lds={LDS_BYTES}\n"
    txt += f""".amdgcn_target "amdgcn-amd-amdhsa--gfx950"
.text
.globl {KNAME}
.p2align 8
.type {KNAME},@function
"""
    txt += a.text()
    txt += f""".section .rodata,"a"
.p2align 6
.amdhsa_kernel {KNAME}
  .amdhsa_next_free_vgpr 256
  .amdhsa_next_free_sgpr 102
  .amdhsa_accum_offset 256
  .amdhsa_group_segment_fixed_size 0
  .amdhsa_kernarg_size 96
  .amdhsa_user_sgpr_count 2
  .amdhsa_user_sgpr_kernarg_segment_ptr 1
  .amdhsa_system_sgpr_workgroup_id_x 1
  .amdhsa_float_denorm_mode_32 3
.end_amdhsa_kernel
"""
    open(path,"w").write(txt)

if __name__=="__main__":
    cfg=Cfg()
    out=sys.argv[1]
    for kv in sys.argv[2:]:
        k,v=kv.split("=")
        setattr(cfg,k,eval(v))
    build(cfg,out)
```

```python
import sys

KNAME = "sequential_preLN__mha_block_cached__geglu_ffn__decode_kernel"

class Cfg:
    NSW = 2
    L = 10
    HV = 1
    QFAST = True
    KFLAGS = "nt"
    VFLAGS = "nt"
    WFLAGS = "nt"
    FASTMODE = True
    SPIN = 1 << 20
    STAMPS = False
    P0 = 5
    P = 5
    P1 = 8
    QSLEEP = 0
    QWAIT = 64
    DBGSTAMP = False

L_WO   = 0
L_WG   = 32768
L_WU   = 65536
L_WD   = 98304
L_WQ   = 126976
L_SC   = 126976
L_RED  = 143360
L_LNA  = 159744
L_QS   = 161792
L_ML   = 162048
L_HS   = 162112
L_QF   = 162176
L_LS   = 162192
L_END  = 162224
L_LNB  = L_SC
LDS_BYTES = 163840

W_QP  = 0x500000
W_RDY = 0x000000
W_EPOCH = 0x010000
W_OB  = 0x100000
W_AP  = 0x120000
W_HB  = 0x1A0000
W_GP  = 0x1C0000
W_ACT = 0x2A0000
W_DP  = 0x2B0000
W_STAMP = 0x400000

D_CLR = 32*4
D_XCC = 40*4

S_ID=2; S_W=3; S_X=4; S_R=5; S_H=6; S_B=7
P_X=16; P_K=18; P_V=20; P_WQ=22; P_WO=24; P_WG=28; P_WU=30; P_WD=32; P_OUT=34; P_DBG=36; P_WS=38
SRD_K=40; SRD_V=44
S_KOFF=48
S_FAST=49
S_SPIN=50
S_T0=52; S_T1=53; S_T2=54; S_T3=55; S_T4=56; S_T5=57
S_B0=58
S_B1=60
S_EX=62
S_M=64
S_M2=66
S_SCALE=68; S_LOG2E=69
S_DN=12; S_DS=13; S_DM=14; S_LOOP=15
S_TAG=98
S_TAG=66
S_ST=70

V_TID=0; V_LANE=1
V_MASK=16
V_KOFF=20; V_VOFF=21; V_SCW=22; V_PPR=23; V_MAX=24
V_DMA=25
V_QADDR=26
V_QA=32
V_SACC=48
V_OACC=52
V_A0=56; V_A1=60
V_PP0=64; V_PP1=68
V_T=72
V_RING=96
V_X=208
V_RDY=248; V_XRES=252

class Asm:
    def __init__(self):
        self.L=[]; self.n=0
    def __call__(self, s):
        for line in s.split("\n"):
            line=line.strip()
            if line: self.L.append(("" if line.endswith(":") else "  ")+line)
    def label(self, base):
        self.n+=1
        return f"L_{base}_{self.n}"
    def text(self): return "\n".join(self.L)+"\n"

def vr(b,n): return f"v[{b}:{b+n-1}]"
def sr(b,n): return f"s[{b}:{b+n-1}]"

def wave_sum(a, v, tmp, op="add"):
    ins = "v_add_f32" if op=="add" else "v_max_f32"
    for k in (8,4,2,1):
        a(f"s_nop 1")
        a(f"{ins}_dpp {'v%d'%v}, v{v}, v{v} row_ror:{k} row_mask:0xf bank_mask:0xf")
    a("s_nop 1")
    a(f"v_readlane_b32 s{S_T0}, v{v}, 0")
    a(f"v_readlane_b32 s{S_T1}, v{v}, 16")
    a(f"v_readlane_b32 s{S_T2}, v{v}, 32")
    a(f"v_readlane_b32 s{S_T3}, v{v}, 48")
    a("s_nop 1")
    a(f"v_mov_b32 v{v}, s{S_T0}")
    a(f"{ins} v{v}, s{S_T1}, v{v}")
    a(f"{ins} v{v}, s{S_T2}, v{v}")
    a(f"{ins} v{v}, s{S_T3}, v{v}")

def round_bf16(a, dst, src):
    a(f"v_cvt_pk_bf16_f32 v{dst}, v{src}, v{src}")
    a(f"v_and_b32 v{dst}, 0xffff0000, v{dst}")

def layernorm(a, vin, vf, vout, t):
    for i in range(8):
        a(f"v_lshlrev_b32 v{vf+2*i}, 16, v{vin+i}")
        a(f"v_and_b32 v{vf+2*i+1}, 0xffff0000, v{vin+i}")
    a(f"v_add_f32 v{t}, v{vf}, v{vf+1}")
    for i in range(2,16):
        a(f"v_add_f32 v{t}, v{t}, v{vf+i}")
    wave_sum(a, t, t+1)
    a(f"v_mul_f32 v{t}, 0x3a800000, v{t}")
    a(f"v_sub_f32 v{t+1}, v{vf}, v{t}")
    a(f"v_mul_f32 v{t+2}, v{t+1}, v{t+1}")
    for i in range(1,16):
        a(f"v_sub_f32 v{t+1}, v{vf+i}, v{t}")
        a(f"v_fmac_f32 v{t+2}, v{t+1}, v{t+1}")
    wave_sum(a, t+2, t+1)
    a(f"v_mul_f32 v{t+2}, 0x3a800000, v{t+2}")
    round_bf16(a, t, t)
    round_bf16(a, t+2, t+2)
    a(f"v_add_f32 v{t+2}, 0x3727c5ac, v{t+2}")
    round_bf16(a, t+2, t+2)
    a(f"v_sqrt_f32 v{t+2}, v{t+2}")
    a("s_nop 0")
    round_bf16(a, t+2, t+2)
    a(f"v_rcp_f32 v{t+2}, v{t+2}")
    a("s_nop 0")
    for i in range(8):
        a(f"v_sub_f32 v{vf+2*i}, v{vf+2*i}, v{t}")
        a(f"v_sub_f32 v{vf+2*i+1}, v{vf+2*i+1}, v{t}")
        a(f"v_cvt_pk_bf16_f32 v{t+1}, v{vf+2*i}, v{vf+2*i+1}")
        a(f"v_lshlrev_b32 v{vf+2*i}, 16, v{t+1}")
        a(f"v_and_b32 v{vf+2*i+1}, 0xffff0000, v{t+1}")
        a(f"v_mul_f32 v{vf+2*i}, v{vf+2*i}, v{t+2}")
        a(f"v_mul_f32 v{vf+2*i+1}, v{vf+2*i+1}, v{t+2}")
        a(f"v_cvt_pk_bf16_f32 v{vout+i}, v{vf+2*i}, v{vf+2*i+1}")

def set_exec(a, lo, hi):
    a(f"s_mov_b32 exec_lo, {lo}")
    a(f"s_mov_b32 exec_hi, {hi}")
def full_exec(a):
    a("s_mov_b64 exec, -1")

def poll_loop(a, name, loads, regs, cfg):
    lp=a.label(name+"_poll"); dn=a.label(name+"_ok")
    a(f"s_mov_b32 s{S_SPIN}, {cfg.SPIN}")
    a(f"{lp}:")
    loads()
    a("s_waitcnt vmcnt(0)")
    t=V_T+23
    rs=list(regs)
    a(f"v_max_u32 v{t}, v{rs[0]}, v{rs[1] if len(rs)>1 else rs[0]}")
    i=2
    while i<len(rs):
        if i+1<len(rs):
            a(f"v_max3_u32 v{t}, v{t}, v{rs[i]}, v{rs[i+1]}"); i+=2
        else:
            a(f"v_max_u32 v{t}, v{t}, v{rs[i]}"); i+=1
    a(f"v_cmp_eq_u32 vcc, -1, v{t}")
    a(f"s_cbranch_vccz {dn}")
    a(f"s_sub_u32 s{S_SPIN}, s{S_SPIN}, 1")
    a(f"s_cmp_lg_u32 s{S_SPIN}, 0")
    a(f"s_cbranch_scc1 {lp}")
    a(f"{dn}:")

def store_mode(a, instr, intra):
    if not intra:
        a(instr+" sc1"); return
    l1=a.label("st_slow"); l2=a.label("st_done")
    a(f"s_cmp_eq_u32 s{S_FAST}, 0")
    a(f"s_cbranch_scc1 {l1}")
    a(instr)
    a(f"s_branch {l2}")
    a(f"{l1}:")
    a(instr+" sc1")
    a(f"{l2}:")

def stamp(a, cfg, idx):
    if not cfg.STAMPS: return
    a(f"s_memrealtime s[{72+2*idx}:{73+2*idx}]")


def emit_clears(a, sfx=''):
    a(f"v_mov_b32 v12, -1\nv_mov_b32 v13, -1\nv_mov_b32 v14, -1\nv_mov_b32 v15, -1")
    a(f"s_lshr_b32 s{S_T4}, s{S_R}, 4")
    a(f"s_and_b32 s{S_T5}, s{S_R}, 15")
    a(f"s_lshl_b32 s{S_T1}, s{S_X}, 1")
    a(f"s_add_u32 s{S_T1}, s{S_T1}, s{S_T4}")
    a(f"s_lshl_b32 s{S_T0}, s{S_T1}, 15")
    a(f"s_lshl_b32 s{S_T1}, s{S_T5}, 8")
    a(f"s_add_u32 s{S_T0}, s{S_T0}, s{S_T1}")
    a(f"v_lshlrev_b32 v10, 12, v3")
    a(f"v_lshlrev_b32 v11, 4, v2")
    a(f"v_add3_u32 v10, v10, v11, s{S_T0}")
    for base in (W_AP, W_DP):
        a(f"v_add_u32 v11, {base}, v10")
        a(f"global_store_dwordx4 v11, v[12:15], {sr(P_WS,2)} sc1")
        a(f"v_add_u32 v11, {base+4*4096}, v10")
        a(f"global_store_dwordx4 v11, v[12:15], {sr(P_WS,2)} sc1")
    a(f"s_lshl_b32 s{S_T0}, s{S_H}, 3")
    a(f"s_add_u32 s{S_T0}, s{S_T0}, s{S_B}")
    a(f"s_lshl_b32 s{S_T0}, s{S_T0}, 8")
    a(f"s_add_u32 s{S_T0}, s{S_T0}, {W_OB}")
    a(f"v_add_u32 v10, s{S_T0}, v{V_VOFF}")
    set_exec(a, "0xffff", 0)
    a(f"global_store_dwordx4 v10, v[12:15], {sr(P_WS,2)} sc1")
    full_exec(a)
    a(f"s_lshr_b32 s{S_T0}, s{S_R}, 2")
    a(f"s_lshl_b32 s{S_T1}, s{S_X}, 3")
    a(f"s_add_u32 s{S_T0}, s{S_T0}, s{S_T1}")
    a(f"s_lshl_b32 s{S_T0}, s{S_T0}, 11")
    a(f"s_and_b32 s{S_T1}, s{S_R}, 3")
    a(f"s_lshl_b32 s{S_T1}, s{S_T1}, 9")
    a(f"s_add_u32 s{S_T0}, s{S_T0}, s{S_T1}")
    a(f"s_add_u32 s{S_T0}, s{S_T0}, {W_HB}")
    a(f"v_add_u32 v10, s{S_T0}, v{V_VOFF}")
    set_exec(a, -1, 0)
    a(f"global_store_dwordx4 v10, v[12:15], {sr(P_WS,2)} sc1")
    full_exec(a)
    a(f"s_cmp_ge_u32 s{S_R}, 28")
    a(f"s_cbranch_scc1 L_clr_done{sfx}")
    a(f"s_mul_i32 s{S_T0}, s{S_X}, 28")
    a(f"s_add_u32 s{S_T0}, s{S_T0}, s{S_R}")
    a(f"s_lshl_b32 s{S_T0}, s{S_T0}, 12")
    a(f"s_add_u32 s{S_T0}, s{S_T0}, {W_GP}")
    a(f"v_add_u32 v10, s{S_T0}, v{V_VOFF}")
    for n in range(4):
        a(f"global_store_dwordx4 v10, v[12:15], {sr(P_WS,2)} offset:{n*1024} sc1")
    a(f"s_mul_i32 s{S_T0}, s{S_R}, 37")
    a(f"s_lshr_b32 s{S_T0}, s{S_T0}, 8")
    a(f"s_mul_i32 s{S_T1}, s{S_T0}, 7")
    a(f"s_sub_u32 s{S_T1}, s{S_R}, s{S_T1}")
    a(f"s_lshl_b32 s{S_T0}, s{S_T0}, 1")
    a(f"s_lshl_b32 s{S_T2}, s{S_X}, 3")
    a(f"s_add_u32 s{S_T0}, s{S_T0}, s{S_T2}")
    a(f"s_mul_i32 s{S_T0}, s{S_T0}, 896")
    a(f"s_lshl_b32 s{S_T1}, s{S_T1}, 7")
    a(f"s_add_u32 s{S_T0}, s{S_T0}, s{S_T1}")
    a(f"s_add_u32 s{S_T0}, s{S_T0}, {W_ACT}")
    a(f"v_lshrrev_b32 v10, 3, v{V_LANE}")
    a(f"v_mul_u32_u24 v10, 896, v10")
    a(f"v_and_b32 v11, 7, v{V_LANE}")
    a(f"v_lshlrev_b32 v11, 4, v11")
    a(f"v_add3_u32 v10, v10, v11, s{S_T0}")
    set_exec(a, "0xffff", 0)
    a(f"global_store_dwordx4 v10, v[12:15], {sr(P_WS,2)} sc1")
    full_exec(a)
    a(f"L_clr_done{sfx}:")


def emit_extras(a):
    a(f"s_lshl_b32 s{S_T0}, s{S_W}, 9")
    a(f"v_and_b32 v10, 31, v{V_LANE}")
    a(f"v_lshlrev_b32 v10, 4, v10")
    a(f"v_add_u32 v10, s{S_T0}, v10")
    a(f"v_add_u32 v9, {W_RDY}, v10")
    a(f"global_load_dwordx4 {vr(V_RDY,4)}, v9, {sr(P_WS,2)} sc1")
    a(f"s_lshr_b32 s{S_T0}, s{S_R}, 2")
    a(f"s_lshl_b32 s{S_T0}, s{S_T0}, 11")
    a(f"s_and_b32 s{S_T1}, s{S_R}, 3")
    a(f"s_lshl_b32 s{S_T1}, s{S_T1}, 9")
    a(f"s_add_u32 s{S_T0}, s{S_T0}, s{S_T1}")
    a(f"v_lshlrev_b32 v11, 3, v{V_LANE}")
    a(f"v_add_u32 v11, s{S_T0}, v11")
    a(f"global_load_dwordx2 {vr(V_XRES,2)}, v11, {sr(P_X,2)}")

def koff_init(a):
    a(f"s_lshr_b32 s{S_KOFF}, s{S_W}, 2")
    a(f"s_lshl_b32 s{S_KOFF}, s{S_KOFF}, 7")
    a(f"s_and_b32 s{S_T5}, s{S_W}, 3")
    a(f"s_add_u32 s{S_KOFF}, s{S_KOFF}, s{S_T5}")
    a(f"s_lshl_b32 s{S_KOFF}, s{S_KOFF}, 12")

def emit_rdy(a):
    a(f"s_getreg_b32 s{S_T0}, hwreg(HW_REG_XCC_ID, 0, 4)")
    a(f"s_lshl_b32 s{S_T1}, s{S_X}, 5")
    a(f"s_add_u32 s{S_T1}, s{S_T1}, s{S_R}")
    a(f"s_lshl_b32 s{S_T1}, s{S_T1}, 4")
    a(f"s_add_u32 s{S_T1}, s{S_T1}, {W_RDY}")
    a(f"v_mov_b32 v10, s{S_T1}")
    a(f"v_mov_b32 v12, s{S_T0}")
    a(f"v_mov_b32 v13, 0")
    a(f"v_mov_b32 v14, s{S_TAG}")
    a(f"v_mov_b32 v15, s{S_TAG+1}")
    set_exec(a, 1, 0)
    a(f"global_store_dwordx4 v10, v[12:15], {sr(P_WS,2)} sc1")
    full_exec(a)

def gen(cfg):
    a=Asm()
    NSW=cfg.NSW; L=cfg.L; HV=cfg.HV
    NH=8-NSW
    KT=256//NSW
    VT=(256-NH*HV)//NSW
    assert VT*NSW+NH*HV==256, "V tiles must split evenly"
    NK=4*KT; NV=4*VT
    TSTEP=NSW*4096
    def kload(j):
        reg=V_RING+(j%L)*4
        a(f"buffer_load_dwordx4 {vr(reg,4)}, v{V_KOFF}, {sr(SRD_K,4)}, s{S_KOFF} offen offset:{(j%4)*1024} {cfg.KFLAGS}")
        if j%4==3: a(f"s_add_u32 s{S_KOFF}, s{S_KOFF}, {TSTEP}")
    def vload(jv, first=False):
        reg=V_RING+((NK+jv)%L)*4
        if first:
            a(f"s_add_u32 s{S_KOFF}, s{S_W}, {NH*HV}")
            a(f"s_lshl_b32 s{S_KOFF}, s{S_KOFF}, 12")
        a(f"buffer_load_dwordx4 {vr(reg,4)}, v{V_VOFF}, {sr(SRD_V,4)}, s{S_KOFF} offen offset:{(jv%4)*1024} {cfg.VFLAGS}")
        if jv%4==3: a(f"s_add_u32 s{S_KOFF}, s{S_KOFF}, {TSTEP}")
    a(f"{KNAME}:")
    a(f"s_cmp_ge_u32 s{S_ID}, 256")
    a("s_cbranch_scc1 L_exit")
    a("s_load_dwordx16 s[16:31], s[0:1], 0")
    a("s_load_dwordx8 s[32:39], s[0:1], 64")
    stamp(a,cfg,0)
    a(f"v_lshrrev_b32 v2, 6, v0")
    a(f"v_and_b32 v{V_LANE}, 63, v0")
    a(f"s_and_b32 s{S_X}, s{S_ID}, 7")
    a(f"v_readfirstlane_b32 s{S_W}, v2")
    a(f"s_lshr_b32 s{S_R}, s{S_ID}, 3")
    a(f"s_lshr_b32 s{S_T0}, s{S_R}, 3")
    a(f"s_lshl_b32 s{S_H}, s{S_X}, 2")
    a(f"s_add_u32 s{S_H}, s{S_H}, s{S_T0}")
    a(f"s_and_b32 s{S_B}, s{S_R}, 7")
    a(f"v_and_b32 v2, 15, v{V_LANE}")
    a(f"v_lshrrev_b32 v3, 4, v{V_LANE}")
    a(f"v_lshlrev_b32 v{V_VOFF}, 4, v{V_LANE}")
    a(f"v_lshrrev_b32 v4, 2, v2")
    a(f"v_and_b32 v5, 3, v2")
    a(f"v_lshlrev_b32 v6, 8, v4")
    a(f"v_lshlrev_b32 v7, 6, v3")
    a(f"v_lshlrev_b32 v8, 4, v5")
    a(f"v_add3_u32 v{V_KOFF}, v6, v7, v8")
    a(f"v_mov_b32 v{V_DMA}, 0")
    a("s_waitcnt lgkmcnt(0)")
    a(f"s_load_dwordx2 {sr(S_TAG,2)}, {sr(P_WS,2)}, {W_EPOCH}")
    a(f"s_lshl_b32 s{S_T0}, s{S_B}, 5")
    a(f"s_add_u32 s{S_T0}, s{S_T0}, s{S_H}")
    a(f"s_lshl_b32 s{S_T0}, s{S_T0}, 20")
    for srd,p in ((SRD_K,P_K),(SRD_V,P_V)):
        a(f"s_add_u32 s{srd}, s{p}, s{S_T0}")
        a(f"s_addc_u32 s{srd+1}, s{p+1}, 0")
        a(f"s_and_b32 s{srd+1}, s{srd+1}, 0xffff")
        a(f"s_mov_b32 s{srd+2}, 0x100000")
        a(f"s_mov_b32 s{srd+3}, 0x20000")
    a(f"s_lshl_b32 s{S_T0}, s{S_W}, 11")
    a(f"v_lshlrev_b32 v9, 5, v{V_LANE}")
    a(f"v_add_u32 v9, s{S_T0}, v9")
    a(f"global_load_dwordx4 {vr(V_X,4)}, v9, {sr(P_X,2)}")
    a(f"global_load_dwordx4 {vr(V_X+4,4)}, v9, {sr(P_X,2)} offset:16")
    a(f"s_cmp_lt_u32 s{S_W}, 4")
    a("s_cbranch_scc1 L_lowwaves")

    a(f"v_lshrrev_b32 v10, 3, v{V_LANE}")
    a(f"v_and_b32 v11, 7, v{V_LANE}")
    a(f"v_lshlrev_b32 v11, 4, v11")
    a(f"s_lshr_b32 s{S_T4}, s{S_R}, 4")
    a(f"s_and_b32 s{S_T5}, s{S_R}, 15")
    a(f"s_cmp_eq_u32 s{S_W}, 4")
    a("s_cbranch_scc1 L_dma_wo")
    a(f"s_cmp_eq_u32 s{S_W}, 7")
    a("s_cbranch_scc1 L_dma_wd")
    a(f"s_cmp_ge_u32 s{S_R}, 28")
    a("s_cbranch_scc1 L_dma_done")
    a(f"s_mul_i32 s{S_T0}, s{S_R}, 37")
    a(f"s_lshr_b32 s{S_T0}, s{S_T0}, 8")
    a(f"s_mul_i32 s{S_T1}, s{S_T0}, 7")
    a(f"s_sub_u32 s{S_T1}, s{S_R}, s{S_T1}")
    a(f"s_mul_i32 s{S_T0}, s{S_T0}, {256*7168}")
    a(f"s_mul_i32 s{S_T2}, s{S_X}, 896")
    a(f"s_lshl_b32 s{S_T1}, s{S_T1}, 7")
    a(f"s_add_u32 s{S_T0}, s{S_T0}, s{S_T2}")
    a(f"s_add_u32 s{S_T0}, s{S_T0}, s{S_T1}")
    a(f"s_cmp_eq_u32 s{S_W}, 5")
    a(f"s_cselect_b32 s{S_B0}, s{P_WG}, s{P_WU}")
    a(f"s_cselect_b32 s{S_B0+1}, s{P_WG+1}, s{P_WU+1}")
    a(f"s_mov_b32 s{S_T3}, {L_WU}")
    a(f"s_cselect_b32 s{S_T3}, {L_WG}, s{S_T3}")
    a(f"s_add_u32 s{S_B0}, s{S_B0}, s{S_T0}")
    a(f"s_addc_u32 s{S_B0+1}, s{S_B0+1}, 0")
    a(f"s_mov_b32 s{S_T0}, 7168")
    a(f"s_mov_b32 s{S_T1}, 32")
    a("s_branch L_dma_go")
    a("L_dma_wo:")
    a(f"s_lshl_b32 s{S_T0}, s{S_X}, 1")
    a(f"s_add_u32 s{S_T0}, s{S_T0}, s{S_T4}")
    a(f"s_lshl_b32 s{S_T0}, s{S_T0}, 19")
    a(f"s_lshl_b32 s{S_T1}, s{S_T5}, 7")
    a(f"s_add_u32 s{S_T0}, s{S_T0}, s{S_T1}")
    a(f"s_add_u32 s{S_B0}, s{P_WO}, s{S_T0}")
    a(f"s_addc_u32 s{S_B0+1}, s{P_WO+1}, 0")
    a(f"s_mov_b32 s{S_T3}, {L_WO}")
    a(f"s_mov_b32 s{S_T0}, 2048")
    a(f"s_mov_b32 s{S_T1}, 32")
    a("s_branch L_dma_go")
    a("L_dma_wd:")
    a(f"s_lshl_b32 s{S_T0}, s{S_X}, 1")
    a(f"s_add_u32 s{S_T0}, s{S_T0}, s{S_T4}")
    a(f"s_mul_i32 s{S_T0}, s{S_T0}, {224*2048}")
    a(f"s_lshl_b32 s{S_T1}, s{S_T5}, 7")
    a(f"s_add_u32 s{S_T0}, s{S_T0}, s{S_T1}")
    a(f"s_add_u32 s{S_B0}, s{P_WD}, s{S_T0}")
    a(f"s_addc_u32 s{S_B0+1}, s{P_WD+1}, 0")
    a(f"s_mov_b32 s{S_T3}, {L_WD}")
    a(f"s_mov_b32 s{S_T0}, 2048")
    a(f"s_mov_b32 s{S_T1}, 28")
    a("L_dma_go:")
    a(f"v_mul_lo_u32 v10, v10, s{S_T0}")
    a(f"s_lshl_b32 s{S_T0}, s{S_T0}, 3")
    a(f"v_add_u32 v10, v10, v11")
    a(f"s_mov_b32 m0, s{S_T3}")
    a("s_nop 0")
    for n in range(cfg.P0):
        a(f"global_load_lds_dwordx4 v10, {sr(S_B0,2)} {cfg.WFLAGS}")
        a(f"s_add_u32 m0, m0, 1024")
        a(f"s_add_u32 s{S_B0}, s{S_B0}, s{S_T0}")
        a(f"s_addc_u32 s{S_B0+1}, s{S_B0+1}, 0")
    a(f"s_sub_u32 s{S_DN}, s{S_T1}, {cfg.P0}")
    a(f"s_mov_b32 s{S_DS}, s{S_T0}")
    a(f"s_mov_b32 s{S_DM}, m0")
    a(f"v_mov_b32 v{V_DMA}, v10")
    a(f"s_waitcnt vmcnt({cfg.P0})")
    a("s_branch L_ln1")
    a("L_dma_done:")
    a(f"s_mov_b32 s{S_DN}, 0")
    a(f"s_mov_b32 s{S_B0}, s{P_WS}")
    a(f"s_mov_b32 s{S_B0+1}, s{P_WS+1}")
    a(f"v_mov_b32 v{V_DMA}, 0")
    a("s_waitcnt vmcnt(0)")
    a("s_branch L_ln1")

    a("L_lowwaves:")
    a(f"v_lshlrev_b32 v10, 13, v3")
    a(f"v_lshlrev_b32 v11, 4, v2")
    a(f"v_add_u32 v10, v10, v11")
    a(f"s_lshl_b32 s{S_T0}, s{S_B}, 7")
    a(f"s_lshl_b32 s{S_T1}, s{S_W}, 5")
    a(f"s_add_u32 s{S_T0}, s{S_T0}, s{S_T1}")
    a(f"s_lshl_b32 s{S_T0}, s{S_T0}, 13")
    a(f"s_lshl_b32 s{S_T1}, s{S_H}, 8")
    a(f"s_add_u32 s{S_T0}, s{S_T0}, s{S_T1}")
    a(f"s_add_u32 s{S_B0}, s{P_WQ}, s{S_T0}")
    a(f"s_addc_u32 s{S_B0+1}, s{P_WQ+1}, 0")
    a(f"s_lshl_b32 s{S_T1}, s{S_W}, 13")
    a(f"s_add_u32 m0, s{S_T1}, {L_WQ}")
    a("s_nop 0")
    for n in range(8):
        a(f"global_load_lds_dwordx4 v10, {sr(S_B0,2)} {cfg.WFLAGS}")
        if n<7:
            a(f"s_add_u32 m0, m0, 1024")
            a(f"s_add_u32 s{S_B0}, s{S_B0}, {4*8192}")
            a(f"s_addc_u32 s{S_B0+1}, s{S_B0+1}, 0")
    a(f"s_cmp_ge_u32 s{S_W}, {NSW}")
    a("s_cbranch_scc1 L_low_nostr")
    a(f"s_lshl_b32 s{S_KOFF}, s{S_W}, 12")
    for j in range(L): kload(j)
    a(f"s_waitcnt vmcnt({8+L})")
    a("s_branch L_ln1_low")
    a("L_low_nostr:")
    a(f"s_waitcnt vmcnt(8)")
    a("s_branch L_ln1_low")
    a("L_ln1_low:")
    a("L_ln1:")
    layernorm(a, V_X, V_X+8, V_X+24, V_T)
    a(f"s_lshl_b32 s{S_T0}, s{S_B}, 3")
    a(f"v_subrev_u32 v10, s{S_T0}, v{V_LANE}")
    a(f"v_cmp_gt_u32 vcc, 8, v10")
    a(f"s_lshl_b32 s{S_T1}, s{S_W}, 8")
    a(f"s_add_u32 s{S_T1}, s{S_T1}, {L_LNA}")
    a(f"v_lshlrev_b32 v10, 5, v10")
    a(f"v_add_u32 v10, s{S_T1}, v10")
    a(f"s_and_saveexec_b64 {sr(S_EX,2)}, vcc")
    a(f"ds_write_b128 v10, {vr(V_X+24,4)}")
    a(f"ds_write_b128 v10, {vr(V_X+28,4)} offset:16")
    a(f"s_mov_b64 exec, {sr(S_EX,2)}")
    a(f"s_cmp_ge_u32 s{S_W}, 4")
    a("s_cbranch_scc1 L_b1")
    a(f"s_cmp_ge_u32 s{S_W}, {NSW}")
    a("s_cbranch_scc1 L_b1_ns")
    a(f"s_waitcnt vmcnt({L})")
    a("s_branch L_b1")
    a("L_b1_ns:")
    a("s_waitcnt vmcnt(0)")
    a("L_b1:")
    a("s_waitcnt lgkmcnt(0)")
    a(f"s_cmp_lg_u32 s{S_W}, 0")
    a("s_cbranch_scc1 L_noqf")
    a(f"v_mov_b32 v10, {L_QF}")
    a(f"v_mov_b32 v11, 0")
    a(f"ds_write_b32 v10, v11")
    a("s_waitcnt lgkmcnt(0)")
    a("L_noqf:")
    a("s_barrier")
    stamp(a,cfg,1)
    a(f"s_add_u32 s{S_TAG}, s{S_TAG}, 1")
    a(f"s_addc_u32 s{S_TAG+1}, s{S_TAG+1}, 0")
    a(f"v_and_b32 v10, 1, v2")
    a(f"v_cmp_eq_u32 vcc, 1, v10")
    a(f"v_mov_b32 v11, 0xffff")
    a(f"v_mov_b32 v12, 0xffff0000")
    a(f"v_cndmask_b32 v11, v11, v12, vcc")
    a(f"v_lshrrev_b32 v10, 1, v2")
    for w in range(4):
        a(f"v_cmp_eq_u32 vcc, {w}, v10")
        a("s_nop 1")
        a(f"v_cndmask_b32 v{V_MASK+w}, 0, v11, vcc")
    a(f"v_mov_b32 v{V_MAX}, 0xff800000")
    a(f"s_mov_b32 s{S_SCALE}, 0x3db504f3")
    a(f"s_mov_b32 s{S_LOG2E}, 0x3fb8aa3b")
    for c in range(4):
        a(f"v_mov_b32 v{V_OACC+c}, 0")
    a(f"s_cmp_lt_u32 s{S_W}, 4")
    a("s_cbranch_scc1 L_q_low")
    a(f"s_cmp_eq_u32 s{S_DN}, 0")
    a("s_cbranch_scc1 L_dma2_done")
    a("L_dma2_loop:")
    a(f"s_waitcnt vmcnt({cfg.P-1})")
    a(f"global_load_lds_dwordx4 v{V_DMA}, {sr(S_B0,2)} {cfg.WFLAGS}")
    a(f"s_add_u32 m0, m0, 1024")
    a(f"s_add_u32 s{S_B0}, s{S_B0}, s{S_DS}")
    a(f"s_addc_u32 s{S_B0+1}, s{S_B0+1}, 0")
    a(f"s_sub_u32 s{S_DN}, s{S_DN}, 1")
    a(f"s_cmp_lg_u32 s{S_DN}, 0")
    a("s_cbranch_scc1 L_dma2_loop")
    a("L_dma2_done:")
    a("s_waitcnt vmcnt(0)")
    stamp(a,cfg,13)
    a("s_branch L_kdone")
    a("L_q_low:")
    a(f"s_cmp_eq_u32 s{S_W}, 0")
    a("s_cbranch_scc1 L_q_w0")
    a(f"s_cmp_lt_u32 s{S_W}, 2")
    a("s_cbranch_scc1 L_q_w1")
    a(f"v_and_b32 v10, 7, v{V_LANE}")
    a(f"v_lshlrev_b32 v10, 8, v10")
    a(f"v_lshlrev_b32 v11, 4, v3")
    a(f"v_add_u32 v10, v10, v11")
    a(f"v_add_u32 v10, {L_LNA}, v10")
    for s_ in range(4):
        a(f"ds_read_b128 {vr(V_X+4*s_,4)}, v10 offset:{64*s_}")
    a(f"v_lshlrev_b32 v11, 3, v3")
    a(f"v_add_u32 v11, v11, v4")
    a(f"v_lshlrev_b32 v11, 8, v11")
    a(f"v_lshlrev_b32 v12, 3, v5")
    a(f"s_sub_u32 s{S_T4}, s{S_W}, 2")
    a(f"s_lshl_b32 s{S_T0}, s{S_T4}, 7")
    a(f"s_add_u32 s{S_T0}, s{S_T0}, {L_WQ}")
    a(f"v_add3_u32 v11, v11, v12, s{S_T0}")
    for tt in range(4):
        for s_ in range(4):
            for hf in range(2):
                reg=V_RING+tt*16+s_*4+hf*2
                a(f"ds_read_b64_tr_b16 {vr(reg,2)}, v11 offset:{(32*s_+4*hf)*256+32*tt}")
        if tt==1: a("s_waitcnt lgkmcnt(8)") if False else None
    a(f"s_lshl_b32 s{S_T0}, s{S_H}, 3")
    a(f"s_add_u32 s{S_T0}, s{S_T0}, s{S_B}")
    a(f"s_lshl_b32 s{S_T0}, s{S_T0}, 13")
    a(f"s_lshl_b32 s{S_T1}, s{S_T4}, 9")
    a(f"s_add_u32 s{S_T0}, s{S_T0}, s{S_T1}")
    a(f"s_add_u32 s{S_T0}, s{S_T0}, {W_QP}")
    a(f"v_lshlrev_b32 v10, 10, v2")
    a(f"v_lshlrev_b32 v11, 5, v3")
    a(f"v_add3_u32 v{V_QADDR}, v10, v11, s{S_T0}")
    G=V_X+16
    for tt in range(4):
        for hh in range(2):
            b=G+8*tt+4*hh
            a(f"v_mov_b32 v{b+2}, s{S_TAG}")
            a(f"v_mov_b32 v{b+3}, s{S_TAG+1}")
    a("s_waitcnt lgkmcnt(0)")
    for s_ in range(4):
        for tt in range(4):
            c = "0" if s_==0 else vr(V_T+4*tt,4)
            a(f"v_mfma_f32_16x16x32_bf16 {vr(V_T+4*tt,4)}, {vr(V_RING+tt*16+s_*4,4)}, {vr(V_X+4*s_,4)}, {c}")
    a("s_nop 7")
    for tt in range(4):
        for hh in range(2):
            b=G+8*tt+4*hh
            a(f"v_mov_b32 v{b}, v{V_T+4*tt+2*hh}")
            a(f"v_mov_b32 v{b+1}, v{V_T+4*tt+2*hh+1}")
    def qstores(fl):
        set_exec(a, "0x00ff00ff", "0x00ff00ff")
        for tt in range(4):
            for hh in range(2):
                a(f"global_store_dwordx4 v{V_QADDR}, {vr(G+8*tt+4*hh,4)}, {sr(P_WS,2)} offset:{128*tt+16*hh} {fl}")
        full_exec(a)
    qstores("" if cfg.QFAST else "sc1")
    stamp(a,cfg,13)
    if cfg.QFAST:
        a(f"v_mov_b32 v10, {L_QF}")
        a(f"s_mov_b32 s{S_SPIN}, {cfg.QWAIT}")
        a("L_qc_wait:")
        a("s_sleep 4")
        a(f"ds_read_b32 v11, v10")
        a("s_waitcnt lgkmcnt(0)")
        a(f"v_readfirstlane_b32 s{S_T0}, v11")
        a("s_nop 1")
        a(f"s_cmp_lg_u32 s{S_T0}, 0")
        a("s_cbranch_scc1 L_qc_go")
        a(f"s_sub_u32 s{S_SPIN}, s{S_SPIN}, 1")
        a(f"s_cmp_lg_u32 s{S_SPIN}, 0")
        a("s_cbranch_scc1 L_qc_wait")
        a("L_qc_go:")
        qstores("sc1")
    a(f"s_cmp_lg_u32 s{S_W}, 3")
    a("s_cbranch_scc1 L_kdone")
    emit_clears(a)
    a("s_waitcnt vmcnt(0)")
    emit_rdy(a)
    a("s_branch L_kdone")
    a("L_q_w1:")
    if NSW<2:
        a("s_branch L_kdone")
    a(f"v_mov_b32 v10, {L_QF}")
    a(f"s_mov_b32 s{S_SPIN}, {cfg.SPIN}")
    a("L_qf_wait:")
    a(f"ds_read_b32 v11, v10")
    a("s_waitcnt lgkmcnt(0)")
    a(f"v_readfirstlane_b32 s{S_T0}, v11")
    a("s_nop 1")
    a(f"s_cmp_lg_u32 s{S_T0}, 0")
    a("s_cbranch_scc1 L_q_ready")
    a(f"s_sub_u32 s{S_SPIN}, s{S_SPIN}, 1")
    a(f"s_cmp_lg_u32 s{S_SPIN}, 0")
    a("s_cbranch_scc1 L_qf_wait")
    a("s_branch L_q_ready")
    a("L_q_w0:")
    a(f"s_lshl_b32 s{S_T0}, s{S_H}, 16")
    a(f"s_lshl_b32 s{S_T1}, s{S_B}, 10")
    a(f"s_add_u32 s{S_T0}, s{S_T0}, s{S_T1}")
    a(f"s_add_u32 s{S_T0}, s{S_T0}, {W_QP}")
    a(f"v_add_u32 v10, s{S_T0}, v{V_VOFF}")
    for j in range(8):
        a(f"v_add_u32 v{V_T+8+j}, {j*8192}, v10")
    PQ=V_X+16
    lp=a.label("qpoll"); dn=a.label("qok")
    a(f"s_mov_b32 s{S_SPIN}, {cfg.SPIN}")
    a(f"{lp}:")
    for j in range(8):
        a(f"global_load_dwordx4 {vr(PQ+4*j,4)}, v{V_T+8+j}, {sr(P_WS,2)} sc1")
    a("s_waitcnt vmcnt(0)")
    a(f"v_mov_b32 v11, 0")
    for j in range(8):
        a(f"v_xor_b32 v12, s{S_TAG}, v{PQ+4*j+2}")
        a(f"v_xor_b32 v13, s{S_TAG+1}, v{PQ+4*j+3}")
        a(f"v_or3_b32 v11, v11, v12, v13")
    a(f"v_cmp_ne_u32 vcc, 0, v11")
    a(f"s_cbranch_vccz {dn}")
    if cfg.QSLEEP: a(f"s_sleep {cfg.QSLEEP}")
    a(f"s_sub_u32 s{S_SPIN}, s{S_SPIN}, 1")
    a(f"s_cmp_lg_u32 s{S_SPIN}, 0")
    a(f"s_cbranch_scc1 {lp}")
    a(f"{dn}:")
    stamp(a,cfg,14)
    for j in range(1,8):
        a(f"v_add_f32 v{PQ}, v{PQ}, v{PQ+4*j}")
        a(f"v_add_f32 v{PQ+1}, v{PQ+1}, v{PQ+4*j+1}")
    a(f"v_cvt_pk_bf16_f32 v{PQ+2}, v{PQ}, v{PQ+1}")
    a(f"v_lshlrev_b32 v11, 2, v{V_LANE}")
    a(f"v_add_u32 v11, {L_QS}, v11")
    a(f"ds_write_b32 v11, v{PQ+2}")
    a("s_waitcnt lgkmcnt(0)")
    a(f"v_mov_b32 v10, {L_QF}")
    a(f"v_mov_b32 v11, 1")
    a(f"ds_write_b32 v10, v11")
    a("L_q_ready:")
    stamp(a,cfg,2)
    a(f"v_lshlrev_b32 v10, 2, v3")
    a(f"v_add_u32 v10, v10, v5")
    a(f"v_lshlrev_b32 v10, 4, v10")
    a(f"v_add_u32 v10, {L_QS}, v10")
    a(f"ds_read_b128 {vr(V_T,4)}, v10")
    a(f"s_lshl_b32 s{S_T0}, s{S_W}, 6")
    a(f"s_add_u32 s{S_T0}, s{S_T0}, {L_SC}")
    a(f"v_lshlrev_b32 v10, 4, v4")
    a(f"v_lshlrev_b32 v11, 2, v3")
    a(f"v_add3_u32 v{V_SCW}, v10, v11, s{S_T0}")
    a("s_waitcnt lgkmcnt(0)")
    for n in range(4):
        a(f"v_cmp_eq_u32 vcc, {n}, v4")
        a("s_nop 1")
        for c in range(4):
            a(f"v_cndmask_b32 v{V_QA+4*n+c}, 0, v{V_T+c}, vcc")
    import math
    PERK=L*4//math.gcd(L,4)
    def kbody(j, wait_n, reissue, sc_off):
        a(f"s_waitcnt vmcnt({wait_n})")
        n=j%4
        c="0" if n==0 else vr(V_SACC,4)
        a(f"v_mfma_f32_16x16x32_bf16 {vr(V_SACC,4)}, {vr(V_QA+4*n,4)}, {vr(V_RING+(j%L)*4,4)}, {c}")
        reissue()
        if n==3:
            a("s_nop 7")
            t=V_T
            a(f"v_mov_b32_dpp v{t}, v{V_SACC} quad_perm:[0,0,0,0] row_mask:0xf bank_mask:0xf")
            for q in range(1,4):
                a(f"v_add_f32_dpp v{t}, v{V_SACC+q}, v{t} quad_perm:[{q},{q},{q},{q}] row_mask:0xf bank_mask:0xf")
            round_bf16(a,t,t)
            a(f"v_mul_f32 v{t}, s{S_SCALE}, v{t}")
            round_bf16(a,t,t)
            a(f"v_max_f32 v{V_MAX}, v{V_MAX}, v{t}")
            a(f"ds_write_b32 v{V_SCW}, v{t} offset:{sc_off}")
    nloop=(NK-L)//PERK
    a(f"s_mov_b32 s{S_LOOP}, {nloop}")
    a("L_kloop:")
    for j in range(PERK):
        kbody(j, L-1, (lambda j=j: kload(j+L)), (j//4)*NSW*64)
    a(f"v_add_u32 v{V_SCW}, {(PERK//4)*NSW*64}, v{V_SCW}")
    a(f"s_sub_u32 s{S_LOOP}, s{S_LOOP}, 1")
    a(f"s_cmp_lg_u32 s{S_LOOP}, 0")
    a("s_cbranch_scc1 L_kloop")
    for j in range(nloop*PERK, NK):
        m=j+L
        ri=(lambda m=m: kload(m)) if m<NK else (lambda m=m: vload(m-NK, first=(m==NK)))
        kbody(j, L-1, ri, ((j-nloop*PERK)//4)*NSW*64)
    a("L_kdone:")
    stamp(a,cfg,3)
    wave_sum(a, V_MAX, V_T, op="max")
    a(f"s_lshl_b32 s{S_T0}, s{S_W}, 2")
    a(f"s_add_u32 s{S_T0}, s{S_T0}, {L_ML}")
    a(f"v_mov_b32 v11, s{S_T0}")
    a(f"ds_write_b32 v11, v{V_MAX}")
    a("s_waitcnt lgkmcnt(0)")
    a("s_barrier")
    a(f"s_cmp_lt_u32 s{S_W}, {NSW}")
    a("s_cbranch_scc1 L_nohv")
    a(f"s_sub_u32 s{S_T0}, s{S_W}, {NSW}")
    a(f"s_mul_i32 s{S_T0}, s{S_T0}, {HV*4096}")
    for t in range(HV):
        for n in range(4):
            a(f"buffer_load_dwordx4 {vr(V_RING+t*16+n*4,4)}, v{V_VOFF}, {sr(SRD_V,4)}, s{S_T0} offen offset:{n*1024} {cfg.VFLAGS}")
        if t<HV-1: a(f"s_add_u32 s{S_T0}, s{S_T0}, 4096")
    a("L_nohv:")
    a(f"v_mov_b32 v11, {L_ML}")
    a(f"ds_read_b128 {vr(V_X,4)}, v11")
    a(f"ds_read_b128 {vr(V_X+4,4)}, v11 offset:16")
    a(f"s_lshl_b32 s{S_T4}, s{S_W}, 11")
    a(f"s_add_u32 s{S_T4}, s{S_T4}, {L_SC}")
    a(f"v_lshlrev_b32 v10, 5, v{V_LANE}")
    a(f"v_add_u32 v10, s{S_T4}, v10")
    a(f"ds_read_b128 {vr(V_T,4)}, v10")
    a(f"ds_read_b128 {vr(V_T+4,4)}, v10 offset:16")
    a("s_waitcnt lgkmcnt(2)")
    a(f"v_max3_f32 v{V_MAX}, v{V_X}, v{V_X+1}, v{V_X+2}")
    a(f"v_max3_f32 v{V_MAX}, v{V_MAX}, v{V_X+3}, v{V_X+4}")
    a(f"v_max3_f32 v{V_MAX}, v{V_MAX}, v{V_X+5}, v{V_X+6}")
    a(f"v_max_f32 v{V_MAX}, v{V_MAX}, v{V_X+7}")
    a("s_waitcnt lgkmcnt(0)")
    for i in range(8):
        a(f"v_sub_f32 v{V_T+8+i}, v{V_T+i}, v{V_MAX}")
        a(f"v_mul_f32 v{V_T+8+i}, s{S_LOG2E}, v{V_T+8+i}")
        a(f"v_exp_f32 v{V_T+8+i}, v{V_T+8+i}")
    a("s_nop 0")
    a(f"v_add_f32 v{V_T+16}, v{V_T+8}, v{V_T+9}")
    for i in range(2,8):
        a(f"v_add_f32 v{V_T+16}, v{V_T+16}, v{V_T+8+i}")
    wave_sum(a, V_T+16, V_T+17)
    a(f"s_lshl_b32 s{S_T0}, s{S_W}, 2")
    a(f"s_add_u32 s{S_T0}, s{S_T0}, {L_LS}")
    a(f"v_mov_b32 v11, s{S_T0}")
    a(f"ds_write_b32 v11, v{V_T+16}")
    a("s_waitcnt lgkmcnt(0)")
    a("s_barrier")
    a(f"v_mov_b32 v11, {L_LS}")
    a(f"ds_read_b128 {vr(V_X,4)}, v11")
    a(f"ds_read_b128 {vr(V_X+4,4)}, v11 offset:16")
    a("s_waitcnt lgkmcnt(0)")
    a(f"v_add_f32 v{V_T+16}, v{V_X}, v{V_X+1}")
    for k in range(2,8):
        a(f"v_add_f32 v{V_T+16}, v{V_T+16}, v{V_X+k}")
    a(f"v_rcp_f32 v{V_T+17}, v{V_T+16}")
    a("s_nop 0")
    a(f"v_fma_f32 v{V_T+18}, -v{V_T+16}, v{V_T+17}, 1.0")
    a(f"v_fma_f32 v{V_T+17}, v{V_T+18}, v{V_T+17}, v{V_T+17}")
    for i in range(8):
        a(f"v_mul_f32 v{V_T+8+i}, v{V_T+8+i}, v{V_T+17}")
        a(f"v_cvt_pk_bf16_f32 v{V_T+8+i}, v{V_T+8+i}, v{V_T+8+i}")
    a(f"ds_write_b128 v10, {vr(V_T+8,4)}")
    a(f"ds_write_b128 v10, {vr(V_T+12,4)} offset:16")
    a("s_waitcnt lgkmcnt(0)")
    a("s_barrier")
    stamp(a,cfg,4)
    def ands(dst,pp):
        for w in range(4):
            a(f"v_and_b32 v{dst+w}, v{pp}, v{V_MASK+w}")
    a(f"s_cmp_lt_u32 s{S_W}, {NSW}")
    a("s_cbranch_scc1 L_vstream")
    a(f"s_sub_u32 s{S_T0}, s{S_W}, {NSW}")
    a(f"s_mul_i32 s{S_T0}, s{S_T0}, {HV*64}")
    a(f"s_add_u32 s{S_T0}, s{S_T0}, {L_SC}")
    a(f"v_lshlrev_b32 v10, 4, v3")
    a(f"v_add_u32 v10, s{S_T0}, v10")
    for t in range(HV):
        a(f"ds_read_b128 {vr(V_PP0,4)}, v10 offset:{t*64}")
        a(f"s_waitcnt vmcnt({4*(HV-1-t)}) lgkmcnt(0)")
        for n in range(4):
            A=V_A0 if n%2==0 else V_A1
            ands(A,V_PP0+n)
            a("s_nop 1")
            a(f"v_mfma_f32_16x16x32_bf16 {vr(V_OACC,4)}, {vr(A,4)}, {vr(V_RING+t*16+4*n,4)}, {vr(V_OACC,4)}")
    emit_extras(a)
    a("s_branch L_vdone")
    a("L_vstream:")
    a(f"s_add_u32 s{S_T0}, s{S_W}, {NH*HV}")
    a(f"s_lshl_b32 s{S_T0}, s{S_T0}, 6")
    a(f"s_add_u32 s{S_T0}, s{S_T0}, {L_SC}")
    a(f"v_lshlrev_b32 v10, 4, v3")
    a(f"v_add_u32 v{V_PPR}, s{S_T0}, v10")
    a(f"ds_read_b128 {vr(V_PP0,4)}, v{V_PPR}")
    so=NK%L
    def vbody(jv, wait_n, reissue, tile_rel, last_tile):
        n=jv%4
        par=(jv//4)%2
        pp = V_PP0 if par==0 else V_PP1
        ppn = V_PP1 if par==0 else V_PP0
        if n==0:
            if not last_tile:
                a(f"ds_read_b128 {vr(ppn,4)}, v{V_PPR} offset:{(tile_rel+1)*NSW*64}")
                a(f"s_waitcnt lgkmcnt(1)")
            else:
                a(f"s_waitcnt lgkmcnt(0)")
        A=V_A0 if n%2==0 else V_A1
        ands(A,pp+n)
        a(f"s_waitcnt vmcnt({wait_n})")
        a("s_nop 0")
        a(f"v_mfma_f32_16x16x32_bf16 {vr(V_OACC,4)}, {vr(A,4)}, {vr(V_RING+((so+jv)%L)*4,4)}, {vr(V_OACC,4)}")
        if reissue: reissue()
    PERV=PERK if (PERK//4)%2==0 else 2*PERK
    nloopv=(NV-L)//PERV
    a(f"s_mov_b32 s{S_LOOP}, {nloopv}")
    a("L_vloop:")
    for jv in range(PERV):
        vbody(jv, L-1, (lambda jv=jv: vload(jv+L)), jv//4, False)
    a(f"v_add_u32 v{V_PPR}, {(PERV//4)*NSW*64}, v{V_PPR}")
    a(f"s_sub_u32 s{S_LOOP}, s{S_LOOP}, 1")
    a(f"s_cmp_lg_u32 s{S_LOOP}, 0")
    a("s_cbranch_scc1 L_vloop")
    extras_done=False
    for jv in range(nloopv*PERV, NV):
        m=jv+L
        rel=(jv-nloopv*PERV)//4
        if m<NV:
            ri=(lambda m=m: vload(m)); wn=L-1
            if m==NV-1:
                ri=(lambda m=m: (vload(m), emit_extras(a)))
        else:
            ri=None; wn=(NV-1-jv)+2
        if m==NV: pass
        if m<NV: wn=L-1
        vbody(jv, wn, ri, rel, jv//4==VT-1)
    a("L_vdone:")
    stamp(a,cfg,5)
    return a, None

def gen_tail(a, cfg):
    WB=V_RING
    WO_F=WB; GU_F=WB+16; WD_F=WB+48
    TT=V_RING+64
    a(f"s_lshl_b32 s{S_T0}, s{S_W}, 9")
    a(f"s_add_u32 s{S_T0}, s{S_T0}, {L_RED}")
    a(f"v_lshlrev_b32 v10, 5, v2")
    a(f"v_lshlrev_b32 v11, 4, v3")
    a(f"v_add3_u32 v10, v10, v11, s{S_T0}")
    a("s_nop 4")
    set_exec(a, -1, 0)
    a(f"ds_write_b128 v10, {vr(V_OACC,4)}")
    full_exec(a)
    a(f"v_lshlrev_b32 v12, 3, v3")
    a(f"v_add_u32 v12, v12, v4")
    a(f"v_lshlrev_b32 v12, 7, v12")
    a(f"v_lshlrev_b32 v13, 3, v5")
    a(f"v_add_u32 v12, v12, v13")
    a(f"s_lshl_b32 s{S_T0}, s{S_W}, 12")
    a(f"s_add_u32 s{S_T1}, s{S_T0}, {L_WO}")
    a(f"v_add_u32 v13, s{S_T1}, v12")
    for t in range(4):
        for hf in range(2):
            a(f"ds_read_b64_tr_b16 {vr(WO_F+4*t+2*hf,2)}, v13 offset:{hf*4*128+32*t}")
    a(f"s_add_u32 s{S_T1}, s{S_T0}, {L_WD}")
    a(f"v_add_u32 v13, s{S_T1}, v12")
    for t in range(4):
        for hf in range(2):
            a(f"ds_read_b64_tr_b16 {vr(WD_F+4*t+2*hf,2)}, v13 offset:{hf*4*128+32*t}")
    lp=a.label("mode"); dn=a.label("modeok")
    a(f"s_mov_b32 s{S_SPIN}, {cfg.SPIN}")
    a(f"{lp}:")
    a("s_waitcnt vmcnt(0)")
    a(f"v_xor_b32 v11, s{S_TAG}, v{V_RDY+2}")
    a(f"v_xor_b32 v15, s{S_TAG+1}, v{V_RDY+3}")
    a(f"v_or_b32 v11, v11, v15")
    a(f"v_cmp_ne_u32 vcc, 0, v11")
    a(f"s_cbranch_vccz {dn}")
    a(f"global_load_dwordx4 {vr(V_RDY,4)}, v9, {sr(P_WS,2)} sc1")
    a(f"s_sub_u32 s{S_SPIN}, s{S_SPIN}, 1")
    a(f"s_cmp_lg_u32 s{S_SPIN}, 0")
    a(f"s_cbranch_scc1 {lp}")
    a(f"{dn}:")
    a(f"v_readfirstlane_b32 s{S_T0}, v{V_RDY}")
    a("s_nop 1")
    a(f"v_cmp_ne_u32 vcc, s{S_T0}, v{V_RDY}")
    a(f"s_mov_b32 s{S_T1}, {1 if cfg.FASTMODE else 0}")
    a("s_nop 1")
    a(f"s_cmp_eq_u64 vcc, 0")
    a(f"s_cselect_b32 s{S_T1}, s{S_T1}, 0")
    a(f"s_lshl_b32 s{S_T0}, s{S_W}, 2")
    a(f"s_add_u32 s{S_T0}, s{S_T0}, {L_ML}")
    a(f"v_mov_b32 v10, s{S_T0}")
    a(f"v_mov_b32 v11, s{S_T1}")
    a(f"ds_write_b32 v10, v11")
    a("s_waitcnt lgkmcnt(0)")
    a("s_barrier")
    a(f"s_lshl_b32 s{S_T0}, s{S_X}, 2")
    a(f"s_add_u32 s{S_T0}, s{S_T0}, {L_ML}")
    a(f"v_mov_b32 v10, s{S_T0}")
    a(f"ds_read_b32 v11, v10")
    a(f"s_lshr_b32 s{S_T0}, s{S_W}, 2")
    a(f"s_lshl_b32 s{S_T0}, s{S_T0}, 15")
    a(f"s_and_b32 s{S_T1}, s{S_W}, 3")
    a(f"s_lshl_b32 s{S_T1}, s{S_T1}, 5")
    a(f"s_add_u32 s{S_T0}, s{S_T0}, s{S_T1}")
    a(f"s_add_u32 s{S_T0}, s{S_T0}, {L_WG}")
    a(f"v_add_u32 v13, s{S_T0}, v12")
    a(f"s_cmp_lg_u32 s{S_W}, 0")
    a("s_cbranch_scc1 L_t1_skip")
    a(f"v_lshlrev_b32 v10, 3, v{V_LANE}")
    a(f"v_add_u32 v10, {L_RED}, v10")
    for w in range(8):
        a(f"ds_read_b64 {vr(TT+2*w,2)}, v10 offset:{w*512}")
    a("s_waitcnt lgkmcnt(0)")
    for w in range(1,8):
        a(f"v_add_f32 v{TT}, v{TT}, v{TT+2*w}")
        a(f"v_add_f32 v{TT+1}, v{TT+1}, v{TT+2*w+1}")
    a(f"v_cvt_pk_bf16_f32 v{TT}, v{TT}, v{TT+1}")
    a(f"v_min_u32 v{TT}, -2, v{TT}")
    a(f"s_lshl_b32 s{S_T0}, s{S_H}, 3")
    a(f"s_add_u32 s{S_T0}, s{S_T0}, s{S_B}")
    a(f"s_lshl_b32 s{S_T0}, s{S_T0}, 8")
    a(f"s_add_u32 s{S_T0}, s{S_T0}, {W_OB}")
    a(f"v_lshlrev_b32 v10, 2, v{V_LANE}")
    a(f"v_add_u32 v10, s{S_T0}, v10")
    a("L_t1_skip:")
    a("s_waitcnt lgkmcnt(0)")
    a(f"v_readfirstlane_b32 s{S_FAST}, v11")
    a("s_nop 1")
    a(f"s_cmp_lg_u32 s{S_W}, 0")
    a("s_cbranch_scc1 L_t1_done")
    store_mode(a, f"global_store_dword v10, v{TT}, {sr(P_WS,2)}", True)
    a("L_t1_done:")
    stamp(a,cfg,6)
    for s in range(8):
        for hf in range(2):
            a(f"ds_read_b64_tr_b16 {vr(GU_F+4*s+2*hf,2)}, v13 offset:{(32*s+4*hf)*128}")
    a(f"s_lshr_b32 s{S_T4}, s{S_R}, 4")
    a(f"s_and_b32 s{S_T5}, s{S_R}, 15")
    a(f"s_lshl_b32 s{S_T0}, s{S_X}, 2")
    a(f"s_lshl_b32 s{S_T1}, s{S_T4}, 1")
    a(f"s_add_u32 s{S_T0}, s{S_T0}, s{S_T1}")
    a(f"s_lshr_b32 s{S_T1}, s{S_W}, 2")
    a(f"s_add_u32 s{S_T0}, s{S_T0}, s{S_T1}")
    a(f"s_lshl_b32 s{S_T0}, s{S_T0}, 11")
    a(f"s_and_b32 s{S_T1}, s{S_W}, 3")
    a(f"s_lshl_b32 s{S_T1}, s{S_T1}, 6")
    a(f"s_add_u32 s{S_T0}, s{S_T0}, s{S_T1}")
    a(f"s_add_u32 s{S_T0}, s{S_T0}, {W_OB}")
    a(f"v_and_b32 v14, 7, v{V_LANE}")
    a(f"v_lshlrev_b32 v10, 8, v14")
    a(f"v_lshlrev_b32 v11, 4, v3")
    a(f"v_add3_u32 v10, v10, v11, s{S_T0}")
    poll_loop(a,"t2", lambda: a(f"global_load_dwordx4 {vr(TT,4)}, v10, {sr(P_WS,2)} sc1"), range(TT,TT+4), cfg)
    a("s_waitcnt lgkmcnt(0)")
    def gemm4_reduce_publish(F, wbase, pname, nw, lab, LR):
        for t in range(4):
            a(f"v_mfma_f32_16x16x32_bf16 {vr(TT+4+4*t,4)}, {vr(F+4*t,4)}, {vr(TT,4)}, 0")
        a(f"s_lshl_b32 s{S_T0}, s{S_W}, 11")
        a(f"s_add_u32 s{S_T0}, s{S_T0}, {LR}")
        a(f"v_lshlrev_b32 v10, 8, v2")
        a(f"v_lshlrev_b32 v11, 4, v3")
        a(f"v_add3_u32 v10, v10, v11, s{S_T0}")
        a("s_nop 3")
        if nw<8:
            a(f"s_cmp_ge_u32 s{S_W}, {nw}")
            a(f"s_cbranch_scc1 {lab}_nw")
        set_exec(a, "0x00ff00ff", "0x00ff00ff")
        for t in range(4):
            a(f"ds_write_b128 v10, {vr(TT+4+4*t,4)} offset:{64*t}")
        full_exec(a)
        a(f"{lab}_nw:")
        a("s_waitcnt lgkmcnt(0)")
        a("s_barrier")
        a(f"s_cmp_ge_u32 s{S_W}, 2")
        a(f"s_cbranch_scc1 {lab}_skip")
        a(f"v_lshlrev_b32 v10, 4, v{V_TID}")
        a(f"v_add_u32 v10, {LR}, v10")
        for w in range(nw):
            a(f"ds_read_b128 {vr(TT+4+4*w,4)}, v10 offset:{w*2048}")
        a("s_waitcnt lgkmcnt(0)")
        for w in range(1,nw):
            for c in range(4):
                a(f"v_add_f32 v{TT+4+c}, v{TT+4+c}, v{TT+4+4*w+c}")
        for c in range(4):
            a(f"v_min_u32 v{TT+4+c}, -2, v{TT+4+c}")
        a(f"s_lshl_b32 s{S_T0}, s{S_X}, 1")
        a(f"s_add_u32 s{S_T0}, s{S_T0}, s{S_T4}")
        a(f"s_lshl_b32 s{S_T0}, s{S_T0}, 15")
        a(f"s_lshl_b32 s{S_T1}, s{S_T5}, 8")
        a(f"s_add_u32 s{S_T0}, s{S_T0}, s{S_T1}")
        a(f"s_add_u32 s{S_T0}, s{S_T0}, {wbase}")
        a(f"v_lshrrev_b32 v10, 4, v{V_TID}")
        a(f"v_lshlrev_b32 v10, 12, v10")
        a(f"v_lshlrev_b32 v11, 4, v2")
        a(f"v_add3_u32 v10, v10, v11, s{S_T0}")
        a(f"global_store_dwordx4 v10, {vr(TT+4,4)}, {sr(P_WS,2)} sc1")
        a(f"{lab}_skip:")
    gemm4_reduce_publish(WO_F, W_AP, "AP", 8, "L_t2", L_SC)
    stamp(a,cfg,7)
    a(f"s_lshr_b32 s{S_T0}, s{S_R}, 2")
    a(f"s_lshl_b32 s{S_T0}, s{S_T0}, 12")
    a(f"s_and_b32 s{S_T1}, s{S_R}, 3")
    a(f"s_lshl_b32 s{S_T1}, s{S_T1}, 10")
    a(f"s_add_u32 s{S_T0}, s{S_T0}, s{S_T1}")
    a(f"s_lshl_b32 s{S_T1}, s{S_W}, 16")
    a(f"s_add_u32 s{S_T0}, s{S_T0}, s{S_T1}")
    a(f"s_add_u32 s{S_T0}, s{S_T0}, {W_AP}")
    a(f"v_add_u32 v10, s{S_T0}, v{V_VOFF}")
    a(f"v_add_u32 v11, 32768, v10")
    def ld3():
        a(f"global_load_dwordx4 {vr(TT,4)}, v10, {sr(P_WS,2)} sc1")
        a(f"global_load_dwordx4 {vr(TT+4,4)}, v11, {sr(P_WS,2)} sc1")
    poll_loop(a,"t3", ld3, range(TT,TT+8), cfg)
    for c in range(4):
        a(f"v_add_f32 v{TT+c}, v{TT+c}, v{TT+4+c}")
    RED3=L_RED+4096
    a(f"s_lshl_b32 s{S_T0}, s{S_W}, 10")
    a(f"s_add_u32 s{S_T0}, s{S_T0}, {RED3}")
    a(f"v_add_u32 v10, s{S_T0}, v{V_VOFF}")
    a(f"ds_write_b128 v10, {vr(TT,4)}")
    a("s_waitcnt lgkmcnt(0)")
    a("s_barrier")
    a(f"s_cmp_lg_u32 s{S_W}, 0")
    a("s_cbranch_scc1 L_t3_skip")
    a(f"v_add_u32 v10, {RED3}, v{V_VOFF}")
    for w in range(8):
        a(f"ds_read_b128 {vr(TT+4*w,4)}, v10 offset:{w*1024}")
    a("s_waitcnt lgkmcnt(0)")
    for w in range(1,8):
        for c in range(4):
            a(f"v_add_f32 v{TT+c}, v{TT+c}, v{TT+4*w+c}")
    a(f"v_cvt_pk_bf16_f32 v{TT+4}, v{TT}, v{TT+1}")
    a(f"v_cvt_pk_bf16_f32 v{TT+5}, v{TT+2}, v{TT+3}")
    for d in range(2):
        a(f"v_lshlrev_b32 v{TT+8}, 16, v{TT+4+d}")
        a(f"v_and_b32 v{TT+9}, 0xffff0000, v{TT+4+d}")
        a(f"v_lshlrev_b32 v{TT+10}, 16, v{V_XRES+d}")
        a(f"v_and_b32 v{TT+11}, 0xffff0000, v{V_XRES+d}")
        a(f"v_add_f32 v{TT+8}, v{TT+8}, v{TT+10}")
        a(f"v_add_f32 v{TT+9}, v{TT+9}, v{TT+11}")
        a(f"v_cvt_pk_bf16_f32 v{TT+6+d}, v{TT+8}, v{TT+9}")
        a(f"v_min_u32 v{TT+6+d}, -2, v{TT+6+d}")
    a(f"s_lshr_b32 s{S_T0}, s{S_R}, 2")
    a(f"s_lshl_b32 s{S_T1}, s{S_X}, 3")
    a(f"s_add_u32 s{S_T0}, s{S_T0}, s{S_T1}")
    a(f"s_lshl_b32 s{S_T0}, s{S_T0}, 11")
    a(f"s_and_b32 s{S_T1}, s{S_R}, 3")
    a(f"s_lshl_b32 s{S_T1}, s{S_T1}, 9")
    a(f"s_add_u32 s{S_T0}, s{S_T0}, s{S_T1}")
    a(f"s_add_u32 s{S_T0}, s{S_T0}, {W_HB}")
    a(f"v_lshlrev_b32 v10, 3, v{V_LANE}")
    a(f"v_add_u32 v10, s{S_T0}, v10")
    store_mode(a, f"global_store_dwordx2 v10, {vr(TT+6,2)}, {sr(P_WS,2)}", True)
    a("L_t3_skip:")
    stamp(a,cfg,8)
    a(f"s_lshl_b32 s{S_T0}, s{S_X}, 3")
    a(f"s_add_u32 s{S_T0}, s{S_T0}, s{S_W}")
    a(f"s_lshl_b32 s{S_T0}, s{S_T0}, 11")
    a(f"s_add_u32 s{S_T0}, s{S_T0}, {W_HB}")
    a(f"v_lshlrev_b32 v10, 5, v{V_LANE}")
    a(f"v_add_u32 v10, s{S_T0}, v10")
    def ld4():
        a(f"global_load_dwordx4 {vr(TT,4)}, v10, {sr(P_WS,2)} sc1")
        a(f"global_load_dwordx4 {vr(TT+4,4)}, v10, {sr(P_WS,2)} offset:16 sc1")
    poll_loop(a,"t4", ld4, range(TT,TT+8), cfg)
    a(f"s_cmp_lg_u32 s{S_W}, s{S_X}")
    a("s_cbranch_scc1 L_t4_nohs")
    a(f"s_lshl_b32 s{S_T0}, s{S_R}, 1")
    a(f"v_subrev_u32 v10, s{S_T0}, v{V_LANE}")
    a(f"v_cmp_gt_u32 vcc, 2, v10")
    a(f"v_lshlrev_b32 v10, 5, v10")
    a(f"v_add_u32 v10, {L_HS}, v10")
    a(f"s_and_saveexec_b64 {sr(S_EX,2)}, vcc")
    a(f"ds_write_b128 v10, {vr(TT,4)}")
    a(f"ds_write_b128 v10, {vr(TT+4,4)} offset:16")
    a(f"s_mov_b64 exec, {sr(S_EX,2)}")
    a("L_t4_nohs:")
    a(f"s_cmp_ge_u32 s{S_R}, 28")
    a("s_cbranch_scc1 L_t5_skip_all")
    layernorm(a, TT, TT+8, TT+24, V_T)
    a(f"s_mul_i32 s{S_T4}, s{S_R}, 37")
    a(f"s_lshr_b32 s{S_T4}, s{S_T4}, 8")
    a(f"s_mul_i32 s{S_T5}, s{S_T4}, 7")
    a(f"s_sub_u32 s{S_T5}, s{S_R}, s{S_T5}")
    a(f"s_lshl_b32 s{S_T0}, s{S_T4}, 4")
    a(f"v_subrev_u32 v10, s{S_T0}, v{V_LANE}")
    a(f"v_cmp_gt_u32 vcc, 16, v10")
    a(f"s_lshl_b32 s{S_T1}, s{S_W}, 9")
    a(f"s_add_u32 s{S_T1}, s{S_T1}, {L_LNB}")
    a(f"v_lshlrev_b32 v10, 5, v10")
    a(f"v_add_u32 v10, s{S_T1}, v10")
    a(f"s_and_saveexec_b64 {sr(S_EX,2)}, vcc")
    a(f"ds_write_b128 v10, {vr(TT+24,4)}")
    a(f"ds_write_b128 v10, {vr(TT+28,4)} offset:16")
    a(f"s_mov_b64 exec, {sr(S_EX,2)}")
    a("s_waitcnt lgkmcnt(0)")
    a("s_barrier")
    stamp(a,cfg,9)
    a(f"v_lshlrev_b32 v10, 9, v14")
    a(f"v_lshlrev_b32 v11, 4, v3")
    a(f"v_add_u32 v10, v10, v11")
    a(f"v_add_u32 v10, {L_LNB}, v10")
    for s in range(8):
        a(f"ds_read_b128 {vr(TT+4*s,4)}, v10 offset:{64*s}")
    a("s_waitcnt lgkmcnt(0)")
    for s in range(8):
        c="0" if s==0 else vr(V_T,4)
        a(f"v_mfma_f32_16x16x32_bf16 {vr(V_T,4)}, {vr(GU_F+4*s,4)}, {vr(TT+4*s,4)}, {c}")
    a(f"s_mul_i32 s{S_T0}, s{S_X}, 28")
    a(f"s_add_u32 s{S_T0}, s{S_T0}, s{S_R}")
    a(f"s_lshl_b32 s{S_T0}, s{S_T0}, 12")
    a(f"s_lshr_b32 s{S_T1}, s{S_W}, 2")
    a(f"s_lshl_b32 s{S_T1}, s{S_T1}, 11")
    a(f"s_add_u32 s{S_T0}, s{S_T0}, s{S_T1}")
    a(f"s_and_b32 s{S_T1}, s{S_W}, 3")
    a(f"s_lshl_b32 s{S_T1}, s{S_T1}, 6")
    a(f"s_add_u32 s{S_T0}, s{S_T0}, s{S_T1}")
    a(f"s_add_u32 s{S_T0}, s{S_T0}, {W_GP}")
    a(f"v_lshlrev_b32 v10, 8, v2")
    a(f"v_lshlrev_b32 v11, 4, v3")
    a(f"v_add3_u32 v10, v10, v11, s{S_T0}")
    a("s_nop 1")
    for c in range(4):
        a(f"v_min_u32 v{V_T+c}, -2, v{V_T+c}")
    set_exec(a, "0x00ff00ff", "0x00ff00ff")
    store_mode(a, f"global_store_dwordx4 v10, {vr(V_T,4)}, {sr(P_WS,2)}", True)
    full_exec(a)
    a(f"s_cmp_lg_u32 s{S_W}, 0")
    a("s_cbranch_scc1 L_t5_skip_all")
    a(f"s_mul_i32 s{S_T0}, s{S_X}, 28")
    a(f"s_add_u32 s{S_T0}, s{S_T0}, s{S_T5}")
    a(f"s_lshl_b32 s{S_T0}, s{S_T0}, 12")
    a(f"s_lshl_b32 s{S_T1}, s{S_T4}, 9")
    a(f"s_add_u32 s{S_T0}, s{S_T0}, s{S_T1}")
    a(f"s_add_u32 s{S_T0}, s{S_T0}, {W_GP}")
    a(f"v_lshrrev_b32 v10, 5, v{V_LANE}")
    a(f"v_lshlrev_b32 v10, 8, v10")
    a(f"v_and_b32 v11, 31, v{V_LANE}")
    a(f"v_lshlrev_b32 v11, 3, v11")
    a(f"v_add3_u32 v10, v10, v11, s{S_T0}")
    for k in range(1,4):
        a(f"v_add_u32 v{TT+32+k}, {k*7*4096}, v10")
    a(f"v_mov_b32 v{TT+32}, v10")
    def ld5():
        for k in range(4):
            for m in range(2):
                a(f"global_load_dwordx2 {vr(TT+ (k*2+m)*2,2)}, v{TT+32+k}, {sr(P_WS,2)} offset:{m*2048} sc1")
    poll_loop(a,"t5", ld5, range(TT,TT+16), cfg)
    for k in range(1,4):
        for c in range(4):
            a(f"v_add_f32 v{TT+c}, v{TT+c}, v{TT+4*k+c}")
    G=TT; U=TT+2; X=TT+4
    for c in range(2):
        round_bf16(a,G+c,G+c)
        round_bf16(a,U+c,U+c)
    a(f"s_mov_b32 s{S_T0}, 0x3d372713")
    a(f"s_mov_b32 s{S_T1}, 0xc0135761")
    for c in range(2):
        a(f"v_mul_f32 v{X+c}, v{G+c}, v{G+c}")
        a(f"v_mul_f32 v{X+c}, v{X+c}, v{G+c}")
        a(f"v_fma_f32 v{X+c}, v{X+c}, s{S_T0}, v{G+c}")
        a(f"v_mul_f32 v{X+c}, s{S_T1}, v{X+c}")
        a(f"v_exp_f32 v{X+c}, v{X+c}")
        a("s_nop 0")
        a(f"v_add_f32 v{X+c}, 1.0, v{X+c}")
        a(f"v_rcp_f32 v{X+c}, v{X+c}")
        a("s_nop 0")
        a(f"v_mul_f32 v{X+c}, v{X+c}, v{G+c}")
        round_bf16(a,X+c,X+c)
        a(f"v_mul_f32 v{X+c}, v{X+c}, v{U+c}")
    a(f"v_cvt_pk_bf16_f32 v{X}, v{X}, v{X+1}")
    a(f"v_min_u32 v{X}, -2, v{X}")
    a(f"s_lshl_b32 s{S_T0}, s{S_X}, 3")
    a(f"s_lshl_b32 s{S_T1}, s{S_T4}, 1")
    a(f"s_add_u32 s{S_T0}, s{S_T0}, s{S_T1}")
    a(f"s_mul_i32 s{S_T0}, s{S_T0}, 896")
    a(f"s_lshl_b32 s{S_T1}, s{S_T5}, 7")
    a(f"s_add_u32 s{S_T0}, s{S_T0}, s{S_T1}")
    a(f"s_add_u32 s{S_T0}, s{S_T0}, {W_ACT}")
    a(f"v_lshrrev_b32 v10, 5, v{V_LANE}")
    a(f"v_mul_u32_u24 v10, 896, v10")
    a(f"v_and_b32 v11, 31, v{V_LANE}")
    a(f"v_lshlrev_b32 v11, 2, v11")
    a(f"v_add3_u32 v10, v10, v11, s{S_T0}")
    store_mode(a, f"global_store_dword v10, v{X}, {sr(P_WS,2)}", True)
    a("L_t5_skip_all:")
    stamp(a,cfg,10)
    a(f"s_lshr_b32 s{S_T4}, s{S_R}, 4")
    a(f"s_and_b32 s{S_T5}, s{S_R}, 15")
    a(f"s_cmp_ge_u32 s{S_W}, 7")
    a("s_cbranch_scc1 L_t6_nopoll")
    a(f"s_mul_i32 s{S_T0}, s{S_X}, {8*896}")
    a(f"s_mul_i32 s{S_T1}, s{S_T4}, 448")
    a(f"s_add_u32 s{S_T0}, s{S_T0}, s{S_T1}")
    a(f"s_lshl_b32 s{S_T1}, s{S_W}, 6")
    a(f"s_add_u32 s{S_T0}, s{S_T0}, s{S_T1}")
    a(f"s_add_u32 s{S_T0}, s{S_T0}, {W_ACT}")
    a(f"v_mul_u32_u24 v10, 896, v14")
    a(f"v_lshlrev_b32 v11, 4, v3")
    a(f"v_add3_u32 v10, v10, v11, s{S_T0}")
    poll_loop(a,"t6", lambda: a(f"global_load_dwordx4 {vr(TT,4)}, v10, {sr(P_WS,2)} sc1"), range(TT,TT+4), cfg)
    a("L_t6_nopoll:")
    gemm4_reduce_publish(WD_F, W_DP, "DP", 7, "L_t6", L_RED)
    stamp(a,cfg,11)
    a(f"s_cmp_lg_u32 s{S_W}, 0")
    a("s_cbranch_scc1 L_fin")
    a(f"s_lshl_b32 s{S_T0}, s{S_X}, 12")
    a(f"s_lshl_b32 s{S_T1}, s{S_R}, 7")
    a(f"s_add_u32 s{S_T0}, s{S_T0}, s{S_T1}")
    a(f"s_add_u32 s{S_T0}, s{S_T0}, {W_DP}")
    a(f"v_lshrrev_b32 v10, 5, v{V_LANE}")
    a(f"v_lshlrev_b32 v10, 18, v10")
    a(f"v_and_b32 v11, 31, v{V_LANE}")
    a(f"v_lshlrev_b32 v11, 2, v11")
    a(f"v_add3_u32 v10, v10, v11, s{S_T0}")
    for k in range(8):
        a(f"v_add_u32 v{TT+16+k}, {k*32768}, v10")
    def ld7():
        for k in range(8):
            a(f"global_load_dword v{TT+k}, v{TT+16+k}, {sr(P_WS,2)} sc1")
    poll_loop(a,"t7", ld7, range(TT,TT+8), cfg)
    for k in range(1,8):
        a(f"v_add_f32 v{TT}, v{TT}, v{TT+k}")
    a(f"v_mov_b32 v{TT+1}, v{TT}")
    a(f"v_and_b32 v11, 31, v{V_LANE}")
    a(f"v_lshlrev_b32 v11, 1, v11")
    a(f"v_add_u32 v11, {L_HS}, v11")
    a(f"ds_read_u16 v{TT+2}, v11")
    a(f"v_permlane32_swap_b32 v{TT}, v{TT+1}")
    a(f"v_add_f32 v{TT}, v{TT}, v{TT+1}")
    round_bf16(a,TT,TT)
    a("s_waitcnt lgkmcnt(0)")
    a(f"v_lshlrev_b32 v{TT+2}, 16, v{TT+2}")
    a(f"v_add_f32 v{TT}, v{TT}, v{TT+2}")
    a(f"v_cvt_pk_bf16_f32 v{TT}, v{TT}, v{TT}")
    a(f"s_lshl_b32 s{S_T0}, s{S_X}, 11")
    a(f"s_lshl_b32 s{S_T1}, s{S_R}, 6")
    a(f"s_add_u32 s{S_T0}, s{S_T0}, s{S_T1}")
    a(f"v_and_b32 v11, 31, v{V_LANE}")
    a(f"v_lshlrev_b32 v11, 1, v11")
    a(f"v_add_u32 v11, s{S_T0}, v11")
    set_exec(a, -1, 0)
    a(f"global_store_short v11, v{TT}, {sr(P_OUT,2)}")
    full_exec(a)
    a(f"s_cmp_lg_u32 s{S_ID}, 0")
    a("s_cbranch_scc1 L_fin")
    a(f"v_mov_b32 v10, {W_EPOCH}")
    a(f"v_mov_b32 v12, s{S_TAG}")
    a(f"v_mov_b32 v13, s{S_TAG+1}")
    set_exec(a, 1, 0)
    a(f"global_store_dwordx2 v10, v[12:13], {sr(P_WS,2)} sc1")
    full_exec(a)
    a("L_fin:")
    if cfg.STAMPS and cfg.DBGSTAMP:
        stamp(a,cfg,12)
        a("s_waitcnt lgkmcnt(0)")
        a(f"s_cmp_lg_u32 s{S_W}, 0")
        a("s_cbranch_scc1 L_exit")
        lst=[0,1,2,4,6,7,8,10,11,12]
        for i,k in enumerate(lst):
            if k==0:
                a(f"s_not_b32 s{S_T0}, s72")
                a(f"v_mov_b32 v{TT}, s{S_T0}")
            else:
                a(f"v_mov_b32 v{TT}, s{72+2*k}")
            a(f"v_mov_b32 v10, {4*i}")
            set_exec(a,1,0)
            a(f"global_atomic_umax v10, v{TT}, {sr(P_DBG,2)} sc1")
            full_exec(a)
        a(f"v_mov_b32 v{TT}, s72")
        a(f"v_mov_b32 v10, 40")
        set_exec(a,1,0)
        a(f"global_atomic_umax v10, v{TT}, {sr(P_DBG,2)} sc1")
        full_exec(a)
        a(f"s_not_b32 s{S_T0}, s{72+12}")
        a(f"v_mov_b32 v{TT}, s{S_T0}")
        a(f"v_mov_b32 v10, 44")
        set_exec(a,1,0)
        a(f"global_atomic_umax v10, v{TT}, {sr(P_DBG,2)} sc1")
        full_exec(a)
    elif cfg.STAMPS:
        stamp(a,cfg,12)
        a("s_waitcnt lgkmcnt(0)")
        for k in range(15):
            a(f"v_mov_b32 v{TT}, s{72+2*k}")
            a(f"v_mov_b32 v{TT+1}, s{73+2*k}")
            a(f"s_lshl_b32 s{S_T0}, s{S_ID}, 3")
            a(f"s_add_u32 s{S_T0}, s{S_T0}, s{S_W}")
            a(f"s_lshl_b32 s{S_T0}, s{S_T0}, 7")
            a(f"s_add_u32 s{S_T0}, s{S_T0}, {W_STAMP+8*k}")
            a(f"v_mov_b32 v10, s{S_T0}")
            set_exec(a,1,0)
            a(f"global_store_dwordx2 v10, {vr(TT,2)}, {sr(P_WS,2)}")
            full_exec(a)
    a("L_exit:")
    a("s_endpgm")

HEADER = open("sequential_preLN__mha_block_cached__geglu_ffn__decode.s.ref").read().split("; Override launch geometry")[0]

def build(cfg, path):
    a,_=gen(cfg)
    gen_tail(a,cfg)
    txt = HEADER
    txt += "; Override launch geometry by editing the next line (default: block=256,\n"
    txt += f"; @launch grid=(256,1,1) block=(512,1,1) lds={LDS_BYTES}\n"
    txt += f""".amdgcn_target "amdgcn-amd-amdhsa--gfx950"
.text
.globl {KNAME}
.p2align 8
.type {KNAME},@function
"""
    txt += a.text()
    txt += f""".section .rodata,"a"
.p2align 6
.amdhsa_kernel {KNAME}
  .amdhsa_next_free_vgpr 256
  .amdhsa_next_free_sgpr 102
  .amdhsa_accum_offset 256
  .amdhsa_group_segment_fixed_size 0
  .amdhsa_kernarg_size 96
  .amdhsa_user_sgpr_count 2
  .amdhsa_user_sgpr_kernarg_segment_ptr 1
  .amdhsa_system_sgpr_workgroup_id_x 1
  .amdhsa_float_denorm_mode_32 3
.end_amdhsa_kernel
"""
    open(path,"w").write(txt)

if __name__=="__main__":
    cfg=Cfg()
    out=sys.argv[1]
    for kv in sys.argv[2:]:
        k,v=kv.split("=")
        setattr(cfg,k,eval(v))
    build(cfg,out)
```

```python
import sys

KNAME = "sequential_preLN__mha_block_cached__geglu_ffn__decode_kernel"

class Cfg:
    NSW = 2
    L = 10
    HV = 1
    QFAST = True
    KFLAGS = "nt"
    VFLAGS = "nt"
    WFLAGS = "nt"
    FASTMODE = True
    SPIN = 1 << 20
    STAMPS = False
    P0 = 5
    P = 5
    P1 = 8
    DMAPAUSE = True
    RING_EARLY = True
    RAMP = 0
    TAILDIAG = False
    PSLEEP = 0
    QSLEEP = 0
    QWAIT = 64
    DBGSTAMP = False

L_WO   = 0
L_WG   = 32768
L_WU   = 65536
L_WD   = 98304
L_WQ   = 126976
L_SC   = 126976
L_RED  = 143360
L_LNA  = 159744
L_QS   = 161920
L_ML   = 162176
L_HS   = 162208
L_QF   = 162272
L_LS   = 162288
L_MODE = 162320
L_END  = 162352
LNA_P  = 272
LNB_P  = 528
L_LNB  = L_SC
LDS_BYTES = 163840

W_QP  = 0x500000
W_RDY = 0x000000
W_EPOCH = 0x010000
W_OB  = 0x100000
W_AP  = 0x120000
W_HB  = 0x1A0000
W_GP  = 0x1C0000
W_ACT = 0x2A0000
W_DP  = 0x2B0000
W_STAMP = 0x400000

D_CLR = 32*4
D_XCC = 40*4

S_ID=2; S_W=3; S_X=4; S_R=5; S_H=6; S_B=7
P_X=16; P_K=18; P_V=20; P_WQ=22; P_WO=24; P_WG=28; P_WU=30; P_WD=32; P_OUT=34; P_DBG=36; P_WS=38
SRD_K=40; SRD_V=44
S_KOFF=48
S_FAST=49
S_SPIN=50
S_T0=52; S_T1=53; S_T2=54; S_T3=55; S_T4=56; S_T5=57
S_B0=58
S_B1=60
S_EX=62
S_M=64
S_M2=66
S_SCALE=68; S_LOG2E=69
S_DN=12; S_DS=13; S_DM=14; S_LOOP=15
S_TAG=98
S_TAG=66
S_ST=70

V_TID=0; V_LANE=1
V_MASK=16
V_KOFF=20; V_VOFF=21; V_SCW=22; V_PPR=23; V_MAX=24
V_DMA=25
V_QADDR=26
V_QA=32
V_SACC=48
V_OACC=52
V_A0=56; V_A1=60
V_PP0=64; V_PP1=68
V_T=72
V_RING=96
V_X=160

class Asm:
    def __init__(self):
        self.L=[]; self.n=0
    def __call__(self, s):
        for line in s.split("\n"):
            line=line.strip()
            if line: self.L.append(("" if line.endswith(":") else "  ")+line)
    def label(self, base):
        self.n+=1
        return f"L_{base}_{self.n}"
    def text(self): return "\n".join(self.L)+"\n"

def vr(b,n): return f"v[{b}:{b+n-1}]"
def sr(b,n): return f"s[{b}:{b+n-1}]"

def wave_sum(a, v, tmp, op="add"):
    ins = "v_add_f32" if op=="add" else "v_max_f32"
    for k in (8,4,2,1):
        a(f"s_nop 1")
        a(f"{ins}_dpp {'v%d'%v}, v{v}, v{v} row_ror:{k} row_mask:0xf bank_mask:0xf")
    a("s_nop 1")
    a(f"v_readlane_b32 s{S_T0}, v{v}, 0")
    a(f"v_readlane_b32 s{S_T1}, v{v}, 16")
    a(f"v_readlane_b32 s{S_T2}, v{v}, 32")
    a(f"v_readlane_b32 s{S_T3}, v{v}, 48")
    a("s_nop 1")
    a(f"v_mov_b32 v{v}, s{S_T0}")
    a(f"{ins} v{v}, s{S_T1}, v{v}")
    a(f"{ins} v{v}, s{S_T2}, v{v}")
    a(f"{ins} v{v}, s{S_T3}, v{v}")

def round_bf16(a, dst, src):
    a(f"v_cvt_pk_bf16_f32 v{dst}, v{src}, v{src}")
    a(f"v_and_b32 v{dst}, 0xffff0000, v{dst}")

def layernorm(a, vin, vf, vout, t):
    for i in range(8):
        a(f"v_lshlrev_b32 v{vf+2*i}, 16, v{vin+i}")
        a(f"v_and_b32 v{vf+2*i+1}, 0xffff0000, v{vin+i}")
    a(f"v_add_f32 v{t}, v{vf}, v{vf+1}")
    for i in range(2,16):
        a(f"v_add_f32 v{t}, v{t}, v{vf+i}")
    wave_sum(a, t, t+1)
    a(f"v_mul_f32 v{t}, 0x3a800000, v{t}")
    a(f"v_sub_f32 v{t+1}, v{vf}, v{t}")
    a(f"v_mul_f32 v{t+2}, v{t+1}, v{t+1}")
    for i in range(1,16):
        a(f"v_sub_f32 v{t+1}, v{vf+i}, v{t}")
        a(f"v_fmac_f32 v{t+2}, v{t+1}, v{t+1}")
    wave_sum(a, t+2, t+1)
    a(f"v_mul_f32 v{t+2}, 0x3a800000, v{t+2}")
    round_bf16(a, t, t)
    round_bf16(a, t+2, t+2)
    a(f"v_add_f32 v{t+2}, 0x3727c5ac, v{t+2}")
    round_bf16(a, t+2, t+2)
    a(f"v_sqrt_f32 v{t+2}, v{t+2}")
    a("s_nop 0")
    round_bf16(a, t+2, t+2)
    a(f"v_rcp_f32 v{t+2}, v{t+2}")
    a("s_nop 0")
    for i in range(8):
        a(f"v_sub_f32 v{vf+2*i}, v{vf+2*i}, v{t}")
        a(f"v_sub_f32 v{vf+2*i+1}, v{vf+2*i+1}, v{t}")
        a(f"v_cvt_pk_bf16_f32 v{t+1}, v{vf+2*i}, v{vf+2*i+1}")
        a(f"v_lshlrev_b32 v{vf+2*i}, 16, v{t+1}")
        a(f"v_and_b32 v{vf+2*i+1}, 0xffff0000, v{t+1}")
        a(f"v_mul_f32 v{vf+2*i}, v{vf+2*i}, v{t+2}")
        a(f"v_mul_f32 v{vf+2*i+1}, v{vf+2*i+1}, v{t+2}")
        a(f"v_cvt_pk_bf16_f32 v{vout+i}, v{vf+2*i}, v{vf+2*i+1}")

def set_exec(a, lo, hi):
    a(f"s_mov_b32 exec_lo, {lo}")
    a(f"s_mov_b32 exec_hi, {hi}")
def full_exec(a):
    a("s_mov_b64 exec, -1")

def poll_loop(a, name, loads, regs, cfg):
    lp=a.label(name+"_poll"); dn=a.label(name+"_ok")
    a(f"s_mov_b32 s{S_SPIN}, {cfg.SPIN}")
    a(f"{lp}:")
    loads()
    a("s_waitcnt vmcnt(0)")
    t=V_T+23
    rs=list(regs)
    a(f"v_max_u32 v{t}, v{rs[0]}, v{rs[1] if len(rs)>1 else rs[0]}")
    i=2
    while i<len(rs):
        if i+1<len(rs):
            a(f"v_max3_u32 v{t}, v{t}, v{rs[i]}, v{rs[i+1]}"); i+=2
        else:
            a(f"v_max_u32 v{t}, v{t}, v{rs[i]}"); i+=1
    a(f"v_cmp_eq_u32 vcc, -1, v{t}")
    a(f"s_cbranch_vccz {dn}")
    a(f"s_sub_u32 s{S_SPIN}, s{S_SPIN}, 1")
    a(f"s_cmp_lg_u32 s{S_SPIN}, 0")
    a(f"s_cbranch_scc1 {lp}")
    a(f"{dn}:")

def store_mode(a, instr, intra):
    if not intra:
        a(instr+" sc1"); return
    l1=a.label("st_slow"); l2=a.label("st_done")
    a(f"s_cmp_eq_u32 s{S_FAST}, 0")
    a(f"s_cbranch_scc1 {l1}")
    a(instr)
    a(f"s_branch {l2}")
    a(f"{l1}:")
    a(instr+" sc1")
    a(f"{l2}:")

def stamp(a, cfg, idx):
    if not cfg.STAMPS: return
    a(f"s_memrealtime s[{72+2*idx}:{73+2*idx}]")


def emit_clears(a, sfx=''):
    a(f"v_mov_b32 v12, -1\nv_mov_b32 v13, -1\nv_mov_b32 v14, -1\nv_mov_b32 v15, -1")
    a(f"s_lshr_b32 s{S_T4}, s{S_R}, 4")
    a(f"s_and_b32 s{S_T5}, s{S_R}, 15")
    a(f"s_lshl_b32 s{S_T1}, s{S_X}, 1")
    a(f"s_add_u32 s{S_T1}, s{S_T1}, s{S_T4}")
    a(f"s_lshl_b32 s{S_T0}, s{S_T1}, 15")
    a(f"s_lshl_b32 s{S_T1}, s{S_T5}, 8")
    a(f"s_add_u32 s{S_T0}, s{S_T0}, s{S_T1}")
    a(f"v_lshlrev_b32 v10, 12, v3")
    a(f"v_lshlrev_b32 v11, 4, v2")
    a(f"v_add3_u32 v10, v10, v11, s{S_T0}")
    for base in (W_AP, W_DP):
        a(f"v_add_u32 v11, {base}, v10")
        a(f"global_store_dwordx4 v11, v[12:15], {sr(P_WS,2)} sc1")
        a(f"v_add_u32 v11, {base+4*4096}, v10")
        a(f"global_store_dwordx4 v11, v[12:15], {sr(P_WS,2)} sc1")
    a(f"s_lshl_b32 s{S_T0}, s{S_H}, 3")
    a(f"s_add_u32 s{S_T0}, s{S_T0}, s{S_B}")
    a(f"s_lshl_b32 s{S_T0}, s{S_T0}, 8")
    a(f"s_add_u32 s{S_T0}, s{S_T0}, {W_OB}")
    a(f"v_add_u32 v10, s{S_T0}, v{V_VOFF}")
    set_exec(a, "0xffff", 0)
    a(f"global_store_dwordx4 v10, v[12:15], {sr(P_WS,2)} sc1")
    full_exec(a)
    a(f"s_lshr_b32 s{S_T0}, s{S_R}, 2")
    a(f"s_lshl_b32 s{S_T1}, s{S_X}, 3")
    a(f"s_add_u32 s{S_T0}, s{S_T0}, s{S_T1}")
    a(f"s_lshl_b32 s{S_T0}, s{S_T0}, 11")
    a(f"s_and_b32 s{S_T1}, s{S_R}, 3")
    a(f"s_lshl_b32 s{S_T1}, s{S_T1}, 9")
    a(f"s_add_u32 s{S_T0}, s{S_T0}, s{S_T1}")
    a(f"s_add_u32 s{S_T0}, s{S_T0}, {W_HB}")
    a(f"v_add_u32 v10, s{S_T0}, v{V_VOFF}")
    set_exec(a, -1, 0)
    a(f"global_store_dwordx4 v10, v[12:15], {sr(P_WS,2)} sc1")
    full_exec(a)
    a(f"s_cmp_ge_u32 s{S_R}, 28")
    a(f"s_cbranch_scc1 L_clr_done{sfx}")
    a(f"s_mul_i32 s{S_T0}, s{S_X}, 28")
    a(f"s_add_u32 s{S_T0}, s{S_T0}, s{S_R}")
    a(f"s_lshl_b32 s{S_T0}, s{S_T0}, 12")
    a(f"s_add_u32 s{S_T0}, s{S_T0}, {W_GP}")
    a(f"v_add_u32 v10, s{S_T0}, v{V_VOFF}")
    for n in range(4):
        a(f"global_store_dwordx4 v10, v[12:15], {sr(P_WS,2)} offset:{n*1024} sc1")
    a(f"s_mul_i32 s{S_T0}, s{S_R}, 37")
    a(f"s_lshr_b32 s{S_T0}, s{S_T0}, 8")
    a(f"s_mul_i32 s{S_T1}, s{S_T0}, 7")
    a(f"s_sub_u32 s{S_T1}, s{S_R}, s{S_T1}")
    a(f"s_lshl_b32 s{S_T0}, s{S_T0}, 1")
    a(f"s_lshl_b32 s{S_T2}, s{S_X}, 3")
    a(f"s_add_u32 s{S_T0}, s{S_T0}, s{S_T2}")
    a(f"s_mul_i32 s{S_T0}, s{S_T0}, 896")
    a(f"s_lshl_b32 s{S_T1}, s{S_T1}, 7")
    a(f"s_add_u32 s{S_T0}, s{S_T0}, s{S_T1}")
    a(f"s_add_u32 s{S_T0}, s{S_T0}, {W_ACT}")
    a(f"v_lshrrev_b32 v10, 3, v{V_LANE}")
    a(f"v_mul_u32_u24 v10, 896, v10")
    a(f"v_and_b32 v11, 7, v{V_LANE}")
    a(f"v_lshlrev_b32 v11, 4, v11")
    a(f"v_add3_u32 v10, v10, v11, s{S_T0}")
    set_exec(a, "0xffff", 0)
    a(f"global_store_dwordx4 v10, v[12:15], {sr(P_WS,2)} sc1")
    full_exec(a)
    a(f"L_clr_done{sfx}:")


def emit_extras(a):
    a(f"s_lshl_b32 s{S_T0}, s{S_W}, 9")
    a(f"v_and_b32 v10, 31, v{V_LANE}")
    a(f"v_lshlrev_b32 v10, 4, v10")
    a(f"v_add_u32 v10, s{S_T0}, v10")
    a(f"v_add_u32 v9, {W_RDY}, v10")
    a(f"global_load_dwordx4 {vr(V_RDY,4)}, v9, {sr(P_WS,2)} sc1")
    a(f"s_lshr_b32 s{S_T0}, s{S_R}, 2")
    a(f"s_lshl_b32 s{S_T0}, s{S_T0}, 11")
    a(f"s_and_b32 s{S_T1}, s{S_R}, 3")
    a(f"s_lshl_b32 s{S_T1}, s{S_T1}, 9")
    a(f"s_add_u32 s{S_T0}, s{S_T0}, s{S_T1}")
    a(f"v_lshlrev_b32 v11, 3, v{V_LANE}")
    a(f"v_add_u32 v11, s{S_T0}, v11")
    a(f"global_load_dwordx2 {vr(V_XRES,2)}, v11, {sr(P_X,2)}")

def koff_init(a):
    a(f"s_lshr_b32 s{S_KOFF}, s{S_W}, 2")
    a(f"s_lshl_b32 s{S_KOFF}, s{S_KOFF}, 7")
    a(f"s_and_b32 s{S_T5}, s{S_W}, 3")
    a(f"s_add_u32 s{S_KOFF}, s{S_KOFF}, s{S_T5}")
    a(f"s_lshl_b32 s{S_KOFF}, s{S_KOFF}, 12")

def emit_rdy(a):
    a(f"s_getreg_b32 s{S_T0}, hwreg(HW_REG_XCC_ID, 0, 4)")
    a(f"s_lshl_b32 s{S_T1}, s{S_X}, 5")
    a(f"s_add_u32 s{S_T1}, s{S_T1}, s{S_R}")
    a(f"s_lshl_b32 s{S_T1}, s{S_T1}, 4")
    a(f"s_add_u32 s{S_T1}, s{S_T1}, {W_RDY}")
    a(f"v_mov_b32 v10, s{S_T1}")
    a(f"v_mov_b32 v12, s{S_T0}")
    a(f"v_mov_b32 v13, 0")
    a(f"v_mov_b32 v14, s{S_TAG}")
    a(f"v_mov_b32 v15, s{S_TAG+1}")
    set_exec(a, 1, 0)
    a(f"global_store_dwordx4 v10, v[12:15], {sr(P_WS,2)} sc1")
    full_exec(a)

def gen(cfg):
    a=Asm()
    NSW=cfg.NSW; L=cfg.L; HV=cfg.HV
    NH=8-NSW
    KT=256//NSW
    VT=(256-NH*HV)//NSW
    assert VT*NSW+NH*HV==256, "V tiles must split evenly"
    NK=4*KT; NV=4*VT
    TSTEP=NSW*4096
    def kload(j):
        reg=V_RING+(j%L)*4
        a(f"buffer_load_dwordx4 {vr(reg,4)}, v{V_KOFF}, {sr(SRD_K,4)}, s{S_KOFF} offen offset:{(j%4)*1024} {cfg.KFLAGS}")
        if j%4==3: a(f"s_add_u32 s{S_KOFF}, s{S_KOFF}, {TSTEP}")
    def vload(jv, first=False):
        reg=V_RING+((NK+jv)%L)*4
        if first:
            a(f"s_add_u32 s{S_KOFF}, s{S_W}, {NH*HV}")
            a(f"s_lshl_b32 s{S_KOFF}, s{S_KOFF}, 12")
        a(f"buffer_load_dwordx4 {vr(reg,4)}, v{V_VOFF}, {sr(SRD_V,4)}, s{S_KOFF} offen offset:{(jv%4)*1024} {cfg.VFLAGS}")
        if jv%4==3: a(f"s_add_u32 s{S_KOFF}, s{S_KOFF}, {TSTEP}")
    a(f"{KNAME}:")
    a(f"s_cmp_ge_u32 s{S_ID}, 256")
    a("s_cbranch_scc1 L_exit")
    a("s_load_dwordx16 s[16:31], s[0:1], 0")
    a("s_load_dwordx8 s[32:39], s[0:1], 64")
    stamp(a,cfg,0)
    a(f"v_lshrrev_b32 v2, 6, v0")
    a(f"v_and_b32 v{V_LANE}, 63, v0")
    a(f"s_and_b32 s{S_X}, s{S_ID}, 7")
    a(f"v_readfirstlane_b32 s{S_W}, v2")
    a(f"s_lshr_b32 s{S_R}, s{S_ID}, 3")
    a(f"s_lshr_b32 s{S_T0}, s{S_R}, 3")
    a(f"s_lshl_b32 s{S_H}, s{S_X}, 2")
    a(f"s_add_u32 s{S_H}, s{S_H}, s{S_T0}")
    a(f"s_and_b32 s{S_B}, s{S_R}, 7")
    a(f"v_and_b32 v2, 15, v{V_LANE}")
    a(f"v_lshrrev_b32 v3, 4, v{V_LANE}")
    a(f"v_lshlrev_b32 v{V_VOFF}, 4, v{V_LANE}")
    a(f"v_lshrrev_b32 v4, 2, v2")
    a(f"v_and_b32 v5, 3, v2")
    a(f"v_lshlrev_b32 v6, 8, v4")
    a(f"v_lshlrev_b32 v7, 6, v3")
    a(f"v_lshlrev_b32 v8, 4, v5")
    a(f"v_add3_u32 v{V_KOFF}, v6, v7, v8")
    a(f"v_mov_b32 v{V_DMA}, 0")
    a("s_waitcnt lgkmcnt(0)")
    a(f"s_load_dwordx2 {sr(S_TAG,2)}, {sr(P_WS,2)}, {W_EPOCH}")
    a(f"s_lshl_b32 s{S_T0}, s{S_B}, 5")
    a(f"s_add_u32 s{S_T0}, s{S_T0}, s{S_H}")
    a(f"s_lshl_b32 s{S_T0}, s{S_T0}, 20")
    for srd,p in ((SRD_K,P_K),(SRD_V,P_V)):
        a(f"s_add_u32 s{srd}, s{p}, s{S_T0}")
        a(f"s_addc_u32 s{srd+1}, s{p+1}, 0")
        a(f"s_and_b32 s{srd+1}, s{srd+1}, 0xffff")
        a(f"s_mov_b32 s{srd+2}, 0x100000")
        a(f"s_mov_b32 s{srd+3}, 0x20000")
    a(f"s_lshl_b32 s{S_T0}, s{S_W}, 11")
    a(f"v_lshlrev_b32 v9, 5, v{V_LANE}")
    a(f"v_add_u32 v9, s{S_T0}, v9")
    a(f"global_load_dwordx4 {vr(V_X,4)}, v9, {sr(P_X,2)}")
    a(f"global_load_dwordx4 {vr(V_X+4,4)}, v9, {sr(P_X,2)} offset:16")
    a(f"s_cmp_lt_u32 s{S_W}, 4")
    a("s_cbranch_scc1 L_lowwaves")

    a(f"v_lshrrev_b32 v10, 3, v{V_LANE}")
    a(f"v_and_b32 v11, 7, v{V_LANE}")
    a(f"v_lshlrev_b32 v11, 4, v11")
    a(f"s_lshr_b32 s{S_T4}, s{S_R}, 4")
    a(f"s_and_b32 s{S_T5}, s{S_R}, 15")
    a(f"s_cmp_eq_u32 s{S_W}, 4")
    a("s_cbranch_scc1 L_dma_wo")
    a(f"s_cmp_eq_u32 s{S_W}, 7")
    a("s_cbranch_scc1 L_dma_wd")
    a(f"s_cmp_ge_u32 s{S_R}, 28")
    a("s_cbranch_scc1 L_dma_done")
    a(f"s_mul_i32 s{S_T0}, s{S_R}, 37")
    a(f"s_lshr_b32 s{S_T0}, s{S_T0}, 8")
    a(f"s_mul_i32 s{S_T1}, s{S_T0}, 7")
    a(f"s_sub_u32 s{S_T1}, s{S_R}, s{S_T1}")
    a(f"s_mul_i32 s{S_T0}, s{S_T0}, {256*7168}")
    a(f"s_mul_i32 s{S_T2}, s{S_X}, 896")
    a(f"s_lshl_b32 s{S_T1}, s{S_T1}, 7")
    a(f"s_add_u32 s{S_T0}, s{S_T0}, s{S_T2}")
    a(f"s_add_u32 s{S_T0}, s{S_T0}, s{S_T1}")
    a(f"s_cmp_eq_u32 s{S_W}, 5")
    a(f"s_cselect_b32 s{S_B0}, s{P_WG}, s{P_WU}")
    a(f"s_cselect_b32 s{S_B0+1}, s{P_WG+1}, s{P_WU+1}")
    a(f"s_mov_b32 s{S_T3}, {L_WU}")
    a(f"s_cselect_b32 s{S_T3}, {L_WG}, s{S_T3}")
    a(f"s_add_u32 s{S_B0}, s{S_B0}, s{S_T0}")
    a(f"s_addc_u32 s{S_B0+1}, s{S_B0+1}, 0")
    a(f"s_mov_b32 s{S_T0}, 7168")
    a(f"s_mov_b32 s{S_T1}, 32")
    a("s_branch L_dma_go")
    a("L_dma_wo:")
    a(f"s_lshl_b32 s{S_T0}, s{S_X}, 1")
    a(f"s_add_u32 s{S_T0}, s{S_T0}, s{S_T4}")
    a(f"s_lshl_b32 s{S_T0}, s{S_T0}, 19")
    a(f"s_lshl_b32 s{S_T1}, s{S_T5}, 7")
    a(f"s_add_u32 s{S_T0}, s{S_T0}, s{S_T1}")
    a(f"s_add_u32 s{S_B0}, s{P_WO}, s{S_T0}")
    a(f"s_addc_u32 s{S_B0+1}, s{P_WO+1}, 0")
    a(f"s_mov_b32 s{S_T3}, {L_WO}")
    a(f"s_mov_b32 s{S_T0}, 2048")
    a(f"s_mov_b32 s{S_T1}, 32")
    a("s_branch L_dma_go")
    a("L_dma_wd:")
    a(f"s_lshl_b32 s{S_T0}, s{S_X}, 1")
    a(f"s_add_u32 s{S_T0}, s{S_T0}, s{S_T4}")
    a(f"s_mul_i32 s{S_T0}, s{S_T0}, {224*2048}")
    a(f"s_lshl_b32 s{S_T1}, s{S_T5}, 7")
    a(f"s_add_u32 s{S_T0}, s{S_T0}, s{S_T1}")
    a(f"s_add_u32 s{S_B0}, s{P_WD}, s{S_T0}")
    a(f"s_addc_u32 s{S_B0+1}, s{P_WD+1}, 0")
    a(f"s_mov_b32 s{S_T3}, {L_WD}")
    a(f"s_mov_b32 s{S_T0}, 2048")
    a(f"s_mov_b32 s{S_T1}, 28")
    a("L_dma_go:")
    a(f"v_mul_lo_u32 v10, v10, s{S_T0}")
    a(f"s_lshl_b32 s{S_T0}, s{S_T0}, 3")
    a(f"v_add_u32 v10, v10, v11")
    a(f"s_mov_b32 m0, s{S_T3}")
    a("s_nop 0")
    for n in range(cfg.P0):
        a(f"global_load_lds_dwordx4 v10, {sr(S_B0,2)} {cfg.WFLAGS}")
        a(f"s_add_u32 m0, m0, 1024")
        a(f"s_add_u32 s{S_B0}, s{S_B0}, s{S_T0}")
        a(f"s_addc_u32 s{S_B0+1}, s{S_B0+1}, 0")
    a(f"s_sub_u32 s{S_DN}, s{S_T1}, {cfg.P0}")
    a(f"s_mov_b32 s{S_DS}, s{S_T0}")
    a(f"s_mov_b32 s{S_DM}, m0")
    a(f"v_mov_b32 v{V_DMA}, v10")
    a(f"s_waitcnt vmcnt({cfg.P0})")
    a("s_branch L_ln1")
    a("L_dma_done:")
    a(f"s_mov_b32 s{S_DN}, 0")
    a(f"s_mov_b32 s{S_B0}, s{P_WS}")
    a(f"s_mov_b32 s{S_B0+1}, s{P_WS+1}")
    a(f"v_mov_b32 v{V_DMA}, 0")
    a("s_waitcnt vmcnt(0)")
    a("s_branch L_ln1")

    a("L_lowwaves:")
    a(f"v_lshlrev_b32 v12, 13, v3")
    a(f"v_lshlrev_b32 v11, 1, v3")
    a(f"v_xor_b32 v10, v2, v11")
    a(f"v_xor_b32 v11, 8, v10")
    a(f"v_lshl_add_u32 v10, v10, 4, v12")
    a(f"v_lshl_add_u32 v11, v11, 4, v12")
    a(f"s_lshl_b32 s{S_T0}, s{S_B}, 7")
    a(f"s_lshl_b32 s{S_T1}, s{S_W}, 5")
    a(f"s_add_u32 s{S_T0}, s{S_T0}, s{S_T1}")
    a(f"s_lshl_b32 s{S_T0}, s{S_T0}, 13")
    a(f"s_lshl_b32 s{S_T1}, s{S_H}, 8")
    a(f"s_add_u32 s{S_T0}, s{S_T0}, s{S_T1}")
    a(f"s_add_u32 s{S_B0}, s{P_WQ}, s{S_T0}")
    a(f"s_addc_u32 s{S_B0+1}, s{P_WQ+1}, 0")
    a(f"s_lshl_b32 s{S_T1}, s{S_W}, 13")
    a(f"s_add_u32 m0, s{S_T1}, {L_WQ}")
    a("s_nop 0")
    for n in range(8):
        a(f"global_load_lds_dwordx4 v{10+((n>>1)&1)}, {sr(S_B0,2)} {cfg.WFLAGS}")
        if n<7:
            a(f"s_add_u32 m0, m0, 1024")
            a(f"s_add_u32 s{S_B0}, s{S_B0}, {4*8192}")
            a(f"s_addc_u32 s{S_B0+1}, s{S_B0+1}, 0")
    if cfg.RING_EARLY:
        a(f"s_cmp_ge_u32 s{S_W}, {NSW}")
        a("s_cbranch_scc1 L_low_nostr")
        a(f"s_lshl_b32 s{S_KOFF}, s{S_W}, 12")
        for j in range(L): kload(j)
        a(f"s_waitcnt vmcnt({8+L})")
        a("s_branch L_ln1_low")
        a("L_low_nostr:")
    a(f"s_waitcnt vmcnt(8)")
    a("s_branch L_ln1_low")
    a("L_ln1_low:")
    a("L_ln1:")
    layernorm2(a, V_X, V_X+8, V_X+24, V_T)
    a(f"s_lshl_b32 s{S_T0}, s{S_B}, 3")
    a(f"v_subrev_u32 v10, s{S_T0}, v{V_LANE}")
    a(f"v_cmp_gt_u32 vcc, 8, v10")
    a(f"s_mul_i32 s{S_T1}, s{S_W}, {LNA_P}")
    a(f"s_add_u32 s{S_T1}, s{S_T1}, {L_LNA}")
    a(f"v_lshlrev_b32 v10, 5, v10")
    a(f"v_add_u32 v10, s{S_T1}, v10")
    a(f"s_and_saveexec_b64 {sr(S_EX,2)}, vcc")
    a(f"ds_write_b128 v10, {vr(V_X+24,4)}")
    a(f"ds_write_b128 v10, {vr(V_X+28,4)} offset:16")
    a(f"s_mov_b64 exec, {sr(S_EX,2)}")
    a(f"s_cmp_ge_u32 s{S_W}, 4")
    a("s_cbranch_scc1 L_b1")
    if cfg.RING_EARLY:
        a(f"s_cmp_ge_u32 s{S_W}, {NSW}")
        a("s_cbranch_scc1 L_b1_ns")
        a(f"s_waitcnt vmcnt({L})")
        a("s_branch L_b1")
        a("L_b1_ns:")
    a("s_waitcnt vmcnt(0)")
    a("L_b1:")
    a("s_waitcnt lgkmcnt(0)")
    a(f"s_cmp_lg_u32 s{S_W}, 0")
    a("s_cbranch_scc1 L_noqf")
    a(f"v_mov_b32 v10, {L_QF}")
    a(f"v_mov_b32 v11, 0")
    a(f"ds_write_b32 v10, v11")
    a("s_waitcnt lgkmcnt(0)")
    a("L_noqf:")
    a("s_barrier")
    stamp(a,cfg,1)
    a(f"s_add_u32 s{S_TAG}, s{S_TAG}, 1")
    a(f"s_addc_u32 s{S_TAG+1}, s{S_TAG+1}, 0")
    a(f"v_and_b32 v10, 1, v2")
    a(f"v_cmp_eq_u32 vcc, 1, v10")
    a(f"v_mov_b32 v11, 0xffff")
    a(f"v_mov_b32 v12, 0xffff0000")
    a(f"v_cndmask_b32 v11, v11, v12, vcc")
    a(f"v_lshrrev_b32 v10, 1, v2")
    for w in range(4):
        a(f"v_cmp_eq_u32 vcc, {w}, v10")
        a("s_nop 1")
        a(f"v_cndmask_b32 v{V_MASK+w}, 0, v11, vcc")
    a(f"v_mov_b32 v{V_MAX}, 0xff800000")
    a(f"s_mov_b32 s{S_SCALE}, 0x3db504f3")
    a(f"s_mov_b32 s{S_LOG2E}, 0x3fb8aa3b")
    for c in range(4):
        a(f"v_mov_b32 v{V_OACC+c}, 0")
    a(f"s_cmp_lt_u32 s{S_W}, 4")
    a("s_cbranch_scc1 L_q_low")
    emit_precompute(a,cfg)
    a(f"s_cmp_eq_u32 s{S_DN}, 0")
    a("s_cbranch_scc1 L_dma2_done")
    if cfg.DMAPAUSE:
        a(f"v_mov_b32 v10, {L_QF}")
        a(f"s_mov_b32 s{S_SPIN}, {cfg.SPIN}")
        a("L_dp_wait:")
        a(f"ds_read_b32 v11, v10")
        a("s_waitcnt lgkmcnt(0)")
        a(f"v_readfirstlane_b32 s{S_T0}, v11")
        a("s_nop 1")
        a(f"s_cmp_lg_u32 s{S_T0}, 0")
        a("s_cbranch_scc1 L_dma2_loop")
        a("s_sleep 2")
        a(f"s_sub_u32 s{S_SPIN}, s{S_SPIN}, 1")
        a(f"s_cmp_lg_u32 s{S_SPIN}, 0")
        a("s_cbranch_scc1 L_dp_wait")
    a("L_dma2_loop:")
    a(f"s_waitcnt vmcnt({cfg.P-1})")
    a(f"global_load_lds_dwordx4 v{V_DMA}, {sr(S_B0,2)} {cfg.WFLAGS}")
    a(f"s_add_u32 m0, m0, 1024")
    a(f"s_add_u32 s{S_B0}, s{S_B0}, s{S_DS}")
    a(f"s_addc_u32 s{S_B0+1}, s{S_B0+1}, 0")
    a(f"s_sub_u32 s{S_DN}, s{S_DN}, 1")
    a(f"s_cmp_lg_u32 s{S_DN}, 0")
    a("s_cbranch_scc1 L_dma2_loop")
    a("L_dma2_done:")
    a("s_waitcnt vmcnt(0)")
    stamp(a,cfg,13)
    emit_rdycheck(a,cfg)
    a("s_branch L_kdone")
    a("L_q_low:")
    if not cfg.RING_EARLY:
        a(f"s_cmp_ge_u32 s{S_W}, {NSW}")
        a("s_cbranch_scc1 L_ring_late_skip")
        a(f"s_lshl_b32 s{S_KOFF}, s{S_W}, 12")
        for j in range(L): kload(j)
        a("L_ring_late_skip:")
    a(f"s_cmp_ge_u32 s{S_W}, 2")
    a("s_cbranch_scc1 L_q_prod")
    emit_precompute(a,cfg)
    a(f"s_cmp_eq_u32 s{S_W}, 0")
    a("s_cbranch_scc1 L_q_w0")
    a("s_branch L_q_w1")
    a("L_q_prod:")
    a(f"v_and_b32 v10, 7, v{V_LANE}")
    a(f"v_mul_u32_u24 v10, {LNA_P}, v10")
    a(f"v_lshlrev_b32 v11, 4, v3")
    a(f"v_add_u32 v10, v10, v11")
    a(f"v_add_u32 v10, {L_LNA}, v10")
    for s_ in range(4):
        a(f"ds_read_b128 {vr(V_X+4*s_,4)}, v10 offset:{64*s_}")
    a(f"v_lshlrev_b32 v11, 3, v3")
    a(f"v_add_u32 v11, v11, v4")
    a(f"v_lshlrev_b32 v11, 8, v11")
    a(f"v_lshlrev_b32 v12, 3, v5")
    a(f"v_add3_u32 v11, v11, v12, {0}") if False else None
    a(f"v_add_u32 v11, v11, v12")
    a(f"v_add_u32 v11, {L_WQ}, v11")
    a(f"v_and_b32 v12, 1, v3")
    a(f"v_lshlrev_b32 v12, 2, v12")
    a(f"v_or_b32 v12, v12, v4")
    a(f"s_sub_u32 s{S_T4}, s{S_W}, 2")
    a(f"s_lshl_b32 s{S_T0}, s{S_T4}, 2")
    a(f"v_xor_b32 v12, s{S_T0}, v12")
    for tt in range(4):
        a(f"v_xor_b32 v13, {tt}, v12")
        a(f"v_lshl_add_u32 v{V_T+16+tt}, v13, 5, v11")
    for tt in range(4):
        for s_ in range(4):
            for hf in range(2):
                reg=V_RING+tt*16+s_*4+hf*2
                a(f"ds_read_b64_tr_b16 {vr(reg,2)}, v{V_T+16+tt} offset:{(32*s_+4*hf)*256}")
    a(f"s_lshl_b32 s{S_T0}, s{S_H}, 3")
    a(f"s_add_u32 s{S_T0}, s{S_T0}, s{S_B}")
    a(f"s_lshl_b32 s{S_T0}, s{S_T0}, 13")
    a(f"s_lshl_b32 s{S_T1}, s{S_T4}, 9")
    a(f"s_add_u32 s{S_T0}, s{S_T0}, s{S_T1}")
    a(f"s_add_u32 s{S_T0}, s{S_T0}, {W_QP}")
    a(f"v_lshlrev_b32 v10, 10, v2")
    a(f"v_lshlrev_b32 v11, 5, v3")
    a(f"v_add3_u32 v{V_QADDR}, v10, v11, s{S_T0}")
    G=V_X+16
    for tt in range(4):
        for hh in range(2):
            b=G+8*tt+4*hh
            a(f"v_mov_b32 v{b+2}, s{S_TAG}")
            a(f"v_mov_b32 v{b+3}, s{S_TAG+1}")
    a("s_waitcnt lgkmcnt(0)")
    for s_ in range(4):
        for tt in range(4):
            c = "0" if s_==0 else vr(V_T+4*tt,4)
            a(f"v_mfma_f32_16x16x32_bf16 {vr(V_T+4*tt,4)}, {vr(V_RING+tt*16+s_*4,4)}, {vr(V_X+4*s_,4)}, {c}")
    a("s_nop 7")
    for tt in range(4):
        for hh in range(2):
            b=G+8*tt+4*hh
            a(f"v_mov_b32 v{b}, v{V_T+4*tt+2*hh}")
            a(f"v_mov_b32 v{b+1}, v{V_T+4*tt+2*hh+1}")
    def qstores(fl):
        set_exec(a, "0x00ff00ff", "0x00ff00ff")
        for tt in range(4):
            for hh in range(2):
                a(f"global_store_dwordx4 v{V_QADDR}, {vr(G+8*tt+4*hh,4)}, {sr(P_WS,2)} offset:{128*tt+16*hh} {fl}")
        full_exec(a)
    qstores("" if cfg.QFAST else "sc1")
    stamp(a,cfg,13)
    if cfg.QFAST:
        a(f"v_mov_b32 v10, {L_QF}")
        a(f"s_mov_b32 s{S_SPIN}, {cfg.QWAIT}")
        a("L_qc_wait:")
        a("s_sleep 4")
        a(f"ds_read_b32 v11, v10")
        a("s_waitcnt lgkmcnt(0)")
        a(f"v_readfirstlane_b32 s{S_T0}, v11")
        a("s_nop 1")
        a(f"s_cmp_lg_u32 s{S_T0}, 0")
        a("s_cbranch_scc1 L_qc_go")
        a(f"s_sub_u32 s{S_SPIN}, s{S_SPIN}, 1")
        a(f"s_cmp_lg_u32 s{S_SPIN}, 0")
        a("s_cbranch_scc1 L_qc_wait")
        a("L_qc_go:")
        qstores("sc1")
    a(f"s_cmp_lg_u32 s{S_W}, 3")
    a("s_cbranch_scc1 L_q_prod2")
    emit_clears(a)
    a("s_waitcnt vmcnt(0)")
    emit_rdy(a)
    a("L_q_prod2:")
    emit_precompute(a,cfg)
    a(f"global_load_dwordx2 {vr(V_XRES,2)}, v9, {sr(P_X,2)}")
    a("s_branch L_kdone")
    a("L_q_w1:")
    if NSW<2:
        a("s_branch L_kdone")
    a(f"v_mov_b32 v10, {L_QF}")
    a(f"s_mov_b32 s{S_SPIN}, {cfg.SPIN}")
    a("L_qf_wait:")
    a(f"ds_read_b32 v11, v10")
    a("s_waitcnt lgkmcnt(0)")
    a(f"v_readfirstlane_b32 s{S_T0}, v11")
    a("s_nop 1")
    a(f"s_cmp_lg_u32 s{S_T0}, 0")
    a("s_cbranch_scc1 L_q_ready")
    a(f"s_sub_u32 s{S_SPIN}, s{S_SPIN}, 1")
    a(f"s_cmp_lg_u32 s{S_SPIN}, 0")
    a("s_cbranch_scc1 L_qf_wait")
    a("s_branch L_q_ready")
    a("L_q_w0:")
    a(f"s_lshl_b32 s{S_T0}, s{S_H}, 16")
    a(f"s_lshl_b32 s{S_T1}, s{S_B}, 10")
    a(f"s_add_u32 s{S_T0}, s{S_T0}, s{S_T1}")
    a(f"s_add_u32 s{S_T0}, s{S_T0}, {W_QP}")
    a(f"v_add_u32 v10, s{S_T0}, v{V_VOFF}")
    for j in range(8):
        a(f"v_add_u32 v{V_T+8+j}, {j*8192}, v10")
    PQ=V_X+16
    lp=a.label("qpoll"); dn=a.label("qok")
    a(f"s_mov_b32 s{S_SPIN}, {cfg.SPIN}")
    a(f"{lp}:")
    for j in range(8):
        a(f"global_load_dwordx4 {vr(PQ+4*j,4)}, v{V_T+8+j}, {sr(P_WS,2)} sc1")
    a("s_waitcnt vmcnt(0)")
    a(f"v_mov_b32 v11, 0")
    for j in range(8):
        a(f"v_xor_b32 v12, s{S_TAG}, v{PQ+4*j+2}")
        a(f"v_xor_b32 v13, s{S_TAG+1}, v{PQ+4*j+3}")
        a(f"v_or3_b32 v11, v11, v12, v13")
    a(f"v_cmp_ne_u32 vcc, 0, v11")
    a(f"s_cbranch_vccz {dn}")
    if cfg.QSLEEP: a(f"s_sleep {cfg.QSLEEP}")
    a(f"s_sub_u32 s{S_SPIN}, s{S_SPIN}, 1")
    a(f"s_cmp_lg_u32 s{S_SPIN}, 0")
    a(f"s_cbranch_scc1 {lp}")
    a(f"{dn}:")
    stamp(a,cfg,14)
    for j in range(1,8):
        a(f"v_add_f32 v{PQ}, v{PQ}, v{PQ+4*j}")
        a(f"v_add_f32 v{PQ+1}, v{PQ+1}, v{PQ+4*j+1}")
    a(f"v_cvt_pk_bf16_f32 v{PQ+2}, v{PQ}, v{PQ+1}")
    a(f"v_lshlrev_b32 v11, 2, v{V_LANE}")
    a(f"v_add_u32 v11, {L_QS}, v11")
    a(f"ds_write_b32 v11, v{PQ+2}")
    a("s_waitcnt lgkmcnt(0)")
    a(f"v_mov_b32 v10, {L_QF}")
    a(f"v_mov_b32 v11, 1")
    a(f"ds_write_b32 v10, v11")
    a("L_q_ready:")
    stamp(a,cfg,2)
    a(f"v_lshlrev_b32 v10, 2, v3")
    a(f"v_add_u32 v10, v10, v5")
    a(f"v_lshlrev_b32 v10, 4, v10")
    a(f"v_add_u32 v10, {L_QS}, v10")
    a(f"ds_read_b128 {vr(V_T,4)}, v10")
    a(f"s_lshl_b32 s{S_T0}, s{S_W}, 6")
    a(f"s_add_u32 s{S_T0}, s{S_T0}, {L_SC}")
    a(f"v_lshlrev_b32 v10, 4, v4")
    a(f"v_lshlrev_b32 v11, 2, v3")
    a(f"v_add3_u32 v{V_SCW}, v10, v11, s{S_T0}")
    a("s_waitcnt lgkmcnt(0)")
    for n in range(4):
        a(f"v_cmp_eq_u32 vcc, {n}, v4")
        a("s_nop 1")
        for c in range(4):
            a(f"v_cndmask_b32 v{V_QA+4*n+c}, 0, v{V_T+c}, vcc")
    import math
    PERK=L*4//math.gcd(L,4)
    def kbody(j, wait_n, reissue, sc_off):
        a(f"s_waitcnt vmcnt({wait_n})")
        n=j%4
        c="0" if n==0 else vr(V_SACC,4)
        a(f"v_mfma_f32_16x16x32_bf16 {vr(V_SACC,4)}, {vr(V_QA+4*n,4)}, {vr(V_RING+(j%L)*4,4)}, {c}")
        reissue()
        if n==3:
            a("s_nop 7")
            t=V_T
            a(f"v_mov_b32_dpp v{t}, v{V_SACC} quad_perm:[0,0,0,0] row_mask:0xf bank_mask:0xf")
            for q in range(1,4):
                a(f"v_add_f32_dpp v{t}, v{V_SACC+q}, v{t} quad_perm:[{q},{q},{q},{q}] row_mask:0xf bank_mask:0xf")
            round_bf16(a,t,t)
            a(f"v_mul_f32 v{t}, s{S_SCALE}, v{t}")
            round_bf16(a,t,t)
            a(f"v_max_f32 v{V_MAX}, v{V_MAX}, v{t}")
            a(f"ds_write_b32 v{V_SCW}, v{t} offset:{sc_off}")
    nloop=(NK-L)//PERK
    a(f"s_mov_b32 s{S_LOOP}, {nloop}")
    a("L_kloop:")
    for j in range(PERK):
        kbody(j, L-1, (lambda j=j: kload(j+L)), (j//4)*NSW*64)
    a(f"v_add_u32 v{V_SCW}, {(PERK//4)*NSW*64}, v{V_SCW}")
    a(f"s_sub_u32 s{S_LOOP}, s{S_LOOP}, 1")
    a(f"s_cmp_lg_u32 s{S_LOOP}, 0")
    a("s_cbranch_scc1 L_kloop")
    for j in range(nloop*PERK, NK):
        m=j+L
        ri=(lambda m=m: kload(m)) if m<NK else (lambda m=m: vload(m-NK, first=(m==NK)))
        kbody(j, L-1, ri, ((j-nloop*PERK)//4)*NSW*64)
    a("L_kdone:")
    stamp(a,cfg,3)
    wave_sum(a, V_MAX, V_T, op="max")
    a(f"s_lshl_b32 s{S_T0}, s{S_W}, 2")
    a(f"s_add_u32 s{S_T0}, s{S_T0}, {L_ML}")
    a(f"v_mov_b32 v11, s{S_T0}")
    a(f"ds_write_b32 v11, v{V_MAX}")
    a("s_waitcnt lgkmcnt(0)")
    a("s_barrier")
    a(f"s_cmp_lt_u32 s{S_W}, {NSW}")
    a("s_cbranch_scc1 L_nohv")
    a(f"s_sub_u32 s{S_T0}, s{S_W}, {NSW}")
    a(f"s_mul_i32 s{S_T0}, s{S_T0}, {HV*4096}")
    for t in range(HV):
        for n in range(4):
            a(f"buffer_load_dwordx4 {vr(V_RING+t*16+n*4,4)}, v{V_VOFF}, {sr(SRD_V,4)}, s{S_T0} offen offset:{n*1024} {cfg.VFLAGS}")
        if t<HV-1: a(f"s_add_u32 s{S_T0}, s{S_T0}, 4096")
    a("L_nohv:")
    a(f"s_lshl_b32 s{S_T0}, s{S_X}, 2")
    a(f"s_add_u32 s{S_T0}, s{S_T0}, {L_MODE}")
    a(f"v_mov_b32 v12, s{S_T0}")
    a(f"ds_read_b32 v13, v12")
    a(f"v_mov_b32 v11, {L_ML}")
    a(f"ds_read_b128 {vr(V_X,4)}, v11")
    a(f"ds_read_b128 {vr(V_X+4,4)}, v11 offset:16")
    a(f"s_lshl_b32 s{S_T4}, s{S_W}, 11")
    a(f"s_add_u32 s{S_T4}, s{S_T4}, {L_SC}")
    a(f"v_lshlrev_b32 v10, 5, v{V_LANE}")
    a(f"v_add_u32 v10, s{S_T4}, v10")
    a(f"ds_read_b128 {vr(V_T,4)}, v10")
    a(f"ds_read_b128 {vr(V_T+4,4)}, v10 offset:16")
    a("s_waitcnt lgkmcnt(2)")
    a(f"v_readfirstlane_b32 s{S_FAST}, v13")
    a(f"v_max3_f32 v{V_MAX}, v{V_X}, v{V_X+1}, v{V_X+2}")
    a(f"v_max3_f32 v{V_MAX}, v{V_MAX}, v{V_X+3}, v{V_X+4}")
    a(f"v_max3_f32 v{V_MAX}, v{V_MAX}, v{V_X+5}, v{V_X+6}")
    a(f"v_max_f32 v{V_MAX}, v{V_MAX}, v{V_X+7}")
    a("s_waitcnt lgkmcnt(0)")
    for i in range(8):
        a(f"v_sub_f32 v{V_T+8+i}, v{V_T+i}, v{V_MAX}")
        a(f"v_mul_f32 v{V_T+8+i}, s{S_LOG2E}, v{V_T+8+i}")
        a(f"v_exp_f32 v{V_T+8+i}, v{V_T+8+i}")
    a("s_nop 0")
    a(f"v_add_f32 v{V_T+16}, v{V_T+8}, v{V_T+9}")
    for i in range(2,8):
        a(f"v_add_f32 v{V_T+16}, v{V_T+16}, v{V_T+8+i}")
    wave_sum(a, V_T+16, V_T+17)
    a(f"s_lshl_b32 s{S_T0}, s{S_W}, 2")
    a(f"s_add_u32 s{S_T0}, s{S_T0}, {L_LS}")
    a(f"v_mov_b32 v11, s{S_T0}")
    a(f"ds_write_b32 v11, v{V_T+16}")
    a("s_waitcnt lgkmcnt(0)")
    a("s_barrier")
    a(f"v_mov_b32 v11, {L_LS}")
    a(f"ds_read_b128 {vr(V_X,4)}, v11")
    a(f"ds_read_b128 {vr(V_X+4,4)}, v11 offset:16")
    a("s_waitcnt lgkmcnt(0)")
    a(f"v_add_f32 v{V_T+16}, v{V_X}, v{V_X+1}")
    for k in range(2,8):
        a(f"v_add_f32 v{V_T+16}, v{V_T+16}, v{V_X+k}")
    a(f"v_rcp_f32 v{V_T+17}, v{V_T+16}")
    a("s_nop 0")
    a(f"v_fma_f32 v{V_T+18}, -v{V_T+16}, v{V_T+17}, 1.0")
    a(f"v_fma_f32 v{V_T+17}, v{V_T+18}, v{V_T+17}, v{V_T+17}")
    for i in range(8):
        a(f"v_mul_f32 v{V_T+8+i}, v{V_T+8+i}, v{V_T+17}")
        a(f"v_cvt_pk_bf16_f32 v{V_T+8+i}, v{V_T+8+i}, v{V_T+8+i}")
    a(f"ds_write_b128 v10, {vr(V_T+8,4)}")
    a(f"ds_write_b128 v10, {vr(V_T+12,4)} offset:16")
    a("s_waitcnt lgkmcnt(0)")
    a("s_barrier")
    stamp(a,cfg,4)
    def ands(dst,pp):
        for w in range(4):
            a(f"v_and_b32 v{dst+w}, v{pp}, v{V_MASK+w}")
    a(f"s_cmp_lt_u32 s{S_W}, {NSW}")
    a("s_cbranch_scc1 L_vstream")
    a(f"s_sub_u32 s{S_T0}, s{S_W}, {NSW}")
    a(f"s_mul_i32 s{S_T0}, s{S_T0}, {HV*64}")
    a(f"s_add_u32 s{S_T0}, s{S_T0}, {L_SC}")
    a(f"v_lshlrev_b32 v10, 4, v3")
    a(f"v_add_u32 v10, s{S_T0}, v10")
    for t in range(HV):
        a(f"ds_read_b128 {vr(V_PP0,4)}, v10 offset:{t*64}")
        a(f"s_waitcnt vmcnt({4*(HV-1-t)}) lgkmcnt(0)")
        for n in range(4):
            A=V_A0 if n%2==0 else V_A1
            ands(A,V_PP0+n)
            a("s_nop 1")
            a(f"v_mfma_f32_16x16x32_bf16 {vr(V_OACC,4)}, {vr(A,4)}, {vr(V_RING+t*16+4*n,4)}, {vr(V_OACC,4)}")
    a("s_nop 7")
    set_exec(a, -1, 0)
    a(f"ds_write_b128 v{PA_OW}, {vr(V_OACC,4)}")
    full_exec(a)
    frag_reads(a,"ogd")
    a("s_waitcnt vmcnt(0) lgkmcnt(0)")
    a("s_branch L_vdone")
    a("L_vstream:")
    a(f"s_add_u32 s{S_T0}, s{S_W}, {NH*HV}")
    a(f"s_lshl_b32 s{S_T0}, s{S_T0}, 6")
    a(f"s_add_u32 s{S_T0}, s{S_T0}, {L_SC}")
    a(f"v_lshlrev_b32 v10, 4, v3")
    a(f"v_add_u32 v{V_PPR}, s{S_T0}, v10")
    a(f"ds_read_b128 {vr(V_PP0,4)}, v{V_PPR}")
    so=NK%L
    def vbody(jv, wait_n, reissue, tile_rel, last_tile):
        n=jv%4
        par=(jv//4)%2
        pp = V_PP0 if par==0 else V_PP1
        ppn = V_PP1 if par==0 else V_PP0
        if n==0:
            if not last_tile:
                a(f"ds_read_b128 {vr(ppn,4)}, v{V_PPR} offset:{(tile_rel+1)*NSW*64}")
                a(f"s_waitcnt lgkmcnt(1)")
            else:
                a(f"s_waitcnt lgkmcnt(0)")
        A=V_A0 if n%2==0 else V_A1
        ands(A,pp+n)
        a(f"s_waitcnt vmcnt({wait_n})")
        a("s_nop 0")
        a(f"v_mfma_f32_16x16x32_bf16 {vr(V_OACC,4)}, {vr(A,4)}, {vr(V_RING+((so+jv)%L)*4,4)}, {vr(V_OACC,4)}")
        if reissue: reissue()
    PERV=PERK if (PERK//4)%2==0 else 2*PERK
    nloopv=(NV-L-(4*cfg.RAMP+2*L if cfg.RAMP else 0))//PERV
    a(f"s_mov_b32 s{S_LOOP}, {nloopv}")
    a("L_vloop:")
    for jv in range(PERV):
        vbody(jv, L-1, (lambda jv=jv: vload(jv+L)), jv//4, False)
    a(f"v_add_u32 v{V_PPR}, {(PERV//4)*NSW*64}, v{V_PPR}")
    a(f"s_sub_u32 s{S_LOOP}, s{S_LOOP}, 1")
    a(f"s_cmp_lg_u32 s{S_LOOP}, 0")
    a("s_cbranch_scc1 L_vloop")
    start=nloopv*PERV
    slot_of={}
    for jv in range(start, min(start+L,NV)): slot_of[jv]=(so+jv)%L
    issued=min(start+L,NV)
    free_extra=[L+i for i in range(L)] if cfg.RAMP else []
    vq=[("v",jv) for jv in range(start,issued)]
    def issue_v(jn, slot):
        reg=V_RING+slot*4
        a(f"buffer_load_dwordx4 {vr(reg,4)}, v{V_VOFF}, {sr(SRD_V,4)}, s{S_KOFF} offen offset:{(jn%4)*1024} {cfg.VFLAGS}")
        if jn%4==3: a(f"s_add_u32 s{S_KOFF}, s{S_KOFF}, {TSTEP}")
        slot_of[jn]=slot; vq.append(("v",jn))
    ramp_at=NV-4*cfg.RAMP-2*L if cfg.RAMP else None
    for jv in range(start, NV):
        if cfg.RAMP and jv==max(start,ramp_at):
            while free_extra and issued<NV:
                issue_v(issued, free_extra.pop(0)); issued+=1
        n=jv%4; par=(jv//4)%2
        pp = V_PP0 if par==0 else V_PP1
        ppn = V_PP1 if par==0 else V_PP0
        rel=(jv-start)//4
        if n==0:
            if jv//4!=VT-1:
                a(f"ds_read_b128 {vr(ppn,4)}, v{V_PPR} offset:{(rel+1)*NSW*64}")
                a(f"s_waitcnt lgkmcnt(1)")
            else:
                a(f"s_waitcnt lgkmcnt(0)")
        A=V_A0 if n%2==0 else V_A1
        ands(A,pp+n)
        idx=vq.index(("v",jv))
        a(f"s_waitcnt vmcnt({len(vq)-1-idx})")
        a("s_nop 0")
        a(f"v_mfma_f32_16x16x32_bf16 {vr(V_OACC,4)}, {vr(A,4)}, {vr(V_RING+slot_of[jv]*4,4)}, {vr(V_OACC,4)}")
        if issued<NV:
            issue_v(issued, slot_of[jv]); issued+=1
    a("L_vdone:")
    stamp(a,cfg,5)
    return a, None

PA=208
PA_O=PA+0; PA_T2=PA+1; PA_DW=PA+2; PA_R2=PA+3; PA_P2=PA+4; PA_T3A=PA+5; PA_T3B=PA+6; PA_T3W=PA+7; PA_T3R=PA+8; PA_H=PA+9
PA_T4=PA+10; PA_LNBW=PA+11; PA_HSW=PA+12; PA_LNBR=PA+13; PA_GP=PA+14; PA_ACT=PA+15; PA_T6=PA+16; PA_OUT=PA+17; PA_HSR=PA+18
PA_OW=PA+19; PA_OR=PA+20; PA_TR=PA+21
PA_T5B=PA+24
PA_T7=PA+28
V_XRES=PA+36
V_RDY=PA+40
SM_LNB=8; SM_HS=10
R_T1=2; R_RED0=2
R_W0=3

def emit_precompute(a, cfg):
    global SM_LNB, SM_HS
    T0,T1,T2,T3,T4,T5=S_T0,S_T1,S_T2,S_T3,S_T4,S_T5
    a(f"s_lshl_b32 s{T0}, s{S_H}, 3")
    a(f"s_add_u32 s{T0}, s{T0}, s{S_B}")
    a(f"s_lshl_b32 s{T0}, s{T0}, 8")
    a(f"s_add_u32 s{T0}, s{T0}, {W_OB}")
    a(f"v_lshlrev_b32 v10, 2, v{V_LANE}")
    a(f"v_add_u32 v{PA_O}, s{T0}, v10")
    a(f"s_lshl_b32 s{T0}, s{S_W}, 9")
    a(f"s_add_u32 s{T0}, s{T0}, {L_RED}")
    a(f"v_lshlrev_b32 v11, 5, v2")
    a(f"v_lshlrev_b32 v12, 4, v3")
    a(f"v_add3_u32 v{PA_OW}, v11, v12, s{T0}")
    a(f"v_lshlrev_b32 v11, 3, v{V_LANE}")
    a(f"v_add_u32 v{PA_OR}, {L_RED}, v11")
    a(f"v_lshlrev_b32 v11, 3, v3")
    a(f"v_add_u32 v11, v11, v4")
    a(f"v_lshlrev_b32 v11, 7, v11")
    a(f"v_lshlrev_b32 v13, 3, v5")
    a(f"v_add_u32 v{PA_TR}, v11, v13")
    a(f"s_lshr_b32 s{T4}, s{S_R}, 4")
    a(f"s_and_b32 s{T5}, s{S_R}, 15")
    a(f"v_and_b32 v14, 7, v{V_LANE}")
    a(f"s_lshl_b32 s{T0}, s{S_X}, 2")
    a(f"s_lshl_b32 s{T1}, s{T4}, 1")
    a(f"s_add_u32 s{T0}, s{T0}, s{T1}")
    a(f"s_lshr_b32 s{T1}, s{S_W}, 2")
    a(f"s_add_u32 s{T0}, s{T0}, s{T1}")
    a(f"s_lshl_b32 s{T0}, s{T0}, 11")
    a(f"s_and_b32 s{T1}, s{S_W}, 3")
    a(f"s_lshl_b32 s{T1}, s{T1}, 6")
    a(f"s_add_u32 s{T0}, s{T0}, s{T1}")
    a(f"s_add_u32 s{T0}, s{T0}, {W_OB}")
    a(f"v_lshlrev_b32 v10, 8, v14")
    a(f"v_add3_u32 v{PA_T2}, v10, v12, s{T0}")
    a(f"s_lshl_b32 s{T0}, s{S_W}, 11")
    a(f"s_add_u32 s{T0}, s{T0}, {L_SC}")
    a(f"v_lshlrev_b32 v10, 8, v2")
    a(f"v_xor_b32 v11, v3, v5")
    a(f"v_lshlrev_b32 v11, 4, v11")
    a(f"v_add3_u32 v{PA_DW}, v10, v11, s{T0}")
    a(f"s_sub_u32 s{T0}, s{S_W}, {R_RED0}")
    a(f"s_lshl_b32 s{T0}, s{T0}, 6")
    a(f"v_add_u32 v10, s{T0}, v{V_LANE}")
    a(f"v_and_b32 v10, 127, v10")
    a(f"v_lshrrev_b32 v11, 4, v10")
    a(f"v_and_b32 v13, 3, v11")
    a(f"v_xor_b32 v13, v13, v10")
    a(f"v_lshlrev_b32 v13, 4, v13")
    a(f"v_add_u32 v{PA_R2}, {L_SC}, v13")
    a(f"s_lshl_b32 s{T0}, s{S_X}, 1")
    a(f"s_add_u32 s{T0}, s{T0}, s{T4}")
    a(f"s_lshl_b32 s{T0}, s{T0}, 15")
    a(f"s_lshl_b32 s{T1}, s{T5}, 8")
    a(f"s_add_u32 s{T0}, s{T0}, s{T1}")
    a(f"s_add_u32 s{T0}, s{T0}, {W_AP}")
    a(f"v_lshrrev_b32 v11, 4, v10")
    a(f"v_lshlrev_b32 v11, 12, v11")
    a(f"v_lshlrev_b32 v13, 4, v2")
    a(f"v_add3_u32 v{PA_P2}, v11, v13, s{T0}")
    a(f"s_lshr_b32 s{T0}, s{S_R}, 2")
    a(f"s_lshl_b32 s{T0}, s{T0}, 12")
    a(f"s_and_b32 s{T1}, s{S_R}, 3")
    a(f"s_lshl_b32 s{T1}, s{T1}, 10")
    a(f"s_add_u32 s{T0}, s{T0}, s{T1}")
    a(f"s_lshl_b32 s{T1}, s{S_W}, 16")
    a(f"s_add_u32 s{T0}, s{T0}, s{T1}")
    a(f"s_add_u32 s{T0}, s{T0}, {W_AP}")
    a(f"v_add_u32 v{PA_T3A}, s{T0}, v{V_VOFF}")
    a(f"v_add_u32 v{PA_T3B}, 32768, v{PA_T3A}")
    RED3=L_RED+4096
    a(f"s_lshl_b32 s{T0}, s{S_W}, 10")
    a(f"s_add_u32 s{T0}, s{T0}, {RED3}")
    a(f"v_add_u32 v{PA_T3W}, s{T0}, v{V_VOFF}")
    a(f"v_add_u32 v{PA_T3R}, {RED3}, v{V_VOFF}")
    a(f"s_lshr_b32 s{T0}, s{S_R}, 2")
    a(f"s_lshl_b32 s{T1}, s{S_X}, 3")
    a(f"s_add_u32 s{T0}, s{T0}, s{T1}")
    a(f"s_lshl_b32 s{T0}, s{T0}, 11")
    a(f"s_and_b32 s{T1}, s{S_R}, 3")
    a(f"s_lshl_b32 s{T1}, s{T1}, 9")
    a(f"s_add_u32 s{T0}, s{T0}, s{T1}")
    a(f"s_add_u32 s{T0}, s{T0}, {W_HB}")
    a(f"v_lshlrev_b32 v10, 3, v{V_LANE}")
    a(f"v_add_u32 v{PA_H}, s{T0}, v10")
    a(f"s_lshr_b32 s{T0}, s{S_R}, 2")
    a(f"s_lshl_b32 s{T0}, s{T0}, 11")
    a(f"s_add_u32 s{T0}, s{T0}, s{T1}")
    a(f"v_add_u32 v9, s{T0}, v10")
    a(f"s_lshl_b32 s{T0}, s{S_X}, 3")
    a(f"s_add_u32 s{T0}, s{T0}, s{S_W}")
    a(f"s_lshl_b32 s{T0}, s{T0}, 11")
    a(f"s_add_u32 s{T0}, s{T0}, {W_HB}")
    a(f"v_lshlrev_b32 v10, 5, v{V_LANE}")
    a(f"v_add_u32 v{PA_T4}, s{T0}, v10")
    a(f"s_mul_i32 s{T2}, s{S_R}, 37")
    a(f"s_lshr_b32 s{T2}, s{T2}, 8")
    a(f"s_mul_i32 s{T3}, s{T2}, 7")
    a(f"s_sub_u32 s{T3}, s{S_R}, s{T3}")
    a(f"s_lshl_b32 s{T0}, s{T2}, 4")
    a(f"v_subrev_u32 v10, s{T0}, v{V_LANE}")
    a(f"v_cmp_gt_u32 {sr(SM_LNB,2)}, 16, v10")
    a(f"s_mul_i32 s{T1}, s{S_W}, {LNB_P}")
    a(f"s_add_u32 s{T1}, s{T1}, {L_LNB}")
    a(f"v_lshlrev_b32 v10, 5, v10")
    a(f"v_add_u32 v{PA_LNBW}, s{T1}, v10")
    a(f"s_lshl_b32 s{T0}, s{S_R}, 1")
    a(f"v_subrev_u32 v10, s{T0}, v{V_LANE}")
    a(f"v_cmp_gt_u32 {sr(SM_HS,2)}, 2, v10")
    a(f"v_lshlrev_b32 v10, 5, v10")
    a(f"v_add_u32 v{PA_HSW}, {L_HS}, v10")
    a(f"v_mul_u32_u24 v10, {LNB_P}, v14")
    a(f"v_add_u32 v10, v10, v12")
    a(f"v_add_u32 v{PA_LNBR}, {L_LNB}, v10")
    a(f"s_mul_i32 s{T0}, s{S_X}, 28")
    a(f"s_add_u32 s{T0}, s{T0}, s{S_R}")
    a(f"s_lshl_b32 s{T0}, s{T0}, 12")
    a(f"s_lshr_b32 s{T1}, s{S_W}, 2")
    a(f"s_lshl_b32 s{T1}, s{T1}, 11")
    a(f"s_add_u32 s{T0}, s{T0}, s{T1}")
    a(f"s_and_b32 s{T1}, s{S_W}, 3")
    a(f"s_lshl_b32 s{T1}, s{T1}, 6")
    a(f"s_add_u32 s{T0}, s{T0}, s{T1}")
    a(f"s_add_u32 s{T0}, s{T0}, {W_GP}")
    a(f"v_lshlrev_b32 v10, 8, v2")
    a(f"v_add3_u32 v{PA_GP}, v10, v12, s{T0}")
    a(f"s_mul_i32 s{T0}, s{S_X}, 28")
    a(f"s_add_u32 s{T0}, s{T0}, s{T3}")
    a(f"s_lshl_b32 s{T0}, s{T0}, 12")
    a(f"s_lshl_b32 s{T1}, s{T2}, 9")
    a(f"s_add_u32 s{T0}, s{T0}, s{T1}")
    a(f"s_add_u32 s{T0}, s{T0}, {W_GP}")
    a(f"v_lshrrev_b32 v10, 5, v{V_LANE}")
    a(f"v_and_b32 v11, 31, v{V_LANE}")
    a(f"v_lshlrev_b32 v13, 8, v10")
    a(f"v_lshlrev_b32 v15, 3, v11")
    a(f"v_add3_u32 v{PA_T5B}, v13, v15, s{T0}")
    for k in range(1,4):
        a(f"v_add_u32 v{PA_T5B+k}, {k*7*4096}, v{PA_T5B}")
    a(f"s_lshl_b32 s{T0}, s{S_X}, 3")
    a(f"s_lshl_b32 s{T1}, s{T2}, 1")
    a(f"s_add_u32 s{T0}, s{T0}, s{T1}")
    a(f"s_mul_i32 s{T0}, s{T0}, 896")
    a(f"s_lshl_b32 s{T1}, s{T3}, 7")
    a(f"s_add_u32 s{T0}, s{T0}, s{T1}")
    a(f"s_add_u32 s{T0}, s{T0}, {W_ACT}")
    a(f"v_mul_u32_u24 v13, 896, v10")
    a(f"v_lshlrev_b32 v15, 2, v11")
    a(f"v_add3_u32 v{PA_ACT}, v13, v15, s{T0}")
    a(f"s_mul_i32 s{T0}, s{S_X}, {8*896}")
    a(f"s_mul_i32 s{T1}, s{T4}, 448")
    a(f"s_add_u32 s{T0}, s{T0}, s{T1}")
    a(f"s_lshl_b32 s{T1}, s{S_W}, 6")
    a(f"s_add_u32 s{T0}, s{T0}, s{T1}")
    a(f"s_add_u32 s{T0}, s{T0}, {W_ACT}")
    a(f"v_mul_u32_u24 v13, 896, v14")
    a(f"v_add3_u32 v{PA_T6}, v13, v12, s{T0}")
    a(f"s_lshl_b32 s{T0}, s{S_X}, 12")
    a(f"s_lshl_b32 s{T1}, s{S_R}, 7")
    a(f"s_add_u32 s{T0}, s{T0}, s{T1}")
    a(f"s_add_u32 s{T0}, s{T0}, {W_DP}")
    a(f"v_lshlrev_b32 v13, 18, v10")
    a(f"v_lshlrev_b32 v15, 2, v11")
    a(f"v_add3_u32 v{PA_T7}, v13, v15, s{T0}")
    for k in range(1,8):
        a(f"v_add_u32 v{PA_T7+k}, {k*32768}, v{PA_T7}")
    a(f"s_lshl_b32 s{T0}, s{S_X}, 11")
    a(f"s_lshl_b32 s{T1}, s{S_R}, 6")
    a(f"s_add_u32 s{T0}, s{T0}, s{T1}")
    a(f"v_lshlrev_b32 v15, 1, v11")
    a(f"v_add_u32 v{PA_OUT}, s{T0}, v15")
    a(f"v_add_u32 v{PA_HSR}, {L_HS}, v15")

def emit_rdycheck(a, cfg):
    a(f"s_sub_u32 s{S_T0}, s{S_W}, 4")
    a(f"s_lshl_b32 s{S_T0}, s{S_T0}, 10")
    a(f"s_add_u32 s{S_T0}, s{S_T0}, {W_RDY}")
    a(f"v_add_u32 v10, s{S_T0}, v{V_VOFF}")
    lp=a.label("rdy"); dn=a.label("rdyok")
    a(f"s_mov_b32 s{S_SPIN}, {cfg.SPIN}")
    a(f"{lp}:")
    a(f"global_load_dwordx4 {vr(V_RDY,4)}, v10, {sr(P_WS,2)} sc1")
    a("s_waitcnt vmcnt(0)")
    a(f"v_xor_b32 v11, s{S_TAG}, v{V_RDY+2}")
    a(f"v_xor_b32 v15, s{S_TAG+1}, v{V_RDY+3}")
    a(f"v_or_b32 v11, v11, v15")
    a(f"v_cmp_ne_u32 vcc, 0, v11")
    a(f"s_cbranch_vccz {dn}")
    a("s_sleep 16")
    a(f"s_sub_u32 s{S_SPIN}, s{S_SPIN}, 1")
    a(f"s_cmp_lg_u32 s{S_SPIN}, 0")
    a(f"s_cbranch_scc1 {lp}")
    a(f"{dn}:")
    a(f"v_readlane_b32 s{S_T0}, v{V_RDY}, 0")
    a(f"v_readlane_b32 s{S_T1}, v{V_RDY}, 32")
    a("s_nop 1")
    a(f"v_cmp_ne_u32 vcc, s{S_T0}, v{V_RDY}")
    a(f"v_cmp_ne_u32 {sr(S_B1,2)}, s{S_T1}, v{V_RDY}")
    a("s_nop 1")
    f=1 if cfg.FASTMODE else 0
    a(f"s_cmp_eq_u32 vcc_lo, 0")
    a(f"s_cselect_b32 s{S_T2}, {f}, 0")
    a(f"s_cmp_eq_u32 s{S_B1+1}, 0")
    a(f"s_cselect_b32 s{S_T3}, {f}, 0")
    a(f"s_sub_u32 s{S_T0}, s{S_W}, 4")
    a(f"s_lshl_b32 s{S_T0}, s{S_T0}, 3")
    a(f"s_add_u32 s{S_T0}, s{S_T0}, {L_MODE}")
    a(f"v_mov_b32 v10, s{S_T0}")
    a(f"v_mov_b32 v12, s{S_T2}")
    a(f"v_mov_b32 v13, s{S_T3}")
    a(f"ds_write_b64 v10, v[12:13]")

def poll_masked(a, name, loads, regs, cfg, tmp):
    lp=a.label(name+"_poll"); dn=a.label(name+"_ok")
    a(f"s_mov_b64 {sr(S_EX,2)}, exec")
    a(f"s_mov_b32 s{S_SPIN}, {cfg.SPIN}")
    a(f"{lp}:")
    loads()
    a("s_waitcnt vmcnt(0)")
    rs=list(regs)
    if len(rs)>=3:
        a(f"v_max3_u32 v{tmp}, v{rs[0]}, v{rs[1]}, v{rs[2]}"); i=3
    else:
        a(f"v_max_u32 v{tmp}, v{rs[0]}, v{rs[1]}"); i=2
    while i<len(rs):
        if i+1<len(rs):
            a(f"v_max3_u32 v{tmp}, v{tmp}, v{rs[i]}, v{rs[i+1]}"); i+=2
        else:
            a(f"v_max_u32 v{tmp}, v{tmp}, v{rs[i]}"); i+=1
    a(f"v_cmp_eq_u32 vcc, -1, v{tmp}")
    a(f"s_mov_b64 exec, vcc")
    a(f"s_cbranch_execz {dn}")
    if cfg.PSLEEP: a(f"s_sleep {cfg.PSLEEP}")
    a(f"s_sub_u32 s{S_SPIN}, s{S_SPIN}, 1")
    a(f"s_cmp_lg_u32 s{S_SPIN}, 0")
    a(f"s_cbranch_scc1 {lp}")
    a(f"{dn}:")
    a(f"s_mov_b64 exec, {sr(S_EX,2)}")

def frag_reads(a, which):
    WB=V_RING; WO_F=WB; GU_F=WB+16; WD_F=WB+48
    if "o" in which:
        a(f"s_lshl_b32 s{S_T0}, s{S_W}, 12")
        a(f"s_add_u32 s{S_T1}, s{S_T0}, {L_WO}")
        a(f"v_add_u32 v13, s{S_T1}, v{PA_TR}")
        for t in range(4):
            for hf in range(2):
                a(f"ds_read_b64_tr_b16 {vr(WO_F+4*t+2*hf,2)}, v13 offset:{hf*4*128+32*t}")
    if "g" in which:
        a(f"s_lshr_b32 s{S_T0}, s{S_W}, 2")
        a(f"s_lshl_b32 s{S_T0}, s{S_T0}, 15")
        a(f"s_and_b32 s{S_T1}, s{S_W}, 3")
        a(f"s_lshl_b32 s{S_T1}, s{S_T1}, 5")
        a(f"s_add_u32 s{S_T0}, s{S_T0}, s{S_T1}")
        a(f"s_add_u32 s{S_T0}, s{S_T0}, {L_WG}")
        a(f"v_add_u32 v15, s{S_T0}, v{PA_TR}")
        for s in range(8):
            for hf in range(2):
                a(f"ds_read_b64_tr_b16 {vr(GU_F+4*s+2*hf,2)}, v15 offset:{(32*s+4*hf)*128}")
    if "d" in which:
        a(f"s_lshl_b32 s{S_T0}, s{S_W}, 12")
        a(f"s_add_u32 s{S_T1}, s{S_T0}, {L_WD}")
        a(f"v_add_u32 v11, s{S_T1}, v{PA_TR}")
        for t in range(4):
            for hf in range(2):
                a(f"ds_read_b64_tr_b16 {vr(WD_F+4*t+2*hf,2)}, v11 offset:{hf*4*128+32*t}")

def layernorm2(a, vin, vf, vout, t):
    for i in range(8):
        a(f"v_lshlrev_b32 v{vf+2*i}, 16, v{vin+i}")
        a(f"v_and_b32 v{vf+2*i+1}, 0xffff0000, v{vin+i}")
    a(f"v_readfirstlane_b32 s{S_T4}, v{vf}")
    a("s_nop 1")
    a(f"v_mov_b32 v{t+6}, s{S_T4}")
    a(f"v_mov_b32 v{t+7}, s{S_T4}")
    for i in range(8):
        a(f"v_pk_add_f32 {vr(vf+2*i,2)}, {vr(vf+2*i,2)}, {vr(t+6,2)} neg_lo:[0,1] neg_hi:[0,1]")
    a(f"v_pk_add_f32 {vr(t,2)}, {vr(vf,2)}, {vr(vf+2,2)}")
    a(f"v_pk_mul_f32 {vr(t+2,2)}, {vr(vf,2)}, {vr(vf,2)}")
    a(f"v_pk_fma_f32 {vr(t+2,2)}, {vr(vf+2,2)}, {vr(vf+2,2)}, {vr(t+2,2)}")
    for i in range(2,8):
        a(f"v_pk_add_f32 {vr(t,2)}, {vr(t,2)}, {vr(vf+2*i,2)}")
        a(f"v_pk_fma_f32 {vr(t+2,2)}, {vr(vf+2*i,2)}, {vr(vf+2*i,2)}, {vr(t+2,2)}")
    a(f"v_add_f32 v{t}, v{t}, v{t+1}")
    a(f"v_add_f32 v{t+2}, v{t+2}, v{t+3}")
    for k in (8,4,2,1):
        a("s_nop 0")
        a(f"v_add_f32_dpp v{t}, v{t}, v{t} row_ror:{k} row_mask:0xf bank_mask:0xf")
        a("s_nop 0") if False else None
        a(f"v_add_f32_dpp v{t+2}, v{t+2}, v{t+2} row_ror:{k} row_mask:0xf bank_mask:0xf")
    a(f"v_mov_b32 v{t+1}, v{t}")
    a(f"v_mov_b32 v{t+3}, v{t+2}")
    a("s_nop 1")
    a(f"v_permlane16_swap_b32 v{t}, v{t+1}")
    a(f"v_permlane16_swap_b32 v{t+2}, v{t+3}")
    a("s_nop 1")
    a(f"v_add_f32 v{t}, v{t}, v{t+1}")
    a(f"v_add_f32 v{t+2}, v{t+2}, v{t+3}")
    a(f"v_mov_b32 v{t+1}, v{t}")
    a(f"v_mov_b32 v{t+3}, v{t+2}")
    a("s_nop 1")
    a(f"v_permlane32_swap_b32 v{t}, v{t+1}")
    a(f"v_permlane32_swap_b32 v{t+2}, v{t+3}")
    a("s_nop 1")
    a(f"v_add_f32 v{t}, v{t}, v{t+1}")
    a(f"v_add_f32 v{t+2}, v{t+2}, v{t+3}")
    a(f"v_mul_f32 v{t}, 0x3a800000, v{t}")
    a(f"v_mul_f32 v{t+2}, 0x3a800000, v{t+2}")
    a(f"v_fma_f32 v{t+2}, -v{t}, v{t}, v{t+2}")
    a(f"v_add_f32 v{t}, v{t}, v{t+6}")
    a(f"v_max_f32 v{t+2}, 0, v{t+2}")
    a(f"v_cvt_pk_bf16_f32 v{t}, v{t}, v{t+2}")
    a(f"v_and_b32 v{t+2}, 0xffff0000, v{t}")
    a(f"v_lshlrev_b32 v{t}, 16, v{t}")
    a(f"v_add_f32 v{t+2}, 0x3727c5ac, v{t+2}")
    round_bf16(a, t+2, t+2)
    a(f"v_sqrt_f32 v{t+2}, v{t+2}")
    a(f"v_mov_b32 v{t+1}, v{t}")
    round_bf16(a, t+2, t+2)
    a(f"v_rcp_f32 v{t+2}, v{t+2}")
    a("s_nop 0")
    a(f"v_mov_b32 v{t+3}, v{t+2}")
    for i in range(8):
        a(f"v_lshlrev_b32 v{vf+2*i}, 16, v{vin+i}")
        a(f"v_and_b32 v{vf+2*i+1}, 0xffff0000, v{vin+i}")
        a(f"v_pk_add_f32 {vr(vf+2*i,2)}, {vr(vf+2*i,2)}, {vr(t,2)} neg_lo:[0,1] neg_hi:[0,1]")
        a(f"v_cvt_pk_bf16_f32 v{t+4}, v{vf+2*i}, v{vf+2*i+1}")
        a(f"v_lshlrev_b32 v{vf+2*i}, 16, v{t+4}")
        a(f"v_and_b32 v{vf+2*i+1}, 0xffff0000, v{t+4}")
        a(f"v_pk_mul_f32 {vr(vf+2*i,2)}, {vr(vf+2*i,2)}, {vr(t+2,2)}")
        a(f"v_cvt_pk_bf16_f32 v{vout+i}, v{vf+2*i}, v{vf+2*i+1}")

def gen_tail(a, cfg):
    WB=V_RING; WO_F=WB; GU_F=WB+16; WD_F=WB+48
    TT=V_RING+64
    TMP=V_T+23
    NSW=cfg.NSW
    a(f"s_cmp_ge_u32 s{S_W}, {NSW}")
    a("s_cbranch_scc1 L_t0_b5")
    a("s_nop 7")
    set_exec(a, -1, 0)
    a(f"ds_write_b128 v{PA_OW}, {vr(V_OACC,4)}")
    full_exec(a)
    a("s_waitcnt lgkmcnt(0)")
    a("L_t0_b5:")
    a("s_barrier")
    a(f"s_cmp_lg_u32 s{S_W}, {R_T1}")
    a("s_cbranch_scc1 L_t1_done")
    for w in range(8):
        a(f"ds_read_b64 {vr(TT+2*w,2)}, v{PA_OR} offset:{w*512}")
    a("s_waitcnt lgkmcnt(0)")
    a(f"v_pk_add_f32 {vr(TT,2)}, {vr(TT,2)}, {vr(TT+2,2)}")
    a(f"v_pk_add_f32 {vr(TT+4,2)}, {vr(TT+4,2)}, {vr(TT+6,2)}")
    a(f"v_pk_add_f32 {vr(TT+8,2)}, {vr(TT+8,2)}, {vr(TT+10,2)}")
    a(f"v_pk_add_f32 {vr(TT+12,2)}, {vr(TT+12,2)}, {vr(TT+14,2)}")
    a(f"v_pk_add_f32 {vr(TT,2)}, {vr(TT,2)}, {vr(TT+4,2)}")
    a(f"v_pk_add_f32 {vr(TT+8,2)}, {vr(TT+8,2)}, {vr(TT+12,2)}")
    a(f"v_pk_add_f32 {vr(TT,2)}, {vr(TT,2)}, {vr(TT+8,2)}")
    a(f"v_cvt_pk_bf16_f32 v{TT}, v{TT}, v{TT+1}")
    a(f"v_min_u32 v{TT}, -2, v{TT}")
    store_mode(a, f"global_store_dword v{PA_O}, v{TT}, {sr(P_WS,2)}", True)
    a("L_t1_done:")
    stamp(a,cfg,6)
    a(f"s_cmp_ge_u32 s{S_W}, {NSW}")
    a("s_cbranch_scc1 L_t2_go")
    frag_reads(a,"ogd")
    a("L_t2_go:")
    poll_masked(a,"t2", lambda: a(f"global_load_dwordx4 {vr(TT+32,4)}, v{PA_T2}, {sr(P_WS,2)} sc1"), range(TT+32,TT+36), cfg, TMP)
    if cfg.TAILDIAG: stamp(a,cfg,9)
    a("s_waitcnt lgkmcnt(0)")
    def gemm4_reduce_publish(F, B, dp, nw, lab):
        off=16384 if dp else 0
        for t in range(4):
            a(f"v_mfma_f32_16x16x32_bf16 {vr(TT+4*t,4)}, {vr(F+4*t,4)}, {vr(B,4)}, 0")
        if nw<8:
            a(f"s_cmp_ge_u32 s{S_W}, {nw}")
            a(f"s_cbranch_scc1 {lab}_nw")
        set_exec(a, "0x00ff00ff", "0x00ff00ff")
        a("s_nop 2")
        for t in range(4):
            a(f"ds_write_b128 v{PA_DW}, {vr(TT+4*t,4)} offset:{off+64*t}")

        full_exec(a)
        a(f"{lab}_nw:")
        a("s_waitcnt lgkmcnt(0)")
        a("s_barrier")
        a(f"s_sub_u32 s{S_T0}, s{S_W}, {R_RED0}")
        a(f"s_cmp_ge_u32 s{S_T0}, 2")
        a(f"s_cbranch_scc1 {lab}_skip")
        for w in range(nw):
            a(f"ds_read_b128 {vr(TT+4*w,4)}, v{PA_R2} offset:{off+w*2048}")
        if dp: a(f"v_add_u32 v10, {W_DP-W_AP}, v{PA_P2}")
        a("s_waitcnt lgkmcnt(0)")
        n=nw
        step=1
        idx=list(range(nw))
        while len(idx)>1:
            nxt=[]
            for i in range(0,len(idx)-1,2):
                d,s_=idx[i],idx[i+1]
                a(f"v_pk_add_f32 {vr(TT+4*d,2)}, {vr(TT+4*d,2)}, {vr(TT+4*s_,2)}")
                a(f"v_pk_add_f32 {vr(TT+4*d+2,2)}, {vr(TT+4*d+2,2)}, {vr(TT+4*s_+2,2)}")
                nxt.append(d)
            if len(idx)%2: nxt.append(idx[-1])
            idx=nxt
        for c in range(4):
            a(f"v_min_u32 v{TT+c}, -2, v{TT+c}")
        a(f"global_store_dwordx4 v{10 if dp else PA_P2}, {vr(TT,4)}, {sr(P_WS,2)} sc1")
        a(f"{lab}_skip:")
    gemm4_reduce_publish(WO_F, TT+32, False, 8, "L_t2")
    stamp(a,cfg,7)
    def ld3():
        a(f"global_load_dwordx4 {vr(TT+32,4)}, v{PA_T3A}, {sr(P_WS,2)} sc1")
        a(f"global_load_dwordx4 {vr(TT+36,4)}, v{PA_T3B}, {sr(P_WS,2)} sc1")
    poll_masked(a,"t3", ld3, range(TT+32,TT+40), cfg, TMP)
    if cfg.TAILDIAG: stamp(a,cfg,13)
    a(f"v_pk_add_f32 {vr(TT+32,2)}, {vr(TT+32,2)}, {vr(TT+36,2)}")
    a(f"v_pk_add_f32 {vr(TT+34,2)}, {vr(TT+34,2)}, {vr(TT+38,2)}")
    a(f"ds_write_b128 v{PA_T3W}, {vr(TT+32,4)}")
    a("s_waitcnt lgkmcnt(0)")
    a("s_barrier")
    a(f"s_cmp_lg_u32 s{S_W}, {R_W0}")
    a("s_cbranch_scc1 L_t3_skip")
    for w in range(8):
        a(f"ds_read_b128 {vr(TT+4*w,4)}, v{PA_T3R} offset:{w*1024}")
    a(f"v_lshlrev_b32 v{TT+40}, 16, v{V_XRES}")
    a(f"v_and_b32 v{TT+41}, 0xffff0000, v{V_XRES}")
    a(f"v_lshlrev_b32 v{TT+42}, 16, v{V_XRES+1}")
    a(f"v_and_b32 v{TT+43}, 0xffff0000, v{V_XRES+1}")
    a("s_waitcnt lgkmcnt(0)")
    for (d,s_) in ((0,1),(2,3),(4,5),(6,7),(0,2),(4,6),(0,4)):
        a(f"v_pk_add_f32 {vr(TT+4*d,2)}, {vr(TT+4*d,2)}, {vr(TT+4*s_,2)}")
        a(f"v_pk_add_f32 {vr(TT+4*d+2,2)}, {vr(TT+4*d+2,2)}, {vr(TT+4*s_+2,2)}")
    a(f"v_cvt_pk_bf16_f32 v{TT+4}, v{TT}, v{TT+1}")
    a(f"v_cvt_pk_bf16_f32 v{TT+5}, v{TT+2}, v{TT+3}")
    a(f"v_lshlrev_b32 v{TT+8}, 16, v{TT+4}")
    a(f"v_and_b32 v{TT+9}, 0xffff0000, v{TT+4}")
    a(f"v_lshlrev_b32 v{TT+10}, 16, v{TT+5}")
    a(f"v_and_b32 v{TT+11}, 0xffff0000, v{TT+5}")
    a(f"v_pk_add_f32 {vr(TT+8,2)}, {vr(TT+8,2)}, {vr(TT+40,2)}")
    a(f"v_pk_add_f32 {vr(TT+10,2)}, {vr(TT+10,2)}, {vr(TT+42,2)}")
    a(f"v_cvt_pk_bf16_f32 v{TT+6}, v{TT+8}, v{TT+9}")
    a(f"v_cvt_pk_bf16_f32 v{TT+7}, v{TT+10}, v{TT+11}")
    a(f"v_min_u32 v{TT+6}, -2, v{TT+6}")
    a(f"v_min_u32 v{TT+7}, -2, v{TT+7}")
    store_mode(a, f"global_store_dwordx2 v{PA_H}, {vr(TT+6,2)}, {sr(P_WS,2)}", True)
    a("L_t3_skip:")
    stamp(a,cfg,8)
    def ld4():
        a(f"global_load_dwordx4 {vr(TT,4)}, v{PA_T4}, {sr(P_WS,2)} sc1")
        a(f"global_load_dwordx4 {vr(TT+4,4)}, v{PA_T4}, {sr(P_WS,2)} offset:16 sc1")
    poll_masked(a,"t4", ld4, range(TT,TT+8), cfg, TMP)
    if cfg.TAILDIAG: stamp(a,cfg,14)
    a(f"s_cmp_lg_u32 s{S_W}, s{S_X}")
    a("s_cbranch_scc1 L_t4_nohs")
    a(f"s_mov_b64 exec, {sr(SM_HS,2)}")
    a(f"ds_write_b128 v{PA_HSW}, {vr(TT,4)}")
    a(f"ds_write_b128 v{PA_HSW}, {vr(TT+4,4)} offset:16")
    full_exec(a)
    a("L_t4_nohs:")
    a(f"s_cmp_ge_u32 s{S_R}, 28")
    a("s_cbranch_scc1 L_t5_skip_all")
    layernorm2(a, TT, TT+8, TT+24, V_T)
    a(f"s_mov_b64 exec, {sr(SM_LNB,2)}")
    a(f"ds_write_b128 v{PA_LNBW}, {vr(TT+24,4)}")
    a(f"ds_write_b128 v{PA_LNBW}, {vr(TT+28,4)} offset:16")
    full_exec(a)
    a("s_waitcnt lgkmcnt(0)")
    a("s_barrier")
    if not cfg.TAILDIAG: stamp(a,cfg,9)
    if cfg.TAILDIAG: stamp(a,cfg,1)
    for s in range(8):
        a(f"ds_read_b128 {vr(TT+4*s,4)}, v{PA_LNBR} offset:{64*s}")
    for s in range(8):
        c="0" if s<2 else vr(V_T+4*(s%2),4)
        a(f"s_waitcnt lgkmcnt({7-s})")
        a(f"v_mfma_f32_16x16x32_bf16 {vr(V_T+4*(s%2),4)}, {vr(GU_F+4*s,4)}, {vr(TT+4*s,4)}, {c}")
    a("s_nop 7")
    a(f"v_pk_add_f32 {vr(V_T,2)}, {vr(V_T,2)}, {vr(V_T+4,2)}")
    a(f"v_pk_add_f32 {vr(V_T+2,2)}, {vr(V_T+2,2)}, {vr(V_T+6,2)}")
    for c in range(4):
        a(f"v_min_u32 v{V_T+c}, -2, v{V_T+c}")
    set_exec(a, "0x00ff00ff", "0x00ff00ff")
    store_mode(a, f"global_store_dwordx4 v{PA_GP}, {vr(V_T,4)}, {sr(P_WS,2)}", True)
    full_exec(a)
    a(f"s_cmp_lg_u32 s{S_W}, {R_W0}")
    a("s_cbranch_scc1 L_t5_skip_all")
    a(f"s_mov_b32 s{S_T0}, 0x3d372713")
    a(f"s_mov_b32 s{S_T1}, 0xc0135761")
    def ld5():
        for k in range(4):
            for m in range(2):
                a(f"global_load_dwordx2 {vr(TT+(k*2+m)*2,2)}, v{PA_T5B+k}, {sr(P_WS,2)} offset:{m*2048} sc1")
    poll_masked(a,"t5", ld5, range(TT,TT+16), cfg, TMP)
    if cfg.TAILDIAG: stamp(a,cfg,2)
    for (d,s_) in ((0,1),(2,3),(0,2)):
        a(f"v_pk_add_f32 {vr(TT+4*d,2)}, {vr(TT+4*d,2)}, {vr(TT+4*s_,2)}")
        a(f"v_pk_add_f32 {vr(TT+4*d+2,2)}, {vr(TT+4*d+2,2)}, {vr(TT+4*s_+2,2)}")
    G=TT; U=TT+2; X=TT+4
    a(f"v_cvt_pk_bf16_f32 v{TT+8}, v{G}, v{G+1}")
    a(f"v_cvt_pk_bf16_f32 v{TT+9}, v{U}, v{U+1}")
    a(f"v_lshlrev_b32 v{G}, 16, v{TT+8}")
    a(f"v_and_b32 v{G+1}, 0xffff0000, v{TT+8}")
    a(f"v_lshlrev_b32 v{U}, 16, v{TT+9}")
    a(f"v_and_b32 v{U+1}, 0xffff0000, v{TT+9}")
    a(f"v_pk_mul_f32 {vr(X,2)}, {vr(G,2)}, {vr(G,2)}")
    a(f"v_pk_mul_f32 {vr(X,2)}, {vr(X,2)}, {vr(G,2)}")
    for c in range(2):
        a(f"v_fma_f32 v{X+c}, v{X+c}, s{S_T0}, v{G+c}")
    for c in range(2):
        a(f"v_mul_f32 v{X+c}, s{S_T1}, v{X+c}")
    for c in range(2):
        a(f"v_exp_f32 v{X+c}, v{X+c}")
    a("s_nop 0")
    for c in range(2):
        a(f"v_add_f32 v{X+c}, 1.0, v{X+c}")
    for c in range(2):
        a(f"v_rcp_f32 v{X+c}, v{X+c}")
    a("s_nop 0")
    a(f"v_pk_mul_f32 {vr(X,2)}, {vr(X,2)}, {vr(G,2)}")
    a(f"v_cvt_pk_bf16_f32 v{TT+8}, v{X}, v{X+1}")
    a(f"v_lshlrev_b32 v{X}, 16, v{TT+8}")
    a(f"v_and_b32 v{X+1}, 0xffff0000, v{TT+8}")
    a(f"v_pk_mul_f32 {vr(X,2)}, {vr(X,2)}, {vr(U,2)}")
    a(f"v_cvt_pk_bf16_f32 v{X}, v{X}, v{X+1}")
    a(f"v_min_u32 v{X}, -2, v{X}")
    store_mode(a, f"global_store_dword v{PA_ACT}, v{X}, {sr(P_WS,2)}", True)
    a("L_t5_skip_all:")
    stamp(a,cfg,10)
    a(f"s_cmp_ge_u32 s{S_W}, 7")
    a("s_cbranch_scc1 L_t6_nopoll")
    poll_masked(a,"t6", lambda: a(f"global_load_dwordx4 {vr(TT+32,4)}, v{PA_T6}, {sr(P_WS,2)} sc1"), range(TT+32,TT+36), cfg, TMP)
    if cfg.TAILDIAG: stamp(a,cfg,3)
    a("L_t6_nopoll:")
    gemm4_reduce_publish(WD_F, TT+32, True, 7, "L_t6")
    stamp(a,cfg,11)
    a(f"s_cmp_lg_u32 s{S_W}, {R_W0}")
    a("s_cbranch_scc1 L_fin")
    a(f"ds_read_u16 v{TT+10}, v{PA_HSR}")
    def ld7():
        for k in range(8):
            a(f"global_load_dword v{TT+k}, v{PA_T7+k}, {sr(P_WS,2)} sc1")
    poll_masked(a,"t7", ld7, range(TT,TT+8), cfg, TMP)
    if cfg.TAILDIAG: stamp(a,cfg,4)
    a(f"v_pk_add_f32 {vr(TT,2)}, {vr(TT,2)}, {vr(TT+2,2)}")
    a(f"v_pk_add_f32 {vr(TT+4,2)}, {vr(TT+4,2)}, {vr(TT+6,2)}")
    a(f"v_pk_add_f32 {vr(TT,2)}, {vr(TT,2)}, {vr(TT+4,2)}")
    a(f"v_add_f32 v{TT}, v{TT}, v{TT+1}")
    a(f"v_mov_b32 v{TT+1}, v{TT}")
    a("s_waitcnt lgkmcnt(0)")
    a("s_nop 0")
    a(f"v_permlane32_swap_b32 v{TT}, v{TT+1}")
    a(f"v_lshlrev_b32 v{TT+10}, 16, v{TT+10}")
    a(f"v_add_f32 v{TT}, v{TT}, v{TT+1}")
    round_bf16(a,TT,TT)
    a(f"v_add_f32 v{TT}, v{TT}, v{TT+10}")
    a(f"v_cvt_pk_bf16_f32 v{TT}, v{TT}, v{TT}")
    set_exec(a, -1, 0)
    a(f"global_store_short v{PA_OUT}, v{TT}, {sr(P_OUT,2)}")
    full_exec(a)
    a(f"s_cmp_lg_u32 s{S_ID}, 0")
    a("s_cbranch_scc1 L_fin")
    a(f"v_mov_b32 v10, {W_EPOCH}")
    a(f"v_mov_b32 v12, s{S_TAG}")
    a(f"v_mov_b32 v13, s{S_TAG+1}")
    set_exec(a, 1, 0)
    a(f"global_store_dwordx2 v10, v[12:13], {sr(P_WS,2)} sc1")
    full_exec(a)
    a("L_fin:")
    TTX=160
    if cfg.STAMPS and cfg.DBGSTAMP:
        stamp(a,cfg,12)
        a("s_waitcnt lgkmcnt(0)")
        a(f"s_cmp_lg_u32 s{S_W}, 0")
        a("s_cbranch_scc1 L_exit")
        lst=[0,1,2,4,6,7,8,10,11,12]
        for i,k in enumerate(lst):
            if k==0:
                a(f"s_not_b32 s{S_T0}, s72")
                a(f"v_mov_b32 v{TTX}, s{S_T0}")
            else:
                a(f"v_mov_b32 v{TTX}, s{72+2*k}")
            a(f"v_mov_b32 v10, {4*i}")
            set_exec(a,1,0)
            a(f"global_atomic_umax v10, v{TTX}, {sr(P_DBG,2)} sc1")
            full_exec(a)
        a(f"v_mov_b32 v{TTX}, s72")
        a(f"v_mov_b32 v10, 40")
        set_exec(a,1,0)
        a(f"global_atomic_umax v10, v{TTX}, {sr(P_DBG,2)} sc1")
        full_exec(a)
        a(f"s_not_b32 s{S_T0}, s{72+12}")
        a(f"v_mov_b32 v{TTX}, s{S_T0}")
        a(f"v_mov_b32 v10, 44")
        set_exec(a,1,0)
        a(f"global_atomic_umax v10, v{TTX}, {sr(P_DBG,2)} sc1")
        full_exec(a)
    elif cfg.STAMPS:
        stamp(a,cfg,12)
        a("s_waitcnt lgkmcnt(0)")
        for k in range(15):
            a(f"v_mov_b32 v{TTX}, s{72+2*k}")
            a(f"v_mov_b32 v{TTX+1}, s{73+2*k}")
            a(f"s_lshl_b32 s{S_T0}, s{S_ID}, 3")
            a(f"s_add_u32 s{S_T0}, s{S_T0}, s{S_W}")
            a(f"s_lshl_b32 s{S_T0}, s{S_T0}, 7")
            a(f"s_add_u32 s{S_T0}, s{S_T0}, {W_STAMP+8*k}")
            a(f"v_mov_b32 v10, s{S_T0}")
            set_exec(a,1,0)
            a(f"global_store_dwordx2 v10, {vr(TTX,2)}, {sr(P_WS,2)}")
            full_exec(a)
    a("L_exit:")
    a("s_endpgm")

HEADER = open("sequential_preLN__mha_block_cached__geglu_ffn__decode.s.ref").read().split("; Override launch geometry")[0]

def build(cfg, path):
    a,_=gen(cfg)
    gen_tail(a,cfg)
    txt = HEADER
    txt += "; Override launch geometry by editing the next line (default: block=256,\n"
    txt += f"; @launch grid=(256,1,1) block=(512,1,1) lds={LDS_BYTES}\n"
    txt += f""".amdgcn_target "amdgcn-amd-amdhsa--gfx950"
.text
.globl {KNAME}
.p2align 8
.type {KNAME},@function
"""
    txt += a.text()
    txt += f""".section .rodata,"a"
.p2align 6
.amdhsa_kernel {KNAME}
  .amdhsa_next_free_vgpr 256
  .amdhsa_next_free_sgpr 102
  .amdhsa_accum_offset 256
  .amdhsa_group_segment_fixed_size 0
  .amdhsa_kernarg_size 96
  .amdhsa_user_sgpr_count 2
  .amdhsa_user_sgpr_kernarg_segment_ptr 1
  .amdhsa_system_sgpr_workgroup_id_x 1
  .amdhsa_float_denorm_mode_32 3
.end_amdhsa_kernel
"""
    open(path,"w").write(txt)

if __name__=="__main__":
    cfg=Cfg()
    out=sys.argv[1]
    for kv in sys.argv[2:]:
        k,v=kv.split("=")
        setattr(cfg,k,eval(v))
    build(cfg,out)
```

```python
import sys

KNAME = "sequential_preLN__mha_block_cached__geglu_ffn__decode_kernel"

class Cfg:
    NSW = 2
    L = 10
    HV = 1
    QFAST = True
    KFLAGS = "nt"
    VFLAGS = "nt"
    WFLAGS = "nt"
    FASTMODE = True
    SPIN = 1 << 20
    STAMPS = False
    P0 = 5
    P = 5
    P1 = 8
    DMAPAUSE = True
    RING_EARLY = True
    RAMP = 0
    CODEPF = True
    TAILDIAG = False
    PSLEEP = 0
    QSLEEP = 0
    QWAIT = 64
    DBGSTAMP = False

L_WO   = 0
L_WG   = 32768
L_WU   = 65536
L_WD   = 98304
L_WQ   = 126976
L_SC   = 126976
L_RED  = 143360
L_LNA  = 159744
L_QS   = 161920
L_ML   = 162176
L_HS   = 162208
L_QF   = 162272
L_LS   = 162288
L_MODE = 162320
L_END  = 162352
LNA_P  = 272
LNB_P  = 528
L_LNB  = L_SC
LDS_BYTES = 163840

W_QP  = 0x500000
W_RDY = 0x000000
W_EPOCH = 0x010000
W_GRDY = 0x012000
W_OB  = 0x100000
W_AP  = 0x120000
W_HB  = 0x1A0000
W_GP  = 0x1C0000
W_ACT = 0x2A0000
W_DP  = 0x2B0000
W_STAMP = 0x400000

D_CLR = 32*4
D_XCC = 40*4

S_ID=2; S_W=3; S_X=4; S_R=5; S_H=6; S_B=7
P_X=16; P_K=18; P_V=20; P_WQ=22; P_WO=24; P_WG=28; P_WU=30; P_WD=32; P_OUT=34; P_DBG=36; P_WS=38
SRD_K=40; SRD_V=44
S_KOFF=48
S_FAST=49
S_SPIN=50
S_T0=52; S_T1=53; S_T2=54; S_T3=55; S_T4=56; S_T5=57
S_B0=58
S_B1=60
S_EX=62
S_M=64
S_M2=66
S_SCALE=68; S_LOG2E=69
S_DN=12; S_DS=13; S_DM=14; S_LOOP=15
S_TAG=98
S_TAG=66
S_ST=70

V_TID=0; V_LANE=1
V_MASK=16
V_KOFF=20; V_VOFF=21; V_SCW=22; V_PPR=23; V_MAX=24
V_DMA=25
V_QADDR=26
V_QA=32
V_SACC=48
V_OACC=52
V_A0=56; V_A1=60
V_PP0=64; V_PP1=68
V_T=72
V_RING=96
V_X=160

class Asm:
    def __init__(self):
        self.L=[]; self.n=0; self.main=self.L; self.O=[]
    def ool(self, on):
        self.L = self.O if on else self.main
    def __call__(self, s):
        for line in s.split("\n"):
            line=line.strip()
            if line: self.L.append(("" if line.endswith(":") else "  ")+line)
    def label(self, base):
        self.n+=1
        return f"L_{base}_{self.n}"
    def text(self): return "\n".join(self.main+self.O+["L_codeend:"])+"\n"

def vr(b,n): return f"v[{b}:{b+n-1}]"
def sr(b,n): return f"s[{b}:{b+n-1}]"

def wave_sum(a, v, tmp, op="add"):
    ins = "v_add_f32" if op=="add" else "v_max_f32"
    for k in (8,4,2,1):
        a(f"s_nop 1")
        a(f"{ins}_dpp {'v%d'%v}, v{v}, v{v} row_ror:{k} row_mask:0xf bank_mask:0xf")
    a("s_nop 1")
    a(f"v_readlane_b32 s{S_T0}, v{v}, 0")
    a(f"v_readlane_b32 s{S_T1}, v{v}, 16")
    a(f"v_readlane_b32 s{S_T2}, v{v}, 32")
    a(f"v_readlane_b32 s{S_T3}, v{v}, 48")
    a("s_nop 1")
    a(f"v_mov_b32 v{v}, s{S_T0}")
    a(f"{ins} v{v}, s{S_T1}, v{v}")
    a(f"{ins} v{v}, s{S_T2}, v{v}")
    a(f"{ins} v{v}, s{S_T3}, v{v}")

def round_bf16(a, dst, src):
    a(f"v_cvt_pk_bf16_f32 v{dst}, v{src}, v{src}")
    a(f"v_and_b32 v{dst}, 0xffff0000, v{dst}")

def layernorm(a, vin, vf, vout, t):
    for i in range(8):
        a(f"v_lshlrev_b32 v{vf+2*i}, 16, v{vin+i}")
        a(f"v_and_b32 v{vf+2*i+1}, 0xffff0000, v{vin+i}")
    a(f"v_add_f32 v{t}, v{vf}, v{vf+1}")
    for i in range(2,16):
        a(f"v_add_f32 v{t}, v{t}, v{vf+i}")
    wave_sum(a, t, t+1)
    a(f"v_mul_f32 v{t}, 0x3a800000, v{t}")
    a(f"v_sub_f32 v{t+1}, v{vf}, v{t}")
    a(f"v_mul_f32 v{t+2}, v{t+1}, v{t+1}")
    for i in range(1,16):
        a(f"v_sub_f32 v{t+1}, v{vf+i}, v{t}")
        a(f"v_fmac_f32 v{t+2}, v{t+1}, v{t+1}")
    wave_sum(a, t+2, t+1)
    a(f"v_mul_f32 v{t+2}, 0x3a800000, v{t+2}")
    round_bf16(a, t, t)
    round_bf16(a, t+2, t+2)
    a(f"v_add_f32 v{t+2}, 0x3727c5ac, v{t+2}")
    round_bf16(a, t+2, t+2)
    a(f"v_sqrt_f32 v{t+2}, v{t+2}")
    a("s_nop 0")
    round_bf16(a, t+2, t+2)
    a(f"v_rcp_f32 v{t+2}, v{t+2}")
    a("s_nop 0")
    for i in range(8):
        a(f"v_sub_f32 v{vf+2*i}, v{vf+2*i}, v{t}")
        a(f"v_sub_f32 v{vf+2*i+1}, v{vf+2*i+1}, v{t}")
        a(f"v_cvt_pk_bf16_f32 v{t+1}, v{vf+2*i}, v{vf+2*i+1}")
        a(f"v_lshlrev_b32 v{vf+2*i}, 16, v{t+1}")
        a(f"v_and_b32 v{vf+2*i+1}, 0xffff0000, v{t+1}")
        a(f"v_mul_f32 v{vf+2*i}, v{vf+2*i}, v{t+2}")
        a(f"v_mul_f32 v{vf+2*i+1}, v{vf+2*i+1}, v{t+2}")
        a(f"v_cvt_pk_bf16_f32 v{vout+i}, v{vf+2*i}, v{vf+2*i+1}")

def set_exec(a, lo, hi):
    a(f"s_mov_b32 exec_lo, {lo}")
    a(f"s_mov_b32 exec_hi, {hi}")
def full_exec(a):
    a("s_mov_b64 exec, -1")

def poll_loop(a, name, loads, regs, cfg):
    lp=a.label(name+"_poll"); dn=a.label(name+"_ok")
    a(f"s_mov_b32 s{S_SPIN}, {cfg.SPIN}")
    a(f"{lp}:")
    loads()
    a("s_waitcnt vmcnt(0)")
    t=V_T+23
    rs=list(regs)
    a(f"v_max_u32 v{t}, v{rs[0]}, v{rs[1] if len(rs)>1 else rs[0]}")
    i=2
    while i<len(rs):
        if i+1<len(rs):
            a(f"v_max3_u32 v{t}, v{t}, v{rs[i]}, v{rs[i+1]}"); i+=2
        else:
            a(f"v_max_u32 v{t}, v{t}, v{rs[i]}"); i+=1
    a(f"v_cmp_eq_u32 vcc, -1, v{t}")
    a(f"s_cbranch_vccz {dn}")
    a(f"s_sub_u32 s{S_SPIN}, s{S_SPIN}, 1")
    a(f"s_cmp_lg_u32 s{S_SPIN}, 0")
    a(f"s_cbranch_scc1 {lp}")
    a(f"{dn}:")

def store_mode(a, instr, intra):
    if not intra:
        a(instr+" sc1"); return
    l1=a.label("st_slow"); l2=a.label("st_done")
    a(f"s_cmp_eq_u32 s{S_FAST}, 0")
    a(f"s_cbranch_scc1 {l1}")
    a(instr)
    a(f"s_branch {l2}")
    a(f"{l1}:")
    a(instr+" sc1")
    a(f"{l2}:")

def stamp(a, cfg, idx):
    if not cfg.STAMPS: return
    a(f"s_memrealtime s[{72+2*idx}:{73+2*idx}]")


def emit_clears(a, sfx=''):
    a(f"v_mov_b32 v12, -1\nv_mov_b32 v13, -1\nv_mov_b32 v14, -1\nv_mov_b32 v15, -1")
    a(f"s_lshr_b32 s{S_T4}, s{S_R}, 4")
    a(f"s_and_b32 s{S_T5}, s{S_R}, 15")
    a(f"s_lshl_b32 s{S_T1}, s{S_X}, 1")
    a(f"s_add_u32 s{S_T1}, s{S_T1}, s{S_T4}")
    a(f"s_lshl_b32 s{S_T0}, s{S_T1}, 15")
    a(f"s_lshl_b32 s{S_T1}, s{S_T5}, 8")
    a(f"s_add_u32 s{S_T0}, s{S_T0}, s{S_T1}")
    a(f"v_lshlrev_b32 v10, 12, v3")
    a(f"v_lshlrev_b32 v11, 4, v2")
    a(f"v_add3_u32 v10, v10, v11, s{S_T0}")
    for base in (W_AP, W_DP):
        a(f"v_add_u32 v11, {base}, v10")
        a(f"global_store_dwordx4 v11, v[12:15], {sr(P_WS,2)} sc1")
        a(f"v_add_u32 v11, {base+4*4096}, v10")
        a(f"global_store_dwordx4 v11, v[12:15], {sr(P_WS,2)} sc1")
    a(f"s_lshl_b32 s{S_T0}, s{S_H}, 3")
    a(f"s_add_u32 s{S_T0}, s{S_T0}, s{S_B}")
    a(f"s_lshl_b32 s{S_T0}, s{S_T0}, 8")
    a(f"s_add_u32 s{S_T0}, s{S_T0}, {W_OB}")
    a(f"v_add_u32 v10, s{S_T0}, v{V_VOFF}")
    set_exec(a, "0xffff", 0)
    a(f"global_store_dwordx4 v10, v[12:15], {sr(P_WS,2)} sc1")
    full_exec(a)
    a(f"s_lshr_b32 s{S_T0}, s{S_R}, 2")
    a(f"s_lshl_b32 s{S_T1}, s{S_X}, 3")
    a(f"s_add_u32 s{S_T0}, s{S_T0}, s{S_T1}")
    a(f"s_lshl_b32 s{S_T0}, s{S_T0}, 11")
    a(f"s_and_b32 s{S_T1}, s{S_R}, 3")
    a(f"s_lshl_b32 s{S_T1}, s{S_T1}, 9")
    a(f"s_add_u32 s{S_T0}, s{S_T0}, s{S_T1}")
    a(f"s_add_u32 s{S_T0}, s{S_T0}, {W_HB}")
    a(f"v_add_u32 v10, s{S_T0}, v{V_VOFF}")
    set_exec(a, -1, 0)
    a(f"global_store_dwordx4 v10, v[12:15], {sr(P_WS,2)} sc1")
    full_exec(a)
    a(f"s_cmp_ge_u32 s{S_R}, 28")
    a(f"s_cbranch_scc1 L_clr_done{sfx}")
    a(f"s_mul_i32 s{S_T0}, s{S_X}, 28")
    a(f"s_add_u32 s{S_T0}, s{S_T0}, s{S_R}")
    a(f"s_lshl_b32 s{S_T0}, s{S_T0}, 12")
    a(f"s_add_u32 s{S_T0}, s{S_T0}, {W_GP}")
    a(f"v_add_u32 v10, s{S_T0}, v{V_VOFF}")
    for n in range(4):
        a(f"global_store_dwordx4 v10, v[12:15], {sr(P_WS,2)} offset:{n*1024} sc1")
    a(f"s_mul_i32 s{S_T0}, s{S_R}, 37")
    a(f"s_lshr_b32 s{S_T0}, s{S_T0}, 8")
    a(f"s_mul_i32 s{S_T1}, s{S_T0}, 7")
    a(f"s_sub_u32 s{S_T1}, s{S_R}, s{S_T1}")
    a(f"s_lshl_b32 s{S_T0}, s{S_T0}, 1")
    a(f"s_lshl_b32 s{S_T2}, s{S_X}, 3")
    a(f"s_add_u32 s{S_T0}, s{S_T0}, s{S_T2}")
    a(f"s_mul_i32 s{S_T0}, s{S_T0}, 896")
    a(f"s_lshl_b32 s{S_T1}, s{S_T1}, 7")
    a(f"s_add_u32 s{S_T0}, s{S_T0}, s{S_T1}")
    a(f"s_add_u32 s{S_T0}, s{S_T0}, {W_ACT}")
    a(f"v_lshrrev_b32 v10, 3, v{V_LANE}")
    a(f"v_mul_u32_u24 v10, 896, v10")
    a(f"v_and_b32 v11, 7, v{V_LANE}")
    a(f"v_lshlrev_b32 v11, 4, v11")
    a(f"v_add3_u32 v10, v10, v11, s{S_T0}")
    set_exec(a, "0xffff", 0)
    a(f"global_store_dwordx4 v10, v[12:15], {sr(P_WS,2)} sc1")
    full_exec(a)
    a(f"L_clr_done{sfx}:")


def emit_extras(a):
    a(f"s_lshl_b32 s{S_T0}, s{S_W}, 9")
    a(f"v_and_b32 v10, 31, v{V_LANE}")
    a(f"v_lshlrev_b32 v10, 4, v10")
    a(f"v_add_u32 v10, s{S_T0}, v10")
    a(f"v_add_u32 v9, {W_RDY}, v10")
    a(f"global_load_dwordx4 {vr(V_RDY,4)}, v9, {sr(P_WS,2)} sc1")
    a(f"s_lshr_b32 s{S_T0}, s{S_R}, 2")
    a(f"s_lshl_b32 s{S_T0}, s{S_T0}, 11")
    a(f"s_and_b32 s{S_T1}, s{S_R}, 3")
    a(f"s_lshl_b32 s{S_T1}, s{S_T1}, 9")
    a(f"s_add_u32 s{S_T0}, s{S_T0}, s{S_T1}")
    a(f"v_lshlrev_b32 v11, 3, v{V_LANE}")
    a(f"v_add_u32 v11, s{S_T0}, v11")
    a(f"global_load_dwordx2 {vr(V_XRES,2)}, v11, {sr(P_X,2)}")

def koff_init(a):
    a(f"s_lshr_b32 s{S_KOFF}, s{S_W}, 2")
    a(f"s_lshl_b32 s{S_KOFF}, s{S_KOFF}, 7")
    a(f"s_and_b32 s{S_T5}, s{S_W}, 3")
    a(f"s_add_u32 s{S_KOFF}, s{S_KOFF}, s{S_T5}")
    a(f"s_lshl_b32 s{S_KOFF}, s{S_KOFF}, 12")

def emit_rdy(a):
    a(f"s_getreg_b32 s{S_T0}, hwreg(HW_REG_XCC_ID, 0, 4)")
    a(f"s_lshl_b32 s{S_T1}, s{S_X}, 5")
    a(f"s_add_u32 s{S_T1}, s{S_T1}, s{S_R}")
    a(f"s_lshl_b32 s{S_T1}, s{S_T1}, 4")
    a(f"s_add_u32 s{S_T1}, s{S_T1}, {W_RDY}")
    a(f"v_mov_b32 v10, s{S_T1}")
    a(f"v_mov_b32 v12, s{S_T0}")
    a(f"v_mov_b32 v13, 0")
    a(f"v_mov_b32 v14, s{S_TAG}")
    a(f"v_mov_b32 v15, s{S_TAG+1}")
    set_exec(a, 1, 0)
    a(f"global_store_dwordx4 v10, v[12:15], {sr(P_WS,2)} sc1")
    full_exec(a)

def gen(cfg):
    a=Asm()
    NSW=cfg.NSW; L=cfg.L; HV=cfg.HV
    NH=8-NSW
    KT=256//NSW
    VT=(256-NH*HV)//NSW
    assert VT*NSW+NH*HV==256, "V tiles must split evenly"
    NK=4*KT; NV=4*VT
    TSTEP=NSW*4096
    def kload(j):
        reg=V_RING+(j%L)*4
        a(f"buffer_load_dwordx4 {vr(reg,4)}, v{V_KOFF}, {sr(SRD_K,4)}, s{S_KOFF} offen offset:{(j%4)*1024} {cfg.KFLAGS}")
        if j%4==3: a(f"s_add_u32 s{S_KOFF}, s{S_KOFF}, {TSTEP}")
    def vload(jv, first=False):
        reg=V_RING+((NK+jv)%L)*4
        if first:
            a(f"s_add_u32 s{S_KOFF}, s{S_W}, {NH*HV}")
            a(f"s_lshl_b32 s{S_KOFF}, s{S_KOFF}, 12")
        a(f"buffer_load_dwordx4 {vr(reg,4)}, v{V_VOFF}, {sr(SRD_V,4)}, s{S_KOFF} offen offset:{(jv%4)*1024} {cfg.VFLAGS}")
        if jv%4==3: a(f"s_add_u32 s{S_KOFF}, s{S_KOFF}, {TSTEP}")
    a(f"{KNAME}:")
    a(f"s_cmp_ge_u32 s{S_ID}, 256")
    a("s_cbranch_scc1 L_exit")
    a("s_load_dwordx16 s[16:31], s[0:1], 0")
    a("s_load_dwordx8 s[32:39], s[0:1], 64")
    if cfg.CODEPF:
        a(f"s_getpc_b64 {sr(S_B1,2)}")
        a("L_pf0:")
        a(f"s_add_u32 s{S_B1}, s{S_B1}, {KNAME}-L_pf0")
        a(f"s_addc_u32 s{S_B1+1}, s{S_B1+1}, -1")
        a(f"v_lshlrev_b32 v10, 6, v0")
        a(f"v_cmp_gt_u32 vcc, L_codeend-{KNAME}, v10")
        a(f"s_and_saveexec_b64 {sr(S_EX,2)}, vcc")
        a("s_cbranch_execz L_pf0_done")
        a(f"global_load_dword v15, v10, {sr(S_B1,2)}")
        a("L_pf0_done:")
        a(f"s_mov_b64 exec, {sr(S_EX,2)}")
    stamp(a,cfg,0)
    a(f"v_lshrrev_b32 v2, 6, v0")
    a(f"v_and_b32 v{V_LANE}, 63, v0")
    a(f"s_and_b32 s{S_X}, s{S_ID}, 7")
    a(f"v_readfirstlane_b32 s{S_W}, v2")
    a(f"s_lshr_b32 s{S_R}, s{S_ID}, 3")
    a(f"s_lshr_b32 s{S_T0}, s{S_R}, 3")
    a(f"s_lshl_b32 s{S_H}, s{S_X}, 2")
    a(f"s_add_u32 s{S_H}, s{S_H}, s{S_T0}")
    a(f"s_and_b32 s{S_B}, s{S_R}, 7")
    a(f"v_and_b32 v2, 15, v{V_LANE}")
    a(f"v_lshrrev_b32 v3, 4, v{V_LANE}")
    a(f"v_lshlrev_b32 v{V_VOFF}, 4, v{V_LANE}")
    a(f"v_lshrrev_b32 v4, 2, v2")
    a(f"v_and_b32 v5, 3, v2")
    a(f"v_lshlrev_b32 v6, 8, v4")
    a(f"v_lshlrev_b32 v7, 6, v3")
    a(f"v_lshlrev_b32 v8, 4, v5")
    a(f"v_add3_u32 v{V_KOFF}, v6, v7, v8")
    a(f"v_mov_b32 v{V_DMA}, 0")
    a("s_waitcnt lgkmcnt(0)")
    a(f"s_load_dwordx2 {sr(S_TAG,2)}, {sr(P_WS,2)}, {W_EPOCH}")
    a(f"s_lshl_b32 s{S_T0}, s{S_B}, 5")
    a(f"s_add_u32 s{S_T0}, s{S_T0}, s{S_H}")
    a(f"s_lshl_b32 s{S_T0}, s{S_T0}, 20")
    for srd,p in ((SRD_K,P_K),(SRD_V,P_V)):
        a(f"s_add_u32 s{srd}, s{p}, s{S_T0}")
        a(f"s_addc_u32 s{srd+1}, s{p+1}, 0")
        a(f"s_and_b32 s{srd+1}, s{srd+1}, 0xffff")
        a(f"s_mov_b32 s{srd+2}, 0x100000")
        a(f"s_mov_b32 s{srd+3}, 0x20000")
    a(f"s_lshl_b32 s{S_T0}, s{S_W}, 11")
    a(f"v_lshlrev_b32 v9, 5, v{V_LANE}")
    a(f"v_add_u32 v9, s{S_T0}, v9")
    a(f"global_load_dwordx4 {vr(V_X,4)}, v9, {sr(P_X,2)}")
    a(f"global_load_dwordx4 {vr(V_X+4,4)}, v9, {sr(P_X,2)} offset:16")
    a(f"s_cmp_ge_u32 s{S_W}, 4")
    a("s_cbranch_scc1 L_high")
    a.ool(True)
    a("L_high:")
    a(f"v_lshrrev_b32 v10, 3, v{V_LANE}")
    a(f"v_and_b32 v11, 7, v{V_LANE}")
    a(f"v_lshlrev_b32 v11, 4, v11")
    a(f"s_lshr_b32 s{S_T4}, s{S_R}, 4")
    a(f"s_and_b32 s{S_T5}, s{S_R}, 15")
    a(f"s_cmp_eq_u32 s{S_W}, 4")
    a("s_cbranch_scc1 L_dma_wo")
    a(f"s_cmp_eq_u32 s{S_W}, 7")
    a("s_cbranch_scc1 L_dma_wd")
    a(f"s_cmp_ge_u32 s{S_R}, 28")
    a("s_cbranch_scc1 L_dma_done")
    a(f"s_mul_i32 s{S_T0}, s{S_R}, 37")
    a(f"s_lshr_b32 s{S_T0}, s{S_T0}, 8")
    a(f"s_mul_i32 s{S_T1}, s{S_T0}, 7")
    a(f"s_sub_u32 s{S_T1}, s{S_R}, s{S_T1}")
    a(f"s_mul_i32 s{S_T0}, s{S_T0}, {256*7168}")
    a(f"s_mul_i32 s{S_T2}, s{S_X}, 896")
    a(f"s_lshl_b32 s{S_T1}, s{S_T1}, 7")
    a(f"s_add_u32 s{S_T0}, s{S_T0}, s{S_T2}")
    a(f"s_add_u32 s{S_T0}, s{S_T0}, s{S_T1}")
    a(f"s_cmp_eq_u32 s{S_W}, 5")
    a(f"s_cselect_b32 s{S_B0}, s{P_WG}, s{P_WU}")
    a(f"s_cselect_b32 s{S_B0+1}, s{P_WG+1}, s{P_WU+1}")
    a(f"s_mov_b32 s{S_T3}, {L_WU}")
    a(f"s_cselect_b32 s{S_T3}, {L_WG}, s{S_T3}")
    a(f"s_add_u32 s{S_B0}, s{S_B0}, s{S_T0}")
    a(f"s_addc_u32 s{S_B0+1}, s{S_B0+1}, 0")
    a(f"s_mov_b32 s{S_T0}, 7168")
    a(f"s_mov_b32 s{S_T1}, 32")
    a("s_branch L_dma_go")
    a("L_dma_wo:")
    a(f"s_lshl_b32 s{S_T0}, s{S_X}, 1")
    a(f"s_add_u32 s{S_T0}, s{S_T0}, s{S_T4}")
    a(f"s_lshl_b32 s{S_T0}, s{S_T0}, 19")
    a(f"s_lshl_b32 s{S_T1}, s{S_T5}, 7")
    a(f"s_add_u32 s{S_T0}, s{S_T0}, s{S_T1}")
    a(f"s_add_u32 s{S_B0}, s{P_WO}, s{S_T0}")
    a(f"s_addc_u32 s{S_B0+1}, s{P_WO+1}, 0")
    a(f"s_mov_b32 s{S_T3}, {L_WO}")
    a(f"s_mov_b32 s{S_T0}, 2048")
    a(f"s_mov_b32 s{S_T1}, 32")
    a("s_branch L_dma_go")
    a("L_dma_wd:")
    a(f"s_lshl_b32 s{S_T0}, s{S_X}, 1")
    a(f"s_add_u32 s{S_T0}, s{S_T0}, s{S_T4}")
    a(f"s_mul_i32 s{S_T0}, s{S_T0}, {224*2048}")
    a(f"s_lshl_b32 s{S_T1}, s{S_T5}, 7")
    a(f"s_add_u32 s{S_T0}, s{S_T0}, s{S_T1}")
    a(f"s_add_u32 s{S_B0}, s{P_WD}, s{S_T0}")
    a(f"s_addc_u32 s{S_B0+1}, s{P_WD+1}, 0")
    a(f"s_mov_b32 s{S_T3}, {L_WD}")
    a(f"s_mov_b32 s{S_T0}, 2048")
    a(f"s_mov_b32 s{S_T1}, 28")
    a("L_dma_go:")
    a(f"v_mul_lo_u32 v10, v10, s{S_T0}")
    a(f"s_lshl_b32 s{S_T0}, s{S_T0}, 3")
    a(f"v_add_u32 v10, v10, v11")
    a(f"s_mov_b32 m0, s{S_T3}")
    a("s_nop 0")
    for n in range(cfg.P0):
        a(f"global_load_lds_dwordx4 v10, {sr(S_B0,2)} {cfg.WFLAGS}")
        a(f"s_add_u32 m0, m0, 1024")
        a(f"s_add_u32 s{S_B0}, s{S_B0}, s{S_T0}")
        a(f"s_addc_u32 s{S_B0+1}, s{S_B0+1}, 0")
    a(f"s_sub_u32 s{S_DN}, s{S_T1}, {cfg.P0}")
    a(f"s_mov_b32 s{S_DS}, s{S_T0}")
    a(f"s_mov_b32 s{S_DM}, m0")
    a(f"v_mov_b32 v{V_DMA}, v10")
    a(f"s_waitcnt vmcnt({cfg.P0})")
    a("s_branch L_ln1")
    a("L_dma_done:")
    a(f"s_mov_b32 s{S_DN}, 0")
    a(f"s_mov_b32 s{S_B0}, s{P_WS}")
    a(f"s_mov_b32 s{S_B0+1}, s{P_WS+1}")
    a(f"v_mov_b32 v{V_DMA}, 0")
    a("s_waitcnt vmcnt(0)")
    a("s_branch L_ln1")

    a.ool(False)
    a("L_lowwaves:")
    a(f"v_lshlrev_b32 v12, 13, v3")
    a(f"v_lshlrev_b32 v11, 1, v3")
    a(f"v_xor_b32 v10, v2, v11")
    a(f"v_xor_b32 v11, 8, v10")
    a(f"v_lshl_add_u32 v10, v10, 4, v12")
    a(f"v_lshl_add_u32 v11, v11, 4, v12")
    a(f"s_lshl_b32 s{S_T0}, s{S_B}, 7")
    a(f"s_lshl_b32 s{S_T1}, s{S_W}, 5")
    a(f"s_add_u32 s{S_T0}, s{S_T0}, s{S_T1}")
    a(f"s_lshl_b32 s{S_T0}, s{S_T0}, 13")
    a(f"s_lshl_b32 s{S_T1}, s{S_H}, 8")
    a(f"s_add_u32 s{S_T0}, s{S_T0}, s{S_T1}")
    a(f"s_add_u32 s{S_B0}, s{P_WQ}, s{S_T0}")
    a(f"s_addc_u32 s{S_B0+1}, s{P_WQ+1}, 0")
    a(f"s_lshl_b32 s{S_T1}, s{S_W}, 13")
    a(f"s_add_u32 m0, s{S_T1}, {L_WQ}")
    a("s_nop 0")
    for n in range(8):
        a(f"global_load_lds_dwordx4 v{10+((n>>1)&1)}, {sr(S_B0,2)} {cfg.WFLAGS}")
        if n<7:
            a(f"s_add_u32 m0, m0, 1024")
            a(f"s_add_u32 s{S_B0}, s{S_B0}, {4*8192}")
            a(f"s_addc_u32 s{S_B0+1}, s{S_B0+1}, 0")
    if cfg.RING_EARLY:
        a(f"s_cmp_ge_u32 s{S_W}, {NSW}")
        a("s_cbranch_scc1 L_low_nostr")
        a(f"s_lshl_b32 s{S_KOFF}, s{S_W}, 12")
        for j in range(L): kload(j)
        a(f"s_waitcnt vmcnt({8+L})")
        a("s_branch L_ln1_low")
        a("L_low_nostr:")
    a(f"s_waitcnt vmcnt(8)")
    a("s_branch L_ln1_low")
    a("L_ln1_low:")
    a("L_ln1:")
    layernorm2(a, V_X, V_X+8, V_X+24, V_T)
    a(f"s_lshl_b32 s{S_T0}, s{S_B}, 3")
    a(f"v_subrev_u32 v10, s{S_T0}, v{V_LANE}")
    a(f"v_cmp_gt_u32 vcc, 8, v10")
    a(f"s_mul_i32 s{S_T1}, s{S_W}, {LNA_P}")
    a(f"s_add_u32 s{S_T1}, s{S_T1}, {L_LNA}")
    a(f"v_lshlrev_b32 v10, 5, v10")
    a(f"v_add_u32 v10, s{S_T1}, v10")
    a(f"s_and_saveexec_b64 {sr(S_EX,2)}, vcc")
    a(f"ds_write_b128 v10, {vr(V_X+24,4)}")
    a(f"ds_write_b128 v10, {vr(V_X+28,4)} offset:16")
    a(f"s_mov_b64 exec, {sr(S_EX,2)}")
    a(f"s_cmp_ge_u32 s{S_W}, 4")
    a("s_cbranch_scc1 L_b1")
    if cfg.RING_EARLY:
        a(f"s_cmp_ge_u32 s{S_W}, {NSW}")
        a("s_cbranch_scc1 L_b1_ns")
        a(f"s_waitcnt vmcnt({L})")
        a("s_branch L_b1")
        a("L_b1_ns:")
    a("s_waitcnt vmcnt(0)")
    a("L_b1:")
    a("s_waitcnt lgkmcnt(0)")
    a(f"s_cmp_lg_u32 s{S_W}, 0")
    a("s_cbranch_scc1 L_noqf")
    a(f"v_mov_b32 v10, {L_QF}")
    a(f"v_mov_b32 v11, 0")
    a(f"ds_write_b32 v10, v11")
    a("s_waitcnt lgkmcnt(0)")
    a("L_noqf:")
    a("s_barrier")
    stamp(a,cfg,1)
    a(f"s_add_u32 s{S_TAG}, s{S_TAG}, 1")
    a(f"s_addc_u32 s{S_TAG+1}, s{S_TAG+1}, 0")
    a(f"v_and_b32 v10, 1, v2")
    a(f"v_cmp_eq_u32 vcc, 1, v10")
    a(f"v_mov_b32 v11, 0xffff")
    a(f"v_mov_b32 v12, 0xffff0000")
    a(f"v_cndmask_b32 v11, v11, v12, vcc")
    a(f"v_lshrrev_b32 v10, 1, v2")
    for w in range(4):
        a(f"v_cmp_eq_u32 vcc, {w}, v10")
        a("s_nop 1")
        a(f"v_cndmask_b32 v{V_MASK+w}, 0, v11, vcc")
    a(f"v_mov_b32 v{V_MAX}, 0xff800000")
    a(f"s_mov_b32 s{S_SCALE}, 0x3db504f3")
    a(f"s_mov_b32 s{S_LOG2E}, 0x3fb8aa3b")
    for c in range(4):
        a(f"v_mov_b32 v{V_OACC+c}, 0")
    a(f"s_cmp_ge_u32 s{S_W}, 4")
    a("s_cbranch_scc1 L_high2")
    a.ool(True)
    a("L_high2:")
    a(f"s_cmp_eq_u32 s{S_DN}, 0")
    a("s_cbranch_scc1 L_dma2_done")
    if cfg.DMAPAUSE:
        a(f"v_mov_b32 v10, {L_QF}")
        a(f"s_mov_b32 s{S_SPIN}, {cfg.SPIN}")
        a("L_dp_wait:")
        a(f"ds_read_b32 v11, v10")
        a("s_waitcnt lgkmcnt(0)")
        a(f"v_readfirstlane_b32 s{S_T0}, v11")
        a("s_nop 1")
        a(f"s_cmp_lg_u32 s{S_T0}, 0")
        a("s_cbranch_scc1 L_dma2_loop")
        a("s_sleep 2")
        a(f"s_sub_u32 s{S_SPIN}, s{S_SPIN}, 1")
        a(f"s_cmp_lg_u32 s{S_SPIN}, 0")
        a("s_cbranch_scc1 L_dp_wait")
    a("L_dma2_loop:")
    a(f"s_waitcnt vmcnt({cfg.P-1})")
    a(f"global_load_lds_dwordx4 v{V_DMA}, {sr(S_B0,2)} {cfg.WFLAGS}")
    a(f"s_add_u32 m0, m0, 1024")
    a(f"s_add_u32 s{S_B0}, s{S_B0}, s{S_DS}")
    a(f"s_addc_u32 s{S_B0+1}, s{S_B0+1}, 0")
    a(f"s_sub_u32 s{S_DN}, s{S_DN}, 1")
    a(f"s_cmp_lg_u32 s{S_DN}, 0")
    a("s_cbranch_scc1 L_dma2_loop")
    a("L_dma2_done:")
    a("s_waitcnt vmcnt(0)")
    stamp(a,cfg,13)
    emit_precompute(a,cfg)
    emit_rdycheck(a,cfg)
    a("s_branch L_kdone")
    a.ool(False)
    a("L_q_low:")
    if not cfg.RING_EARLY:
        a(f"s_cmp_ge_u32 s{S_W}, {NSW}")
        a("s_cbranch_scc1 L_ring_late_skip")
        a(f"s_lshl_b32 s{S_KOFF}, s{S_W}, 12")
        for j in range(L): kload(j)
        a("L_ring_late_skip:")
    a(f"s_cmp_lt_u32 s{S_W}, 2")
    a("s_cbranch_scc1 L_q_01")
    a.ool(True)
    a("L_q_01:")
    emit_precompute(a,cfg)
    a(f"s_cmp_eq_u32 s{S_W}, 0")
    a("s_cbranch_scc1 L_q_w0")
    a("s_branch L_q_w1")
    a.ool(False)
    a("L_q_prod:")
    a(f"v_and_b32 v10, 7, v{V_LANE}")
    a(f"v_mul_u32_u24 v10, {LNA_P}, v10")
    a(f"v_lshlrev_b32 v11, 4, v3")
    a(f"v_add_u32 v10, v10, v11")
    a(f"v_add_u32 v10, {L_LNA}, v10")
    for s_ in range(4):
        a(f"ds_read_b128 {vr(V_X+4*s_,4)}, v10 offset:{64*s_}")
    a(f"v_lshlrev_b32 v11, 3, v3")
    a(f"v_add_u32 v11, v11, v4")
    a(f"v_lshlrev_b32 v11, 8, v11")
    a(f"v_lshlrev_b32 v12, 3, v5")
    a(f"v_add3_u32 v11, v11, v12, {0}") if False else None
    a(f"v_add_u32 v11, v11, v12")
    a(f"v_add_u32 v11, {L_WQ}, v11")
    a(f"v_and_b32 v12, 1, v3")
    a(f"v_lshlrev_b32 v12, 2, v12")
    a(f"v_or_b32 v12, v12, v4")
    a(f"s_sub_u32 s{S_T4}, s{S_W}, 2")
    a(f"s_lshl_b32 s{S_T0}, s{S_T4}, 2")
    a(f"v_xor_b32 v12, s{S_T0}, v12")
    for tt in range(4):
        a(f"v_xor_b32 v13, {tt}, v12")
        a(f"v_lshl_add_u32 v{V_T+16+tt}, v13, 5, v11")
    for tt in range(4):
        for s_ in range(4):
            for hf in range(2):
                reg=V_RING+tt*16+s_*4+hf*2
                a(f"ds_read_b64_tr_b16 {vr(reg,2)}, v{V_T+16+tt} offset:{(32*s_+4*hf)*256}")
    a(f"s_lshl_b32 s{S_T0}, s{S_H}, 3")
    a(f"s_add_u32 s{S_T0}, s{S_T0}, s{S_B}")
    a(f"s_lshl_b32 s{S_T0}, s{S_T0}, 13")
    a(f"s_lshl_b32 s{S_T1}, s{S_T4}, 9")
    a(f"s_add_u32 s{S_T0}, s{S_T0}, s{S_T1}")
    a(f"s_add_u32 s{S_T0}, s{S_T0}, {W_QP}")
    a(f"v_lshlrev_b32 v10, 10, v2")
    a(f"v_lshlrev_b32 v11, 5, v3")
    a(f"v_add3_u32 v{V_QADDR}, v10, v11, s{S_T0}")
    G=V_X+16
    for tt in range(4):
        for hh in range(2):
            b=G+8*tt+4*hh
            a(f"v_mov_b32 v{b+2}, s{S_TAG}")
            a(f"v_mov_b32 v{b+3}, s{S_TAG+1}")
    a("s_waitcnt lgkmcnt(0)")
    for s_ in range(4):
        for tt in range(4):
            c = "0" if s_==0 else vr(V_T+4*tt,4)
            a(f"v_mfma_f32_16x16x32_bf16 {vr(V_T+4*tt,4)}, {vr(V_RING+tt*16+s_*4,4)}, {vr(V_X+4*s_,4)}, {c}")
    a("s_nop 7")
    for tt in range(4):
        for hh in range(2):
            b=G+8*tt+4*hh
            a(f"v_mov_b32 v{b}, v{V_T+4*tt+2*hh}")
            a(f"v_mov_b32 v{b+1}, v{V_T+4*tt+2*hh+1}")
    def qstores(fl):
        set_exec(a, "0x00ff00ff", "0x00ff00ff")
        for tt in range(4):
            for hh in range(2):
                a(f"global_store_dwordx4 v{V_QADDR}, {vr(G+8*tt+4*hh,4)}, {sr(P_WS,2)} offset:{128*tt+16*hh} {fl}")
        full_exec(a)
    qstores("" if cfg.QFAST else "sc1")
    stamp(a,cfg,13)
    a("s_branch L_prod2")
    a.ool(True)
    a("L_prod2:")
    if cfg.QFAST:
        a(f"v_mov_b32 v10, {L_QF}")
        a(f"s_mov_b32 s{S_SPIN}, {cfg.QWAIT}")
        a("L_qc_wait:")
        a("s_sleep 4")
        a(f"ds_read_b32 v11, v10")
        a("s_waitcnt lgkmcnt(0)")
        a(f"v_readfirstlane_b32 s{S_T0}, v11")
        a("s_nop 1")
        a(f"s_cmp_lg_u32 s{S_T0}, 0")
        a("s_cbranch_scc1 L_qc_go")
        a(f"s_sub_u32 s{S_SPIN}, s{S_SPIN}, 1")
        a(f"s_cmp_lg_u32 s{S_SPIN}, 0")
        a("s_cbranch_scc1 L_qc_wait")
        a("L_qc_go:")
        qstores("sc1")
    a(f"s_cmp_lg_u32 s{S_W}, 3")
    a("s_cbranch_scc1 L_q_prod2")
    emit_clears(a)
    a("s_waitcnt vmcnt(0)")
    emit_rdy(a)
    a("L_q_prod2:")
    emit_precompute(a,cfg)
    if cfg.CODEPF:
        a(f"s_cmp_lg_u32 s{S_W}, 2")
        a("s_cbranch_scc1 L_pf1_skip")
        emit_codepf(a,cfg,"L_pf1","L_q_ready","L_exit")
        a("L_pf1_skip:")
    a(f"global_load_dwordx2 {vr(V_XRES,2)}, v9, {sr(P_X,2)}")
    a("s_branch L_kdone")
    a.ool(False)
    a("L_q_w1:")
    if NSW<2:
        a("s_branch L_kdone")
    a(f"v_mov_b32 v10, {L_QF}")
    a(f"s_mov_b32 s{S_SPIN}, {cfg.SPIN}")
    a("L_qf_wait:")
    a(f"ds_read_b32 v11, v10")
    a("s_waitcnt lgkmcnt(0)")
    a(f"v_readfirstlane_b32 s{S_T0}, v11")
    a("s_nop 1")
    a(f"s_cmp_lg_u32 s{S_T0}, 0")
    a("s_cbranch_scc1 L_q_ready")
    a(f"s_sub_u32 s{S_SPIN}, s{S_SPIN}, 1")
    a(f"s_cmp_lg_u32 s{S_SPIN}, 0")
    a("s_cbranch_scc1 L_qf_wait")
    a("s_branch L_q_ready")
    a("L_q_w0:")
    a(f"s_lshl_b32 s{S_T0}, s{S_H}, 16")
    a(f"s_lshl_b32 s{S_T1}, s{S_B}, 10")
    a(f"s_add_u32 s{S_T0}, s{S_T0}, s{S_T1}")
    a(f"s_add_u32 s{S_T0}, s{S_T0}, {W_QP}")
    a(f"v_add_u32 v10, s{S_T0}, v{V_VOFF}")
    for j in range(8):
        a(f"v_add_u32 v{V_T+8+j}, {j*8192}, v10")
    PQ=V_X+16
    lp=a.label("qpoll"); dn=a.label("qok")
    a(f"s_mov_b32 s{S_SPIN}, {cfg.SPIN}")
    a(f"{lp}:")
    for j in range(8):
        a(f"global_load_dwordx4 {vr(PQ+4*j,4)}, v{V_T+8+j}, {sr(P_WS,2)} sc1")
    a("s_waitcnt vmcnt(0)")
    a(f"v_mov_b32 v11, 0")
    for j in range(8):
        a(f"v_xor_b32 v12, s{S_TAG}, v{PQ+4*j+2}")
        a(f"v_xor_b32 v13, s{S_TAG+1}, v{PQ+4*j+3}")
        a(f"v_or3_b32 v11, v11, v12, v13")
    a(f"v_cmp_ne_u32 vcc, 0, v11")
    a(f"s_cbranch_vccz {dn}")
    if cfg.QSLEEP: a(f"s_sleep {cfg.QSLEEP}")
    a(f"s_sub_u32 s{S_SPIN}, s{S_SPIN}, 1")
    a(f"s_cmp_lg_u32 s{S_SPIN}, 0")
    a(f"s_cbranch_scc1 {lp}")
    a(f"{dn}:")
    stamp(a,cfg,14)
    for j in range(1,8):
        a(f"v_add_f32 v{PQ}, v{PQ}, v{PQ+4*j}")
        a(f"v_add_f32 v{PQ+1}, v{PQ+1}, v{PQ+4*j+1}")
    a(f"v_cvt_pk_bf16_f32 v{PQ+2}, v{PQ}, v{PQ+1}")
    a(f"v_lshlrev_b32 v11, 2, v{V_LANE}")
    a(f"v_add_u32 v11, {L_QS}, v11")
    a(f"ds_write_b32 v11, v{PQ+2}")
    a("s_waitcnt lgkmcnt(0)")
    a(f"v_mov_b32 v10, {L_QF}")
    a(f"v_mov_b32 v11, 1")
    a(f"ds_write_b32 v10, v11")
    a("L_q_ready:")
    stamp(a,cfg,2)
    a(f"v_lshlrev_b32 v10, 2, v3")
    a(f"v_add_u32 v10, v10, v5")
    a(f"v_lshlrev_b32 v10, 4, v10")
    a(f"v_add_u32 v10, {L_QS}, v10")
    a(f"ds_read_b128 {vr(V_T,4)}, v10")
    a(f"s_lshl_b32 s{S_T0}, s{S_W}, 6")
    a(f"s_add_u32 s{S_T0}, s{S_T0}, {L_SC}")
    a(f"v_lshlrev_b32 v10, 4, v4")
    a(f"v_lshlrev_b32 v11, 2, v3")
    a(f"v_add3_u32 v{V_SCW}, v10, v11, s{S_T0}")
    a("s_waitcnt lgkmcnt(0)")
    for n in range(4):
        a(f"v_cmp_eq_u32 vcc, {n}, v4")
        a("s_nop 1")
        for c in range(4):
            a(f"v_cndmask_b32 v{V_QA+4*n+c}, 0, v{V_T+c}, vcc")
    import math
    PERK=L*4//math.gcd(L,4)
    def kbody(j, wait_n, reissue, sc_off):
        a(f"s_waitcnt vmcnt({wait_n})")
        n=j%4
        c="0" if n==0 else vr(V_SACC,4)
        a(f"v_mfma_f32_16x16x32_bf16 {vr(V_SACC,4)}, {vr(V_QA+4*n,4)}, {vr(V_RING+(j%L)*4,4)}, {c}")
        reissue()
        if n==3:
            a("s_nop 7")
            t=V_T
            a(f"v_mov_b32_dpp v{t}, v{V_SACC} quad_perm:[0,0,0,0] row_mask:0xf bank_mask:0xf")
            for q in range(1,4):
                a(f"v_add_f32_dpp v{t}, v{V_SACC+q}, v{t} quad_perm:[{q},{q},{q},{q}] row_mask:0xf bank_mask:0xf")
            round_bf16(a,t,t)
            a(f"v_mul_f32 v{t}, s{S_SCALE}, v{t}")
            round_bf16(a,t,t)
            a(f"v_max_f32 v{V_MAX}, v{V_MAX}, v{t}")
            a(f"ds_write_b32 v{V_SCW}, v{t} offset:{sc_off}")
    nloop=(NK-L)//PERK
    a(f"s_mov_b32 s{S_LOOP}, {nloop}")
    a(".p2align 6")
    a("L_kloop:")
    for j in range(PERK):
        kbody(j, L-1, (lambda j=j: kload(j+L)), (j//4)*NSW*64)
    a(f"v_add_u32 v{V_SCW}, {(PERK//4)*NSW*64}, v{V_SCW}")
    a(f"s_sub_u32 s{S_LOOP}, s{S_LOOP}, 1")
    a(f"s_cmp_lg_u32 s{S_LOOP}, 0")
    a("s_cbranch_scc1 L_kloop")
    for j in range(nloop*PERK, NK):
        m=j+L
        ri=(lambda m=m: kload(m)) if m<NK else (lambda m=m: vload(m-NK, first=(m==NK)))
        kbody(j, L-1, ri, ((j-nloop*PERK)//4)*NSW*64)
    a("L_kdone:")
    stamp(a,cfg,3)
    wave_sum(a, V_MAX, V_T, op="max")
    a(f"s_lshl_b32 s{S_T0}, s{S_W}, 2")
    a(f"s_add_u32 s{S_T0}, s{S_T0}, {L_ML}")
    a(f"v_mov_b32 v11, s{S_T0}")
    a(f"ds_write_b32 v11, v{V_MAX}")
    a("s_waitcnt lgkmcnt(0)")
    a("s_barrier")
    a(f"s_cmp_lt_u32 s{S_W}, {NSW}")
    a("s_cbranch_scc1 L_nohv")
    a(f"s_sub_u32 s{S_T0}, s{S_W}, {NSW}")
    a(f"s_mul_i32 s{S_T0}, s{S_T0}, {HV*4096}")
    for t in range(HV):
        for n in range(4):
            a(f"buffer_load_dwordx4 {vr(V_RING+t*16+n*4,4)}, v{V_VOFF}, {sr(SRD_V,4)}, s{S_T0} offen offset:{n*1024} {cfg.VFLAGS}")
        if t<HV-1: a(f"s_add_u32 s{S_T0}, s{S_T0}, 4096")
    a("L_nohv:")
    a(f"v_mov_b32 v12, {L_MODE}")
    a(f"ds_read_b32 v13, v12")
    a(f"v_mov_b32 v11, {L_ML}")
    a(f"ds_read_b128 {vr(V_X,4)}, v11")
    a(f"ds_read_b128 {vr(V_X+4,4)}, v11 offset:16")
    a(f"s_lshl_b32 s{S_T4}, s{S_W}, 11")
    a(f"s_add_u32 s{S_T4}, s{S_T4}, {L_SC}")
    a(f"v_lshlrev_b32 v10, 5, v{V_LANE}")
    a(f"v_add_u32 v10, s{S_T4}, v10")
    a(f"ds_read_b128 {vr(V_T,4)}, v10")
    a(f"ds_read_b128 {vr(V_T+4,4)}, v10 offset:16")
    a("s_waitcnt lgkmcnt(2)")
    a(f"v_readfirstlane_b32 s{S_FAST}, v13")
    a(f"v_max3_f32 v{V_MAX}, v{V_X}, v{V_X+1}, v{V_X+2}")
    a(f"v_max3_f32 v{V_MAX}, v{V_MAX}, v{V_X+3}, v{V_X+4}")
    a(f"v_max3_f32 v{V_MAX}, v{V_MAX}, v{V_X+5}, v{V_X+6}")
    a(f"v_max_f32 v{V_MAX}, v{V_MAX}, v{V_X+7}")
    a("s_waitcnt lgkmcnt(0)")
    for i in range(8):
        a(f"v_sub_f32 v{V_T+8+i}, v{V_T+i}, v{V_MAX}")
        a(f"v_mul_f32 v{V_T+8+i}, s{S_LOG2E}, v{V_T+8+i}")
        a(f"v_exp_f32 v{V_T+8+i}, v{V_T+8+i}")
    a("s_nop 0")
    a(f"v_add_f32 v{V_T+16}, v{V_T+8}, v{V_T+9}")
    for i in range(2,8):
        a(f"v_add_f32 v{V_T+16}, v{V_T+16}, v{V_T+8+i}")
    wave_sum(a, V_T+16, V_T+17)
    a(f"s_lshl_b32 s{S_T0}, s{S_W}, 2")
    a(f"s_add_u32 s{S_T0}, s{S_T0}, {L_LS}")
    a(f"v_mov_b32 v11, s{S_T0}")
    a(f"ds_write_b32 v11, v{V_T+16}")
    a("s_waitcnt lgkmcnt(0)")
    a("s_barrier")
    a(f"v_mov_b32 v11, {L_LS}")
    a(f"ds_read_b128 {vr(V_X,4)}, v11")
    a(f"ds_read_b128 {vr(V_X+4,4)}, v11 offset:16")
    a("s_waitcnt lgkmcnt(0)")
    a(f"v_add_f32 v{V_T+16}, v{V_X}, v{V_X+1}")
    for k in range(2,8):
        a(f"v_add_f32 v{V_T+16}, v{V_T+16}, v{V_X+k}")
    a(f"v_rcp_f32 v{V_T+17}, v{V_T+16}")
    a("s_nop 0")
    a(f"v_fma_f32 v{V_T+18}, -v{V_T+16}, v{V_T+17}, 1.0")
    a(f"v_fma_f32 v{V_T+17}, v{V_T+18}, v{V_T+17}, v{V_T+17}")
    for i in range(8):
        a(f"v_mul_f32 v{V_T+8+i}, v{V_T+8+i}, v{V_T+17}")
        a(f"v_cvt_pk_bf16_f32 v{V_T+8+i}, v{V_T+8+i}, v{V_T+8+i}")
    a(f"ds_write_b128 v10, {vr(V_T+8,4)}")
    a(f"ds_write_b128 v10, {vr(V_T+12,4)} offset:16")
    a("s_waitcnt lgkmcnt(0)")
    a("s_barrier")
    stamp(a,cfg,4)
    def ands(dst,pp):
        for w in range(4):
            a(f"v_and_b32 v{dst+w}, v{pp}, v{V_MASK+w}")
    a(f"s_cmp_lt_u32 s{S_W}, {NSW}")
    a("s_cbranch_scc1 L_vstream")
    a(f"s_sub_u32 s{S_T0}, s{S_W}, {NSW}")
    a(f"s_mul_i32 s{S_T0}, s{S_T0}, {HV*64}")
    a(f"s_add_u32 s{S_T0}, s{S_T0}, {L_SC}")
    a(f"v_lshlrev_b32 v10, 4, v3")
    a(f"v_add_u32 v10, s{S_T0}, v10")
    for t in range(HV):
        a(f"ds_read_b128 {vr(V_PP0,4)}, v10 offset:{t*64}")
        a(f"s_waitcnt vmcnt({4*(HV-1-t)}) lgkmcnt(0)")
        for n in range(4):
            A=V_A0 if n%2==0 else V_A1
            ands(A,V_PP0+n)
            a("s_nop 1")
            a(f"v_mfma_f32_16x16x32_bf16 {vr(V_OACC,4)}, {vr(A,4)}, {vr(V_RING+t*16+4*n,4)}, {vr(V_OACC,4)}")
    a("s_nop 7")
    set_exec(a, -1, 0)
    a(f"ds_write_b128 v{PA_OW}, {vr(V_OACC,4)}")
    full_exec(a)
    frag_reads(a,"ogd")
    if cfg.CODEPF:
        a(f"s_cmp_lg_u32 s{S_W}, 4")
        a("s_cbranch_scc1 L_pf2_skip")
        emit_codepf(a,cfg,"L_pf2","L_vdone","L_exit")
        a("L_pf2_skip:")
    a("s_waitcnt vmcnt(0) lgkmcnt(0)")
    a("s_branch L_vdone")
    a("L_vstream:")
    a(f"s_add_u32 s{S_T0}, s{S_W}, {NH*HV}")
    a(f"s_lshl_b32 s{S_T0}, s{S_T0}, 6")
    a(f"s_add_u32 s{S_T0}, s{S_T0}, {L_SC}")
    a(f"v_lshlrev_b32 v10, 4, v3")
    a(f"v_add_u32 v{V_PPR}, s{S_T0}, v10")
    a(f"ds_read_b128 {vr(V_PP0,4)}, v{V_PPR}")
    so=NK%L
    def vbody(jv, wait_n, reissue, tile_rel, last_tile):
        n=jv%4
        par=(jv//4)%2
        pp = V_PP0 if par==0 else V_PP1
        ppn = V_PP1 if par==0 else V_PP0
        if n==0:
            if not last_tile:
                a(f"ds_read_b128 {vr(ppn,4)}, v{V_PPR} offset:{(tile_rel+1)*NSW*64}")
                a(f"s_waitcnt lgkmcnt(1)")
            else:
                a(f"s_waitcnt lgkmcnt(0)")
        A=V_A0 if n%2==0 else V_A1
        ands(A,pp+n)
        a(f"s_waitcnt vmcnt({wait_n})")
        a("s_nop 0")
        a(f"v_mfma_f32_16x16x32_bf16 {vr(V_OACC,4)}, {vr(A,4)}, {vr(V_RING+((so+jv)%L)*4,4)}, {vr(V_OACC,4)}")
        if reissue: reissue()
    PERV=PERK if (PERK//4)%2==0 else 2*PERK
    nloopv=(NV-L-(4*cfg.RAMP+2*L if cfg.RAMP else 0))//PERV
    a(f"s_mov_b32 s{S_LOOP}, {nloopv}")
    a(".p2align 6")
    a("L_vloop:")
    for jv in range(PERV):
        vbody(jv, L-1, (lambda jv=jv: vload(jv+L)), jv//4, False)
    a(f"v_add_u32 v{V_PPR}, {(PERV//4)*NSW*64}, v{V_PPR}")
    a(f"s_sub_u32 s{S_LOOP}, s{S_LOOP}, 1")
    a(f"s_cmp_lg_u32 s{S_LOOP}, 0")
    a("s_cbranch_scc1 L_vloop")
    start=nloopv*PERV
    slot_of={}
    for jv in range(start, min(start+L,NV)): slot_of[jv]=(so+jv)%L
    issued=min(start+L,NV)
    free_extra=[L+i for i in range(L)] if cfg.RAMP else []
    vq=[("v",jv) for jv in range(start,issued)]
    def issue_v(jn, slot):
        reg=V_RING+slot*4
        a(f"buffer_load_dwordx4 {vr(reg,4)}, v{V_VOFF}, {sr(SRD_V,4)}, s{S_KOFF} offen offset:{(jn%4)*1024} {cfg.VFLAGS}")
        if jn%4==3: a(f"s_add_u32 s{S_KOFF}, s{S_KOFF}, {TSTEP}")
        slot_of[jn]=slot; vq.append(("v",jn))
    ramp_at=NV-4*cfg.RAMP-2*L if cfg.RAMP else None
    for jv in range(start, NV):
        if cfg.RAMP and jv==max(start,ramp_at):
            while free_extra and issued<NV:
                issue_v(issued, free_extra.pop(0)); issued+=1
        n=jv%4; par=(jv//4)%2
        pp = V_PP0 if par==0 else V_PP1
        ppn = V_PP1 if par==0 else V_PP0
        rel=(jv-start)//4
        if n==0:
            if jv//4!=VT-1:
                a(f"ds_read_b128 {vr(ppn,4)}, v{V_PPR} offset:{(rel+1)*NSW*64}")
                a(f"s_waitcnt lgkmcnt(1)")
            else:
                a(f"s_waitcnt lgkmcnt(0)")
        A=V_A0 if n%2==0 else V_A1
        ands(A,pp+n)
        idx=vq.index(("v",jv))
        a(f"s_waitcnt vmcnt({len(vq)-1-idx})")
        a("s_nop 0")
        a(f"v_mfma_f32_16x16x32_bf16 {vr(V_OACC,4)}, {vr(A,4)}, {vr(V_RING+slot_of[jv]*4,4)}, {vr(V_OACC,4)}")
        if issued<NV:
            issue_v(issued, slot_of[jv]); issued+=1
    a("L_vdone:")
    stamp(a,cfg,5)
    return a, None

PA=208
PA_O=PA+0; PA_T2=PA+1; PA_DW=PA+2; PA_R2=PA+3; PA_P2=PA+4; PA_T3A=PA+5; PA_T3B=PA+6; PA_T3W=PA+7; PA_T3R=PA+8; PA_H=PA+9
PA_T4=PA+10; PA_LNBW=PA+11; PA_HSW=PA+12; PA_LNBR=PA+13; PA_GP=PA+14; PA_ACT=PA+15; PA_T6=PA+16; PA_OUT=PA+17; PA_HSR=PA+18
PA_OW=PA+19; PA_OR=PA+20; PA_TR=PA+21
PA_T5B=PA+24
PA_T7=PA+28
V_XRES=PA+36
V_RDY=PA+40
SM_LNB=8; SM_HS=10
R_T1=2; R_RED0=2
R_W0=3

def emit_precompute(a, cfg):
    global SM_LNB, SM_HS
    T0,T1,T2,T3,T4,T5=S_T0,S_T1,S_T2,S_T3,S_T4,S_T5
    a(f"s_lshl_b32 s{T0}, s{S_H}, 3")
    a(f"s_add_u32 s{T0}, s{T0}, s{S_B}")
    a(f"s_lshl_b32 s{T0}, s{T0}, 8")
    a(f"s_add_u32 s{T0}, s{T0}, {W_OB}")
    a(f"v_lshlrev_b32 v10, 2, v{V_LANE}")
    a(f"v_add_u32 v{PA_O}, s{T0}, v10")
    a(f"s_lshl_b32 s{T0}, s{S_W}, 9")
    a(f"s_add_u32 s{T0}, s{T0}, {L_RED}")
    a(f"v_lshlrev_b32 v11, 5, v2")
    a(f"v_lshlrev_b32 v12, 4, v3")
    a(f"v_add3_u32 v{PA_OW}, v11, v12, s{T0}")
    a(f"v_lshlrev_b32 v11, 3, v{V_LANE}")
    a(f"v_add_u32 v{PA_OR}, {L_RED}, v11")
    a(f"v_lshlrev_b32 v11, 3, v3")
    a(f"v_add_u32 v11, v11, v4")
    a(f"v_lshlrev_b32 v11, 7, v11")
    a(f"v_lshlrev_b32 v13, 3, v5")
    a(f"v_add_u32 v{PA_TR}, v11, v13")
    a(f"s_lshr_b32 s{T4}, s{S_R}, 4")
    a(f"s_and_b32 s{T5}, s{S_R}, 15")
    a(f"v_and_b32 v14, 7, v{V_LANE}")
    a(f"s_lshl_b32 s{T0}, s{S_X}, 2")
    a(f"s_lshl_b32 s{T1}, s{T4}, 1")
    a(f"s_add_u32 s{T0}, s{T0}, s{T1}")
    a(f"s_lshr_b32 s{T1}, s{S_W}, 2")
    a(f"s_add_u32 s{T0}, s{T0}, s{T1}")
    a(f"s_lshl_b32 s{T0}, s{T0}, 11")
    a(f"s_and_b32 s{T1}, s{S_W}, 3")
    a(f"s_lshl_b32 s{T1}, s{T1}, 6")
    a(f"s_add_u32 s{T0}, s{T0}, s{T1}")
    a(f"s_add_u32 s{T0}, s{T0}, {W_OB}")
    a(f"v_lshlrev_b32 v10, 8, v14")
    a(f"v_add3_u32 v{PA_T2}, v10, v12, s{T0}")
    a(f"s_lshl_b32 s{T0}, s{S_W}, 11")
    a(f"s_add_u32 s{T0}, s{T0}, {L_SC}")
    a(f"v_lshlrev_b32 v10, 8, v2")
    a(f"v_xor_b32 v11, v3, v5")
    a(f"v_lshlrev_b32 v11, 4, v11")
    a(f"v_add3_u32 v{PA_DW}, v10, v11, s{T0}")
    a(f"s_sub_u32 s{T0}, s{S_W}, {R_RED0}")
    a(f"s_lshl_b32 s{T0}, s{T0}, 6")
    a(f"v_add_u32 v10, s{T0}, v{V_LANE}")
    a(f"v_and_b32 v10, 127, v10")
    a(f"v_lshrrev_b32 v11, 4, v10")
    a(f"v_and_b32 v13, 3, v11")
    a(f"v_xor_b32 v13, v13, v10")
    a(f"v_lshlrev_b32 v13, 4, v13")
    a(f"v_add_u32 v{PA_R2}, {L_SC}, v13")
    a(f"s_lshl_b32 s{T0}, s{S_X}, 1")
    a(f"s_add_u32 s{T0}, s{T0}, s{T4}")
    a(f"s_lshl_b32 s{T0}, s{T0}, 15")
    a(f"s_lshl_b32 s{T1}, s{T5}, 8")
    a(f"s_add_u32 s{T0}, s{T0}, s{T1}")
    a(f"s_add_u32 s{T0}, s{T0}, {W_AP}")
    a(f"v_lshrrev_b32 v11, 4, v10")
    a(f"v_lshlrev_b32 v11, 12, v11")
    a(f"v_lshlrev_b32 v13, 4, v2")
    a(f"v_add3_u32 v{PA_P2}, v11, v13, s{T0}")
    a(f"s_lshr_b32 s{T0}, s{S_R}, 2")
    a(f"s_lshl_b32 s{T0}, s{T0}, 12")
    a(f"s_and_b32 s{T1}, s{S_R}, 3")
    a(f"s_lshl_b32 s{T1}, s{T1}, 10")
    a(f"s_add_u32 s{T0}, s{T0}, s{T1}")
    a(f"s_lshl_b32 s{T1}, s{S_W}, 16")
    a(f"s_add_u32 s{T0}, s{T0}, s{T1}")
    a(f"s_add_u32 s{T0}, s{T0}, {W_AP}")
    a(f"v_add_u32 v{PA_T3A}, s{T0}, v{V_VOFF}")
    a(f"v_add_u32 v{PA_T3B}, 32768, v{PA_T3A}")
    RED3=L_RED+4096
    a(f"s_lshl_b32 s{T0}, s{S_W}, 10")
    a(f"s_add_u32 s{T0}, s{T0}, {RED3}")
    a(f"v_add_u32 v{PA_T3W}, s{T0}, v{V_VOFF}")
    a(f"v_add_u32 v{PA_T3R}, {RED3}, v{V_VOFF}")
    a(f"s_lshr_b32 s{T0}, s{S_R}, 2")
    a(f"s_lshl_b32 s{T1}, s{S_X}, 3")
    a(f"s_add_u32 s{T0}, s{T0}, s{T1}")
    a(f"s_lshl_b32 s{T0}, s{T0}, 11")
    a(f"s_and_b32 s{T1}, s{S_R}, 3")
    a(f"s_lshl_b32 s{T1}, s{T1}, 9")
    a(f"s_add_u32 s{T0}, s{T0}, s{T1}")
    a(f"s_add_u32 s{T0}, s{T0}, {W_HB}")
    a(f"v_lshlrev_b32 v10, 3, v{V_LANE}")
    a(f"v_add_u32 v{PA_H}, s{T0}, v10")
    a(f"s_lshr_b32 s{T0}, s{S_R}, 2")
    a(f"s_lshl_b32 s{T0}, s{T0}, 11")
    a(f"s_add_u32 s{T0}, s{T0}, s{T1}")
    a(f"v_add_u32 v9, s{T0}, v10")
    a(f"s_lshl_b32 s{T0}, s{S_X}, 3")
    a(f"s_add_u32 s{T0}, s{T0}, s{S_W}")
    a(f"s_lshl_b32 s{T0}, s{T0}, 11")
    a(f"s_add_u32 s{T0}, s{T0}, {W_HB}")
    a(f"v_lshlrev_b32 v10, 5, v{V_LANE}")
    a(f"v_add_u32 v{PA_T4}, s{T0}, v10")
    a(f"s_mul_i32 s{T2}, s{S_R}, 37")
    a(f"s_lshr_b32 s{T2}, s{T2}, 8")
    a(f"s_mul_i32 s{T3}, s{T2}, 7")
    a(f"s_sub_u32 s{T3}, s{S_R}, s{T3}")
    a(f"s_lshl_b32 s{T0}, s{T2}, 4")
    a(f"v_subrev_u32 v10, s{T0}, v{V_LANE}")
    a(f"v_cmp_gt_u32 {sr(SM_LNB,2)}, 16, v10")
    a(f"s_mul_i32 s{T1}, s{S_W}, {LNB_P}")
    a(f"s_add_u32 s{T1}, s{T1}, {L_LNB}")
    a(f"v_lshlrev_b32 v10, 5, v10")
    a(f"v_add_u32 v{PA_LNBW}, s{T1}, v10")
    a(f"s_lshl_b32 s{T0}, s{S_R}, 1")
    a(f"v_subrev_u32 v10, s{T0}, v{V_LANE}")
    a(f"v_cmp_gt_u32 {sr(SM_HS,2)}, 2, v10")
    a(f"v_lshlrev_b32 v10, 5, v10")
    a(f"v_add_u32 v{PA_HSW}, {L_HS}, v10")
    a(f"v_mul_u32_u24 v10, {LNB_P}, v14")
    a(f"v_add_u32 v10, v10, v12")
    a(f"v_add_u32 v{PA_LNBR}, {L_LNB}, v10")
    a(f"s_mul_i32 s{T0}, s{S_X}, 28")
    a(f"s_add_u32 s{T0}, s{T0}, s{S_R}")
    a(f"s_lshl_b32 s{T0}, s{T0}, 12")
    a(f"s_lshr_b32 s{T1}, s{S_W}, 2")
    a(f"s_lshl_b32 s{T1}, s{T1}, 11")
    a(f"s_add_u32 s{T0}, s{T0}, s{T1}")
    a(f"s_and_b32 s{T1}, s{S_W}, 3")
    a(f"s_lshl_b32 s{T1}, s{T1}, 6")
    a(f"s_add_u32 s{T0}, s{T0}, s{T1}")
    a(f"s_add_u32 s{T0}, s{T0}, {W_GP}")
    a(f"v_lshlrev_b32 v10, 8, v2")
    a(f"v_add3_u32 v{PA_GP}, v10, v12, s{T0}")
    a(f"s_mul_i32 s{T0}, s{S_X}, 28")
    a(f"s_add_u32 s{T0}, s{T0}, s{T3}")
    a(f"s_lshl_b32 s{T0}, s{T0}, 12")
    a(f"s_lshl_b32 s{T1}, s{T2}, 9")
    a(f"s_add_u32 s{T0}, s{T0}, s{T1}")
    a(f"s_add_u32 s{T0}, s{T0}, {W_GP}")
    a(f"v_lshrrev_b32 v10, 5, v{V_LANE}")
    a(f"v_and_b32 v11, 31, v{V_LANE}")
    a(f"v_lshlrev_b32 v13, 8, v10")
    a(f"v_lshlrev_b32 v15, 3, v11")
    a(f"v_add3_u32 v{PA_T5B}, v13, v15, s{T0}")
    for k in range(1,4):
        a(f"v_add_u32 v{PA_T5B+k}, {k*7*4096}, v{PA_T5B}")
    a(f"s_lshl_b32 s{T0}, s{S_X}, 3")
    a(f"s_lshl_b32 s{T1}, s{T2}, 1")
    a(f"s_add_u32 s{T0}, s{T0}, s{T1}")
    a(f"s_mul_i32 s{T0}, s{T0}, 896")
    a(f"s_lshl_b32 s{T1}, s{T3}, 7")
    a(f"s_add_u32 s{T0}, s{T0}, s{T1}")
    a(f"s_add_u32 s{T0}, s{T0}, {W_ACT}")
    a(f"v_mul_u32_u24 v13, 896, v10")
    a(f"v_lshlrev_b32 v15, 2, v11")
    a(f"v_add3_u32 v{PA_ACT}, v13, v15, s{T0}")
    a(f"s_mul_i32 s{T0}, s{S_X}, {8*896}")
    a(f"s_mul_i32 s{T1}, s{T4}, 448")
    a(f"s_add_u32 s{T0}, s{T0}, s{T1}")
    a(f"s_lshl_b32 s{T1}, s{S_W}, 6")
    a(f"s_add_u32 s{T0}, s{T0}, s{T1}")
    a(f"s_add_u32 s{T0}, s{T0}, {W_ACT}")
    a(f"v_mul_u32_u24 v13, 896, v14")
    a(f"v_add3_u32 v{PA_T6}, v13, v12, s{T0}")
    a(f"s_lshl_b32 s{T0}, s{S_X}, 12")
    a(f"s_lshl_b32 s{T1}, s{S_R}, 7")
    a(f"s_add_u32 s{T0}, s{T0}, s{T1}")
    a(f"s_add_u32 s{T0}, s{T0}, {W_DP}")
    a(f"v_lshlrev_b32 v13, 18, v10")
    a(f"v_lshlrev_b32 v15, 2, v11")
    a(f"v_add3_u32 v{PA_T7}, v13, v15, s{T0}")
    for k in range(1,8):
        a(f"v_add_u32 v{PA_T7+k}, {k*32768}, v{PA_T7}")
    a(f"s_lshl_b32 s{T0}, s{S_X}, 11")
    a(f"s_lshl_b32 s{T1}, s{S_R}, 6")
    a(f"s_add_u32 s{T0}, s{T0}, s{T1}")
    a(f"v_lshlrev_b32 v15, 1, v11")
    a(f"v_add_u32 v{PA_OUT}, s{T0}, v15")
    a(f"v_add_u32 v{PA_HSR}, {L_HS}, v15")

def emit_codepf(a, cfg, lab, first, last):
    a(f"s_getpc_b64 {sr(S_B1,2)}")
    a(f"{lab}:")
    a(f"s_add_u32 s{S_B1}, s{S_B1}, ({first}-{lab})&0xffffffff")
    a(f"s_addc_u32 s{S_B1+1}, s{S_B1+1}, ({first}-{lab})>>32")
    a(f"v_lshlrev_b32 v10, 6, v{V_LANE}")
    a(f"s_mov_b32 s{S_T0}, {last}-{first}")
    a(f"{lab}_loop:")
    a(f"v_cmp_gt_u32 vcc, s{S_T0}, v10")
    a(f"s_and_saveexec_b64 {sr(S_EX,2)}, vcc")
    a(f"s_cbranch_execz {lab}_done")
    a(f"global_load_dword v11, v10, {sr(S_B1,2)}")
    a(f"s_mov_b64 exec, {sr(S_EX,2)}")
    a(f"v_add_u32 v10, 4096, v10")
    a(f"s_branch {lab}_loop")
    a(f"{lab}_done:")
    a(f"s_mov_b64 exec, {sr(S_EX,2)}")
    a("s_waitcnt vmcnt(0)")

def emit_rdycheck(a, cfg):
    f=1 if cfg.FASTMODE else 0
    a(f"s_cmp_lg_u32 s{S_W}, 4")
    a("s_cbranch_scc1 L_rdy_b")
    a(f"s_cmp_lg_u32 s{S_R}, 0")
    a("s_cbranch_scc1 L_rdy_done")
    a(f"s_lshl_b32 s{S_T0}, s{S_X}, 9")
    a(f"s_add_u32 s{S_T0}, s{S_T0}, {W_RDY}")
    a(f"v_and_b32 v10, 31, v{V_LANE}")
    a(f"v_lshlrev_b32 v10, 4, v10")
    a(f"v_add_u32 v10, s{S_T0}, v10")
    lp=a.label("rdy"); dn=a.label("rdyok")
    a(f"s_mov_b32 s{S_SPIN}, {cfg.SPIN}")
    a(f"{lp}:")
    a(f"global_load_dwordx4 {vr(V_RDY,4)}, v10, {sr(P_WS,2)} sc1")
    a("s_waitcnt vmcnt(0)")
    a(f"v_xor_b32 v11, s{S_TAG}, v{V_RDY+2}")
    a(f"v_xor_b32 v15, s{S_TAG+1}, v{V_RDY+3}")
    a(f"v_or_b32 v11, v11, v15")
    a(f"v_cmp_ne_u32 vcc, 0, v11")
    a(f"s_cbranch_vccz {dn}")
    a("s_sleep 16")
    a(f"s_sub_u32 s{S_SPIN}, s{S_SPIN}, 1")
    a(f"s_cmp_lg_u32 s{S_SPIN}, 0")
    a(f"s_cbranch_scc1 {lp}")
    a(f"{dn}:")
    a(f"v_readfirstlane_b32 s{S_T0}, v{V_RDY}")
    a("s_nop 1")
    a(f"v_cmp_ne_u32 vcc, s{S_T0}, v{V_RDY}")
    a(f"s_mov_b32 s{S_T2}, {f}")
    a("s_nop 1")
    a(f"s_cmp_eq_u64 vcc, 0")
    a(f"s_cselect_b32 s{S_T2}, s{S_T2}, 0")
    a(f"s_lshl_b32 s{S_T0}, s{S_X}, 4")
    a(f"s_add_u32 s{S_T0}, s{S_T0}, {W_GRDY}")
    a(f"v_mov_b32 v10, s{S_T0}")
    a(f"v_mov_b32 v12, s{S_T2}")
    a(f"v_mov_b32 v13, 0")
    a(f"v_mov_b32 v14, s{S_TAG}")
    a(f"v_mov_b32 v15, s{S_TAG+1}")
    set_exec(a,1,0)
    a(f"global_store_dwordx4 v10, v[12:15], {sr(P_WS,2)} sc1")
    full_exec(a)
    a("s_branch L_rdy_done")
    a("L_rdy_b:")
    a(f"s_cmp_lg_u32 s{S_W}, 5")
    a("s_cbranch_scc1 L_rdy_done")
    a(f"v_and_b32 v10, 7, v{V_LANE}")
    a(f"v_lshlrev_b32 v10, 4, v10")
    a(f"v_add_u32 v10, {W_GRDY}, v10")
    lp=a.label("grdy"); dn=a.label("grdyok")
    a(f"s_mov_b32 s{S_SPIN}, {cfg.SPIN}")
    a(f"{lp}:")
    set_exec(a,"0xff",0)
    a(f"global_load_dwordx4 {vr(V_RDY,4)}, v10, {sr(P_WS,2)} sc1")
    a("s_waitcnt vmcnt(0)")
    a(f"v_xor_b32 v11, s{S_TAG}, v{V_RDY+2}")
    a(f"v_xor_b32 v15, s{S_TAG+1}, v{V_RDY+3}")
    a(f"v_or_b32 v11, v11, v15")
    a(f"v_cmp_ne_u32 vcc, 0, v11")
    full_exec(a)
    a(f"s_cbranch_vccz {dn}")
    a("s_sleep 64")
    a(f"s_sub_u32 s{S_SPIN}, s{S_SPIN}, 1")
    a(f"s_cmp_lg_u32 s{S_SPIN}, 0")
    a(f"s_cbranch_scc1 {lp}")
    a(f"{dn}:")
    a(f"v_readlane_b32 s{S_T2}, v{V_RDY}, s{S_X}")
    a(f"v_mov_b32 v10, {L_MODE}")
    a("s_nop 1")
    a(f"v_mov_b32 v12, s{S_T2}")
    a(f"ds_write_b32 v10, v12")
    a("L_rdy_done:")

def poll_masked(a, name, loads, regs, cfg, tmp):
    lp=a.label(name+"_poll"); dn=a.label(name+"_ok")
    a(f"s_mov_b64 {sr(S_EX,2)}, exec")
    a(f"s_mov_b32 s{S_SPIN}, {cfg.SPIN}")
    a(f"{lp}:")
    loads()
    a("s_waitcnt vmcnt(0)")
    rs=list(regs)
    if len(rs)>=3:
        a(f"v_max3_u32 v{tmp}, v{rs[0]}, v{rs[1]}, v{rs[2]}"); i=3
    else:
        a(f"v_max_u32 v{tmp}, v{rs[0]}, v{rs[1]}"); i=2
    while i<len(rs):
        if i+1<len(rs):
            a(f"v_max3_u32 v{tmp}, v{tmp}, v{rs[i]}, v{rs[i+1]}"); i+=2
        else:
            a(f"v_max_u32 v{tmp}, v{tmp}, v{rs[i]}"); i+=1
    a(f"v_cmp_eq_u32 vcc, -1, v{tmp}")
    a(f"s_mov_b64 exec, vcc")
    a(f"s_cbranch_execz {dn}")
    if cfg.PSLEEP: a(f"s_sleep {cfg.PSLEEP}")
    a(f"s_sub_u32 s{S_SPIN}, s{S_SPIN}, 1")
    a(f"s_cmp_lg_u32 s{S_SPIN}, 0")
    a(f"s_cbranch_scc1 {lp}")
    a(f"{dn}:")
    a(f"s_mov_b64 exec, {sr(S_EX,2)}")

def frag_reads(a, which):
    WB=V_RING; WO_F=WB; GU_F=WB+16; WD_F=WB+48
    if "o" in which:
        a(f"s_lshl_b32 s{S_T0}, s{S_W}, 12")
        a(f"s_add_u32 s{S_T1}, s{S_T0}, {L_WO}")
        a(f"v_add_u32 v13, s{S_T1}, v{PA_TR}")
        for t in range(4):
            for hf in range(2):
                a(f"ds_read_b64_tr_b16 {vr(WO_F+4*t+2*hf,2)}, v13 offset:{hf*4*128+32*t}")
    if "g" in which:
        a(f"s_lshr_b32 s{S_T0}, s{S_W}, 2")
        a(f"s_lshl_b32 s{S_T0}, s{S_T0}, 15")
        a(f"s_and_b32 s{S_T1}, s{S_W}, 3")
        a(f"s_lshl_b32 s{S_T1}, s{S_T1}, 5")
        a(f"s_add_u32 s{S_T0}, s{S_T0}, s{S_T1}")
        a(f"s_add_u32 s{S_T0}, s{S_T0}, {L_WG}")
        a(f"v_add_u32 v15, s{S_T0}, v{PA_TR}")
        for s in range(8):
            for hf in range(2):
                a(f"ds_read_b64_tr_b16 {vr(GU_F+4*s+2*hf,2)}, v15 offset:{(32*s+4*hf)*128}")
    if "d" in which:
        a(f"s_lshl_b32 s{S_T0}, s{S_W}, 12")
        a(f"s_add_u32 s{S_T1}, s{S_T0}, {L_WD}")
        a(f"v_add_u32 v11, s{S_T1}, v{PA_TR}")
        for t in range(4):
            for hf in range(2):
                a(f"ds_read_b64_tr_b16 {vr(WD_F+4*t+2*hf,2)}, v11 offset:{hf*4*128+32*t}")

def layernorm2(a, vin, vf, vout, t):
    for i in range(8):
        a(f"v_lshlrev_b32 v{vf+2*i}, 16, v{vin+i}")
        a(f"v_and_b32 v{vf+2*i+1}, 0xffff0000, v{vin+i}")
    a(f"v_readfirstlane_b32 s{S_T4}, v{vf}")
    a("s_nop 1")
    a(f"v_mov_b32 v{t+6}, s{S_T4}")
    a(f"v_mov_b32 v{t+7}, s{S_T4}")
    for i in range(8):
        a(f"v_pk_add_f32 {vr(vf+2*i,2)}, {vr(vf+2*i,2)}, {vr(t+6,2)} neg_lo:[0,1] neg_hi:[0,1]")
    a(f"v_pk_add_f32 {vr(t,2)}, {vr(vf,2)}, {vr(vf+2,2)}")
    a(f"v_pk_mul_f32 {vr(t+2,2)}, {vr(vf,2)}, {vr(vf,2)}")
    a(f"v_pk_fma_f32 {vr(t+2,2)}, {vr(vf+2,2)}, {vr(vf+2,2)}, {vr(t+2,2)}")
    for i in range(2,8):
        a(f"v_pk_add_f32 {vr(t,2)}, {vr(t,2)}, {vr(vf+2*i,2)}")
        a(f"v_pk_fma_f32 {vr(t+2,2)}, {vr(vf+2*i,2)}, {vr(vf+2*i,2)}, {vr(t+2,2)}")
    a(f"v_add_f32 v{t}, v{t}, v{t+1}")
    a(f"v_add_f32 v{t+2}, v{t+2}, v{t+3}")
    for k in (8,4,2,1):
        a("s_nop 0")
        a(f"v_add_f32_dpp v{t}, v{t}, v{t} row_ror:{k} row_mask:0xf bank_mask:0xf")
        a("s_nop 0") if False else None
        a(f"v_add_f32_dpp v{t+2}, v{t+2}, v{t+2} row_ror:{k} row_mask:0xf bank_mask:0xf")
    a(f"v_mov_b32 v{t+1}, v{t}")
    a(f"v_mov_b32 v{t+3}, v{t+2}")
    a("s_nop 1")
    a(f"v_permlane16_swap_b32 v{t}, v{t+1}")
    a(f"v_permlane16_swap_b32 v{t+2}, v{t+3}")
    a("s_nop 1")
    a(f"v_add_f32 v{t}, v{t}, v{t+1}")
    a(f"v_add_f32 v{t+2}, v{t+2}, v{t+3}")
    a(f"v_mov_b32 v{t+1}, v{t}")
    a(f"v_mov_b32 v{t+3}, v{t+2}")
    a("s_nop 1")
    a(f"v_permlane32_swap_b32 v{t}, v{t+1}")
    a(f"v_permlane32_swap_b32 v{t+2}, v{t+3}")
    a("s_nop 1")
    a(f"v_add_f32 v{t}, v{t}, v{t+1}")
    a(f"v_add_f32 v{t+2}, v{t+2}, v{t+3}")
    a(f"v_mul_f32 v{t}, 0x3a800000, v{t}")
    a(f"v_mul_f32 v{t+2}, 0x3a800000, v{t+2}")
    a(f"v_fma_f32 v{t+2}, -v{t}, v{t}, v{t+2}")
    a(f"v_add_f32 v{t}, v{t}, v{t+6}")
    a(f"v_max_f32 v{t+2}, 0, v{t+2}")
    a(f"v_cvt_pk_bf16_f32 v{t}, v{t}, v{t+2}")
    a(f"v_and_b32 v{t+2}, 0xffff0000, v{t}")
    a(f"v_lshlrev_b32 v{t}, 16, v{t}")
    a(f"v_add_f32 v{t+2}, 0x3727c5ac, v{t+2}")
    round_bf16(a, t+2, t+2)
    a(f"v_sqrt_f32 v{t+2}, v{t+2}")
    a(f"v_mov_b32 v{t+1}, v{t}")
    round_bf16(a, t+2, t+2)
    a(f"v_rcp_f32 v{t+2}, v{t+2}")
    a("s_nop 0")
    a(f"v_mov_b32 v{t+3}, v{t+2}")
    for i in range(8):
        a(f"v_lshlrev_b32 v{vf+2*i}, 16, v{vin+i}")
        a(f"v_and_b32 v{vf+2*i+1}, 0xffff0000, v{vin+i}")
        a(f"v_pk_add_f32 {vr(vf+2*i,2)}, {vr(vf+2*i,2)}, {vr(t,2)} neg_lo:[0,1] neg_hi:[0,1]")
        a(f"v_cvt_pk_bf16_f32 v{t+4}, v{vf+2*i}, v{vf+2*i+1}")
        a(f"v_lshlrev_b32 v{vf+2*i}, 16, v{t+4}")
        a(f"v_and_b32 v{vf+2*i+1}, 0xffff0000, v{t+4}")
        a(f"v_pk_mul_f32 {vr(vf+2*i,2)}, {vr(vf+2*i,2)}, {vr(t+2,2)}")
        a(f"v_cvt_pk_bf16_f32 v{vout+i}, v{vf+2*i}, v{vf+2*i+1}")

def gen_tail(a, cfg):
    WB=V_RING; WO_F=WB; GU_F=WB+16; WD_F=WB+48
    TT=V_RING+64
    TMP=V_T+23
    NSW=cfg.NSW
    a(f"s_cmp_ge_u32 s{S_W}, {NSW}")
    a("s_cbranch_scc1 L_t0_b5")
    a("s_nop 7")
    set_exec(a, -1, 0)
    a(f"ds_write_b128 v{PA_OW}, {vr(V_OACC,4)}")
    full_exec(a)
    a("s_waitcnt lgkmcnt(0)")
    a("L_t0_b5:")
    a("s_barrier")
    a(f"s_cmp_lg_u32 s{S_W}, {R_T1}")
    a("s_cbranch_scc1 L_t1_done")
    for w in range(8):
        a(f"ds_read_b64 {vr(TT+2*w,2)}, v{PA_OR} offset:{w*512}")
    a("s_waitcnt lgkmcnt(0)")
    a(f"v_pk_add_f32 {vr(TT,2)}, {vr(TT,2)}, {vr(TT+2,2)}")
    a(f"v_pk_add_f32 {vr(TT+4,2)}, {vr(TT+4,2)}, {vr(TT+6,2)}")
    a(f"v_pk_add_f32 {vr(TT+8,2)}, {vr(TT+8,2)}, {vr(TT+10,2)}")
    a(f"v_pk_add_f32 {vr(TT+12,2)}, {vr(TT+12,2)}, {vr(TT+14,2)}")
    a(f"v_pk_add_f32 {vr(TT,2)}, {vr(TT,2)}, {vr(TT+4,2)}")
    a(f"v_pk_add_f32 {vr(TT+8,2)}, {vr(TT+8,2)}, {vr(TT+12,2)}")
    a(f"v_pk_add_f32 {vr(TT,2)}, {vr(TT,2)}, {vr(TT+8,2)}")
    a(f"v_cvt_pk_bf16_f32 v{TT}, v{TT}, v{TT+1}")
    a(f"v_min_u32 v{TT}, -2, v{TT}")
    store_mode(a, f"global_store_dword v{PA_O}, v{TT}, {sr(P_WS,2)}", True)
    a("L_t1_done:")
    stamp(a,cfg,6)
    a(f"s_cmp_ge_u32 s{S_W}, {NSW}")
    a("s_cbranch_scc1 L_t2_go")
    frag_reads(a,"ogd")
    a("L_t2_go:")
    poll_masked(a,"t2", lambda: a(f"global_load_dwordx4 {vr(TT+32,4)}, v{PA_T2}, {sr(P_WS,2)} sc1"), range(TT+32,TT+36), cfg, TMP)
    if cfg.TAILDIAG: stamp(a,cfg,9)
    a("s_waitcnt lgkmcnt(0)")
    def gemm4_reduce_publish(F, B, dp, nw, lab):
        off=16384 if dp else 0
        for t in range(4):
            a(f"v_mfma_f32_16x16x32_bf16 {vr(TT+4*t,4)}, {vr(F+4*t,4)}, {vr(B,4)}, 0")
        if nw<8:
            a(f"s_cmp_ge_u32 s{S_W}, {nw}")
            a(f"s_cbranch_scc1 {lab}_nw")
        set_exec(a, "0x00ff00ff", "0x00ff00ff")
        a("s_nop 2")
        for t in range(4):
            a(f"ds_write_b128 v{PA_DW}, {vr(TT+4*t,4)} offset:{off+64*t}")

        full_exec(a)
        a(f"{lab}_nw:")
        a("s_waitcnt lgkmcnt(0)")
        a("s_barrier")
        a(f"s_sub_u32 s{S_T0}, s{S_W}, {R_RED0}")
        a(f"s_cmp_ge_u32 s{S_T0}, 2")
        a(f"s_cbranch_scc1 {lab}_skip")
        for w in range(nw):
            a(f"ds_read_b128 {vr(TT+4*w,4)}, v{PA_R2} offset:{off+w*2048}")
        if dp: a(f"v_add_u32 v10, {W_DP-W_AP}, v{PA_P2}")
        a("s_waitcnt lgkmcnt(0)")
        n=nw
        step=1
        idx=list(range(nw))
        while len(idx)>1:
            nxt=[]
            for i in range(0,len(idx)-1,2):
                d,s_=idx[i],idx[i+1]
                a(f"v_pk_add_f32 {vr(TT+4*d,2)}, {vr(TT+4*d,2)}, {vr(TT+4*s_,2)}")
                a(f"v_pk_add_f32 {vr(TT+4*d+2,2)}, {vr(TT+4*d+2,2)}, {vr(TT+4*s_+2,2)}")
                nxt.append(d)
            if len(idx)%2: nxt.append(idx[-1])
            idx=nxt
        for c in range(4):
            a(f"v_min_u32 v{TT+c}, -2, v{TT+c}")
        a(f"global_store_dwordx4 v{10 if dp else PA_P2}, {vr(TT,4)}, {sr(P_WS,2)} sc1")
        a(f"{lab}_skip:")
    gemm4_reduce_publish(WO_F, TT+32, False, 8, "L_t2")
    stamp(a,cfg,7)
    def ld3():
        a(f"global_load_dwordx4 {vr(TT+32,4)}, v{PA_T3A}, {sr(P_WS,2)} sc1")
        a(f"global_load_dwordx4 {vr(TT+36,4)}, v{PA_T3B}, {sr(P_WS,2)} sc1")
    poll_masked(a,"t3", ld3, range(TT+32,TT+40), cfg, TMP)
    if cfg.TAILDIAG: stamp(a,cfg,13)
    a(f"v_pk_add_f32 {vr(TT+32,2)}, {vr(TT+32,2)}, {vr(TT+36,2)}")
    a(f"v_pk_add_f32 {vr(TT+34,2)}, {vr(TT+34,2)}, {vr(TT+38,2)}")
    a(f"ds_write_b128 v{PA_T3W}, {vr(TT+32,4)}")
    a("s_waitcnt lgkmcnt(0)")
    a("s_barrier")
    a(f"s_cmp_lg_u32 s{S_W}, {R_W0}")
    a("s_cbranch_scc1 L_t3_skip")
    for w in range(8):
        a(f"ds_read_b128 {vr(TT+4*w,4)}, v{PA_T3R} offset:{w*1024}")
    a(f"v_lshlrev_b32 v{TT+40}, 16, v{V_XRES}")
    a(f"v_and_b32 v{TT+41}, 0xffff0000, v{V_XRES}")
    a(f"v_lshlrev_b32 v{TT+42}, 16, v{V_XRES+1}")
    a(f"v_and_b32 v{TT+43}, 0xffff0000, v{V_XRES+1}")
    a("s_waitcnt lgkmcnt(0)")
    for (d,s_) in ((0,1),(2,3),(4,5),(6,7),(0,2),(4,6),(0,4)):
        a(f"v_pk_add_f32 {vr(TT+4*d,2)}, {vr(TT+4*d,2)}, {vr(TT+4*s_,2)}")
        a(f"v_pk_add_f32 {vr(TT+4*d+2,2)}, {vr(TT+4*d+2,2)}, {vr(TT+4*s_+2,2)}")
    a(f"v_cvt_pk_bf16_f32 v{TT+4}, v{TT}, v{TT+1}")
    a(f"v_cvt_pk_bf16_f32 v{TT+5}, v{TT+2}, v{TT+3}")
    a(f"v_lshlrev_b32 v{TT+8}, 16, v{TT+4}")
    a(f"v_and_b32 v{TT+9}, 0xffff0000, v{TT+4}")
    a(f"v_lshlrev_b32 v{TT+10}, 16, v{TT+5}")
    a(f"v_and_b32 v{TT+11}, 0xffff0000, v{TT+5}")
    a(f"v_pk_add_f32 {vr(TT+8,2)}, {vr(TT+8,2)}, {vr(TT+40,2)}")
    a(f"v_pk_add_f32 {vr(TT+10,2)}, {vr(TT+10,2)}, {vr(TT+42,2)}")
    a(f"v_cvt_pk_bf16_f32 v{TT+6}, v{TT+8}, v{TT+9}")
    a(f"v_cvt_pk_bf16_f32 v{TT+7}, v{TT+10}, v{TT+11}")
    a(f"v_min_u32 v{TT+6}, -2, v{TT+6}")
    a(f"v_min_u32 v{TT+7}, -2, v{TT+7}")
    store_mode(a, f"global_store_dwordx2 v{PA_H}, {vr(TT+6,2)}, {sr(P_WS,2)}", True)
    a("L_t3_skip:")
    stamp(a,cfg,8)
    def ld4():
        a(f"global_load_dwordx4 {vr(TT,4)}, v{PA_T4}, {sr(P_WS,2)} sc1")
        a(f"global_load_dwordx4 {vr(TT+4,4)}, v{PA_T4}, {sr(P_WS,2)} offset:16 sc1")
    poll_masked(a,"t4", ld4, range(TT,TT+8), cfg, TMP)
    if cfg.TAILDIAG: stamp(a,cfg,14)
    a(f"s_cmp_lg_u32 s{S_W}, s{S_X}")
    a("s_cbranch_scc1 L_t4_nohs")
    a(f"s_mov_b64 exec, {sr(SM_HS,2)}")
    a(f"ds_write_b128 v{PA_HSW}, {vr(TT,4)}")
    a(f"ds_write_b128 v{PA_HSW}, {vr(TT+4,4)} offset:16")
    full_exec(a)
    a("L_t4_nohs:")
    a(f"s_cmp_ge_u32 s{S_R}, 28")
    a("s_cbranch_scc1 L_t5_skip_all")
    layernorm2(a, TT, TT+8, TT+24, V_T)
    a(f"s_mov_b64 exec, {sr(SM_LNB,2)}")
    a(f"ds_write_b128 v{PA_LNBW}, {vr(TT+24,4)}")
    a(f"ds_write_b128 v{PA_LNBW}, {vr(TT+28,4)} offset:16")
    full_exec(a)
    a("s_waitcnt lgkmcnt(0)")
    a("s_barrier")
    if not cfg.TAILDIAG: stamp(a,cfg,9)
    if cfg.TAILDIAG: stamp(a,cfg,1)
    for s in range(8):
        a(f"ds_read_b128 {vr(TT+4*s,4)}, v{PA_LNBR} offset:{64*s}")
    for s in range(8):
        c="0" if s<2 else vr(V_T+4*(s%2),4)
        a(f"s_waitcnt lgkmcnt({7-s})")
        a(f"v_mfma_f32_16x16x32_bf16 {vr(V_T+4*(s%2),4)}, {vr(GU_F+4*s,4)}, {vr(TT+4*s,4)}, {c}")
    a("s_nop 7")
    a(f"v_pk_add_f32 {vr(V_T,2)}, {vr(V_T,2)}, {vr(V_T+4,2)}")
    a(f"v_pk_add_f32 {vr(V_T+2,2)}, {vr(V_T+2,2)}, {vr(V_T+6,2)}")
    for c in range(4):
        a(f"v_min_u32 v{V_T+c}, -2, v{V_T+c}")
    set_exec(a, "0x00ff00ff", "0x00ff00ff")
    store_mode(a, f"global_store_dwordx4 v{PA_GP}, {vr(V_T,4)}, {sr(P_WS,2)}", True)
    full_exec(a)
    a(f"s_cmp_lg_u32 s{S_W}, {R_W0}")
    a("s_cbranch_scc1 L_t5_skip_all")
    a(f"s_mov_b32 s{S_T0}, 0x3d372713")
    a(f"s_mov_b32 s{S_T1}, 0xc0135761")
    def ld5():
        for k in range(4):
            for m in range(2):
                a(f"global_load_dwordx2 {vr(TT+(k*2+m)*2,2)}, v{PA_T5B+k}, {sr(P_WS,2)} offset:{m*2048} sc1")
    poll_masked(a,"t5", ld5, range(TT,TT+16), cfg, TMP)
    if cfg.TAILDIAG: stamp(a,cfg,2)
    for (d,s_) in ((0,1),(2,3),(0,2)):
        a(f"v_pk_add_f32 {vr(TT+4*d,2)}, {vr(TT+4*d,2)}, {vr(TT+4*s_,2)}")
        a(f"v_pk_add_f32 {vr(TT+4*d+2,2)}, {vr(TT+4*d+2,2)}, {vr(TT+4*s_+2,2)}")
    G=TT; U=TT+2; X=TT+4
    a(f"v_cvt_pk_bf16_f32 v{TT+8}, v{G}, v{G+1}")
    a(f"v_cvt_pk_bf16_f32 v{TT+9}, v{U}, v{U+1}")
    a(f"v_lshlrev_b32 v{G}, 16, v{TT+8}")
    a(f"v_and_b32 v{G+1}, 0xffff0000, v{TT+8}")
    a(f"v_lshlrev_b32 v{U}, 16, v{TT+9}")
    a(f"v_and_b32 v{U+1}, 0xffff0000, v{TT+9}")
    a(f"v_pk_mul_f32 {vr(X,2)}, {vr(G,2)}, {vr(G,2)}")
    a(f"v_pk_mul_f32 {vr(X,2)}, {vr(X,2)}, {vr(G,2)}")
    for c in range(2):
        a(f"v_fma_f32 v{X+c}, v{X+c}, s{S_T0}, v{G+c}")
    for c in range(2):
        a(f"v_mul_f32 v{X+c}, s{S_T1}, v{X+c}")
    for c in range(2):
        a(f"v_exp_f32 v{X+c}, v{X+c}")
    a("s_nop 0")
    for c in range(2):
        a(f"v_add_f32 v{X+c}, 1.0, v{X+c}")
    for c in range(2):
        a(f"v_rcp_f32 v{X+c}, v{X+c}")
    a("s_nop 0")
    a(f"v_pk_mul_f32 {vr(X,2)}, {vr(X,2)}, {vr(G,2)}")
    a(f"v_cvt_pk_bf16_f32 v{TT+8}, v{X}, v{X+1}")
    a(f"v_lshlrev_b32 v{X}, 16, v{TT+8}")
    a(f"v_and_b32 v{X+1}, 0xffff0000, v{TT+8}")
    a(f"v_pk_mul_f32 {vr(X,2)}, {vr(X,2)}, {vr(U,2)}")
    a(f"v_cvt_pk_bf16_f32 v{X}, v{X}, v{X+1}")
    a(f"v_min_u32 v{X}, -2, v{X}")
    store_mode(a, f"global_store_dword v{PA_ACT}, v{X}, {sr(P_WS,2)}", True)
    a("L_t5_skip_all:")
    stamp(a,cfg,10)
    a(f"s_cmp_ge_u32 s{S_W}, 7")
    a("s_cbranch_scc1 L_t6_nopoll")
    poll_masked(a,"t6", lambda: a(f"global_load_dwordx4 {vr(TT+32,4)}, v{PA_T6}, {sr(P_WS,2)} sc1"), range(TT+32,TT+36), cfg, TMP)
    if cfg.TAILDIAG: stamp(a,cfg,3)
    a("L_t6_nopoll:")
    gemm4_reduce_publish(WD_F, TT+32, True, 7, "L_t6")
    stamp(a,cfg,11)
    a(f"s_cmp_lg_u32 s{S_W}, {R_W0}")
    a("s_cbranch_scc1 L_fin")
    a(f"ds_read_u16 v{TT+10}, v{PA_HSR}")
    def ld7():
        for k in range(8):
            a(f"global_load_dword v{TT+k}, v{PA_T7+k}, {sr(P_WS,2)} sc1")
    poll_masked(a,"t7", ld7, range(TT,TT+8), cfg, TMP)
    if cfg.TAILDIAG: stamp(a,cfg,4)
    a(f"v_pk_add_f32 {vr(TT,2)}, {vr(TT,2)}, {vr(TT+2,2)}")
    a(f"v_pk_add_f32 {vr(TT+4,2)}, {vr(TT+4,2)}, {vr(TT+6,2)}")
    a(f"v_pk_add_f32 {vr(TT,2)}, {vr(TT,2)}, {vr(TT+4,2)}")
    a(f"v_add_f32 v{TT}, v{TT}, v{TT+1}")
    a(f"v_mov_b32 v{TT+1}, v{TT}")
    a("s_waitcnt lgkmcnt(0)")
    a("s_nop 0")
    a(f"v_permlane32_swap_b32 v{TT}, v{TT+1}")
    a(f"v_lshlrev_b32 v{TT+10}, 16, v{TT+10}")
    a(f"v_add_f32 v{TT}, v{TT}, v{TT+1}")
    round_bf16(a,TT,TT)
    a(f"v_add_f32 v{TT}, v{TT}, v{TT+10}")
    a(f"v_cvt_pk_bf16_f32 v{TT}, v{TT}, v{TT}")
    set_exec(a, -1, 0)
    a(f"global_store_short v{PA_OUT}, v{TT}, {sr(P_OUT,2)}")
    full_exec(a)
    a(f"s_cmp_lg_u32 s{S_ID}, 0")
    a("s_cbranch_scc1 L_fin")
    a(f"v_mov_b32 v10, {W_EPOCH}")
    a(f"v_mov_b32 v12, s{S_TAG}")
    a(f"v_mov_b32 v13, s{S_TAG+1}")
    set_exec(a, 1, 0)
    a(f"global_store_dwordx2 v10, v[12:13], {sr(P_WS,2)} sc1")
    full_exec(a)
    a("L_fin:")
    TTX=160
    if cfg.STAMPS and cfg.DBGSTAMP:
        stamp(a,cfg,12)
        a("s_waitcnt lgkmcnt(0)")
        a(f"s_cmp_lg_u32 s{S_W}, 0")
        a("s_cbranch_scc1 L_exit")
        lst=[0,1,2,4,6,7,8,10,11,12]
        for i,k in enumerate(lst):
            if k==0:
                a(f"s_not_b32 s{S_T0}, s72")
                a(f"v_mov_b32 v{TTX}, s{S_T0}")
            else:
                a(f"v_mov_b32 v{TTX}, s{72+2*k}")
            a(f"v_mov_b32 v10, {4*i}")
            set_exec(a,1,0)
            a(f"global_atomic_umax v10, v{TTX}, {sr(P_DBG,2)} sc1")
            full_exec(a)
        a(f"v_mov_b32 v{TTX}, s72")
        a(f"v_mov_b32 v10, 40")
        set_exec(a,1,0)
        a(f"global_atomic_umax v10, v{TTX}, {sr(P_DBG,2)} sc1")
        full_exec(a)
        a(f"s_not_b32 s{S_T0}, s{72+12}")
        a(f"v_mov_b32 v{TTX}, s{S_T0}")
        a(f"v_mov_b32 v10, 44")
        set_exec(a,1,0)
        a(f"global_atomic_umax v10, v{TTX}, {sr(P_DBG,2)} sc1")
        full_exec(a)
    elif cfg.STAMPS:
        stamp(a,cfg,12)
        a("s_waitcnt lgkmcnt(0)")
        for k in range(15):
            a(f"v_mov_b32 v{TTX}, s{72+2*k}")
            a(f"v_mov_b32 v{TTX+1}, s{73+2*k}")
            a(f"s_lshl_b32 s{S_T0}, s{S_ID}, 3")
            a(f"s_add_u32 s{S_T0}, s{S_T0}, s{S_W}")
            a(f"s_lshl_b32 s{S_T0}, s{S_T0}, 7")
            a(f"s_add_u32 s{S_T0}, s{S_T0}, {W_STAMP+8*k}")
            a(f"v_mov_b32 v10, s{S_T0}")
            set_exec(a,1,0)
            a(f"global_store_dwordx2 v10, {vr(TTX,2)}, {sr(P_WS,2)}")
            full_exec(a)
    a("L_exit:")
    a("s_endpgm")

HEADER = open("sequential_preLN__mha_block_cached__geglu_ffn__decode.s.ref").read().split("; Override launch geometry")[0]

def build(cfg, path):
    a,_=gen(cfg)
    gen_tail(a,cfg)
    txt = HEADER
    txt += "; Override launch geometry by editing the next line (default: block=256,\n"
    txt += f"; @launch grid=(256,1,1) block=(512,1,1) lds={LDS_BYTES}\n"
    txt += f""".amdgcn_target "amdgcn-amd-amdhsa--gfx950"
.text
.globl {KNAME}
.p2align 8
.type {KNAME},@function
"""
    txt += a.text()
    txt += f""".section .rodata,"a"
.p2align 6
.amdhsa_kernel {KNAME}
  .amdhsa_next_free_vgpr 256
  .amdhsa_next_free_sgpr 102
  .amdhsa_accum_offset 256
  .amdhsa_group_segment_fixed_size 0
  .amdhsa_kernarg_size 96
  .amdhsa_user_sgpr_count 2
  .amdhsa_user_sgpr_kernarg_segment_ptr 1
  .amdhsa_system_sgpr_workgroup_id_x 1
  .amdhsa_float_denorm_mode_32 3
.end_amdhsa_kernel
"""
    open(path,"w").write(txt)

if __name__=="__main__":
    cfg=Cfg()
    out=sys.argv[1]
    for kv in sys.argv[2:]:
        k,v=kv.split("=")
        setattr(cfg,k,eval(v))
    build(cfg,out)
```

```python
import sys

KNAME = "sequential_preLN__mha_block_cached__geglu_ffn__decode_kernel"

class Cfg:
    NSW = 2
    L = 10
    HV = 1
    QFAST = True
    KFLAGS = "nt"
    VFLAGS = "nt"
    WFLAGS = "nt"
    FASTMODE = True
    SPIN = 1 << 20
    STAMPS = False
    P0 = 4
    P = 4
    P1 = 8
    DMAPAUSE = False
    RING_EARLY = True
    RAMP = 0
    CODEPF = True
    LATE_L = 12
    LATE_THR = 26
    LK = 0
    NODMA2 = False
    KNOP = 7
    KEXP = 0
    PIPE_I = 0
    PIPE_X = 0
    HIGH_INLINE = True
    LNDRY = False
    TAILDIAG = False
    PSLEEP = 0
    QSLEEP = 0
    QWAIT = 64
    DBGSTAMP = False

L_WO   = 0
L_WG   = 32768
L_WU   = 65536
L_WD   = 98304
L_WQ   = 126976
L_SC   = 126976
L_RED  = 143360
L_LNA  = 159744
L_QS   = 161920
L_ML   = 162176
L_HS   = 162208
L_QF   = 162272
L_LS   = 162288
L_MODE = 162320
L_SEL  = 162352
L_END  = 162368
LNA_P  = 272
LNB_P  = 528
L_LNB  = L_SC
LDS_BYTES = 163840

W_QP  = 0x500000
W_RDY = 0x000000
W_EPOCH = 0x010000
W_KD = 0x014000
W_GRDY = 0x012000
W_OB  = 0x100000
W_AP  = 0x120000
W_HB  = 0x1A0000
W_GP  = 0x1C0000
W_ACT = 0x2A0000
W_DP  = 0x2B0000
W_STAMP = 0x400000

D_CLR = 32*4
D_XCC = 40*4

S_ID=2; S_W=3; S_X=4; S_R=5; S_H=6; S_B=7
P_X=16; P_K=18; P_V=20; P_WQ=22; P_WO=24; P_WG=28; P_WU=30; P_WD=32; P_OUT=34; P_DBG=36; P_WS=38
SRD_K=40; SRD_V=44
S_KOFF=48
S_FAST=49
S_SPIN=50
S_T0=52; S_T1=53; S_T2=54; S_T3=55; S_T4=56; S_T5=57
S_B0=58
S_B1=60
S_EX=62
S_M=64
S_M2=66
S_SCALE=68; S_LOG2E=69
S_DN=12; S_DS=13; S_DM=14; S_LOOP=15; S_LNW=27
S_TAG=98
S_TAG=66
S_ST=70

V_TID=0; V_LANE=1
V_MASK=16
V_KOFF=20; V_VOFF=21; V_SCW=22; V_PPR=23; V_MAX=24
V_DMA=25
V_QADDR=26
V_QA=32
V_SACC=48
V_SACC2=140
V_OACC=52
V_A0=56; V_A1=60
V_PP0=64; V_PP1=68
V_T=72
V_RING=96
V_X=160

class Asm:
    def __init__(self):
        self.L=[]; self.n=0; self.main=self.L; self.O=[]
    def ool(self, on):
        self.L = self.O if on else self.main
    def __call__(self, s):
        for line in s.split("\n"):
            line=line.strip()
            if line: self.L.append(("" if line.endswith(":") else "  ")+line)
    def label(self, base):
        self.n+=1
        return f"L_{base}_{self.n}"
    def text(self): return "\n".join(self.main+self.O+["L_codeend:"])+"\n"

def vr(b,n): return f"v[{b}:{b+n-1}]"
def sr(b,n): return f"s[{b}:{b+n-1}]"

def wave_sum(a, v, tmp, op="add"):
    ins = "v_add_f32" if op=="add" else "v_max_f32"
    for k in (8,4,2,1):
        a(f"s_nop 1")
        a(f"{ins}_dpp {'v%d'%v}, v{v}, v{v} row_ror:{k} row_mask:0xf bank_mask:0xf")
    a("s_nop 1")
    a(f"v_readlane_b32 s{S_T0}, v{v}, 0")
    a(f"v_readlane_b32 s{S_T1}, v{v}, 16")
    a(f"v_readlane_b32 s{S_T2}, v{v}, 32")
    a(f"v_readlane_b32 s{S_T3}, v{v}, 48")
    a("s_nop 1")
    a(f"v_mov_b32 v{v}, s{S_T0}")
    a(f"{ins} v{v}, s{S_T1}, v{v}")
    a(f"{ins} v{v}, s{S_T2}, v{v}")
    a(f"{ins} v{v}, s{S_T3}, v{v}")

def round_bf16(a, dst, src):
    a(f"v_cvt_pk_bf16_f32 v{dst}, v{src}, v{src}")
    a(f"v_and_b32 v{dst}, 0xffff0000, v{dst}")

def layernorm(a, vin, vf, vout, t):
    for i in range(8):
        a(f"v_lshlrev_b32 v{vf+2*i}, 16, v{vin+i}")
        a(f"v_and_b32 v{vf+2*i+1}, 0xffff0000, v{vin+i}")
    a(f"v_add_f32 v{t}, v{vf}, v{vf+1}")
    for i in range(2,16):
        a(f"v_add_f32 v{t}, v{t}, v{vf+i}")
    wave_sum(a, t, t+1)
    a(f"v_mul_f32 v{t}, 0x3a800000, v{t}")
    a(f"v_sub_f32 v{t+1}, v{vf}, v{t}")
    a(f"v_mul_f32 v{t+2}, v{t+1}, v{t+1}")
    for i in range(1,16):
        a(f"v_sub_f32 v{t+1}, v{vf+i}, v{t}")
        a(f"v_fmac_f32 v{t+2}, v{t+1}, v{t+1}")
    wave_sum(a, t+2, t+1)
    a(f"v_mul_f32 v{t+2}, 0x3a800000, v{t+2}")
    round_bf16(a, t, t)
    round_bf16(a, t+2, t+2)
    a(f"v_add_f32 v{t+2}, 0x3727c5ac, v{t+2}")
    round_bf16(a, t+2, t+2)
    a(f"v_sqrt_f32 v{t+2}, v{t+2}")
    a("s_nop 0")
    round_bf16(a, t+2, t+2)
    a(f"v_rcp_f32 v{t+2}, v{t+2}")
    a("s_nop 0")
    for i in range(8):
        a(f"v_sub_f32 v{vf+2*i}, v{vf+2*i}, v{t}")
        a(f"v_sub_f32 v{vf+2*i+1}, v{vf+2*i+1}, v{t}")
        a(f"v_cvt_pk_bf16_f32 v{t+1}, v{vf+2*i}, v{vf+2*i+1}")
        a(f"v_lshlrev_b32 v{vf+2*i}, 16, v{t+1}")
        a(f"v_and_b32 v{vf+2*i+1}, 0xffff0000, v{t+1}")
        a(f"v_mul_f32 v{vf+2*i}, v{vf+2*i}, v{t+2}")
        a(f"v_mul_f32 v{vf+2*i+1}, v{vf+2*i+1}, v{t+2}")
        a(f"v_cvt_pk_bf16_f32 v{vout+i}, v{vf+2*i}, v{vf+2*i+1}")

def set_exec(a, lo, hi):
    a(f"s_mov_b32 exec_lo, {lo}")
    a(f"s_mov_b32 exec_hi, {hi}")
def full_exec(a):
    a("s_mov_b64 exec, -1")

def poll_loop(a, name, loads, regs, cfg):
    lp=a.label(name+"_poll"); dn=a.label(name+"_ok")
    a(f"s_mov_b32 s{S_SPIN}, {cfg.SPIN}")
    a(f"{lp}:")
    loads()
    a("s_waitcnt vmcnt(0)")
    t=V_T+23
    rs=list(regs)
    a(f"v_max_u32 v{t}, v{rs[0]}, v{rs[1] if len(rs)>1 else rs[0]}")
    i=2
    while i<len(rs):
        if i+1<len(rs):
            a(f"v_max3_u32 v{t}, v{t}, v{rs[i]}, v{rs[i+1]}"); i+=2
        else:
            a(f"v_max_u32 v{t}, v{t}, v{rs[i]}"); i+=1
    a(f"v_cmp_eq_u32 vcc, -1, v{t}")
    a(f"s_cbranch_vccz {dn}")
    a(f"s_sub_u32 s{S_SPIN}, s{S_SPIN}, 1")
    a(f"s_cmp_lg_u32 s{S_SPIN}, 0")
    a(f"s_cbranch_scc1 {lp}")
    a(f"{dn}:")

def store_mode(a, instr, intra):
    if not intra:
        a(instr+" sc1"); return
    l1=a.label("st_slow"); l2=a.label("st_done")
    a(f"s_cmp_eq_u32 s{S_FAST}, 0")
    a(f"s_cbranch_scc1 {l1}")
    a(instr)
    a(f"s_branch {l2}")
    a(f"{l1}:")
    a(instr+" sc1")
    a(f"{l2}:")

def stamp(a, cfg, idx):
    if not cfg.STAMPS: return
    a(f"s_memrealtime s[{72+2*idx}:{73+2*idx}]")


def emit_clears(a, sfx=''):
    a(f"v_mov_b32 v12, -1\nv_mov_b32 v13, -1\nv_mov_b32 v14, -1\nv_mov_b32 v15, -1")
    a(f"s_lshr_b32 s{S_T4}, s{S_R}, 4")
    a(f"s_and_b32 s{S_T5}, s{S_R}, 15")
    a(f"s_lshl_b32 s{S_T1}, s{S_X}, 1")
    a(f"s_add_u32 s{S_T1}, s{S_T1}, s{S_T4}")
    a(f"s_lshl_b32 s{S_T0}, s{S_T1}, 15")
    a(f"s_lshl_b32 s{S_T1}, s{S_T5}, 8")
    a(f"s_add_u32 s{S_T0}, s{S_T0}, s{S_T1}")
    a(f"v_lshlrev_b32 v10, 12, v3")
    a(f"v_lshlrev_b32 v11, 4, v2")
    a(f"v_add3_u32 v10, v10, v11, s{S_T0}")
    for base in (W_AP, W_DP):
        a(f"v_add_u32 v11, {base}, v10")
        a(f"global_store_dwordx4 v11, v[12:15], {sr(P_WS,2)} sc1")
        a(f"v_add_u32 v11, {base+4*4096}, v10")
        a(f"global_store_dwordx4 v11, v[12:15], {sr(P_WS,2)} sc1")
    a(f"s_lshl_b32 s{S_T0}, s{S_H}, 3")
    a(f"s_add_u32 s{S_T0}, s{S_T0}, s{S_B}")
    a(f"s_lshl_b32 s{S_T0}, s{S_T0}, 8")
    a(f"s_add_u32 s{S_T0}, s{S_T0}, {W_OB}")
    a(f"v_add_u32 v10, s{S_T0}, v{V_VOFF}")
    set_exec(a, "0xffff", 0)
    a(f"global_store_dwordx4 v10, v[12:15], {sr(P_WS,2)} sc1")
    full_exec(a)
    a(f"s_lshr_b32 s{S_T0}, s{S_R}, 2")
    a(f"s_lshl_b32 s{S_T1}, s{S_X}, 3")
    a(f"s_add_u32 s{S_T0}, s{S_T0}, s{S_T1}")
    a(f"s_lshl_b32 s{S_T0}, s{S_T0}, 11")
    a(f"s_and_b32 s{S_T1}, s{S_R}, 3")
    a(f"s_lshl_b32 s{S_T1}, s{S_T1}, 9")
    a(f"s_add_u32 s{S_T0}, s{S_T0}, s{S_T1}")
    a(f"s_add_u32 s{S_T0}, s{S_T0}, {W_HB}")
    a(f"v_add_u32 v10, s{S_T0}, v{V_VOFF}")
    set_exec(a, -1, 0)
    a(f"global_store_dwordx4 v10, v[12:15], {sr(P_WS,2)} sc1")
    full_exec(a)
    a(f"s_cmp_ge_u32 s{S_R}, 28")
    a(f"s_cbranch_scc1 L_clr_done{sfx}")
    a(f"s_mul_i32 s{S_T0}, s{S_X}, 28")
    a(f"s_add_u32 s{S_T0}, s{S_T0}, s{S_R}")
    a(f"s_lshl_b32 s{S_T0}, s{S_T0}, 12")
    a(f"s_add_u32 s{S_T0}, s{S_T0}, {W_GP}")
    a(f"v_add_u32 v10, s{S_T0}, v{V_VOFF}")
    for n in range(4):
        a(f"global_store_dwordx4 v10, v[12:15], {sr(P_WS,2)} offset:{n*1024} sc1")
    a(f"s_mul_i32 s{S_T0}, s{S_R}, 37")
    a(f"s_lshr_b32 s{S_T0}, s{S_T0}, 8")
    a(f"s_mul_i32 s{S_T1}, s{S_T0}, 7")
    a(f"s_sub_u32 s{S_T1}, s{S_R}, s{S_T1}")
    a(f"s_lshl_b32 s{S_T0}, s{S_T0}, 1")
    a(f"s_lshl_b32 s{S_T2}, s{S_X}, 3")
    a(f"s_add_u32 s{S_T0}, s{S_T0}, s{S_T2}")
    a(f"s_mul_i32 s{S_T0}, s{S_T0}, 896")
    a(f"s_lshl_b32 s{S_T1}, s{S_T1}, 7")
    a(f"s_add_u32 s{S_T0}, s{S_T0}, s{S_T1}")
    a(f"s_add_u32 s{S_T0}, s{S_T0}, {W_ACT}")
    a(f"v_lshrrev_b32 v10, 3, v{V_LANE}")
    a(f"v_mul_u32_u24 v10, 896, v10")
    a(f"v_and_b32 v11, 7, v{V_LANE}")
    a(f"v_lshlrev_b32 v11, 4, v11")
    a(f"v_add3_u32 v10, v10, v11, s{S_T0}")
    set_exec(a, "0xffff", 0)
    a(f"global_store_dwordx4 v10, v[12:15], {sr(P_WS,2)} sc1")
    full_exec(a)
    a(f"L_clr_done{sfx}:")


def emit_extras(a):
    a(f"s_lshl_b32 s{S_T0}, s{S_W}, 9")
    a(f"v_and_b32 v10, 31, v{V_LANE}")
    a(f"v_lshlrev_b32 v10, 4, v10")
    a(f"v_add_u32 v10, s{S_T0}, v10")
    a(f"v_add_u32 v9, {W_RDY}, v10")
    a(f"global_load_dwordx4 {vr(V_RDY,4)}, v9, {sr(P_WS,2)} sc1")
    a(f"s_lshr_b32 s{S_T0}, s{S_R}, 2")
    a(f"s_lshl_b32 s{S_T0}, s{S_T0}, 11")
    a(f"s_and_b32 s{S_T1}, s{S_R}, 3")
    a(f"s_lshl_b32 s{S_T1}, s{S_T1}, 9")
    a(f"s_add_u32 s{S_T0}, s{S_T0}, s{S_T1}")
    a(f"v_lshlrev_b32 v11, 3, v{V_LANE}")
    a(f"v_add_u32 v11, s{S_T0}, v11")
    a(f"global_load_dwordx2 {vr(V_XRES,2)}, v11, {sr(P_X,2)}")

def koff_init(a):
    a(f"s_lshr_b32 s{S_KOFF}, s{S_W}, 2")
    a(f"s_lshl_b32 s{S_KOFF}, s{S_KOFF}, 7")
    a(f"s_and_b32 s{S_T5}, s{S_W}, 3")
    a(f"s_add_u32 s{S_KOFF}, s{S_KOFF}, s{S_T5}")
    a(f"s_lshl_b32 s{S_KOFF}, s{S_KOFF}, 12")

def emit_rdy(a):
    a(f"s_getreg_b32 s{S_T0}, hwreg(HW_REG_XCC_ID, 0, 4)")
    a(f"s_lshl_b32 s{S_T1}, s{S_X}, 5")
    a(f"s_add_u32 s{S_T1}, s{S_T1}, s{S_R}")
    a(f"s_lshl_b32 s{S_T1}, s{S_T1}, 4")
    a(f"s_add_u32 s{S_T1}, s{S_T1}, {W_RDY}")
    a(f"v_mov_b32 v10, s{S_T1}")
    a(f"v_mov_b32 v12, s{S_T0}")
    a(f"v_mov_b32 v13, 0")
    a(f"v_mov_b32 v14, s{S_TAG}")
    a(f"v_mov_b32 v15, s{S_TAG+1}")
    set_exec(a, 1, 0)
    a(f"global_store_dwordx4 v10, v[12:15], {sr(P_WS,2)} sc1")
    full_exec(a)

def gen(cfg):
    a=Asm()
    NSW=cfg.NSW; L=cfg.L; HV=cfg.HV
    LK=cfg.LK or L
    NH=8-NSW
    KT=256//NSW
    VT=(256-NH*HV)//NSW
    assert VT*NSW+NH*HV==256, "V tiles must split evenly"
    NK=4*KT; NV=4*VT
    TSTEP=NSW*4096
    def kload(j):
        reg=V_RING+(j%LK)*4
        a(f"buffer_load_dwordx4 {vr(reg,4)}, v{V_KOFF}, {sr(SRD_K,4)}, s{S_KOFF} offen offset:{(j%4)*1024} {cfg.KFLAGS}")
        if j%4==3: a(f"s_add_u32 s{S_KOFF}, s{S_KOFF}, {TSTEP}")
    def vload(jv, first=False):
        reg=V_RING+((NK-LK+jv)%LK)*4
        if first:
            a(f"s_add_u32 s{S_KOFF}, s{S_W}, {NH*HV}")
            a(f"s_lshl_b32 s{S_KOFF}, s{S_KOFF}, 12")
        a(f"buffer_load_dwordx4 {vr(reg,4)}, v{V_VOFF}, {sr(SRD_V,4)}, s{S_KOFF} offen offset:{(jv%4)*1024} {cfg.VFLAGS}")
        if jv%4==3: a(f"s_add_u32 s{S_KOFF}, s{S_KOFF}, {TSTEP}")
    a(f"{KNAME}:")
    a(f"s_cmp_ge_u32 s{S_ID}, 256")
    a("s_cbranch_scc1 L_exit")
    a("s_load_dwordx16 s[16:31], s[0:1], 0")
    a("s_load_dwordx8 s[32:39], s[0:1], 64")
    if cfg.CODEPF:
        a(f"s_getpc_b64 {sr(S_B1,2)}")
        a("L_pf0:")
        a(f"s_add_u32 s{S_B1}, s{S_B1}, {KNAME}-L_pf0")
        a(f"s_addc_u32 s{S_B1+1}, s{S_B1+1}, -1")
        a(f"v_lshlrev_b32 v10, 6, v0")
        a(f"v_cmp_gt_u32 vcc, L_codeend-{KNAME}, v10")
        a(f"s_and_saveexec_b64 {sr(S_EX,2)}, vcc")
        a("s_cbranch_execz L_pf0_done")
        a(f"global_load_dword v15, v10, {sr(S_B1,2)}")
        a("L_pf0_done:")
        a(f"s_mov_b64 exec, {sr(S_EX,2)}")
    stamp(a,cfg,0)
    a(f"v_lshrrev_b32 v2, 6, v0")
    a(f"v_and_b32 v{V_LANE}, 63, v0")
    a(f"s_and_b32 s{S_X}, s{S_ID}, 7")
    a(f"v_readfirstlane_b32 s{S_W}, v2")
    a(f"s_lshr_b32 s{S_R}, s{S_ID}, 3")
    a(f"s_lshr_b32 s{S_T0}, s{S_R}, 3")
    a(f"s_lshl_b32 s{S_H}, s{S_X}, 2")
    a(f"s_add_u32 s{S_H}, s{S_H}, s{S_T0}")
    a(f"s_and_b32 s{S_B}, s{S_R}, 7")
    a(f"v_and_b32 v2, 15, v{V_LANE}")
    a(f"v_lshrrev_b32 v3, 4, v{V_LANE}")
    a(f"v_lshlrev_b32 v{V_VOFF}, 4, v{V_LANE}")
    a(f"v_lshrrev_b32 v4, 2, v2")
    a(f"v_and_b32 v5, 3, v2")
    a(f"v_lshlrev_b32 v6, 8, v4")
    a(f"v_lshlrev_b32 v7, 6, v3")
    a(f"v_lshlrev_b32 v8, 4, v5")
    a(f"v_add3_u32 v{V_KOFF}, v6, v7, v8")
    a(f"v_mov_b32 v{V_DMA}, 0")
    a("s_waitcnt lgkmcnt(0)")
    a(f"s_load_dwordx2 {sr(S_TAG,2)}, {sr(P_WS,2)}, {W_EPOCH}")
    a(f"s_lshl_b32 s{S_T0}, s{S_B}, 5")
    a(f"s_add_u32 s{S_T0}, s{S_T0}, s{S_H}")
    a(f"s_lshl_b32 s{S_T0}, s{S_T0}, 20")
    for srd,p in ((SRD_K,P_K),(SRD_V,P_V)):
        a(f"s_add_u32 s{srd}, s{p}, s{S_T0}")
        a(f"s_addc_u32 s{srd+1}, s{p+1}, 0")
        a(f"s_and_b32 s{srd+1}, s{srd+1}, 0xffff")
        a(f"s_mov_b32 s{srd+2}, 0x100000")
        a(f"s_mov_b32 s{srd+3}, 0x20000")
    a(f"s_lshl_b32 s{S_T0}, s{S_W}, 11")
    a(f"v_lshlrev_b32 v9, 5, v{V_LANE}")
    a(f"v_add_u32 v9, s{S_T0}, v9")
    a(f"global_load_dwordx4 {vr(V_X,4)}, v9, {sr(P_X,2)}")
    a(f"global_load_dwordx4 {vr(V_X+4,4)}, v9, {sr(P_X,2)} offset:16")
    if cfg.HIGH_INLINE:
        a(f"s_cmp_lt_u32 s{S_W}, 4")
        a("s_cbranch_scc1 L_lowwaves")
    else:
        a(f"s_cmp_ge_u32 s{S_W}, 4")
        a("s_cbranch_scc1 L_high")
        a.ool(True)
    a("L_high:")
    a(f"v_lshrrev_b32 v10, 3, v{V_LANE}")
    a(f"v_and_b32 v11, 7, v{V_LANE}")
    a(f"v_lshlrev_b32 v11, 4, v11")
    a(f"s_lshr_b32 s{S_T4}, s{S_R}, 4")
    a(f"s_and_b32 s{S_T5}, s{S_R}, 15")
    a(f"s_cmp_eq_u32 s{S_W}, 4")
    a("s_cbranch_scc1 L_dma_wo")
    a(f"s_cmp_eq_u32 s{S_W}, 7")
    a("s_cbranch_scc1 L_dma_wd")
    a(f"s_cmp_ge_u32 s{S_R}, 28")
    a("s_cbranch_scc1 L_dma_done")
    a(f"s_mul_i32 s{S_T0}, s{S_R}, 37")
    a(f"s_lshr_b32 s{S_T0}, s{S_T0}, 8")
    a(f"s_mul_i32 s{S_T1}, s{S_T0}, 7")
    a(f"s_sub_u32 s{S_T1}, s{S_R}, s{S_T1}")
    a(f"s_mul_i32 s{S_T0}, s{S_T0}, {256*7168}")
    a(f"s_mul_i32 s{S_T2}, s{S_X}, 896")
    a(f"s_lshl_b32 s{S_T1}, s{S_T1}, 7")
    a(f"s_add_u32 s{S_T0}, s{S_T0}, s{S_T2}")
    a(f"s_add_u32 s{S_T0}, s{S_T0}, s{S_T1}")
    a(f"s_cmp_eq_u32 s{S_W}, 5")
    a(f"s_cselect_b32 s{S_B0}, s{P_WG}, s{P_WU}")
    a(f"s_cselect_b32 s{S_B0+1}, s{P_WG+1}, s{P_WU+1}")
    a(f"s_mov_b32 s{S_T3}, {L_WU}")
    a(f"s_cselect_b32 s{S_T3}, {L_WG}, s{S_T3}")
    a(f"s_add_u32 s{S_B0}, s{S_B0}, s{S_T0}")
    a(f"s_addc_u32 s{S_B0+1}, s{S_B0+1}, 0")
    a(f"s_mov_b32 s{S_T0}, 7168")
    a(f"s_mov_b32 s{S_T1}, 32")
    a("s_branch L_dma_go")
    a("L_dma_wo:")
    a(f"s_lshl_b32 s{S_T0}, s{S_X}, 1")
    a(f"s_add_u32 s{S_T0}, s{S_T0}, s{S_T4}")
    a(f"s_lshl_b32 s{S_T0}, s{S_T0}, 19")
    a(f"s_lshl_b32 s{S_T1}, s{S_T5}, 7")
    a(f"s_add_u32 s{S_T0}, s{S_T0}, s{S_T1}")
    a(f"s_add_u32 s{S_B0}, s{P_WO}, s{S_T0}")
    a(f"s_addc_u32 s{S_B0+1}, s{P_WO+1}, 0")
    a(f"s_mov_b32 s{S_T3}, {L_WO}")
    a(f"s_mov_b32 s{S_T0}, 2048")
    a(f"s_mov_b32 s{S_T1}, 32")
    a("s_branch L_dma_go")
    a("L_dma_wd:")
    a(f"s_lshl_b32 s{S_T0}, s{S_X}, 1")
    a(f"s_add_u32 s{S_T0}, s{S_T0}, s{S_T4}")
    a(f"s_mul_i32 s{S_T0}, s{S_T0}, {224*2048}")
    a(f"s_lshl_b32 s{S_T1}, s{S_T5}, 7")
    a(f"s_add_u32 s{S_T0}, s{S_T0}, s{S_T1}")
    a(f"s_add_u32 s{S_B0}, s{P_WD}, s{S_T0}")
    a(f"s_addc_u32 s{S_B0+1}, s{P_WD+1}, 0")
    a(f"s_mov_b32 s{S_T3}, {L_WD}")
    a(f"s_mov_b32 s{S_T0}, 2048")
    a(f"s_mov_b32 s{S_T1}, 28")
    a("L_dma_go:")
    a(f"v_mul_lo_u32 v10, v10, s{S_T0}")
    a(f"s_lshl_b32 s{S_T0}, s{S_T0}, 3")
    a(f"v_add_u32 v10, v10, v11")
    a(f"s_mov_b32 m0, s{S_T3}")
    a("s_nop 0")
    for n in range(cfg.P0):
        a(f"global_load_lds_dwordx4 v10, {sr(S_B0,2)} {cfg.WFLAGS}")
        a(f"s_add_u32 m0, m0, 1024")
        a(f"s_add_u32 s{S_B0}, s{S_B0}, s{S_T0}")
        a(f"s_addc_u32 s{S_B0+1}, s{S_B0+1}, 0")
    a(f"s_sub_u32 s{S_DN}, s{S_T1}, {cfg.P0}")
    a(f"s_mov_b32 s{S_DS}, s{S_T0}")
    a(f"s_mov_b32 s{S_DM}, m0")
    a(f"v_mov_b32 v{V_DMA}, v10")
    a(f"s_mov_b32 s{S_LNW}, 1") if cfg.LNDRY else a(f"s_waitcnt vmcnt({cfg.P0})")
    a("s_branch L_ln1")
    a("L_dma_done:")
    a(f"s_mov_b32 s{S_DN}, 0")
    a(f"s_mov_b32 s{S_B0}, s{P_WS}")
    a(f"s_mov_b32 s{S_B0+1}, s{P_WS+1}")
    a(f"v_mov_b32 v{V_DMA}, 0")
    a(f"s_mov_b32 s{S_LNW}, 0") if cfg.LNDRY else a("s_waitcnt vmcnt(0)")
    a("s_branch L_ln1")

    a.ool(False)
    a("L_lowwaves:")
    a(f"v_lshlrev_b32 v12, 13, v3")
    a(f"v_lshlrev_b32 v11, 1, v3")
    a(f"v_xor_b32 v10, v2, v11")
    a(f"v_xor_b32 v11, 8, v10")
    a(f"v_lshl_add_u32 v10, v10, 4, v12")
    a(f"v_lshl_add_u32 v11, v11, 4, v12")
    a(f"s_lshl_b32 s{S_T0}, s{S_B}, 7")
    a(f"s_lshl_b32 s{S_T1}, s{S_W}, 5")
    a(f"s_add_u32 s{S_T0}, s{S_T0}, s{S_T1}")
    a(f"s_lshl_b32 s{S_T0}, s{S_T0}, 13")
    a(f"s_lshl_b32 s{S_T1}, s{S_H}, 8")
    a(f"s_add_u32 s{S_T0}, s{S_T0}, s{S_T1}")
    a(f"s_add_u32 s{S_B0}, s{P_WQ}, s{S_T0}")
    a(f"s_addc_u32 s{S_B0+1}, s{P_WQ+1}, 0")
    a(f"s_lshl_b32 s{S_T1}, s{S_W}, 13")
    a(f"s_add_u32 m0, s{S_T1}, {L_WQ}")
    a("s_nop 0")
    for n in range(8):
        a(f"global_load_lds_dwordx4 v{10+((n>>1)&1)}, {sr(S_B0,2)} {cfg.WFLAGS}")
        if n<7:
            a(f"s_add_u32 m0, m0, 1024")
            a(f"s_add_u32 s{S_B0}, s{S_B0}, {4*8192}")
            a(f"s_addc_u32 s{S_B0+1}, s{S_B0+1}, 0")
    if cfg.RING_EARLY:
        a(f"s_cmp_ge_u32 s{S_W}, {NSW}")
        a("s_cbranch_scc1 L_low_nostr")
        a(f"s_lshl_b32 s{S_KOFF}, s{S_W}, 12")
        for j in range(LK): kload(j)
        a(f"s_mov_b32 s{S_LNW}, 2") if cfg.LNDRY else a(f"s_waitcnt vmcnt({8+LK})")
        a("s_branch L_ln1_low")
        a("L_low_nostr:")
    a(f"s_mov_b32 s{S_LNW}, 3") if cfg.LNDRY else a(f"s_waitcnt vmcnt(8)")
    a("L_ln1_low:")
    a("L_ln1:")
    if cfg.LNDRY:
        a(f"s_or_b32 s{S_LNW}, s{S_LNW}, 0x10")
        a("L_ln1_again:")
    layernorm2(a, V_X, V_X+8, V_X+24, V_T)
    if cfg.LNDRY:
        a(f"s_bitcmp0_b32 s{S_LNW}, 4")
        a("s_cbranch_scc1 L_ln1_done")
        a(f"s_and_b32 s{S_LNW}, s{S_LNW}, 0xf")
        for k,n in ((0,0),(1,cfg.P0),(2,8+LK),(3,8)):
            a(f"s_cmp_lg_u32 s{S_LNW}, {k}")
            a(f"s_cbranch_scc1 L_lnw{k}")
            a(f"s_waitcnt vmcnt({n})")
            a(f"L_lnw{k}:")
        a("s_branch L_ln1_again")
        a("L_ln1_done:")
    a(f"s_lshl_b32 s{S_T0}, s{S_B}, 3")
    a(f"v_subrev_u32 v10, s{S_T0}, v{V_LANE}")
    a(f"v_cmp_gt_u32 vcc, 8, v10")
    a(f"s_mul_i32 s{S_T1}, s{S_W}, {LNA_P}")
    a(f"s_add_u32 s{S_T1}, s{S_T1}, {L_LNA}")
    a(f"v_lshlrev_b32 v10, 5, v10")
    a(f"v_add_u32 v10, s{S_T1}, v10")
    a(f"s_and_saveexec_b64 {sr(S_EX,2)}, vcc")
    a(f"ds_write_b128 v10, {vr(V_X+24,4)}")
    a(f"ds_write_b128 v10, {vr(V_X+28,4)} offset:16")
    a(f"s_mov_b64 exec, {sr(S_EX,2)}")
    a(f"s_cmp_ge_u32 s{S_W}, 4")
    a("s_cbranch_scc1 L_b1")
    if cfg.RING_EARLY:
        a(f"s_cmp_ge_u32 s{S_W}, {NSW}")
        a("s_cbranch_scc1 L_b1_ns")
        a(f"s_waitcnt vmcnt({LK})")
        a("s_branch L_b1")
        a("L_b1_ns:")
    a("s_waitcnt vmcnt(0)")
    a("L_b1:")
    a("s_waitcnt lgkmcnt(0)")
    a(f"s_cmp_lg_u32 s{S_W}, 0")
    a("s_cbranch_scc1 L_noqf")
    a(f"v_mov_b32 v10, {L_QF}")
    a(f"v_mov_b32 v11, 0")
    a(f"ds_write_b32 v10, v11")
    a("s_waitcnt lgkmcnt(0)")
    a("L_noqf:")
    a("s_barrier")
    stamp(a,cfg,1)
    a(f"s_add_u32 s{S_TAG}, s{S_TAG}, 1")
    a(f"s_addc_u32 s{S_TAG+1}, s{S_TAG+1}, 0")
    a(f"v_and_b32 v10, 1, v2")
    a(f"v_cmp_eq_u32 vcc, 1, v10")
    a(f"v_mov_b32 v11, 0xffff")
    a(f"v_mov_b32 v12, 0xffff0000")
    a(f"v_cndmask_b32 v11, v11, v12, vcc")
    a(f"v_lshrrev_b32 v10, 1, v2")
    for w in range(4):
        a(f"v_cmp_eq_u32 vcc, {w}, v10")
        a("s_nop 1")
        a(f"v_cndmask_b32 v{V_MASK+w}, 0, v11, vcc")
    a(f"v_mov_b32 v{V_MAX}, 0xff800000")
    a(f"s_mov_b32 s{S_SCALE}, 0x3db504f3")
    a(f"s_mov_b32 s{S_LOG2E}, 0x3fb8aa3b")
    for c in range(4):
        a(f"v_mov_b32 v{V_OACC+c}, 0")
    a(f"s_cmp_ge_u32 s{S_W}, 4")
    a("s_cbranch_scc1 L_high2")
    a.ool(True)
    a("L_high2:")
    if cfg.NODMA2: a(f"s_mov_b32 s{S_DN}, 0")
    a(f"s_cmp_eq_u32 s{S_DN}, 0")
    a("s_cbranch_scc1 L_dma2_done")
    if cfg.DMAPAUSE:
        a(f"v_mov_b32 v10, {L_QF}")
        a(f"s_mov_b32 s{S_SPIN}, {cfg.SPIN}")
        a("L_dp_wait:")
        a(f"ds_read_b32 v11, v10")
        a("s_waitcnt lgkmcnt(0)")
        a(f"v_readfirstlane_b32 s{S_T0}, v11")
        a("s_nop 1")
        a(f"s_cmp_lg_u32 s{S_T0}, 0")
        a("s_cbranch_scc1 L_dma2_loop")
        a("s_sleep 2")
        a(f"s_sub_u32 s{S_SPIN}, s{S_SPIN}, 1")
        a(f"s_cmp_lg_u32 s{S_SPIN}, 0")
        a("s_cbranch_scc1 L_dp_wait")
    a("L_dma2_loop:")
    a(f"s_waitcnt vmcnt({cfg.P-1})")
    a(f"global_load_lds_dwordx4 v{V_DMA}, {sr(S_B0,2)} {cfg.WFLAGS}")
    a(f"s_add_u32 m0, m0, 1024")
    a(f"s_add_u32 s{S_B0}, s{S_B0}, s{S_DS}")
    a(f"s_addc_u32 s{S_B0+1}, s{S_B0+1}, 0")
    a(f"s_sub_u32 s{S_DN}, s{S_DN}, 1")
    a(f"s_cmp_lg_u32 s{S_DN}, 0")
    a("s_cbranch_scc1 L_dma2_loop")
    a("L_dma2_done:")
    a("s_waitcnt vmcnt(0)")
    stamp(a,cfg,13)
    emit_precompute(a,cfg)
    emit_rdycheck(a,cfg)
    a("s_branch L_kdone")
    a.ool(False)
    a("L_q_low:")
    if not cfg.RING_EARLY:
        a(f"s_cmp_ge_u32 s{S_W}, {NSW}")
        a("s_cbranch_scc1 L_ring_late_skip")
        a(f"s_lshl_b32 s{S_KOFF}, s{S_W}, 12")
        for j in range(LK): kload(j)
        a("L_ring_late_skip:")
    a(f"s_cmp_lt_u32 s{S_W}, 2")
    a("s_cbranch_scc1 L_q_01")
    a.ool(True)
    a("L_q_01:")
    emit_precompute(a,cfg)
    a(f"s_cmp_eq_u32 s{S_W}, 0")
    a("s_cbranch_scc1 L_q_w0")
    a("s_branch L_q_w1")
    a.ool(False)
    a("L_q_prod:")
    a(f"v_and_b32 v10, 7, v{V_LANE}")
    a(f"v_mul_u32_u24 v10, {LNA_P}, v10")
    a(f"v_lshlrev_b32 v11, 4, v3")
    a(f"v_add_u32 v10, v10, v11")
    a(f"v_add_u32 v10, {L_LNA}, v10")
    for s_ in range(4):
        a(f"ds_read_b128 {vr(V_X+4*s_,4)}, v10 offset:{64*s_}")
    a(f"v_lshlrev_b32 v11, 3, v3")
    a(f"v_add_u32 v11, v11, v4")
    a(f"v_lshlrev_b32 v11, 8, v11")
    a(f"v_lshlrev_b32 v12, 3, v5")
    a(f"v_add3_u32 v11, v11, v12, {0}") if False else None
    a(f"v_add_u32 v11, v11, v12")
    a(f"v_add_u32 v11, {L_WQ}, v11")
    a(f"v_and_b32 v12, 1, v3")
    a(f"v_lshlrev_b32 v12, 2, v12")
    a(f"v_or_b32 v12, v12, v4")
    a(f"s_sub_u32 s{S_T4}, s{S_W}, 2")
    a(f"s_lshl_b32 s{S_T0}, s{S_T4}, 2")
    a(f"v_xor_b32 v12, s{S_T0}, v12")
    for tt in range(4):
        a(f"v_xor_b32 v13, {tt}, v12")
        a(f"v_lshl_add_u32 v{V_T+16+tt}, v13, 5, v11")
    for tt in range(4):
        for s_ in range(4):
            for hf in range(2):
                reg=V_RING+tt*16+s_*4+hf*2
                a(f"ds_read_b64_tr_b16 {vr(reg,2)}, v{V_T+16+tt} offset:{(32*s_+4*hf)*256}")
    a(f"s_lshl_b32 s{S_T0}, s{S_H}, 3")
    a(f"s_add_u32 s{S_T0}, s{S_T0}, s{S_B}")
    a(f"s_lshl_b32 s{S_T0}, s{S_T0}, 13")
    a(f"s_lshl_b32 s{S_T1}, s{S_T4}, 9")
    a(f"s_add_u32 s{S_T0}, s{S_T0}, s{S_T1}")
    a(f"s_add_u32 s{S_T0}, s{S_T0}, {W_QP}")
    a(f"v_lshlrev_b32 v10, 10, v2")
    a(f"v_lshlrev_b32 v11, 5, v3")
    a(f"v_add3_u32 v{V_QADDR}, v10, v11, s{S_T0}")
    G=V_X+16
    for tt in range(4):
        for hh in range(2):
            b=G+8*tt+4*hh
            a(f"v_mov_b32 v{b+2}, s{S_TAG}")
            a(f"v_mov_b32 v{b+3}, s{S_TAG+1}")
    a("s_waitcnt lgkmcnt(0)")
    for s_ in range(4):
        for tt in range(4):
            c = "0" if s_==0 else vr(V_T+4*tt,4)
            a(f"v_mfma_f32_16x16x32_bf16 {vr(V_T+4*tt,4)}, {vr(V_RING+tt*16+s_*4,4)}, {vr(V_X+4*s_,4)}, {c}")
    a("s_nop 7")
    for tt in range(4):
        for hh in range(2):
            b=G+8*tt+4*hh
            a(f"v_mov_b32 v{b}, v{V_T+4*tt+2*hh}")
            a(f"v_mov_b32 v{b+1}, v{V_T+4*tt+2*hh+1}")
    def qstores(fl):
        set_exec(a, "0x00ff00ff", "0x00ff00ff")
        for tt in range(4):
            for hh in range(2):
                a(f"global_store_dwordx4 v{V_QADDR}, {vr(G+8*tt+4*hh,4)}, {sr(P_WS,2)} offset:{128*tt+16*hh} {fl}")
        full_exec(a)
    qstores("" if cfg.QFAST else "sc1")
    stamp(a,cfg,13)
    a("s_branch L_prod2")
    a.ool(True)
    a("L_prod2:")
    if cfg.QFAST:
        a(f"v_mov_b32 v10, {L_QF}")
        a(f"s_mov_b32 s{S_SPIN}, {cfg.QWAIT}")
        a("L_qc_wait:")
        a("s_sleep 4")
        a(f"ds_read_b32 v11, v10")
        a("s_waitcnt lgkmcnt(0)")
        a(f"v_readfirstlane_b32 s{S_T0}, v11")
        a("s_nop 1")
        a(f"s_cmp_lg_u32 s{S_T0}, 0")
        a("s_cbranch_scc1 L_qc_go")
        a(f"s_sub_u32 s{S_SPIN}, s{S_SPIN}, 1")
        a(f"s_cmp_lg_u32 s{S_SPIN}, 0")
        a("s_cbranch_scc1 L_qc_wait")
        a("L_qc_go:")
        qstores("sc1")
    a(f"s_cmp_lg_u32 s{S_W}, 3")
    a("s_cbranch_scc1 L_q_prod2")
    emit_clears(a)
    a("s_waitcnt vmcnt(0)")
    emit_rdy(a)
    a("L_q_prod2:")
    emit_precompute(a,cfg)
    if cfg.CODEPF:
        a(f"s_cmp_lg_u32 s{S_W}, 2")
        a("s_cbranch_scc1 L_pf1_skip")
        emit_codepf(a,cfg,"L_pf1","L_q_ready","L_exit")
        a("L_pf1_skip:")
    a(f"global_load_dwordx2 {vr(V_XRES,2)}, v9, {sr(P_X,2)}")
    a("s_branch L_kdone")
    a.ool(False)
    a("L_q_w1:")
    if NSW<2:
        a("s_branch L_kdone")
    a(f"v_mov_b32 v10, {L_QF}")
    a(f"s_mov_b32 s{S_SPIN}, {cfg.SPIN}")
    a("L_qf_wait:")
    a(f"ds_read_b32 v11, v10")
    a("s_waitcnt lgkmcnt(0)")
    a(f"v_readfirstlane_b32 s{S_T0}, v11")
    a("s_nop 1")
    a(f"s_cmp_lg_u32 s{S_T0}, 0")
    a("s_cbranch_scc1 L_q_ready")
    a(f"s_sub_u32 s{S_SPIN}, s{S_SPIN}, 1")
    a(f"s_cmp_lg_u32 s{S_SPIN}, 0")
    a("s_cbranch_scc1 L_qf_wait")
    a("s_branch L_q_ready")
    a("L_q_w0:")
    a(f"s_lshl_b32 s{S_T0}, s{S_H}, 16")
    a(f"s_lshl_b32 s{S_T1}, s{S_B}, 10")
    a(f"s_add_u32 s{S_T0}, s{S_T0}, s{S_T1}")
    a(f"s_add_u32 s{S_T0}, s{S_T0}, {W_QP}")
    a(f"v_add_u32 v10, s{S_T0}, v{V_VOFF}")
    for j in range(8):
        a(f"v_add_u32 v{V_T+8+j}, {j*8192}, v10")
    PQ=V_X+16
    lp=a.label("qpoll"); dn=a.label("qok")
    a(f"s_mov_b32 s{S_SPIN}, {cfg.SPIN}")
    a(f"{lp}:")
    for j in range(8):
        a(f"global_load_dwordx4 {vr(PQ+4*j,4)}, v{V_T+8+j}, {sr(P_WS,2)} sc1")
    a("s_waitcnt vmcnt(0)")
    a(f"v_mov_b32 v11, 0")
    for j in range(8):
        a(f"v_xor_b32 v12, s{S_TAG}, v{PQ+4*j+2}")
        a(f"v_xor_b32 v13, s{S_TAG+1}, v{PQ+4*j+3}")
        a(f"v_or3_b32 v11, v11, v12, v13")
    a(f"v_cmp_ne_u32 vcc, 0, v11")
    a(f"s_cbranch_vccz {dn}")
    if cfg.QSLEEP: a(f"s_sleep {cfg.QSLEEP}")
    a(f"s_sub_u32 s{S_SPIN}, s{S_SPIN}, 1")
    a(f"s_cmp_lg_u32 s{S_SPIN}, 0")
    a(f"s_cbranch_scc1 {lp}")
    a(f"{dn}:")
    stamp(a,cfg,14)
    for j in range(1,8):
        a(f"v_add_f32 v{PQ}, v{PQ}, v{PQ+4*j}")
        a(f"v_add_f32 v{PQ+1}, v{PQ+1}, v{PQ+4*j+1}")
    a(f"v_cvt_pk_bf16_f32 v{PQ+2}, v{PQ}, v{PQ+1}")
    a(f"v_lshlrev_b32 v11, 2, v{V_LANE}")
    a(f"v_add_u32 v11, {L_QS}, v11")
    a(f"ds_write_b32 v11, v{PQ+2}")
    a("s_waitcnt lgkmcnt(0)")
    a(f"v_mov_b32 v10, {L_QF}")
    a(f"v_mov_b32 v11, 1")
    a(f"ds_write_b32 v10, v11")
    a("L_q_ready:")
    stamp(a,cfg,2)
    a(f"v_lshlrev_b32 v10, 2, v3")
    a(f"v_add_u32 v10, v10, v5")
    a(f"v_lshlrev_b32 v10, 4, v10")
    a(f"v_add_u32 v10, {L_QS}, v10")
    a(f"ds_read_b128 {vr(V_T,4)}, v10")
    a(f"s_lshl_b32 s{S_T0}, s{S_W}, 6")
    a(f"s_add_u32 s{S_T0}, s{S_T0}, {L_SC}")
    a(f"v_lshlrev_b32 v10, 4, v4")
    a(f"v_lshlrev_b32 v11, 2, v3")
    a(f"v_add3_u32 v{V_SCW}, v10, v11, s{S_T0}")
    a("s_waitcnt lgkmcnt(0)")
    for n in range(4):
        a(f"v_cmp_eq_u32 vcc, {n}, v4")
        a("s_nop 1")
        for c in range(4):
            a(f"v_cndmask_b32 v{V_QA+4*n+c}, 0, v{V_T+c}, vcc")
    import math
    PERK=LK*4//math.gcd(LK,4)
    def kpost(acc, sc_off):
        t=V_T
        a(f"v_mov_b32_dpp v{t}, v{acc} quad_perm:[0,0,0,0] row_mask:0xf bank_mask:0xf")
        for q in range(1,4):
            a(f"v_add_f32_dpp v{t}, v{acc+q}, v{t} quad_perm:[{q},{q},{q},{q}] row_mask:0xf bank_mask:0xf")
        round_bf16(a,t,t)
        a(f"v_mul_f32 v{t}, s{S_SCALE}, v{t}")
        round_bf16(a,t,t)
        a(f"v_max_f32 v{V_MAX}, v{V_MAX}, v{t}")
        a(f"ds_write_b32 v{V_SCW}, v{t} offset:{sc_off}")
    def kbody(j, wait_n, reissue, sc_off, prev_off=None, last=False):
        a(f"s_waitcnt vmcnt({wait_n})")
        a("s_nop 0")
        n=j%4
        if cfg.KEXP==2:
            acc=V_SACC if (j//4)%2==0 else V_SACC2
        else:
            acc=V_SACC
        c="0" if n==0 else vr(acc,4)
        a(f"v_mfma_f32_16x16x32_bf16 {vr(acc,4)}, {vr(V_QA+4*n,4)}, {vr(V_RING+(j%LK)*4,4)}, {c}")
        reissue()
        if cfg.KEXP==2:
            if n==1 and prev_off is not None:
                kpost(V_SACC2 if (j//4)%2==0 else V_SACC, prev_off)
            if n==3 and last:
                a("s_nop 7")
                kpost(acc, sc_off)
        elif n==3:
            if cfg.KEXP==1: return
            a("s_nop 7")
            kpost(acc, sc_off)
    if cfg.KEXP==2 and (PERK//4)%2: PERK*=2
    nloop=(NK-LK)//PERK
    TS=NSW*64
    if cfg.KEXP==2:
        for j in range(4):
            kbody(j, LK-1, (lambda j=j: kload(j+LK)), 0, None)
        base=4
        nloop=(NK-LK-4)//PERK
    else:
        base=0
    a(f"s_mov_b32 s{S_LOOP}, {nloop}")
    a(".p2align 6")
    a("L_kloop:")
    for j in range(base,base+PERK):
        kbody(j, LK-1, (lambda j=j: kload(j+LK)), ((j-0)//4)*TS, ((j//4)-1)*TS)
    a(f"v_add_u32 v{V_SCW}, {(PERK//4)*TS}, v{V_SCW}")
    a(f"s_sub_u32 s{S_LOOP}, s{S_LOOP}, 1")
    a(f"s_cmp_lg_u32 s{S_LOOP}, 0")
    a("s_cbranch_scc1 L_kloop")
    done=base+nloop*PERK
    for j in range(done, NK):
        m=j+LK
        if m<NK: ri=(lambda m=m: kload(m)); wn=LK-1
        elif m-NK<L: ri=(lambda m=m: vload(m-NK, first=(m==NK))); wn=LK-1
        else: ri=(lambda: None); wn=(NK-1-j)+L
        rel=(j-nloop*PERK)//4
        kbody(j, wn, ri, rel*TS, (rel-1)*TS, last=(j==NK-1))
    a("L_kdone:")
    stamp(a,cfg,3)
    wave_sum(a, V_MAX, V_T, op="max")
    a(f"s_lshl_b32 s{S_T0}, s{S_W}, 2")
    a(f"s_add_u32 s{S_T0}, s{S_T0}, {L_ML}")
    a(f"v_mov_b32 v11, s{S_T0}")
    a(f"ds_write_b32 v11, v{V_MAX}")
    a("s_waitcnt lgkmcnt(0)")
    a("s_barrier")
    if cfg.LATE_L:
        a(f"s_cmp_lg_u32 s{S_W}, 2")
        a("s_cbranch_scc1 L_nokd")
        a(f"v_mov_b32 v12, {L_MODE}")
        a(f"ds_read_b32 v13, v12")
        a(f"s_lshl_b32 s{S_T0}, s{S_X}, 9")
        a(f"s_add_u32 s{S_T0}, s{S_T0}, {W_KD}")
        a(f"v_and_b32 v10, 31, v{V_LANE}")
        a(f"v_lshlrev_b32 v10, 4, v10")
        a(f"v_add_u32 v10, s{S_T0}, v10")
        a(f"global_load_dwordx4 {vr(V_RDY,4)}, v10, {sr(P_WS,2)} sc1")
        a(f"s_lshl_b32 s{S_T1}, s{S_R}, 4")
        a(f"s_add_u32 s{S_T0}, s{S_T0}, s{S_T1}")
        a(f"v_mov_b32 v10, s{S_T0}")
        a(f"v_mov_b32 v{V_X+8}, 1")
        a(f"v_mov_b32 v{V_X+9}, 0")
        a(f"v_mov_b32 v{V_X+10}, s{S_TAG}")
        a(f"v_mov_b32 v{V_X+11}, s{S_TAG+1}")
        a("s_waitcnt lgkmcnt(0)")
        a(f"v_readfirstlane_b32 s{S_FAST}, v13")
        a("s_nop 1")
        set_exec(a,1,0)
        store_mode(a, f"global_store_dwordx4 v10, {vr(V_X+8,4)}, {sr(P_WS,2)}", True)
        full_exec(a)
        a("L_nokd:")
    a(f"s_cmp_lt_u32 s{S_W}, {NSW}")
    a("s_cbranch_scc1 L_nohv")
    a(f"s_sub_u32 s{S_T0}, s{S_W}, {NSW}")
    a(f"s_mul_i32 s{S_T0}, s{S_T0}, {HV*4096}")
    for t in range(HV):
        for n in range(4):
            a(f"buffer_load_dwordx4 {vr(V_RING+t*16+n*4,4)}, v{V_VOFF}, {sr(SRD_V,4)}, s{S_T0} offen offset:{n*1024} {cfg.VFLAGS}")
        if t<HV-1: a(f"s_add_u32 s{S_T0}, s{S_T0}, 4096")
    a("L_nohv:")
    a(f"v_mov_b32 v12, {L_MODE}")
    a(f"ds_read_b32 v13, v12")
    a(f"v_mov_b32 v11, {L_ML}")
    a(f"ds_read_b128 {vr(V_X,4)}, v11")
    a(f"ds_read_b128 {vr(V_X+4,4)}, v11 offset:16")
    a(f"s_lshl_b32 s{S_T4}, s{S_W}, 11")
    a(f"s_add_u32 s{S_T4}, s{S_T4}, {L_SC}")
    a(f"v_lshlrev_b32 v10, 5, v{V_LANE}")
    a(f"v_add_u32 v10, s{S_T4}, v10")
    a(f"ds_read_b128 {vr(V_T,4)}, v10")
    a(f"ds_read_b128 {vr(V_T+4,4)}, v10 offset:16")
    a("s_waitcnt lgkmcnt(2)")
    a(f"v_readfirstlane_b32 s{S_FAST}, v13")
    a(f"v_max3_f32 v{V_MAX}, v{V_X}, v{V_X+1}, v{V_X+2}")
    a(f"v_max3_f32 v{V_MAX}, v{V_MAX}, v{V_X+3}, v{V_X+4}")
    a(f"v_max3_f32 v{V_MAX}, v{V_MAX}, v{V_X+5}, v{V_X+6}")
    a(f"v_max_f32 v{V_MAX}, v{V_MAX}, v{V_X+7}")
    a("s_waitcnt lgkmcnt(0)")
    for i in range(8):
        a(f"v_sub_f32 v{V_T+8+i}, v{V_T+i}, v{V_MAX}")
        a(f"v_mul_f32 v{V_T+8+i}, s{S_LOG2E}, v{V_T+8+i}")
        a(f"v_exp_f32 v{V_T+8+i}, v{V_T+8+i}")
    a("s_nop 0")
    a(f"v_add_f32 v{V_T+16}, v{V_T+8}, v{V_T+9}")
    for i in range(2,8):
        a(f"v_add_f32 v{V_T+16}, v{V_T+16}, v{V_T+8+i}")
    wave_sum(a, V_T+16, V_T+17)
    a(f"s_lshl_b32 s{S_T0}, s{S_W}, 2")
    a(f"s_add_u32 s{S_T0}, s{S_T0}, {L_LS}")
    a(f"v_mov_b32 v11, s{S_T0}")
    a(f"ds_write_b32 v11, v{V_T+16}")
    a("s_waitcnt lgkmcnt(0)")
    a("s_barrier")
    a(f"v_mov_b32 v11, {L_LS}")
    a(f"ds_read_b128 {vr(V_X,4)}, v11")
    a(f"ds_read_b128 {vr(V_X+4,4)}, v11 offset:16")
    a("s_waitcnt lgkmcnt(0)")
    a(f"v_add_f32 v{V_T+16}, v{V_X}, v{V_X+1}")
    for k in range(2,8):
        a(f"v_add_f32 v{V_T+16}, v{V_T+16}, v{V_X+k}")
    a(f"v_rcp_f32 v{V_T+17}, v{V_T+16}")
    a("s_nop 0")
    a(f"v_fma_f32 v{V_T+18}, -v{V_T+16}, v{V_T+17}, 1.0")
    a(f"v_fma_f32 v{V_T+17}, v{V_T+18}, v{V_T+17}, v{V_T+17}")
    for i in range(8):
        a(f"v_mul_f32 v{V_T+8+i}, v{V_T+8+i}, v{V_T+17}")
        a(f"v_cvt_pk_bf16_f32 v{V_T+8+i}, v{V_T+8+i}, v{V_T+8+i}")
    a(f"ds_write_b128 v10, {vr(V_T+8,4)}")
    a(f"ds_write_b128 v10, {vr(V_T+12,4)} offset:16")
    if cfg.LATE_L:
        a(f"s_cmp_lg_u32 s{S_W}, 2")
        a("s_cbranch_scc1 L_nokd2")
        a(f"s_waitcnt vmcnt({1+4*HV})")
        a(f"v_xor_b32 v11, s{S_TAG}, v{V_RDY+2}")
        a(f"v_xor_b32 v15, s{S_TAG+1}, v{V_RDY+3}")
        a(f"v_or_b32 v11, v11, v15")
        a(f"v_cmp_eq_u32 vcc, 0, v11")
        a("s_nop 1")
        a(f"s_bcnt1_i32_b32 s{S_T0}, vcc_lo")
        a(f"s_cmp_ge_u32 s{S_T0}, {cfg.LATE_THR}")
        a(f"s_cselect_b32 s{S_T0}, 1, 0")
        a(f"v_mov_b32 v11, {L_SEL}")
        a(f"v_mov_b32 v15, s{S_T0}")
        a(f"ds_write_b32 v11, v15")
        a("L_nokd2:")
    a("s_waitcnt lgkmcnt(0)")
    a("s_barrier")
    stamp(a,cfg,4)
    def ands(dst,pp):
        for w in range(4):
            a(f"v_and_b32 v{dst+w}, v{pp}, v{V_MASK+w}")
    a(f"s_cmp_lt_u32 s{S_W}, {NSW}")
    a("s_cbranch_scc1 L_vstream")
    a(f"s_sub_u32 s{S_T0}, s{S_W}, {NSW}")
    a(f"s_mul_i32 s{S_T0}, s{S_T0}, {HV*64}")
    a(f"s_add_u32 s{S_T0}, s{S_T0}, {L_SC}")
    a(f"v_lshlrev_b32 v10, 4, v3")
    a(f"v_add_u32 v10, s{S_T0}, v10")
    for t in range(HV):
        a(f"ds_read_b128 {vr(V_PP0,4)}, v10 offset:{t*64}")
        a(f"s_waitcnt vmcnt({4*(HV-1-t)}) lgkmcnt(0)")
        for n in range(4):
            A=V_A0 if n%2==0 else V_A1
            ands(A,V_PP0+n)
            a("s_nop 1")
            a(f"v_mfma_f32_16x16x32_bf16 {vr(V_OACC,4)}, {vr(A,4)}, {vr(V_RING+t*16+4*n,4)}, {vr(V_OACC,4)}")
    a("s_nop 7")
    set_exec(a, -1, 0)
    a(f"ds_write_b128 v{PA_OW}, {vr(V_OACC,4)}")
    full_exec(a)
    frag_reads(a,"ogd")
    if cfg.CODEPF:
        a(f"s_cmp_lg_u32 s{S_W}, 4")
        a("s_cbranch_scc1 L_pf2_skip")
        emit_codepf(a,cfg,"L_pf2","L_vdone","L_exit")
        a("L_pf2_skip:")
    a("s_waitcnt vmcnt(0) lgkmcnt(0)")
    a("s_branch L_vdone")
    a("L_vstream:")
    a(f"s_add_u32 s{S_T0}, s{S_W}, {NH*HV}")
    a(f"s_lshl_b32 s{S_T0}, s{S_T0}, 6")
    a(f"s_add_u32 s{S_T0}, s{S_T0}, {L_SC}")
    a(f"v_lshlrev_b32 v10, 4, v3")
    a(f"v_add_u32 v{V_PPR}, s{S_T0}, v10")
    a(f"ds_read_b128 {vr(V_PP0,4)}, v{V_PPR}")
    import math as _m
    base_ring=[(NK-LK+v)%LK for v in range(L)]
    spare=[x for x in range(16) if x not in base_ring]
    def vstream(LV, sfx):
        ring=base_ring+spare[:LV-L]
        def issue(jn):
            reg=V_RING+ring[jn%LV]*4
            a(f"buffer_load_dwordx4 {vr(reg,4)}, v{V_VOFF}, {sr(SRD_V,4)}, s{S_KOFF} offen offset:{(jn%4)*1024} {cfg.VFLAGS}")
            if jn%4==3: a(f"s_add_u32 s{S_KOFF}, s{S_KOFF}, {TSTEP}")
        for jn in range(L,LV): issue(jn)
        def body(jv, rel, wait_n, reissue, last_tile):
            n=jv%4; par=(jv//4)%2
            pp = V_PP0 if par==0 else V_PP1
            ppn = V_PP1 if par==0 else V_PP0
            if n==0:
                if not last_tile:
                    a(f"ds_read_b128 {vr(ppn,4)}, v{V_PPR} offset:{(rel+1)*NSW*64}")
                    a(f"s_waitcnt lgkmcnt(1)")
                    a("s_nop 0")
                else:
                    a(f"s_waitcnt lgkmcnt(0)")
                    a("s_nop 0")
            A=V_A0 if n%2==0 else V_A1
            ands(A,pp+n)
            a(f"s_waitcnt vmcnt({wait_n})")
            a("s_nop 0")
            a(f"v_mfma_f32_16x16x32_bf16 {vr(V_OACC,4)}, {vr(A,4)}, {vr(V_RING+ring[jv%LV]*4,4)}, {vr(V_OACC,4)}")
            if reissue: issue(jv+LV)
        per=LV*4//_m.gcd(LV,4)
        if (per//4)%2: per*=2
        nl=(NV-LV)//per
        a(f"s_mov_b32 s{S_LOOP}, {nl}")
        a(".p2align 6")
        a(f"L_vloop{sfx}:")
        for jv in range(per): body(jv, jv//4, LV-1, True, False)
        a(f"v_add_u32 v{V_PPR}, {(per//4)*NSW*64}, v{V_PPR}")
        a(f"s_sub_u32 s{S_LOOP}, s{S_LOOP}, 1")
        a(f"s_cmp_lg_u32 s{S_LOOP}, 0")
        a(f"s_cbranch_scc1 L_vloop{sfx}")
        start=nl*per
        for jv in range(start,NV):
            re=(jv+LV<NV)
            wn=LV-1 if re or jv+LV==NV else NV-1-jv
            wn=min(LV-1, NV-1-jv)
            body(jv, (jv-start)//4, wn, re, jv//4==VT-1)
    if cfg.LATE_L:
        a(f"v_mov_b32 v10, {L_SEL}")
        a(f"ds_read_b32 v11, v10")
        a("s_waitcnt lgkmcnt(0)")
        a(f"v_readfirstlane_b32 s{S_T0}, v11")
        a("s_nop 1")
        a(f"s_cmp_lg_u32 s{S_T0}, 0")
        a("s_cbranch_scc1 L_vlate")
    vstream(L,"")
    if cfg.LATE_L:
        a("s_branch L_vdone")
        a.ool(True)
        a("L_vlate:")
        vstream(cfg.LATE_L,"b")
        a("s_branch L_vdone")
        a.ool(False)
    a("L_vdone:")
    stamp(a,cfg,5)
    return a, None

PA=208
PA_O=PA+0; PA_T2=PA+1; PA_DW=PA+2; PA_R2=PA+3; PA_P2=PA+4; PA_T3A=PA+5; PA_T3B=PA+6; PA_T3W=PA+7; PA_T3R=PA+8; PA_H=PA+9
PA_T4=PA+10; PA_LNBW=PA+11; PA_HSW=PA+12; PA_LNBR=PA+13; PA_GP=PA+14; PA_ACT=PA+15; PA_T6=PA+16; PA_OUT=PA+17; PA_HSR=PA+18
PA_OW=PA+19; PA_OR=PA+20; PA_TR=PA+21
PA_T5B=PA+24
PA_T7=PA+28
V_XRES=PA+36
V_RDY=PA+40
SM_LNB=8; SM_HS=10
R_T1=2; R_RED0=2
R_W0=3

def emit_precompute(a, cfg):
    global SM_LNB, SM_HS
    T0,T1,T2,T3,T4,T5=S_T0,S_T1,S_T2,S_T3,S_T4,S_T5
    a(f"s_lshl_b32 s{T0}, s{S_H}, 3")
    a(f"s_add_u32 s{T0}, s{T0}, s{S_B}")
    a(f"s_lshl_b32 s{T0}, s{T0}, 8")
    a(f"s_add_u32 s{T0}, s{T0}, {W_OB}")
    a(f"v_lshlrev_b32 v10, 2, v{V_LANE}")
    a(f"v_add_u32 v{PA_O}, s{T0}, v10")
    a(f"s_lshl_b32 s{T0}, s{S_W}, 9")
    a(f"s_add_u32 s{T0}, s{T0}, {L_RED}")
    a(f"v_lshlrev_b32 v11, 5, v2")
    a(f"v_lshlrev_b32 v12, 4, v3")
    a(f"v_add3_u32 v{PA_OW}, v11, v12, s{T0}")
    a(f"v_lshlrev_b32 v11, 3, v{V_LANE}")
    a(f"v_add_u32 v{PA_OR}, {L_RED}, v11")
    a(f"v_lshlrev_b32 v11, 3, v3")
    a(f"v_add_u32 v11, v11, v4")
    a(f"v_lshlrev_b32 v11, 7, v11")
    a(f"v_lshlrev_b32 v13, 3, v5")
    a(f"v_add_u32 v{PA_TR}, v11, v13")
    a(f"s_lshr_b32 s{T4}, s{S_R}, 4")
    a(f"s_and_b32 s{T5}, s{S_R}, 15")
    a(f"v_and_b32 v14, 7, v{V_LANE}")
    a(f"s_lshl_b32 s{T0}, s{S_X}, 2")
    a(f"s_lshl_b32 s{T1}, s{T4}, 1")
    a(f"s_add_u32 s{T0}, s{T0}, s{T1}")
    a(f"s_lshr_b32 s{T1}, s{S_W}, 2")
    a(f"s_add_u32 s{T0}, s{T0}, s{T1}")
    a(f"s_lshl_b32 s{T0}, s{T0}, 11")
    a(f"s_and_b32 s{T1}, s{S_W}, 3")
    a(f"s_lshl_b32 s{T1}, s{T1}, 6")
    a(f"s_add_u32 s{T0}, s{T0}, s{T1}")
    a(f"s_add_u32 s{T0}, s{T0}, {W_OB}")
    a(f"v_lshlrev_b32 v10, 8, v14")
    a(f"v_add3_u32 v{PA_T2}, v10, v12, s{T0}")
    a(f"s_lshl_b32 s{T0}, s{S_W}, 11")
    a(f"s_add_u32 s{T0}, s{T0}, {L_SC}")
    a(f"v_lshlrev_b32 v10, 8, v2")
    a(f"v_xor_b32 v11, v3, v5")
    a(f"v_lshlrev_b32 v11, 4, v11")
    a(f"v_add3_u32 v{PA_DW}, v10, v11, s{T0}")
    a(f"s_sub_u32 s{T0}, s{S_W}, {R_RED0}")
    a(f"s_lshl_b32 s{T0}, s{T0}, 6")
    a(f"v_add_u32 v10, s{T0}, v{V_LANE}")
    a(f"v_and_b32 v10, 127, v10")
    a(f"v_lshrrev_b32 v11, 4, v10")
    a(f"v_and_b32 v13, 3, v11")
    a(f"v_xor_b32 v13, v13, v10")
    a(f"v_lshlrev_b32 v13, 4, v13")
    a(f"v_add_u32 v{PA_R2}, {L_SC}, v13")
    a(f"s_lshl_b32 s{T0}, s{S_X}, 1")
    a(f"s_add_u32 s{T0}, s{T0}, s{T4}")
    a(f"s_lshl_b32 s{T0}, s{T0}, 15")
    a(f"s_lshl_b32 s{T1}, s{T5}, 8")
    a(f"s_add_u32 s{T0}, s{T0}, s{T1}")
    a(f"s_add_u32 s{T0}, s{T0}, {W_AP}")
    a(f"v_lshrrev_b32 v11, 4, v10")
    a(f"v_lshlrev_b32 v11, 12, v11")
    a(f"v_lshlrev_b32 v13, 4, v2")
    a(f"v_add3_u32 v{PA_P2}, v11, v13, s{T0}")
    a(f"s_lshr_b32 s{T0}, s{S_R}, 2")
    a(f"s_lshl_b32 s{T0}, s{T0}, 12")
    a(f"s_and_b32 s{T1}, s{S_R}, 3")
    a(f"s_lshl_b32 s{T1}, s{T1}, 10")
    a(f"s_add_u32 s{T0}, s{T0}, s{T1}")
    a(f"s_lshl_b32 s{T1}, s{S_W}, 16")
    a(f"s_add_u32 s{T0}, s{T0}, s{T1}")
    a(f"s_add_u32 s{T0}, s{T0}, {W_AP}")
    a(f"v_add_u32 v{PA_T3A}, s{T0}, v{V_VOFF}")
    a(f"v_add_u32 v{PA_T3B}, 32768, v{PA_T3A}")
    RED3=L_RED+4096
    a(f"s_lshl_b32 s{T0}, s{S_W}, 10")
    a(f"s_add_u32 s{T0}, s{T0}, {RED3}")
    a(f"v_add_u32 v{PA_T3W}, s{T0}, v{V_VOFF}")
    a(f"v_add_u32 v{PA_T3R}, {RED3}, v{V_VOFF}")
    a(f"s_lshr_b32 s{T0}, s{S_R}, 2")
    a(f"s_lshl_b32 s{T1}, s{S_X}, 3")
    a(f"s_add_u32 s{T0}, s{T0}, s{T1}")
    a(f"s_lshl_b32 s{T0}, s{T0}, 11")
    a(f"s_and_b32 s{T1}, s{S_R}, 3")
    a(f"s_lshl_b32 s{T1}, s{T1}, 9")
    a(f"s_add_u32 s{T0}, s{T0}, s{T1}")
    a(f"s_add_u32 s{T0}, s{T0}, {W_HB}")
    a(f"v_lshlrev_b32 v10, 3, v{V_LANE}")
    a(f"v_add_u32 v{PA_H}, s{T0}, v10")
    a(f"s_lshr_b32 s{T0}, s{S_R}, 2")
    a(f"s_lshl_b32 s{T0}, s{T0}, 11")
    a(f"s_add_u32 s{T0}, s{T0}, s{T1}")
    a(f"v_add_u32 v9, s{T0}, v10")
    a(f"s_lshl_b32 s{T0}, s{S_X}, 3")
    a(f"s_add_u32 s{T0}, s{T0}, s{S_W}")
    a(f"s_lshl_b32 s{T0}, s{T0}, 11")
    a(f"s_add_u32 s{T0}, s{T0}, {W_HB}")
    a(f"v_lshlrev_b32 v10, 5, v{V_LANE}")
    a(f"v_add_u32 v{PA_T4}, s{T0}, v10")
    a(f"s_mul_i32 s{T2}, s{S_R}, 37")
    a(f"s_lshr_b32 s{T2}, s{T2}, 8")
    a(f"s_mul_i32 s{T3}, s{T2}, 7")
    a(f"s_sub_u32 s{T3}, s{S_R}, s{T3}")
    a(f"s_lshl_b32 s{T0}, s{T2}, 4")
    a(f"v_subrev_u32 v10, s{T0}, v{V_LANE}")
    a(f"v_cmp_gt_u32 {sr(SM_LNB,2)}, 16, v10")
    a(f"s_mul_i32 s{T1}, s{S_W}, {LNB_P}")
    a(f"s_add_u32 s{T1}, s{T1}, {L_LNB}")
    a(f"v_lshlrev_b32 v10, 5, v10")
    a(f"v_add_u32 v{PA_LNBW}, s{T1}, v10")
    a(f"s_lshl_b32 s{T0}, s{S_R}, 1")
    a(f"v_subrev_u32 v10, s{T0}, v{V_LANE}")
    a(f"v_cmp_gt_u32 {sr(SM_HS,2)}, 2, v10")
    a(f"v_lshlrev_b32 v10, 5, v10")
    a(f"v_add_u32 v{PA_HSW}, {L_HS}, v10")
    a(f"v_mul_u32_u24 v10, {LNB_P}, v14")
    a(f"v_add_u32 v10, v10, v12")
    a(f"v_add_u32 v{PA_LNBR}, {L_LNB}, v10")
    a(f"s_mul_i32 s{T0}, s{S_X}, 28")
    a(f"s_add_u32 s{T0}, s{T0}, s{S_R}")
    a(f"s_lshl_b32 s{T0}, s{T0}, 12")
    a(f"s_lshr_b32 s{T1}, s{S_W}, 2")
    a(f"s_lshl_b32 s{T1}, s{T1}, 11")
    a(f"s_add_u32 s{T0}, s{T0}, s{T1}")
    a(f"s_and_b32 s{T1}, s{S_W}, 3")
    a(f"s_lshl_b32 s{T1}, s{T1}, 6")
    a(f"s_add_u32 s{T0}, s{T0}, s{T1}")
    a(f"s_add_u32 s{T0}, s{T0}, {W_GP}")
    a(f"v_lshlrev_b32 v10, 8, v2")
    a(f"v_add3_u32 v{PA_GP}, v10, v12, s{T0}")
    a(f"s_mul_i32 s{T0}, s{S_X}, 28")
    a(f"s_add_u32 s{T0}, s{T0}, s{T3}")
    a(f"s_lshl_b32 s{T0}, s{T0}, 12")
    a(f"s_lshl_b32 s{T1}, s{T2}, 9")
    a(f"s_add_u32 s{T0}, s{T0}, s{T1}")
    a(f"s_add_u32 s{T0}, s{T0}, {W_GP}")
    a(f"v_lshrrev_b32 v10, 5, v{V_LANE}")
    a(f"v_and_b32 v11, 31, v{V_LANE}")
    a(f"v_lshlrev_b32 v13, 8, v10")
    a(f"v_lshlrev_b32 v15, 3, v11")
    a(f"v_add3_u32 v{PA_T5B}, v13, v15, s{T0}")
    for k in range(1,4):
        a(f"v_add_u32 v{PA_T5B+k}, {k*7*4096}, v{PA_T5B}")
    a(f"s_lshl_b32 s{T0}, s{S_X}, 3")
    a(f"s_lshl_b32 s{T1}, s{T2}, 1")
    a(f"s_add_u32 s{T0}, s{T0}, s{T1}")
    a(f"s_mul_i32 s{T0}, s{T0}, 896")
    a(f"s_lshl_b32 s{T1}, s{T3}, 7")
    a(f"s_add_u32 s{T0}, s{T0}, s{T1}")
    a(f"s_add_u32 s{T0}, s{T0}, {W_ACT}")
    a(f"v_mul_u32_u24 v13, 896, v10")
    a(f"v_lshlrev_b32 v15, 2, v11")
    a(f"v_add3_u32 v{PA_ACT}, v13, v15, s{T0}")
    a(f"s_mul_i32 s{T0}, s{S_X}, {8*896}")
    a(f"s_mul_i32 s{T1}, s{T4}, 448")
    a(f"s_add_u32 s{T0}, s{T0}, s{T1}")
    a(f"s_lshl_b32 s{T1}, s{S_W}, 6")
    a(f"s_add_u32 s{T0}, s{T0}, s{T1}")
    a(f"s_add_u32 s{T0}, s{T0}, {W_ACT}")
    a(f"v_mul_u32_u24 v13, 896, v14")
    a(f"v_add3_u32 v{PA_T6}, v13, v12, s{T0}")
    a(f"s_lshl_b32 s{T0}, s{S_X}, 12")
    a(f"s_lshl_b32 s{T1}, s{S_R}, 7")
    a(f"s_add_u32 s{T0}, s{T0}, s{T1}")
    a(f"s_add_u32 s{T0}, s{T0}, {W_DP}")
    a(f"v_lshlrev_b32 v13, 18, v10")
    a(f"v_lshlrev_b32 v15, 2, v11")
    a(f"v_add3_u32 v{PA_T7}, v13, v15, s{T0}")
    for k in range(1,8):
        a(f"v_add_u32 v{PA_T7+k}, {k*32768}, v{PA_T7}")
    a(f"s_lshl_b32 s{T0}, s{S_X}, 11")
    a(f"s_lshl_b32 s{T1}, s{S_R}, 6")
    a(f"s_add_u32 s{T0}, s{T0}, s{T1}")
    a(f"v_lshlrev_b32 v15, 1, v11")
    a(f"v_add_u32 v{PA_OUT}, s{T0}, v15")
    a(f"v_add_u32 v{PA_HSR}, {L_HS}, v15")

def emit_codepf(a, cfg, lab, first, last):
    a(f"s_getpc_b64 {sr(S_B1,2)}")
    a(f"{lab}:")
    a(f"s_add_u32 s{S_B1}, s{S_B1}, ({first}-{lab})&0xffffffff")
    a(f"s_addc_u32 s{S_B1+1}, s{S_B1+1}, ({first}-{lab})>>32")
    a(f"v_lshlrev_b32 v10, 6, v{V_LANE}")
    a(f"s_mov_b32 s{S_T0}, {last}-{first}")
    a(f"{lab}_loop:")
    a(f"v_cmp_gt_u32 vcc, s{S_T0}, v10")
    a(f"s_and_saveexec_b64 {sr(S_EX,2)}, vcc")
    a(f"s_cbranch_execz {lab}_done")
    a(f"global_load_dword v11, v10, {sr(S_B1,2)}")
    a(f"s_mov_b64 exec, {sr(S_EX,2)}")
    a(f"v_add_u32 v10, 4096, v10")
    a(f"s_branch {lab}_loop")
    a(f"{lab}_done:")
    a(f"s_mov_b64 exec, {sr(S_EX,2)}")
    a("s_waitcnt vmcnt(0)")

def emit_rdycheck(a, cfg):
    f=1 if cfg.FASTMODE else 0
    a(f"s_cmp_lg_u32 s{S_W}, 4")
    a("s_cbranch_scc1 L_rdy_b")
    a(f"s_cmp_lg_u32 s{S_R}, 0")
    a("s_cbranch_scc1 L_rdy_done")
    a(f"s_lshl_b32 s{S_T0}, s{S_X}, 9")
    a(f"s_add_u32 s{S_T0}, s{S_T0}, {W_RDY}")
    a(f"v_and_b32 v10, 31, v{V_LANE}")
    a(f"v_lshlrev_b32 v10, 4, v10")
    a(f"v_add_u32 v10, s{S_T0}, v10")
    lp=a.label("rdy"); dn=a.label("rdyok")
    a(f"s_mov_b32 s{S_SPIN}, {cfg.SPIN}")
    a(f"{lp}:")
    a(f"global_load_dwordx4 {vr(V_RDY,4)}, v10, {sr(P_WS,2)} sc1")
    a("s_waitcnt vmcnt(0)")
    a(f"v_xor_b32 v11, s{S_TAG}, v{V_RDY+2}")
    a(f"v_xor_b32 v15, s{S_TAG+1}, v{V_RDY+3}")
    a(f"v_or_b32 v11, v11, v15")
    a(f"v_cmp_ne_u32 vcc, 0, v11")
    a(f"s_cbranch_vccz {dn}")
    a("s_sleep 16")
    a(f"s_sub_u32 s{S_SPIN}, s{S_SPIN}, 1")
    a(f"s_cmp_lg_u32 s{S_SPIN}, 0")
    a(f"s_cbranch_scc1 {lp}")
    a(f"{dn}:")
    a(f"v_readfirstlane_b32 s{S_T0}, v{V_RDY}")
    a("s_nop 1")
    a(f"v_cmp_ne_u32 vcc, s{S_T0}, v{V_RDY}")
    a(f"s_mov_b32 s{S_T2}, {f}")
    a("s_nop 1")
    a(f"s_cmp_eq_u64 vcc, 0")
    a(f"s_cselect_b32 s{S_T2}, s{S_T2}, 0")
    a(f"s_lshl_b32 s{S_T0}, s{S_X}, 4")
    a(f"s_add_u32 s{S_T0}, s{S_T0}, {W_GRDY}")
    a(f"v_mov_b32 v10, s{S_T0}")
    a(f"v_mov_b32 v12, s{S_T2}")
    a(f"v_mov_b32 v13, 0")
    a(f"v_mov_b32 v14, s{S_TAG}")
    a(f"v_mov_b32 v15, s{S_TAG+1}")
    set_exec(a,1,0)
    a(f"global_store_dwordx4 v10, v[12:15], {sr(P_WS,2)} sc1")
    full_exec(a)
    a("s_branch L_rdy_done")
    a("L_rdy_b:")
    a(f"s_cmp_lg_u32 s{S_W}, 5")
    a("s_cbranch_scc1 L_rdy_done")
    a(f"v_and_b32 v10, 7, v{V_LANE}")
    a(f"v_lshlrev_b32 v10, 4, v10")
    a(f"v_add_u32 v10, {W_GRDY}, v10")
    lp=a.label("grdy"); dn=a.label("grdyok")
    a(f"s_mov_b32 s{S_SPIN}, {cfg.SPIN}")
    a(f"{lp}:")
    set_exec(a,"0xff",0)
    a(f"global_load_dwordx4 {vr(V_RDY,4)}, v10, {sr(P_WS,2)} sc1")
    a("s_waitcnt vmcnt(0)")
    a(f"v_xor_b32 v11, s{S_TAG}, v{V_RDY+2}")
    a(f"v_xor_b32 v15, s{S_TAG+1}, v{V_RDY+3}")
    a(f"v_or_b32 v11, v11, v15")
    a(f"v_cmp_ne_u32 vcc, 0, v11")
    full_exec(a)
    a(f"s_cbranch_vccz {dn}")
    a("s_sleep 64")
    a(f"s_sub_u32 s{S_SPIN}, s{S_SPIN}, 1")
    a(f"s_cmp_lg_u32 s{S_SPIN}, 0")
    a(f"s_cbranch_scc1 {lp}")
    a(f"{dn}:")
    a(f"v_readlane_b32 s{S_T2}, v{V_RDY}, s{S_X}")
    a(f"v_mov_b32 v10, {L_MODE}")
    a("s_nop 1")
    a(f"v_mov_b32 v12, s{S_T2}")
    a(f"ds_write_b32 v10, v12")
    a("L_rdy_done:")

def poll_masked(a, name, loads, regs, cfg, tmp, nloads=1, stagger=0):
    lp=a.label(name+"_poll"); dn=a.label(name+"_ok")
    a(f"s_mov_b64 {sr(S_EX,2)}, exec")
    a(f"s_mov_b32 s{S_SPIN}, {cfg.SPIN}")
    if stagger:
        loads()
        a(f"s_sleep {stagger}")
    a(f"{lp}:")
    loads()
    a(f"s_waitcnt vmcnt({nloads if stagger else 0})")
    rs=list(regs)
    if len(rs)>=3:
        a(f"v_max3_u32 v{tmp}, v{rs[0]}, v{rs[1]}, v{rs[2]}"); i=3
    else:
        a(f"v_max_u32 v{tmp}, v{rs[0]}, v{rs[1]}"); i=2
    while i<len(rs):
        if i+1<len(rs):
            a(f"v_max3_u32 v{tmp}, v{tmp}, v{rs[i]}, v{rs[i+1]}"); i+=2
        else:
            a(f"v_max_u32 v{tmp}, v{tmp}, v{rs[i]}"); i+=1
    a(f"v_cmp_eq_u32 vcc, -1, v{tmp}")
    a(f"s_mov_b64 exec, vcc")
    a(f"s_cbranch_execz {dn}")
    if cfg.PSLEEP: a(f"s_sleep {cfg.PSLEEP}")
    a(f"s_sub_u32 s{S_SPIN}, s{S_SPIN}, 1")
    a(f"s_cmp_lg_u32 s{S_SPIN}, 0")
    a(f"s_cbranch_scc1 {lp}")
    a(f"{dn}:")
    a(f"s_mov_b64 exec, {sr(S_EX,2)}")

def frag_reads(a, which):
    WB=V_RING; WO_F=WB; GU_F=WB+16; WD_F=WB+48
    if "o" in which:
        a(f"s_lshl_b32 s{S_T0}, s{S_W}, 12")
        a(f"s_add_u32 s{S_T1}, s{S_T0}, {L_WO}")
        a(f"v_add_u32 v13, s{S_T1}, v{PA_TR}")
        for t in range(4):
            for hf in range(2):
                a(f"ds_read_b64_tr_b16 {vr(WO_F+4*t+2*hf,2)}, v13 offset:{hf*4*128+32*t}")
    if "g" in which:
        a(f"s_lshr_b32 s{S_T0}, s{S_W}, 2")
        a(f"s_lshl_b32 s{S_T0}, s{S_T0}, 15")
        a(f"s_and_b32 s{S_T1}, s{S_W}, 3")
        a(f"s_lshl_b32 s{S_T1}, s{S_T1}, 5")
        a(f"s_add_u32 s{S_T0}, s{S_T0}, s{S_T1}")
        a(f"s_add_u32 s{S_T0}, s{S_T0}, {L_WG}")
        a(f"v_add_u32 v15, s{S_T0}, v{PA_TR}")
        for s in range(8):
            for hf in range(2):
                a(f"ds_read_b64_tr_b16 {vr(GU_F+4*s+2*hf,2)}, v15 offset:{(32*s+4*hf)*128}")
    if "d" in which:
        a(f"s_lshl_b32 s{S_T0}, s{S_W}, 12")
        a(f"s_add_u32 s{S_T1}, s{S_T0}, {L_WD}")
        a(f"v_add_u32 v11, s{S_T1}, v{PA_TR}")
        for t in range(4):
            for hf in range(2):
                a(f"ds_read_b64_tr_b16 {vr(WD_F+4*t+2*hf,2)}, v11 offset:{hf*4*128+32*t}")

def layernorm2(a, vin, vf, vout, t):
    for i in range(8):
        a(f"v_lshlrev_b32 v{vf+2*i}, 16, v{vin+i}")
        a(f"v_and_b32 v{vf+2*i+1}, 0xffff0000, v{vin+i}")
    a(f"v_readfirstlane_b32 s{S_T4}, v{vf}")
    a("s_nop 1")
    a(f"v_mov_b32 v{t+6}, s{S_T4}")
    a(f"v_mov_b32 v{t+7}, s{S_T4}")
    for i in range(8):
        a(f"v_pk_add_f32 {vr(vf+2*i,2)}, {vr(vf+2*i,2)}, {vr(t+6,2)} neg_lo:[0,1] neg_hi:[0,1]")
    a(f"v_pk_add_f32 {vr(t,2)}, {vr(vf,2)}, {vr(vf+2,2)}")
    a(f"v_pk_mul_f32 {vr(t+2,2)}, {vr(vf,2)}, {vr(vf,2)}")
    a(f"v_pk_fma_f32 {vr(t+2,2)}, {vr(vf+2,2)}, {vr(vf+2,2)}, {vr(t+2,2)}")
    for i in range(2,8):
        a(f"v_pk_add_f32 {vr(t,2)}, {vr(t,2)}, {vr(vf+2*i,2)}")
        a(f"v_pk_fma_f32 {vr(t+2,2)}, {vr(vf+2*i,2)}, {vr(vf+2*i,2)}, {vr(t+2,2)}")
    a(f"v_add_f32 v{t}, v{t}, v{t+1}")
    a(f"v_add_f32 v{t+2}, v{t+2}, v{t+3}")
    for k in (8,4,2,1):
        a("s_nop 0")
        a(f"v_add_f32_dpp v{t}, v{t}, v{t} row_ror:{k} row_mask:0xf bank_mask:0xf")
        a("s_nop 0") if False else None
        a(f"v_add_f32_dpp v{t+2}, v{t+2}, v{t+2} row_ror:{k} row_mask:0xf bank_mask:0xf")
    a(f"v_mov_b32 v{t+1}, v{t}")
    a(f"v_mov_b32 v{t+3}, v{t+2}")
    a("s_nop 1")
    a(f"v_permlane16_swap_b32 v{t}, v{t+1}")
    a(f"v_permlane16_swap_b32 v{t+2}, v{t+3}")
    a("s_nop 1")
    a(f"v_add_f32 v{t}, v{t}, v{t+1}")
    a(f"v_add_f32 v{t+2}, v{t+2}, v{t+3}")
    a(f"v_mov_b32 v{t+1}, v{t}")
    a(f"v_mov_b32 v{t+3}, v{t+2}")
    a("s_nop 1")
    a(f"v_permlane32_swap_b32 v{t}, v{t+1}")
    a(f"v_permlane32_swap_b32 v{t+2}, v{t+3}")
    a("s_nop 1")
    a(f"v_add_f32 v{t}, v{t}, v{t+1}")
    a(f"v_add_f32 v{t+2}, v{t+2}, v{t+3}")
    a(f"v_mul_f32 v{t}, 0x3a800000, v{t}")
    a(f"v_mul_f32 v{t+2}, 0x3a800000, v{t+2}")
    a(f"v_fma_f32 v{t+2}, -v{t}, v{t}, v{t+2}")
    a(f"v_add_f32 v{t}, v{t}, v{t+6}")
    a(f"v_max_f32 v{t+2}, 0, v{t+2}")
    a(f"v_cvt_pk_bf16_f32 v{t}, v{t}, v{t+2}")
    a(f"v_and_b32 v{t+2}, 0xffff0000, v{t}")
    a(f"v_lshlrev_b32 v{t}, 16, v{t}")
    a(f"v_add_f32 v{t+2}, 0x3727c5ac, v{t+2}")
    round_bf16(a, t+2, t+2)
    a(f"v_sqrt_f32 v{t+2}, v{t+2}")
    a(f"v_mov_b32 v{t+1}, v{t}")
    round_bf16(a, t+2, t+2)
    a(f"v_rcp_f32 v{t+2}, v{t+2}")
    a("s_nop 0")
    a(f"v_mov_b32 v{t+3}, v{t+2}")
    for i in range(8):
        a(f"v_lshlrev_b32 v{vf+2*i}, 16, v{vin+i}")
        a(f"v_and_b32 v{vf+2*i+1}, 0xffff0000, v{vin+i}")
        a(f"v_pk_add_f32 {vr(vf+2*i,2)}, {vr(vf+2*i,2)}, {vr(t,2)} neg_lo:[0,1] neg_hi:[0,1]")
        a(f"v_cvt_pk_bf16_f32 v{t+4}, v{vf+2*i}, v{vf+2*i+1}")
        a(f"v_lshlrev_b32 v{vf+2*i}, 16, v{t+4}")
        a(f"v_and_b32 v{vf+2*i+1}, 0xffff0000, v{t+4}")
        a(f"v_pk_mul_f32 {vr(vf+2*i,2)}, {vr(vf+2*i,2)}, {vr(t+2,2)}")
        a(f"v_cvt_pk_bf16_f32 v{vout+i}, v{vf+2*i}, v{vf+2*i+1}")

def gen_tail(a, cfg):
    WB=V_RING; WO_F=WB; GU_F=WB+16; WD_F=WB+48
    TT=V_RING+64
    TMP=V_T+23
    NSW=cfg.NSW
    a(f"s_cmp_ge_u32 s{S_W}, {NSW}")
    a("s_cbranch_scc1 L_t0_b5")
    a("s_nop 7")
    set_exec(a, -1, 0)
    a(f"ds_write_b128 v{PA_OW}, {vr(V_OACC,4)}")
    full_exec(a)
    a("s_waitcnt lgkmcnt(0)")
    a("L_t0_b5:")
    a("s_barrier")
    a(f"s_cmp_lg_u32 s{S_W}, {R_T1}")
    a("s_cbranch_scc1 L_t1_done")
    for w in range(8):
        a(f"ds_read_b64 {vr(TT+2*w,2)}, v{PA_OR} offset:{w*512}")
    a("s_waitcnt lgkmcnt(0)")
    a(f"v_pk_add_f32 {vr(TT,2)}, {vr(TT,2)}, {vr(TT+2,2)}")
    a(f"v_pk_add_f32 {vr(TT+4,2)}, {vr(TT+4,2)}, {vr(TT+6,2)}")
    a(f"v_pk_add_f32 {vr(TT+8,2)}, {vr(TT+8,2)}, {vr(TT+10,2)}")
    a(f"v_pk_add_f32 {vr(TT+12,2)}, {vr(TT+12,2)}, {vr(TT+14,2)}")
    a(f"v_pk_add_f32 {vr(TT,2)}, {vr(TT,2)}, {vr(TT+4,2)}")
    a(f"v_pk_add_f32 {vr(TT+8,2)}, {vr(TT+8,2)}, {vr(TT+12,2)}")
    a(f"v_pk_add_f32 {vr(TT,2)}, {vr(TT,2)}, {vr(TT+8,2)}")
    a(f"v_cvt_pk_bf16_f32 v{TT}, v{TT}, v{TT+1}")
    a(f"v_min_u32 v{TT}, -2, v{TT}")
    store_mode(a, f"global_store_dword v{PA_O}, v{TT}, {sr(P_WS,2)}", True)
    a("L_t1_done:")
    stamp(a,cfg,6)
    a(f"s_cmp_ge_u32 s{S_W}, {NSW}")
    a("s_cbranch_scc1 L_t2_go")
    frag_reads(a,"ogd")
    a("L_t2_go:")
    poll_masked(a,"t2", lambda: a(f"global_load_dwordx4 {vr(TT+32,4)}, v{PA_T2}, {sr(P_WS,2)} sc1"), range(TT+32,TT+36), cfg, TMP, 1, cfg.PIPE_I)
    if cfg.TAILDIAG: stamp(a,cfg,9)
    a("s_waitcnt lgkmcnt(0)")
    def gemm4_reduce_publish(F, B, dp, nw, lab):
        off=16384 if dp else 0
        for t in range(4):
            a(f"v_mfma_f32_16x16x32_bf16 {vr(TT+4*t,4)}, {vr(F+4*t,4)}, {vr(B,4)}, 0")
        if nw<8:
            a(f"s_cmp_ge_u32 s{S_W}, {nw}")
            a(f"s_cbranch_scc1 {lab}_nw")
        set_exec(a, "0x00ff00ff", "0x00ff00ff")
        a("s_nop 2")
        for t in range(4):
            a(f"ds_write_b128 v{PA_DW}, {vr(TT+4*t,4)} offset:{off+64*t}")

        full_exec(a)
        a(f"{lab}_nw:")
        a("s_waitcnt lgkmcnt(0)")
        a("s_barrier")
        a(f"s_sub_u32 s{S_T0}, s{S_W}, {R_RED0}")
        a(f"s_cmp_ge_u32 s{S_T0}, 2")
        a(f"s_cbranch_scc1 {lab}_skip")
        for w in range(nw):
            a(f"ds_read_b128 {vr(TT+4*w,4)}, v{PA_R2} offset:{off+w*2048}")
        if dp: a(f"v_add_u32 v10, {W_DP-W_AP}, v{PA_P2}")
        a("s_waitcnt lgkmcnt(0)")
        n=nw
        step=1
        idx=list(range(nw))
        while len(idx)>1:
            nxt=[]
            for i in range(0,len(idx)-1,2):
                d,s_=idx[i],idx[i+1]
                a(f"v_pk_add_f32 {vr(TT+4*d,2)}, {vr(TT+4*d,2)}, {vr(TT+4*s_,2)}")
                a(f"v_pk_add_f32 {vr(TT+4*d+2,2)}, {vr(TT+4*d+2,2)}, {vr(TT+4*s_+2,2)}")
                nxt.append(d)
            if len(idx)%2: nxt.append(idx[-1])
            idx=nxt
        for c in range(4):
            a(f"v_min_u32 v{TT+c}, -2, v{TT+c}")
        a(f"global_store_dwordx4 v{10 if dp else PA_P2}, {vr(TT,4)}, {sr(P_WS,2)} sc1")
        a(f"{lab}_skip:")
    gemm4_reduce_publish(WO_F, TT+32, False, 8, "L_t2")
    stamp(a,cfg,7)
    def ld3():
        a(f"global_load_dwordx4 {vr(TT+32,4)}, v{PA_T3A}, {sr(P_WS,2)} sc1")
        a(f"global_load_dwordx4 {vr(TT+36,4)}, v{PA_T3B}, {sr(P_WS,2)} sc1")
    poll_masked(a,"t3", ld3, range(TT+32,TT+40), cfg, TMP, 2, cfg.PIPE_X)
    if cfg.TAILDIAG: stamp(a,cfg,13)
    a(f"v_pk_add_f32 {vr(TT+40,2)}, {vr(TT+32,2)}, {vr(TT+36,2)}")
    a(f"v_pk_add_f32 {vr(TT+42,2)}, {vr(TT+34,2)}, {vr(TT+38,2)}")
    a(f"ds_write_b128 v{PA_T3W}, {vr(TT+40,4)}")
    a("s_waitcnt lgkmcnt(0)")
    a("s_barrier")
    a(f"s_cmp_lg_u32 s{S_W}, {R_W0}")
    a("s_cbranch_scc1 L_t3_skip")
    for w in range(8):
        a(f"ds_read_b128 {vr(TT+4*w,4)}, v{PA_T3R} offset:{w*1024}")
    a(f"v_lshlrev_b32 v{TT+40}, 16, v{V_XRES}")
    a(f"v_and_b32 v{TT+41}, 0xffff0000, v{V_XRES}")
    a(f"v_lshlrev_b32 v{TT+42}, 16, v{V_XRES+1}")
    a(f"v_and_b32 v{TT+43}, 0xffff0000, v{V_XRES+1}")
    a("s_waitcnt lgkmcnt(0)")
    for (d,s_) in ((0,1),(2,3),(4,5),(6,7),(0,2),(4,6),(0,4)):
        a(f"v_pk_add_f32 {vr(TT+4*d,2)}, {vr(TT+4*d,2)}, {vr(TT+4*s_,2)}")
        a(f"v_pk_add_f32 {vr(TT+4*d+2,2)}, {vr(TT+4*d+2,2)}, {vr(TT+4*s_+2,2)}")
    a(f"v_cvt_pk_bf16_f32 v{TT+4}, v{TT}, v{TT+1}")
    a(f"v_cvt_pk_bf16_f32 v{TT+5}, v{TT+2}, v{TT+3}")
    a(f"v_lshlrev_b32 v{TT+8}, 16, v{TT+4}")
    a(f"v_and_b32 v{TT+9}, 0xffff0000, v{TT+4}")
    a(f"v_lshlrev_b32 v{TT+10}, 16, v{TT+5}")
    a(f"v_and_b32 v{TT+11}, 0xffff0000, v{TT+5}")
    a(f"v_pk_add_f32 {vr(TT+8,2)}, {vr(TT+8,2)}, {vr(TT+40,2)}")
    a(f"v_pk_add_f32 {vr(TT+10,2)}, {vr(TT+10,2)}, {vr(TT+42,2)}")
    a(f"v_cvt_pk_bf16_f32 v{TT+6}, v{TT+8}, v{TT+9}")
    a(f"v_cvt_pk_bf16_f32 v{TT+7}, v{TT+10}, v{TT+11}")
    a(f"v_min_u32 v{TT+6}, -2, v{TT+6}")
    a(f"v_min_u32 v{TT+7}, -2, v{TT+7}")
    store_mode(a, f"global_store_dwordx2 v{PA_H}, {vr(TT+6,2)}, {sr(P_WS,2)}", True)
    a("L_t3_skip:")
    stamp(a,cfg,8)
    def ld4():
        a(f"global_load_dwordx4 {vr(TT,4)}, v{PA_T4}, {sr(P_WS,2)} sc1")
        a(f"global_load_dwordx4 {vr(TT+4,4)}, v{PA_T4}, {sr(P_WS,2)} offset:16 sc1")
    poll_masked(a,"t4", ld4, range(TT,TT+8), cfg, TMP, 2, cfg.PIPE_I)
    if cfg.TAILDIAG: stamp(a,cfg,14)
    a(f"s_cmp_lg_u32 s{S_W}, s{S_X}")
    a("s_cbranch_scc1 L_t4_nohs")
    a(f"s_mov_b64 exec, {sr(SM_HS,2)}")
    a(f"ds_write_b128 v{PA_HSW}, {vr(TT,4)}")
    a(f"ds_write_b128 v{PA_HSW}, {vr(TT+4,4)} offset:16")
    full_exec(a)
    a("L_t4_nohs:")
    a(f"s_cmp_ge_u32 s{S_R}, 28")
    a("s_cbranch_scc1 L_t5_skip_all")
    layernorm2(a, TT, TT+8, TT+24, V_T)
    a(f"s_mov_b64 exec, {sr(SM_LNB,2)}")
    a(f"ds_write_b128 v{PA_LNBW}, {vr(TT+24,4)}")
    a(f"ds_write_b128 v{PA_LNBW}, {vr(TT+28,4)} offset:16")
    full_exec(a)
    a("s_waitcnt lgkmcnt(0)")
    a("s_barrier")
    if not cfg.TAILDIAG: stamp(a,cfg,9)
    if cfg.TAILDIAG: stamp(a,cfg,1)
    a("s_waitcnt vmcnt(0)")
    for s in range(8):
        a(f"ds_read_b128 {vr(TT+4*s,4)}, v{PA_LNBR} offset:{64*s}")
    for s in range(8):
        c="0" if s<2 else vr(V_T+4*(s%2),4)
        a(f"s_waitcnt lgkmcnt({7-s})")
        a(f"v_mfma_f32_16x16x32_bf16 {vr(V_T+4*(s%2),4)}, {vr(GU_F+4*s,4)}, {vr(TT+4*s,4)}, {c}")
    a("s_nop 7")
    a(f"v_pk_add_f32 {vr(V_T,2)}, {vr(V_T,2)}, {vr(V_T+4,2)}")
    a(f"v_pk_add_f32 {vr(V_T+2,2)}, {vr(V_T+2,2)}, {vr(V_T+6,2)}")
    for c in range(4):
        a(f"v_min_u32 v{V_T+c}, -2, v{V_T+c}")
    set_exec(a, "0x00ff00ff", "0x00ff00ff")
    store_mode(a, f"global_store_dwordx4 v{PA_GP}, {vr(V_T,4)}, {sr(P_WS,2)}", True)
    full_exec(a)
    a(f"s_cmp_lg_u32 s{S_W}, {R_W0}")
    a("s_cbranch_scc1 L_t5_skip_all")
    a(f"s_mov_b32 s{S_T0}, 0x3d372713")
    a(f"s_mov_b32 s{S_T1}, 0xc0135761")
    def ld5():
        for k in range(4):
            for m in range(2):
                a(f"global_load_dwordx2 {vr(TT+(k*2+m)*2,2)}, v{PA_T5B+k}, {sr(P_WS,2)} offset:{m*2048} sc1")
    poll_masked(a,"t5", ld5, range(TT,TT+16), cfg, TMP, 8, cfg.PIPE_I)
    if cfg.TAILDIAG: stamp(a,cfg,2)
    for h_ in range(2):
        a(f"v_pk_add_f32 {vr(TT+16+2*h_,2)}, {vr(TT+2*h_,2)}, {vr(TT+4+2*h_,2)}")
        a(f"v_pk_add_f32 {vr(TT+20+2*h_,2)}, {vr(TT+8+2*h_,2)}, {vr(TT+12+2*h_,2)}")
        a(f"v_pk_add_f32 {vr(TT+16+2*h_,2)}, {vr(TT+16+2*h_,2)}, {vr(TT+20+2*h_,2)}")
    G=TT+16; U=TT+18; X=TT+20
    TT_=TT; TT=TT+16
    a(f"v_cvt_pk_bf16_f32 v{TT+8}, v{G}, v{G+1}")
    a(f"v_cvt_pk_bf16_f32 v{TT+9}, v{U}, v{U+1}")
    a(f"v_lshlrev_b32 v{G}, 16, v{TT+8}")
    a(f"v_and_b32 v{G+1}, 0xffff0000, v{TT+8}")
    a(f"v_lshlrev_b32 v{U}, 16, v{TT+9}")
    a(f"v_and_b32 v{U+1}, 0xffff0000, v{TT+9}")
    a(f"v_pk_mul_f32 {vr(X,2)}, {vr(G,2)}, {vr(G,2)}")
    a(f"v_pk_mul_f32 {vr(X,2)}, {vr(X,2)}, {vr(G,2)}")
    for c in range(2):
        a(f"v_fma_f32 v{X+c}, v{X+c}, s{S_T0}, v{G+c}")
    for c in range(2):
        a(f"v_mul_f32 v{X+c}, s{S_T1}, v{X+c}")
    for c in range(2):
        a(f"v_exp_f32 v{X+c}, v{X+c}")
    a("s_nop 0")
    for c in range(2):
        a(f"v_add_f32 v{X+c}, 1.0, v{X+c}")
    for c in range(2):
        a(f"v_rcp_f32 v{X+c}, v{X+c}")
    a("s_nop 0")
    a(f"v_pk_mul_f32 {vr(X,2)}, {vr(X,2)}, {vr(G,2)}")
    a(f"v_cvt_pk_bf16_f32 v{TT+8}, v{X}, v{X+1}")
    a(f"v_lshlrev_b32 v{X}, 16, v{TT+8}")
    a(f"v_and_b32 v{X+1}, 0xffff0000, v{TT+8}")
    a(f"v_pk_mul_f32 {vr(X,2)}, {vr(X,2)}, {vr(U,2)}")
    a(f"v_cvt_pk_bf16_f32 v{X}, v{X}, v{X+1}")
    a(f"v_min_u32 v{X}, -2, v{X}")
    store_mode(a, f"global_store_dword v{PA_ACT}, v{X}, {sr(P_WS,2)}", True)
    TT=TT_
    a("L_t5_skip_all:")
    stamp(a,cfg,10)
    a(f"s_cmp_ge_u32 s{S_W}, 7")
    a("s_cbranch_scc1 L_t6_nopoll")
    poll_masked(a,"t6", lambda: a(f"global_load_dwordx4 {vr(TT+32,4)}, v{PA_T6}, {sr(P_WS,2)} sc1"), range(TT+32,TT+36), cfg, TMP, 1, cfg.PIPE_I)
    if cfg.TAILDIAG: stamp(a,cfg,3)
    a("L_t6_nopoll:")
    gemm4_reduce_publish(WD_F, TT+32, True, 7, "L_t6")
    stamp(a,cfg,11)
    a(f"s_cmp_lg_u32 s{S_W}, {R_W0}")
    a("s_cbranch_scc1 L_fin")
    a(f"ds_read_u16 v{TT+10}, v{PA_HSR}")
    def ld7():
        for k in range(8):
            a(f"global_load_dword v{TT+k}, v{PA_T7+k}, {sr(P_WS,2)} sc1")
    poll_masked(a,"t7", ld7, range(TT,TT+8), cfg, TMP, 8, cfg.PIPE_X)
    if cfg.TAILDIAG: stamp(a,cfg,4)
    Z=TT+16
    a(f"v_pk_add_f32 {vr(Z,2)}, {vr(TT,2)}, {vr(TT+2,2)}")
    a(f"v_pk_add_f32 {vr(Z+2,2)}, {vr(TT+4,2)}, {vr(TT+6,2)}")
    a(f"v_pk_add_f32 {vr(Z,2)}, {vr(Z,2)}, {vr(Z+2,2)}")
    a(f"v_add_f32 v{Z}, v{Z}, v{Z+1}")
    a(f"v_mov_b32 v{Z+1}, v{Z}")
    a("s_waitcnt lgkmcnt(0)")
    a("s_nop 0")
    a(f"v_permlane32_swap_b32 v{Z}, v{Z+1}")
    a(f"v_lshlrev_b32 v{TT+10}, 16, v{TT+10}")
    a(f"v_add_f32 v{Z}, v{Z}, v{Z+1}")
    round_bf16(a,Z,Z)
    a(f"v_add_f32 v{Z}, v{Z}, v{TT+10}")
    a(f"v_cvt_pk_bf16_f32 v{Z}, v{Z}, v{Z}")
    set_exec(a, -1, 0)
    a(f"global_store_short v{PA_OUT}, v{Z}, {sr(P_OUT,2)}")
    full_exec(a)
    a(f"s_cmp_lg_u32 s{S_ID}, 0")
    a("s_cbranch_scc1 L_fin")
    a(f"v_mov_b32 v10, {W_EPOCH}")
    a(f"v_mov_b32 v12, s{S_TAG}")
    a(f"v_mov_b32 v13, s{S_TAG+1}")
    set_exec(a, 1, 0)
    a(f"global_store_dwordx2 v10, v[12:13], {sr(P_WS,2)} sc1")
    full_exec(a)
    a("L_fin:")
    TTX=160
    if cfg.STAMPS and cfg.DBGSTAMP:
        stamp(a,cfg,12)
        a("s_waitcnt lgkmcnt(0)")
        a(f"s_cmp_lg_u32 s{S_W}, 0")
        a("s_cbranch_scc1 L_exit")
        lst=[0,1,2,4,6,7,8,10,11,12]
        for i,k in enumerate(lst):
            if k==0:
                a(f"s_not_b32 s{S_T0}, s72")
                a(f"v_mov_b32 v{TTX}, s{S_T0}")
            else:
                a(f"v_mov_b32 v{TTX}, s{72+2*k}")
            a(f"v_mov_b32 v10, {4*i}")
            set_exec(a,1,0)
            a(f"global_atomic_umax v10, v{TTX}, {sr(P_DBG,2)} sc1")
            full_exec(a)
        a(f"v_mov_b32 v{TTX}, s72")
        a(f"v_mov_b32 v10, 40")
        set_exec(a,1,0)
        a(f"global_atomic_umax v10, v{TTX}, {sr(P_DBG,2)} sc1")
        full_exec(a)
        a(f"s_not_b32 s{S_T0}, s{72+12}")
        a(f"v_mov_b32 v{TTX}, s{S_T0}")
        a(f"v_mov_b32 v10, 44")
        set_exec(a,1,0)
        a(f"global_atomic_umax v10, v{TTX}, {sr(P_DBG,2)} sc1")
        full_exec(a)
    elif cfg.STAMPS:
        stamp(a,cfg,12)
        a("s_waitcnt lgkmcnt(0)")
        for k in range(15):
            a(f"v_mov_b32 v{TTX}, s{72+2*k}")
            a(f"v_mov_b32 v{TTX+1}, s{73+2*k}")
            a(f"s_lshl_b32 s{S_T0}, s{S_ID}, 3")
            a(f"s_add_u32 s{S_T0}, s{S_T0}, s{S_W}")
            a(f"s_lshl_b32 s{S_T0}, s{S_T0}, 7")
            a(f"s_add_u32 s{S_T0}, s{S_T0}, {W_STAMP+8*k}")
            a(f"v_mov_b32 v10, s{S_T0}")
            set_exec(a,1,0)
            a(f"global_store_dwordx2 v10, {vr(TTX,2)}, {sr(P_WS,2)}")
            full_exec(a)
    a("L_exit:")
    a("s_endpgm")

HEADER = open("sequential_preLN__mha_block_cached__geglu_ffn__decode.s.ref").read().split("; Override launch geometry")[0]

def build(cfg, path):
    a,_=gen(cfg)
    gen_tail(a,cfg)
    txt = HEADER
    txt += "; Override launch geometry by editing the next line (default: block=256,\n"
    txt += f"; @launch grid=(256,1,1) block=(512,1,1) lds={LDS_BYTES}\n"
    txt += f""".amdgcn_target "amdgcn-amd-amdhsa--gfx950"
.text
.globl {KNAME}
.p2align 8
.type {KNAME},@function
"""
    txt += a.text()
    txt += f""".section .rodata,"a"
.p2align 6
.amdhsa_kernel {KNAME}
  .amdhsa_next_free_vgpr 256
  .amdhsa_next_free_sgpr 102
  .amdhsa_accum_offset 256
  .amdhsa_group_segment_fixed_size 0
  .amdhsa_kernarg_size 96
  .amdhsa_user_sgpr_count 2
  .amdhsa_user_sgpr_kernarg_segment_ptr 1
  .amdhsa_system_sgpr_workgroup_id_x 1
  .amdhsa_float_denorm_mode_32 3
.end_amdhsa_kernel
"""
    open(path,"w").write(txt)

if __name__=="__main__":
    cfg=Cfg()
    out=sys.argv[1]
    for kv in sys.argv[2:]:
        k,v=kv.split("=")
        setattr(cfg,k,eval(v))
    build(cfg,out)
```

```python
import sys

KNAME = "sequential_preLN__mha_block_cached__geglu_ffn__decode_kernel"

class Cfg:
    NSW = 2
    L = 10
    HV = 1
    QFAST = True
    KFLAGS = "nt"
    VFLAGS = "nt"
    WFLAGS = "nt"
    FASTMODE = True
    SPIN = 1 << 20
    STAMPS = False
    P0 = 4
    P = 4
    P1 = 8
    DMAPAUSE = False
    RING_EARLY = True
    RAMP = 0
    CODEPF = True
    LATE_L = 12
    LATE_THR = 26
    LK = 0
    NODMA2 = False
    KNOP = 7
    KEXP = 0
    PIPE_I = 0
    PIPE_X = 0
    HIGH_INLINE = True
    LNDRY = False
    ALTMAP = False
    TAILDIAG = False
    PSLEEP = 0
    QSLEEP = 0
    QWAIT = 64
    DBGSTAMP = False

L_WO   = 0
L_WG   = 32768
L_WU   = 65536
L_WD   = 98304
L_WQ   = 126976
L_SC   = 126976
L_RED  = 143360
L_LNA  = 159744
L_QS   = 161920
L_ML   = 162176
L_HS   = 162208
L_QF   = 162272
L_LS   = 162288
L_MODE = 162320
L_SEL  = 162352
L_END  = 162368
LNA_P  = 272
LNB_P  = 528
L_LNB  = L_SC
LDS_BYTES = 163840

W_QP  = 0x500000
W_RDY = 0x000000
W_EPOCH = 0x010000
W_KD = 0x014000
W_GRDY = 0x012000
W_OB  = 0x100000
W_AP  = 0x120000
W_HB  = 0x1A0000
W_GP  = 0x1C0000
W_ACT = 0x2A0000
W_DP  = 0x2B0000
W_STAMP = 0x400000

D_CLR = 32*4
D_XCC = 40*4

S_ID=2; S_W=3; S_X=4; S_R=5; S_H=6; S_B=7
P_X=16; P_K=18; P_V=20; P_WQ=22; P_WO=24; P_WG=28; P_WU=30; P_WD=32; P_OUT=34; P_DBG=36; P_WS=38
SRD_K=40; SRD_V=44
S_KOFF=48
S_FAST=49
S_SPIN=50
S_T0=52; S_T1=53; S_T2=54; S_T3=55; S_T4=56; S_T5=57
S_B0=58
S_B1=60
S_EX=62
S_M=64
S_M2=66
S_SCALE=68; S_LOG2E=69
S_DN=12; S_DS=13; S_DM=14; S_LOOP=15; S_LNW=27
S_TAG=98
S_TAG=66
S_ST=70

V_TID=0; V_LANE=1
V_MASK=16
V_KOFF=20; V_VOFF=21; V_SCW=22; V_PPR=23; V_MAX=24
V_DMA=25
V_QADDR=26
V_QA=32
V_SACC=48
V_SACC2=140
V_OACC=52
V_A0=56; V_A1=60
V_PP0=64; V_PP1=68
V_T=72
V_RING=96
V_X=160

class Asm:
    def __init__(self):
        self.L=[]; self.n=0; self.main=self.L; self.O=[]
    def ool(self, on):
        self.L = self.O if on else self.main
    def __call__(self, s):
        for line in s.split("\n"):
            line=line.strip()
            if line: self.L.append(("" if line.endswith(":") else "  ")+line)
    def label(self, base):
        self.n+=1
        return f"L_{base}_{self.n}"
    def text(self): return "\n".join(self.main+self.O+["L_codeend:"])+"\n"

def vr(b,n): return f"v[{b}:{b+n-1}]"
def sr(b,n): return f"s[{b}:{b+n-1}]"

def wave_sum(a, v, tmp, op="add"):
    ins = "v_add_f32" if op=="add" else "v_max_f32"
    for k in (8,4,2,1):
        a(f"s_nop 1")
        a(f"{ins}_dpp {'v%d'%v}, v{v}, v{v} row_ror:{k} row_mask:0xf bank_mask:0xf")
    a("s_nop 1")
    a(f"v_readlane_b32 s{S_T0}, v{v}, 0")
    a(f"v_readlane_b32 s{S_T1}, v{v}, 16")
    a(f"v_readlane_b32 s{S_T2}, v{v}, 32")
    a(f"v_readlane_b32 s{S_T3}, v{v}, 48")
    a("s_nop 1")
    a(f"v_mov_b32 v{v}, s{S_T0}")
    a(f"{ins} v{v}, s{S_T1}, v{v}")
    a(f"{ins} v{v}, s{S_T2}, v{v}")
    a(f"{ins} v{v}, s{S_T3}, v{v}")

def round_bf16(a, dst, src):
    a(f"v_cvt_pk_bf16_f32 v{dst}, v{src}, v{src}")
    a(f"v_and_b32 v{dst}, 0xffff0000, v{dst}")

def layernorm(a, vin, vf, vout, t):
    for i in range(8):
        a(f"v_lshlrev_b32 v{vf+2*i}, 16, v{vin+i}")
        a(f"v_and_b32 v{vf+2*i+1}, 0xffff0000, v{vin+i}")
    a(f"v_add_f32 v{t}, v{vf}, v{vf+1}")
    for i in range(2,16):
        a(f"v_add_f32 v{t}, v{t}, v{vf+i}")
    wave_sum(a, t, t+1)
    a(f"v_mul_f32 v{t}, 0x3a800000, v{t}")
    a(f"v_sub_f32 v{t+1}, v{vf}, v{t}")
    a(f"v_mul_f32 v{t+2}, v{t+1}, v{t+1}")
    for i in range(1,16):
        a(f"v_sub_f32 v{t+1}, v{vf+i}, v{t}")
        a(f"v_fmac_f32 v{t+2}, v{t+1}, v{t+1}")
    wave_sum(a, t+2, t+1)
    a(f"v_mul_f32 v{t+2}, 0x3a800000, v{t+2}")
    round_bf16(a, t, t)
    round_bf16(a, t+2, t+2)
    a(f"v_add_f32 v{t+2}, 0x3727c5ac, v{t+2}")
    round_bf16(a, t+2, t+2)
    a(f"v_sqrt_f32 v{t+2}, v{t+2}")
    a("s_nop 0")
    round_bf16(a, t+2, t+2)
    a(f"v_rcp_f32 v{t+2}, v{t+2}")
    a("s_nop 0")
    for i in range(8):
        a(f"v_sub_f32 v{vf+2*i}, v{vf+2*i}, v{t}")
        a(f"v_sub_f32 v{vf+2*i+1}, v{vf+2*i+1}, v{t}")
        a(f"v_cvt_pk_bf16_f32 v{t+1}, v{vf+2*i}, v{vf+2*i+1}")
        a(f"v_lshlrev_b32 v{vf+2*i}, 16, v{t+1}")
        a(f"v_and_b32 v{vf+2*i+1}, 0xffff0000, v{t+1}")
        a(f"v_mul_f32 v{vf+2*i}, v{vf+2*i}, v{t+2}")
        a(f"v_mul_f32 v{vf+2*i+1}, v{vf+2*i+1}, v{t+2}")
        a(f"v_cvt_pk_bf16_f32 v{vout+i}, v{vf+2*i}, v{vf+2*i+1}")

def set_exec(a, lo, hi):
    a(f"s_mov_b32 exec_lo, {lo}")
    a(f"s_mov_b32 exec_hi, {hi}")
def full_exec(a):
    a("s_mov_b64 exec, -1")

def poll_loop(a, name, loads, regs, cfg):
    lp=a.label(name+"_poll"); dn=a.label(name+"_ok")
    a(f"s_mov_b32 s{S_SPIN}, {cfg.SPIN}")
    a(f"{lp}:")
    loads()
    a("s_waitcnt vmcnt(0)")
    t=V_T+23
    rs=list(regs)
    a(f"v_max_u32 v{t}, v{rs[0]}, v{rs[1] if len(rs)>1 else rs[0]}")
    i=2
    while i<len(rs):
        if i+1<len(rs):
            a(f"v_max3_u32 v{t}, v{t}, v{rs[i]}, v{rs[i+1]}"); i+=2
        else:
            a(f"v_max_u32 v{t}, v{t}, v{rs[i]}"); i+=1
    a(f"v_cmp_eq_u32 vcc, -1, v{t}")
    a(f"s_cbranch_vccz {dn}")
    a(f"s_sub_u32 s{S_SPIN}, s{S_SPIN}, 1")
    a(f"s_cmp_lg_u32 s{S_SPIN}, 0")
    a(f"s_cbranch_scc1 {lp}")
    a(f"{dn}:")

def store_mode(a, instr, intra):
    if not intra:
        a(instr+" sc1"); return
    l1=a.label("st_slow"); l2=a.label("st_done")
    a(f"s_cmp_eq_u32 s{S_FAST}, 0")
    a(f"s_cbranch_scc1 {l1}")
    a(instr)
    a(f"s_branch {l2}")
    a(f"{l1}:")
    a(instr+" sc1")
    a(f"{l2}:")

def stamp(a, cfg, idx):
    if not cfg.STAMPS: return
    a(f"s_memrealtime s[{72+2*idx}:{73+2*idx}]")


def emit_clears(a, sfx=''):
    a(f"v_mov_b32 v12, -1\nv_mov_b32 v13, -1\nv_mov_b32 v14, -1\nv_mov_b32 v15, -1")
    a(f"s_lshr_b32 s{S_T4}, s{S_R}, 4")
    a(f"s_and_b32 s{S_T5}, s{S_R}, 15")
    a(f"s_lshl_b32 s{S_T1}, s{S_X}, 1")
    a(f"s_add_u32 s{S_T1}, s{S_T1}, s{S_T4}")
    a(f"s_lshl_b32 s{S_T0}, s{S_T1}, 15")
    a(f"s_lshl_b32 s{S_T1}, s{S_T5}, 8")
    a(f"s_add_u32 s{S_T0}, s{S_T0}, s{S_T1}")
    a(f"v_lshlrev_b32 v10, 12, v3")
    a(f"v_lshlrev_b32 v11, 4, v2")
    a(f"v_add3_u32 v10, v10, v11, s{S_T0}")
    for base in (W_AP, W_DP):
        a(f"v_add_u32 v11, {base}, v10")
        a(f"global_store_dwordx4 v11, v[12:15], {sr(P_WS,2)} sc1")
        a(f"v_add_u32 v11, {base+4*4096}, v10")
        a(f"global_store_dwordx4 v11, v[12:15], {sr(P_WS,2)} sc1")
    a(f"s_lshl_b32 s{S_T0}, s{S_H}, 3")
    a(f"s_add_u32 s{S_T0}, s{S_T0}, s{S_B}")
    a(f"s_lshl_b32 s{S_T0}, s{S_T0}, 8")
    a(f"s_add_u32 s{S_T0}, s{S_T0}, {W_OB}")
    a(f"v_add_u32 v10, s{S_T0}, v{V_VOFF}")
    set_exec(a, "0xffff", 0)
    a(f"global_store_dwordx4 v10, v[12:15], {sr(P_WS,2)} sc1")
    full_exec(a)
    a(f"s_lshr_b32 s{S_T0}, s{S_R}, 2")
    a(f"s_lshl_b32 s{S_T1}, s{S_X}, 3")
    a(f"s_add_u32 s{S_T0}, s{S_T0}, s{S_T1}")
    a(f"s_lshl_b32 s{S_T0}, s{S_T0}, 11")
    a(f"s_and_b32 s{S_T1}, s{S_R}, 3")
    a(f"s_lshl_b32 s{S_T1}, s{S_T1}, 9")
    a(f"s_add_u32 s{S_T0}, s{S_T0}, s{S_T1}")
    a(f"s_add_u32 s{S_T0}, s{S_T0}, {W_HB}")
    a(f"v_add_u32 v10, s{S_T0}, v{V_VOFF}")
    set_exec(a, -1, 0)
    a(f"global_store_dwordx4 v10, v[12:15], {sr(P_WS,2)} sc1")
    full_exec(a)
    a(f"s_cmp_ge_u32 s{S_R}, 28")
    a(f"s_cbranch_scc1 L_clr_done{sfx}")
    a(f"s_mul_i32 s{S_T0}, s{S_X}, 28")
    a(f"s_add_u32 s{S_T0}, s{S_T0}, s{S_R}")
    a(f"s_lshl_b32 s{S_T0}, s{S_T0}, 12")
    a(f"s_add_u32 s{S_T0}, s{S_T0}, {W_GP}")
    a(f"v_add_u32 v10, s{S_T0}, v{V_VOFF}")
    for n in range(4):
        a(f"global_store_dwordx4 v10, v[12:15], {sr(P_WS,2)} offset:{n*1024} sc1")
    a(f"s_mul_i32 s{S_T0}, s{S_R}, 37")
    a(f"s_lshr_b32 s{S_T0}, s{S_T0}, 8")
    a(f"s_mul_i32 s{S_T1}, s{S_T0}, 7")
    a(f"s_sub_u32 s{S_T1}, s{S_R}, s{S_T1}")
    a(f"s_lshl_b32 s{S_T0}, s{S_T0}, 1")
    a(f"s_lshl_b32 s{S_T2}, s{S_X}, 3")
    a(f"s_add_u32 s{S_T0}, s{S_T0}, s{S_T2}")
    a(f"s_mul_i32 s{S_T0}, s{S_T0}, 896")
    a(f"s_lshl_b32 s{S_T1}, s{S_T1}, 7")
    a(f"s_add_u32 s{S_T0}, s{S_T0}, s{S_T1}")
    a(f"s_add_u32 s{S_T0}, s{S_T0}, {W_ACT}")
    a(f"v_lshrrev_b32 v10, 3, v{V_LANE}")
    a(f"v_mul_u32_u24 v10, 896, v10")
    a(f"v_and_b32 v11, 7, v{V_LANE}")
    a(f"v_lshlrev_b32 v11, 4, v11")
    a(f"v_add3_u32 v10, v10, v11, s{S_T0}")
    set_exec(a, "0xffff", 0)
    a(f"global_store_dwordx4 v10, v[12:15], {sr(P_WS,2)} sc1")
    full_exec(a)
    a(f"L_clr_done{sfx}:")


def emit_extras(a):
    a(f"s_lshl_b32 s{S_T0}, s{S_W}, 9")
    a(f"v_and_b32 v10, 31, v{V_LANE}")
    a(f"v_lshlrev_b32 v10, 4, v10")
    a(f"v_add_u32 v10, s{S_T0}, v10")
    a(f"v_add_u32 v9, {W_RDY}, v10")
    a(f"global_load_dwordx4 {vr(V_RDY,4)}, v9, {sr(P_WS,2)} sc1")
    a(f"s_lshr_b32 s{S_T0}, s{S_R}, 2")
    a(f"s_lshl_b32 s{S_T0}, s{S_T0}, 11")
    a(f"s_and_b32 s{S_T1}, s{S_R}, 3")
    a(f"s_lshl_b32 s{S_T1}, s{S_T1}, 9")
    a(f"s_add_u32 s{S_T0}, s{S_T0}, s{S_T1}")
    a(f"v_lshlrev_b32 v11, 3, v{V_LANE}")
    a(f"v_add_u32 v11, s{S_T0}, v11")
    a(f"global_load_dwordx2 {vr(V_XRES,2)}, v11, {sr(P_X,2)}")

def koff_init(a):
    a(f"s_lshr_b32 s{S_KOFF}, s{S_W}, 2")
    a(f"s_lshl_b32 s{S_KOFF}, s{S_KOFF}, 7")
    a(f"s_and_b32 s{S_T5}, s{S_W}, 3")
    a(f"s_add_u32 s{S_KOFF}, s{S_KOFF}, s{S_T5}")
    a(f"s_lshl_b32 s{S_KOFF}, s{S_KOFF}, 12")

def emit_rdy(a):
    a(f"s_getreg_b32 s{S_T0}, hwreg(HW_REG_XCC_ID, 0, 4)")
    a(f"s_lshl_b32 s{S_T1}, s{S_X}, 5")
    a(f"s_add_u32 s{S_T1}, s{S_T1}, s{S_R}")
    a(f"s_lshl_b32 s{S_T1}, s{S_T1}, 4")
    a(f"s_add_u32 s{S_T1}, s{S_T1}, {W_RDY}")
    a(f"v_mov_b32 v10, s{S_T1}")
    a(f"v_mov_b32 v12, s{S_T0}")
    a(f"v_mov_b32 v13, 0")
    a(f"v_mov_b32 v14, s{S_TAG}")
    a(f"v_mov_b32 v15, s{S_TAG+1}")
    set_exec(a, 1, 0)
    a(f"global_store_dwordx4 v10, v[12:15], {sr(P_WS,2)} sc1")
    full_exec(a)

def gen(cfg):
    a=Asm()
    NSW=cfg.NSW; L=cfg.L; HV=cfg.HV
    LK=cfg.LK or L
    NH=8-NSW
    KT=256//NSW
    VT=(256-NH*HV)//NSW
    assert VT*NSW+NH*HV==256, "V tiles must split evenly"
    NK=4*KT; NV=4*VT
    TSTEP=NSW*4096
    def kload(j):
        reg=V_RING+(j%LK)*4
        a(f"buffer_load_dwordx4 {vr(reg,4)}, v{V_KOFF}, {sr(SRD_K,4)}, s{S_KOFF} offen offset:{(j%4)*1024} {cfg.KFLAGS}")
        if j%4==3: a(f"s_add_u32 s{S_KOFF}, s{S_KOFF}, {TSTEP}")
    def vload(jv, first=False):
        reg=V_RING+((NK-LK+jv)%LK)*4
        if first:
            a(f"s_add_u32 s{S_KOFF}, s{S_W}, {NH*HV}")
            a(f"s_lshl_b32 s{S_KOFF}, s{S_KOFF}, 12")
        a(f"buffer_load_dwordx4 {vr(reg,4)}, v{V_VOFF}, {sr(SRD_V,4)}, s{S_KOFF} offen offset:{(jv%4)*1024} {cfg.VFLAGS}")
        if jv%4==3: a(f"s_add_u32 s{S_KOFF}, s{S_KOFF}, {TSTEP}")
    a(f"{KNAME}:")
    a(f"s_cmp_ge_u32 s{S_ID}, 256")
    a("s_cbranch_scc1 L_exit")
    a("s_load_dwordx16 s[16:31], s[0:1], 0")
    a("s_load_dwordx8 s[32:39], s[0:1], 64")
    if cfg.CODEPF:
        a(f"s_getpc_b64 {sr(S_B1,2)}")
        a("L_pf0:")
        a(f"s_add_u32 s{S_B1}, s{S_B1}, {KNAME}-L_pf0")
        a(f"s_addc_u32 s{S_B1+1}, s{S_B1+1}, -1")
        a(f"v_lshlrev_b32 v10, 6, v0")
        a(f"v_cmp_gt_u32 vcc, L_codeend-{KNAME}, v10")
        a(f"s_and_saveexec_b64 {sr(S_EX,2)}, vcc")
        a("s_cbranch_execz L_pf0_done")
        a(f"global_load_dword v15, v10, {sr(S_B1,2)}")
        a("L_pf0_done:")
        a(f"s_mov_b64 exec, {sr(S_EX,2)}")
    stamp(a,cfg,0)
    a(f"v_lshrrev_b32 v2, 6, v0")
    a(f"v_and_b32 v{V_LANE}, 63, v0")
    if cfg.ALTMAP: a(f"s_lshr_b32 s{S_X}, s{S_ID}, 5")
    else: a(f"s_and_b32 s{S_X}, s{S_ID}, 7")
    a(f"v_readfirstlane_b32 s{S_W}, v2")
    if cfg.ALTMAP: a(f"s_and_b32 s{S_R}, s{S_ID}, 31")
    else: a(f"s_lshr_b32 s{S_R}, s{S_ID}, 3")
    a(f"s_lshr_b32 s{S_T0}, s{S_R}, 3")
    a(f"s_lshl_b32 s{S_H}, s{S_X}, 2")
    a(f"s_add_u32 s{S_H}, s{S_H}, s{S_T0}")
    a(f"s_and_b32 s{S_B}, s{S_R}, 7")
    a(f"v_and_b32 v2, 15, v{V_LANE}")
    a(f"v_lshrrev_b32 v3, 4, v{V_LANE}")
    a(f"v_lshlrev_b32 v{V_VOFF}, 4, v{V_LANE}")
    a(f"v_lshrrev_b32 v4, 2, v2")
    a(f"v_and_b32 v5, 3, v2")
    a(f"v_lshlrev_b32 v6, 8, v4")
    a(f"v_lshlrev_b32 v7, 6, v3")
    a(f"v_lshlrev_b32 v8, 4, v5")
    a(f"v_add3_u32 v{V_KOFF}, v6, v7, v8")
    a(f"v_mov_b32 v{V_DMA}, 0")
    a("s_waitcnt lgkmcnt(0)")
    a(f"s_load_dwordx2 {sr(S_TAG,2)}, {sr(P_WS,2)}, {W_EPOCH}")
    a(f"s_lshl_b32 s{S_T0}, s{S_B}, 5")
    a(f"s_add_u32 s{S_T0}, s{S_T0}, s{S_H}")
    a(f"s_lshl_b32 s{S_T0}, s{S_T0}, 20")
    for srd,p in ((SRD_K,P_K),(SRD_V,P_V)):
        a(f"s_add_u32 s{srd}, s{p}, s{S_T0}")
        a(f"s_addc_u32 s{srd+1}, s{p+1}, 0")
        a(f"s_and_b32 s{srd+1}, s{srd+1}, 0xffff")
        a(f"s_mov_b32 s{srd+2}, 0x100000")
        a(f"s_mov_b32 s{srd+3}, 0x20000")
    a(f"s_lshl_b32 s{S_T0}, s{S_W}, 11")
    a(f"v_lshlrev_b32 v9, 5, v{V_LANE}")
    a(f"v_add_u32 v9, s{S_T0}, v9")
    a(f"global_load_dwordx4 {vr(V_X,4)}, v9, {sr(P_X,2)}")
    a(f"global_load_dwordx4 {vr(V_X+4,4)}, v9, {sr(P_X,2)} offset:16")
    if cfg.HIGH_INLINE:
        a(f"s_cmp_lt_u32 s{S_W}, 4")
        a("s_cbranch_scc1 L_lowwaves")
    else:
        a(f"s_cmp_ge_u32 s{S_W}, 4")
        a("s_cbranch_scc1 L_high")
        a.ool(True)
    a("L_high:")
    a(f"v_lshrrev_b32 v10, 3, v{V_LANE}")
    a(f"v_and_b32 v11, 7, v{V_LANE}")
    a(f"v_lshlrev_b32 v11, 4, v11")
    a(f"s_lshr_b32 s{S_T4}, s{S_R}, 4")
    a(f"s_and_b32 s{S_T5}, s{S_R}, 15")
    a(f"s_cmp_eq_u32 s{S_W}, 4")
    a("s_cbranch_scc1 L_dma_wo")
    a(f"s_cmp_eq_u32 s{S_W}, 7")
    a("s_cbranch_scc1 L_dma_wd")
    a(f"s_cmp_ge_u32 s{S_R}, 28")
    a("s_cbranch_scc1 L_dma_done")
    a(f"s_mul_i32 s{S_T0}, s{S_R}, 37")
    a(f"s_lshr_b32 s{S_T0}, s{S_T0}, 8")
    a(f"s_mul_i32 s{S_T1}, s{S_T0}, 7")
    a(f"s_sub_u32 s{S_T1}, s{S_R}, s{S_T1}")
    a(f"s_mul_i32 s{S_T0}, s{S_T0}, {256*7168}")
    a(f"s_mul_i32 s{S_T2}, s{S_X}, 896")
    a(f"s_lshl_b32 s{S_T1}, s{S_T1}, 7")
    a(f"s_add_u32 s{S_T0}, s{S_T0}, s{S_T2}")
    a(f"s_add_u32 s{S_T0}, s{S_T0}, s{S_T1}")
    a(f"s_cmp_eq_u32 s{S_W}, 5")
    a(f"s_cselect_b32 s{S_B0}, s{P_WG}, s{P_WU}")
    a(f"s_cselect_b32 s{S_B0+1}, s{P_WG+1}, s{P_WU+1}")
    a(f"s_mov_b32 s{S_T3}, {L_WU}")
    a(f"s_cselect_b32 s{S_T3}, {L_WG}, s{S_T3}")
    a(f"s_add_u32 s{S_B0}, s{S_B0}, s{S_T0}")
    a(f"s_addc_u32 s{S_B0+1}, s{S_B0+1}, 0")
    a(f"s_mov_b32 s{S_T0}, 7168")
    a(f"s_mov_b32 s{S_T1}, 32")
    a("s_branch L_dma_go")
    a("L_dma_wo:")
    a(f"s_lshl_b32 s{S_T0}, s{S_X}, 1")
    a(f"s_add_u32 s{S_T0}, s{S_T0}, s{S_T4}")
    a(f"s_lshl_b32 s{S_T0}, s{S_T0}, 19")
    a(f"s_lshl_b32 s{S_T1}, s{S_T5}, 7")
    a(f"s_add_u32 s{S_T0}, s{S_T0}, s{S_T1}")
    a(f"s_add_u32 s{S_B0}, s{P_WO}, s{S_T0}")
    a(f"s_addc_u32 s{S_B0+1}, s{P_WO+1}, 0")
    a(f"s_mov_b32 s{S_T3}, {L_WO}")
    a(f"s_mov_b32 s{S_T0}, 2048")
    a(f"s_mov_b32 s{S_T1}, 32")
    a("s_branch L_dma_go")
    a("L_dma_wd:")
    a(f"s_lshl_b32 s{S_T0}, s{S_X}, 1")
    a(f"s_add_u32 s{S_T0}, s{S_T0}, s{S_T4}")
    a(f"s_mul_i32 s{S_T0}, s{S_T0}, {224*2048}")
    a(f"s_lshl_b32 s{S_T1}, s{S_T5}, 7")
    a(f"s_add_u32 s{S_T0}, s{S_T0}, s{S_T1}")
    a(f"s_add_u32 s{S_B0}, s{P_WD}, s{S_T0}")
    a(f"s_addc_u32 s{S_B0+1}, s{P_WD+1}, 0")
    a(f"s_mov_b32 s{S_T3}, {L_WD}")
    a(f"s_mov_b32 s{S_T0}, 2048")
    a(f"s_mov_b32 s{S_T1}, 28")
    a("L_dma_go:")
    a(f"v_mul_lo_u32 v10, v10, s{S_T0}")
    a(f"s_lshl_b32 s{S_T0}, s{S_T0}, 3")
    a(f"v_add_u32 v10, v10, v11")
    a(f"s_mov_b32 m0, s{S_T3}")
    a("s_nop 0")
    for n in range(cfg.P0):
        a(f"global_load_lds_dwordx4 v10, {sr(S_B0,2)} {cfg.WFLAGS}")
        a(f"s_add_u32 m0, m0, 1024")
        a(f"s_add_u32 s{S_B0}, s{S_B0}, s{S_T0}")
        a(f"s_addc_u32 s{S_B0+1}, s{S_B0+1}, 0")
    a(f"s_sub_u32 s{S_DN}, s{S_T1}, {cfg.P0}")
    a(f"s_mov_b32 s{S_DS}, s{S_T0}")
    a(f"s_mov_b32 s{S_DM}, m0")
    a(f"v_mov_b32 v{V_DMA}, v10")
    a(f"s_mov_b32 s{S_LNW}, 1") if cfg.LNDRY else a(f"s_waitcnt vmcnt({cfg.P0})")
    a("s_branch L_ln1")
    a("L_dma_done:")
    a(f"s_mov_b32 s{S_DN}, 0")
    a(f"s_mov_b32 s{S_B0}, s{P_WS}")
    a(f"s_mov_b32 s{S_B0+1}, s{P_WS+1}")
    a(f"v_mov_b32 v{V_DMA}, 0")
    a(f"s_mov_b32 s{S_LNW}, 0") if cfg.LNDRY else a("s_waitcnt vmcnt(0)")
    a("s_branch L_ln1")

    a.ool(False)
    a("L_lowwaves:")
    a(f"v_lshlrev_b32 v12, 13, v3")
    a(f"v_lshlrev_b32 v11, 1, v3")
    a(f"v_xor_b32 v10, v2, v11")
    a(f"v_xor_b32 v11, 8, v10")
    a(f"v_lshl_add_u32 v10, v10, 4, v12")
    a(f"v_lshl_add_u32 v11, v11, 4, v12")
    a(f"s_lshl_b32 s{S_T0}, s{S_B}, 7")
    a(f"s_lshl_b32 s{S_T1}, s{S_W}, 5")
    a(f"s_add_u32 s{S_T0}, s{S_T0}, s{S_T1}")
    a(f"s_lshl_b32 s{S_T0}, s{S_T0}, 13")
    a(f"s_lshl_b32 s{S_T1}, s{S_H}, 8")
    a(f"s_add_u32 s{S_T0}, s{S_T0}, s{S_T1}")
    a(f"s_add_u32 s{S_B0}, s{P_WQ}, s{S_T0}")
    a(f"s_addc_u32 s{S_B0+1}, s{P_WQ+1}, 0")
    a(f"s_lshl_b32 s{S_T1}, s{S_W}, 13")
    a(f"s_add_u32 m0, s{S_T1}, {L_WQ}")
    a("s_nop 0")
    for n in range(8):
        a(f"global_load_lds_dwordx4 v{10+((n>>1)&1)}, {sr(S_B0,2)} {cfg.WFLAGS}")
        if n<7:
            a(f"s_add_u32 m0, m0, 1024")
            a(f"s_add_u32 s{S_B0}, s{S_B0}, {4*8192}")
            a(f"s_addc_u32 s{S_B0+1}, s{S_B0+1}, 0")
    if cfg.RING_EARLY:
        a(f"s_cmp_ge_u32 s{S_W}, {NSW}")
        a("s_cbranch_scc1 L_low_nostr")
        a(f"s_lshl_b32 s{S_KOFF}, s{S_W}, 12")
        for j in range(LK): kload(j)
        a(f"s_mov_b32 s{S_LNW}, 2") if cfg.LNDRY else a(f"s_waitcnt vmcnt({8+LK})")
        a("s_branch L_ln1_low")
        a("L_low_nostr:")
    a(f"s_mov_b32 s{S_LNW}, 3") if cfg.LNDRY else a(f"s_waitcnt vmcnt(8)")
    a("L_ln1_low:")
    a("L_ln1:")
    if cfg.LNDRY:
        a(f"s_or_b32 s{S_LNW}, s{S_LNW}, 0x10")
        a("L_ln1_again:")
    layernorm2(a, V_X, V_X+8, V_X+24, V_T)
    if cfg.LNDRY:
        a(f"s_bitcmp0_b32 s{S_LNW}, 4")
        a("s_cbranch_scc1 L_ln1_done")
        a(f"s_and_b32 s{S_LNW}, s{S_LNW}, 0xf")
        for k,n in ((0,0),(1,cfg.P0),(2,8+LK),(3,8)):
            a(f"s_cmp_lg_u32 s{S_LNW}, {k}")
            a(f"s_cbranch_scc1 L_lnw{k}")
            a(f"s_waitcnt vmcnt({n})")
            a(f"L_lnw{k}:")
        a("s_branch L_ln1_again")
        a("L_ln1_done:")
    a(f"s_lshl_b32 s{S_T0}, s{S_B}, 3")
    a(f"v_subrev_u32 v10, s{S_T0}, v{V_LANE}")
    a(f"v_cmp_gt_u32 vcc, 8, v10")
    a(f"s_mul_i32 s{S_T1}, s{S_W}, {LNA_P}")
    a(f"s_add_u32 s{S_T1}, s{S_T1}, {L_LNA}")
    a(f"v_lshlrev_b32 v10, 5, v10")
    a(f"v_add_u32 v10, s{S_T1}, v10")
    a(f"s_and_saveexec_b64 {sr(S_EX,2)}, vcc")
    a(f"ds_write_b128 v10, {vr(V_X+24,4)}")
    a(f"ds_write_b128 v10, {vr(V_X+28,4)} offset:16")
    a(f"s_mov_b64 exec, {sr(S_EX,2)}")
    a(f"s_cmp_ge_u32 s{S_W}, 4")
    a("s_cbranch_scc1 L_b1")
    if cfg.RING_EARLY:
        a(f"s_cmp_ge_u32 s{S_W}, {NSW}")
        a("s_cbranch_scc1 L_b1_ns")
        a(f"s_waitcnt vmcnt({LK})")
        a("s_branch L_b1")
        a("L_b1_ns:")
    a("s_waitcnt vmcnt(0)")
    a("L_b1:")
    a("s_waitcnt lgkmcnt(0)")
    a(f"s_cmp_lg_u32 s{S_W}, 0")
    a("s_cbranch_scc1 L_noqf")
    a(f"v_mov_b32 v10, {L_QF}")
    a(f"v_mov_b32 v11, 0")
    a(f"ds_write_b32 v10, v11")
    a("s_waitcnt lgkmcnt(0)")
    a("L_noqf:")
    a("s_barrier")
    stamp(a,cfg,1)
    a(f"s_add_u32 s{S_TAG}, s{S_TAG}, 1")
    a(f"s_addc_u32 s{S_TAG+1}, s{S_TAG+1}, 0")
    a(f"v_and_b32 v10, 1, v2")
    a(f"v_cmp_eq_u32 vcc, 1, v10")
    a(f"v_mov_b32 v11, 0xffff")
    a(f"v_mov_b32 v12, 0xffff0000")
    a(f"v_cndmask_b32 v11, v11, v12, vcc")
    a(f"v_lshrrev_b32 v10, 1, v2")
    for w in range(4):
        a(f"v_cmp_eq_u32 vcc, {w}, v10")
        a("s_nop 1")
        a(f"v_cndmask_b32 v{V_MASK+w}, 0, v11, vcc")
    a(f"v_mov_b32 v{V_MAX}, 0xff800000")
    a(f"s_mov_b32 s{S_SCALE}, 0x3db504f3")
    a(f"s_mov_b32 s{S_LOG2E}, 0x3fb8aa3b")
    for c in range(4):
        a(f"v_mov_b32 v{V_OACC+c}, 0")
    a(f"s_cmp_ge_u32 s{S_W}, 4")
    a("s_cbranch_scc1 L_high2")
    a.ool(True)
    a("L_high2:")
    if cfg.NODMA2: a(f"s_mov_b32 s{S_DN}, 0")
    a(f"s_cmp_eq_u32 s{S_DN}, 0")
    a("s_cbranch_scc1 L_dma2_done")
    if cfg.DMAPAUSE:
        a(f"v_mov_b32 v10, {L_QF}")
        a(f"s_mov_b32 s{S_SPIN}, {cfg.SPIN}")
        a("L_dp_wait:")
        a(f"ds_read_b32 v11, v10")
        a("s_waitcnt lgkmcnt(0)")
        a(f"v_readfirstlane_b32 s{S_T0}, v11")
        a("s_nop 1")
        a(f"s_cmp_lg_u32 s{S_T0}, 0")
        a("s_cbranch_scc1 L_dma2_loop")
        a("s_sleep 2")
        a(f"s_sub_u32 s{S_SPIN}, s{S_SPIN}, 1")
        a(f"s_cmp_lg_u32 s{S_SPIN}, 0")
        a("s_cbranch_scc1 L_dp_wait")
    a("L_dma2_loop:")
    a(f"s_waitcnt vmcnt({cfg.P-1})")
    a(f"global_load_lds_dwordx4 v{V_DMA}, {sr(S_B0,2)} {cfg.WFLAGS}")
    a(f"s_add_u32 m0, m0, 1024")
    a(f"s_add_u32 s{S_B0}, s{S_B0}, s{S_DS}")
    a(f"s_addc_u32 s{S_B0+1}, s{S_B0+1}, 0")
    a(f"s_sub_u32 s{S_DN}, s{S_DN}, 1")
    a(f"s_cmp_lg_u32 s{S_DN}, 0")
    a("s_cbranch_scc1 L_dma2_loop")
    a("L_dma2_done:")
    a("s_waitcnt vmcnt(0)")
    stamp(a,cfg,13)
    emit_precompute(a,cfg)
    emit_rdycheck(a,cfg)
    a("s_branch L_kdone")
    a.ool(False)
    a("L_q_low:")
    if not cfg.RING_EARLY:
        a(f"s_cmp_ge_u32 s{S_W}, {NSW}")
        a("s_cbranch_scc1 L_ring_late_skip")
        a(f"s_lshl_b32 s{S_KOFF}, s{S_W}, 12")
        for j in range(LK): kload(j)
        a("L_ring_late_skip:")
    a(f"s_cmp_lt_u32 s{S_W}, 2")
    a("s_cbranch_scc1 L_q_01")
    a.ool(True)
    a("L_q_01:")
    emit_precompute(a,cfg)
    a(f"s_cmp_eq_u32 s{S_W}, 0")
    a("s_cbranch_scc1 L_q_w0")
    a("s_branch L_q_w1")
    a.ool(False)
    a("L_q_prod:")
    a(f"v_and_b32 v10, 7, v{V_LANE}")
    a(f"v_mul_u32_u24 v10, {LNA_P}, v10")
    a(f"v_lshlrev_b32 v11, 4, v3")
    a(f"v_add_u32 v10, v10, v11")
    a(f"v_add_u32 v10, {L_LNA}, v10")
    for s_ in range(4):
        a(f"ds_read_b128 {vr(V_X+4*s_,4)}, v10 offset:{64*s_}")
    a(f"v_lshlrev_b32 v11, 3, v3")
    a(f"v_add_u32 v11, v11, v4")
    a(f"v_lshlrev_b32 v11, 8, v11")
    a(f"v_lshlrev_b32 v12, 3, v5")
    a(f"v_add3_u32 v11, v11, v12, {0}") if False else None
    a(f"v_add_u32 v11, v11, v12")
    a(f"v_add_u32 v11, {L_WQ}, v11")
    a(f"v_and_b32 v12, 1, v3")
    a(f"v_lshlrev_b32 v12, 2, v12")
    a(f"v_or_b32 v12, v12, v4")
    a(f"s_sub_u32 s{S_T4}, s{S_W}, 2")
    a(f"s_lshl_b32 s{S_T0}, s{S_T4}, 2")
    a(f"v_xor_b32 v12, s{S_T0}, v12")
    for tt in range(4):
        a(f"v_xor_b32 v13, {tt}, v12")
        a(f"v_lshl_add_u32 v{V_T+16+tt}, v13, 5, v11")
    for tt in range(4):
        for s_ in range(4):
            for hf in range(2):
                reg=V_RING+tt*16+s_*4+hf*2
                a(f"ds_read_b64_tr_b16 {vr(reg,2)}, v{V_T+16+tt} offset:{(32*s_+4*hf)*256}")
    a(f"s_lshl_b32 s{S_T0}, s{S_H}, 3")
    a(f"s_add_u32 s{S_T0}, s{S_T0}, s{S_B}")
    a(f"s_lshl_b32 s{S_T0}, s{S_T0}, 13")
    a(f"s_lshl_b32 s{S_T1}, s{S_T4}, 9")
    a(f"s_add_u32 s{S_T0}, s{S_T0}, s{S_T1}")
    a(f"s_add_u32 s{S_T0}, s{S_T0}, {W_QP}")
    a(f"v_lshlrev_b32 v10, 10, v2")
    a(f"v_lshlrev_b32 v11, 5, v3")
    a(f"v_add3_u32 v{V_QADDR}, v10, v11, s{S_T0}")
    G=V_X+16
    for tt in range(4):
        for hh in range(2):
            b=G+8*tt+4*hh
            a(f"v_mov_b32 v{b+2}, s{S_TAG}")
            a(f"v_mov_b32 v{b+3}, s{S_TAG+1}")
    a("s_waitcnt lgkmcnt(0)")
    for s_ in range(4):
        for tt in range(4):
            c = "0" if s_==0 else vr(V_T+4*tt,4)
            a(f"v_mfma_f32_16x16x32_bf16 {vr(V_T+4*tt,4)}, {vr(V_RING+tt*16+s_*4,4)}, {vr(V_X+4*s_,4)}, {c}")
    a("s_nop 7")
    for tt in range(4):
        for hh in range(2):
            b=G+8*tt+4*hh
            a(f"v_mov_b32 v{b}, v{V_T+4*tt+2*hh}")
            a(f"v_mov_b32 v{b+1}, v{V_T+4*tt+2*hh+1}")
    def qstores(fl):
        set_exec(a, "0x00ff00ff", "0x00ff00ff")
        for tt in range(4):
            for hh in range(2):
                a(f"global_store_dwordx4 v{V_QADDR}, {vr(G+8*tt+4*hh,4)}, {sr(P_WS,2)} offset:{128*tt+16*hh} {fl}")
        full_exec(a)
    qstores("" if cfg.QFAST else "sc1")
    stamp(a,cfg,13)
    a("s_branch L_prod2")
    a.ool(True)
    a("L_prod2:")
    if cfg.QFAST:
        a(f"v_mov_b32 v10, {L_QF}")
        a(f"s_mov_b32 s{S_SPIN}, {cfg.QWAIT}")
        a("L_qc_wait:")
        a("s_sleep 4")
        a(f"ds_read_b32 v11, v10")
        a("s_waitcnt lgkmcnt(0)")
        a(f"v_readfirstlane_b32 s{S_T0}, v11")
        a("s_nop 1")
        a(f"s_cmp_lg_u32 s{S_T0}, 0")
        a("s_cbranch_scc1 L_qc_go")
        a(f"s_sub_u32 s{S_SPIN}, s{S_SPIN}, 1")
        a(f"s_cmp_lg_u32 s{S_SPIN}, 0")
        a("s_cbranch_scc1 L_qc_wait")
        a("L_qc_go:")
        qstores("sc1")
    a(f"s_cmp_lg_u32 s{S_W}, 3")
    a("s_cbranch_scc1 L_q_prod2")
    emit_clears(a)
    a("s_waitcnt vmcnt(0)")
    emit_rdy(a)
    a("L_q_prod2:")
    emit_precompute(a,cfg)
    if cfg.CODEPF:
        a(f"s_cmp_lg_u32 s{S_W}, 2")
        a("s_cbranch_scc1 L_pf1_skip")
        emit_codepf(a,cfg,"L_pf1","L_q_ready","L_exit")
        a("L_pf1_skip:")
    a(f"global_load_dwordx2 {vr(V_XRES,2)}, v9, {sr(P_X,2)}")
    a("s_branch L_kdone")
    a.ool(False)
    a("L_q_w1:")
    if NSW<2:
        a("s_branch L_kdone")
    a(f"v_mov_b32 v10, {L_QF}")
    a(f"s_mov_b32 s{S_SPIN}, {cfg.SPIN}")
    a("L_qf_wait:")
    a(f"ds_read_b32 v11, v10")
    a("s_waitcnt lgkmcnt(0)")
    a(f"v_readfirstlane_b32 s{S_T0}, v11")
    a("s_nop 1")
    a(f"s_cmp_lg_u32 s{S_T0}, 0")
    a("s_cbranch_scc1 L_q_ready")
    a(f"s_sub_u32 s{S_SPIN}, s{S_SPIN}, 1")
    a(f"s_cmp_lg_u32 s{S_SPIN}, 0")
    a("s_cbranch_scc1 L_qf_wait")
    a("s_branch L_q_ready")
    a("L_q_w0:")
    a(f"s_lshl_b32 s{S_T0}, s{S_H}, 16")
    a(f"s_lshl_b32 s{S_T1}, s{S_B}, 10")
    a(f"s_add_u32 s{S_T0}, s{S_T0}, s{S_T1}")
    a(f"s_add_u32 s{S_T0}, s{S_T0}, {W_QP}")
    a(f"v_add_u32 v10, s{S_T0}, v{V_VOFF}")
    for j in range(8):
        a(f"v_add_u32 v{V_T+8+j}, {j*8192}, v10")
    PQ=V_X+16
    lp=a.label("qpoll"); dn=a.label("qok")
    a(f"s_mov_b32 s{S_SPIN}, {cfg.SPIN}")
    a(f"{lp}:")
    for j in range(8):
        a(f"global_load_dwordx4 {vr(PQ+4*j,4)}, v{V_T+8+j}, {sr(P_WS,2)} sc1")
    a("s_waitcnt vmcnt(0)")
    a(f"v_mov_b32 v11, 0")
    for j in range(8):
        a(f"v_xor_b32 v12, s{S_TAG}, v{PQ+4*j+2}")
        a(f"v_xor_b32 v13, s{S_TAG+1}, v{PQ+4*j+3}")
        a(f"v_or3_b32 v11, v11, v12, v13")
    a(f"v_cmp_ne_u32 vcc, 0, v11")
    a(f"s_cbranch_vccz {dn}")
    if cfg.QSLEEP: a(f"s_sleep {cfg.QSLEEP}")
    a(f"s_sub_u32 s{S_SPIN}, s{S_SPIN}, 1")
    a(f"s_cmp_lg_u32 s{S_SPIN}, 0")
    a(f"s_cbranch_scc1 {lp}")
    a(f"{dn}:")
    stamp(a,cfg,14)
    for j in range(1,8):
        a(f"v_add_f32 v{PQ}, v{PQ}, v{PQ+4*j}")
        a(f"v_add_f32 v{PQ+1}, v{PQ+1}, v{PQ+4*j+1}")
    a(f"v_cvt_pk_bf16_f32 v{PQ+2}, v{PQ}, v{PQ+1}")
    a(f"v_lshlrev_b32 v11, 2, v{V_LANE}")
    a(f"v_add_u32 v11, {L_QS}, v11")
    a(f"ds_write_b32 v11, v{PQ+2}")
    a("s_waitcnt lgkmcnt(0)")
    a(f"v_mov_b32 v10, {L_QF}")
    a(f"v_mov_b32 v11, 1")
    a(f"ds_write_b32 v10, v11")
    a("L_q_ready:")
    stamp(a,cfg,2)
    a(f"v_lshlrev_b32 v10, 2, v3")
    a(f"v_add_u32 v10, v10, v5")
    a(f"v_lshlrev_b32 v10, 4, v10")
    a(f"v_add_u32 v10, {L_QS}, v10")
    a(f"ds_read_b128 {vr(V_T,4)}, v10")
    a(f"s_lshl_b32 s{S_T0}, s{S_W}, 6")
    a(f"s_add_u32 s{S_T0}, s{S_T0}, {L_SC}")
    a(f"v_lshlrev_b32 v10, 4, v4")
    a(f"v_lshlrev_b32 v11, 2, v3")
    a(f"v_add3_u32 v{V_SCW}, v10, v11, s{S_T0}")
    a("s_waitcnt lgkmcnt(0)")
    for n in range(4):
        a(f"v_cmp_eq_u32 vcc, {n}, v4")
        a("s_nop 1")
        for c in range(4):
            a(f"v_cndmask_b32 v{V_QA+4*n+c}, 0, v{V_T+c}, vcc")
    import math
    PERK=LK*4//math.gcd(LK,4)
    def kpost(acc, sc_off):
        t=V_T
        a(f"v_mov_b32_dpp v{t}, v{acc} quad_perm:[0,0,0,0] row_mask:0xf bank_mask:0xf")
        for q in range(1,4):
            a(f"v_add_f32_dpp v{t}, v{acc+q}, v{t} quad_perm:[{q},{q},{q},{q}] row_mask:0xf bank_mask:0xf")
        round_bf16(a,t,t)
        a(f"v_mul_f32 v{t}, s{S_SCALE}, v{t}")
        round_bf16(a,t,t)
        a(f"v_max_f32 v{V_MAX}, v{V_MAX}, v{t}")
        a(f"ds_write_b32 v{V_SCW}, v{t} offset:{sc_off}")
    def kbody(j, wait_n, reissue, sc_off, prev_off=None, last=False):
        a(f"s_waitcnt vmcnt({wait_n})")
        a("s_nop 0")
        n=j%4
        if cfg.KEXP==2:
            acc=V_SACC if (j//4)%2==0 else V_SACC2
        else:
            acc=V_SACC
        c="0" if n==0 else vr(acc,4)
        a(f"v_mfma_f32_16x16x32_bf16 {vr(acc,4)}, {vr(V_QA+4*n,4)}, {vr(V_RING+(j%LK)*4,4)}, {c}")
        reissue()
        if cfg.KEXP==2:
            if n==1 and prev_off is not None:
                kpost(V_SACC2 if (j//4)%2==0 else V_SACC, prev_off)
            if n==3 and last:
                a("s_nop 7")
                kpost(acc, sc_off)
        elif n==3:
            if cfg.KEXP==1: return
            a("s_nop 7")
            kpost(acc, sc_off)
    if cfg.KEXP==2 and (PERK//4)%2: PERK*=2
    nloop=(NK-LK)//PERK
    TS=NSW*64
    if cfg.KEXP==2:
        for j in range(4):
            kbody(j, LK-1, (lambda j=j: kload(j+LK)), 0, None)
        base=4
        nloop=(NK-LK-4)//PERK
    else:
        base=0
    a(f"s_mov_b32 s{S_LOOP}, {nloop}")
    a(".p2align 6")
    a("L_kloop:")
    for j in range(base,base+PERK):
        kbody(j, LK-1, (lambda j=j: kload(j+LK)), ((j-0)//4)*TS, ((j//4)-1)*TS)
    a(f"v_add_u32 v{V_SCW}, {(PERK//4)*TS}, v{V_SCW}")
    a(f"s_sub_u32 s{S_LOOP}, s{S_LOOP}, 1")
    a(f"s_cmp_lg_u32 s{S_LOOP}, 0")
    a("s_cbranch_scc1 L_kloop")
    done=base+nloop*PERK
    for j in range(done, NK):
        m=j+LK
        if m<NK: ri=(lambda m=m: kload(m)); wn=LK-1
        elif m-NK<L: ri=(lambda m=m: vload(m-NK, first=(m==NK))); wn=LK-1
        else: ri=(lambda: None); wn=(NK-1-j)+L
        rel=(j-nloop*PERK)//4
        kbody(j, wn, ri, rel*TS, (rel-1)*TS, last=(j==NK-1))
    a("L_kdone:")
    stamp(a,cfg,3)
    wave_sum(a, V_MAX, V_T, op="max")
    a(f"s_lshl_b32 s{S_T0}, s{S_W}, 2")
    a(f"s_add_u32 s{S_T0}, s{S_T0}, {L_ML}")
    a(f"v_mov_b32 v11, s{S_T0}")
    a(f"ds_write_b32 v11, v{V_MAX}")
    a("s_waitcnt lgkmcnt(0)")
    a("s_barrier")
    if cfg.LATE_L:
        a(f"s_cmp_lg_u32 s{S_W}, 2")
        a("s_cbranch_scc1 L_nokd")
        a(f"v_mov_b32 v12, {L_MODE}")
        a(f"ds_read_b32 v13, v12")
        a(f"s_lshl_b32 s{S_T0}, s{S_X}, 9")
        a(f"s_add_u32 s{S_T0}, s{S_T0}, {W_KD}")
        a(f"v_and_b32 v10, 31, v{V_LANE}")
        a(f"v_lshlrev_b32 v10, 4, v10")
        a(f"v_add_u32 v10, s{S_T0}, v10")
        a(f"global_load_dwordx4 {vr(V_RDY,4)}, v10, {sr(P_WS,2)} sc1")
        a(f"s_lshl_b32 s{S_T1}, s{S_R}, 4")
        a(f"s_add_u32 s{S_T0}, s{S_T0}, s{S_T1}")
        a(f"v_mov_b32 v10, s{S_T0}")
        a(f"v_mov_b32 v{V_X+8}, 1")
        a(f"v_mov_b32 v{V_X+9}, 0")
        a(f"v_mov_b32 v{V_X+10}, s{S_TAG}")
        a(f"v_mov_b32 v{V_X+11}, s{S_TAG+1}")
        a("s_waitcnt lgkmcnt(0)")
        a(f"v_readfirstlane_b32 s{S_FAST}, v13")
        a("s_nop 1")
        set_exec(a,1,0)
        store_mode(a, f"global_store_dwordx4 v10, {vr(V_X+8,4)}, {sr(P_WS,2)}", True)
        full_exec(a)
        a("L_nokd:")
    a(f"s_cmp_lt_u32 s{S_W}, {NSW}")
    a("s_cbranch_scc1 L_nohv")
    a(f"s_sub_u32 s{S_T0}, s{S_W}, {NSW}")
    a(f"s_mul_i32 s{S_T0}, s{S_T0}, {HV*4096}")
    for t in range(HV):
        for n in range(4):
            a(f"buffer_load_dwordx4 {vr(V_RING+t*16+n*4,4)}, v{V_VOFF}, {sr(SRD_V,4)}, s{S_T0} offen offset:{n*1024} {cfg.VFLAGS}")
        if t<HV-1: a(f"s_add_u32 s{S_T0}, s{S_T0}, 4096")
    a("L_nohv:")
    a(f"v_mov_b32 v12, {L_MODE}")
    a(f"ds_read_b32 v13, v12")
    a(f"v_mov_b32 v11, {L_ML}")
    a(f"ds_read_b128 {vr(V_X,4)}, v11")
    a(f"ds_read_b128 {vr(V_X+4,4)}, v11 offset:16")
    a(f"s_lshl_b32 s{S_T4}, s{S_W}, 11")
    a(f"s_add_u32 s{S_T4}, s{S_T4}, {L_SC}")
    a(f"v_lshlrev_b32 v10, 5, v{V_LANE}")
    a(f"v_add_u32 v10, s{S_T4}, v10")
    a(f"ds_read_b128 {vr(V_T,4)}, v10")
    a(f"ds_read_b128 {vr(V_T+4,4)}, v10 offset:16")
    a("s_waitcnt lgkmcnt(2)")
    a(f"v_readfirstlane_b32 s{S_FAST}, v13")
    a(f"v_max3_f32 v{V_MAX}, v{V_X}, v{V_X+1}, v{V_X+2}")
    a(f"v_max3_f32 v{V_MAX}, v{V_MAX}, v{V_X+3}, v{V_X+4}")
    a(f"v_max3_f32 v{V_MAX}, v{V_MAX}, v{V_X+5}, v{V_X+6}")
    a(f"v_max_f32 v{V_MAX}, v{V_MAX}, v{V_X+7}")
    a("s_waitcnt lgkmcnt(0)")
    for i in range(8):
        a(f"v_sub_f32 v{V_T+8+i}, v{V_T+i}, v{V_MAX}")
        a(f"v_mul_f32 v{V_T+8+i}, s{S_LOG2E}, v{V_T+8+i}")
        a(f"v_exp_f32 v{V_T+8+i}, v{V_T+8+i}")
    a("s_nop 0")
    a(f"v_add_f32 v{V_T+16}, v{V_T+8}, v{V_T+9}")
    for i in range(2,8):
        a(f"v_add_f32 v{V_T+16}, v{V_T+16}, v{V_T+8+i}")
    wave_sum(a, V_T+16, V_T+17)
    a(f"s_lshl_b32 s{S_T0}, s{S_W}, 2")
    a(f"s_add_u32 s{S_T0}, s{S_T0}, {L_LS}")
    a(f"v_mov_b32 v11, s{S_T0}")
    a(f"ds_write_b32 v11, v{V_T+16}")
    a("s_waitcnt lgkmcnt(0)")
    a("s_barrier")
    a(f"v_mov_b32 v11, {L_LS}")
    a(f"ds_read_b128 {vr(V_X,4)}, v11")
    a(f"ds_read_b128 {vr(V_X+4,4)}, v11 offset:16")
    a("s_waitcnt lgkmcnt(0)")
    a(f"v_add_f32 v{V_T+16}, v{V_X}, v{V_X+1}")
    for k in range(2,8):
        a(f"v_add_f32 v{V_T+16}, v{V_T+16}, v{V_X+k}")
    a(f"v_rcp_f32 v{V_T+17}, v{V_T+16}")
    a("s_nop 0")
    a(f"v_fma_f32 v{V_T+18}, -v{V_T+16}, v{V_T+17}, 1.0")
    a(f"v_fma_f32 v{V_T+17}, v{V_T+18}, v{V_T+17}, v{V_T+17}")
    for i in range(8):
        a(f"v_mul_f32 v{V_T+8+i}, v{V_T+8+i}, v{V_T+17}")
        a(f"v_cvt_pk_bf16_f32 v{V_T+8+i}, v{V_T+8+i}, v{V_T+8+i}")
    a(f"ds_write_b128 v10, {vr(V_T+8,4)}")
    a(f"ds_write_b128 v10, {vr(V_T+12,4)} offset:16")
    if cfg.LATE_L:
        a(f"s_cmp_lg_u32 s{S_W}, 2")
        a("s_cbranch_scc1 L_nokd2")
        a(f"s_waitcnt vmcnt({1+4*HV})")
        a(f"v_xor_b32 v11, s{S_TAG}, v{V_RDY+2}")
        a(f"v_xor_b32 v15, s{S_TAG+1}, v{V_RDY+3}")
        a(f"v_or_b32 v11, v11, v15")
        a(f"v_cmp_eq_u32 vcc, 0, v11")
        a("s_nop 1")
        a(f"s_bcnt1_i32_b32 s{S_T0}, vcc_lo")
        a(f"s_cmp_ge_u32 s{S_T0}, {cfg.LATE_THR}")
        a(f"s_cselect_b32 s{S_T0}, 1, 0")
        a(f"v_mov_b32 v11, {L_SEL}")
        a(f"v_mov_b32 v15, s{S_T0}")
        a(f"ds_write_b32 v11, v15")
        a("L_nokd2:")
    a("s_waitcnt lgkmcnt(0)")
    a("s_barrier")
    stamp(a,cfg,4)
    def ands(dst,pp):
        for w in range(4):
            a(f"v_and_b32 v{dst+w}, v{pp}, v{V_MASK+w}")
    a(f"s_cmp_lt_u32 s{S_W}, {NSW}")
    a("s_cbranch_scc1 L_vstream")
    a(f"s_sub_u32 s{S_T0}, s{S_W}, {NSW}")
    a(f"s_mul_i32 s{S_T0}, s{S_T0}, {HV*64}")
    a(f"s_add_u32 s{S_T0}, s{S_T0}, {L_SC}")
    a(f"v_lshlrev_b32 v10, 4, v3")
    a(f"v_add_u32 v10, s{S_T0}, v10")
    for t in range(HV):
        a(f"ds_read_b128 {vr(V_PP0,4)}, v10 offset:{t*64}")
        a(f"s_waitcnt vmcnt({4*(HV-1-t)}) lgkmcnt(0)")
        for n in range(4):
            A=V_A0 if n%2==0 else V_A1
            ands(A,V_PP0+n)
            a("s_nop 1")
            a(f"v_mfma_f32_16x16x32_bf16 {vr(V_OACC,4)}, {vr(A,4)}, {vr(V_RING+t*16+4*n,4)}, {vr(V_OACC,4)}")
    a("s_nop 7")
    set_exec(a, -1, 0)
    a(f"ds_write_b128 v{PA_OW}, {vr(V_OACC,4)}")
    full_exec(a)
    frag_reads(a,"ogd")
    if cfg.CODEPF:
        a(f"s_cmp_lg_u32 s{S_W}, 4")
        a("s_cbranch_scc1 L_pf2_skip")
        emit_codepf(a,cfg,"L_pf2","L_vdone","L_exit")
        a("L_pf2_skip:")
    a("s_waitcnt vmcnt(0) lgkmcnt(0)")
    a("s_branch L_vdone")
    a("L_vstream:")
    a(f"s_add_u32 s{S_T0}, s{S_W}, {NH*HV}")
    a(f"s_lshl_b32 s{S_T0}, s{S_T0}, 6")
    a(f"s_add_u32 s{S_T0}, s{S_T0}, {L_SC}")
    a(f"v_lshlrev_b32 v10, 4, v3")
    a(f"v_add_u32 v{V_PPR}, s{S_T0}, v10")
    a(f"ds_read_b128 {vr(V_PP0,4)}, v{V_PPR}")
    import math as _m
    base_ring=[(NK-LK+v)%LK for v in range(L)]
    spare=[x for x in range(16) if x not in base_ring]
    def vstream(LV, sfx):
        ring=base_ring+spare[:LV-L]
        def issue(jn):
            reg=V_RING+ring[jn%LV]*4
            a(f"buffer_load_dwordx4 {vr(reg,4)}, v{V_VOFF}, {sr(SRD_V,4)}, s{S_KOFF} offen offset:{(jn%4)*1024} {cfg.VFLAGS}")
            if jn%4==3: a(f"s_add_u32 s{S_KOFF}, s{S_KOFF}, {TSTEP}")
        for jn in range(L,LV): issue(jn)
        def body(jv, rel, wait_n, reissue, last_tile):
            n=jv%4; par=(jv//4)%2
            pp = V_PP0 if par==0 else V_PP1
            ppn = V_PP1 if par==0 else V_PP0
            if n==0:
                if not last_tile:
                    a(f"ds_read_b128 {vr(ppn,4)}, v{V_PPR} offset:{(rel+1)*NSW*64}")
                    a(f"s_waitcnt lgkmcnt(1)")
                    a("s_nop 0")
                else:
                    a(f"s_waitcnt lgkmcnt(0)")
                    a("s_nop 0")
            A=V_A0 if n%2==0 else V_A1
            ands(A,pp+n)
            a(f"s_waitcnt vmcnt({wait_n})")
            a("s_nop 0")
            a(f"v_mfma_f32_16x16x32_bf16 {vr(V_OACC,4)}, {vr(A,4)}, {vr(V_RING+ring[jv%LV]*4,4)}, {vr(V_OACC,4)}")
            if reissue: issue(jv+LV)
        per=LV*4//_m.gcd(LV,4)
        if (per//4)%2: per*=2
        nl=(NV-LV)//per
        a(f"s_mov_b32 s{S_LOOP}, {nl}")
        a(".p2align 6")
        a(f"L_vloop{sfx}:")
        for jv in range(per): body(jv, jv//4, LV-1, True, False)
        a(f"v_add_u32 v{V_PPR}, {(per//4)*NSW*64}, v{V_PPR}")
        a(f"s_sub_u32 s{S_LOOP}, s{S_LOOP}, 1")
        a(f"s_cmp_lg_u32 s{S_LOOP}, 0")
        a(f"s_cbranch_scc1 L_vloop{sfx}")
        start=nl*per
        for jv in range(start,NV):
            re=(jv+LV<NV)
            wn=LV-1 if re or jv+LV==NV else NV-1-jv
            wn=min(LV-1, NV-1-jv)
            body(jv, (jv-start)//4, wn, re, jv//4==VT-1)
    if cfg.LATE_L:
        a(f"v_mov_b32 v10, {L_SEL}")
        a(f"ds_read_b32 v11, v10")
        a("s_waitcnt lgkmcnt(0)")
        a(f"v_readfirstlane_b32 s{S_T0}, v11")
        a("s_nop 1")
        a(f"s_cmp_lg_u32 s{S_T0}, 0")
        a("s_cbranch_scc1 L_vlate")
    vstream(L,"")
    if cfg.LATE_L:
        a("s_branch L_vdone")
        a.ool(True)
        a("L_vlate:")
        vstream(cfg.LATE_L,"b")
        a("s_branch L_vdone")
        a.ool(False)
    a("L_vdone:")
    stamp(a,cfg,5)
    return a, None

PA=208
PA_O=PA+0; PA_T2=PA+1; PA_DW=PA+2; PA_R2=PA+3; PA_P2=PA+4; PA_T3A=PA+5; PA_T3B=PA+6; PA_T3W=PA+7; PA_T3R=PA+8; PA_H=PA+9
PA_T4=PA+10; PA_LNBW=PA+11; PA_HSW=PA+12; PA_LNBR=PA+13; PA_GP=PA+14; PA_ACT=PA+15; PA_T6=PA+16; PA_OUT=PA+17; PA_HSR=PA+18
PA_OW=PA+19; PA_OR=PA+20; PA_TR=PA+21
PA_T5B=PA+24
PA_T7=PA+28
V_XRES=PA+36
V_RDY=PA+40
SM_LNB=8; SM_HS=10
R_T1=2; R_RED0=2
R_W0=3

def emit_precompute(a, cfg):
    global SM_LNB, SM_HS
    T0,T1,T2,T3,T4,T5=S_T0,S_T1,S_T2,S_T3,S_T4,S_T5
    a(f"s_lshl_b32 s{T0}, s{S_H}, 3")
    a(f"s_add_u32 s{T0}, s{T0}, s{S_B}")
    a(f"s_lshl_b32 s{T0}, s{T0}, 8")
    a(f"s_add_u32 s{T0}, s{T0}, {W_OB}")
    a(f"v_lshlrev_b32 v10, 2, v{V_LANE}")
    a(f"v_add_u32 v{PA_O}, s{T0}, v10")
    a(f"s_lshl_b32 s{T0}, s{S_W}, 9")
    a(f"s_add_u32 s{T0}, s{T0}, {L_RED}")
    a(f"v_lshlrev_b32 v11, 5, v2")
    a(f"v_lshlrev_b32 v12, 4, v3")
    a(f"v_add3_u32 v{PA_OW}, v11, v12, s{T0}")
    a(f"v_lshlrev_b32 v11, 3, v{V_LANE}")
    a(f"v_add_u32 v{PA_OR}, {L_RED}, v11")
    a(f"v_lshlrev_b32 v11, 3, v3")
    a(f"v_add_u32 v11, v11, v4")
    a(f"v_lshlrev_b32 v11, 7, v11")
    a(f"v_lshlrev_b32 v13, 3, v5")
    a(f"v_add_u32 v{PA_TR}, v11, v13")
    a(f"s_lshr_b32 s{T4}, s{S_R}, 4")
    a(f"s_and_b32 s{T5}, s{S_R}, 15")
    a(f"v_and_b32 v14, 7, v{V_LANE}")
    a(f"s_lshl_b32 s{T0}, s{S_X}, 2")
    a(f"s_lshl_b32 s{T1}, s{T4}, 1")
    a(f"s_add_u32 s{T0}, s{T0}, s{T1}")
    a(f"s_lshr_b32 s{T1}, s{S_W}, 2")
    a(f"s_add_u32 s{T0}, s{T0}, s{T1}")
    a(f"s_lshl_b32 s{T0}, s{T0}, 11")
    a(f"s_and_b32 s{T1}, s{S_W}, 3")
    a(f"s_lshl_b32 s{T1}, s{T1}, 6")
    a(f"s_add_u32 s{T0}, s{T0}, s{T1}")
    a(f"s_add_u32 s{T0}, s{T0}, {W_OB}")
    a(f"v_lshlrev_b32 v10, 8, v14")
    a(f"v_add3_u32 v{PA_T2}, v10, v12, s{T0}")
    a(f"s_lshl_b32 s{T0}, s{S_W}, 11")
    a(f"s_add_u32 s{T0}, s{T0}, {L_SC}")
    a(f"v_lshlrev_b32 v10, 8, v2")
    a(f"v_xor_b32 v11, v3, v5")
    a(f"v_lshlrev_b32 v11, 4, v11")
    a(f"v_add3_u32 v{PA_DW}, v10, v11, s{T0}")
    a(f"s_sub_u32 s{T0}, s{S_W}, {R_RED0}")
    a(f"s_lshl_b32 s{T0}, s{T0}, 6")
    a(f"v_add_u32 v10, s{T0}, v{V_LANE}")
    a(f"v_and_b32 v10, 127, v10")
    a(f"v_lshrrev_b32 v11, 4, v10")
    a(f"v_and_b32 v13, 3, v11")
    a(f"v_xor_b32 v13, v13, v10")
    a(f"v_lshlrev_b32 v13, 4, v13")
    a(f"v_add_u32 v{PA_R2}, {L_SC}, v13")
    a(f"s_lshl_b32 s{T0}, s{S_X}, 1")
    a(f"s_add_u32 s{T0}, s{T0}, s{T4}")
    a(f"s_lshl_b32 s{T0}, s{T0}, 15")
    a(f"s_lshl_b32 s{T1}, s{T5}, 8")
    a(f"s_add_u32 s{T0}, s{T0}, s{T1}")
    a(f"s_add_u32 s{T0}, s{T0}, {W_AP}")
    a(f"v_lshrrev_b32 v11, 4, v10")
    a(f"v_lshlrev_b32 v11, 12, v11")
    a(f"v_lshlrev_b32 v13, 4, v2")
    a(f"v_add3_u32 v{PA_P2}, v11, v13, s{T0}")
    a(f"s_lshr_b32 s{T0}, s{S_R}, 2")
    a(f"s_lshl_b32 s{T0}, s{T0}, 12")
    a(f"s_and_b32 s{T1}, s{S_R}, 3")
    a(f"s_lshl_b32 s{T1}, s{T1}, 10")
    a(f"s_add_u32 s{T0}, s{T0}, s{T1}")
    a(f"s_lshl_b32 s{T1}, s{S_W}, 16")
    a(f"s_add_u32 s{T0}, s{T0}, s{T1}")
    a(f"s_add_u32 s{T0}, s{T0}, {W_AP}")
    a(f"v_add_u32 v{PA_T3A}, s{T0}, v{V_VOFF}")
    a(f"v_add_u32 v{PA_T3B}, 32768, v{PA_T3A}")
    RED3=L_RED+4096
    a(f"s_lshl_b32 s{T0}, s{S_W}, 10")
    a(f"s_add_u32 s{T0}, s{T0}, {RED3}")
    a(f"v_add_u32 v{PA_T3W}, s{T0}, v{V_VOFF}")
    a(f"v_add_u32 v{PA_T3R}, {RED3}, v{V_VOFF}")
    a(f"s_lshr_b32 s{T0}, s{S_R}, 2")
    a(f"s_lshl_b32 s{T1}, s{S_X}, 3")
    a(f"s_add_u32 s{T0}, s{T0}, s{T1}")
    a(f"s_lshl_b32 s{T0}, s{T0}, 11")
    a(f"s_and_b32 s{T1}, s{S_R}, 3")
    a(f"s_lshl_b32 s{T1}, s{T1}, 9")
    a(f"s_add_u32 s{T0}, s{T0}, s{T1}")
    a(f"s_add_u32 s{T0}, s{T0}, {W_HB}")
    a(f"v_lshlrev_b32 v10, 3, v{V_LANE}")
    a(f"v_add_u32 v{PA_H}, s{T0}, v10")
    a(f"s_lshr_b32 s{T0}, s{S_R}, 2")
    a(f"s_lshl_b32 s{T0}, s{T0}, 11")
    a(f"s_add_u32 s{T0}, s{T0}, s{T1}")
    a(f"v_add_u32 v9, s{T0}, v10")
    a(f"s_lshl_b32 s{T0}, s{S_X}, 3")
    a(f"s_add_u32 s{T0}, s{T0}, s{S_W}")
    a(f"s_lshl_b32 s{T0}, s{T0}, 11")
    a(f"s_add_u32 s{T0}, s{T0}, {W_HB}")
    a(f"v_lshlrev_b32 v10, 5, v{V_LANE}")
    a(f"v_add_u32 v{PA_T4}, s{T0}, v10")
    a(f"s_mul_i32 s{T2}, s{S_R}, 37")
    a(f"s_lshr_b32 s{T2}, s{T2}, 8")
    a(f"s_mul_i32 s{T3}, s{T2}, 7")
    a(f"s_sub_u32 s{T3}, s{S_R}, s{T3}")
    a(f"s_lshl_b32 s{T0}, s{T2}, 4")
    a(f"v_subrev_u32 v10, s{T0}, v{V_LANE}")
    a(f"v_cmp_gt_u32 {sr(SM_LNB,2)}, 16, v10")
    a(f"s_mul_i32 s{T1}, s{S_W}, {LNB_P}")
    a(f"s_add_u32 s{T1}, s{T1}, {L_LNB}")
    a(f"v_lshlrev_b32 v10, 5, v10")
    a(f"v_add_u32 v{PA_LNBW}, s{T1}, v10")
    a(f"s_lshl_b32 s{T0}, s{S_R}, 1")
    a(f"v_subrev_u32 v10, s{T0}, v{V_LANE}")
    a(f"v_cmp_gt_u32 {sr(SM_HS,2)}, 2, v10")
    a(f"v_lshlrev_b32 v10, 5, v10")
    a(f"v_add_u32 v{PA_HSW}, {L_HS}, v10")
    a(f"v_mul_u32_u24 v10, {LNB_P}, v14")
    a(f"v_add_u32 v10, v10, v12")
    a(f"v_add_u32 v{PA_LNBR}, {L_LNB}, v10")
    a(f"s_mul_i32 s{T0}, s{S_X}, 28")
    a(f"s_add_u32 s{T0}, s{T0}, s{S_R}")
    a(f"s_lshl_b32 s{T0}, s{T0}, 12")
    a(f"s_lshr_b32 s{T1}, s{S_W}, 2")
    a(f"s_lshl_b32 s{T1}, s{T1}, 11")
    a(f"s_add_u32 s{T0}, s{T0}, s{T1}")
    a(f"s_and_b32 s{T1}, s{S_W}, 3")
    a(f"s_lshl_b32 s{T1}, s{T1}, 6")
    a(f"s_add_u32 s{T0}, s{T0}, s{T1}")
    a(f"s_add_u32 s{T0}, s{T0}, {W_GP}")
    a(f"v_lshlrev_b32 v10, 8, v2")
    a(f"v_add3_u32 v{PA_GP}, v10, v12, s{T0}")
    a(f"s_mul_i32 s{T0}, s{S_X}, 28")
    a(f"s_add_u32 s{T0}, s{T0}, s{T3}")
    a(f"s_lshl_b32 s{T0}, s{T0}, 12")
    a(f"s_lshl_b32 s{T1}, s{T2}, 9")
    a(f"s_add_u32 s{T0}, s{T0}, s{T1}")
    a(f"s_add_u32 s{T0}, s{T0}, {W_GP}")
    a(f"v_lshrrev_b32 v10, 5, v{V_LANE}")
    a(f"v_and_b32 v11, 31, v{V_LANE}")
    a(f"v_lshlrev_b32 v13, 8, v10")
    a(f"v_lshlrev_b32 v15, 3, v11")
    a(f"v_add3_u32 v{PA_T5B}, v13, v15, s{T0}")
    for k in range(1,4):
        a(f"v_add_u32 v{PA_T5B+k}, {k*7*4096}, v{PA_T5B}")
    a(f"s_lshl_b32 s{T0}, s{S_X}, 3")
    a(f"s_lshl_b32 s{T1}, s{T2}, 1")
    a(f"s_add_u32 s{T0}, s{T0}, s{T1}")
    a(f"s_mul_i32 s{T0}, s{T0}, 896")
    a(f"s_lshl_b32 s{T1}, s{T3}, 7")
    a(f"s_add_u32 s{T0}, s{T0}, s{T1}")
    a(f"s_add_u32 s{T0}, s{T0}, {W_ACT}")
    a(f"v_mul_u32_u24 v13, 896, v10")
    a(f"v_lshlrev_b32 v15, 2, v11")
    a(f"v_add3_u32 v{PA_ACT}, v13, v15, s{T0}")
    a(f"s_mul_i32 s{T0}, s{S_X}, {8*896}")
    a(f"s_mul_i32 s{T1}, s{T4}, 448")
    a(f"s_add_u32 s{T0}, s{T0}, s{T1}")
    a(f"s_lshl_b32 s{T1}, s{S_W}, 6")
    a(f"s_add_u32 s{T0}, s{T0}, s{T1}")
    a(f"s_add_u32 s{T0}, s{T0}, {W_ACT}")
    a(f"v_mul_u32_u24 v13, 896, v14")
    a(f"v_add3_u32 v{PA_T6}, v13, v12, s{T0}")
    a(f"s_lshl_b32 s{T0}, s{S_X}, 12")
    a(f"s_lshl_b32 s{T1}, s{S_R}, 7")
    a(f"s_add_u32 s{T0}, s{T0}, s{T1}")
    a(f"s_add_u32 s{T0}, s{T0}, {W_DP}")
    a(f"v_lshlrev_b32 v13, 18, v10")
    a(f"v_lshlrev_b32 v15, 2, v11")
    a(f"v_add3_u32 v{PA_T7}, v13, v15, s{T0}")
    for k in range(1,8):
        a(f"v_add_u32 v{PA_T7+k}, {k*32768}, v{PA_T7}")
    a(f"s_lshl_b32 s{T0}, s{S_X}, 11")
    a(f"s_lshl_b32 s{T1}, s{S_R}, 6")
    a(f"s_add_u32 s{T0}, s{T0}, s{T1}")
    a(f"v_lshlrev_b32 v15, 1, v11")
    a(f"v_add_u32 v{PA_OUT}, s{T0}, v15")
    a(f"v_add_u32 v{PA_HSR}, {L_HS}, v15")

def emit_codepf(a, cfg, lab, first, last):
    a(f"s_getpc_b64 {sr(S_B1,2)}")
    a(f"{lab}:")
    a(f"s_add_u32 s{S_B1}, s{S_B1}, ({first}-{lab})&0xffffffff")
    a(f"s_addc_u32 s{S_B1+1}, s{S_B1+1}, ({first}-{lab})>>32")
    a(f"v_lshlrev_b32 v10, 6, v{V_LANE}")
    a(f"s_mov_b32 s{S_T0}, {last}-{first}")
    a(f"{lab}_loop:")
    a(f"v_cmp_gt_u32 vcc, s{S_T0}, v10")
    a(f"s_and_saveexec_b64 {sr(S_EX,2)}, vcc")
    a(f"s_cbranch_execz {lab}_done")
    a(f"global_load_dword v11, v10, {sr(S_B1,2)}")
    a(f"s_mov_b64 exec, {sr(S_EX,2)}")
    a(f"v_add_u32 v10, 4096, v10")
    a(f"s_branch {lab}_loop")
    a(f"{lab}_done:")
    a(f"s_mov_b64 exec, {sr(S_EX,2)}")
    a("s_waitcnt vmcnt(0)")

def emit_rdycheck(a, cfg):
    f=1 if cfg.FASTMODE else 0
    a(f"s_cmp_lg_u32 s{S_W}, 4")
    a("s_cbranch_scc1 L_rdy_b")
    a(f"s_cmp_lg_u32 s{S_R}, 0")
    a("s_cbranch_scc1 L_rdy_done")
    a(f"s_lshl_b32 s{S_T0}, s{S_X}, 9")
    a(f"s_add_u32 s{S_T0}, s{S_T0}, {W_RDY}")
    a(f"v_and_b32 v10, 31, v{V_LANE}")
    a(f"v_lshlrev_b32 v10, 4, v10")
    a(f"v_add_u32 v10, s{S_T0}, v10")
    lp=a.label("rdy"); dn=a.label("rdyok")
    a(f"s_mov_b32 s{S_SPIN}, {cfg.SPIN}")
    a(f"{lp}:")
    a(f"global_load_dwordx4 {vr(V_RDY,4)}, v10, {sr(P_WS,2)} sc1")
    a("s_waitcnt vmcnt(0)")
    a(f"v_xor_b32 v11, s{S_TAG}, v{V_RDY+2}")
    a(f"v_xor_b32 v15, s{S_TAG+1}, v{V_RDY+3}")
    a(f"v_or_b32 v11, v11, v15")
    a(f"v_cmp_ne_u32 vcc, 0, v11")
    a(f"s_cbranch_vccz {dn}")
    a("s_sleep 16")
    a(f"s_sub_u32 s{S_SPIN}, s{S_SPIN}, 1")
    a(f"s_cmp_lg_u32 s{S_SPIN}, 0")
    a(f"s_cbranch_scc1 {lp}")
    a(f"{dn}:")
    a(f"v_readfirstlane_b32 s{S_T0}, v{V_RDY}")
    a("s_nop 1")
    a(f"v_cmp_ne_u32 vcc, s{S_T0}, v{V_RDY}")
    a(f"s_mov_b32 s{S_T2}, {f}")
    a("s_nop 1")
    a(f"s_cmp_eq_u64 vcc, 0")
    a(f"s_cselect_b32 s{S_T2}, s{S_T2}, 0")
    a(f"s_lshl_b32 s{S_T0}, s{S_X}, 4")
    a(f"s_add_u32 s{S_T0}, s{S_T0}, {W_GRDY}")
    a(f"v_mov_b32 v10, s{S_T0}")
    a(f"v_mov_b32 v12, s{S_T2}")
    a(f"v_mov_b32 v13, 0")
    a(f"v_mov_b32 v14, s{S_TAG}")
    a(f"v_mov_b32 v15, s{S_TAG+1}")
    set_exec(a,1,0)
    a(f"global_store_dwordx4 v10, v[12:15], {sr(P_WS,2)} sc1")
    full_exec(a)
    a("s_branch L_rdy_done")
    a("L_rdy_b:")
    a(f"s_cmp_lg_u32 s{S_W}, 5")
    a("s_cbranch_scc1 L_rdy_done")
    a(f"v_and_b32 v10, 7, v{V_LANE}")
    a(f"v_lshlrev_b32 v10, 4, v10")
    a(f"v_add_u32 v10, {W_GRDY}, v10")
    lp=a.label("grdy"); dn=a.label("grdyok")
    a(f"s_mov_b32 s{S_SPIN}, {cfg.SPIN}")
    a(f"{lp}:")
    set_exec(a,"0xff",0)
    a(f"global_load_dwordx4 {vr(V_RDY,4)}, v10, {sr(P_WS,2)} sc1")
    a("s_waitcnt vmcnt(0)")
    a(f"v_xor_b32 v11, s{S_TAG}, v{V_RDY+2}")
    a(f"v_xor_b32 v15, s{S_TAG+1}, v{V_RDY+3}")
    a(f"v_or_b32 v11, v11, v15")
    a(f"v_cmp_ne_u32 vcc, 0, v11")
    full_exec(a)
    a(f"s_cbranch_vccz {dn}")
    a("s_sleep 64")
    a(f"s_sub_u32 s{S_SPIN}, s{S_SPIN}, 1")
    a(f"s_cmp_lg_u32 s{S_SPIN}, 0")
    a(f"s_cbranch_scc1 {lp}")
    a(f"{dn}:")
    a(f"v_readlane_b32 s{S_T2}, v{V_RDY}, s{S_X}")
    a(f"v_mov_b32 v10, {L_MODE}")
    a("s_nop 1")
    a(f"v_mov_b32 v12, s{S_T2}")
    a(f"ds_write_b32 v10, v12")
    a("L_rdy_done:")

def poll_masked(a, name, loads, regs, cfg, tmp, nloads=1, stagger=0):
    lp=a.label(name+"_poll"); dn=a.label(name+"_ok")
    a(f"s_mov_b64 {sr(S_EX,2)}, exec")
    a(f"s_mov_b32 s{S_SPIN}, {cfg.SPIN}")
    if stagger:
        loads()
        a(f"s_sleep {stagger}")
    a(f"{lp}:")
    loads()
    a(f"s_waitcnt vmcnt({nloads if stagger else 0})")
    rs=list(regs)
    if len(rs)>=3:
        a(f"v_max3_u32 v{tmp}, v{rs[0]}, v{rs[1]}, v{rs[2]}"); i=3
    else:
        a(f"v_max_u32 v{tmp}, v{rs[0]}, v{rs[1]}"); i=2
    while i<len(rs):
        if i+1<len(rs):
            a(f"v_max3_u32 v{tmp}, v{tmp}, v{rs[i]}, v{rs[i+1]}"); i+=2
        else:
            a(f"v_max_u32 v{tmp}, v{tmp}, v{rs[i]}"); i+=1
    a(f"v_cmp_eq_u32 vcc, -1, v{tmp}")
    a(f"s_mov_b64 exec, vcc")
    a(f"s_cbranch_execz {dn}")
    if cfg.PSLEEP: a(f"s_sleep {cfg.PSLEEP}")
    a(f"s_sub_u32 s{S_SPIN}, s{S_SPIN}, 1")
    a(f"s_cmp_lg_u32 s{S_SPIN}, 0")
    a(f"s_cbranch_scc1 {lp}")
    a(f"{dn}:")
    a(f"s_mov_b64 exec, {sr(S_EX,2)}")

def frag_reads(a, which):
    WB=V_RING; WO_F=WB; GU_F=WB+16; WD_F=WB+48
    if "o" in which:
        a(f"s_lshl_b32 s{S_T0}, s{S_W}, 12")
        a(f"s_add_u32 s{S_T1}, s{S_T0}, {L_WO}")
        a(f"v_add_u32 v13, s{S_T1}, v{PA_TR}")
        for t in range(4):
            for hf in range(2):
                a(f"ds_read_b64_tr_b16 {vr(WO_F+4*t+2*hf,2)}, v13 offset:{hf*4*128+32*t}")
    if "g" in which:
        a(f"s_lshr_b32 s{S_T0}, s{S_W}, 2")
        a(f"s_lshl_b32 s{S_T0}, s{S_T0}, 15")
        a(f"s_and_b32 s{S_T1}, s{S_W}, 3")
        a(f"s_lshl_b32 s{S_T1}, s{S_T1}, 5")
        a(f"s_add_u32 s{S_T0}, s{S_T0}, s{S_T1}")
        a(f"s_add_u32 s{S_T0}, s{S_T0}, {L_WG}")
        a(f"v_add_u32 v15, s{S_T0}, v{PA_TR}")
        for s in range(8):
            for hf in range(2):
                a(f"ds_read_b64_tr_b16 {vr(GU_F+4*s+2*hf,2)}, v15 offset:{(32*s+4*hf)*128}")
    if "d" in which:
        a(f"s_lshl_b32 s{S_T0}, s{S_W}, 12")
        a(f"s_add_u32 s{S_T1}, s{S_T0}, {L_WD}")
        a(f"v_add_u32 v11, s{S_T1}, v{PA_TR}")
        for t in range(4):
            for hf in range(2):
                a(f"ds_read_b64_tr_b16 {vr(WD_F+4*t+2*hf,2)}, v11 offset:{hf*4*128+32*t}")

def layernorm2(a, vin, vf, vout, t):
    for i in range(8):
        a(f"v_lshlrev_b32 v{vf+2*i}, 16, v{vin+i}")
        a(f"v_and_b32 v{vf+2*i+1}, 0xffff0000, v{vin+i}")
    a(f"v_readfirstlane_b32 s{S_T4}, v{vf}")
    a("s_nop 1")
    a(f"v_mov_b32 v{t+6}, s{S_T4}")
    a(f"v_mov_b32 v{t+7}, s{S_T4}")
    for i in range(8):
        a(f"v_pk_add_f32 {vr(vf+2*i,2)}, {vr(vf+2*i,2)}, {vr(t+6,2)} neg_lo:[0,1] neg_hi:[0,1]")
    a(f"v_pk_add_f32 {vr(t,2)}, {vr(vf,2)}, {vr(vf+2,2)}")
    a(f"v_pk_mul_f32 {vr(t+2,2)}, {vr(vf,2)}, {vr(vf,2)}")
    a(f"v_pk_fma_f32 {vr(t+2,2)}, {vr(vf+2,2)}, {vr(vf+2,2)}, {vr(t+2,2)}")
    for i in range(2,8):
        a(f"v_pk_add_f32 {vr(t,2)}, {vr(t,2)}, {vr(vf+2*i,2)}")
        a(f"v_pk_fma_f32 {vr(t+2,2)}, {vr(vf+2*i,2)}, {vr(vf+2*i,2)}, {vr(t+2,2)}")
    a(f"v_add_f32 v{t}, v{t}, v{t+1}")
    a(f"v_add_f32 v{t+2}, v{t+2}, v{t+3}")
    for k in (8,4,2,1):
        a("s_nop 0")
        a(f"v_add_f32_dpp v{t}, v{t}, v{t} row_ror:{k} row_mask:0xf bank_mask:0xf")
        a("s_nop 0") if False else None
        a(f"v_add_f32_dpp v{t+2}, v{t+2}, v{t+2} row_ror:{k} row_mask:0xf bank_mask:0xf")
    a(f"v_mov_b32 v{t+1}, v{t}")
    a(f"v_mov_b32 v{t+3}, v{t+2}")
    a("s_nop 1")
    a(f"v_permlane16_swap_b32 v{t}, v{t+1}")
    a(f"v_permlane16_swap_b32 v{t+2}, v{t+3}")
    a("s_nop 1")
    a(f"v_add_f32 v{t}, v{t}, v{t+1}")
    a(f"v_add_f32 v{t+2}, v{t+2}, v{t+3}")
    a(f"v_mov_b32 v{t+1}, v{t}")
    a(f"v_mov_b32 v{t+3}, v{t+2}")
    a("s_nop 1")
    a(f"v_permlane32_swap_b32 v{t}, v{t+1}")
    a(f"v_permlane32_swap_b32 v{t+2}, v{t+3}")
    a("s_nop 1")
    a(f"v_add_f32 v{t}, v{t}, v{t+1}")
    a(f"v_add_f32 v{t+2}, v{t+2}, v{t+3}")
    a(f"v_mul_f32 v{t}, 0x3a800000, v{t}")
    a(f"v_mul_f32 v{t+2}, 0x3a800000, v{t+2}")
    a(f"v_fma_f32 v{t+2}, -v{t}, v{t}, v{t+2}")
    a(f"v_add_f32 v{t}, v{t}, v{t+6}")
    a(f"v_max_f32 v{t+2}, 0, v{t+2}")
    a(f"v_cvt_pk_bf16_f32 v{t}, v{t}, v{t+2}")
    a(f"v_and_b32 v{t+2}, 0xffff0000, v{t}")
    a(f"v_lshlrev_b32 v{t}, 16, v{t}")
    a(f"v_add_f32 v{t+2}, 0x3727c5ac, v{t+2}")
    round_bf16(a, t+2, t+2)
    a(f"v_sqrt_f32 v{t+2}, v{t+2}")
    a(f"v_mov_b32 v{t+1}, v{t}")
    round_bf16(a, t+2, t+2)
    a(f"v_rcp_f32 v{t+2}, v{t+2}")
    a("s_nop 0")
    a(f"v_mov_b32 v{t+3}, v{t+2}")
    for i in range(8):
        a(f"v_lshlrev_b32 v{vf+2*i}, 16, v{vin+i}")
        a(f"v_and_b32 v{vf+2*i+1}, 0xffff0000, v{vin+i}")
        a(f"v_pk_add_f32 {vr(vf+2*i,2)}, {vr(vf+2*i,2)}, {vr(t,2)} neg_lo:[0,1] neg_hi:[0,1]")
        a(f"v_cvt_pk_bf16_f32 v{t+4}, v{vf+2*i}, v{vf+2*i+1}")
        a(f"v_lshlrev_b32 v{vf+2*i}, 16, v{t+4}")
        a(f"v_and_b32 v{vf+2*i+1}, 0xffff0000, v{t+4}")
        a(f"v_pk_mul_f32 {vr(vf+2*i,2)}, {vr(vf+2*i,2)}, {vr(t+2,2)}")
        a(f"v_cvt_pk_bf16_f32 v{vout+i}, v{vf+2*i}, v{vf+2*i+1}")

def gen_tail(a, cfg):
    WB=V_RING; WO_F=WB; GU_F=WB+16; WD_F=WB+48
    TT=V_RING+64
    TMP=V_T+23
    NSW=cfg.NSW
    a(f"s_cmp_ge_u32 s{S_W}, {NSW}")
    a("s_cbranch_scc1 L_t0_b5")
    a("s_nop 7")
    set_exec(a, -1, 0)
    a(f"ds_write_b128 v{PA_OW}, {vr(V_OACC,4)}")
    full_exec(a)
    a("s_waitcnt lgkmcnt(0)")
    a("L_t0_b5:")
    a("s_barrier")
    a(f"s_cmp_lg_u32 s{S_W}, {R_T1}")
    a("s_cbranch_scc1 L_t1_done")
    for w in range(8):
        a(f"ds_read_b64 {vr(TT+2*w,2)}, v{PA_OR} offset:{w*512}")
    a("s_waitcnt lgkmcnt(0)")
    a(f"v_pk_add_f32 {vr(TT,2)}, {vr(TT,2)}, {vr(TT+2,2)}")
    a(f"v_pk_add_f32 {vr(TT+4,2)}, {vr(TT+4,2)}, {vr(TT+6,2)}")
    a(f"v_pk_add_f32 {vr(TT+8,2)}, {vr(TT+8,2)}, {vr(TT+10,2)}")
    a(f"v_pk_add_f32 {vr(TT+12,2)}, {vr(TT+12,2)}, {vr(TT+14,2)}")
    a(f"v_pk_add_f32 {vr(TT,2)}, {vr(TT,2)}, {vr(TT+4,2)}")
    a(f"v_pk_add_f32 {vr(TT+8,2)}, {vr(TT+8,2)}, {vr(TT+12,2)}")
    a(f"v_pk_add_f32 {vr(TT,2)}, {vr(TT,2)}, {vr(TT+8,2)}")
    a(f"v_cvt_pk_bf16_f32 v{TT}, v{TT}, v{TT+1}")
    a(f"v_min_u32 v{TT}, -2, v{TT}")
    store_mode(a, f"global_store_dword v{PA_O}, v{TT}, {sr(P_WS,2)}", True)
    a("L_t1_done:")
    stamp(a,cfg,6)
    a(f"s_cmp_ge_u32 s{S_W}, {NSW}")
    a("s_cbranch_scc1 L_t2_go")
    frag_reads(a,"ogd")
    a("L_t2_go:")
    poll_masked(a,"t2", lambda: a(f"global_load_dwordx4 {vr(TT+32,4)}, v{PA_T2}, {sr(P_WS,2)} sc1"), range(TT+32,TT+36), cfg, TMP, 1, cfg.PIPE_I)
    if cfg.TAILDIAG: stamp(a,cfg,9)
    a("s_waitcnt lgkmcnt(0)")
    def gemm4_reduce_publish(F, B, dp, nw, lab):
        off=16384 if dp else 0
        for t in range(4):
            a(f"v_mfma_f32_16x16x32_bf16 {vr(TT+4*t,4)}, {vr(F+4*t,4)}, {vr(B,4)}, 0")
        if nw<8:
            a(f"s_cmp_ge_u32 s{S_W}, {nw}")
            a(f"s_cbranch_scc1 {lab}_nw")
        set_exec(a, "0x00ff00ff", "0x00ff00ff")
        a("s_nop 2")
        for t in range(4):
            a(f"ds_write_b128 v{PA_DW}, {vr(TT+4*t,4)} offset:{off+64*t}")

        full_exec(a)
        a(f"{lab}_nw:")
        a("s_waitcnt lgkmcnt(0)")
        a("s_barrier")
        a(f"s_sub_u32 s{S_T0}, s{S_W}, {R_RED0}")
        a(f"s_cmp_ge_u32 s{S_T0}, 2")
        a(f"s_cbranch_scc1 {lab}_skip")
        for w in range(nw):
            a(f"ds_read_b128 {vr(TT+4*w,4)}, v{PA_R2} offset:{off+w*2048}")
        if dp: a(f"v_add_u32 v10, {W_DP-W_AP}, v{PA_P2}")
        a("s_waitcnt lgkmcnt(0)")
        n=nw
        step=1
        idx=list(range(nw))
        while len(idx)>1:
            nxt=[]
            for i in range(0,len(idx)-1,2):
                d,s_=idx[i],idx[i+1]
                a(f"v_pk_add_f32 {vr(TT+4*d,2)}, {vr(TT+4*d,2)}, {vr(TT+4*s_,2)}")
                a(f"v_pk_add_f32 {vr(TT+4*d+2,2)}, {vr(TT+4*d+2,2)}, {vr(TT+4*s_+2,2)}")
                nxt.append(d)
            if len(idx)%2: nxt.append(idx[-1])
            idx=nxt
        for c in range(4):
            a(f"v_min_u32 v{TT+c}, -2, v{TT+c}")
        a(f"global_store_dwordx4 v{10 if dp else PA_P2}, {vr(TT,4)}, {sr(P_WS,2)} sc1")
        a(f"{lab}_skip:")
    gemm4_reduce_publish(WO_F, TT+32, False, 8, "L_t2")
    stamp(a,cfg,7)
    def ld3():
        a(f"global_load_dwordx4 {vr(TT+32,4)}, v{PA_T3A}, {sr(P_WS,2)} sc1")
        a(f"global_load_dwordx4 {vr(TT+36,4)}, v{PA_T3B}, {sr(P_WS,2)} sc1")
    poll_masked(a,"t3", ld3, range(TT+32,TT+40), cfg, TMP, 2, cfg.PIPE_X)
    if cfg.TAILDIAG: stamp(a,cfg,13)
    a(f"v_pk_add_f32 {vr(TT+40,2)}, {vr(TT+32,2)}, {vr(TT+36,2)}")
    a(f"v_pk_add_f32 {vr(TT+42,2)}, {vr(TT+34,2)}, {vr(TT+38,2)}")
    a(f"ds_write_b128 v{PA_T3W}, {vr(TT+40,4)}")
    a("s_waitcnt lgkmcnt(0)")
    a("s_barrier")
    a(f"s_cmp_lg_u32 s{S_W}, {R_W0}")
    a("s_cbranch_scc1 L_t3_skip")
    for w in range(8):
        a(f"ds_read_b128 {vr(TT+4*w,4)}, v{PA_T3R} offset:{w*1024}")
    a(f"v_lshlrev_b32 v{TT+40}, 16, v{V_XRES}")
    a(f"v_and_b32 v{TT+41}, 0xffff0000, v{V_XRES}")
    a(f"v_lshlrev_b32 v{TT+42}, 16, v{V_XRES+1}")
    a(f"v_and_b32 v{TT+43}, 0xffff0000, v{V_XRES+1}")
    a("s_waitcnt lgkmcnt(0)")
    for (d,s_) in ((0,1),(2,3),(4,5),(6,7),(0,2),(4,6),(0,4)):
        a(f"v_pk_add_f32 {vr(TT+4*d,2)}, {vr(TT+4*d,2)}, {vr(TT+4*s_,2)}")
        a(f"v_pk_add_f32 {vr(TT+4*d+2,2)}, {vr(TT+4*d+2,2)}, {vr(TT+4*s_+2,2)}")
    a(f"v_cvt_pk_bf16_f32 v{TT+4}, v{TT}, v{TT+1}")
    a(f"v_cvt_pk_bf16_f32 v{TT+5}, v{TT+2}, v{TT+3}")
    a(f"v_lshlrev_b32 v{TT+8}, 16, v{TT+4}")
    a(f"v_and_b32 v{TT+9}, 0xffff0000, v{TT+4}")
    a(f"v_lshlrev_b32 v{TT+10}, 16, v{TT+5}")
    a(f"v_and_b32 v{TT+11}, 0xffff0000, v{TT+5}")
    a(f"v_pk_add_f32 {vr(TT+8,2)}, {vr(TT+8,2)}, {vr(TT+40,2)}")
    a(f"v_pk_add_f32 {vr(TT+10,2)}, {vr(TT+10,2)}, {vr(TT+42,2)}")
    a(f"v_cvt_pk_bf16_f32 v{TT+6}, v{TT+8}, v{TT+9}")
    a(f"v_cvt_pk_bf16_f32 v{TT+7}, v{TT+10}, v{TT+11}")
    a(f"v_min_u32 v{TT+6}, -2, v{TT+6}")
    a(f"v_min_u32 v{TT+7}, -2, v{TT+7}")
    store_mode(a, f"global_store_dwordx2 v{PA_H}, {vr(TT+6,2)}, {sr(P_WS,2)}", True)
    a("L_t3_skip:")
    stamp(a,cfg,8)
    def ld4():
        a(f"global_load_dwordx4 {vr(TT,4)}, v{PA_T4}, {sr(P_WS,2)} sc1")
        a(f"global_load_dwordx4 {vr(TT+4,4)}, v{PA_T4}, {sr(P_WS,2)} offset:16 sc1")
    poll_masked(a,"t4", ld4, range(TT,TT+8), cfg, TMP, 2, cfg.PIPE_I)
    if cfg.TAILDIAG: stamp(a,cfg,14)
    a(f"s_cmp_lg_u32 s{S_W}, s{S_X}")
    a("s_cbranch_scc1 L_t4_nohs")
    a(f"s_mov_b64 exec, {sr(SM_HS,2)}")
    a(f"ds_write_b128 v{PA_HSW}, {vr(TT,4)}")
    a(f"ds_write_b128 v{PA_HSW}, {vr(TT+4,4)} offset:16")
    full_exec(a)
    a("L_t4_nohs:")
    a(f"s_cmp_ge_u32 s{S_R}, 28")
    a("s_cbranch_scc1 L_t5_skip_all")
    layernorm2(a, TT, TT+8, TT+24, V_T)
    a(f"s_mov_b64 exec, {sr(SM_LNB,2)}")
    a(f"ds_write_b128 v{PA_LNBW}, {vr(TT+24,4)}")
    a(f"ds_write_b128 v{PA_LNBW}, {vr(TT+28,4)} offset:16")
    full_exec(a)
    a("s_waitcnt lgkmcnt(0)")
    a("s_barrier")
    if not cfg.TAILDIAG: stamp(a,cfg,9)
    if cfg.TAILDIAG: stamp(a,cfg,1)
    a("s_waitcnt vmcnt(0)")
    for s in range(8):
        a(f"ds_read_b128 {vr(TT+4*s,4)}, v{PA_LNBR} offset:{64*s}")
    for s in range(8):
        c="0" if s<2 else vr(V_T+4*(s%2),4)
        a(f"s_waitcnt lgkmcnt({7-s})")
        a(f"v_mfma_f32_16x16x32_bf16 {vr(V_T+4*(s%2),4)}, {vr(GU_F+4*s,4)}, {vr(TT+4*s,4)}, {c}")
    a("s_nop 7")
    a(f"v_pk_add_f32 {vr(V_T,2)}, {vr(V_T,2)}, {vr(V_T+4,2)}")
    a(f"v_pk_add_f32 {vr(V_T+2,2)}, {vr(V_T+2,2)}, {vr(V_T+6,2)}")
    for c in range(4):
        a(f"v_min_u32 v{V_T+c}, -2, v{V_T+c}")
    set_exec(a, "0x00ff00ff", "0x00ff00ff")
    store_mode(a, f"global_store_dwordx4 v{PA_GP}, {vr(V_T,4)}, {sr(P_WS,2)}", True)
    full_exec(a)
    a(f"s_cmp_lg_u32 s{S_W}, {R_W0}")
    a("s_cbranch_scc1 L_t5_skip_all")
    a(f"s_mov_b32 s{S_T0}, 0x3d372713")
    a(f"s_mov_b32 s{S_T1}, 0xc0135761")
    def ld5():
        for k in range(4):
            for m in range(2):
                a(f"global_load_dwordx2 {vr(TT+(k*2+m)*2,2)}, v{PA_T5B+k}, {sr(P_WS,2)} offset:{m*2048} sc1")
    poll_masked(a,"t5", ld5, range(TT,TT+16), cfg, TMP, 8, cfg.PIPE_I)
    if cfg.TAILDIAG: stamp(a,cfg,2)
    for h_ in range(2):
        a(f"v_pk_add_f32 {vr(TT+16+2*h_,2)}, {vr(TT+2*h_,2)}, {vr(TT+4+2*h_,2)}")
        a(f"v_pk_add_f32 {vr(TT+20+2*h_,2)}, {vr(TT+8+2*h_,2)}, {vr(TT+12+2*h_,2)}")
        a(f"v_pk_add_f32 {vr(TT+16+2*h_,2)}, {vr(TT+16+2*h_,2)}, {vr(TT+20+2*h_,2)}")
    G=TT+16; U=TT+18; X=TT+20
    TT_=TT; TT=TT+16
    a(f"v_cvt_pk_bf16_f32 v{TT+8}, v{G}, v{G+1}")
    a(f"v_cvt_pk_bf16_f32 v{TT+9}, v{U}, v{U+1}")
    a(f"v_lshlrev_b32 v{G}, 16, v{TT+8}")
    a(f"v_and_b32 v{G+1}, 0xffff0000, v{TT+8}")
    a(f"v_lshlrev_b32 v{U}, 16, v{TT+9}")
    a(f"v_and_b32 v{U+1}, 0xffff0000, v{TT+9}")
    a(f"v_pk_mul_f32 {vr(X,2)}, {vr(G,2)}, {vr(G,2)}")
    a(f"v_pk_mul_f32 {vr(X,2)}, {vr(X,2)}, {vr(G,2)}")
    for c in range(2):
        a(f"v_fma_f32 v{X+c}, v{X+c}, s{S_T0}, v{G+c}")
    for c in range(2):
        a(f"v_mul_f32 v{X+c}, s{S_T1}, v{X+c}")
    for c in range(2):
        a(f"v_exp_f32 v{X+c}, v{X+c}")
    a("s_nop 0")
    for c in range(2):
        a(f"v_add_f32 v{X+c}, 1.0, v{X+c}")
    for c in range(2):
        a(f"v_rcp_f32 v{X+c}, v{X+c}")
    a("s_nop 0")
    a(f"v_pk_mul_f32 {vr(X,2)}, {vr(X,2)}, {vr(G,2)}")
    a(f"v_cvt_pk_bf16_f32 v{TT+8}, v{X}, v{X+1}")
    a(f"v_lshlrev_b32 v{X}, 16, v{TT+8}")
    a(f"v_and_b32 v{X+1}, 0xffff0000, v{TT+8}")
    a(f"v_pk_mul_f32 {vr(X,2)}, {vr(X,2)}, {vr(U,2)}")
    a(f"v_cvt_pk_bf16_f32 v{X}, v{X}, v{X+1}")
    a(f"v_min_u32 v{X}, -2, v{X}")
    store_mode(a, f"global_store_dword v{PA_ACT}, v{X}, {sr(P_WS,2)}", True)
    TT=TT_
    a("L_t5_skip_all:")
    stamp(a,cfg,10)
    a(f"s_cmp_ge_u32 s{S_W}, 7")
    a("s_cbranch_scc1 L_t6_nopoll")
    poll_masked(a,"t6", lambda: a(f"global_load_dwordx4 {vr(TT+32,4)}, v{PA_T6}, {sr(P_WS,2)} sc1"), range(TT+32,TT+36), cfg, TMP, 1, cfg.PIPE_I)
    if cfg.TAILDIAG: stamp(a,cfg,3)
    a("L_t6_nopoll:")
    gemm4_reduce_publish(WD_F, TT+32, True, 7, "L_t6")
    stamp(a,cfg,11)
    a(f"s_cmp_lg_u32 s{S_W}, {R_W0}")
    a("s_cbranch_scc1 L_fin")
    a(f"ds_read_u16 v{TT+10}, v{PA_HSR}")
    def ld7():
        for k in range(8):
            a(f"global_load_dword v{TT+k}, v{PA_T7+k}, {sr(P_WS,2)} sc1")
    poll_masked(a,"t7", ld7, range(TT,TT+8), cfg, TMP, 8, cfg.PIPE_X)
    if cfg.TAILDIAG: stamp(a,cfg,4)
    Z=TT+16
    a(f"v_pk_add_f32 {vr(Z,2)}, {vr(TT,2)}, {vr(TT+2,2)}")
    a(f"v_pk_add_f32 {vr(Z+2,2)}, {vr(TT+4,2)}, {vr(TT+6,2)}")
    a(f"v_pk_add_f32 {vr(Z,2)}, {vr(Z,2)}, {vr(Z+2,2)}")
    a(f"v_add_f32 v{Z}, v{Z}, v{Z+1}")
    a(f"v_mov_b32 v{Z+1}, v{Z}")
    a("s_waitcnt lgkmcnt(0)")
    a("s_nop 0")
    a(f"v_permlane32_swap_b32 v{Z}, v{Z+1}")
    a(f"v_lshlrev_b32 v{TT+10}, 16, v{TT+10}")
    a(f"v_add_f32 v{Z}, v{Z}, v{Z+1}")
    round_bf16(a,Z,Z)
    a(f"v_add_f32 v{Z}, v{Z}, v{TT+10}")
    a(f"v_cvt_pk_bf16_f32 v{Z}, v{Z}, v{Z}")
    set_exec(a, -1, 0)
    a(f"global_store_short v{PA_OUT}, v{Z}, {sr(P_OUT,2)}")
    full_exec(a)
    a(f"s_cmp_lg_u32 s{S_ID}, 0")
    a("s_cbranch_scc1 L_fin")
    a(f"v_mov_b32 v10, {W_EPOCH}")
    a(f"v_mov_b32 v12, s{S_TAG}")
    a(f"v_mov_b32 v13, s{S_TAG+1}")
    set_exec(a, 1, 0)
    a(f"global_store_dwordx2 v10, v[12:13], {sr(P_WS,2)} sc1")
    full_exec(a)
    a("L_fin:")
    TTX=160
    if cfg.STAMPS and cfg.DBGSTAMP:
        stamp(a,cfg,12)
        a("s_waitcnt lgkmcnt(0)")
        a(f"s_cmp_lg_u32 s{S_W}, 0")
        a("s_cbranch_scc1 L_exit")
        lst=[0,1,2,4,6,7,8,10,11,12]
        for i,k in enumerate(lst):
            if k==0:
                a(f"s_not_b32 s{S_T0}, s72")
                a(f"v_mov_b32 v{TTX}, s{S_T0}")
            else:
                a(f"v_mov_b32 v{TTX}, s{72+2*k}")
            a(f"v_mov_b32 v10, {4*i}")
            set_exec(a,1,0)
            a(f"global_atomic_umax v10, v{TTX}, {sr(P_DBG,2)} sc1")
            full_exec(a)
        a(f"v_mov_b32 v{TTX}, s72")
        a(f"v_mov_b32 v10, 40")
        set_exec(a,1,0)
        a(f"global_atomic_umax v10, v{TTX}, {sr(P_DBG,2)} sc1")
        full_exec(a)
        a(f"s_not_b32 s{S_T0}, s{72+12}")
        a(f"v_mov_b32 v{TTX}, s{S_T0}")
        a(f"v_mov_b32 v10, 44")
        set_exec(a,1,0)
        a(f"global_atomic_umax v10, v{TTX}, {sr(P_DBG,2)} sc1")
        full_exec(a)
    elif cfg.STAMPS:
        stamp(a,cfg,12)
        a("s_waitcnt lgkmcnt(0)")
        for k in range(15):
            a(f"v_mov_b32 v{TTX}, s{72+2*k}")
            a(f"v_mov_b32 v{TTX+1}, s{73+2*k}")
            a(f"s_lshl_b32 s{S_T0}, s{S_ID}, 3")
            a(f"s_add_u32 s{S_T0}, s{S_T0}, s{S_W}")
            a(f"s_lshl_b32 s{S_T0}, s{S_T0}, 7")
            a(f"s_add_u32 s{S_T0}, s{S_T0}, {W_STAMP+8*k}")
            a(f"v_mov_b32 v10, s{S_T0}")
            set_exec(a,1,0)
            a(f"global_store_dwordx2 v10, {vr(TTX,2)}, {sr(P_WS,2)}")
            full_exec(a)
    a("L_exit:")
    a("s_endpgm")

HEADER = open("sequential_preLN__mha_block_cached__geglu_ffn__decode.s.ref").read().split("; Override launch geometry")[0]

def build(cfg, path):
    a,_=gen(cfg)
    gen_tail(a,cfg)
    txt = HEADER
    txt += "; Override launch geometry by editing the next line (default: block=256,\n"
    txt += f"; @launch grid=(256,1,1) block=(512,1,1) lds={LDS_BYTES}\n"
    txt += f""".amdgcn_target "amdgcn-amd-amdhsa--gfx950"
.text
.globl {KNAME}
.p2align 8
.type {KNAME},@function
"""
    txt += a.text()
    txt += f""".section .rodata,"a"
.p2align 6
.amdhsa_kernel {KNAME}
  .amdhsa_next_free_vgpr 256
  .amdhsa_next_free_sgpr 102
  .amdhsa_accum_offset 256
  .amdhsa_group_segment_fixed_size 0
  .amdhsa_kernarg_size 96
  .amdhsa_user_sgpr_count 2
  .amdhsa_user_sgpr_kernarg_segment_ptr 1
  .amdhsa_system_sgpr_workgroup_id_x 1
  .amdhsa_float_denorm_mode_32 3
.end_amdhsa_kernel
"""
    open(path,"w").write(txt)

if __name__=="__main__":
    cfg=Cfg()
    out=sys.argv[1]
    for kv in sys.argv[2:]:
        k,v=kv.split("=")
        setattr(cfg,k,eval(v))
    build(cfg,out)
```

```python
import sys

KNAME = "sequential_preLN__mha_block_cached__geglu_ffn__decode_kernel"

class Cfg:
    NSW = 2
    L = 10
    HV = 1
    QFAST = True
    KFLAGS = "nt"
    VFLAGS = "nt"
    WFLAGS = "nt"
    FASTMODE = True
    SPIN = 1 << 20
    STAMPS = False
    P0 = 4
    P = 4
    P1 = 8
    DMAPAUSE = False
    RING_EARLY = True
    RAMP = 0
    CODEPF = True
    LATE_L = 12
    LATE_X = 6
    SEG0 = 40
    LATE_THR = 26
    LK = 0
    NODMA2 = False
    KNOP = 7
    KEXP = 0
    PIPE_I = 0
    PIPE_X = 0
    HIGH_INLINE = True
    LNDRY = False
    CLR7 = True
    CONDCOPY = True
    NOCLR = False
    NOCOPY = False
    ALTMAP = False
    TAILDIAG = False
    PSLEEP = 0
    QSLEEP = 0
    QWAIT = 64
    DBGSTAMP = False

L_WO   = 0
L_WG   = 32768
L_WU   = 65536
L_WD   = 98304
L_WQ   = 126976
L_SC   = 126976
L_RED  = 143360
L_LNA  = 159744
L_QS   = 161920
L_ML   = 162176
L_HS   = 162208
L_QF   = 162272
L_LS   = 162288
L_MODE = 162320
L_SEL  = 162352
L_END  = 162368
LNA_P  = 272
LNB_P  = 528
L_LNB  = L_SC
LDS_BYTES = 163840

W_QP  = 0x500000
W_RDY = 0x000000
W_EPOCH = 0x010000
W_KX = 0x018000
W_KD = 0x014000
W_GRDY = 0x012000
W_OB  = 0x100000
W_AP  = 0x120000
W_HB  = 0x1A0000
W_GP  = 0x1C0000
W_ACT = 0x2A0000
W_DP  = 0x2B0000
W_STAMP = 0x400000

D_CLR = 32*4
D_XCC = 40*4

S_ID=2; S_W=3; S_X=4; S_R=5; S_H=6; S_B=7
P_X=16; P_K=18; P_V=20; P_WQ=22; P_WO=24; P_WG=28; P_WU=30; P_WD=32; P_OUT=34; P_DBG=36; P_WS=38
SRD_K=40; SRD_V=44
S_KOFF=48
S_FAST=49
S_SPIN=50
S_T0=52; S_T1=53; S_T2=54; S_T3=55; S_T4=56; S_T5=57
S_B0=58
S_B1=60
S_EX=62
S_M=64
S_M2=66
S_SCALE=68; S_LOG2E=69
S_DN=12; S_DS=13; S_DM=14; S_LOOP=15; S_LNW=27
S_TAG=98
S_TAG=66
S_ST=70

V_TID=0; V_LANE=1
V_MASK=16
V_KOFF=20; V_VOFF=21; V_SCW=22; V_PPR=23; V_MAX=24
V_DMA=25
V_QADDR=26
V_QA=32
V_SACC=48
V_SACC2=140
V_OACC=52
V_A0=56; V_A1=60
V_PP0=64; V_PP1=68
V_T=72
V_RING=96
V_X=160

class Asm:
    def __init__(self):
        self.L=[]; self.n=0; self.main=self.L; self.O=[]
    def ool(self, on):
        self.L = self.O if on else self.main
    def __call__(self, s):
        for line in s.split("\n"):
            line=line.strip()
            if line: self.L.append(("" if line.endswith(":") else "  ")+line)
    def label(self, base):
        self.n+=1
        return f"L_{base}_{self.n}"
    def text(self): return "\n".join(self.main+self.O+["L_codeend:"])+"\n"

def vr(b,n): return f"v[{b}:{b+n-1}]"
def sr(b,n): return f"s[{b}:{b+n-1}]"

def wave_sum(a, v, tmp, op="add"):
    ins = "v_add_f32" if op=="add" else "v_max_f32"
    for k in (8,4,2,1):
        a(f"s_nop 1")
        a(f"{ins}_dpp {'v%d'%v}, v{v}, v{v} row_ror:{k} row_mask:0xf bank_mask:0xf")
    a("s_nop 1")
    a(f"v_readlane_b32 s{S_T0}, v{v}, 0")
    a(f"v_readlane_b32 s{S_T1}, v{v}, 16")
    a(f"v_readlane_b32 s{S_T2}, v{v}, 32")
    a(f"v_readlane_b32 s{S_T3}, v{v}, 48")
    a("s_nop 1")
    a(f"v_mov_b32 v{v}, s{S_T0}")
    a(f"{ins} v{v}, s{S_T1}, v{v}")
    a(f"{ins} v{v}, s{S_T2}, v{v}")
    a(f"{ins} v{v}, s{S_T3}, v{v}")

def round_bf16(a, dst, src):
    a(f"v_cvt_pk_bf16_f32 v{dst}, v{src}, v{src}")
    a(f"v_and_b32 v{dst}, 0xffff0000, v{dst}")

def layernorm(a, vin, vf, vout, t):
    for i in range(8):
        a(f"v_lshlrev_b32 v{vf+2*i}, 16, v{vin+i}")
        a(f"v_and_b32 v{vf+2*i+1}, 0xffff0000, v{vin+i}")
    a(f"v_add_f32 v{t}, v{vf}, v{vf+1}")
    for i in range(2,16):
        a(f"v_add_f32 v{t}, v{t}, v{vf+i}")
    wave_sum(a, t, t+1)
    a(f"v_mul_f32 v{t}, 0x3a800000, v{t}")
    a(f"v_sub_f32 v{t+1}, v{vf}, v{t}")
    a(f"v_mul_f32 v{t+2}, v{t+1}, v{t+1}")
    for i in range(1,16):
        a(f"v_sub_f32 v{t+1}, v{vf+i}, v{t}")
        a(f"v_fmac_f32 v{t+2}, v{t+1}, v{t+1}")
    wave_sum(a, t+2, t+1)
    a(f"v_mul_f32 v{t+2}, 0x3a800000, v{t+2}")
    round_bf16(a, t, t)
    round_bf16(a, t+2, t+2)
    a(f"v_add_f32 v{t+2}, 0x3727c5ac, v{t+2}")
    round_bf16(a, t+2, t+2)
    a(f"v_sqrt_f32 v{t+2}, v{t+2}")
    a("s_nop 0")
    round_bf16(a, t+2, t+2)
    a(f"v_rcp_f32 v{t+2}, v{t+2}")
    a("s_nop 0")
    for i in range(8):
        a(f"v_sub_f32 v{vf+2*i}, v{vf+2*i}, v{t}")
        a(f"v_sub_f32 v{vf+2*i+1}, v{vf+2*i+1}, v{t}")
        a(f"v_cvt_pk_bf16_f32 v{t+1}, v{vf+2*i}, v{vf+2*i+1}")
        a(f"v_lshlrev_b32 v{vf+2*i}, 16, v{t+1}")
        a(f"v_and_b32 v{vf+2*i+1}, 0xffff0000, v{t+1}")
        a(f"v_mul_f32 v{vf+2*i}, v{vf+2*i}, v{t+2}")
        a(f"v_mul_f32 v{vf+2*i+1}, v{vf+2*i+1}, v{t+2}")
        a(f"v_cvt_pk_bf16_f32 v{vout+i}, v{vf+2*i}, v{vf+2*i+1}")

def set_exec(a, lo, hi):
    a(f"s_mov_b32 exec_lo, {lo}")
    a(f"s_mov_b32 exec_hi, {hi}")
def full_exec(a):
    a("s_mov_b64 exec, -1")

def poll_loop(a, name, loads, regs, cfg):
    lp=a.label(name+"_poll"); dn=a.label(name+"_ok")
    a(f"s_mov_b32 s{S_SPIN}, {cfg.SPIN}")
    a(f"{lp}:")
    loads()
    a("s_waitcnt vmcnt(0)")
    t=V_T+23
    rs=list(regs)
    a(f"v_max_u32 v{t}, v{rs[0]}, v{rs[1] if len(rs)>1 else rs[0]}")
    i=2
    while i<len(rs):
        if i+1<len(rs):
            a(f"v_max3_u32 v{t}, v{t}, v{rs[i]}, v{rs[i+1]}"); i+=2
        else:
            a(f"v_max_u32 v{t}, v{t}, v{rs[i]}"); i+=1
    a(f"v_cmp_eq_u32 vcc, -1, v{t}")
    a(f"s_cbranch_vccz {dn}")
    a(f"s_sub_u32 s{S_SPIN}, s{S_SPIN}, 1")
    a(f"s_cmp_lg_u32 s{S_SPIN}, 0")
    a(f"s_cbranch_scc1 {lp}")
    a(f"{dn}:")

def store_mode(a, instr, intra):
    if not intra:
        a(instr+" sc1"); return
    l1=a.label("st_slow"); l2=a.label("st_done")
    a(f"s_cmp_eq_u32 s{S_FAST}, 0")
    a(f"s_cbranch_scc1 {l1}")
    a(instr)
    a(f"s_branch {l2}")
    a(f"{l1}:")
    a(instr+" sc1")
    a(f"{l2}:")

def stamp(a, cfg, idx):
    if not cfg.STAMPS: return
    a(f"s_memrealtime s[{72+2*idx}:{73+2*idx}]")


def emit_clears(a, sfx=''):
    a(f"v_mov_b32 v12, -1\nv_mov_b32 v13, -1\nv_mov_b32 v14, -1\nv_mov_b32 v15, -1")
    a(f"s_lshr_b32 s{S_T4}, s{S_R}, 4")
    a(f"s_and_b32 s{S_T5}, s{S_R}, 15")
    a(f"s_lshl_b32 s{S_T1}, s{S_X}, 1")
    a(f"s_add_u32 s{S_T1}, s{S_T1}, s{S_T4}")
    a(f"s_lshl_b32 s{S_T0}, s{S_T1}, 15")
    a(f"s_lshl_b32 s{S_T1}, s{S_T5}, 8")
    a(f"s_add_u32 s{S_T0}, s{S_T0}, s{S_T1}")
    a(f"v_lshlrev_b32 v10, 12, v3")
    a(f"v_lshlrev_b32 v11, 4, v2")
    a(f"v_add3_u32 v10, v10, v11, s{S_T0}")
    for base in (W_AP, W_DP):
        a(f"v_add_u32 v11, {base}, v10")
        a(f"global_store_dwordx4 v11, v[12:15], {sr(P_WS,2)} sc1")
        a(f"v_add_u32 v11, {base+4*4096}, v10")
        a(f"global_store_dwordx4 v11, v[12:15], {sr(P_WS,2)} sc1")
    a(f"s_lshl_b32 s{S_T0}, s{S_H}, 3")
    a(f"s_add_u32 s{S_T0}, s{S_T0}, s{S_B}")
    a(f"s_lshl_b32 s{S_T0}, s{S_T0}, 8")
    a(f"s_add_u32 s{S_T0}, s{S_T0}, {W_OB}")
    a(f"v_add_u32 v10, s{S_T0}, v{V_VOFF}")
    set_exec(a, "0xffff", 0)
    a(f"global_store_dwordx4 v10, v[12:15], {sr(P_WS,2)} sc1")
    full_exec(a)
    a(f"s_lshr_b32 s{S_T0}, s{S_R}, 2")
    a(f"s_lshl_b32 s{S_T1}, s{S_X}, 3")
    a(f"s_add_u32 s{S_T0}, s{S_T0}, s{S_T1}")
    a(f"s_lshl_b32 s{S_T0}, s{S_T0}, 11")
    a(f"s_and_b32 s{S_T1}, s{S_R}, 3")
    a(f"s_lshl_b32 s{S_T1}, s{S_T1}, 9")
    a(f"s_add_u32 s{S_T0}, s{S_T0}, s{S_T1}")
    a(f"s_add_u32 s{S_T0}, s{S_T0}, {W_HB}")
    a(f"v_add_u32 v10, s{S_T0}, v{V_VOFF}")
    set_exec(a, -1, 0)
    a(f"global_store_dwordx4 v10, v[12:15], {sr(P_WS,2)} sc1")
    full_exec(a)
    a(f"s_cmp_ge_u32 s{S_R}, 28")
    a(f"s_cbranch_scc1 L_clr_done{sfx}")
    a(f"s_mul_i32 s{S_T0}, s{S_X}, 28")
    a(f"s_add_u32 s{S_T0}, s{S_T0}, s{S_R}")
    a(f"s_lshl_b32 s{S_T0}, s{S_T0}, 12")
    a(f"s_add_u32 s{S_T0}, s{S_T0}, {W_GP}")
    a(f"v_add_u32 v10, s{S_T0}, v{V_VOFF}")
    for n in range(4):
        a(f"global_store_dwordx4 v10, v[12:15], {sr(P_WS,2)} offset:{n*1024} sc1")
    a(f"s_mul_i32 s{S_T0}, s{S_R}, 37")
    a(f"s_lshr_b32 s{S_T0}, s{S_T0}, 8")
    a(f"s_mul_i32 s{S_T1}, s{S_T0}, 7")
    a(f"s_sub_u32 s{S_T1}, s{S_R}, s{S_T1}")
    a(f"s_lshl_b32 s{S_T0}, s{S_T0}, 1")
    a(f"s_lshl_b32 s{S_T2}, s{S_X}, 3")
    a(f"s_add_u32 s{S_T0}, s{S_T0}, s{S_T2}")
    a(f"s_mul_i32 s{S_T0}, s{S_T0}, 896")
    a(f"s_lshl_b32 s{S_T1}, s{S_T1}, 7")
    a(f"s_add_u32 s{S_T0}, s{S_T0}, s{S_T1}")
    a(f"s_add_u32 s{S_T0}, s{S_T0}, {W_ACT}")
    a(f"v_lshrrev_b32 v10, 3, v{V_LANE}")
    a(f"v_mul_u32_u24 v10, 896, v10")
    a(f"v_and_b32 v11, 7, v{V_LANE}")
    a(f"v_lshlrev_b32 v11, 4, v11")
    a(f"v_add3_u32 v10, v10, v11, s{S_T0}")
    set_exec(a, "0xffff", 0)
    a(f"global_store_dwordx4 v10, v[12:15], {sr(P_WS,2)} sc1")
    full_exec(a)
    a(f"L_clr_done{sfx}:")


def emit_extras(a):
    a(f"s_lshl_b32 s{S_T0}, s{S_W}, 9")
    a(f"v_and_b32 v10, 31, v{V_LANE}")
    a(f"v_lshlrev_b32 v10, 4, v10")
    a(f"v_add_u32 v10, s{S_T0}, v10")
    a(f"v_add_u32 v9, {W_RDY}, v10")
    a(f"global_load_dwordx4 {vr(V_RDY,4)}, v9, {sr(P_WS,2)} sc1")
    a(f"s_lshr_b32 s{S_T0}, s{S_R}, 2")
    a(f"s_lshl_b32 s{S_T0}, s{S_T0}, 11")
    a(f"s_and_b32 s{S_T1}, s{S_R}, 3")
    a(f"s_lshl_b32 s{S_T1}, s{S_T1}, 9")
    a(f"s_add_u32 s{S_T0}, s{S_T0}, s{S_T1}")
    a(f"v_lshlrev_b32 v11, 3, v{V_LANE}")
    a(f"v_add_u32 v11, s{S_T0}, v11")
    a(f"global_load_dwordx2 {vr(V_XRES,2)}, v11, {sr(P_X,2)}")

def koff_init(a):
    a(f"s_lshr_b32 s{S_KOFF}, s{S_W}, 2")
    a(f"s_lshl_b32 s{S_KOFF}, s{S_KOFF}, 7")
    a(f"s_and_b32 s{S_T5}, s{S_W}, 3")
    a(f"s_add_u32 s{S_KOFF}, s{S_KOFF}, s{S_T5}")
    a(f"s_lshl_b32 s{S_KOFF}, s{S_KOFF}, 12")

def emit_rdy(a):
    a(f"s_getreg_b32 s{S_T0}, hwreg(HW_REG_XCC_ID, 0, 4)")
    a(f"s_lshl_b32 s{S_T1}, s{S_X}, 5")
    a(f"s_add_u32 s{S_T1}, s{S_T1}, s{S_R}")
    a(f"s_lshl_b32 s{S_T1}, s{S_T1}, 4")
    a(f"s_add_u32 s{S_T1}, s{S_T1}, {W_RDY}")
    a(f"v_mov_b32 v10, s{S_T1}")
    a(f"v_mov_b32 v12, s{S_T0}")
    a(f"v_mov_b32 v13, 0")
    a(f"v_mov_b32 v14, s{S_TAG}")
    a(f"v_mov_b32 v15, s{S_TAG+1}")
    set_exec(a, 1, 0)
    a(f"global_store_dwordx4 v10, v[12:15], {sr(P_WS,2)} sc1")
    full_exec(a)

def gen(cfg):
    a=Asm()
    NSW=cfg.NSW; L=cfg.L; HV=cfg.HV
    LK=cfg.LK or L
    NH=8-NSW
    KT=256//NSW
    VT=(256-NH*HV)//NSW
    assert VT*NSW+NH*HV==256, "V tiles must split evenly"
    NK=4*KT; NV=4*VT
    TSTEP=NSW*4096
    def kload(j):
        reg=V_RING+(j%LK)*4
        a(f"buffer_load_dwordx4 {vr(reg,4)}, v{V_KOFF}, {sr(SRD_K,4)}, s{S_KOFF} offen offset:{(j%4)*1024} {cfg.KFLAGS}")
        if j%4==3: a(f"s_add_u32 s{S_KOFF}, s{S_KOFF}, {TSTEP}")
    def vload(jv, first=False):
        reg=V_RING+((NK-LK+jv)%LK)*4
        if first:
            a(f"s_add_u32 s{S_KOFF}, s{S_W}, {NH*HV}")
            a(f"s_lshl_b32 s{S_KOFF}, s{S_KOFF}, 12")
        a(f"buffer_load_dwordx4 {vr(reg,4)}, v{V_VOFF}, {sr(SRD_V,4)}, s{S_KOFF} offen offset:{(jv%4)*1024} {cfg.VFLAGS}")
        if jv%4==3: a(f"s_add_u32 s{S_KOFF}, s{S_KOFF}, {TSTEP}")
    a(f"{KNAME}:")
    a(f"s_cmp_ge_u32 s{S_ID}, 256")
    a("s_cbranch_scc1 L_exit")
    a("s_load_dwordx16 s[16:31], s[0:1], 0")
    a("s_load_dwordx8 s[32:39], s[0:1], 64")
    if cfg.CODEPF:
        a(f"s_getpc_b64 {sr(S_B1,2)}")
        a("L_pf0:")
        a(f"s_add_u32 s{S_B1}, s{S_B1}, {KNAME}-L_pf0")
        a(f"s_addc_u32 s{S_B1+1}, s{S_B1+1}, -1")
        a(f"v_lshlrev_b32 v10, 6, v0")
        a(f"v_cmp_gt_u32 vcc, L_codeend-{KNAME}, v10")
        a(f"s_and_saveexec_b64 {sr(S_EX,2)}, vcc")
        a("s_cbranch_execz L_pf0_done")
        a(f"global_load_dword v15, v10, {sr(S_B1,2)}")
        a("L_pf0_done:")
        a(f"s_mov_b64 exec, {sr(S_EX,2)}")
    stamp(a,cfg,0)
    a(f"v_lshrrev_b32 v2, 6, v0")
    a(f"v_and_b32 v{V_LANE}, 63, v0")
    if cfg.ALTMAP: a(f"s_lshr_b32 s{S_X}, s{S_ID}, 5")
    else: a(f"s_and_b32 s{S_X}, s{S_ID}, 7")
    a(f"v_readfirstlane_b32 s{S_W}, v2")
    if cfg.ALTMAP: a(f"s_and_b32 s{S_R}, s{S_ID}, 31")
    else: a(f"s_lshr_b32 s{S_R}, s{S_ID}, 3")
    a(f"s_lshr_b32 s{S_T0}, s{S_R}, 3")
    a(f"s_lshl_b32 s{S_H}, s{S_X}, 2")
    a(f"s_add_u32 s{S_H}, s{S_H}, s{S_T0}")
    a(f"s_and_b32 s{S_B}, s{S_R}, 7")
    a(f"v_and_b32 v2, 15, v{V_LANE}")
    a(f"v_lshrrev_b32 v3, 4, v{V_LANE}")
    a(f"v_lshlrev_b32 v{V_VOFF}, 4, v{V_LANE}")
    a(f"v_lshrrev_b32 v4, 2, v2")
    a(f"v_and_b32 v5, 3, v2")
    a(f"v_lshlrev_b32 v6, 8, v4")
    a(f"v_lshlrev_b32 v7, 6, v3")
    a(f"v_lshlrev_b32 v8, 4, v5")
    a(f"v_add3_u32 v{V_KOFF}, v6, v7, v8")
    a(f"v_mov_b32 v{V_DMA}, 0")
    a("s_waitcnt lgkmcnt(0)")
    a(f"s_load_dwordx2 {sr(S_TAG,2)}, {sr(P_WS,2)}, {W_EPOCH}")
    a(f"s_lshl_b32 s{S_T0}, s{S_B}, 5")
    a(f"s_add_u32 s{S_T0}, s{S_T0}, s{S_H}")
    a(f"s_lshl_b32 s{S_T0}, s{S_T0}, 20")
    for srd,p in ((SRD_K,P_K),(SRD_V,P_V)):
        a(f"s_add_u32 s{srd}, s{p}, s{S_T0}")
        a(f"s_addc_u32 s{srd+1}, s{p+1}, 0")
        a(f"s_and_b32 s{srd+1}, s{srd+1}, 0xffff")
        a(f"s_mov_b32 s{srd+2}, 0x100000")
        a(f"s_mov_b32 s{srd+3}, 0x20000")
    a(f"s_lshl_b32 s{S_T0}, s{S_W}, 11")
    a(f"v_lshlrev_b32 v9, 5, v{V_LANE}")
    a(f"v_add_u32 v9, s{S_T0}, v9")
    a(f"global_load_dwordx4 {vr(V_X,4)}, v9, {sr(P_X,2)}")
    a(f"global_load_dwordx4 {vr(V_X+4,4)}, v9, {sr(P_X,2)} offset:16")
    if cfg.HIGH_INLINE:
        a(f"s_cmp_lt_u32 s{S_W}, 4")
        a("s_cbranch_scc1 L_lowwaves")
    else:
        a(f"s_cmp_ge_u32 s{S_W}, 4")
        a("s_cbranch_scc1 L_high")
        a.ool(True)
    a("L_high:")
    a(f"v_lshrrev_b32 v10, 3, v{V_LANE}")
    a(f"v_and_b32 v11, 7, v{V_LANE}")
    a(f"v_lshlrev_b32 v11, 4, v11")
    a(f"s_lshr_b32 s{S_T4}, s{S_R}, 4")
    a(f"s_and_b32 s{S_T5}, s{S_R}, 15")
    a(f"s_cmp_eq_u32 s{S_W}, 4")
    a("s_cbranch_scc1 L_dma_wo")
    a(f"s_cmp_eq_u32 s{S_W}, 7")
    a("s_cbranch_scc1 L_dma_wd")
    a(f"s_cmp_ge_u32 s{S_R}, 28")
    a("s_cbranch_scc1 L_dma_done")
    a(f"s_mul_i32 s{S_T0}, s{S_R}, 37")
    a(f"s_lshr_b32 s{S_T0}, s{S_T0}, 8")
    a(f"s_mul_i32 s{S_T1}, s{S_T0}, 7")
    a(f"s_sub_u32 s{S_T1}, s{S_R}, s{S_T1}")
    a(f"s_mul_i32 s{S_T0}, s{S_T0}, {256*7168}")
    a(f"s_mul_i32 s{S_T2}, s{S_X}, 896")
    a(f"s_lshl_b32 s{S_T1}, s{S_T1}, 7")
    a(f"s_add_u32 s{S_T0}, s{S_T0}, s{S_T2}")
    a(f"s_add_u32 s{S_T0}, s{S_T0}, s{S_T1}")
    a(f"s_cmp_eq_u32 s{S_W}, 5")
    a(f"s_cselect_b32 s{S_B0}, s{P_WG}, s{P_WU}")
    a(f"s_cselect_b32 s{S_B0+1}, s{P_WG+1}, s{P_WU+1}")
    a(f"s_mov_b32 s{S_T3}, {L_WU}")
    a(f"s_cselect_b32 s{S_T3}, {L_WG}, s{S_T3}")
    a(f"s_add_u32 s{S_B0}, s{S_B0}, s{S_T0}")
    a(f"s_addc_u32 s{S_B0+1}, s{S_B0+1}, 0")
    a(f"s_mov_b32 s{S_T0}, 7168")
    a(f"s_mov_b32 s{S_T1}, 32")
    a("s_branch L_dma_go")
    a("L_dma_wo:")
    a(f"s_lshl_b32 s{S_T0}, s{S_X}, 1")
    a(f"s_add_u32 s{S_T0}, s{S_T0}, s{S_T4}")
    a(f"s_lshl_b32 s{S_T0}, s{S_T0}, 19")
    a(f"s_lshl_b32 s{S_T1}, s{S_T5}, 7")
    a(f"s_add_u32 s{S_T0}, s{S_T0}, s{S_T1}")
    a(f"s_add_u32 s{S_B0}, s{P_WO}, s{S_T0}")
    a(f"s_addc_u32 s{S_B0+1}, s{P_WO+1}, 0")
    a(f"s_mov_b32 s{S_T3}, {L_WO}")
    a(f"s_mov_b32 s{S_T0}, 2048")
    a(f"s_mov_b32 s{S_T1}, 32")
    a("s_branch L_dma_go")
    a("L_dma_wd:")
    a(f"s_lshl_b32 s{S_T0}, s{S_X}, 1")
    a(f"s_add_u32 s{S_T0}, s{S_T0}, s{S_T4}")
    a(f"s_mul_i32 s{S_T0}, s{S_T0}, {224*2048}")
    a(f"s_lshl_b32 s{S_T1}, s{S_T5}, 7")
    a(f"s_add_u32 s{S_T0}, s{S_T0}, s{S_T1}")
    a(f"s_add_u32 s{S_B0}, s{P_WD}, s{S_T0}")
    a(f"s_addc_u32 s{S_B0+1}, s{P_WD+1}, 0")
    a(f"s_mov_b32 s{S_T3}, {L_WD}")
    a(f"s_mov_b32 s{S_T0}, 2048")
    a(f"s_mov_b32 s{S_T1}, 28")
    a("L_dma_go:")
    a(f"v_mul_lo_u32 v10, v10, s{S_T0}")
    a(f"s_lshl_b32 s{S_T0}, s{S_T0}, 3")
    a(f"v_add_u32 v10, v10, v11")
    a(f"s_mov_b32 m0, s{S_T3}")
    a("s_nop 0")
    for n in range(cfg.P0):
        a(f"global_load_lds_dwordx4 v10, {sr(S_B0,2)} {cfg.WFLAGS}")
        a(f"s_add_u32 m0, m0, 1024")
        a(f"s_add_u32 s{S_B0}, s{S_B0}, s{S_T0}")
        a(f"s_addc_u32 s{S_B0+1}, s{S_B0+1}, 0")
    a(f"s_sub_u32 s{S_DN}, s{S_T1}, {cfg.P0}")
    a(f"s_mov_b32 s{S_DS}, s{S_T0}")
    a(f"s_mov_b32 s{S_DM}, m0")
    a(f"v_mov_b32 v{V_DMA}, v10")
    a(f"s_mov_b32 s{S_LNW}, 1") if cfg.LNDRY else a(f"s_waitcnt vmcnt({cfg.P0})")
    a("s_branch L_ln1")
    a("L_dma_done:")
    a(f"s_mov_b32 s{S_DN}, 0")
    a(f"s_mov_b32 s{S_B0}, s{P_WS}")
    a(f"s_mov_b32 s{S_B0+1}, s{P_WS+1}")
    a(f"v_mov_b32 v{V_DMA}, 0")
    a(f"s_mov_b32 s{S_LNW}, 0") if cfg.LNDRY else a("s_waitcnt vmcnt(0)")
    a("s_branch L_ln1")

    a.ool(False)
    a("L_lowwaves:")
    a(f"v_lshlrev_b32 v12, 13, v3")
    a(f"v_lshlrev_b32 v11, 1, v3")
    a(f"v_xor_b32 v10, v2, v11")
    a(f"v_xor_b32 v11, 8, v10")
    a(f"v_lshl_add_u32 v10, v10, 4, v12")
    a(f"v_lshl_add_u32 v11, v11, 4, v12")
    a(f"s_lshl_b32 s{S_T0}, s{S_B}, 7")
    a(f"s_lshl_b32 s{S_T1}, s{S_W}, 5")
    a(f"s_add_u32 s{S_T0}, s{S_T0}, s{S_T1}")
    a(f"s_lshl_b32 s{S_T0}, s{S_T0}, 13")
    a(f"s_lshl_b32 s{S_T1}, s{S_H}, 8")
    a(f"s_add_u32 s{S_T0}, s{S_T0}, s{S_T1}")
    a(f"s_add_u32 s{S_B0}, s{P_WQ}, s{S_T0}")
    a(f"s_addc_u32 s{S_B0+1}, s{P_WQ+1}, 0")
    a(f"s_lshl_b32 s{S_T1}, s{S_W}, 13")
    a(f"s_add_u32 m0, s{S_T1}, {L_WQ}")
    a("s_nop 0")
    for n in range(8):
        a(f"global_load_lds_dwordx4 v{10+((n>>1)&1)}, {sr(S_B0,2)} {cfg.WFLAGS}")
        if n<7:
            a(f"s_add_u32 m0, m0, 1024")
            a(f"s_add_u32 s{S_B0}, s{S_B0}, {4*8192}")
            a(f"s_addc_u32 s{S_B0+1}, s{S_B0+1}, 0")
    if cfg.RING_EARLY:
        a(f"s_cmp_ge_u32 s{S_W}, {NSW}")
        a("s_cbranch_scc1 L_low_nostr")
        a(f"s_lshl_b32 s{S_KOFF}, s{S_W}, 12")
        for j in range(LK): kload(j)
        a(f"s_mov_b32 s{S_LNW}, 2") if cfg.LNDRY else a(f"s_waitcnt vmcnt({8+LK})")
        a("s_branch L_ln1_low")
        a("L_low_nostr:")
    a(f"s_mov_b32 s{S_LNW}, 3") if cfg.LNDRY else a(f"s_waitcnt vmcnt(8)")
    a("L_ln1_low:")
    a("L_ln1:")
    if cfg.LNDRY:
        a(f"s_or_b32 s{S_LNW}, s{S_LNW}, 0x10")
        a("L_ln1_again:")
    layernorm2(a, V_X, V_X+8, V_X+24, V_T)
    if cfg.LNDRY:
        a(f"s_bitcmp0_b32 s{S_LNW}, 4")
        a("s_cbranch_scc1 L_ln1_done")
        a(f"s_and_b32 s{S_LNW}, s{S_LNW}, 0xf")
        for k,n in ((0,0),(1,cfg.P0),(2,8+LK),(3,8)):
            a(f"s_cmp_lg_u32 s{S_LNW}, {k}")
            a(f"s_cbranch_scc1 L_lnw{k}")
            a(f"s_waitcnt vmcnt({n})")
            a(f"L_lnw{k}:")
        a("s_branch L_ln1_again")
        a("L_ln1_done:")
    a(f"s_lshl_b32 s{S_T0}, s{S_B}, 3")
    a(f"v_subrev_u32 v10, s{S_T0}, v{V_LANE}")
    a(f"v_cmp_gt_u32 vcc, 8, v10")
    a(f"s_mul_i32 s{S_T1}, s{S_W}, {LNA_P}")
    a(f"s_add_u32 s{S_T1}, s{S_T1}, {L_LNA}")
    a(f"v_lshlrev_b32 v10, 5, v10")
    a(f"v_add_u32 v10, s{S_T1}, v10")
    a(f"s_and_saveexec_b64 {sr(S_EX,2)}, vcc")
    a(f"ds_write_b128 v10, {vr(V_X+24,4)}")
    a(f"ds_write_b128 v10, {vr(V_X+28,4)} offset:16")
    a(f"s_mov_b64 exec, {sr(S_EX,2)}")
    a(f"s_cmp_ge_u32 s{S_W}, 4")
    a("s_cbranch_scc1 L_b1")
    if cfg.RING_EARLY:
        a(f"s_cmp_ge_u32 s{S_W}, {NSW}")
        a("s_cbranch_scc1 L_b1_ns")
        a(f"s_waitcnt vmcnt({LK})")
        a("s_branch L_b1")
        a("L_b1_ns:")
    a("s_waitcnt vmcnt(0)")
    a("L_b1:")
    a("s_waitcnt lgkmcnt(0)")
    a(f"s_cmp_lg_u32 s{S_W}, 0")
    a("s_cbranch_scc1 L_noqf")
    a(f"v_mov_b32 v10, {L_QF}")
    a(f"v_mov_b32 v11, 0")
    a(f"ds_write_b32 v10, v11")
    a(f"ds_write_b32 v10, v11 offset:{L_MODE-L_QF}")
    a("s_waitcnt lgkmcnt(0)")
    a("L_noqf:")
    a("s_barrier")
    stamp(a,cfg,1)
    a(f"s_add_u32 s{S_TAG}, s{S_TAG}, 1")
    a(f"s_addc_u32 s{S_TAG+1}, s{S_TAG+1}, 0")
    a(f"v_and_b32 v10, 1, v2")
    a(f"v_cmp_eq_u32 vcc, 1, v10")
    a(f"v_mov_b32 v11, 0xffff")
    a(f"v_mov_b32 v12, 0xffff0000")
    a(f"v_cndmask_b32 v11, v11, v12, vcc")
    a(f"v_lshrrev_b32 v10, 1, v2")
    for w in range(4):
        a(f"v_cmp_eq_u32 vcc, {w}, v10")
        a("s_nop 1")
        a(f"v_cndmask_b32 v{V_MASK+w}, 0, v11, vcc")
    a(f"v_mov_b32 v{V_MAX}, 0xff800000")
    a(f"s_mov_b32 s{S_SCALE}, 0x3db504f3")
    a(f"s_mov_b32 s{S_LOG2E}, 0x3fb8aa3b")
    for c in range(4):
        a(f"v_mov_b32 v{V_OACC+c}, 0")
    a(f"s_cmp_ge_u32 s{S_W}, 4")
    a("s_cbranch_scc1 L_high2")
    a.ool(True)
    a("L_high2:")
    if cfg.CLR7:
        a(f"s_cmp_lg_u32 s{S_W}, 7")
        a("s_cbranch_scc1 L_h2_noclr")
        if not cfg.NOCLR: emit_clears(a,"7")
        a("L_h2_noclr:")
    if cfg.NODMA2: a(f"s_mov_b32 s{S_DN}, 0")
    a(f"s_cmp_eq_u32 s{S_DN}, 0")
    a("s_cbranch_scc1 L_dma2_done")
    if cfg.DMAPAUSE:
        a(f"v_mov_b32 v10, {L_QF}")
        a(f"s_mov_b32 s{S_SPIN}, {cfg.SPIN}")
        a("L_dp_wait:")
        a(f"ds_read_b32 v11, v10")
        a("s_waitcnt lgkmcnt(0)")
        a(f"v_readfirstlane_b32 s{S_T0}, v11")
        a("s_nop 1")
        a(f"s_cmp_lg_u32 s{S_T0}, 0")
        a("s_cbranch_scc1 L_dma2_loop")
        a("s_sleep 2")
        a(f"s_sub_u32 s{S_SPIN}, s{S_SPIN}, 1")
        a(f"s_cmp_lg_u32 s{S_SPIN}, 0")
        a("s_cbranch_scc1 L_dp_wait")
    a("L_dma2_loop:")
    a(f"s_waitcnt vmcnt({cfg.P-1})")
    a(f"global_load_lds_dwordx4 v{V_DMA}, {sr(S_B0,2)} {cfg.WFLAGS}")
    a(f"s_add_u32 m0, m0, 1024")
    a(f"s_add_u32 s{S_B0}, s{S_B0}, s{S_DS}")
    a(f"s_addc_u32 s{S_B0+1}, s{S_B0+1}, 0")
    a(f"s_sub_u32 s{S_DN}, s{S_DN}, 1")
    a(f"s_cmp_lg_u32 s{S_DN}, 0")
    a("s_cbranch_scc1 L_dma2_loop")
    a("L_dma2_done:")
    a("s_waitcnt vmcnt(0)")
    stamp(a,cfg,13)
    if cfg.CLR7:
        a(f"s_cmp_lg_u32 s{S_W}, 7")
        a("s_cbranch_scc1 L_h2_nordy")
        emit_rdy(a)
        a("L_h2_nordy:")
    emit_precompute(a,cfg)
    emit_rdycheck(a,cfg)
    a("s_branch L_kdone")
    a.ool(False)
    a("L_q_low:")
    if not cfg.RING_EARLY:
        a(f"s_cmp_ge_u32 s{S_W}, {NSW}")
        a("s_cbranch_scc1 L_ring_late_skip")
        a(f"s_lshl_b32 s{S_KOFF}, s{S_W}, 12")
        for j in range(LK): kload(j)
        a("L_ring_late_skip:")
    a(f"s_cmp_lt_u32 s{S_W}, 2")
    a("s_cbranch_scc1 L_q_01")
    a.ool(True)
    a("L_q_01:")
    emit_precompute(a,cfg)
    a(f"s_cmp_eq_u32 s{S_W}, 0")
    a("s_cbranch_scc1 L_q_w0")
    a("s_branch L_q_w1")
    a.ool(False)
    a("L_q_prod:")
    a(f"v_and_b32 v10, 7, v{V_LANE}")
    a(f"v_mul_u32_u24 v10, {LNA_P}, v10")
    a(f"v_lshlrev_b32 v11, 4, v3")
    a(f"v_add_u32 v10, v10, v11")
    a(f"v_add_u32 v10, {L_LNA}, v10")
    for s_ in range(4):
        a(f"ds_read_b128 {vr(V_X+4*s_,4)}, v10 offset:{64*s_}")
    a(f"v_lshlrev_b32 v11, 3, v3")
    a(f"v_add_u32 v11, v11, v4")
    a(f"v_lshlrev_b32 v11, 8, v11")
    a(f"v_lshlrev_b32 v12, 3, v5")
    a(f"v_add3_u32 v11, v11, v12, {0}") if False else None
    a(f"v_add_u32 v11, v11, v12")
    a(f"v_add_u32 v11, {L_WQ}, v11")
    a(f"v_and_b32 v12, 1, v3")
    a(f"v_lshlrev_b32 v12, 2, v12")
    a(f"v_or_b32 v12, v12, v4")
    a(f"s_sub_u32 s{S_T4}, s{S_W}, 2")
    a(f"s_lshl_b32 s{S_T0}, s{S_T4}, 2")
    a(f"v_xor_b32 v12, s{S_T0}, v12")
    for tt in range(4):
        a(f"v_xor_b32 v13, {tt}, v12")
        a(f"v_lshl_add_u32 v{V_T+16+tt}, v13, 5, v11")
    for tt in range(4):
        for s_ in range(4):
            for hf in range(2):
                reg=V_RING+tt*16+s_*4+hf*2
                a(f"ds_read_b64_tr_b16 {vr(reg,2)}, v{V_T+16+tt} offset:{(32*s_+4*hf)*256}")
    a(f"s_lshl_b32 s{S_T0}, s{S_H}, 3")
    a(f"s_add_u32 s{S_T0}, s{S_T0}, s{S_B}")
    a(f"s_lshl_b32 s{S_T0}, s{S_T0}, 13")
    a(f"s_lshl_b32 s{S_T1}, s{S_T4}, 9")
    a(f"s_add_u32 s{S_T0}, s{S_T0}, s{S_T1}")
    a(f"s_add_u32 s{S_T0}, s{S_T0}, {W_QP}")
    a(f"v_lshlrev_b32 v10, 10, v2")
    a(f"v_lshlrev_b32 v11, 5, v3")
    a(f"v_add3_u32 v{V_QADDR}, v10, v11, s{S_T0}")
    G=V_X+16
    for tt in range(4):
        for hh in range(2):
            b=G+8*tt+4*hh
            a(f"v_mov_b32 v{b+2}, s{S_TAG}")
            a(f"v_mov_b32 v{b+3}, s{S_TAG+1}")
    a("s_waitcnt lgkmcnt(0)")
    for s_ in range(4):
        for tt in range(4):
            c = "0" if s_==0 else vr(V_T+4*tt,4)
            a(f"v_mfma_f32_16x16x32_bf16 {vr(V_T+4*tt,4)}, {vr(V_RING+tt*16+s_*4,4)}, {vr(V_X+4*s_,4)}, {c}")
    a("s_nop 7")
    for tt in range(4):
        for hh in range(2):
            b=G+8*tt+4*hh
            a(f"v_mov_b32 v{b}, v{V_T+4*tt+2*hh}")
            a(f"v_mov_b32 v{b+1}, v{V_T+4*tt+2*hh+1}")
    def qstores(fl):
        set_exec(a, "0x00ff00ff", "0x00ff00ff")
        for tt in range(4):
            for hh in range(2):
                a(f"global_store_dwordx4 v{V_QADDR}, {vr(G+8*tt+4*hh,4)}, {sr(P_WS,2)} offset:{128*tt+16*hh} {fl}")
        full_exec(a)
    qstores("" if cfg.QFAST else "sc1")
    stamp(a,cfg,13)
    a("s_branch L_prod2")
    a.ool(True)
    a("L_prod2:")
    if cfg.QFAST and cfg.CONDCOPY:
        a(f"v_mov_b32 v10, {L_MODE}")
        a(f"s_mov_b32 s{S_SPIN}, {cfg.SPIN}")
        a("L_qc_wait:")
        a("s_sleep 16")
        a(f"ds_read_b32 v11, v10")
        a("s_waitcnt lgkmcnt(0)")
        a(f"v_readfirstlane_b32 s{S_T0}, v11")
        a("s_nop 1")
        a(f"s_cmp_lg_u32 s{S_T0}, 0")
        a("s_cbranch_scc1 L_qc_go")
        a(f"s_sub_u32 s{S_SPIN}, s{S_SPIN}, 1")
        a(f"s_cmp_lg_u32 s{S_SPIN}, 0")
        a("s_cbranch_scc1 L_qc_wait")
        a("L_qc_go:")
        a(f"s_cmp_eq_u32 s{S_T0}, 2")
        a("s_cbranch_scc1 L_qc_skip")
        qstores("sc1")
        a("L_qc_skip:")
    elif cfg.QFAST:
        a(f"v_mov_b32 v10, {L_QF}")
        a(f"s_mov_b32 s{S_SPIN}, {cfg.QWAIT}")
        a("L_qc_wait:")
        a("s_sleep 4")
        a(f"ds_read_b32 v11, v10")
        a("s_waitcnt lgkmcnt(0)")
        a(f"v_readfirstlane_b32 s{S_T0}, v11")
        a("s_nop 1")
        a(f"s_cmp_lg_u32 s{S_T0}, 0")
        a("s_cbranch_scc1 L_qc_go")
        a(f"s_sub_u32 s{S_SPIN}, s{S_SPIN}, 1")
        a(f"s_cmp_lg_u32 s{S_SPIN}, 0")
        a("s_cbranch_scc1 L_qc_wait")
        a("L_qc_go:")
        if not cfg.NOCOPY: qstores("sc1")
    if not cfg.CLR7:
        a(f"s_cmp_lg_u32 s{S_W}, 3")
        a("s_cbranch_scc1 L_q_prod2")
        if not cfg.NOCLR: emit_clears(a)
        a("s_waitcnt vmcnt(0)")
        emit_rdy(a)
    a("L_q_prod2:")
    emit_precompute(a,cfg)
    if cfg.CODEPF:
        a(f"s_cmp_lg_u32 s{S_W}, 2")
        a("s_cbranch_scc1 L_pf1_skip")
        emit_codepf(a,cfg,"L_pf1","L_q_ready","L_exit")
        a("L_pf1_skip:")
    a(f"global_load_dwordx2 {vr(V_XRES,2)}, v9, {sr(P_X,2)}")
    a("s_branch L_kdone")
    a.ool(False)
    a("L_q_w1:")
    if NSW<2:
        a("s_branch L_kdone")
    a(f"v_mov_b32 v10, {L_QF}")
    a(f"s_mov_b32 s{S_SPIN}, {cfg.SPIN}")
    a("L_qf_wait:")
    a(f"ds_read_b32 v11, v10")
    a("s_waitcnt lgkmcnt(0)")
    a(f"v_readfirstlane_b32 s{S_T0}, v11")
    a("s_nop 1")
    a(f"s_cmp_lg_u32 s{S_T0}, 0")
    a("s_cbranch_scc1 L_q_ready")
    a(f"s_sub_u32 s{S_SPIN}, s{S_SPIN}, 1")
    a(f"s_cmp_lg_u32 s{S_SPIN}, 0")
    a("s_cbranch_scc1 L_qf_wait")
    a("s_branch L_q_ready")
    a("L_q_w0:")
    a(f"s_lshl_b32 s{S_T0}, s{S_H}, 16")
    a(f"s_lshl_b32 s{S_T1}, s{S_B}, 10")
    a(f"s_add_u32 s{S_T0}, s{S_T0}, s{S_T1}")
    a(f"s_add_u32 s{S_T0}, s{S_T0}, {W_QP}")
    a(f"v_add_u32 v10, s{S_T0}, v{V_VOFF}")
    for j in range(8):
        a(f"v_add_u32 v{V_T+8+j}, {j*8192}, v10")
    PQ=V_X+16
    lp=a.label("qpoll"); dn=a.label("qok")
    a(f"s_mov_b32 s{S_SPIN}, {cfg.SPIN}")
    a(f"{lp}:")
    for j in range(8):
        a(f"global_load_dwordx4 {vr(PQ+4*j,4)}, v{V_T+8+j}, {sr(P_WS,2)} sc1")
    a("s_waitcnt vmcnt(0)")
    a(f"v_mov_b32 v11, 0")
    for j in range(8):
        a(f"v_xor_b32 v12, s{S_TAG}, v{PQ+4*j+2}")
        a(f"v_xor_b32 v13, s{S_TAG+1}, v{PQ+4*j+3}")
        a(f"v_or3_b32 v11, v11, v12, v13")
    a(f"v_cmp_ne_u32 vcc, 0, v11")
    a(f"s_cbranch_vccz {dn}")
    if cfg.QSLEEP: a(f"s_sleep {cfg.QSLEEP}")
    a(f"s_sub_u32 s{S_SPIN}, s{S_SPIN}, 1")
    a(f"s_cmp_lg_u32 s{S_SPIN}, 0")
    a(f"s_cbranch_scc1 {lp}")
    a(f"{dn}:")
    stamp(a,cfg,14)
    for j in range(1,8):
        a(f"v_add_f32 v{PQ}, v{PQ}, v{PQ+4*j}")
        a(f"v_add_f32 v{PQ+1}, v{PQ+1}, v{PQ+4*j+1}")
    a(f"v_cvt_pk_bf16_f32 v{PQ+2}, v{PQ}, v{PQ+1}")
    a(f"v_lshlrev_b32 v11, 2, v{V_LANE}")
    a(f"v_add_u32 v11, {L_QS}, v11")
    a(f"ds_write_b32 v11, v{PQ+2}")
    a("s_waitcnt lgkmcnt(0)")
    a(f"v_mov_b32 v10, {L_QF}")
    a(f"v_mov_b32 v11, 1")
    a(f"ds_write_b32 v10, v11")
    a("L_q_ready:")
    stamp(a,cfg,2)
    a(f"v_lshlrev_b32 v10, 2, v3")
    a(f"v_add_u32 v10, v10, v5")
    a(f"v_lshlrev_b32 v10, 4, v10")
    a(f"v_add_u32 v10, {L_QS}, v10")
    a(f"ds_read_b128 {vr(V_T,4)}, v10")
    a(f"s_lshl_b32 s{S_T0}, s{S_W}, 6")
    a(f"s_add_u32 s{S_T0}, s{S_T0}, {L_SC}")
    a(f"v_lshlrev_b32 v10, 4, v4")
    a(f"v_lshlrev_b32 v11, 2, v3")
    a(f"v_add3_u32 v{V_SCW}, v10, v11, s{S_T0}")
    a("s_waitcnt lgkmcnt(0)")
    for n in range(4):
        a(f"v_cmp_eq_u32 vcc, {n}, v4")
        a("s_nop 1")
        for c in range(4):
            a(f"v_cndmask_b32 v{V_QA+4*n+c}, 0, v{V_T+c}, vcc")
    import math
    PERK=LK*4//math.gcd(LK,4)
    def kpost(acc, sc_off):
        t=V_T
        a(f"v_mov_b32_dpp v{t}, v{acc} quad_perm:[0,0,0,0] row_mask:0xf bank_mask:0xf")
        for q in range(1,4):
            a(f"v_add_f32_dpp v{t}, v{acc+q}, v{t} quad_perm:[{q},{q},{q},{q}] row_mask:0xf bank_mask:0xf")
        round_bf16(a,t,t)
        a(f"v_mul_f32 v{t}, s{S_SCALE}, v{t}")
        round_bf16(a,t,t)
        a(f"v_max_f32 v{V_MAX}, v{V_MAX}, v{t}")
        a(f"ds_write_b32 v{V_SCW}, v{t} offset:{sc_off}")
    def kbody(j, wait_n, reissue, sc_off, prev_off=None, last=False):
        a(f"s_waitcnt vmcnt({wait_n})")
        a("s_nop 0")
        n=j%4
        if cfg.KEXP==2:
            acc=V_SACC if (j//4)%2==0 else V_SACC2
        else:
            acc=V_SACC
        c="0" if n==0 else vr(acc,4)
        a(f"v_mfma_f32_16x16x32_bf16 {vr(acc,4)}, {vr(V_QA+4*n,4)}, {vr(V_RING+(j%LK)*4,4)}, {c}")
        reissue()
        if cfg.KEXP==2:
            if n==1 and prev_off is not None:
                kpost(V_SACC2 if (j//4)%2==0 else V_SACC, prev_off)
            if n==3 and last:
                a("s_nop 7")
                kpost(acc, sc_off)
        elif n==3:
            if cfg.KEXP==1: return
            a("s_nop 7")
            kpost(acc, sc_off)
    if cfg.KEXP==2 and (PERK//4)%2: PERK*=2
    nloop=(NK-LK)//PERK
    TS=NSW*64
    if cfg.KEXP==2:
        for j in range(4):
            kbody(j, LK-1, (lambda j=j: kload(j+LK)), 0, None)
        base=4
        nloop=(NK-LK-4)//PERK
    else:
        base=0
    a(f"s_mov_b32 s{S_LOOP}, {nloop}")
    a(".p2align 6")
    a("L_kloop:")
    for j in range(base,base+PERK):
        kbody(j, LK-1, (lambda j=j: kload(j+LK)), ((j-0)//4)*TS, ((j//4)-1)*TS)
    a(f"v_add_u32 v{V_SCW}, {(PERK//4)*TS}, v{V_SCW}")
    a(f"s_sub_u32 s{S_LOOP}, s{S_LOOP}, 1")
    a(f"s_cmp_lg_u32 s{S_LOOP}, 0")
    a("s_cbranch_scc1 L_kloop")
    done=base+nloop*PERK
    for j in range(done, NK):
        m=j+LK
        if m<NK: ri=(lambda m=m: kload(m)); wn=LK-1
        elif m-NK<L: ri=(lambda m=m: vload(m-NK, first=(m==NK))); wn=LK-1
        else: ri=(lambda: None); wn=(NK-1-j)+L
        rel=(j-nloop*PERK)//4
        kbody(j, wn, ri, rel*TS, (rel-1)*TS, last=(j==NK-1))
    a("L_kdone:")
    stamp(a,cfg,3)
    wave_sum(a, V_MAX, V_T, op="max")
    a(f"s_lshl_b32 s{S_T0}, s{S_W}, 2")
    a(f"s_add_u32 s{S_T0}, s{S_T0}, {L_ML}")
    a(f"v_mov_b32 v11, s{S_T0}")
    a(f"ds_write_b32 v11, v{V_MAX}")
    a("s_waitcnt lgkmcnt(0)")
    a("s_barrier")
    if cfg.LATE_L:
        a(f"s_cmp_lg_u32 s{S_W}, 2")
        a("s_cbranch_scc1 L_nokd")
        a(f"v_mov_b32 v12, {L_MODE}")
        a(f"ds_read_b32 v13, v12")
        a(f"s_lshl_b32 s{S_T0}, s{S_X}, 9")
        a(f"s_add_u32 s{S_T0}, s{S_T0}, {W_KD}")
        a(f"v_and_b32 v10, 31, v{V_LANE}")
        a(f"v_lshlrev_b32 v10, 4, v10")
        a(f"v_add_u32 v10, s{S_T0}, v10")
        a(f"global_load_dwordx4 {vr(V_RDY,4)}, v10, {sr(P_WS,2)} sc1")
        a(f"s_lshl_b32 s{S_T2}, s{S_R}, 7")
        a(f"s_add_u32 s{S_T2}, s{S_T2}, {W_KX}")
        a(f"v_and_b32 v11, 7, v{V_LANE}")
        a(f"v_lshlrev_b32 v11, 4, v11")
        a(f"v_add_u32 v11, s{S_T2}, v11")
        a(f"global_load_dwordx4 {vr(V_KX,4)}, v11, {sr(P_WS,2)} sc1")
        a(f"s_lshl_b32 s{S_T1}, s{S_R}, 4")
        a(f"s_add_u32 s{S_T0}, s{S_T0}, s{S_T1}")
        a(f"v_mov_b32 v10, s{S_T0}")
        a(f"s_lshl_b32 s{S_T1}, s{S_X}, 4")
        a(f"s_add_u32 s{S_T2}, s{S_T2}, s{S_T1}")
        a(f"v_mov_b32 v11, s{S_T2}")
        a(f"v_mov_b32 v{V_X+8}, 1")
        a(f"v_mov_b32 v{V_X+9}, 0")
        a(f"v_mov_b32 v{V_X+10}, s{S_TAG}")
        a(f"v_mov_b32 v{V_X+11}, s{S_TAG+1}")
        a("s_waitcnt lgkmcnt(0)")
        a(f"v_readfirstlane_b32 s{S_FAST}, v13")
        a("s_nop 1")
        a(f"s_sub_u32 s{S_FAST}, s{S_FAST}, 1")
        set_exec(a,1,0)
        store_mode(a, f"global_store_dwordx4 v10, {vr(V_X+8,4)}, {sr(P_WS,2)}", True)
        a(f"global_store_dwordx4 v11, {vr(V_X+8,4)}, {sr(P_WS,2)} sc1")
        full_exec(a)
        a(f"v_mov_b32 v10, {L_SEL}")
        a(f"v_mov_b32 v11, 0")
        a(f"ds_write_b32 v10, v11")
        a("L_nokd:")
    a(f"s_cmp_lt_u32 s{S_W}, {NSW}")
    a("s_cbranch_scc1 L_nohv")
    a(f"s_sub_u32 s{S_T0}, s{S_W}, {NSW}")
    a(f"s_mul_i32 s{S_T0}, s{S_T0}, {HV*4096}")
    for t in range(HV):
        for n in range(4):
            a(f"buffer_load_dwordx4 {vr(V_RING+t*16+n*4,4)}, v{V_VOFF}, {sr(SRD_V,4)}, s{S_T0} offen offset:{n*1024} {cfg.VFLAGS}")
        if t<HV-1: a(f"s_add_u32 s{S_T0}, s{S_T0}, 4096")
    a("L_nohv:")
    a(f"v_mov_b32 v12, {L_MODE}")
    a(f"ds_read_b32 v13, v12")
    a(f"v_mov_b32 v11, {L_ML}")
    a(f"ds_read_b128 {vr(V_X,4)}, v11")
    a(f"ds_read_b128 {vr(V_X+4,4)}, v11 offset:16")
    a(f"s_lshl_b32 s{S_T4}, s{S_W}, 11")
    a(f"s_add_u32 s{S_T4}, s{S_T4}, {L_SC}")
    a(f"v_lshlrev_b32 v10, 5, v{V_LANE}")
    a(f"v_add_u32 v10, s{S_T4}, v10")
    a(f"ds_read_b128 {vr(V_T,4)}, v10")
    a(f"ds_read_b128 {vr(V_T+4,4)}, v10 offset:16")
    a("s_waitcnt lgkmcnt(2)")
    a(f"v_readfirstlane_b32 s{S_FAST}, v13")
    a(f"v_max3_f32 v{V_MAX}, v{V_X}, v{V_X+1}, v{V_X+2}")
    a(f"s_sub_u32 s{S_FAST}, s{S_FAST}, 1")
    a(f"v_max3_f32 v{V_MAX}, v{V_MAX}, v{V_X+3}, v{V_X+4}")
    a(f"v_max3_f32 v{V_MAX}, v{V_MAX}, v{V_X+5}, v{V_X+6}")
    a(f"v_max_f32 v{V_MAX}, v{V_MAX}, v{V_X+7}")
    a("s_waitcnt lgkmcnt(0)")
    for i in range(8):
        a(f"v_sub_f32 v{V_T+8+i}, v{V_T+i}, v{V_MAX}")
        a(f"v_mul_f32 v{V_T+8+i}, s{S_LOG2E}, v{V_T+8+i}")
        a(f"v_exp_f32 v{V_T+8+i}, v{V_T+8+i}")
    a("s_nop 0")
    a(f"v_add_f32 v{V_T+16}, v{V_T+8}, v{V_T+9}")
    for i in range(2,8):
        a(f"v_add_f32 v{V_T+16}, v{V_T+16}, v{V_T+8+i}")
    wave_sum(a, V_T+16, V_T+17)
    a(f"s_lshl_b32 s{S_T0}, s{S_W}, 2")
    a(f"s_add_u32 s{S_T0}, s{S_T0}, {L_LS}")
    a(f"v_mov_b32 v11, s{S_T0}")
    a(f"ds_write_b32 v11, v{V_T+16}")
    a("s_waitcnt lgkmcnt(0)")
    a("s_barrier")
    a(f"v_mov_b32 v11, {L_LS}")
    a(f"ds_read_b128 {vr(V_X,4)}, v11")
    a(f"ds_read_b128 {vr(V_X+4,4)}, v11 offset:16")
    a("s_waitcnt lgkmcnt(0)")
    a(f"v_add_f32 v{V_T+16}, v{V_X}, v{V_X+1}")
    for k in range(2,8):
        a(f"v_add_f32 v{V_T+16}, v{V_T+16}, v{V_X+k}")
    a(f"v_rcp_f32 v{V_T+17}, v{V_T+16}")
    a("s_nop 0")
    a(f"v_fma_f32 v{V_T+18}, -v{V_T+16}, v{V_T+17}, 1.0")
    a(f"v_fma_f32 v{V_T+17}, v{V_T+18}, v{V_T+17}, v{V_T+17}")
    for i in range(8):
        a(f"v_mul_f32 v{V_T+8+i}, v{V_T+8+i}, v{V_T+17}")
        a(f"v_cvt_pk_bf16_f32 v{V_T+8+i}, v{V_T+8+i}, v{V_T+8+i}")
    a(f"ds_write_b128 v10, {vr(V_T+8,4)}")
    a(f"ds_write_b128 v10, {vr(V_T+12,4)} offset:16")
    a("s_waitcnt lgkmcnt(0)")
    a("s_barrier")
    stamp(a,cfg,4)
    def ands(dst,pp):
        for w in range(4):
            a(f"v_and_b32 v{dst+w}, v{pp}, v{V_MASK+w}")
    a(f"s_cmp_lt_u32 s{S_W}, {NSW}")
    a("s_cbranch_scc1 L_vstream")
    if cfg.LATE_L:
        a(f"s_cmp_lg_u32 s{S_W}, 2")
        a("s_cbranch_scc1 L_nokd2")
        a(f"s_waitcnt vmcnt({2+4*HV})")
        a(f"v_xor_b32 v11, s{S_TAG}, v{V_RDY+2}")
        a(f"v_xor_b32 v15, s{S_TAG+1}, v{V_RDY+3}")
        a(f"v_or_b32 v11, v11, v15")
        a(f"v_cmp_eq_u32 vcc, 0, v11")
        a(f"v_xor_b32 v11, s{S_TAG}, v{V_KX+2}")
        a(f"v_xor_b32 v15, s{S_TAG+1}, v{V_KX+3}")
        a(f"v_or_b32 v11, v11, v15")
        a(f"v_cmp_eq_u32 {sr(S_B1,2)}, 0, v11")
        a("s_nop 1")
        a(f"s_bcnt1_i32_b32 s{S_T0}, vcc_lo")
        a(f"s_and_b32 s{S_T1}, s{S_B1}, 0xff")
        a(f"s_bcnt1_i32_b32 s{S_T1}, s{S_T1}")
        a(f"s_cmp_ge_u32 s{S_T0}, {cfg.LATE_THR}")
        a(f"s_cselect_b32 s{S_T0}, 1, 0")
        if cfg.LATE_X:
            a(f"s_cmp_ge_u32 s{S_T1}, {cfg.LATE_X}")
            a(f"s_cselect_b32 s{S_T0}, 1, s{S_T0}")
        a(f"v_mov_b32 v11, {L_SEL}")
        a(f"v_mov_b32 v15, s{S_T0}")
        a(f"ds_write_b32 v11, v15")
        a("L_nokd2:")
    a(f"s_sub_u32 s{S_T0}, s{S_W}, {NSW}")
    a(f"s_mul_i32 s{S_T0}, s{S_T0}, {HV*64}")
    a(f"s_add_u32 s{S_T0}, s{S_T0}, {L_SC}")
    a(f"v_lshlrev_b32 v10, 4, v3")
    a(f"v_add_u32 v10, s{S_T0}, v10")
    for t in range(HV):
        a(f"ds_read_b128 {vr(V_PP0,4)}, v10 offset:{t*64}")
        a(f"s_waitcnt vmcnt({4*(HV-1-t)}) lgkmcnt(0)")
        for n in range(4):
            A=V_A0 if n%2==0 else V_A1
            ands(A,V_PP0+n)
            a("s_nop 1")
            a(f"v_mfma_f32_16x16x32_bf16 {vr(V_OACC,4)}, {vr(A,4)}, {vr(V_RING+t*16+4*n,4)}, {vr(V_OACC,4)}")
    a("s_nop 7")
    set_exec(a, -1, 0)
    a(f"ds_write_b128 v{PA_OW}, {vr(V_OACC,4)}")
    full_exec(a)
    frag_reads(a,"ogd")
    if cfg.CODEPF:
        a(f"s_cmp_lg_u32 s{S_W}, 4")
        a("s_cbranch_scc1 L_pf2_skip")
        emit_codepf(a,cfg,"L_pf2","L_vdone","L_exit")
        a("L_pf2_skip:")
    a("s_waitcnt vmcnt(0) lgkmcnt(0)")
    a("s_branch L_vdone")
    a("L_vstream:")
    a(f"s_add_u32 s{S_T0}, s{S_W}, {NH*HV}")
    a(f"s_lshl_b32 s{S_T0}, s{S_T0}, 6")
    a(f"s_add_u32 s{S_T0}, s{S_T0}, {L_SC}")
    a(f"v_lshlrev_b32 v10, 4, v3")
    a(f"v_add_u32 v{V_PPR}, s{S_T0}, v10")
    a(f"ds_read_b128 {vr(V_PP0,4)}, v{V_PPR}")
    import math as _m
    base_ring=[(NK-LK+v)%LK for v in range(L)]
    spare=[x for x in range(16) if x not in base_ring]
    def vbody2(jv, rel, wait_n, slot, last_tile):
        n=jv%4; par=(jv//4)%2
        pp = V_PP0 if par==0 else V_PP1
        ppn = V_PP1 if par==0 else V_PP0
        if n==0:
            if not last_tile:
                a(f"ds_read_b128 {vr(ppn,4)}, v{V_PPR} offset:{(rel+1)*NSW*64}")
                a(f"s_waitcnt lgkmcnt(1)")
                a("s_nop 0")
            else:
                a(f"s_waitcnt lgkmcnt(0)")
                a("s_nop 0")
        A=V_A0 if n%2==0 else V_A1
        ands(A,pp+n)
        a(f"s_waitcnt vmcnt({wait_n})")
        a("s_nop 0")
        a(f"v_mfma_f32_16x16x32_bf16 {vr(V_OACC,4)}, {vr(A,4)}, {vr(V_RING+slot*4,4)}, {vr(V_OACC,4)}")
    def vissue(jn, slot):
        a(f"buffer_load_dwordx4 {vr(V_RING+slot*4,4)}, v{V_VOFF}, {sr(SRD_V,4)}, s{S_KOFF} offen offset:{(jn%4)*1024} {cfg.VFLAGS}")
        if jn%4==3: a(f"s_add_u32 s{S_KOFF}, s{S_KOFF}, {TSTEP}")
    S0=cfg.SEG0 if cfg.LATE_L else 0
    assert S0%8==0
    for jv in range(S0):
        vbody2(jv, jv//4, L-1, base_ring[jv%L], False)
        vissue(jv+L, base_ring[jv%L])
    if S0: a(f"v_add_u32 v{V_PPR}, {(S0//4)*NSW*64}, v{V_PPR}")
    def vstream(LV, sfx):
        ring=[base_ring[(S0+i)%L] for i in range(L)]+spare[:LV-L]
        for k in range(L,LV): vissue(S0+k, ring[k])
        per=LV*4//_m.gcd(LV,4)
        if (per//4)%2: per*=2
        nl=(NV-S0-LV)//per
        a(f"s_mov_b32 s{S_LOOP}, {nl}")
        a(".p2align 6")
        a(f"L_vloop{sfx}:")
        for i in range(per):
            vbody2(S0+i, i//4, LV-1, ring[i%LV], False)
            vissue(S0+i+LV, ring[i%LV])
        a(f"v_add_u32 v{V_PPR}, {(per//4)*NSW*64}, v{V_PPR}")
        a(f"s_sub_u32 s{S_LOOP}, s{S_LOOP}, 1")
        a(f"s_cmp_lg_u32 s{S_LOOP}, 0")
        a(f"s_cbranch_scc1 L_vloop{sfx}")
        start=nl*per
        for i in range(start,NV-S0):
            jv=S0+i
            vbody2(jv, (i-start)//4, min(LV-1, NV-1-jv), ring[i%LV], jv//4==VT-1)
            if jv+LV<NV: vissue(jv+LV, ring[i%LV])
    if cfg.LATE_L:
        a(f"v_mov_b32 v10, {L_SEL}")
        a(f"ds_read_b32 v11, v10")
        a("s_waitcnt lgkmcnt(0)")
        a(f"v_readfirstlane_b32 s{S_T0}, v11")
        a("s_nop 1")
        a(f"s_cmp_lg_u32 s{S_T0}, 0")
        a("s_cbranch_scc1 L_vlate")
    vstream(L,"")
    if cfg.LATE_L:
        a("s_branch L_vdone")
        a.ool(True)
        a("L_vlate:")
        vstream(cfg.LATE_L,"b")
        a("s_branch L_vdone")
        a.ool(False)
    a("L_vdone:")
    stamp(a,cfg,5)
    return a, None

PA=208
PA_O=PA+0; PA_T2=PA+1; PA_DW=PA+2; PA_R2=PA+3; PA_P2=PA+4; PA_T3A=PA+5; PA_T3B=PA+6; PA_T3W=PA+7; PA_T3R=PA+8; PA_H=PA+9
PA_T4=PA+10; PA_LNBW=PA+11; PA_HSW=PA+12; PA_LNBR=PA+13; PA_GP=PA+14; PA_ACT=PA+15; PA_T6=PA+16; PA_OUT=PA+17; PA_HSR=PA+18
PA_OW=PA+19; PA_OR=PA+20; PA_TR=PA+21
PA_T5B=PA+24
PA_T7=PA+28
V_XRES=PA+36
V_RDY=PA+40
V_KX=PA+44
SM_LNB=8; SM_HS=10
R_T1=2; R_RED0=2
R_W0=3

def emit_precompute(a, cfg):
    global SM_LNB, SM_HS
    T0,T1,T2,T3,T4,T5=S_T0,S_T1,S_T2,S_T3,S_T4,S_T5
    a(f"s_lshl_b32 s{T0}, s{S_H}, 3")
    a(f"s_add_u32 s{T0}, s{T0}, s{S_B}")
    a(f"s_lshl_b32 s{T0}, s{T0}, 8")
    a(f"s_add_u32 s{T0}, s{T0}, {W_OB}")
    a(f"v_lshlrev_b32 v10, 2, v{V_LANE}")
    a(f"v_add_u32 v{PA_O}, s{T0}, v10")
    a(f"s_lshl_b32 s{T0}, s{S_W}, 9")
    a(f"s_add_u32 s{T0}, s{T0}, {L_RED}")
    a(f"v_lshlrev_b32 v11, 5, v2")
    a(f"v_lshlrev_b32 v12, 4, v3")
    a(f"v_add3_u32 v{PA_OW}, v11, v12, s{T0}")
    a(f"v_lshlrev_b32 v11, 3, v{V_LANE}")
    a(f"v_add_u32 v{PA_OR}, {L_RED}, v11")
    a(f"v_lshlrev_b32 v11, 3, v3")
    a(f"v_add_u32 v11, v11, v4")
    a(f"v_lshlrev_b32 v11, 7, v11")
    a(f"v_lshlrev_b32 v13, 3, v5")
    a(f"v_add_u32 v{PA_TR}, v11, v13")
    a(f"s_lshr_b32 s{T4}, s{S_R}, 4")
    a(f"s_and_b32 s{T5}, s{S_R}, 15")
    a(f"v_and_b32 v14, 7, v{V_LANE}")
    a(f"s_lshl_b32 s{T0}, s{S_X}, 2")
    a(f"s_lshl_b32 s{T1}, s{T4}, 1")
    a(f"s_add_u32 s{T0}, s{T0}, s{T1}")
    a(f"s_lshr_b32 s{T1}, s{S_W}, 2")
    a(f"s_add_u32 s{T0}, s{T0}, s{T1}")
    a(f"s_lshl_b32 s{T0}, s{T0}, 11")
    a(f"s_and_b32 s{T1}, s{S_W}, 3")
    a(f"s_lshl_b32 s{T1}, s{T1}, 6")
    a(f"s_add_u32 s{T0}, s{T0}, s{T1}")
    a(f"s_add_u32 s{T0}, s{T0}, {W_OB}")
    a(f"v_lshlrev_b32 v10, 8, v14")
    a(f"v_add3_u32 v{PA_T2}, v10, v12, s{T0}")
    a(f"s_lshl_b32 s{T0}, s{S_W}, 11")
    a(f"s_add_u32 s{T0}, s{T0}, {L_SC}")
    a(f"v_lshlrev_b32 v10, 8, v2")
    a(f"v_xor_b32 v11, v3, v5")
    a(f"v_lshlrev_b32 v11, 4, v11")
    a(f"v_add3_u32 v{PA_DW}, v10, v11, s{T0}")
    a(f"s_sub_u32 s{T0}, s{S_W}, {R_RED0}")
    a(f"s_lshl_b32 s{T0}, s{T0}, 6")
    a(f"v_add_u32 v10, s{T0}, v{V_LANE}")
    a(f"v_and_b32 v10, 127, v10")
    a(f"v_lshrrev_b32 v11, 4, v10")
    a(f"v_and_b32 v13, 3, v11")
    a(f"v_xor_b32 v13, v13, v10")
    a(f"v_lshlrev_b32 v13, 4, v13")
    a(f"v_add_u32 v{PA_R2}, {L_SC}, v13")
    a(f"s_lshl_b32 s{T0}, s{S_X}, 1")
    a(f"s_add_u32 s{T0}, s{T0}, s{T4}")
    a(f"s_lshl_b32 s{T0}, s{T0}, 15")
    a(f"s_lshl_b32 s{T1}, s{T5}, 8")
    a(f"s_add_u32 s{T0}, s{T0}, s{T1}")
    a(f"s_add_u32 s{T0}, s{T0}, {W_AP}")
    a(f"v_lshrrev_b32 v11, 4, v10")
    a(f"v_lshlrev_b32 v11, 12, v11")
    a(f"v_lshlrev_b32 v13, 4, v2")
    a(f"v_add3_u32 v{PA_P2}, v11, v13, s{T0}")
    a(f"s_lshr_b32 s{T0}, s{S_R}, 2")
    a(f"s_lshl_b32 s{T0}, s{T0}, 12")
    a(f"s_and_b32 s{T1}, s{S_R}, 3")
    a(f"s_lshl_b32 s{T1}, s{T1}, 10")
    a(f"s_add_u32 s{T0}, s{T0}, s{T1}")
    a(f"s_lshl_b32 s{T1}, s{S_W}, 16")
    a(f"s_add_u32 s{T0}, s{T0}, s{T1}")
    a(f"s_add_u32 s{T0}, s{T0}, {W_AP}")
    a(f"v_add_u32 v{PA_T3A}, s{T0}, v{V_VOFF}")
    a(f"v_add_u32 v{PA_T3B}, 32768, v{PA_T3A}")
    RED3=L_RED+4096
    a(f"s_lshl_b32 s{T0}, s{S_W}, 10")
    a(f"s_add_u32 s{T0}, s{T0}, {RED3}")
    a(f"v_add_u32 v{PA_T3W}, s{T0}, v{V_VOFF}")
    a(f"v_add_u32 v{PA_T3R}, {RED3}, v{V_VOFF}")
    a(f"s_lshr_b32 s{T0}, s{S_R}, 2")
    a(f"s_lshl_b32 s{T1}, s{S_X}, 3")
    a(f"s_add_u32 s{T0}, s{T0}, s{T1}")
    a(f"s_lshl_b32 s{T0}, s{T0}, 11")
    a(f"s_and_b32 s{T1}, s{S_R}, 3")
    a(f"s_lshl_b32 s{T1}, s{T1}, 9")
    a(f"s_add_u32 s{T0}, s{T0}, s{T1}")
    a(f"s_add_u32 s{T0}, s{T0}, {W_HB}")
    a(f"v_lshlrev_b32 v10, 3, v{V_LANE}")
    a(f"v_add_u32 v{PA_H}, s{T0}, v10")
    a(f"s_lshr_b32 s{T0}, s{S_R}, 2")
    a(f"s_lshl_b32 s{T0}, s{T0}, 11")
    a(f"s_add_u32 s{T0}, s{T0}, s{T1}")
    a(f"v_add_u32 v9, s{T0}, v10")
    a(f"s_lshl_b32 s{T0}, s{S_X}, 3")
    a(f"s_add_u32 s{T0}, s{T0}, s{S_W}")
    a(f"s_lshl_b32 s{T0}, s{T0}, 11")
    a(f"s_add_u32 s{T0}, s{T0}, {W_HB}")
    a(f"v_lshlrev_b32 v10, 5, v{V_LANE}")
    a(f"v_add_u32 v{PA_T4}, s{T0}, v10")
    a(f"s_mul_i32 s{T2}, s{S_R}, 37")
    a(f"s_lshr_b32 s{T2}, s{T2}, 8")
    a(f"s_mul_i32 s{T3}, s{T2}, 7")
    a(f"s_sub_u32 s{T3}, s{S_R}, s{T3}")
    a(f"s_lshl_b32 s{T0}, s{T2}, 4")
    a(f"v_subrev_u32 v10, s{T0}, v{V_LANE}")
    a(f"v_cmp_gt_u32 {sr(SM_LNB,2)}, 16, v10")
    a(f"s_mul_i32 s{T1}, s{S_W}, {LNB_P}")
    a(f"s_add_u32 s{T1}, s{T1}, {L_LNB}")
    a(f"v_lshlrev_b32 v10, 5, v10")
    a(f"v_add_u32 v{PA_LNBW}, s{T1}, v10")
    a(f"s_lshl_b32 s{T0}, s{S_R}, 1")
    a(f"v_subrev_u32 v10, s{T0}, v{V_LANE}")
    a(f"v_cmp_gt_u32 {sr(SM_HS,2)}, 2, v10")
    a(f"v_lshlrev_b32 v10, 5, v10")
    a(f"v_add_u32 v{PA_HSW}, {L_HS}, v10")
    a(f"v_mul_u32_u24 v10, {LNB_P}, v14")
    a(f"v_add_u32 v10, v10, v12")
    a(f"v_add_u32 v{PA_LNBR}, {L_LNB}, v10")
    a(f"s_mul_i32 s{T0}, s{S_X}, 28")
    a(f"s_add_u32 s{T0}, s{T0}, s{S_R}")
    a(f"s_lshl_b32 s{T0}, s{T0}, 12")
    a(f"s_lshr_b32 s{T1}, s{S_W}, 2")
    a(f"s_lshl_b32 s{T1}, s{T1}, 11")
    a(f"s_add_u32 s{T0}, s{T0}, s{T1}")
    a(f"s_and_b32 s{T1}, s{S_W}, 3")
    a(f"s_lshl_b32 s{T1}, s{T1}, 6")
    a(f"s_add_u32 s{T0}, s{T0}, s{T1}")
    a(f"s_add_u32 s{T0}, s{T0}, {W_GP}")
    a(f"v_lshlrev_b32 v10, 8, v2")
    a(f"v_add3_u32 v{PA_GP}, v10, v12, s{T0}")
    a(f"s_mul_i32 s{T0}, s{S_X}, 28")
    a(f"s_add_u32 s{T0}, s{T0}, s{T3}")
    a(f"s_lshl_b32 s{T0}, s{T0}, 12")
    a(f"s_lshl_b32 s{T1}, s{T2}, 9")
    a(f"s_add_u32 s{T0}, s{T0}, s{T1}")
    a(f"s_add_u32 s{T0}, s{T0}, {W_GP}")
    a(f"v_lshrrev_b32 v10, 5, v{V_LANE}")
    a(f"v_and_b32 v11, 31, v{V_LANE}")
    a(f"v_lshlrev_b32 v13, 8, v10")
    a(f"v_lshlrev_b32 v15, 3, v11")
    a(f"v_add3_u32 v{PA_T5B}, v13, v15, s{T0}")
    for k in range(1,4):
        a(f"v_add_u32 v{PA_T5B+k}, {k*7*4096}, v{PA_T5B}")
    a(f"s_lshl_b32 s{T0}, s{S_X}, 3")
    a(f"s_lshl_b32 s{T1}, s{T2}, 1")
    a(f"s_add_u32 s{T0}, s{T0}, s{T1}")
    a(f"s_mul_i32 s{T0}, s{T0}, 896")
    a(f"s_lshl_b32 s{T1}, s{T3}, 7")
    a(f"s_add_u32 s{T0}, s{T0}, s{T1}")
    a(f"s_add_u32 s{T0}, s{T0}, {W_ACT}")
    a(f"v_mul_u32_u24 v13, 896, v10")
    a(f"v_lshlrev_b32 v15, 2, v11")
    a(f"v_add3_u32 v{PA_ACT}, v13, v15, s{T0}")
    a(f"s_mul_i32 s{T0}, s{S_X}, {8*896}")
    a(f"s_mul_i32 s{T1}, s{T4}, 448")
    a(f"s_add_u32 s{T0}, s{T0}, s{T1}")
    a(f"s_lshl_b32 s{T1}, s{S_W}, 6")
    a(f"s_add_u32 s{T0}, s{T0}, s{T1}")
    a(f"s_add_u32 s{T0}, s{T0}, {W_ACT}")
    a(f"v_mul_u32_u24 v13, 896, v14")
    a(f"v_add3_u32 v{PA_T6}, v13, v12, s{T0}")
    a(f"s_lshl_b32 s{T0}, s{S_X}, 12")
    a(f"s_lshl_b32 s{T1}, s{S_R}, 7")
    a(f"s_add_u32 s{T0}, s{T0}, s{T1}")
    a(f"s_add_u32 s{T0}, s{T0}, {W_DP}")
    a(f"v_lshlrev_b32 v13, 18, v10")
    a(f"v_lshlrev_b32 v15, 2, v11")
    a(f"v_add3_u32 v{PA_T7}, v13, v15, s{T0}")
    for k in range(1,8):
        a(f"v_add_u32 v{PA_T7+k}, {k*32768}, v{PA_T7}")
    a(f"s_lshl_b32 s{T0}, s{S_X}, 11")
    a(f"s_lshl_b32 s{T1}, s{S_R}, 6")
    a(f"s_add_u32 s{T0}, s{T0}, s{T1}")
    a(f"v_lshlrev_b32 v15, 1, v11")
    a(f"v_add_u32 v{PA_OUT}, s{T0}, v15")
    a(f"v_add_u32 v{PA_HSR}, {L_HS}, v15")

def emit_codepf(a, cfg, lab, first, last):
    a(f"s_getpc_b64 {sr(S_B1,2)}")
    a(f"{lab}:")
    a(f"s_add_u32 s{S_B1}, s{S_B1}, ({first}-{lab})&0xffffffff")
    a(f"s_addc_u32 s{S_B1+1}, s{S_B1+1}, ({first}-{lab})>>32")
    a(f"v_lshlrev_b32 v10, 6, v{V_LANE}")
    a(f"s_mov_b32 s{S_T0}, {last}-{first}")
    a(f"{lab}_loop:")
    a(f"v_cmp_gt_u32 vcc, s{S_T0}, v10")
    a(f"s_and_saveexec_b64 {sr(S_EX,2)}, vcc")
    a(f"s_cbranch_execz {lab}_done")
    a(f"global_load_dword v11, v10, {sr(S_B1,2)}")
    a(f"s_mov_b64 exec, {sr(S_EX,2)}")
    a(f"v_add_u32 v10, 4096, v10")
    a(f"s_branch {lab}_loop")
    a(f"{lab}_done:")
    a(f"s_mov_b64 exec, {sr(S_EX,2)}")
    a("s_waitcnt vmcnt(0)")

def emit_rdycheck(a, cfg):
    f=1 if cfg.FASTMODE else 0
    a(f"s_cmp_lg_u32 s{S_W}, 4")
    a("s_cbranch_scc1 L_rdy_b")
    a(f"s_cmp_lg_u32 s{S_R}, 0")
    a("s_cbranch_scc1 L_rdy_done")
    a(f"s_lshl_b32 s{S_T0}, s{S_X}, 9")
    a(f"s_add_u32 s{S_T0}, s{S_T0}, {W_RDY}")
    a(f"v_and_b32 v10, 31, v{V_LANE}")
    a(f"v_lshlrev_b32 v10, 4, v10")
    a(f"v_add_u32 v10, s{S_T0}, v10")
    lp=a.label("rdy"); dn=a.label("rdyok")
    a(f"s_mov_b32 s{S_SPIN}, {cfg.SPIN}")
    a(f"{lp}:")
    a(f"global_load_dwordx4 {vr(V_RDY,4)}, v10, {sr(P_WS,2)} sc1")
    a("s_waitcnt vmcnt(0)")
    a(f"v_xor_b32 v11, s{S_TAG}, v{V_RDY+2}")
    a(f"v_xor_b32 v15, s{S_TAG+1}, v{V_RDY+3}")
    a(f"v_or_b32 v11, v11, v15")
    a(f"v_cmp_ne_u32 vcc, 0, v11")
    a(f"s_cbranch_vccz {dn}")
    a("s_sleep 16")
    a(f"s_sub_u32 s{S_SPIN}, s{S_SPIN}, 1")
    a(f"s_cmp_lg_u32 s{S_SPIN}, 0")
    a(f"s_cbranch_scc1 {lp}")
    a(f"{dn}:")
    a(f"v_readfirstlane_b32 s{S_T0}, v{V_RDY}")
    a("s_nop 1")
    a(f"v_cmp_ne_u32 vcc, s{S_T0}, v{V_RDY}")
    a(f"s_mov_b32 s{S_T2}, {f}")
    a("s_nop 1")
    a(f"s_cmp_eq_u64 vcc, 0")
    a(f"s_cselect_b32 s{S_T2}, s{S_T2}, 0")
    a(f"s_lshl_b32 s{S_T0}, s{S_X}, 4")
    a(f"s_add_u32 s{S_T0}, s{S_T0}, {W_GRDY}")
    a(f"v_mov_b32 v10, s{S_T0}")
    a(f"v_mov_b32 v12, s{S_T2}")
    a(f"v_mov_b32 v13, 0")
    a(f"v_mov_b32 v14, s{S_TAG}")
    a(f"v_mov_b32 v15, s{S_TAG+1}")
    set_exec(a,1,0)
    a(f"global_store_dwordx4 v10, v[12:15], {sr(P_WS,2)} sc1")
    full_exec(a)
    a("s_branch L_rdy_done")
    a("L_rdy_b:")
    a(f"s_cmp_lg_u32 s{S_W}, 5")
    a("s_cbranch_scc1 L_rdy_done")
    a(f"v_and_b32 v10, 7, v{V_LANE}")
    a(f"v_lshlrev_b32 v10, 4, v10")
    a(f"v_add_u32 v10, {W_GRDY}, v10")
    lp=a.label("grdy"); dn=a.label("grdyok")
    a(f"s_mov_b32 s{S_SPIN}, {cfg.SPIN}")
    a(f"{lp}:")
    set_exec(a,"0xff",0)
    a(f"global_load_dwordx4 {vr(V_RDY,4)}, v10, {sr(P_WS,2)} sc1")
    a("s_waitcnt vmcnt(0)")
    a(f"v_xor_b32 v11, s{S_TAG}, v{V_RDY+2}")
    a(f"v_xor_b32 v15, s{S_TAG+1}, v{V_RDY+3}")
    a(f"v_or_b32 v11, v11, v15")
    a(f"v_cmp_ne_u32 vcc, 0, v11")
    full_exec(a)
    a(f"s_cbranch_vccz {dn}")
    a("s_sleep 64")
    a(f"s_sub_u32 s{S_SPIN}, s{S_SPIN}, 1")
    a(f"s_cmp_lg_u32 s{S_SPIN}, 0")
    a(f"s_cbranch_scc1 {lp}")
    a(f"{dn}:")
    a(f"v_readlane_b32 s{S_T2}, v{V_RDY}, s{S_X}")
    a(f"v_mov_b32 v10, {L_MODE}")
    a("s_nop 1")
    a(f"s_add_u32 s{S_T2}, s{S_T2}, 1")
    a(f"v_mov_b32 v12, s{S_T2}")
    a(f"ds_write_b32 v10, v12")
    a("L_rdy_done:")

def poll_masked(a, name, loads, regs, cfg, tmp, nloads=1, stagger=0):
    lp=a.label(name+"_poll"); dn=a.label(name+"_ok")
    a(f"s_mov_b64 {sr(S_EX,2)}, exec")
    a(f"s_mov_b32 s{S_SPIN}, {cfg.SPIN}")
    if stagger:
        loads()
        a(f"s_sleep {stagger}")
    a(f"{lp}:")
    loads()
    a(f"s_waitcnt vmcnt({nloads if stagger else 0})")
    rs=list(regs)
    if len(rs)>=3:
        a(f"v_max3_u32 v{tmp}, v{rs[0]}, v{rs[1]}, v{rs[2]}"); i=3
    else:
        a(f"v_max_u32 v{tmp}, v{rs[0]}, v{rs[1]}"); i=2
    while i<len(rs):
        if i+1<len(rs):
            a(f"v_max3_u32 v{tmp}, v{tmp}, v{rs[i]}, v{rs[i+1]}"); i+=2
        else:
            a(f"v_max_u32 v{tmp}, v{tmp}, v{rs[i]}"); i+=1
    a(f"v_cmp_eq_u32 vcc, -1, v{tmp}")
    a(f"s_mov_b64 exec, vcc")
    a(f"s_cbranch_execz {dn}")
    if cfg.PSLEEP: a(f"s_sleep {cfg.PSLEEP}")
    a(f"s_sub_u32 s{S_SPIN}, s{S_SPIN}, 1")
    a(f"s_cmp_lg_u32 s{S_SPIN}, 0")
    a(f"s_cbranch_scc1 {lp}")
    a(f"{dn}:")
    a(f"s_mov_b64 exec, {sr(S_EX,2)}")

def frag_reads(a, which):
    WB=V_RING; WO_F=WB; GU_F=WB+16; WD_F=WB+48
    if "o" in which:
        a(f"s_lshl_b32 s{S_T0}, s{S_W}, 12")
        a(f"s_add_u32 s{S_T1}, s{S_T0}, {L_WO}")
        a(f"v_add_u32 v13, s{S_T1}, v{PA_TR}")
        for t in range(4):
            for hf in range(2):
                a(f"ds_read_b64_tr_b16 {vr(WO_F+4*t+2*hf,2)}, v13 offset:{hf*4*128+32*t}")
    if "g" in which:
        a(f"s_lshr_b32 s{S_T0}, s{S_W}, 2")
        a(f"s_lshl_b32 s{S_T0}, s{S_T0}, 15")
        a(f"s_and_b32 s{S_T1}, s{S_W}, 3")
        a(f"s_lshl_b32 s{S_T1}, s{S_T1}, 5")
        a(f"s_add_u32 s{S_T0}, s{S_T0}, s{S_T1}")
        a(f"s_add_u32 s{S_T0}, s{S_T0}, {L_WG}")
        a(f"v_add_u32 v15, s{S_T0}, v{PA_TR}")
        for s in range(8):
            for hf in range(2):
                a(f"ds_read_b64_tr_b16 {vr(GU_F+4*s+2*hf,2)}, v15 offset:{(32*s+4*hf)*128}")
    if "d" in which:
        a(f"s_lshl_b32 s{S_T0}, s{S_W}, 12")
        a(f"s_add_u32 s{S_T1}, s{S_T0}, {L_WD}")
        a(f"v_add_u32 v11, s{S_T1}, v{PA_TR}")
        for t in range(4):
            for hf in range(2):
                a(f"ds_read_b64_tr_b16 {vr(WD_F+4*t+2*hf,2)}, v11 offset:{hf*4*128+32*t}")

def layernorm2(a, vin, vf, vout, t):
    for i in range(8):
        a(f"v_lshlrev_b32 v{vf+2*i}, 16, v{vin+i}")
        a(f"v_and_b32 v{vf+2*i+1}, 0xffff0000, v{vin+i}")
    a(f"v_readfirstlane_b32 s{S_T4}, v{vf}")
    a("s_nop 1")
    a(f"v_mov_b32 v{t+6}, s{S_T4}")
    a(f"v_mov_b32 v{t+7}, s{S_T4}")
    for i in range(8):
        a(f"v_pk_add_f32 {vr(vf+2*i,2)}, {vr(vf+2*i,2)}, {vr(t+6,2)} neg_lo:[0,1] neg_hi:[0,1]")
    a(f"v_pk_add_f32 {vr(t,2)}, {vr(vf,2)}, {vr(vf+2,2)}")
    a(f"v_pk_mul_f32 {vr(t+2,2)}, {vr(vf,2)}, {vr(vf,2)}")
    a(f"v_pk_fma_f32 {vr(t+2,2)}, {vr(vf+2,2)}, {vr(vf+2,2)}, {vr(t+2,2)}")
    for i in range(2,8):
        a(f"v_pk_add_f32 {vr(t,2)}, {vr(t,2)}, {vr(vf+2*i,2)}")
        a(f"v_pk_fma_f32 {vr(t+2,2)}, {vr(vf+2*i,2)}, {vr(vf+2*i,2)}, {vr(t+2,2)}")
    a(f"v_add_f32 v{t}, v{t}, v{t+1}")
    a(f"v_add_f32 v{t+2}, v{t+2}, v{t+3}")
    for k in (8,4,2,1):
        a("s_nop 0")
        a(f"v_add_f32_dpp v{t}, v{t}, v{t} row_ror:{k} row_mask:0xf bank_mask:0xf")
        a("s_nop 0") if False else None
        a(f"v_add_f32_dpp v{t+2}, v{t+2}, v{t+2} row_ror:{k} row_mask:0xf bank_mask:0xf")
    a(f"v_mov_b32 v{t+1}, v{t}")
    a(f"v_mov_b32 v{t+3}, v{t+2}")
    a("s_nop 1")
    a(f"v_permlane16_swap_b32 v{t}, v{t+1}")
    a(f"v_permlane16_swap_b32 v{t+2}, v{t+3}")
    a("s_nop 1")
    a(f"v_add_f32 v{t}, v{t}, v{t+1}")
    a(f"v_add_f32 v{t+2}, v{t+2}, v{t+3}")
    a(f"v_mov_b32 v{t+1}, v{t}")
    a(f"v_mov_b32 v{t+3}, v{t+2}")
    a("s_nop 1")
    a(f"v_permlane32_swap_b32 v{t}, v{t+1}")
    a(f"v_permlane32_swap_b32 v{t+2}, v{t+3}")
    a("s_nop 1")
    a(f"v_add_f32 v{t}, v{t}, v{t+1}")
    a(f"v_add_f32 v{t+2}, v{t+2}, v{t+3}")
    a(f"v_mul_f32 v{t}, 0x3a800000, v{t}")
    a(f"v_mul_f32 v{t+2}, 0x3a800000, v{t+2}")
    a(f"v_fma_f32 v{t+2}, -v{t}, v{t}, v{t+2}")
    a(f"v_add_f32 v{t}, v{t}, v{t+6}")
    a(f"v_max_f32 v{t+2}, 0, v{t+2}")
    a(f"v_cvt_pk_bf16_f32 v{t}, v{t}, v{t+2}")
    a(f"v_and_b32 v{t+2}, 0xffff0000, v{t}")
    a(f"v_lshlrev_b32 v{t}, 16, v{t}")
    a(f"v_add_f32 v{t+2}, 0x3727c5ac, v{t+2}")
    round_bf16(a, t+2, t+2)
    a(f"v_sqrt_f32 v{t+2}, v{t+2}")
    a(f"v_mov_b32 v{t+1}, v{t}")
    round_bf16(a, t+2, t+2)
    a(f"v_rcp_f32 v{t+2}, v{t+2}")
    a("s_nop 0")
    a(f"v_mov_b32 v{t+3}, v{t+2}")
    for i in range(8):
        a(f"v_lshlrev_b32 v{vf+2*i}, 16, v{vin+i}")
        a(f"v_and_b32 v{vf+2*i+1}, 0xffff0000, v{vin+i}")
        a(f"v_pk_add_f32 {vr(vf+2*i,2)}, {vr(vf+2*i,2)}, {vr(t,2)} neg_lo:[0,1] neg_hi:[0,1]")
        a(f"v_cvt_pk_bf16_f32 v{t+4}, v{vf+2*i}, v{vf+2*i+1}")
        a(f"v_lshlrev_b32 v{vf+2*i}, 16, v{t+4}")
        a(f"v_and_b32 v{vf+2*i+1}, 0xffff0000, v{t+4}")
        a(f"v_pk_mul_f32 {vr(vf+2*i,2)}, {vr(vf+2*i,2)}, {vr(t+2,2)}")
        a(f"v_cvt_pk_bf16_f32 v{vout+i}, v{vf+2*i}, v{vf+2*i+1}")

def gen_tail(a, cfg):
    WB=V_RING; WO_F=WB; GU_F=WB+16; WD_F=WB+48
    TT=V_RING+64
    TMP=V_T+23
    NSW=cfg.NSW
    a(f"s_cmp_ge_u32 s{S_W}, {NSW}")
    a("s_cbranch_scc1 L_t0_b5")
    a("s_nop 7")
    set_exec(a, -1, 0)
    a(f"ds_write_b128 v{PA_OW}, {vr(V_OACC,4)}")
    full_exec(a)
    a("s_waitcnt lgkmcnt(0)")
    a("L_t0_b5:")
    a("s_barrier")
    a(f"s_cmp_lg_u32 s{S_W}, {R_T1}")
    a("s_cbranch_scc1 L_t1_done")
    for w in range(8):
        a(f"ds_read_b64 {vr(TT+2*w,2)}, v{PA_OR} offset:{w*512}")
    a("s_waitcnt lgkmcnt(0)")
    a(f"v_pk_add_f32 {vr(TT,2)}, {vr(TT,2)}, {vr(TT+2,2)}")
    a(f"v_pk_add_f32 {vr(TT+4,2)}, {vr(TT+4,2)}, {vr(TT+6,2)}")
    a(f"v_pk_add_f32 {vr(TT+8,2)}, {vr(TT+8,2)}, {vr(TT+10,2)}")
    a(f"v_pk_add_f32 {vr(TT+12,2)}, {vr(TT+12,2)}, {vr(TT+14,2)}")
    a(f"v_pk_add_f32 {vr(TT,2)}, {vr(TT,2)}, {vr(TT+4,2)}")
    a(f"v_pk_add_f32 {vr(TT+8,2)}, {vr(TT+8,2)}, {vr(TT+12,2)}")
    a(f"v_pk_add_f32 {vr(TT,2)}, {vr(TT,2)}, {vr(TT+8,2)}")
    a(f"v_cvt_pk_bf16_f32 v{TT}, v{TT}, v{TT+1}")
    a(f"v_min_u32 v{TT}, -2, v{TT}")
    store_mode(a, f"global_store_dword v{PA_O}, v{TT}, {sr(P_WS,2)}", True)
    a("L_t1_done:")
    stamp(a,cfg,6)
    a(f"s_cmp_ge_u32 s{S_W}, {NSW}")
    a("s_cbranch_scc1 L_t2_go")
    frag_reads(a,"ogd")
    a("L_t2_go:")
    poll_masked(a,"t2", lambda: a(f"global_load_dwordx4 {vr(TT+32,4)}, v{PA_T2}, {sr(P_WS,2)} sc1"), range(TT+32,TT+36), cfg, TMP, 1, cfg.PIPE_I)
    if cfg.TAILDIAG: stamp(a,cfg,9)
    a("s_waitcnt lgkmcnt(0)")
    def gemm4_reduce_publish(F, B, dp, nw, lab):
        off=16384 if dp else 0
        for t in range(4):
            a(f"v_mfma_f32_16x16x32_bf16 {vr(TT+4*t,4)}, {vr(F+4*t,4)}, {vr(B,4)}, 0")
        if nw<8:
            a(f"s_cmp_ge_u32 s{S_W}, {nw}")
            a(f"s_cbranch_scc1 {lab}_nw")
        set_exec(a, "0x00ff00ff", "0x00ff00ff")
        a("s_nop 2")
        for t in range(4):
            a(f"ds_write_b128 v{PA_DW}, {vr(TT+4*t,4)} offset:{off+64*t}")

        full_exec(a)
        a(f"{lab}_nw:")
        a("s_waitcnt lgkmcnt(0)")
        a("s_barrier")
        a(f"s_sub_u32 s{S_T0}, s{S_W}, {R_RED0}")
        a(f"s_cmp_ge_u32 s{S_T0}, 2")
        a(f"s_cbranch_scc1 {lab}_skip")
        for w in range(nw):
            a(f"ds_read_b128 {vr(TT+4*w,4)}, v{PA_R2} offset:{off+w*2048}")
        if dp: a(f"v_add_u32 v10, {W_DP-W_AP}, v{PA_P2}")
        a("s_waitcnt lgkmcnt(0)")
        n=nw
        step=1
        idx=list(range(nw))
        while len(idx)>1:
            nxt=[]
            for i in range(0,len(idx)-1,2):
                d,s_=idx[i],idx[i+1]
                a(f"v_pk_add_f32 {vr(TT+4*d,2)}, {vr(TT+4*d,2)}, {vr(TT+4*s_,2)}")
                a(f"v_pk_add_f32 {vr(TT+4*d+2,2)}, {vr(TT+4*d+2,2)}, {vr(TT+4*s_+2,2)}")
                nxt.append(d)
            if len(idx)%2: nxt.append(idx[-1])
            idx=nxt
        for c in range(4):
            a(f"v_min_u32 v{TT+c}, -2, v{TT+c}")
        a(f"global_store_dwordx4 v{10 if dp else PA_P2}, {vr(TT,4)}, {sr(P_WS,2)} sc1")
        a(f"{lab}_skip:")
    gemm4_reduce_publish(WO_F, TT+32, False, 8, "L_t2")
    stamp(a,cfg,7)
    def ld3():
        a(f"global_load_dwordx4 {vr(TT+32,4)}, v{PA_T3A}, {sr(P_WS,2)} sc1")
        a(f"global_load_dwordx4 {vr(TT+36,4)}, v{PA_T3B}, {sr(P_WS,2)} sc1")
    poll_masked(a,"t3", ld3, range(TT+32,TT+40), cfg, TMP, 2, cfg.PIPE_X)
    if cfg.TAILDIAG: stamp(a,cfg,13)
    a(f"v_pk_add_f32 {vr(TT+40,2)}, {vr(TT+32,2)}, {vr(TT+36,2)}")
    a(f"v_pk_add_f32 {vr(TT+42,2)}, {vr(TT+34,2)}, {vr(TT+38,2)}")
    a(f"ds_write_b128 v{PA_T3W}, {vr(TT+40,4)}")
    a("s_waitcnt lgkmcnt(0)")
    a("s_barrier")
    a(f"s_cmp_lg_u32 s{S_W}, {R_W0}")
    a("s_cbranch_scc1 L_t3_skip")
    for w in range(8):
        a(f"ds_read_b128 {vr(TT+4*w,4)}, v{PA_T3R} offset:{w*1024}")
    a(f"v_lshlrev_b32 v{TT+40}, 16, v{V_XRES}")
    a(f"v_and_b32 v{TT+41}, 0xffff0000, v{V_XRES}")
    a(f"v_lshlrev_b32 v{TT+42}, 16, v{V_XRES+1}")
    a(f"v_and_b32 v{TT+43}, 0xffff0000, v{V_XRES+1}")
    a("s_waitcnt lgkmcnt(0)")
    for (d,s_) in ((0,1),(2,3),(4,5),(6,7),(0,2),(4,6),(0,4)):
        a(f"v_pk_add_f32 {vr(TT+4*d,2)}, {vr(TT+4*d,2)}, {vr(TT+4*s_,2)}")
        a(f"v_pk_add_f32 {vr(TT+4*d+2,2)}, {vr(TT+4*d+2,2)}, {vr(TT+4*s_+2,2)}")
    a(f"v_cvt_pk_bf16_f32 v{TT+4}, v{TT}, v{TT+1}")
    a(f"v_cvt_pk_bf16_f32 v{TT+5}, v{TT+2}, v{TT+3}")
    a(f"v_lshlrev_b32 v{TT+8}, 16, v{TT+4}")
    a(f"v_and_b32 v{TT+9}, 0xffff0000, v{TT+4}")
    a(f"v_lshlrev_b32 v{TT+10}, 16, v{TT+5}")
    a(f"v_and_b32 v{TT+11}, 0xffff0000, v{TT+5}")
    a(f"v_pk_add_f32 {vr(TT+8,2)}, {vr(TT+8,2)}, {vr(TT+40,2)}")
    a(f"v_pk_add_f32 {vr(TT+10,2)}, {vr(TT+10,2)}, {vr(TT+42,2)}")
    a(f"v_cvt_pk_bf16_f32 v{TT+6}, v{TT+8}, v{TT+9}")
    a(f"v_cvt_pk_bf16_f32 v{TT+7}, v{TT+10}, v{TT+11}")
    a(f"v_min_u32 v{TT+6}, -2, v{TT+6}")
    a(f"v_min_u32 v{TT+7}, -2, v{TT+7}")
    store_mode(a, f"global_store_dwordx2 v{PA_H}, {vr(TT+6,2)}, {sr(P_WS,2)}", True)
    a("L_t3_skip:")
    stamp(a,cfg,8)
    def ld4():
        a(f"global_load_dwordx4 {vr(TT,4)}, v{PA_T4}, {sr(P_WS,2)} sc1")
        a(f"global_load_dwordx4 {vr(TT+4,4)}, v{PA_T4}, {sr(P_WS,2)} offset:16 sc1")
    poll_masked(a,"t4", ld4, range(TT,TT+8), cfg, TMP, 2, cfg.PIPE_I)
    if cfg.TAILDIAG: stamp(a,cfg,14)
    a(f"s_cmp_lg_u32 s{S_W}, s{S_X}")
    a("s_cbranch_scc1 L_t4_nohs")
    a(f"s_mov_b64 exec, {sr(SM_HS,2)}")
    a(f"ds_write_b128 v{PA_HSW}, {vr(TT,4)}")
    a(f"ds_write_b128 v{PA_HSW}, {vr(TT+4,4)} offset:16")
    full_exec(a)
    a("L_t4_nohs:")
    a(f"s_cmp_ge_u32 s{S_R}, 28")
    a("s_cbranch_scc1 L_t5_skip_all")
    layernorm2(a, TT, TT+8, TT+24, V_T)
    a(f"s_mov_b64 exec, {sr(SM_LNB,2)}")
    a(f"ds_write_b128 v{PA_LNBW}, {vr(TT+24,4)}")
    a(f"ds_write_b128 v{PA_LNBW}, {vr(TT+28,4)} offset:16")
    full_exec(a)
    a("s_waitcnt lgkmcnt(0)")
    a("s_barrier")
    if not cfg.TAILDIAG: stamp(a,cfg,9)
    if cfg.TAILDIAG: stamp(a,cfg,1)
    a("s_waitcnt vmcnt(0)")
    for s in range(8):
        a(f"ds_read_b128 {vr(TT+4*s,4)}, v{PA_LNBR} offset:{64*s}")
    for s in range(8):
        c="0" if s<2 else vr(V_T+4*(s%2),4)
        a(f"s_waitcnt lgkmcnt({7-s})")
        a(f"v_mfma_f32_16x16x32_bf16 {vr(V_T+4*(s%2),4)}, {vr(GU_F+4*s,4)}, {vr(TT+4*s,4)}, {c}")
    a("s_nop 7")
    a(f"v_pk_add_f32 {vr(V_T,2)}, {vr(V_T,2)}, {vr(V_T+4,2)}")
    a(f"v_pk_add_f32 {vr(V_T+2,2)}, {vr(V_T+2,2)}, {vr(V_T+6,2)}")
    for c in range(4):
        a(f"v_min_u32 v{V_T+c}, -2, v{V_T+c}")
    set_exec(a, "0x00ff00ff", "0x00ff00ff")
    store_mode(a, f"global_store_dwordx4 v{PA_GP}, {vr(V_T,4)}, {sr(P_WS,2)}", True)
    full_exec(a)
    a(f"s_cmp_lg_u32 s{S_W}, {R_W0}")
    a("s_cbranch_scc1 L_t5_skip_all")
    a(f"s_mov_b32 s{S_T0}, 0x3d372713")
    a(f"s_mov_b32 s{S_T1}, 0xc0135761")
    def ld5():
        for k in range(4):
            for m in range(2):
                a(f"global_load_dwordx2 {vr(TT+(k*2+m)*2,2)}, v{PA_T5B+k}, {sr(P_WS,2)} offset:{m*2048} sc1")
    poll_masked(a,"t5", ld5, range(TT,TT+16), cfg, TMP, 8, cfg.PIPE_I)
    if cfg.TAILDIAG: stamp(a,cfg,2)
    for h_ in range(2):
        a(f"v_pk_add_f32 {vr(TT+16+2*h_,2)}, {vr(TT+2*h_,2)}, {vr(TT+4+2*h_,2)}")
        a(f"v_pk_add_f32 {vr(TT+20+2*h_,2)}, {vr(TT+8+2*h_,2)}, {vr(TT+12+2*h_,2)}")
        a(f"v_pk_add_f32 {vr(TT+16+2*h_,2)}, {vr(TT+16+2*h_,2)}, {vr(TT+20+2*h_,2)}")
    G=TT+16; U=TT+18; X=TT+20
    TT_=TT; TT=TT+16
    a(f"v_cvt_pk_bf16_f32 v{TT+8}, v{G}, v{G+1}")
    a(f"v_cvt_pk_bf16_f32 v{TT+9}, v{U}, v{U+1}")
    a(f"v_lshlrev_b32 v{G}, 16, v{TT+8}")
    a(f"v_and_b32 v{G+1}, 0xffff0000, v{TT+8}")
    a(f"v_lshlrev_b32 v{U}, 16, v{TT+9}")
    a(f"v_and_b32 v{U+1}, 0xffff0000, v{TT+9}")
    a(f"v_pk_mul_f32 {vr(X,2)}, {vr(G,2)}, {vr(G,2)}")
    a(f"v_pk_mul_f32 {vr(X,2)}, {vr(X,2)}, {vr(G,2)}")
    for c in range(2):
        a(f"v_fma_f32 v{X+c}, v{X+c}, s{S_T0}, v{G+c}")
    for c in range(2):
        a(f"v_mul_f32 v{X+c}, s{S_T1}, v{X+c}")
    for c in range(2):
        a(f"v_exp_f32 v{X+c}, v{X+c}")
    a("s_nop 0")
    for c in range(2):
        a(f"v_add_f32 v{X+c}, 1.0, v{X+c}")
    for c in range(2):
        a(f"v_rcp_f32 v{X+c}, v{X+c}")
    a("s_nop 0")
    a(f"v_pk_mul_f32 {vr(X,2)}, {vr(X,2)}, {vr(G,2)}")
    a(f"v_cvt_pk_bf16_f32 v{TT+8}, v{X}, v{X+1}")
    a(f"v_lshlrev_b32 v{X}, 16, v{TT+8}")
    a(f"v_and_b32 v{X+1}, 0xffff0000, v{TT+8}")
    a(f"v_pk_mul_f32 {vr(X,2)}, {vr(X,2)}, {vr(U,2)}")
    a(f"v_cvt_pk_bf16_f32 v{X}, v{X}, v{X+1}")
    a(f"v_min_u32 v{X}, -2, v{X}")
    store_mode(a, f"global_store_dword v{PA_ACT}, v{X}, {sr(P_WS,2)}", True)
    TT=TT_
    a("L_t5_skip_all:")
    stamp(a,cfg,10)
    a(f"s_cmp_ge_u32 s{S_W}, 7")
    a("s_cbranch_scc1 L_t6_nopoll")
    poll_masked(a,"t6", lambda: a(f"global_load_dwordx4 {vr(TT+32,4)}, v{PA_T6}, {sr(P_WS,2)} sc1"), range(TT+32,TT+36), cfg, TMP, 1, cfg.PIPE_I)
    if cfg.TAILDIAG: stamp(a,cfg,3)
    a("L_t6_nopoll:")
    gemm4_reduce_publish(WD_F, TT+32, True, 7, "L_t6")
    stamp(a,cfg,11)
    a(f"s_cmp_lg_u32 s{S_W}, {R_W0}")
    a("s_cbranch_scc1 L_fin")
    a(f"ds_read_u16 v{TT+10}, v{PA_HSR}")
    def ld7():
        for k in range(8):
            a(f"global_load_dword v{TT+k}, v{PA_T7+k}, {sr(P_WS,2)} sc1")
    poll_masked(a,"t7", ld7, range(TT,TT+8), cfg, TMP, 8, cfg.PIPE_X)
    if cfg.TAILDIAG: stamp(a,cfg,4)
    Z=TT+16
    a(f"v_pk_add_f32 {vr(Z,2)}, {vr(TT,2)}, {vr(TT+2,2)}")
    a(f"v_pk_add_f32 {vr(Z+2,2)}, {vr(TT+4,2)}, {vr(TT+6,2)}")
    a(f"v_pk_add_f32 {vr(Z,2)}, {vr(Z,2)}, {vr(Z+2,2)}")
    a(f"v_add_f32 v{Z}, v{Z}, v{Z+1}")
    a(f"v_mov_b32 v{Z+1}, v{Z}")
    a("s_waitcnt lgkmcnt(0)")
    a("s_nop 0")
    a(f"v_permlane32_swap_b32 v{Z}, v{Z+1}")
    a(f"v_lshlrev_b32 v{TT+10}, 16, v{TT+10}")
    a(f"v_add_f32 v{Z}, v{Z}, v{Z+1}")
    round_bf16(a,Z,Z)
    a(f"v_add_f32 v{Z}, v{Z}, v{TT+10}")
    a(f"v_cvt_pk_bf16_f32 v{Z}, v{Z}, v{Z}")
    set_exec(a, -1, 0)
    a(f"global_store_short v{PA_OUT}, v{Z}, {sr(P_OUT,2)}")
    full_exec(a)
    a(f"s_cmp_lg_u32 s{S_ID}, 0")
    a("s_cbranch_scc1 L_fin")
    a(f"v_mov_b32 v10, {W_EPOCH}")
    a(f"v_mov_b32 v12, s{S_TAG}")
    a(f"v_mov_b32 v13, s{S_TAG+1}")
    set_exec(a, 1, 0)
    a(f"global_store_dwordx2 v10, v[12:13], {sr(P_WS,2)} sc1")
    full_exec(a)
    a("L_fin:")
    TTX=160
    if cfg.STAMPS and cfg.DBGSTAMP:
        stamp(a,cfg,12)
        a("s_waitcnt lgkmcnt(0)")
        a(f"s_cmp_lg_u32 s{S_W}, 0")
        a("s_cbranch_scc1 L_exit")
        lst=[0,1,2,4,6,7,8,10,11,12]
        for i,k in enumerate(lst):
            if k==0:
                a(f"s_not_b32 s{S_T0}, s72")
                a(f"v_mov_b32 v{TTX}, s{S_T0}")
            else:
                a(f"v_mov_b32 v{TTX}, s{72+2*k}")
            a(f"v_mov_b32 v10, {4*i}")
            set_exec(a,1,0)
            a(f"global_atomic_umax v10, v{TTX}, {sr(P_DBG,2)} sc1")
            full_exec(a)
        a(f"v_mov_b32 v{TTX}, s72")
        a(f"v_mov_b32 v10, 40")
        set_exec(a,1,0)
        a(f"global_atomic_umax v10, v{TTX}, {sr(P_DBG,2)} sc1")
        full_exec(a)
        a(f"s_not_b32 s{S_T0}, s{72+12}")
        a(f"v_mov_b32 v{TTX}, s{S_T0}")
        a(f"v_mov_b32 v10, 44")
        set_exec(a,1,0)
        a(f"global_atomic_umax v10, v{TTX}, {sr(P_DBG,2)} sc1")
        full_exec(a)
    elif cfg.STAMPS:
        stamp(a,cfg,12)
        a("s_waitcnt lgkmcnt(0)")
        for k in range(15):
            a(f"v_mov_b32 v{TTX}, s{72+2*k}")
            a(f"v_mov_b32 v{TTX+1}, s{73+2*k}")
            a(f"s_lshl_b32 s{S_T0}, s{S_ID}, 3")
            a(f"s_add_u32 s{S_T0}, s{S_T0}, s{S_W}")
            a(f"s_lshl_b32 s{S_T0}, s{S_T0}, 7")
            a(f"s_add_u32 s{S_T0}, s{S_T0}, {W_STAMP+8*k}")
            a(f"v_mov_b32 v10, s{S_T0}")
            set_exec(a,1,0)
            a(f"global_store_dwordx2 v10, {vr(TTX,2)}, {sr(P_WS,2)}")
            full_exec(a)
    a("L_exit:")
    a("s_endpgm")

HEADER = open("sequential_preLN__mha_block_cached__geglu_ffn__decode.s.ref").read().split("; Override launch geometry")[0]

def build(cfg, path):
    a,_=gen(cfg)
    gen_tail(a,cfg)
    txt = HEADER
    txt += "; Override launch geometry by editing the next line (default: block=256,\n"
    txt += f"; @launch grid=(256,1,1) block=(512,1,1) lds={LDS_BYTES}\n"
    txt += f""".amdgcn_target "amdgcn-amd-amdhsa--gfx950"
.text
.globl {KNAME}
.p2align 8
.type {KNAME},@function
"""
    txt += a.text()
    txt += f""".section .rodata,"a"
.p2align 6
.amdhsa_kernel {KNAME}
  .amdhsa_next_free_vgpr 256
  .amdhsa_next_free_sgpr 102
  .amdhsa_accum_offset 256
  .amdhsa_group_segment_fixed_size 0
  .amdhsa_kernarg_size 96
  .amdhsa_user_sgpr_count 2
  .amdhsa_user_sgpr_kernarg_segment_ptr 1
  .amdhsa_system_sgpr_workgroup_id_x 1
  .amdhsa_float_denorm_mode_32 3
.end_amdhsa_kernel
"""
    open(path,"w").write(txt)

if __name__=="__main__":
    cfg=Cfg()
    out=sys.argv[1]
    for kv in sys.argv[2:]:
        k,v=kv.split("=")
        setattr(cfg,k,eval(v))
    build(cfg,out)
```

```python
import sys

KNAME = "sequential_preLN__mha_block_cached__geglu_ffn__decode_kernel"

class Cfg:
    NSW = 2
    L = 10
    HV = 1
    QFAST = True
    KFLAGS = "nt"
    VFLAGS = "nt"
    WFLAGS = "nt"
    FASTMODE = True
    SPIN = 1 << 20
    STAMPS = False
    P0 = 4
    P = 4
    P1 = 8
    DMAPAUSE = False
    RING_EARLY = True
    RAMP = 0
    CODEPF = True
    LATE_L = 12
    EARLY_L = 0
    EARLY_THR = 6
    LATE_X = 0
    SEG0 = 40
    LATE_THR = 26
    LK = 0
    LS = 0
    KS0 = 80
    ROT = 0
    ROTX = 0
    HPERM = True
    NODMA2 = False
    KNOP = 7
    KEXP = 0
    PIPE_I = 0
    PIPE_X = 0
    HIGH_INLINE = True
    LNDRY = False
    CLR7 = True
    CONDCOPY = True
    NOCLR = False
    NOCOPY = False
    ALTMAP = False
    TAILDIAG = False
    PSLEEP = 0
    QSLEEP = 0
    QWAIT = 64
    DBGSTAMP = False

L_WO   = 0
L_WG   = 32768
L_WU   = 65536
L_WD   = 98304
L_WQ   = 126976
L_SC   = 126976
L_RED  = 143360
L_LNA  = 159744
L_QS   = 161920
L_ML   = 162176
L_HS   = 162208
L_QF   = 162272
L_LS   = 162288
L_MODE = 162320
L_SEL  = 162352
L_END  = 162368
LNA_P  = 272
LNB_P  = 528
L_LNB  = L_SC
LDS_BYTES = 163840

W_QP  = 0x500000
W_RDY = 0x000000
W_EPOCH = 0x010000
W_KX = 0x018000
W_KD = 0x014000
W_GRDY = 0x012000
W_OB  = 0x100000
W_AP  = 0x120000
W_HB  = 0x1A0000
W_GP  = 0x1C0000
W_ACT = 0x2A0000
W_DP  = 0x2B0000
W_STAMP = 0x400000

D_CLR = 32*4
D_XCC = 40*4

S_ID=2; S_W=3; S_X=4; S_R=5; S_H=6; S_B=7
P_X=16; P_K=18; P_V=20; P_WQ=22; P_WO=24; P_WG=28; P_WU=30; P_WD=32; P_OUT=34; P_DBG=36; P_WS=38
SRD_K=40; SRD_V=44
S_KOFF=48
S_FAST=49
S_SPIN=50
S_T0=52; S_T1=53; S_T2=54; S_T3=55; S_T4=56; S_T5=57
S_B0=58
S_B1=60
S_EX=62
S_M=64
S_M2=66
S_SCALE=68; S_LOG2E=69
S_DN=12; S_DS=13; S_DM=14; S_LOOP=15; S_LNW=27; S_ROT=70; S_HA=65; S_DJ=14; S_DM2=64
S_TAG=98
S_TAG=66
S_ST=70

V_TID=0; V_LANE=1
V_MASK=16
V_KOFF=20; V_VOFF=21; V_SCW=22; V_PPR=23; V_MAX=24
V_DMA=25
V_QADDR=26
V_QA=32
V_SACC=48
V_SACC2=140
V_OACC=52
V_A0=56; V_A1=60
V_PP0=64; V_PP1=68
V_T=72
V_RING=96
V_X=160

class Asm:
    def __init__(self):
        self.L=[]; self.n=0; self.main=self.L; self.O=[]
    def ool(self, on):
        self.L = self.O if on else self.main
    def __call__(self, s):
        for line in s.split("\n"):
            line=line.strip()
            if line: self.L.append(("" if line.endswith(":") else "  ")+line)
    def label(self, base):
        self.n+=1
        return f"L_{base}_{self.n}"
    def text(self): return "\n".join(self.main+self.O+["L_codeend:"])+"\n"

def vr(b,n): return f"v[{b}:{b+n-1}]"
def sr(b,n): return f"s[{b}:{b+n-1}]"

def wave_sum(a, v, tmp, op="add"):
    ins = "v_add_f32" if op=="add" else "v_max_f32"
    for k in (8,4,2,1):
        a(f"s_nop 1")
        a(f"{ins}_dpp {'v%d'%v}, v{v}, v{v} row_ror:{k} row_mask:0xf bank_mask:0xf")
    a("s_nop 1")
    a(f"v_readlane_b32 s{S_T0}, v{v}, 0")
    a(f"v_readlane_b32 s{S_T1}, v{v}, 16")
    a(f"v_readlane_b32 s{S_T2}, v{v}, 32")
    a(f"v_readlane_b32 s{S_T3}, v{v}, 48")
    a("s_nop 1")
    a(f"v_mov_b32 v{v}, s{S_T0}")
    a(f"{ins} v{v}, s{S_T1}, v{v}")
    a(f"{ins} v{v}, s{S_T2}, v{v}")
    a(f"{ins} v{v}, s{S_T3}, v{v}")

def round_bf16(a, dst, src):
    a(f"v_cvt_pk_bf16_f32 v{dst}, v{src}, v{src}")
    a(f"v_and_b32 v{dst}, 0xffff0000, v{dst}")

def layernorm(a, vin, vf, vout, t):
    for i in range(8):
        a(f"v_lshlrev_b32 v{vf+2*i}, 16, v{vin+i}")
        a(f"v_and_b32 v{vf+2*i+1}, 0xffff0000, v{vin+i}")
    a(f"v_add_f32 v{t}, v{vf}, v{vf+1}")
    for i in range(2,16):
        a(f"v_add_f32 v{t}, v{t}, v{vf+i}")
    wave_sum(a, t, t+1)
    a(f"v_mul_f32 v{t}, 0x3a800000, v{t}")
    a(f"v_sub_f32 v{t+1}, v{vf}, v{t}")
    a(f"v_mul_f32 v{t+2}, v{t+1}, v{t+1}")
    for i in range(1,16):
        a(f"v_sub_f32 v{t+1}, v{vf+i}, v{t}")
        a(f"v_fmac_f32 v{t+2}, v{t+1}, v{t+1}")
    wave_sum(a, t+2, t+1)
    a(f"v_mul_f32 v{t+2}, 0x3a800000, v{t+2}")
    round_bf16(a, t, t)
    round_bf16(a, t+2, t+2)
    a(f"v_add_f32 v{t+2}, 0x3727c5ac, v{t+2}")
    round_bf16(a, t+2, t+2)
    a(f"v_sqrt_f32 v{t+2}, v{t+2}")
    a("s_nop 0")
    round_bf16(a, t+2, t+2)
    a(f"v_rcp_f32 v{t+2}, v{t+2}")
    a("s_nop 0")
    for i in range(8):
        a(f"v_sub_f32 v{vf+2*i}, v{vf+2*i}, v{t}")
        a(f"v_sub_f32 v{vf+2*i+1}, v{vf+2*i+1}, v{t}")
        a(f"v_cvt_pk_bf16_f32 v{t+1}, v{vf+2*i}, v{vf+2*i+1}")
        a(f"v_lshlrev_b32 v{vf+2*i}, 16, v{t+1}")
        a(f"v_and_b32 v{vf+2*i+1}, 0xffff0000, v{t+1}")
        a(f"v_mul_f32 v{vf+2*i}, v{vf+2*i}, v{t+2}")
        a(f"v_mul_f32 v{vf+2*i+1}, v{vf+2*i+1}, v{t+2}")
        a(f"v_cvt_pk_bf16_f32 v{vout+i}, v{vf+2*i}, v{vf+2*i+1}")

def set_exec(a, lo, hi):
    a(f"s_mov_b32 exec_lo, {lo}")
    a(f"s_mov_b32 exec_hi, {hi}")
def full_exec(a):
    a("s_mov_b64 exec, -1")

def poll_loop(a, name, loads, regs, cfg):
    lp=a.label(name+"_poll"); dn=a.label(name+"_ok")
    a(f"s_mov_b32 s{S_SPIN}, {cfg.SPIN}")
    a(f"{lp}:")
    loads()
    a("s_waitcnt vmcnt(0)")
    t=V_T+23
    rs=list(regs)
    a(f"v_max_u32 v{t}, v{rs[0]}, v{rs[1] if len(rs)>1 else rs[0]}")
    i=2
    while i<len(rs):
        if i+1<len(rs):
            a(f"v_max3_u32 v{t}, v{t}, v{rs[i]}, v{rs[i+1]}"); i+=2
        else:
            a(f"v_max_u32 v{t}, v{t}, v{rs[i]}"); i+=1
    a(f"v_cmp_eq_u32 vcc, -1, v{t}")
    a(f"s_cbranch_vccz {dn}")
    a(f"s_sub_u32 s{S_SPIN}, s{S_SPIN}, 1")
    a(f"s_cmp_lg_u32 s{S_SPIN}, 0")
    a(f"s_cbranch_scc1 {lp}")
    a(f"{dn}:")

def store_mode(a, instr, intra):
    if not intra:
        a(instr+" sc1"); return
    l1=a.label("st_slow"); l2=a.label("st_done")
    a(f"s_cmp_eq_u32 s{S_FAST}, 0")
    a(f"s_cbranch_scc1 {l1}")
    a(instr)
    a(f"s_branch {l2}")
    a(f"{l1}:")
    a(instr+" sc1")
    a(f"{l2}:")

def stamp(a, cfg, idx):
    if not cfg.STAMPS: return
    a(f"s_memrealtime s[{72+2*idx}:{73+2*idx}]")


def emit_clears(a, sfx=''):
    a(f"v_mov_b32 v12, -1\nv_mov_b32 v13, -1\nv_mov_b32 v14, -1\nv_mov_b32 v15, -1")
    a(f"s_lshr_b32 s{S_T4}, s{S_R}, 4")
    a(f"s_and_b32 s{S_T5}, s{S_R}, 15")
    a(f"s_lshl_b32 s{S_T1}, s{S_X}, 1")
    a(f"s_add_u32 s{S_T1}, s{S_T1}, s{S_T4}")
    a(f"s_lshl_b32 s{S_T0}, s{S_T1}, 15")
    a(f"s_lshl_b32 s{S_T1}, s{S_T5}, 8")
    a(f"s_add_u32 s{S_T0}, s{S_T0}, s{S_T1}")
    a(f"v_lshlrev_b32 v10, 12, v3")
    a(f"v_lshlrev_b32 v11, 4, v2")
    a(f"v_add3_u32 v10, v10, v11, s{S_T0}")
    for base in (W_AP, W_DP):
        a(f"v_add_u32 v11, {base}, v10")
        a(f"global_store_dwordx4 v11, v[12:15], {sr(P_WS,2)} sc1")
        a(f"v_add_u32 v11, {base+4*4096}, v10")
        a(f"global_store_dwordx4 v11, v[12:15], {sr(P_WS,2)} sc1")
    a(f"s_lshl_b32 s{S_T0}, s{S_H}, 3")
    a(f"s_add_u32 s{S_T0}, s{S_T0}, s{S_B}")
    a(f"s_lshl_b32 s{S_T0}, s{S_T0}, 8")
    a(f"s_add_u32 s{S_T0}, s{S_T0}, {W_OB}")
    a(f"v_add_u32 v10, s{S_T0}, v{V_VOFF}")
    set_exec(a, "0xffff", 0)
    a(f"global_store_dwordx4 v10, v[12:15], {sr(P_WS,2)} sc1")
    full_exec(a)
    a(f"s_lshr_b32 s{S_T0}, s{S_R}, 2")
    a(f"s_lshl_b32 s{S_T1}, s{S_X}, 3")
    a(f"s_add_u32 s{S_T0}, s{S_T0}, s{S_T1}")
    a(f"s_lshl_b32 s{S_T0}, s{S_T0}, 11")
    a(f"s_and_b32 s{S_T1}, s{S_R}, 3")
    a(f"s_lshl_b32 s{S_T1}, s{S_T1}, 9")
    a(f"s_add_u32 s{S_T0}, s{S_T0}, s{S_T1}")
    a(f"s_add_u32 s{S_T0}, s{S_T0}, {W_HB}")
    a(f"v_add_u32 v10, s{S_T0}, v{V_VOFF}")
    set_exec(a, -1, 0)
    a(f"global_store_dwordx4 v10, v[12:15], {sr(P_WS,2)} sc1")
    full_exec(a)
    a(f"s_cmp_ge_u32 s{S_R}, 28")
    a(f"s_cbranch_scc1 L_clr_done{sfx}")
    a(f"s_mul_i32 s{S_T0}, s{S_X}, 28")
    a(f"s_add_u32 s{S_T0}, s{S_T0}, s{S_R}")
    a(f"s_lshl_b32 s{S_T0}, s{S_T0}, 12")
    a(f"s_add_u32 s{S_T0}, s{S_T0}, {W_GP}")
    a(f"v_add_u32 v10, s{S_T0}, v{V_VOFF}")
    for n in range(4):
        a(f"global_store_dwordx4 v10, v[12:15], {sr(P_WS,2)} offset:{n*1024} sc1")
    a(f"s_mul_i32 s{S_T0}, s{S_R}, 37")
    a(f"s_lshr_b32 s{S_T0}, s{S_T0}, 8")
    a(f"s_mul_i32 s{S_T1}, s{S_T0}, 7")
    a(f"s_sub_u32 s{S_T1}, s{S_R}, s{S_T1}")
    a(f"s_lshl_b32 s{S_T0}, s{S_T0}, 1")
    a(f"s_lshl_b32 s{S_T2}, s{S_X}, 3")
    a(f"s_add_u32 s{S_T0}, s{S_T0}, s{S_T2}")
    a(f"s_mul_i32 s{S_T0}, s{S_T0}, 896")
    a(f"s_lshl_b32 s{S_T1}, s{S_T1}, 7")
    a(f"s_add_u32 s{S_T0}, s{S_T0}, s{S_T1}")
    a(f"s_add_u32 s{S_T0}, s{S_T0}, {W_ACT}")
    a(f"v_lshrrev_b32 v10, 3, v{V_LANE}")
    a(f"v_mul_u32_u24 v10, 896, v10")
    a(f"v_and_b32 v11, 7, v{V_LANE}")
    a(f"v_lshlrev_b32 v11, 4, v11")
    a(f"v_add3_u32 v10, v10, v11, s{S_T0}")
    set_exec(a, "0xffff", 0)
    a(f"global_store_dwordx4 v10, v[12:15], {sr(P_WS,2)} sc1")
    full_exec(a)
    a(f"L_clr_done{sfx}:")


def emit_extras(a):
    a(f"s_lshl_b32 s{S_T0}, s{S_W}, 9")
    a(f"v_and_b32 v10, 31, v{V_LANE}")
    a(f"v_lshlrev_b32 v10, 4, v10")
    a(f"v_add_u32 v10, s{S_T0}, v10")
    a(f"v_add_u32 v9, {W_RDY}, v10")
    a(f"global_load_dwordx4 {vr(V_RDY,4)}, v9, {sr(P_WS,2)} sc1")
    a(f"s_lshr_b32 s{S_T0}, s{S_R}, 2")
    a(f"s_lshl_b32 s{S_T0}, s{S_T0}, 11")
    a(f"s_and_b32 s{S_T1}, s{S_R}, 3")
    a(f"s_lshl_b32 s{S_T1}, s{S_T1}, 9")
    a(f"s_add_u32 s{S_T0}, s{S_T0}, s{S_T1}")
    a(f"v_lshlrev_b32 v11, 3, v{V_LANE}")
    a(f"v_add_u32 v11, s{S_T0}, v11")
    a(f"global_load_dwordx2 {vr(V_XRES,2)}, v11, {sr(P_X,2)}")

def koff_init(a):
    a(f"s_lshr_b32 s{S_KOFF}, s{S_W}, 2")
    a(f"s_lshl_b32 s{S_KOFF}, s{S_KOFF}, 7")
    a(f"s_and_b32 s{S_T5}, s{S_W}, 3")
    a(f"s_add_u32 s{S_KOFF}, s{S_KOFF}, s{S_T5}")
    a(f"s_lshl_b32 s{S_KOFF}, s{S_KOFF}, 12")

def emit_rdy(a):
    a(f"s_getreg_b32 s{S_T0}, hwreg(HW_REG_XCC_ID, 0, 4)")
    a(f"s_lshl_b32 s{S_T1}, s{S_X}, 5")
    a(f"s_add_u32 s{S_T1}, s{S_T1}, s{S_R}")
    a(f"s_lshl_b32 s{S_T1}, s{S_T1}, 4")
    a(f"s_add_u32 s{S_T1}, s{S_T1}, {W_RDY}")
    a(f"v_mov_b32 v10, s{S_T1}")
    a(f"v_mov_b32 v12, s{S_T0}")
    a(f"v_mov_b32 v13, 0")
    a(f"v_mov_b32 v14, s{S_TAG}")
    a(f"v_mov_b32 v15, s{S_TAG+1}")
    set_exec(a, 1, 0)
    a(f"global_store_dwordx4 v10, v[12:15], {sr(P_WS,2)} sc1")
    full_exec(a)

def gen(cfg):
    a=Asm()
    NSW=cfg.NSW; L=cfg.L; HV=cfg.HV
    LK=cfg.LK or L
    NH=8-NSW
    KT=256//NSW
    VT=(256-NH*HV)//NSW
    assert VT*NSW+NH*HV==256, "V tiles must split evenly"
    NK=4*KT; NV=4*VT
    TSTEP=NSW*4096
    def kload(j):
        reg=V_RING+(j%LK)*4
        a(f"buffer_load_dwordx4 {vr(reg,4)}, v{V_KOFF}, {sr(SRD_K,4)}, s{S_KOFF} offen offset:{(j%4)*1024} {cfg.KFLAGS}")
        if j%4==3:
            a(f"s_add_u32 s{S_KOFF}, s{S_KOFF}, {TSTEP}")
            if cfg.ROT or cfg.ROTX: a(f"s_and_b32 s{S_KOFF}, s{S_KOFF}, 0xfffff")
    def vload(jv, first=False):
        reg=V_RING+((NK-LK+jv)%LK)*4
        if first:
            a(f"s_add_u32 s{S_KOFF}, s{S_W}, {NH*HV}")
            a(f"s_lshl_b32 s{S_KOFF}, s{S_KOFF}, 12")
            if cfg.ROT or cfg.ROTX:
                a(f"s_add_u32 s{S_KOFF}, s{S_KOFF}, s{S_ROT}")
                a(f"s_and_b32 s{S_KOFF}, s{S_KOFF}, 0xfffff")
        a(f"buffer_load_dwordx4 {vr(reg,4)}, v{V_VOFF}, {sr(SRD_V,4)}, s{S_KOFF} offen offset:{(jv%4)*1024} {cfg.VFLAGS}")
        if jv%4==3:
            a(f"s_add_u32 s{S_KOFF}, s{S_KOFF}, {TSTEP}")
            if cfg.ROT or cfg.ROTX: a(f"s_and_b32 s{S_KOFF}, s{S_KOFF}, 0xfffff")
    a(f"{KNAME}:")
    a(f"s_cmp_ge_u32 s{S_ID}, 256")
    a("s_cbranch_scc1 L_exit")
    a("s_load_dwordx16 s[16:31], s[0:1], 0")
    a("s_load_dwordx8 s[32:39], s[0:1], 64")
    if cfg.CODEPF:
        a(f"s_getpc_b64 {sr(S_B1,2)}")
        a("L_pf0:")
        a(f"s_add_u32 s{S_B1}, s{S_B1}, {KNAME}-L_pf0")
        a(f"s_addc_u32 s{S_B1+1}, s{S_B1+1}, -1")
        a(f"v_lshlrev_b32 v10, 6, v0")
        a(f"v_cmp_gt_u32 vcc, L_codeend-{KNAME}, v10")
        a(f"s_and_saveexec_b64 {sr(S_EX,2)}, vcc")
        a("s_cbranch_execz L_pf0_done")
        a(f"global_load_dword v15, v10, {sr(S_B1,2)}")
        a("L_pf0_done:")
        a(f"s_mov_b64 exec, {sr(S_EX,2)}")
    stamp(a,cfg,0)
    a(f"v_lshrrev_b32 v2, 6, v0")
    a(f"v_and_b32 v{V_LANE}, 63, v0")
    if cfg.ALTMAP: a(f"s_lshr_b32 s{S_X}, s{S_ID}, 5")
    else: a(f"s_and_b32 s{S_X}, s{S_ID}, 7")
    a(f"v_readfirstlane_b32 s{S_W}, v2")
    if cfg.ALTMAP: a(f"s_and_b32 s{S_R}, s{S_ID}, 31")
    else: a(f"s_lshr_b32 s{S_R}, s{S_ID}, 3")
    a(f"s_lshr_b32 s{S_T0}, s{S_R}, 3")
    a(f"s_lshl_b32 s{S_H}, s{S_X}, 2")
    a(f"s_add_u32 s{S_H}, s{S_H}, s{S_T0}")
    a(f"s_and_b32 s{S_B}, s{S_R}, 7")
    if cfg.ROT or cfg.ROTX:
        a(f"s_mul_i32 s{S_ROT}, s{S_R}, {cfg.ROT}")
        a(f"s_mul_i32 s{S_DM2}, s{S_X}, {cfg.ROTX}")
        a(f"s_add_u32 s{S_ROT}, s{S_ROT}, s{S_DM2}")
        a(f"s_and_b32 s{S_ROT}, s{S_ROT}, 0xff000")
    if cfg.HPERM:
        a(f"s_lshl_b32 s{S_HA}, s{S_T0}, 3")
        a(f"s_add_u32 s{S_HA}, s{S_HA}, s{S_X}")
    else:
        a(f"s_mov_b32 s{S_HA}, s{S_H}")
    a(f"v_and_b32 v2, 15, v{V_LANE}")
    a(f"v_lshrrev_b32 v3, 4, v{V_LANE}")
    a(f"v_lshlrev_b32 v{V_VOFF}, 4, v{V_LANE}")
    a(f"v_lshrrev_b32 v4, 2, v2")
    a(f"v_and_b32 v5, 3, v2")
    a(f"v_lshlrev_b32 v6, 8, v4")
    a(f"v_lshlrev_b32 v7, 6, v3")
    a(f"v_lshlrev_b32 v8, 4, v5")
    a(f"v_add3_u32 v{V_KOFF}, v6, v7, v8")
    a(f"v_mov_b32 v{V_DMA}, 0")
    a("s_waitcnt lgkmcnt(0)")
    a(f"s_load_dwordx2 {sr(S_TAG,2)}, {sr(P_WS,2)}, {W_EPOCH}")
    a(f"s_lshl_b32 s{S_T0}, s{S_B}, 5")
    a(f"s_add_u32 s{S_T0}, s{S_T0}, s{S_HA}")
    a(f"s_lshl_b32 s{S_T0}, s{S_T0}, 20")
    for srd,p in ((SRD_K,P_K),(SRD_V,P_V)):
        a(f"s_add_u32 s{srd}, s{p}, s{S_T0}")
        a(f"s_addc_u32 s{srd+1}, s{p+1}, 0")
        a(f"s_and_b32 s{srd+1}, s{srd+1}, 0xffff")
        a(f"s_mov_b32 s{srd+2}, 0x100000")
        a(f"s_mov_b32 s{srd+3}, 0x20000")
    a(f"s_lshl_b32 s{S_T0}, s{S_W}, 11")
    a(f"v_lshlrev_b32 v9, 5, v{V_LANE}")
    a(f"v_add_u32 v9, s{S_T0}, v9")
    a(f"global_load_dwordx4 {vr(V_X,4)}, v9, {sr(P_X,2)}")
    a(f"global_load_dwordx4 {vr(V_X+4,4)}, v9, {sr(P_X,2)} offset:16")
    if cfg.HIGH_INLINE:
        a(f"s_cmp_lt_u32 s{S_W}, 4")
        a("s_cbranch_scc1 L_lowwaves")
    else:
        a(f"s_cmp_ge_u32 s{S_W}, 4")
        a("s_cbranch_scc1 L_high")
        a.ool(True)
    a("L_high:")
    a(f"v_lshrrev_b32 v10, 3, v{V_LANE}")
    a(f"v_and_b32 v11, 7, v{V_LANE}")
    a(f"v_lshlrev_b32 v11, 4, v11")
    a(f"s_lshr_b32 s{S_T4}, s{S_R}, 4")
    a(f"s_and_b32 s{S_T5}, s{S_R}, 15")
    a(f"s_cmp_eq_u32 s{S_W}, 4")
    a("s_cbranch_scc1 L_dma_wo")
    a(f"s_cmp_eq_u32 s{S_W}, 7")
    a("s_cbranch_scc1 L_dma_wd")
    a(f"s_cmp_ge_u32 s{S_R}, 28")
    a("s_cbranch_scc1 L_dma_done")
    a(f"s_mul_i32 s{S_T0}, s{S_R}, 37")
    a(f"s_lshr_b32 s{S_T0}, s{S_T0}, 8")
    a(f"s_mul_i32 s{S_T1}, s{S_T0}, 7")
    a(f"s_sub_u32 s{S_T1}, s{S_R}, s{S_T1}")
    a(f"s_mul_i32 s{S_T0}, s{S_T0}, {256*7168}")
    a(f"s_mul_i32 s{S_T2}, s{S_X}, 896")
    a(f"s_lshl_b32 s{S_T1}, s{S_T1}, 7")
    a(f"s_add_u32 s{S_T0}, s{S_T0}, s{S_T2}")
    a(f"s_add_u32 s{S_T0}, s{S_T0}, s{S_T1}")
    a(f"s_cmp_eq_u32 s{S_W}, 5")
    a(f"s_cselect_b32 s{S_B0}, s{P_WG}, s{P_WU}")
    a(f"s_cselect_b32 s{S_B0+1}, s{P_WG+1}, s{P_WU+1}")
    a(f"s_mov_b32 s{S_T3}, {L_WU}")
    a(f"s_cselect_b32 s{S_T3}, {L_WG}, s{S_T3}")
    a(f"s_add_u32 s{S_B0}, s{S_B0}, s{S_T0}")
    a(f"s_addc_u32 s{S_B0+1}, s{S_B0+1}, 0")
    a(f"s_mov_b32 s{S_T0}, 7168")
    a(f"s_mov_b32 s{S_T1}, 32")
    a("s_branch L_dma_go")
    a("L_dma_wo:")
    if cfg.HPERM:
        a(f"s_lshl_b32 s{S_T0}, s{S_T4}, 4")
        a(f"s_add_u32 s{S_T0}, s{S_T0}, s{S_X}")
        a(f"s_lshl_b32 s{S_T0}, s{S_T0}, 18")
    else:
        a(f"s_lshl_b32 s{S_T0}, s{S_X}, 1")
        a(f"s_add_u32 s{S_T0}, s{S_T0}, s{S_T4}")
        a(f"s_lshl_b32 s{S_T0}, s{S_T0}, 19")
    a(f"s_lshl_b32 s{S_T1}, s{S_T5}, 7")
    a(f"s_add_u32 s{S_T0}, s{S_T0}, s{S_T1}")
    a(f"s_add_u32 s{S_B0}, s{P_WO}, s{S_T0}")
    a(f"s_addc_u32 s{S_B0+1}, s{P_WO+1}, 0")
    a(f"s_mov_b32 s{S_T3}, {L_WO}")
    a(f"s_mov_b32 s{S_T0}, 2048")
    a(f"s_mov_b32 s{S_T1}, 32")
    a("s_branch L_dma_go")
    a("L_dma_wd:")
    a(f"s_lshl_b32 s{S_T0}, s{S_X}, 1")
    a(f"s_add_u32 s{S_T0}, s{S_T0}, s{S_T4}")
    a(f"s_mul_i32 s{S_T0}, s{S_T0}, {224*2048}")
    a(f"s_lshl_b32 s{S_T1}, s{S_T5}, 7")
    a(f"s_add_u32 s{S_T0}, s{S_T0}, s{S_T1}")
    a(f"s_add_u32 s{S_B0}, s{P_WD}, s{S_T0}")
    a(f"s_addc_u32 s{S_B0+1}, s{P_WD+1}, 0")
    a(f"s_mov_b32 s{S_T3}, {L_WD}")
    a(f"s_mov_b32 s{S_T0}, 2048")
    a(f"s_mov_b32 s{S_T1}, 28")
    a("L_dma_go:")
    a(f"v_mul_lo_u32 v10, v10, s{S_T0}")
    a(f"s_lshl_b32 s{S_T0}, s{S_T0}, 3")
    a(f"v_add_u32 v10, v10, v11")
    a(f"s_mov_b32 m0, s{S_T3}")
    a("s_nop 0")
    for n in range(cfg.P0):
        a(f"global_load_lds_dwordx4 v10, {sr(S_B0,2)} {cfg.WFLAGS}")
        a(f"s_add_u32 m0, m0, 1024")
        a(f"s_add_u32 s{S_B0}, s{S_B0}, s{S_T0}")
        a(f"s_addc_u32 s{S_B0+1}, s{S_B0+1}, 0")
    a(f"s_sub_u32 s{S_DN}, s{S_T1}, {cfg.P0}")
    a(f"s_mov_b32 s{S_DS}, s{S_T0}")
    a(f"s_mov_b32 s{S_DJ}, 0")
    if cfg.HPERM:
        a(f"s_cmp_eq_u32 s{S_W}, 4")
        a(f"s_cselect_b32 s{S_DJ}, {896*2048}, 0")
    a(f"v_mov_b32 v{V_DMA}, v10")
    a(f"s_mov_b32 s{S_LNW}, 1") if cfg.LNDRY else a(f"s_waitcnt vmcnt({cfg.P0})")
    a("s_branch L_ln1")
    a("L_dma_done:")
    a(f"s_mov_b32 s{S_DN}, 0")
    a(f"s_mov_b32 s{S_B0}, s{P_WS}")
    a(f"s_mov_b32 s{S_B0+1}, s{P_WS+1}")
    a(f"v_mov_b32 v{V_DMA}, 0")
    a(f"s_mov_b32 s{S_LNW}, 0") if cfg.LNDRY else a("s_waitcnt vmcnt(0)")
    a("s_branch L_ln1")

    a.ool(False)
    a("L_lowwaves:")
    a(f"v_lshlrev_b32 v12, 13, v3")
    a(f"v_lshlrev_b32 v11, 1, v3")
    a(f"v_xor_b32 v10, v2, v11")
    a(f"v_xor_b32 v11, 8, v10")
    a(f"v_lshl_add_u32 v10, v10, 4, v12")
    a(f"v_lshl_add_u32 v11, v11, 4, v12")
    a(f"s_lshl_b32 s{S_T0}, s{S_B}, 7")
    a(f"s_lshl_b32 s{S_T1}, s{S_W}, 5")
    a(f"s_add_u32 s{S_T0}, s{S_T0}, s{S_T1}")
    a(f"s_lshl_b32 s{S_T0}, s{S_T0}, 13")
    a(f"s_lshl_b32 s{S_T1}, s{S_HA}, 8")
    a(f"s_add_u32 s{S_T0}, s{S_T0}, s{S_T1}")
    a(f"s_add_u32 s{S_B0}, s{P_WQ}, s{S_T0}")
    a(f"s_addc_u32 s{S_B0+1}, s{P_WQ+1}, 0")
    a(f"s_lshl_b32 s{S_T1}, s{S_W}, 13")
    a(f"s_add_u32 m0, s{S_T1}, {L_WQ}")
    a("s_nop 0")
    for n in range(8):
        a(f"global_load_lds_dwordx4 v{10+((n>>1)&1)}, {sr(S_B0,2)} {cfg.WFLAGS}")
        if n<7:
            a(f"s_add_u32 m0, m0, 1024")
            a(f"s_add_u32 s{S_B0}, s{S_B0}, {4*8192}")
            a(f"s_addc_u32 s{S_B0+1}, s{S_B0+1}, 0")
    if cfg.RING_EARLY:
        a(f"s_cmp_ge_u32 s{S_W}, {NSW}")
        a("s_cbranch_scc1 L_low_nostr")
        a(f"s_lshl_b32 s{S_KOFF}, s{S_W}, 12")
        if cfg.ROT or cfg.ROTX:
            a(f"s_add_u32 s{S_KOFF}, s{S_KOFF}, s{S_ROT}")
            a(f"s_and_b32 s{S_KOFF}, s{S_KOFF}, 0xfffff")
        for j in range(cfg.LS or LK): kload(j)
        a(f"s_mov_b32 s{S_LNW}, 2") if cfg.LNDRY else a(f"s_waitcnt vmcnt({8+(cfg.LS or LK)})")
        a("s_branch L_ln1_low")
        a("L_low_nostr:")
    a(f"s_mov_b32 s{S_LNW}, 3") if cfg.LNDRY else a(f"s_waitcnt vmcnt(8)")
    a("L_ln1_low:")
    a("L_ln1:")
    if cfg.LNDRY:
        a(f"s_or_b32 s{S_LNW}, s{S_LNW}, 0x10")
        a("L_ln1_again:")
    layernorm2(a, V_X, V_X+8, V_X+24, V_T)
    if cfg.LNDRY:
        a(f"s_bitcmp0_b32 s{S_LNW}, 4")
        a("s_cbranch_scc1 L_ln1_done")
        a(f"s_and_b32 s{S_LNW}, s{S_LNW}, 0xf")
        for k,n in ((0,0),(1,cfg.P0),(2,8+LK),(3,8)):
            a(f"s_cmp_lg_u32 s{S_LNW}, {k}")
            a(f"s_cbranch_scc1 L_lnw{k}")
            a(f"s_waitcnt vmcnt({n})")
            a(f"L_lnw{k}:")
        a("s_branch L_ln1_again")
        a("L_ln1_done:")
    a(f"s_lshl_b32 s{S_T0}, s{S_B}, 3")
    a(f"v_subrev_u32 v10, s{S_T0}, v{V_LANE}")
    a(f"v_cmp_gt_u32 vcc, 8, v10")
    a(f"s_mul_i32 s{S_T1}, s{S_W}, {LNA_P}")
    a(f"s_add_u32 s{S_T1}, s{S_T1}, {L_LNA}")
    a(f"v_lshlrev_b32 v10, 5, v10")
    a(f"v_add_u32 v10, s{S_T1}, v10")
    a(f"s_and_saveexec_b64 {sr(S_EX,2)}, vcc")
    a(f"ds_write_b128 v10, {vr(V_X+24,4)}")
    a(f"ds_write_b128 v10, {vr(V_X+28,4)} offset:16")
    a(f"s_mov_b64 exec, {sr(S_EX,2)}")
    a(f"s_cmp_ge_u32 s{S_W}, 4")
    a("s_cbranch_scc1 L_b1")
    if cfg.RING_EARLY:
        a(f"s_cmp_ge_u32 s{S_W}, {NSW}")
        a("s_cbranch_scc1 L_b1_ns")
        a(f"s_waitcnt vmcnt({cfg.LS or LK})")
        a("s_branch L_b1")
        a("L_b1_ns:")
    a("s_waitcnt vmcnt(0)")
    a("L_b1:")
    a("s_waitcnt lgkmcnt(0)")
    a(f"s_cmp_lg_u32 s{S_W}, 0")
    a("s_cbranch_scc1 L_noqf")
    a(f"v_mov_b32 v10, {L_QF}")
    a(f"v_mov_b32 v11, 0")
    a(f"ds_write_b32 v10, v11")
    a(f"ds_write_b32 v10, v11 offset:{L_MODE-L_QF}")
    a("s_waitcnt lgkmcnt(0)")
    a("L_noqf:")
    a("s_barrier")
    stamp(a,cfg,1)
    a(f"s_add_u32 s{S_TAG}, s{S_TAG}, 1")
    a(f"s_addc_u32 s{S_TAG+1}, s{S_TAG+1}, 0")
    a(f"v_and_b32 v10, 1, v2")
    a(f"v_cmp_eq_u32 vcc, 1, v10")
    a(f"v_mov_b32 v11, 0xffff")
    a(f"v_mov_b32 v12, 0xffff0000")
    a(f"v_cndmask_b32 v11, v11, v12, vcc")
    a(f"v_lshrrev_b32 v10, 1, v2")
    for w in range(4):
        a(f"v_cmp_eq_u32 vcc, {w}, v10")
        a("s_nop 1")
        a(f"v_cndmask_b32 v{V_MASK+w}, 0, v11, vcc")
    a(f"v_mov_b32 v{V_MAX}, 0xff800000")
    a(f"s_mov_b32 s{S_SCALE}, 0x3db504f3")
    a(f"s_mov_b32 s{S_LOG2E}, 0x3fb8aa3b")
    for c in range(4):
        a(f"v_mov_b32 v{V_OACC+c}, 0")
    a(f"s_cmp_ge_u32 s{S_W}, 4")
    a("s_cbranch_scc1 L_high2")
    a.ool(True)
    a("L_high2:")
    if cfg.CLR7:
        a(f"s_cmp_lg_u32 s{S_W}, 7")
        a("s_cbranch_scc1 L_h2_noclr")
        if not cfg.NOCLR: emit_clears(a,"7")
        a("L_h2_noclr:")
    if cfg.NODMA2: a(f"s_mov_b32 s{S_DN}, 0")
    a(f"s_cmp_eq_u32 s{S_DN}, 0")
    a("s_cbranch_scc1 L_dma2_done")
    if cfg.DMAPAUSE:
        a(f"v_mov_b32 v10, {L_QF}")
        a(f"s_mov_b32 s{S_SPIN}, {cfg.SPIN}")
        a("L_dp_wait:")
        a(f"ds_read_b32 v11, v10")
        a("s_waitcnt lgkmcnt(0)")
        a(f"v_readfirstlane_b32 s{S_T0}, v11")
        a("s_nop 1")
        a(f"s_cmp_lg_u32 s{S_T0}, 0")
        a("s_cbranch_scc1 L_dma2_loop")
        a("s_sleep 2")
        a(f"s_sub_u32 s{S_SPIN}, s{S_SPIN}, 1")
        a(f"s_cmp_lg_u32 s{S_SPIN}, 0")
        a("s_cbranch_scc1 L_dp_wait")
    a("L_dma2_loop:")
    a(f"s_waitcnt vmcnt({cfg.P-1})")
    a(f"global_load_lds_dwordx4 v{V_DMA}, {sr(S_B0,2)} {cfg.WFLAGS}")
    a(f"s_add_u32 m0, m0, 1024")
    a(f"s_add_u32 s{S_B0}, s{S_B0}, s{S_DS}")
    a(f"s_addc_u32 s{S_B0+1}, s{S_B0+1}, 0")
    a(f"s_sub_u32 s{S_DN}, s{S_DN}, 1")
    if cfg.HPERM:
        a(f"s_cmp_eq_u32 s{S_DN}, 16")
        a(f"s_cselect_b32 s{S_DM2}, s{S_DJ}, 0")
        a(f"s_add_u32 s{S_B0}, s{S_B0}, s{S_DM2}")
        a(f"s_addc_u32 s{S_B0+1}, s{S_B0+1}, 0")
    a(f"s_cmp_lg_u32 s{S_DN}, 0")
    a("s_cbranch_scc1 L_dma2_loop")
    a("L_dma2_done:")
    a("s_waitcnt vmcnt(0)")
    stamp(a,cfg,13)
    if cfg.CLR7:
        a(f"s_cmp_lg_u32 s{S_W}, 7")
        a("s_cbranch_scc1 L_h2_nordy")
        emit_rdy(a)
        a("L_h2_nordy:")
    emit_precompute(a,cfg)
    emit_rdycheck(a,cfg)
    a("s_branch L_kdone")
    a.ool(False)
    a("L_q_low:")
    if not cfg.RING_EARLY:
        a(f"s_cmp_ge_u32 s{S_W}, {NSW}")
        a("s_cbranch_scc1 L_ring_late_skip")
        a(f"s_lshl_b32 s{S_KOFF}, s{S_W}, 12")
        if cfg.ROT or cfg.ROTX:
            a(f"s_add_u32 s{S_KOFF}, s{S_KOFF}, s{S_ROT}")
            a(f"s_and_b32 s{S_KOFF}, s{S_KOFF}, 0xfffff")
        for j in range(cfg.LS or LK): kload(j)
        a("L_ring_late_skip:")
    a(f"s_cmp_lt_u32 s{S_W}, 2")
    a("s_cbranch_scc1 L_q_01")
    a.ool(True)
    a("L_q_01:")
    emit_precompute(a,cfg)
    a(f"s_cmp_eq_u32 s{S_W}, 0")
    a("s_cbranch_scc1 L_q_w0")
    a("s_branch L_q_w1")
    a.ool(False)
    a("L_q_prod:")
    a(f"v_and_b32 v10, 7, v{V_LANE}")
    a(f"v_mul_u32_u24 v10, {LNA_P}, v10")
    a(f"v_lshlrev_b32 v11, 4, v3")
    a(f"v_add_u32 v10, v10, v11")
    a(f"v_add_u32 v10, {L_LNA}, v10")
    for s_ in range(4):
        a(f"ds_read_b128 {vr(V_X+4*s_,4)}, v10 offset:{64*s_}")
    a(f"v_lshlrev_b32 v11, 3, v3")
    a(f"v_add_u32 v11, v11, v4")
    a(f"v_lshlrev_b32 v11, 8, v11")
    a(f"v_lshlrev_b32 v12, 3, v5")
    a(f"v_add3_u32 v11, v11, v12, {0}") if False else None
    a(f"v_add_u32 v11, v11, v12")
    a(f"v_add_u32 v11, {L_WQ}, v11")
    a(f"v_and_b32 v12, 1, v3")
    a(f"v_lshlrev_b32 v12, 2, v12")
    a(f"v_or_b32 v12, v12, v4")
    a(f"s_sub_u32 s{S_T4}, s{S_W}, 2")
    a(f"s_lshl_b32 s{S_T0}, s{S_T4}, 2")
    a(f"v_xor_b32 v12, s{S_T0}, v12")
    for tt in range(4):
        a(f"v_xor_b32 v13, {tt}, v12")
        a(f"v_lshl_add_u32 v{V_T+16+tt}, v13, 5, v11")
    for tt in range(4):
        for s_ in range(4):
            for hf in range(2):
                reg=V_RING+tt*16+s_*4+hf*2
                a(f"ds_read_b64_tr_b16 {vr(reg,2)}, v{V_T+16+tt} offset:{(32*s_+4*hf)*256}")
    a(f"s_lshl_b32 s{S_T0}, s{S_H}, 3")
    a(f"s_add_u32 s{S_T0}, s{S_T0}, s{S_B}")
    a(f"s_lshl_b32 s{S_T0}, s{S_T0}, 13")
    a(f"s_lshl_b32 s{S_T1}, s{S_T4}, 9")
    a(f"s_add_u32 s{S_T0}, s{S_T0}, s{S_T1}")
    a(f"s_add_u32 s{S_T0}, s{S_T0}, {W_QP}")
    a(f"v_lshlrev_b32 v10, 10, v2")
    a(f"v_lshlrev_b32 v11, 5, v3")
    a(f"v_add3_u32 v{V_QADDR}, v10, v11, s{S_T0}")
    G=V_X+16
    for tt in range(4):
        for hh in range(2):
            b=G+8*tt+4*hh
            a(f"v_mov_b32 v{b+2}, s{S_TAG}")
            a(f"v_mov_b32 v{b+3}, s{S_TAG+1}")
    a("s_waitcnt lgkmcnt(0)")
    for s_ in range(4):
        for tt in range(4):
            c = "0" if s_==0 else vr(V_T+4*tt,4)
            a(f"v_mfma_f32_16x16x32_bf16 {vr(V_T+4*tt,4)}, {vr(V_RING+tt*16+s_*4,4)}, {vr(V_X+4*s_,4)}, {c}")
    a("s_nop 7")
    for tt in range(4):
        for hh in range(2):
            b=G+8*tt+4*hh
            a(f"v_mov_b32 v{b}, v{V_T+4*tt+2*hh}")
            a(f"v_mov_b32 v{b+1}, v{V_T+4*tt+2*hh+1}")
    def qstores(fl):
        set_exec(a, "0x00ff00ff", "0x00ff00ff")
        for tt in range(4):
            for hh in range(2):
                a(f"global_store_dwordx4 v{V_QADDR}, {vr(G+8*tt+4*hh,4)}, {sr(P_WS,2)} offset:{128*tt+16*hh} {fl}")
        full_exec(a)
    qstores("" if cfg.QFAST else "sc1")
    stamp(a,cfg,13)
    a("s_branch L_prod2")
    a.ool(True)
    a("L_prod2:")
    if cfg.QFAST and cfg.CONDCOPY:
        a(f"v_mov_b32 v10, {L_MODE}")
        a(f"s_mov_b32 s{S_SPIN}, {cfg.SPIN}")
        a("L_qc_wait:")
        a("s_sleep 16")
        a(f"ds_read_b32 v11, v10")
        a("s_waitcnt lgkmcnt(0)")
        a(f"v_readfirstlane_b32 s{S_T0}, v11")
        a("s_nop 1")
        a(f"s_cmp_lg_u32 s{S_T0}, 0")
        a("s_cbranch_scc1 L_qc_go")
        a(f"s_sub_u32 s{S_SPIN}, s{S_SPIN}, 1")
        a(f"s_cmp_lg_u32 s{S_SPIN}, 0")
        a("s_cbranch_scc1 L_qc_wait")
        a("L_qc_go:")
        a(f"s_cmp_eq_u32 s{S_T0}, 2")
        a("s_cbranch_scc1 L_qc_skip")
        qstores("sc1")
        a("L_qc_skip:")
    elif cfg.QFAST:
        a(f"v_mov_b32 v10, {L_QF}")
        a(f"s_mov_b32 s{S_SPIN}, {cfg.QWAIT}")
        a("L_qc_wait:")
        a("s_sleep 4")
        a(f"ds_read_b32 v11, v10")
        a("s_waitcnt lgkmcnt(0)")
        a(f"v_readfirstlane_b32 s{S_T0}, v11")
        a("s_nop 1")
        a(f"s_cmp_lg_u32 s{S_T0}, 0")
        a("s_cbranch_scc1 L_qc_go")
        a(f"s_sub_u32 s{S_SPIN}, s{S_SPIN}, 1")
        a(f"s_cmp_lg_u32 s{S_SPIN}, 0")
        a("s_cbranch_scc1 L_qc_wait")
        a("L_qc_go:")
        if not cfg.NOCOPY: qstores("sc1")
    if not cfg.CLR7:
        a(f"s_cmp_lg_u32 s{S_W}, 3")
        a("s_cbranch_scc1 L_q_prod2")
        if not cfg.NOCLR: emit_clears(a)
        a("s_waitcnt vmcnt(0)")
        emit_rdy(a)
    a("L_q_prod2:")
    emit_precompute(a,cfg)
    if cfg.CODEPF:
        a(f"s_cmp_lg_u32 s{S_W}, 2")
        a("s_cbranch_scc1 L_pf1_skip")
        emit_codepf(a,cfg,"L_pf1","L_q_ready","L_exit")
        a("L_pf1_skip:")
    a(f"global_load_dwordx2 {vr(V_XRES,2)}, v9, {sr(P_X,2)}")
    a("s_branch L_kdone")
    a.ool(False)
    a("L_q_w1:")
    if NSW<2:
        a("s_branch L_kdone")
    a(f"v_mov_b32 v10, {L_QF}")
    a(f"s_mov_b32 s{S_SPIN}, {cfg.SPIN}")
    a("L_qf_wait:")
    a(f"ds_read_b32 v11, v10")
    a("s_waitcnt lgkmcnt(0)")
    a(f"v_readfirstlane_b32 s{S_T0}, v11")
    a("s_nop 1")
    a(f"s_cmp_lg_u32 s{S_T0}, 0")
    a("s_cbranch_scc1 L_q_ready")
    a(f"s_sub_u32 s{S_SPIN}, s{S_SPIN}, 1")
    a(f"s_cmp_lg_u32 s{S_SPIN}, 0")
    a("s_cbranch_scc1 L_qf_wait")
    a("s_branch L_q_ready")
    a("L_q_w0:")
    a(f"s_lshl_b32 s{S_T0}, s{S_H}, 16")
    a(f"s_lshl_b32 s{S_T1}, s{S_B}, 10")
    a(f"s_add_u32 s{S_T0}, s{S_T0}, s{S_T1}")
    a(f"s_add_u32 s{S_T0}, s{S_T0}, {W_QP}")
    a(f"v_add_u32 v10, s{S_T0}, v{V_VOFF}")
    for j in range(8):
        a(f"v_add_u32 v{V_T+8+j}, {j*8192}, v10")
    PQ=V_X+16
    lp=a.label("qpoll"); dn=a.label("qok")
    a(f"s_mov_b32 s{S_SPIN}, {cfg.SPIN}")
    a(f"{lp}:")
    for j in range(8):
        a(f"global_load_dwordx4 {vr(PQ+4*j,4)}, v{V_T+8+j}, {sr(P_WS,2)} sc1")
    a("s_waitcnt vmcnt(0)")
    a(f"v_mov_b32 v11, 0")
    for j in range(8):
        a(f"v_xor_b32 v12, s{S_TAG}, v{PQ+4*j+2}")
        a(f"v_xor_b32 v13, s{S_TAG+1}, v{PQ+4*j+3}")
        a(f"v_or3_b32 v11, v11, v12, v13")
    a(f"v_cmp_ne_u32 vcc, 0, v11")
    a(f"s_cbranch_vccz {dn}")
    if cfg.QSLEEP: a(f"s_sleep {cfg.QSLEEP}")
    a(f"s_sub_u32 s{S_SPIN}, s{S_SPIN}, 1")
    a(f"s_cmp_lg_u32 s{S_SPIN}, 0")
    a(f"s_cbranch_scc1 {lp}")
    a(f"{dn}:")
    stamp(a,cfg,14)
    for j in range(1,8):
        a(f"v_add_f32 v{PQ}, v{PQ}, v{PQ+4*j}")
        a(f"v_add_f32 v{PQ+1}, v{PQ+1}, v{PQ+4*j+1}")
    a(f"v_cvt_pk_bf16_f32 v{PQ+2}, v{PQ}, v{PQ+1}")
    a(f"v_lshlrev_b32 v11, 2, v{V_LANE}")
    a(f"v_add_u32 v11, {L_QS}, v11")
    a(f"ds_write_b32 v11, v{PQ+2}")
    a("s_waitcnt lgkmcnt(0)")
    a(f"v_mov_b32 v10, {L_QF}")
    a(f"v_mov_b32 v11, 1")
    a(f"ds_write_b32 v10, v11")
    a("L_q_ready:")
    stamp(a,cfg,2)
    a(f"v_lshlrev_b32 v10, 2, v3")
    a(f"v_add_u32 v10, v10, v5")
    a(f"v_lshlrev_b32 v10, 4, v10")
    a(f"v_add_u32 v10, {L_QS}, v10")
    a(f"ds_read_b128 {vr(V_T,4)}, v10")
    a(f"s_lshl_b32 s{S_T0}, s{S_W}, 6")
    a(f"s_add_u32 s{S_T0}, s{S_T0}, {L_SC}")
    a(f"v_lshlrev_b32 v10, 4, v4")
    a(f"v_lshlrev_b32 v11, 2, v3")
    a(f"v_add3_u32 v{V_SCW}, v10, v11, s{S_T0}")
    a("s_waitcnt lgkmcnt(0)")
    for n in range(4):
        a(f"v_cmp_eq_u32 vcc, {n}, v4")
        a("s_nop 1")
        for c in range(4):
            a(f"v_cndmask_b32 v{V_QA+4*n+c}, 0, v{V_T+c}, vcc")
    import math
    PERK=LK*4//math.gcd(LK,4)
    def kpost(acc, sc_off):
        t=V_T
        a(f"v_mov_b32_dpp v{t}, v{acc} quad_perm:[0,0,0,0] row_mask:0xf bank_mask:0xf")
        for q in range(1,4):
            a(f"v_add_f32_dpp v{t}, v{acc+q}, v{t} quad_perm:[{q},{q},{q},{q}] row_mask:0xf bank_mask:0xf")
        round_bf16(a,t,t)
        a(f"v_mul_f32 v{t}, s{S_SCALE}, v{t}")
        round_bf16(a,t,t)
        a(f"v_max_f32 v{V_MAX}, v{V_MAX}, v{t}")
        a(f"ds_write_b32 v{V_SCW}, v{t} offset:{sc_off}")
    def kbody(j, wait_n, reissue, sc_off, prev_off=None, last=False):
        a(f"s_waitcnt vmcnt({wait_n})")
        a("s_nop 0")
        n=j%4
        if cfg.KEXP==2:
            acc=V_SACC if (j//4)%2==0 else V_SACC2
        else:
            acc=V_SACC
        c="0" if n==0 else vr(acc,4)
        a(f"v_mfma_f32_16x16x32_bf16 {vr(acc,4)}, {vr(V_QA+4*n,4)}, {vr(V_RING+(j%LK)*4,4)}, {c}")
        reissue()
        if cfg.KEXP==2:
            if n==1 and prev_off is not None:
                kpost(V_SACC2 if (j//4)%2==0 else V_SACC, prev_off)
            if n==3 and last:
                a("s_nop 7")
                kpost(acc, sc_off)
        elif n==3:
            if cfg.KEXP==1: return
            a("s_nop 7")
            kpost(acc, sc_off)
    if cfg.KEXP==2 and (PERK//4)%2: PERK*=2
    nloop=(NK-LK)//PERK
    TS=NSW*64
    if cfg.KEXP==2:
        for j in range(4):
            kbody(j, LK-1, (lambda j=j: kload(j+LK)), 0, None)
        base=4
        nloop=(NK-LK-4)//PERK
    else:
        base=0
    if cfg.LS:
        assert cfg.KEXP!=2 and cfg.KS0%PERK==0
        for j in range(cfg.KS0):
            kbody(j, cfg.LS-1, (lambda j=j: kload(j+cfg.LS)), (j//4)*TS)
        for m in range(cfg.KS0+cfg.LS, cfg.KS0+LK): kload(m)
        a(f"v_add_u32 v{V_SCW}, {(cfg.KS0//4)*TS}, v{V_SCW}")
        nloop=(NK-LK-cfg.KS0)//PERK
    a(f"s_mov_b32 s{S_LOOP}, {nloop}")
    a(".p2align 6")
    a("L_kloop:")
    for j in range(base,base+PERK):
        kbody(j, LK-1, (lambda j=j: kload(j+LK)), ((j-0)//4)*TS, ((j//4)-1)*TS)
    a(f"v_add_u32 v{V_SCW}, {(PERK//4)*TS}, v{V_SCW}")
    a(f"s_sub_u32 s{S_LOOP}, s{S_LOOP}, 1")
    a(f"s_cmp_lg_u32 s{S_LOOP}, 0")
    a("s_cbranch_scc1 L_kloop")
    done=base+nloop*PERK+(cfg.KS0 if cfg.LS else 0)
    for j in range(done, NK):
        m=j+LK
        if m<NK: ri=(lambda m=m: kload(m)); wn=LK-1
        elif m-NK<L: ri=(lambda m=m: vload(m-NK, first=(m==NK))); wn=LK-1
        else: ri=(lambda: None); wn=(NK-1-j)+L
        rel=(j-nloop*PERK-(cfg.KS0 if cfg.LS else 0))//4
        kbody(j, wn, ri, rel*TS, (rel-1)*TS, last=(j==NK-1))
    a("L_kdone:")
    stamp(a,cfg,3)
    wave_sum(a, V_MAX, V_T, op="max")
    a(f"s_lshl_b32 s{S_T0}, s{S_W}, 2")
    a(f"s_add_u32 s{S_T0}, s{S_T0}, {L_ML}")
    a(f"v_mov_b32 v11, s{S_T0}")
    a(f"ds_write_b32 v11, v{V_MAX}")
    a("s_waitcnt lgkmcnt(0)")
    a("s_barrier")
    if cfg.LATE_L:
        a(f"s_cmp_lg_u32 s{S_W}, 2")
        a("s_cbranch_scc1 L_nokd")
        a(f"v_mov_b32 v12, {L_MODE}")
        a(f"ds_read_b32 v13, v12")
        a(f"s_lshl_b32 s{S_T0}, s{S_X}, 9")
        a(f"s_add_u32 s{S_T0}, s{S_T0}, {W_KD}")
        a(f"v_and_b32 v10, 31, v{V_LANE}")
        a(f"v_lshlrev_b32 v10, 4, v10")
        a(f"v_add_u32 v10, s{S_T0}, v10")
        a(f"global_load_dwordx4 {vr(V_RDY,4)}, v10, {sr(P_WS,2)} sc1")
        if cfg.LATE_X:
            a(f"s_lshl_b32 s{S_T2}, s{S_R}, 7")
            a(f"s_add_u32 s{S_T2}, s{S_T2}, {W_KX}")
            a(f"v_and_b32 v11, 7, v{V_LANE}")
            a(f"v_lshlrev_b32 v11, 4, v11")
            a(f"v_add_u32 v11, s{S_T2}, v11")
            a(f"global_load_dwordx4 {vr(V_KX,4)}, v11, {sr(P_WS,2)} sc1")
        a(f"s_lshl_b32 s{S_T1}, s{S_R}, 4")
        a(f"s_add_u32 s{S_T0}, s{S_T0}, s{S_T1}")
        a(f"v_mov_b32 v10, s{S_T0}")
        if cfg.LATE_X:
            a(f"s_lshl_b32 s{S_T1}, s{S_X}, 4")
            a(f"s_add_u32 s{S_T2}, s{S_T2}, s{S_T1}")
            a(f"v_mov_b32 v11, s{S_T2}")
        a(f"v_mov_b32 v{V_X+8}, 1")
        a(f"v_mov_b32 v{V_X+9}, 0")
        a(f"v_mov_b32 v{V_X+10}, s{S_TAG}")
        a(f"v_mov_b32 v{V_X+11}, s{S_TAG+1}")
        a("s_waitcnt lgkmcnt(0)")
        a(f"v_readfirstlane_b32 s{S_FAST}, v13")
        a("s_nop 1")
        a(f"s_sub_u32 s{S_FAST}, s{S_FAST}, 1")
        set_exec(a,1,0)
        store_mode(a, f"global_store_dwordx4 v10, {vr(V_X+8,4)}, {sr(P_WS,2)}", True)
        if cfg.LATE_X: a(f"global_store_dwordx4 v11, {vr(V_X+8,4)}, {sr(P_WS,2)} sc1")
        full_exec(a)
        a(f"v_mov_b32 v10, {L_SEL}")
        a(f"v_mov_b32 v11, 0")
        a(f"ds_write_b32 v10, v11")
        a("L_nokd:")
    a(f"s_cmp_lt_u32 s{S_W}, {NSW}")
    a("s_cbranch_scc1 L_nohv")
    a(f"s_sub_u32 s{S_T0}, s{S_W}, {NSW}")
    a(f"s_mul_i32 s{S_T0}, s{S_T0}, {HV*4096}")
    if cfg.ROT or cfg.ROTX:
        assert HV==1
        a(f"s_add_u32 s{S_T0}, s{S_T0}, s{S_ROT}")
        a(f"s_and_b32 s{S_T0}, s{S_T0}, 0xfffff")
    for t in range(HV):
        for n in range(4):
            a(f"buffer_load_dwordx4 {vr(V_RING+t*16+n*4,4)}, v{V_VOFF}, {sr(SRD_V,4)}, s{S_T0} offen offset:{n*1024} {cfg.VFLAGS}")
        if t<HV-1: a(f"s_add_u32 s{S_T0}, s{S_T0}, 4096")
    a("L_nohv:")
    a(f"v_mov_b32 v12, {L_MODE}")
    a(f"ds_read_b32 v13, v12")
    a(f"v_mov_b32 v11, {L_ML}")
    a(f"ds_read_b128 {vr(V_X,4)}, v11")
    a(f"ds_read_b128 {vr(V_X+4,4)}, v11 offset:16")
    a(f"s_lshl_b32 s{S_T4}, s{S_W}, 11")
    a(f"s_add_u32 s{S_T4}, s{S_T4}, {L_SC}")
    a(f"v_lshlrev_b32 v10, 5, v{V_LANE}")
    a(f"v_add_u32 v10, s{S_T4}, v10")
    a(f"ds_read_b128 {vr(V_T,4)}, v10")
    a(f"ds_read_b128 {vr(V_T+4,4)}, v10 offset:16")
    a("s_waitcnt lgkmcnt(2)")
    a(f"v_readfirstlane_b32 s{S_FAST}, v13")
    a(f"v_max3_f32 v{V_MAX}, v{V_X}, v{V_X+1}, v{V_X+2}")
    a(f"s_sub_u32 s{S_FAST}, s{S_FAST}, 1")
    a(f"v_max3_f32 v{V_MAX}, v{V_MAX}, v{V_X+3}, v{V_X+4}")
    a(f"v_max3_f32 v{V_MAX}, v{V_MAX}, v{V_X+5}, v{V_X+6}")
    a(f"v_max_f32 v{V_MAX}, v{V_MAX}, v{V_X+7}")
    a("s_waitcnt lgkmcnt(0)")
    for i in range(8):
        a(f"v_sub_f32 v{V_T+8+i}, v{V_T+i}, v{V_MAX}")
        a(f"v_mul_f32 v{V_T+8+i}, s{S_LOG2E}, v{V_T+8+i}")
        a(f"v_exp_f32 v{V_T+8+i}, v{V_T+8+i}")
    a("s_nop 0")
    a(f"v_add_f32 v{V_T+16}, v{V_T+8}, v{V_T+9}")
    for i in range(2,8):
        a(f"v_add_f32 v{V_T+16}, v{V_T+16}, v{V_T+8+i}")
    wave_sum(a, V_T+16, V_T+17)
    a(f"s_lshl_b32 s{S_T0}, s{S_W}, 2")
    a(f"s_add_u32 s{S_T0}, s{S_T0}, {L_LS}")
    a(f"v_mov_b32 v11, s{S_T0}")
    a(f"ds_write_b32 v11, v{V_T+16}")
    a("s_waitcnt lgkmcnt(0)")
    a("s_barrier")
    a(f"v_mov_b32 v11, {L_LS}")
    a(f"ds_read_b128 {vr(V_X,4)}, v11")
    a(f"ds_read_b128 {vr(V_X+4,4)}, v11 offset:16")
    a("s_waitcnt lgkmcnt(0)")
    a(f"v_add_f32 v{V_T+16}, v{V_X}, v{V_X+1}")
    for k in range(2,8):
        a(f"v_add_f32 v{V_T+16}, v{V_T+16}, v{V_X+k}")
    a(f"v_rcp_f32 v{V_T+17}, v{V_T+16}")
    a("s_nop 0")
    a(f"v_fma_f32 v{V_T+18}, -v{V_T+16}, v{V_T+17}, 1.0")
    a(f"v_fma_f32 v{V_T+17}, v{V_T+18}, v{V_T+17}, v{V_T+17}")
    for i in range(8):
        a(f"v_mul_f32 v{V_T+8+i}, v{V_T+8+i}, v{V_T+17}")
        a(f"v_cvt_pk_bf16_f32 v{V_T+8+i}, v{V_T+8+i}, v{V_T+8+i}")
    a(f"ds_write_b128 v10, {vr(V_T+8,4)}")
    a(f"ds_write_b128 v10, {vr(V_T+12,4)} offset:16")
    a("s_waitcnt lgkmcnt(0)")
    a("s_barrier")
    stamp(a,cfg,4)
    def ands(dst,pp):
        for w in range(4):
            a(f"v_and_b32 v{dst+w}, v{pp}, v{V_MASK+w}")
    a(f"s_cmp_lt_u32 s{S_W}, {NSW}")
    a("s_cbranch_scc1 L_vstream")
    if cfg.LATE_L:
        a(f"s_cmp_lg_u32 s{S_W}, 2")
        a("s_cbranch_scc1 L_nokd2")
        a(f"s_waitcnt vmcnt({(2 if cfg.LATE_X else 1)+4*HV})")
        a(f"v_xor_b32 v11, s{S_TAG}, v{V_RDY+2}")
        a(f"v_xor_b32 v15, s{S_TAG+1}, v{V_RDY+3}")
        a(f"v_or_b32 v11, v11, v15")
        a(f"v_cmp_eq_u32 vcc, 0, v11")
        if cfg.LATE_X:
            a(f"v_xor_b32 v11, s{S_TAG}, v{V_KX+2}")
            a(f"v_xor_b32 v15, s{S_TAG+1}, v{V_KX+3}")
            a(f"v_or_b32 v11, v11, v15")
            a(f"v_cmp_eq_u32 {sr(S_B1,2)}, 0, v11")
        a("s_nop 1")
        a(f"s_bcnt1_i32_b32 s{S_T0}, vcc_lo")
        if cfg.LATE_X:
            a(f"s_and_b32 s{S_T1}, s{S_B1}, 0xff")
            a(f"s_bcnt1_i32_b32 s{S_T1}, s{S_T1}")
        if cfg.EARLY_L:
            a(f"s_cmp_le_u32 s{S_T0}, {cfg.EARLY_THR}")
            a(f"s_cselect_b32 s{S_T2}, 2, 0")
            a(f"s_cmp_ge_u32 s{S_T0}, {cfg.LATE_THR}")
            a(f"s_cselect_b32 s{S_T0}, 1, s{S_T2}")
        else:
            a(f"s_cmp_ge_u32 s{S_T0}, {cfg.LATE_THR}")
            a(f"s_cselect_b32 s{S_T0}, 1, 0")
        if cfg.LATE_X:
            a(f"s_cmp_ge_u32 s{S_T1}, {cfg.LATE_X}")
            a(f"s_cselect_b32 s{S_T0}, 1, s{S_T0}")
        a(f"v_mov_b32 v11, {L_SEL}")
        a(f"v_mov_b32 v15, s{S_T0}")
        a(f"ds_write_b32 v11, v15")
        a("L_nokd2:")
    a(f"s_sub_u32 s{S_T0}, s{S_W}, {NSW}")
    a(f"s_mul_i32 s{S_T0}, s{S_T0}, {HV*64}")
    a(f"s_add_u32 s{S_T0}, s{S_T0}, {L_SC}")
    a(f"v_lshlrev_b32 v10, 4, v3")
    a(f"v_add_u32 v10, s{S_T0}, v10")
    for t in range(HV):
        a(f"ds_read_b128 {vr(V_PP0,4)}, v10 offset:{t*64}")
        a(f"s_waitcnt vmcnt({4*(HV-1-t)}) lgkmcnt(0)")
        for n in range(4):
            A=V_A0 if n%2==0 else V_A1
            ands(A,V_PP0+n)
            a("s_nop 1")
            a(f"v_mfma_f32_16x16x32_bf16 {vr(V_OACC,4)}, {vr(A,4)}, {vr(V_RING+t*16+4*n,4)}, {vr(V_OACC,4)}")
    a("s_nop 7")
    set_exec(a, -1, 0)
    a(f"ds_write_b128 v{PA_OW}, {vr(V_OACC,4)}")
    full_exec(a)
    frag_reads(a,"ogd")
    if cfg.CODEPF:
        a(f"s_cmp_lg_u32 s{S_W}, 4")
        a("s_cbranch_scc1 L_pf2_skip")
        emit_codepf(a,cfg,"L_pf2","L_vdone","L_exit")
        a("L_pf2_skip:")
    a("s_waitcnt vmcnt(0) lgkmcnt(0)")
    a("s_branch L_vdone")
    a("L_vstream:")
    a(f"s_add_u32 s{S_T0}, s{S_W}, {NH*HV}")
    a(f"s_lshl_b32 s{S_T0}, s{S_T0}, 6")
    a(f"s_add_u32 s{S_T0}, s{S_T0}, {L_SC}")
    a(f"v_lshlrev_b32 v10, 4, v3")
    a(f"v_add_u32 v{V_PPR}, s{S_T0}, v10")
    a(f"ds_read_b128 {vr(V_PP0,4)}, v{V_PPR}")
    import math as _m
    base_ring=[(NK-LK+v)%LK for v in range(L)]
    spare=[x for x in range(16) if x not in base_ring]
    def vbody2(jv, rel, wait_n, slot, last_tile):
        n=jv%4; par=(jv//4)%2
        pp = V_PP0 if par==0 else V_PP1
        ppn = V_PP1 if par==0 else V_PP0
        if n==0:
            if not last_tile:
                a(f"ds_read_b128 {vr(ppn,4)}, v{V_PPR} offset:{(rel+1)*NSW*64}")
                a(f"s_waitcnt lgkmcnt(1)")
                a("s_nop 0")
            else:
                a(f"s_waitcnt lgkmcnt(0)")
                a("s_nop 0")
        A=V_A0 if n%2==0 else V_A1
        ands(A,pp+n)
        a(f"s_waitcnt vmcnt({wait_n})")
        a("s_nop 0")
        a(f"v_mfma_f32_16x16x32_bf16 {vr(V_OACC,4)}, {vr(A,4)}, {vr(V_RING+slot*4,4)}, {vr(V_OACC,4)}")
    def vissue(jn, slot):
        a(f"buffer_load_dwordx4 {vr(V_RING+slot*4,4)}, v{V_VOFF}, {sr(SRD_V,4)}, s{S_KOFF} offen offset:{(jn%4)*1024} {cfg.VFLAGS}")
        if jn%4==3:
            a(f"s_add_u32 s{S_KOFF}, s{S_KOFF}, {TSTEP}")
            if cfg.ROT or cfg.ROTX: a(f"s_and_b32 s{S_KOFF}, s{S_KOFF}, 0xfffff")
    S0=cfg.SEG0 if cfg.LATE_L else 0
    assert S0%8==0
    for jv in range(S0):
        vbody2(jv, jv//4, L-1, base_ring[jv%L], False)
        vissue(jv+L, base_ring[jv%L])
    if S0: a(f"v_add_u32 v{V_PPR}, {(S0//4)*NSW*64}, v{V_PPR}")
    def vstream(LV, sfx):
        cur=[base_ring[(S0+i)%L] for i in range(L)]
        j0=S0
        if LV<L:
            for d in range(L-LV):
                vbody2(j0, (j0-S0)//4, L-1-d, cur[0], False); cur=cur[1:]; j0+=1
            ring=cur
        else:
            ring=cur+spare[:LV-L]
            for k in range(L,LV): vissue(S0+k, ring[k])
        per=LV*4//_m.gcd(LV,4)
        if (per//4)%2: per*=2
        nl=(NV-j0-LV)//per
        a(f"s_mov_b32 s{S_LOOP}, {nl}")
        a(".p2align 6")
        a(f"L_vloop{sfx}:")
        for i in range(per):
            vbody2(j0+i, (j0+i-S0)//4, LV-1, ring[i%LV], False)
            vissue(j0+i+LV, ring[i%LV])
        a(f"v_add_u32 v{V_PPR}, {(per//4)*NSW*64}, v{V_PPR}")
        a(f"s_sub_u32 s{S_LOOP}, s{S_LOOP}, 1")
        a(f"s_cmp_lg_u32 s{S_LOOP}, 0")
        a(f"s_cbranch_scc1 L_vloop{sfx}")
        start=nl*per
        for i in range(start,NV-j0):
            jv=j0+i
            vbody2(jv, (jv-S0-start)//4, min(LV-1, NV-1-jv), ring[i%LV], jv//4==VT-1)
            if jv+LV<NV: vissue(jv+LV, ring[i%LV])
    if cfg.LATE_L:
        a(f"v_mov_b32 v10, {L_SEL}")
        a(f"ds_read_b32 v11, v10")
        a("s_waitcnt lgkmcnt(0)")
        a(f"v_readfirstlane_b32 s{S_T0}, v11")
        a("s_nop 1")
        a(f"s_cmp_eq_u32 s{S_T0}, 1")
        a("s_cbranch_scc1 L_vlate")
        if cfg.EARLY_L:
            a(f"s_cmp_eq_u32 s{S_T0}, 2")
            a("s_cbranch_scc1 L_vearly")
    vstream(L,"")
    if cfg.LATE_L:
        a("s_branch L_vdone")
        a.ool(True)
        a("L_vlate:")
        vstream(cfg.LATE_L,"b")
        a("s_branch L_vdone")
        if cfg.EARLY_L:
            a("L_vearly:")
            vstream(cfg.EARLY_L,"c")
            a("s_branch L_vdone")
        a.ool(False)
    a("L_vdone:")
    stamp(a,cfg,5)
    return a, None

PA=208
PA_O=PA+0; PA_T2=PA+1; PA_DW=PA+2; PA_R2=PA+3; PA_P2=PA+4; PA_T3A=PA+5; PA_T3B=PA+6; PA_T3W=PA+7; PA_T3R=PA+8; PA_H=PA+9
PA_T4=PA+10; PA_LNBW=PA+11; PA_HSW=PA+12; PA_LNBR=PA+13; PA_GP=PA+14; PA_ACT=PA+15; PA_T6=PA+16; PA_OUT=PA+17; PA_HSR=PA+18
PA_OW=PA+19; PA_OR=PA+20; PA_TR=PA+21
PA_T5B=PA+24
PA_T7=PA+28
V_XRES=PA+36
V_RDY=PA+40
V_KX=PA+44
SM_LNB=8; SM_HS=10
R_T1=2; R_RED0=2
R_W0=3

def emit_precompute(a, cfg):
    global SM_LNB, SM_HS
    T0,T1,T2,T3,T4,T5=S_T0,S_T1,S_T2,S_T3,S_T4,S_T5
    a(f"s_lshl_b32 s{T0}, s{S_H}, 3")
    a(f"s_add_u32 s{T0}, s{T0}, s{S_B}")
    a(f"s_lshl_b32 s{T0}, s{T0}, 8")
    a(f"s_add_u32 s{T0}, s{T0}, {W_OB}")
    a(f"v_lshlrev_b32 v10, 2, v{V_LANE}")
    a(f"v_add_u32 v{PA_O}, s{T0}, v10")
    a(f"s_lshl_b32 s{T0}, s{S_W}, 9")
    a(f"s_add_u32 s{T0}, s{T0}, {L_RED}")
    a(f"v_lshlrev_b32 v11, 5, v2")
    a(f"v_lshlrev_b32 v12, 4, v3")
    a(f"v_add3_u32 v{PA_OW}, v11, v12, s{T0}")
    a(f"v_lshlrev_b32 v11, 3, v{V_LANE}")
    a(f"v_add_u32 v{PA_OR}, {L_RED}, v11")
    a(f"v_lshlrev_b32 v11, 3, v3")
    a(f"v_add_u32 v11, v11, v4")
    a(f"v_lshlrev_b32 v11, 7, v11")
    a(f"v_lshlrev_b32 v13, 3, v5")
    a(f"v_add_u32 v{PA_TR}, v11, v13")
    a(f"s_lshr_b32 s{T4}, s{S_R}, 4")
    a(f"s_and_b32 s{T5}, s{S_R}, 15")
    a(f"v_and_b32 v14, 7, v{V_LANE}")
    a(f"s_lshl_b32 s{T0}, s{S_X}, 2")
    a(f"s_lshl_b32 s{T1}, s{T4}, 1")
    a(f"s_add_u32 s{T0}, s{T0}, s{T1}")
    a(f"s_lshr_b32 s{T1}, s{S_W}, 2")
    a(f"s_add_u32 s{T0}, s{T0}, s{T1}")
    a(f"s_lshl_b32 s{T0}, s{T0}, 11")
    a(f"s_and_b32 s{T1}, s{S_W}, 3")
    a(f"s_lshl_b32 s{T1}, s{T1}, 6")
    a(f"s_add_u32 s{T0}, s{T0}, s{T1}")
    a(f"s_add_u32 s{T0}, s{T0}, {W_OB}")
    a(f"v_lshlrev_b32 v10, 8, v14")
    a(f"v_add3_u32 v{PA_T2}, v10, v12, s{T0}")
    a(f"s_lshl_b32 s{T0}, s{S_W}, 11")
    a(f"s_add_u32 s{T0}, s{T0}, {L_SC}")
    a(f"v_lshlrev_b32 v10, 8, v2")
    a(f"v_xor_b32 v11, v3, v5")
    a(f"v_lshlrev_b32 v11, 4, v11")
    a(f"v_add3_u32 v{PA_DW}, v10, v11, s{T0}")
    a(f"s_sub_u32 s{T0}, s{S_W}, {R_RED0}")
    a(f"s_lshl_b32 s{T0}, s{T0}, 6")
    a(f"v_add_u32 v10, s{T0}, v{V_LANE}")
    a(f"v_and_b32 v10, 127, v10")
    a(f"v_lshrrev_b32 v11, 4, v10")
    a(f"v_and_b32 v13, 3, v11")
    a(f"v_xor_b32 v13, v13, v10")
    a(f"v_lshlrev_b32 v13, 4, v13")
    a(f"v_add_u32 v{PA_R2}, {L_SC}, v13")
    a(f"s_lshl_b32 s{T0}, s{S_X}, 1")
    a(f"s_add_u32 s{T0}, s{T0}, s{T4}")
    a(f"s_lshl_b32 s{T0}, s{T0}, 15")
    a(f"s_lshl_b32 s{T1}, s{T5}, 8")
    a(f"s_add_u32 s{T0}, s{T0}, s{T1}")
    a(f"s_add_u32 s{T0}, s{T0}, {W_AP}")
    a(f"v_lshrrev_b32 v11, 4, v10")
    a(f"v_lshlrev_b32 v11, 12, v11")
    a(f"v_lshlrev_b32 v13, 4, v2")
    a(f"v_add3_u32 v{PA_P2}, v11, v13, s{T0}")
    a(f"s_lshr_b32 s{T0}, s{S_R}, 2")
    a(f"s_lshl_b32 s{T0}, s{T0}, 12")
    a(f"s_and_b32 s{T1}, s{S_R}, 3")
    a(f"s_lshl_b32 s{T1}, s{T1}, 10")
    a(f"s_add_u32 s{T0}, s{T0}, s{T1}")
    a(f"s_lshl_b32 s{T1}, s{S_W}, 16")
    a(f"s_add_u32 s{T0}, s{T0}, s{T1}")
    a(f"s_add_u32 s{T0}, s{T0}, {W_AP}")
    a(f"v_add_u32 v{PA_T3A}, s{T0}, v{V_VOFF}")
    a(f"v_add_u32 v{PA_T3B}, 32768, v{PA_T3A}")
    RED3=L_RED+4096
    a(f"s_lshl_b32 s{T0}, s{S_W}, 10")
    a(f"s_add_u32 s{T0}, s{T0}, {RED3}")
    a(f"v_add_u32 v{PA_T3W}, s{T0}, v{V_VOFF}")
    a(f"v_add_u32 v{PA_T3R}, {RED3}, v{V_VOFF}")
    a(f"s_lshr_b32 s{T0}, s{S_R}, 2")
    a(f"s_lshl_b32 s{T1}, s{S_X}, 3")
    a(f"s_add_u32 s{T0}, s{T0}, s{T1}")
    a(f"s_lshl_b32 s{T0}, s{T0}, 11")
    a(f"s_and_b32 s{T1}, s{S_R}, 3")
    a(f"s_lshl_b32 s{T1}, s{T1}, 9")
    a(f"s_add_u32 s{T0}, s{T0}, s{T1}")
    a(f"s_add_u32 s{T0}, s{T0}, {W_HB}")
    a(f"v_lshlrev_b32 v10, 3, v{V_LANE}")
    a(f"v_add_u32 v{PA_H}, s{T0}, v10")
    a(f"s_lshr_b32 s{T0}, s{S_R}, 2")
    a(f"s_lshl_b32 s{T0}, s{T0}, 11")
    a(f"s_add_u32 s{T0}, s{T0}, s{T1}")
    a(f"v_add_u32 v9, s{T0}, v10")
    a(f"s_lshl_b32 s{T0}, s{S_X}, 3")
    a(f"s_add_u32 s{T0}, s{T0}, s{S_W}")
    a(f"s_lshl_b32 s{T0}, s{T0}, 11")
    a(f"s_add_u32 s{T0}, s{T0}, {W_HB}")
    a(f"v_lshlrev_b32 v10, 5, v{V_LANE}")
    a(f"v_add_u32 v{PA_T4}, s{T0}, v10")
    a(f"s_mul_i32 s{T2}, s{S_R}, 37")
    a(f"s_lshr_b32 s{T2}, s{T2}, 8")
    a(f"s_mul_i32 s{T3}, s{T2}, 7")
    a(f"s_sub_u32 s{T3}, s{S_R}, s{T3}")
    a(f"s_lshl_b32 s{T0}, s{T2}, 4")
    a(f"v_subrev_u32 v10, s{T0}, v{V_LANE}")
    a(f"v_cmp_gt_u32 {sr(SM_LNB,2)}, 16, v10")
    a(f"s_mul_i32 s{T1}, s{S_W}, {LNB_P}")
    a(f"s_add_u32 s{T1}, s{T1}, {L_LNB}")
    a(f"v_lshlrev_b32 v10, 5, v10")
    a(f"v_add_u32 v{PA_LNBW}, s{T1}, v10")
    a(f"s_lshl_b32 s{T0}, s{S_R}, 1")
    a(f"v_subrev_u32 v10, s{T0}, v{V_LANE}")
    a(f"v_cmp_gt_u32 {sr(SM_HS,2)}, 2, v10")
    a(f"v_lshlrev_b32 v10, 5, v10")
    a(f"v_add_u32 v{PA_HSW}, {L_HS}, v10")
    a(f"v_mul_u32_u24 v10, {LNB_P}, v14")
    a(f"v_add_u32 v10, v10, v12")
    a(f"v_add_u32 v{PA_LNBR}, {L_LNB}, v10")
    a(f"s_mul_i32 s{T0}, s{S_X}, 28")
    a(f"s_add_u32 s{T0}, s{T0}, s{S_R}")
    a(f"s_lshl_b32 s{T0}, s{T0}, 12")
    a(f"s_lshr_b32 s{T1}, s{S_W}, 2")
    a(f"s_lshl_b32 s{T1}, s{T1}, 11")
    a(f"s_add_u32 s{T0}, s{T0}, s{T1}")
    a(f"s_and_b32 s{T1}, s{S_W}, 3")
    a(f"s_lshl_b32 s{T1}, s{T1}, 6")
    a(f"s_add_u32 s{T0}, s{T0}, s{T1}")
    a(f"s_add_u32 s{T0}, s{T0}, {W_GP}")
    a(f"v_lshlrev_b32 v10, 8, v2")
    a(f"v_add3_u32 v{PA_GP}, v10, v12, s{T0}")
    a(f"s_mul_i32 s{T0}, s{S_X}, 28")
    a(f"s_add_u32 s{T0}, s{T0}, s{T3}")
    a(f"s_lshl_b32 s{T0}, s{T0}, 12")
    a(f"s_lshl_b32 s{T1}, s{T2}, 9")
    a(f"s_add_u32 s{T0}, s{T0}, s{T1}")
    a(f"s_add_u32 s{T0}, s{T0}, {W_GP}")
    a(f"v_lshrrev_b32 v10, 5, v{V_LANE}")
    a(f"v_and_b32 v11, 31, v{V_LANE}")
    a(f"v_lshlrev_b32 v13, 8, v10")
    a(f"v_lshlrev_b32 v15, 3, v11")
    a(f"v_add3_u32 v{PA_T5B}, v13, v15, s{T0}")
    for k in range(1,4):
        a(f"v_add_u32 v{PA_T5B+k}, {k*7*4096}, v{PA_T5B}")
    a(f"s_lshl_b32 s{T0}, s{S_X}, 3")
    a(f"s_lshl_b32 s{T1}, s{T2}, 1")
    a(f"s_add_u32 s{T0}, s{T0}, s{T1}")
    a(f"s_mul_i32 s{T0}, s{T0}, 896")
    a(f"s_lshl_b32 s{T1}, s{T3}, 7")
    a(f"s_add_u32 s{T0}, s{T0}, s{T1}")
    a(f"s_add_u32 s{T0}, s{T0}, {W_ACT}")
    a(f"v_mul_u32_u24 v13, 896, v10")
    a(f"v_lshlrev_b32 v15, 2, v11")
    a(f"v_add3_u32 v{PA_ACT}, v13, v15, s{T0}")
    a(f"s_mul_i32 s{T0}, s{S_X}, {8*896}")
    a(f"s_mul_i32 s{T1}, s{T4}, 448")
    a(f"s_add_u32 s{T0}, s{T0}, s{T1}")
    a(f"s_lshl_b32 s{T1}, s{S_W}, 6")
    a(f"s_add_u32 s{T0}, s{T0}, s{T1}")
    a(f"s_add_u32 s{T0}, s{T0}, {W_ACT}")
    a(f"v_mul_u32_u24 v13, 896, v14")
    a(f"v_add3_u32 v{PA_T6}, v13, v12, s{T0}")
    a(f"s_lshl_b32 s{T0}, s{S_X}, 12")
    a(f"s_lshl_b32 s{T1}, s{S_R}, 7")
    a(f"s_add_u32 s{T0}, s{T0}, s{T1}")
    a(f"s_add_u32 s{T0}, s{T0}, {W_DP}")
    a(f"v_lshlrev_b32 v13, 18, v10")
    a(f"v_lshlrev_b32 v15, 2, v11")
    a(f"v_add3_u32 v{PA_T7}, v13, v15, s{T0}")
    for k in range(1,8):
        a(f"v_add_u32 v{PA_T7+k}, {k*32768}, v{PA_T7}")
    a(f"s_lshl_b32 s{T0}, s{S_X}, 11")
    a(f"s_lshl_b32 s{T1}, s{S_R}, 6")
    a(f"s_add_u32 s{T0}, s{T0}, s{T1}")
    a(f"v_lshlrev_b32 v15, 1, v11")
    a(f"v_add_u32 v{PA_OUT}, s{T0}, v15")
    a(f"v_add_u32 v{PA_HSR}, {L_HS}, v15")

def emit_codepf(a, cfg, lab, first, last):
    a(f"s_getpc_b64 {sr(S_B1,2)}")
    a(f"{lab}:")
    a(f"s_add_u32 s{S_B1}, s{S_B1}, ({first}-{lab})&0xffffffff")
    a(f"s_addc_u32 s{S_B1+1}, s{S_B1+1}, ({first}-{lab})>>32")
    a(f"v_lshlrev_b32 v10, 6, v{V_LANE}")
    a(f"s_mov_b32 s{S_T0}, {last}-{first}")
    a(f"{lab}_loop:")
    a(f"v_cmp_gt_u32 vcc, s{S_T0}, v10")
    a(f"s_and_saveexec_b64 {sr(S_EX,2)}, vcc")
    a(f"s_cbranch_execz {lab}_done")
    a(f"global_load_dword v11, v10, {sr(S_B1,2)}")
    a(f"s_mov_b64 exec, {sr(S_EX,2)}")
    a(f"v_add_u32 v10, 4096, v10")
    a(f"s_branch {lab}_loop")
    a(f"{lab}_done:")
    a(f"s_mov_b64 exec, {sr(S_EX,2)}")
    a("s_waitcnt vmcnt(0)")

def emit_rdycheck(a, cfg):
    f=1 if cfg.FASTMODE else 0
    a(f"s_cmp_lg_u32 s{S_W}, 4")
    a("s_cbranch_scc1 L_rdy_b")
    a(f"s_cmp_lg_u32 s{S_R}, 0")
    a("s_cbranch_scc1 L_rdy_done")
    a(f"s_lshl_b32 s{S_T0}, s{S_X}, 9")
    a(f"s_add_u32 s{S_T0}, s{S_T0}, {W_RDY}")
    a(f"v_and_b32 v10, 31, v{V_LANE}")
    a(f"v_lshlrev_b32 v10, 4, v10")
    a(f"v_add_u32 v10, s{S_T0}, v10")
    lp=a.label("rdy"); dn=a.label("rdyok")
    a(f"s_mov_b32 s{S_SPIN}, {cfg.SPIN}")
    a(f"{lp}:")
    a(f"global_load_dwordx4 {vr(V_RDY,4)}, v10, {sr(P_WS,2)} sc1")
    a("s_waitcnt vmcnt(0)")
    a(f"v_xor_b32 v11, s{S_TAG}, v{V_RDY+2}")
    a(f"v_xor_b32 v15, s{S_TAG+1}, v{V_RDY+3}")
    a(f"v_or_b32 v11, v11, v15")
    a(f"v_cmp_ne_u32 vcc, 0, v11")
    a(f"s_cbranch_vccz {dn}")
    a("s_sleep 16")
    a(f"s_sub_u32 s{S_SPIN}, s{S_SPIN}, 1")
    a(f"s_cmp_lg_u32 s{S_SPIN}, 0")
    a(f"s_cbranch_scc1 {lp}")
    a(f"{dn}:")
    a(f"v_readfirstlane_b32 s{S_T0}, v{V_RDY}")
    a("s_nop 1")
    a(f"v_cmp_ne_u32 vcc, s{S_T0}, v{V_RDY}")
    a(f"s_mov_b32 s{S_T2}, {f}")
    a("s_nop 1")
    a(f"s_cmp_eq_u64 vcc, 0")
    a(f"s_cselect_b32 s{S_T2}, s{S_T2}, 0")
    a(f"s_lshl_b32 s{S_T0}, s{S_X}, 4")
    a(f"s_add_u32 s{S_T0}, s{S_T0}, {W_GRDY}")
    a(f"v_mov_b32 v10, s{S_T0}")
    a(f"v_mov_b32 v12, s{S_T2}")
    a(f"v_mov_b32 v13, 0")
    a(f"v_mov_b32 v14, s{S_TAG}")
    a(f"v_mov_b32 v15, s{S_TAG+1}")
    set_exec(a,1,0)
    a(f"global_store_dwordx4 v10, v[12:15], {sr(P_WS,2)} sc1")
    full_exec(a)
    a("s_branch L_rdy_done")
    a("L_rdy_b:")
    a(f"s_cmp_lg_u32 s{S_W}, 5")
    a("s_cbranch_scc1 L_rdy_done")
    a(f"v_and_b32 v10, 7, v{V_LANE}")
    a(f"v_lshlrev_b32 v10, 4, v10")
    a(f"v_add_u32 v10, {W_GRDY}, v10")
    lp=a.label("grdy"); dn=a.label("grdyok")
    a(f"s_mov_b32 s{S_SPIN}, {cfg.SPIN}")
    a(f"{lp}:")
    set_exec(a,"0xff",0)
    a(f"global_load_dwordx4 {vr(V_RDY,4)}, v10, {sr(P_WS,2)} sc1")
    a("s_waitcnt vmcnt(0)")
    a(f"v_xor_b32 v11, s{S_TAG}, v{V_RDY+2}")
    a(f"v_xor_b32 v15, s{S_TAG+1}, v{V_RDY+3}")
    a(f"v_or_b32 v11, v11, v15")
    a(f"v_cmp_ne_u32 vcc, 0, v11")
    full_exec(a)
    a(f"s_cbranch_vccz {dn}")
    a("s_sleep 64")
    a(f"s_sub_u32 s{S_SPIN}, s{S_SPIN}, 1")
    a(f"s_cmp_lg_u32 s{S_SPIN}, 0")
    a(f"s_cbranch_scc1 {lp}")
    a(f"{dn}:")
    a(f"v_readlane_b32 s{S_T2}, v{V_RDY}, s{S_X}")
    a(f"v_mov_b32 v10, {L_MODE}")
    a("s_nop 1")
    a(f"s_add_u32 s{S_T2}, s{S_T2}, 1")
    a(f"v_mov_b32 v12, s{S_T2}")
    a(f"ds_write_b32 v10, v12")
    a("L_rdy_done:")

def poll_masked(a, name, loads, regs, cfg, tmp, nloads=1, stagger=0):
    lp=a.label(name+"_poll"); dn=a.label(name+"_ok")
    a(f"s_mov_b64 {sr(S_EX,2)}, exec")
    a(f"s_mov_b32 s{S_SPIN}, {cfg.SPIN}")
    if stagger:
        loads()
        a(f"s_sleep {stagger}")
    a(f"{lp}:")
    loads()
    a(f"s_waitcnt vmcnt({nloads if stagger else 0})")
    rs=list(regs)
    if len(rs)>=3:
        a(f"v_max3_u32 v{tmp}, v{rs[0]}, v{rs[1]}, v{rs[2]}"); i=3
    else:
        a(f"v_max_u32 v{tmp}, v{rs[0]}, v{rs[1]}"); i=2
    while i<len(rs):
        if i+1<len(rs):
            a(f"v_max3_u32 v{tmp}, v{tmp}, v{rs[i]}, v{rs[i+1]}"); i+=2
        else:
            a(f"v_max_u32 v{tmp}, v{tmp}, v{rs[i]}"); i+=1
    a(f"v_cmp_eq_u32 vcc, -1, v{tmp}")
    a(f"s_mov_b64 exec, vcc")
    a(f"s_cbranch_execz {dn}")
    if cfg.PSLEEP: a(f"s_sleep {cfg.PSLEEP}")
    a(f"s_sub_u32 s{S_SPIN}, s{S_SPIN}, 1")
    a(f"s_cmp_lg_u32 s{S_SPIN}, 0")
    a(f"s_cbranch_scc1 {lp}")
    a(f"{dn}:")
    a(f"s_mov_b64 exec, {sr(S_EX,2)}")

def frag_reads(a, which):
    WB=V_RING; WO_F=WB; GU_F=WB+16; WD_F=WB+48
    if "o" in which:
        a(f"s_lshl_b32 s{S_T0}, s{S_W}, 12")
        a(f"s_add_u32 s{S_T1}, s{S_T0}, {L_WO}")
        a(f"v_add_u32 v13, s{S_T1}, v{PA_TR}")
        for t in range(4):
            for hf in range(2):
                a(f"ds_read_b64_tr_b16 {vr(WO_F+4*t+2*hf,2)}, v13 offset:{hf*4*128+32*t}")
    if "g" in which:
        a(f"s_lshr_b32 s{S_T0}, s{S_W}, 2")
        a(f"s_lshl_b32 s{S_T0}, s{S_T0}, 15")
        a(f"s_and_b32 s{S_T1}, s{S_W}, 3")
        a(f"s_lshl_b32 s{S_T1}, s{S_T1}, 5")
        a(f"s_add_u32 s{S_T0}, s{S_T0}, s{S_T1}")
        a(f"s_add_u32 s{S_T0}, s{S_T0}, {L_WG}")
        a(f"v_add_u32 v15, s{S_T0}, v{PA_TR}")
        for s in range(8):
            for hf in range(2):
                a(f"ds_read_b64_tr_b16 {vr(GU_F+4*s+2*hf,2)}, v15 offset:{(32*s+4*hf)*128}")
    if "d" in which:
        a(f"s_lshl_b32 s{S_T0}, s{S_W}, 12")
        a(f"s_add_u32 s{S_T1}, s{S_T0}, {L_WD}")
        a(f"v_add_u32 v11, s{S_T1}, v{PA_TR}")
        for t in range(4):
            for hf in range(2):
                a(f"ds_read_b64_tr_b16 {vr(WD_F+4*t+2*hf,2)}, v11 offset:{hf*4*128+32*t}")

def layernorm2(a, vin, vf, vout, t):
    for i in range(8):
        a(f"v_lshlrev_b32 v{vf+2*i}, 16, v{vin+i}")
        a(f"v_and_b32 v{vf+2*i+1}, 0xffff0000, v{vin+i}")
    a(f"v_readfirstlane_b32 s{S_T4}, v{vf}")
    a("s_nop 1")
    a(f"v_mov_b32 v{t+6}, s{S_T4}")
    a(f"v_mov_b32 v{t+7}, s{S_T4}")
    for i in range(8):
        a(f"v_pk_add_f32 {vr(vf+2*i,2)}, {vr(vf+2*i,2)}, {vr(t+6,2)} neg_lo:[0,1] neg_hi:[0,1]")
    a(f"v_pk_add_f32 {vr(t,2)}, {vr(vf,2)}, {vr(vf+2,2)}")
    a(f"v_pk_mul_f32 {vr(t+2,2)}, {vr(vf,2)}, {vr(vf,2)}")
    a(f"v_pk_fma_f32 {vr(t+2,2)}, {vr(vf+2,2)}, {vr(vf+2,2)}, {vr(t+2,2)}")
    for i in range(2,8):
        a(f"v_pk_add_f32 {vr(t,2)}, {vr(t,2)}, {vr(vf+2*i,2)}")
        a(f"v_pk_fma_f32 {vr(t+2,2)}, {vr(vf+2*i,2)}, {vr(vf+2*i,2)}, {vr(t+2,2)}")
    a(f"v_add_f32 v{t}, v{t}, v{t+1}")
    a(f"v_add_f32 v{t+2}, v{t+2}, v{t+3}")
    for k in (8,4,2,1):
        a("s_nop 0")
        a(f"v_add_f32_dpp v{t}, v{t}, v{t} row_ror:{k} row_mask:0xf bank_mask:0xf")
        a("s_nop 0") if False else None
        a(f"v_add_f32_dpp v{t+2}, v{t+2}, v{t+2} row_ror:{k} row_mask:0xf bank_mask:0xf")
    a(f"v_mov_b32 v{t+1}, v{t}")
    a(f"v_mov_b32 v{t+3}, v{t+2}")
    a("s_nop 1")
    a(f"v_permlane16_swap_b32 v{t}, v{t+1}")
    a(f"v_permlane16_swap_b32 v{t+2}, v{t+3}")
    a("s_nop 1")
    a(f"v_add_f32 v{t}, v{t}, v{t+1}")
    a(f"v_add_f32 v{t+2}, v{t+2}, v{t+3}")
    a(f"v_mov_b32 v{t+1}, v{t}")
    a(f"v_mov_b32 v{t+3}, v{t+2}")
    a("s_nop 1")
    a(f"v_permlane32_swap_b32 v{t}, v{t+1}")
    a(f"v_permlane32_swap_b32 v{t+2}, v{t+3}")
    a("s_nop 1")
    a(f"v_add_f32 v{t}, v{t}, v{t+1}")
    a(f"v_add_f32 v{t+2}, v{t+2}, v{t+3}")
    a(f"v_mul_f32 v{t}, 0x3a800000, v{t}")
    a(f"v_mul_f32 v{t+2}, 0x3a800000, v{t+2}")
    a(f"v_fma_f32 v{t+2}, -v{t}, v{t}, v{t+2}")
    a(f"v_add_f32 v{t}, v{t}, v{t+6}")
    a(f"v_max_f32 v{t+2}, 0, v{t+2}")
    a(f"v_cvt_pk_bf16_f32 v{t}, v{t}, v{t+2}")
    a(f"v_and_b32 v{t+2}, 0xffff0000, v{t}")
    a(f"v_lshlrev_b32 v{t}, 16, v{t}")
    a(f"v_add_f32 v{t+2}, 0x3727c5ac, v{t+2}")
    round_bf16(a, t+2, t+2)
    a(f"v_sqrt_f32 v{t+2}, v{t+2}")
    a(f"v_mov_b32 v{t+1}, v{t}")
    round_bf16(a, t+2, t+2)
    a(f"v_rcp_f32 v{t+2}, v{t+2}")
    a("s_nop 0")
    a(f"v_mov_b32 v{t+3}, v{t+2}")
    for i in range(8):
        a(f"v_lshlrev_b32 v{vf+2*i}, 16, v{vin+i}")
        a(f"v_and_b32 v{vf+2*i+1}, 0xffff0000, v{vin+i}")
        a(f"v_pk_add_f32 {vr(vf+2*i,2)}, {vr(vf+2*i,2)}, {vr(t,2)} neg_lo:[0,1] neg_hi:[0,1]")
        a(f"v_cvt_pk_bf16_f32 v{t+4}, v{vf+2*i}, v{vf+2*i+1}")
        a(f"v_lshlrev_b32 v{vf+2*i}, 16, v{t+4}")
        a(f"v_and_b32 v{vf+2*i+1}, 0xffff0000, v{t+4}")
        a(f"v_pk_mul_f32 {vr(vf+2*i,2)}, {vr(vf+2*i,2)}, {vr(t+2,2)}")
        a(f"v_cvt_pk_bf16_f32 v{vout+i}, v{vf+2*i}, v{vf+2*i+1}")

def gen_tail(a, cfg):
    WB=V_RING; WO_F=WB; GU_F=WB+16; WD_F=WB+48
    TT=V_RING+64
    TMP=V_T+23
    NSW=cfg.NSW
    a(f"s_cmp_ge_u32 s{S_W}, {NSW}")
    a("s_cbranch_scc1 L_t0_b5")
    a("s_nop 7")
    set_exec(a, -1, 0)
    a(f"ds_write_b128 v{PA_OW}, {vr(V_OACC,4)}")
    full_exec(a)
    a("s_waitcnt lgkmcnt(0)")
    a("L_t0_b5:")
    a("s_barrier")
    a(f"s_cmp_lg_u32 s{S_W}, {R_T1}")
    a("s_cbranch_scc1 L_t1_done")
    for w in range(8):
        a(f"ds_read_b64 {vr(TT+2*w,2)}, v{PA_OR} offset:{w*512}")
    a("s_waitcnt lgkmcnt(0)")
    a(f"v_pk_add_f32 {vr(TT,2)}, {vr(TT,2)}, {vr(TT+2,2)}")
    a(f"v_pk_add_f32 {vr(TT+4,2)}, {vr(TT+4,2)}, {vr(TT+6,2)}")
    a(f"v_pk_add_f32 {vr(TT+8,2)}, {vr(TT+8,2)}, {vr(TT+10,2)}")
    a(f"v_pk_add_f32 {vr(TT+12,2)}, {vr(TT+12,2)}, {vr(TT+14,2)}")
    a(f"v_pk_add_f32 {vr(TT,2)}, {vr(TT,2)}, {vr(TT+4,2)}")
    a(f"v_pk_add_f32 {vr(TT+8,2)}, {vr(TT+8,2)}, {vr(TT+12,2)}")
    a(f"v_pk_add_f32 {vr(TT,2)}, {vr(TT,2)}, {vr(TT+8,2)}")
    a(f"v_cvt_pk_bf16_f32 v{TT}, v{TT}, v{TT+1}")
    a(f"v_min_u32 v{TT}, -2, v{TT}")
    store_mode(a, f"global_store_dword v{PA_O}, v{TT}, {sr(P_WS,2)}", True)
    a("L_t1_done:")
    stamp(a,cfg,6)
    a(f"s_cmp_ge_u32 s{S_W}, {NSW}")
    a("s_cbranch_scc1 L_t2_go")
    frag_reads(a,"ogd")
    a("L_t2_go:")
    poll_masked(a,"t2", lambda: a(f"global_load_dwordx4 {vr(TT+32,4)}, v{PA_T2}, {sr(P_WS,2)} sc1"), range(TT+32,TT+36), cfg, TMP, 1, cfg.PIPE_I)
    if cfg.TAILDIAG: stamp(a,cfg,9)
    a("s_waitcnt lgkmcnt(0)")
    def gemm4_reduce_publish(F, B, dp, nw, lab):
        off=16384 if dp else 0
        for t in range(4):
            a(f"v_mfma_f32_16x16x32_bf16 {vr(TT+4*t,4)}, {vr(F+4*t,4)}, {vr(B,4)}, 0")
        if nw<8:
            a(f"s_cmp_ge_u32 s{S_W}, {nw}")
            a(f"s_cbranch_scc1 {lab}_nw")
        set_exec(a, "0x00ff00ff", "0x00ff00ff")
        a("s_nop 2")
        for t in range(4):
            a(f"ds_write_b128 v{PA_DW}, {vr(TT+4*t,4)} offset:{off+64*t}")

        full_exec(a)
        a(f"{lab}_nw:")
        a("s_waitcnt lgkmcnt(0)")
        a("s_barrier")
        a(f"s_sub_u32 s{S_T0}, s{S_W}, {R_RED0}")
        a(f"s_cmp_ge_u32 s{S_T0}, 2")
        a(f"s_cbranch_scc1 {lab}_skip")
        for w in range(nw):
            a(f"ds_read_b128 {vr(TT+4*w,4)}, v{PA_R2} offset:{off+w*2048}")
        if dp: a(f"v_add_u32 v10, {W_DP-W_AP}, v{PA_P2}")
        a("s_waitcnt lgkmcnt(0)")
        n=nw
        step=1
        idx=list(range(nw))
        while len(idx)>1:
            nxt=[]
            for i in range(0,len(idx)-1,2):
                d,s_=idx[i],idx[i+1]
                a(f"v_pk_add_f32 {vr(TT+4*d,2)}, {vr(TT+4*d,2)}, {vr(TT+4*s_,2)}")
                a(f"v_pk_add_f32 {vr(TT+4*d+2,2)}, {vr(TT+4*d+2,2)}, {vr(TT+4*s_+2,2)}")
                nxt.append(d)
            if len(idx)%2: nxt.append(idx[-1])
            idx=nxt
        for c in range(4):
            a(f"v_min_u32 v{TT+c}, -2, v{TT+c}")
        a(f"global_store_dwordx4 v{10 if dp else PA_P2}, {vr(TT,4)}, {sr(P_WS,2)} sc1")
        a(f"{lab}_skip:")
    gemm4_reduce_publish(WO_F, TT+32, False, 8, "L_t2")
    stamp(a,cfg,7)
    def ld3():
        a(f"global_load_dwordx4 {vr(TT+32,4)}, v{PA_T3A}, {sr(P_WS,2)} sc1")
        a(f"global_load_dwordx4 {vr(TT+36,4)}, v{PA_T3B}, {sr(P_WS,2)} sc1")
    poll_masked(a,"t3", ld3, range(TT+32,TT+40), cfg, TMP, 2, cfg.PIPE_X)
    if cfg.TAILDIAG: stamp(a,cfg,13)
    a(f"v_pk_add_f32 {vr(TT+40,2)}, {vr(TT+32,2)}, {vr(TT+36,2)}")
    a(f"v_pk_add_f32 {vr(TT+42,2)}, {vr(TT+34,2)}, {vr(TT+38,2)}")
    a(f"ds_write_b128 v{PA_T3W}, {vr(TT+40,4)}")
    a("s_waitcnt lgkmcnt(0)")
    a("s_barrier")
    a(f"s_cmp_lg_u32 s{S_W}, {R_W0}")
    a("s_cbranch_scc1 L_t3_skip")
    for w in range(8):
        a(f"ds_read_b128 {vr(TT+4*w,4)}, v{PA_T3R} offset:{w*1024}")
    a(f"v_lshlrev_b32 v{TT+40}, 16, v{V_XRES}")
    a(f"v_and_b32 v{TT+41}, 0xffff0000, v{V_XRES}")
    a(f"v_lshlrev_b32 v{TT+42}, 16, v{V_XRES+1}")
    a(f"v_and_b32 v{TT+43}, 0xffff0000, v{V_XRES+1}")
    a("s_waitcnt lgkmcnt(0)")
    for (d,s_) in ((0,1),(2,3),(4,5),(6,7),(0,2),(4,6),(0,4)):
        a(f"v_pk_add_f32 {vr(TT+4*d,2)}, {vr(TT+4*d,2)}, {vr(TT+4*s_,2)}")
        a(f"v_pk_add_f32 {vr(TT+4*d+2,2)}, {vr(TT+4*d+2,2)}, {vr(TT+4*s_+2,2)}")
    a(f"v_cvt_pk_bf16_f32 v{TT+4}, v{TT}, v{TT+1}")
    a(f"v_cvt_pk_bf16_f32 v{TT+5}, v{TT+2}, v{TT+3}")
    a(f"v_lshlrev_b32 v{TT+8}, 16, v{TT+4}")
    a(f"v_and_b32 v{TT+9}, 0xffff0000, v{TT+4}")
    a(f"v_lshlrev_b32 v{TT+10}, 16, v{TT+5}")
    a(f"v_and_b32 v{TT+11}, 0xffff0000, v{TT+5}")
    a(f"v_pk_add_f32 {vr(TT+8,2)}, {vr(TT+8,2)}, {vr(TT+40,2)}")
    a(f"v_pk_add_f32 {vr(TT+10,2)}, {vr(TT+10,2)}, {vr(TT+42,2)}")
    a(f"v_cvt_pk_bf16_f32 v{TT+6}, v{TT+8}, v{TT+9}")
    a(f"v_cvt_pk_bf16_f32 v{TT+7}, v{TT+10}, v{TT+11}")
    a(f"v_min_u32 v{TT+6}, -2, v{TT+6}")
    a(f"v_min_u32 v{TT+7}, -2, v{TT+7}")
    store_mode(a, f"global_store_dwordx2 v{PA_H}, {vr(TT+6,2)}, {sr(P_WS,2)}", True)
    a("L_t3_skip:")
    stamp(a,cfg,8)
    def ld4():
        a(f"global_load_dwordx4 {vr(TT,4)}, v{PA_T4}, {sr(P_WS,2)} sc1")
        a(f"global_load_dwordx4 {vr(TT+4,4)}, v{PA_T4}, {sr(P_WS,2)} offset:16 sc1")
    poll_masked(a,"t4", ld4, range(TT,TT+8), cfg, TMP, 2, cfg.PIPE_I)
    if cfg.TAILDIAG: stamp(a,cfg,14)
    a(f"s_cmp_lg_u32 s{S_W}, s{S_X}")
    a("s_cbranch_scc1 L_t4_nohs")
    a(f"s_mov_b64 exec, {sr(SM_HS,2)}")
    a(f"ds_write_b128 v{PA_HSW}, {vr(TT,4)}")
    a(f"ds_write_b128 v{PA_HSW}, {vr(TT+4,4)} offset:16")
    full_exec(a)
    a("L_t4_nohs:")
    a(f"s_cmp_ge_u32 s{S_R}, 28")
    a("s_cbranch_scc1 L_t5_skip_all")
    layernorm2(a, TT, TT+8, TT+24, V_T)
    a(f"s_mov_b64 exec, {sr(SM_LNB,2)}")
    a(f"ds_write_b128 v{PA_LNBW}, {vr(TT+24,4)}")
    a(f"ds_write_b128 v{PA_LNBW}, {vr(TT+28,4)} offset:16")
    full_exec(a)
    a("s_waitcnt lgkmcnt(0)")
    a("s_barrier")
    if not cfg.TAILDIAG: stamp(a,cfg,9)
    if cfg.TAILDIAG: stamp(a,cfg,1)
    a("s_waitcnt vmcnt(0)")
    for s in range(8):
        a(f"ds_read_b128 {vr(TT+4*s,4)}, v{PA_LNBR} offset:{64*s}")
    for s in range(8):
        c="0" if s<2 else vr(V_T+4*(s%2),4)
        a(f"s_waitcnt lgkmcnt({7-s})")
        a(f"v_mfma_f32_16x16x32_bf16 {vr(V_T+4*(s%2),4)}, {vr(GU_F+4*s,4)}, {vr(TT+4*s,4)}, {c}")
    a("s_nop 7")
    a(f"v_pk_add_f32 {vr(V_T,2)}, {vr(V_T,2)}, {vr(V_T+4,2)}")
    a(f"v_pk_add_f32 {vr(V_T+2,2)}, {vr(V_T+2,2)}, {vr(V_T+6,2)}")
    for c in range(4):
        a(f"v_min_u32 v{V_T+c}, -2, v{V_T+c}")
    set_exec(a, "0x00ff00ff", "0x00ff00ff")
    store_mode(a, f"global_store_dwordx4 v{PA_GP}, {vr(V_T,4)}, {sr(P_WS,2)}", True)
    full_exec(a)
    a(f"s_cmp_lg_u32 s{S_W}, {R_W0}")
    a("s_cbranch_scc1 L_t5_skip_all")
    a(f"s_mov_b32 s{S_T0}, 0x3d372713")
    a(f"s_mov_b32 s{S_T1}, 0xc0135761")
    def ld5():
        for k in range(4):
            for m in range(2):
                a(f"global_load_dwordx2 {vr(TT+(k*2+m)*2,2)}, v{PA_T5B+k}, {sr(P_WS,2)} offset:{m*2048} sc1")
    poll_masked(a,"t5", ld5, range(TT,TT+16), cfg, TMP, 8, cfg.PIPE_I)
    if cfg.TAILDIAG: stamp(a,cfg,2)
    for h_ in range(2):
        a(f"v_pk_add_f32 {vr(TT+16+2*h_,2)}, {vr(TT+2*h_,2)}, {vr(TT+4+2*h_,2)}")
        a(f"v_pk_add_f32 {vr(TT+20+2*h_,2)}, {vr(TT+8+2*h_,2)}, {vr(TT+12+2*h_,2)}")
        a(f"v_pk_add_f32 {vr(TT+16+2*h_,2)}, {vr(TT+16+2*h_,2)}, {vr(TT+20+2*h_,2)}")
    G=TT+16; U=TT+18; X=TT+20
    TT_=TT; TT=TT+16
    a(f"v_cvt_pk_bf16_f32 v{TT+8}, v{G}, v{G+1}")
    a(f"v_cvt_pk_bf16_f32 v{TT+9}, v{U}, v{U+1}")
    a(f"v_lshlrev_b32 v{G}, 16, v{TT+8}")
    a(f"v_and_b32 v{G+1}, 0xffff0000, v{TT+8}")
    a(f"v_lshlrev_b32 v{U}, 16, v{TT+9}")
    a(f"v_and_b32 v{U+1}, 0xffff0000, v{TT+9}")
    a(f"v_pk_mul_f32 {vr(X,2)}, {vr(G,2)}, {vr(G,2)}")
    a(f"v_pk_mul_f32 {vr(X,2)}, {vr(X,2)}, {vr(G,2)}")
    for c in range(2):
        a(f"v_fma_f32 v{X+c}, v{X+c}, s{S_T0}, v{G+c}")
    for c in range(2):
        a(f"v_mul_f32 v{X+c}, s{S_T1}, v{X+c}")
    for c in range(2):
        a(f"v_exp_f32 v{X+c}, v{X+c}")
    a("s_nop 0")
    for c in range(2):
        a(f"v_add_f32 v{X+c}, 1.0, v{X+c}")
    for c in range(2):
        a(f"v_rcp_f32 v{X+c}, v{X+c}")
    a("s_nop 0")
    a(f"v_pk_mul_f32 {vr(X,2)}, {vr(X,2)}, {vr(G,2)}")
    a(f"v_cvt_pk_bf16_f32 v{TT+8}, v{X}, v{X+1}")
    a(f"v_lshlrev_b32 v{X}, 16, v{TT+8}")
    a(f"v_and_b32 v{X+1}, 0xffff0000, v{TT+8}")
    a(f"v_pk_mul_f32 {vr(X,2)}, {vr(X,2)}, {vr(U,2)}")
    a(f"v_cvt_pk_bf16_f32 v{X}, v{X}, v{X+1}")
    a(f"v_min_u32 v{X}, -2, v{X}")
    store_mode(a, f"global_store_dword v{PA_ACT}, v{X}, {sr(P_WS,2)}", True)
    TT=TT_
    a("L_t5_skip_all:")
    stamp(a,cfg,10)
    a(f"s_cmp_ge_u32 s{S_W}, 7")
    a("s_cbranch_scc1 L_t6_nopoll")
    poll_masked(a,"t6", lambda: a(f"global_load_dwordx4 {vr(TT+32,4)}, v{PA_T6}, {sr(P_WS,2)} sc1"), range(TT+32,TT+36), cfg, TMP, 1, cfg.PIPE_I)
    if cfg.TAILDIAG: stamp(a,cfg,3)
    a("L_t6_nopoll:")
    gemm4_reduce_publish(WD_F, TT+32, True, 7, "L_t6")
    stamp(a,cfg,11)
    a(f"s_cmp_lg_u32 s{S_W}, {R_W0}")
    a("s_cbranch_scc1 L_fin")
    a(f"ds_read_u16 v{TT+10}, v{PA_HSR}")
    def ld7():
        for k in range(8):
            a(f"global_load_dword v{TT+k}, v{PA_T7+k}, {sr(P_WS,2)} sc1")
    poll_masked(a,"t7", ld7, range(TT,TT+8), cfg, TMP, 8, cfg.PIPE_X)
    if cfg.TAILDIAG: stamp(a,cfg,4)
    Z=TT+16
    a(f"v_pk_add_f32 {vr(Z,2)}, {vr(TT,2)}, {vr(TT+2,2)}")
    a(f"v_pk_add_f32 {vr(Z+2,2)}, {vr(TT+4,2)}, {vr(TT+6,2)}")
    a(f"v_pk_add_f32 {vr(Z,2)}, {vr(Z,2)}, {vr(Z+2,2)}")
    a(f"v_add_f32 v{Z}, v{Z}, v{Z+1}")
    a(f"v_mov_b32 v{Z+1}, v{Z}")
    a("s_waitcnt lgkmcnt(0)")
    a("s_nop 0")
    a(f"v_permlane32_swap_b32 v{Z}, v{Z+1}")
    a(f"v_lshlrev_b32 v{TT+10}, 16, v{TT+10}")
    a(f"v_add_f32 v{Z}, v{Z}, v{Z+1}")
    round_bf16(a,Z,Z)
    a(f"v_add_f32 v{Z}, v{Z}, v{TT+10}")
    a(f"v_cvt_pk_bf16_f32 v{Z}, v{Z}, v{Z}")
    set_exec(a, -1, 0)
    a(f"global_store_short v{PA_OUT}, v{Z}, {sr(P_OUT,2)}")
    full_exec(a)
    a(f"s_cmp_lg_u32 s{S_ID}, 0")
    a("s_cbranch_scc1 L_fin")
    a(f"v_mov_b32 v10, {W_EPOCH}")
    a(f"v_mov_b32 v12, s{S_TAG}")
    a(f"v_mov_b32 v13, s{S_TAG+1}")
    set_exec(a, 1, 0)
    a(f"global_store_dwordx2 v10, v[12:13], {sr(P_WS,2)} sc1")
    full_exec(a)
    a("L_fin:")
    TTX=160
    if cfg.STAMPS and cfg.DBGSTAMP:
        stamp(a,cfg,12)
        a("s_waitcnt lgkmcnt(0)")
        a(f"s_cmp_lg_u32 s{S_W}, 0")
        a("s_cbranch_scc1 L_exit")
        lst=[0,1,2,4,6,7,8,10,11,12]
        for i,k in enumerate(lst):
            if k==0:
                a(f"s_not_b32 s{S_T0}, s72")
                a(f"v_mov_b32 v{TTX}, s{S_T0}")
            else:
                a(f"v_mov_b32 v{TTX}, s{72+2*k}")
            a(f"v_mov_b32 v10, {4*i}")
            set_exec(a,1,0)
            a(f"global_atomic_umax v10, v{TTX}, {sr(P_DBG,2)} sc1")
            full_exec(a)
        a(f"v_mov_b32 v{TTX}, s72")
        a(f"v_mov_b32 v10, 40")
        set_exec(a,1,0)
        a(f"global_atomic_umax v10, v{TTX}, {sr(P_DBG,2)} sc1")
        full_exec(a)
        a(f"s_not_b32 s{S_T0}, s{72+12}")
        a(f"v_mov_b32 v{TTX}, s{S_T0}")
        a(f"v_mov_b32 v10, 44")
        set_exec(a,1,0)
        a(f"global_atomic_umax v10, v{TTX}, {sr(P_DBG,2)} sc1")
        full_exec(a)
    elif cfg.STAMPS:
        stamp(a,cfg,12)
        a("s_waitcnt lgkmcnt(0)")
        for k in range(15):
            a(f"v_mov_b32 v{TTX}, s{72+2*k}")
            a(f"v_mov_b32 v{TTX+1}, s{73+2*k}")
            a(f"s_lshl_b32 s{S_T0}, s{S_ID}, 3")
            a(f"s_add_u32 s{S_T0}, s{S_T0}, s{S_W}")
            a(f"s_lshl_b32 s{S_T0}, s{S_T0}, 7")
            a(f"s_add_u32 s{S_T0}, s{S_T0}, {W_STAMP+8*k}")
            a(f"v_mov_b32 v10, s{S_T0}")
            set_exec(a,1,0)
            a(f"global_store_dwordx2 v10, {vr(TTX,2)}, {sr(P_WS,2)}")
            full_exec(a)
    a("L_exit:")
    a("s_endpgm")

HEADER = open("sequential_preLN__mha_block_cached__geglu_ffn__decode.s.ref").read().split("; Override launch geometry")[0]

def build(cfg, path):
    a,_=gen(cfg)
    gen_tail(a,cfg)
    txt = HEADER
    txt += "; Override launch geometry by editing the next line (default: block=256,\n"
    txt += f"; @launch grid=(256,1,1) block=(512,1,1) lds={LDS_BYTES}\n"
    txt += f""".amdgcn_target "amdgcn-amd-amdhsa--gfx950"
.text
.globl {KNAME}
.p2align 8
.type {KNAME},@function
"""
    txt += a.text()
    txt += f""".section .rodata,"a"
.p2align 6
.amdhsa_kernel {KNAME}
  .amdhsa_next_free_vgpr 256
  .amdhsa_next_free_sgpr 102
  .amdhsa_accum_offset 256
  .amdhsa_group_segment_fixed_size 0
  .amdhsa_kernarg_size 96
  .amdhsa_user_sgpr_count 2
  .amdhsa_user_sgpr_kernarg_segment_ptr 1
  .amdhsa_system_sgpr_workgroup_id_x 1
  .amdhsa_float_denorm_mode_32 3
.end_amdhsa_kernel
"""
    open(path,"w").write(txt)

if __name__=="__main__":
    cfg=Cfg()
    out=sys.argv[1]
    for kv in sys.argv[2:]:
        k,v=kv.split("=")
        setattr(cfg,k,eval(v))
    build(cfg,out)
```

```python
import sys

KNAME = "sequential_preLN__mha_block_cached__geglu_ffn__decode_kernel"

class Cfg:
    NSW = 2
    L = 10
    HV = 1
    QFAST = True
    KFLAGS = "nt"
    VFLAGS = "nt"
    WFLAGS = "nt"
    FASTMODE = True
    SPIN = 1 << 20
    STAMPS = False
    P0 = 4
    P = 4
    P1 = 8
    DMAPAUSE = False
    RING_EARLY = True
    RAMP = 0
    CODEPF = True
    LATE_L = 0
    EARLY_L = 0
    EARLY_THR = 6
    LATE_X = 0
    SEG0 = 40
    LATE_THR = 26
    LK = 0
    LS = 0
    KS0 = 80
    ROT = 0
    ROTX = 0
    HPERM = True
    NODMA2 = False
    KNOP = 7
    KEXP = 0
    PIPE_I = 0
    PIPE_X = 0
    HIGH_INLINE = True
    LNDRY = False
    CLR7 = True
    CONDCOPY = True
    NOCLR = False
    NOCOPY = False
    ALTMAP = False
    PD2 = 0
    PSX = 0
    PD3 = 9
    PD4 = 4
    PD5 = 5
    PD6 = 4
    PD7 = 9
    TAILDIAG = False
    PSLEEP = 0
    QSLEEP = 0
    QWAIT = 64
    DBGSTAMP = False

L_WO   = 0
L_WG   = 32768
L_WU   = 65536
L_WD   = 98304
L_WQ   = 126976
L_SC   = 126976
L_RED  = 143360
L_LNA  = 159744
L_QS   = 161920
L_ML   = 162176
L_HS   = 162208
L_QF   = 162272
L_LS   = 162288
L_MODE = 162320
L_SEL  = 162352
L_END  = 162368
LNA_P  = 272
LNB_P  = 528
L_LNB  = L_SC
LDS_BYTES = 163840

W_QP  = 0x500000
W_RDY = 0x000000
W_EPOCH = 0x010000
W_KX = 0x018000
W_KD = 0x014000
W_GRDY = 0x012000
W_OB  = 0x100000
W_AP  = 0x120000
W_HB  = 0x1A0000
W_GP  = 0x1C0000
W_ACT = 0x2A0000
W_DP  = 0x2B0000
W_STAMP = 0x400000

D_CLR = 32*4
D_XCC = 40*4

S_ID=2; S_W=3; S_X=4; S_R=5; S_H=6; S_B=7
P_X=16; P_K=18; P_V=20; P_WQ=22; P_WO=24; P_WG=28; P_WU=30; P_WD=32; P_OUT=34; P_DBG=36; P_WS=38
SRD_K=40; SRD_V=44
S_KOFF=48
S_FAST=49
S_SPIN=50
S_T0=52; S_T1=53; S_T2=54; S_T3=55; S_T4=56; S_T5=57
S_B0=58
S_B1=60
S_EX=62
S_M=64
S_M2=66
S_SCALE=68; S_LOG2E=69
S_DN=12; S_DS=13; S_DM=14; S_LOOP=15; S_LNW=27; S_ROT=70; S_HA=65; S_DJ=14; S_DM2=64
S_TAG=98
S_TAG=66
S_ST=70

V_TID=0; V_LANE=1
V_MASK=16
V_KOFF=20; V_VOFF=21; V_SCW=22; V_PPR=23; V_MAX=24
V_DMA=25
V_QADDR=26
V_QA=32
V_SACC=48
V_SACC2=140
V_OACC=52
V_A0=56; V_A1=60
V_PP0=64; V_PP1=68
V_T=72
V_RING=96
V_X=160

class Asm:
    def __init__(self):
        self.L=[]; self.n=0; self.main=self.L; self.O=[]
    def ool(self, on):
        self.L = self.O if on else self.main
    def __call__(self, s):
        for line in s.split("\n"):
            line=line.strip()
            if line: self.L.append(("" if line.endswith(":") else "  ")+line)
    def label(self, base):
        self.n+=1
        return f"L_{base}_{self.n}"
    def text(self): return "\n".join(self.main+self.O+["L_codeend:"])+"\n"

def vr(b,n): return f"v[{b}:{b+n-1}]"
def sr(b,n): return f"s[{b}:{b+n-1}]"

def wave_sum(a, v, tmp, op="add"):
    ins = "v_add_f32" if op=="add" else "v_max_f32"
    for k in (8,4,2,1):
        a(f"s_nop 1")
        a(f"{ins}_dpp {'v%d'%v}, v{v}, v{v} row_ror:{k} row_mask:0xf bank_mask:0xf")
    a("s_nop 1")
    a(f"v_readlane_b32 s{S_T0}, v{v}, 0")
    a(f"v_readlane_b32 s{S_T1}, v{v}, 16")
    a(f"v_readlane_b32 s{S_T2}, v{v}, 32")
    a(f"v_readlane_b32 s{S_T3}, v{v}, 48")
    a("s_nop 1")
    a(f"v_mov_b32 v{v}, s{S_T0}")
    a(f"{ins} v{v}, s{S_T1}, v{v}")
    a(f"{ins} v{v}, s{S_T2}, v{v}")
    a(f"{ins} v{v}, s{S_T3}, v{v}")

def round_bf16(a, dst, src):
    a(f"v_cvt_pk_bf16_f32 v{dst}, v{src}, v{src}")
    a(f"v_and_b32 v{dst}, 0xffff0000, v{dst}")

def layernorm(a, vin, vf, vout, t):
    for i in range(8):
        a(f"v_lshlrev_b32 v{vf+2*i}, 16, v{vin+i}")
        a(f"v_and_b32 v{vf+2*i+1}, 0xffff0000, v{vin+i}")
    a(f"v_add_f32 v{t}, v{vf}, v{vf+1}")
    for i in range(2,16):
        a(f"v_add_f32 v{t}, v{t}, v{vf+i}")
    wave_sum(a, t, t+1)
    a(f"v_mul_f32 v{t}, 0x3a800000, v{t}")
    a(f"v_sub_f32 v{t+1}, v{vf}, v{t}")
    a(f"v_mul_f32 v{t+2}, v{t+1}, v{t+1}")
    for i in range(1,16):
        a(f"v_sub_f32 v{t+1}, v{vf+i}, v{t}")
        a(f"v_fmac_f32 v{t+2}, v{t+1}, v{t+1}")
    wave_sum(a, t+2, t+1)
    a(f"v_mul_f32 v{t+2}, 0x3a800000, v{t+2}")
    round_bf16(a, t, t)
    round_bf16(a, t+2, t+2)
    a(f"v_add_f32 v{t+2}, 0x3727c5ac, v{t+2}")
    round_bf16(a, t+2, t+2)
    a(f"v_sqrt_f32 v{t+2}, v{t+2}")
    a("s_nop 0")
    round_bf16(a, t+2, t+2)
    a(f"v_rcp_f32 v{t+2}, v{t+2}")
    a("s_nop 0")
    for i in range(8):
        a(f"v_sub_f32 v{vf+2*i}, v{vf+2*i}, v{t}")
        a(f"v_sub_f32 v{vf+2*i+1}, v{vf+2*i+1}, v{t}")
        a(f"v_cvt_pk_bf16_f32 v{t+1}, v{vf+2*i}, v{vf+2*i+1}")
        a(f"v_lshlrev_b32 v{vf+2*i}, 16, v{t+1}")
        a(f"v_and_b32 v{vf+2*i+1}, 0xffff0000, v{t+1}")
        a(f"v_mul_f32 v{vf+2*i}, v{vf+2*i}, v{t+2}")
        a(f"v_mul_f32 v{vf+2*i+1}, v{vf+2*i+1}, v{t+2}")
        a(f"v_cvt_pk_bf16_f32 v{vout+i}, v{vf+2*i}, v{vf+2*i+1}")

def set_exec(a, lo, hi):
    a(f"s_mov_b32 exec_lo, {lo}")
    a(f"s_mov_b32 exec_hi, {hi}")
def full_exec(a):
    a("s_mov_b64 exec, -1")

def poll_loop(a, name, loads, regs, cfg):
    lp=a.label(name+"_poll"); dn=a.label(name+"_ok")
    a(f"s_mov_b32 s{S_SPIN}, {cfg.SPIN}")
    a(f"{lp}:")
    loads()
    a("s_waitcnt vmcnt(0)")
    t=V_T+23
    rs=list(regs)
    a(f"v_max_u32 v{t}, v{rs[0]}, v{rs[1] if len(rs)>1 else rs[0]}")
    i=2
    while i<len(rs):
        if i+1<len(rs):
            a(f"v_max3_u32 v{t}, v{t}, v{rs[i]}, v{rs[i+1]}"); i+=2
        else:
            a(f"v_max_u32 v{t}, v{t}, v{rs[i]}"); i+=1
    a(f"v_cmp_eq_u32 vcc, -1, v{t}")
    a(f"s_cbranch_vccz {dn}")
    a(f"s_sub_u32 s{S_SPIN}, s{S_SPIN}, 1")
    a(f"s_cmp_lg_u32 s{S_SPIN}, 0")
    a(f"s_cbranch_scc1 {lp}")
    a(f"{dn}:")

def store_mode(a, instr, intra):
    if not intra:
        a(instr+" sc1"); return
    l1=a.label("st_slow"); l2=a.label("st_done")
    a(f"s_cmp_eq_u32 s{S_FAST}, 0")
    a(f"s_cbranch_scc1 {l1}")
    a(instr)
    a(f"s_branch {l2}")
    a(f"{l1}:")
    a(instr+" sc1")
    a(f"{l2}:")

def stamp(a, cfg, idx):
    if not cfg.STAMPS: return
    a(f"s_memrealtime s[{72+2*idx}:{73+2*idx}]")


def emit_clears(a, sfx=''):
    a(f"v_mov_b32 v12, -1\nv_mov_b32 v13, -1\nv_mov_b32 v14, -1\nv_mov_b32 v15, -1")
    a(f"s_lshr_b32 s{S_T4}, s{S_R}, 4")
    a(f"s_and_b32 s{S_T5}, s{S_R}, 15")
    a(f"s_lshl_b32 s{S_T1}, s{S_X}, 1")
    a(f"s_add_u32 s{S_T1}, s{S_T1}, s{S_T4}")
    a(f"s_lshl_b32 s{S_T0}, s{S_T1}, 15")
    a(f"s_lshl_b32 s{S_T1}, s{S_T5}, 8")
    a(f"s_add_u32 s{S_T0}, s{S_T0}, s{S_T1}")
    a(f"v_lshlrev_b32 v10, 12, v3")
    a(f"v_lshlrev_b32 v11, 4, v2")
    a(f"v_add3_u32 v10, v10, v11, s{S_T0}")
    for base in (W_AP, W_DP):
        a(f"v_add_u32 v11, {base}, v10")
        a(f"global_store_dwordx4 v11, v[12:15], {sr(P_WS,2)} sc1")
        a(f"v_add_u32 v11, {base+4*4096}, v10")
        a(f"global_store_dwordx4 v11, v[12:15], {sr(P_WS,2)} sc1")
    a(f"s_lshl_b32 s{S_T0}, s{S_H}, 3")
    a(f"s_add_u32 s{S_T0}, s{S_T0}, s{S_B}")
    a(f"s_lshl_b32 s{S_T0}, s{S_T0}, 8")
    a(f"s_add_u32 s{S_T0}, s{S_T0}, {W_OB}")
    a(f"v_add_u32 v10, s{S_T0}, v{V_VOFF}")
    set_exec(a, "0xffff", 0)
    a(f"global_store_dwordx4 v10, v[12:15], {sr(P_WS,2)} sc1")
    full_exec(a)
    a(f"s_lshr_b32 s{S_T0}, s{S_R}, 2")
    a(f"s_lshl_b32 s{S_T1}, s{S_X}, 3")
    a(f"s_add_u32 s{S_T0}, s{S_T0}, s{S_T1}")
    a(f"s_lshl_b32 s{S_T0}, s{S_T0}, 11")
    a(f"s_and_b32 s{S_T1}, s{S_R}, 3")
    a(f"s_lshl_b32 s{S_T1}, s{S_T1}, 9")
    a(f"s_add_u32 s{S_T0}, s{S_T0}, s{S_T1}")
    a(f"s_add_u32 s{S_T0}, s{S_T0}, {W_HB}")
    a(f"v_add_u32 v10, s{S_T0}, v{V_VOFF}")
    set_exec(a, -1, 0)
    a(f"global_store_dwordx4 v10, v[12:15], {sr(P_WS,2)} sc1")
    full_exec(a)
    a(f"s_cmp_ge_u32 s{S_R}, 28")
    a(f"s_cbranch_scc1 L_clr_done{sfx}")
    a(f"s_mul_i32 s{S_T0}, s{S_X}, 28")
    a(f"s_add_u32 s{S_T0}, s{S_T0}, s{S_R}")
    a(f"s_lshl_b32 s{S_T0}, s{S_T0}, 12")
    a(f"s_add_u32 s{S_T0}, s{S_T0}, {W_GP}")
    a(f"v_add_u32 v10, s{S_T0}, v{V_VOFF}")
    for n in range(4):
        a(f"global_store_dwordx4 v10, v[12:15], {sr(P_WS,2)} offset:{n*1024} sc1")
    a(f"s_mul_i32 s{S_T0}, s{S_R}, 37")
    a(f"s_lshr_b32 s{S_T0}, s{S_T0}, 8")
    a(f"s_mul_i32 s{S_T1}, s{S_T0}, 7")
    a(f"s_sub_u32 s{S_T1}, s{S_R}, s{S_T1}")
    a(f"s_lshl_b32 s{S_T0}, s{S_T0}, 1")
    a(f"s_lshl_b32 s{S_T2}, s{S_X}, 3")
    a(f"s_add_u32 s{S_T0}, s{S_T0}, s{S_T2}")
    a(f"s_mul_i32 s{S_T0}, s{S_T0}, 896")
    a(f"s_lshl_b32 s{S_T1}, s{S_T1}, 7")
    a(f"s_add_u32 s{S_T0}, s{S_T0}, s{S_T1}")
    a(f"s_add_u32 s{S_T0}, s{S_T0}, {W_ACT}")
    a(f"v_lshrrev_b32 v10, 3, v{V_LANE}")
    a(f"v_mul_u32_u24 v10, 896, v10")
    a(f"v_and_b32 v11, 7, v{V_LANE}")
    a(f"v_lshlrev_b32 v11, 4, v11")
    a(f"v_add3_u32 v10, v10, v11, s{S_T0}")
    set_exec(a, "0xffff", 0)
    a(f"global_store_dwordx4 v10, v[12:15], {sr(P_WS,2)} sc1")
    full_exec(a)
    a(f"L_clr_done{sfx}:")


def emit_extras(a):
    a(f"s_lshl_b32 s{S_T0}, s{S_W}, 9")
    a(f"v_and_b32 v10, 31, v{V_LANE}")
    a(f"v_lshlrev_b32 v10, 4, v10")
    a(f"v_add_u32 v10, s{S_T0}, v10")
    a(f"v_add_u32 v9, {W_RDY}, v10")
    a(f"global_load_dwordx4 {vr(V_RDY,4)}, v9, {sr(P_WS,2)} sc1")
    a(f"s_lshr_b32 s{S_T0}, s{S_R}, 2")
    a(f"s_lshl_b32 s{S_T0}, s{S_T0}, 11")
    a(f"s_and_b32 s{S_T1}, s{S_R}, 3")
    a(f"s_lshl_b32 s{S_T1}, s{S_T1}, 9")
    a(f"s_add_u32 s{S_T0}, s{S_T0}, s{S_T1}")
    a(f"v_lshlrev_b32 v11, 3, v{V_LANE}")
    a(f"v_add_u32 v11, s{S_T0}, v11")
    a(f"global_load_dwordx2 {vr(V_XRES,2)}, v11, {sr(P_X,2)}")

def koff_init(a):
    a(f"s_lshr_b32 s{S_KOFF}, s{S_W}, 2")
    a(f"s_lshl_b32 s{S_KOFF}, s{S_KOFF}, 7")
    a(f"s_and_b32 s{S_T5}, s{S_W}, 3")
    a(f"s_add_u32 s{S_KOFF}, s{S_KOFF}, s{S_T5}")
    a(f"s_lshl_b32 s{S_KOFF}, s{S_KOFF}, 12")

def emit_rdy(a):
    a(f"s_getreg_b32 s{S_T0}, hwreg(HW_REG_XCC_ID, 0, 4)")
    a(f"s_lshl_b32 s{S_T1}, s{S_X}, 5")
    a(f"s_add_u32 s{S_T1}, s{S_T1}, s{S_R}")
    a(f"s_lshl_b32 s{S_T1}, s{S_T1}, 4")
    a(f"s_add_u32 s{S_T1}, s{S_T1}, {W_RDY}")
    a(f"v_mov_b32 v10, s{S_T1}")
    a(f"v_mov_b32 v12, s{S_T0}")
    a(f"v_mov_b32 v13, 0")
    a(f"v_mov_b32 v14, s{S_TAG}")
    a(f"v_mov_b32 v15, s{S_TAG+1}")
    set_exec(a, 1, 0)
    a(f"global_store_dwordx4 v10, v[12:15], {sr(P_WS,2)} sc1")
    full_exec(a)

def gen(cfg):
    a=Asm()
    NSW=cfg.NSW; L=cfg.L; HV=cfg.HV
    LK=cfg.LK or L
    NH=8-NSW
    KT=256//NSW
    VT=(256-NH*HV)//NSW
    assert VT*NSW+NH*HV==256, "V tiles must split evenly"
    NK=4*KT; NV=4*VT
    TSTEP=NSW*4096
    def kload(j):
        reg=V_RING+(j%LK)*4
        a(f"buffer_load_dwordx4 {vr(reg,4)}, v{V_KOFF}, {sr(SRD_K,4)}, s{S_KOFF} offen offset:{(j%4)*1024} {cfg.KFLAGS}")
        if j%4==3:
            a(f"s_add_u32 s{S_KOFF}, s{S_KOFF}, {TSTEP}")
            if cfg.ROT or cfg.ROTX: a(f"s_and_b32 s{S_KOFF}, s{S_KOFF}, 0xfffff")
    def vload(jv, first=False):
        reg=V_RING+((NK-LK+jv)%LK)*4
        if first:
            a(f"s_add_u32 s{S_KOFF}, s{S_W}, {NH*HV}")
            a(f"s_lshl_b32 s{S_KOFF}, s{S_KOFF}, 12")
            if cfg.ROT or cfg.ROTX:
                a(f"s_add_u32 s{S_KOFF}, s{S_KOFF}, s{S_ROT}")
                a(f"s_and_b32 s{S_KOFF}, s{S_KOFF}, 0xfffff")
        a(f"buffer_load_dwordx4 {vr(reg,4)}, v{V_VOFF}, {sr(SRD_V,4)}, s{S_KOFF} offen offset:{(jv%4)*1024} {cfg.VFLAGS}")
        if jv%4==3:
            a(f"s_add_u32 s{S_KOFF}, s{S_KOFF}, {TSTEP}")
            if cfg.ROT or cfg.ROTX: a(f"s_and_b32 s{S_KOFF}, s{S_KOFF}, 0xfffff")
    a(f"{KNAME}:")
    a(f"s_cmp_ge_u32 s{S_ID}, 256")
    a("s_cbranch_scc1 L_exit")
    a("s_load_dwordx16 s[16:31], s[0:1], 0")
    a("s_load_dwordx8 s[32:39], s[0:1], 64")
    if cfg.CODEPF:
        a(f"s_getpc_b64 {sr(S_B1,2)}")
        a("L_pf0:")
        a(f"s_add_u32 s{S_B1}, s{S_B1}, {KNAME}-L_pf0")
        a(f"s_addc_u32 s{S_B1+1}, s{S_B1+1}, -1")
        a(f"v_lshlrev_b32 v10, 6, v0")
        a(f"v_cmp_gt_u32 vcc, L_codeend-{KNAME}, v10")
        a(f"s_and_saveexec_b64 {sr(S_EX,2)}, vcc")
        a("s_cbranch_execz L_pf0_done")
        a(f"global_load_dword v15, v10, {sr(S_B1,2)}")
        a("L_pf0_done:")
        a(f"s_mov_b64 exec, {sr(S_EX,2)}")
    stamp(a,cfg,0)
    a(f"v_lshrrev_b32 v2, 6, v0")
    a(f"v_and_b32 v{V_LANE}, 63, v0")
    if cfg.ALTMAP: a(f"s_lshr_b32 s{S_X}, s{S_ID}, 5")
    else: a(f"s_and_b32 s{S_X}, s{S_ID}, 7")
    a(f"v_readfirstlane_b32 s{S_W}, v2")
    if cfg.ALTMAP: a(f"s_and_b32 s{S_R}, s{S_ID}, 31")
    else: a(f"s_lshr_b32 s{S_R}, s{S_ID}, 3")
    a(f"s_lshr_b32 s{S_T0}, s{S_R}, 3")
    a(f"s_lshl_b32 s{S_H}, s{S_X}, 2")
    a(f"s_add_u32 s{S_H}, s{S_H}, s{S_T0}")
    a(f"s_and_b32 s{S_B}, s{S_R}, 7")
    if cfg.ROT or cfg.ROTX:
        a(f"s_mul_i32 s{S_ROT}, s{S_R}, {cfg.ROT}")
        a(f"s_mul_i32 s{S_DM2}, s{S_X}, {cfg.ROTX}")
        a(f"s_add_u32 s{S_ROT}, s{S_ROT}, s{S_DM2}")
        a(f"s_and_b32 s{S_ROT}, s{S_ROT}, 0xff000")
    if cfg.HPERM:
        a(f"s_lshl_b32 s{S_HA}, s{S_T0}, 3")
        a(f"s_add_u32 s{S_HA}, s{S_HA}, s{S_X}")
    else:
        a(f"s_mov_b32 s{S_HA}, s{S_H}")
    a(f"v_and_b32 v2, 15, v{V_LANE}")
    a(f"v_lshrrev_b32 v3, 4, v{V_LANE}")
    a(f"v_lshlrev_b32 v{V_VOFF}, 4, v{V_LANE}")
    a(f"v_lshrrev_b32 v4, 2, v2")
    a(f"v_and_b32 v5, 3, v2")
    a(f"v_lshlrev_b32 v6, 8, v4")
    a(f"v_lshlrev_b32 v7, 6, v3")
    a(f"v_lshlrev_b32 v8, 4, v5")
    a(f"v_add3_u32 v{V_KOFF}, v6, v7, v8")
    a(f"v_mov_b32 v{V_DMA}, 0")
    a("s_waitcnt lgkmcnt(0)")
    a(f"s_load_dwordx2 {sr(S_TAG,2)}, {sr(P_WS,2)}, {W_EPOCH}")
    a(f"s_lshl_b32 s{S_T0}, s{S_B}, 5")
    a(f"s_add_u32 s{S_T0}, s{S_T0}, s{S_HA}")
    a(f"s_lshl_b32 s{S_T0}, s{S_T0}, 20")
    for srd,p in ((SRD_K,P_K),(SRD_V,P_V)):
        a(f"s_add_u32 s{srd}, s{p}, s{S_T0}")
        a(f"s_addc_u32 s{srd+1}, s{p+1}, 0")
        a(f"s_and_b32 s{srd+1}, s{srd+1}, 0xffff")
        a(f"s_mov_b32 s{srd+2}, 0x100000")
        a(f"s_mov_b32 s{srd+3}, 0x20000")
    a(f"s_lshl_b32 s{S_T0}, s{S_W}, 11")
    a(f"v_lshlrev_b32 v9, 5, v{V_LANE}")
    a(f"v_add_u32 v9, s{S_T0}, v9")
    a(f"global_load_dwordx4 {vr(V_X,4)}, v9, {sr(P_X,2)}")
    a(f"global_load_dwordx4 {vr(V_X+4,4)}, v9, {sr(P_X,2)} offset:16")
    if cfg.HIGH_INLINE:
        a(f"s_cmp_lt_u32 s{S_W}, 4")
        a("s_cbranch_scc1 L_lowwaves")
    else:
        a(f"s_cmp_ge_u32 s{S_W}, 4")
        a("s_cbranch_scc1 L_high")
        a.ool(True)
    a("L_high:")
    a(f"v_lshrrev_b32 v10, 3, v{V_LANE}")
    a(f"v_and_b32 v11, 7, v{V_LANE}")
    a(f"v_lshlrev_b32 v11, 4, v11")
    a(f"s_lshr_b32 s{S_T4}, s{S_R}, 4")
    a(f"s_and_b32 s{S_T5}, s{S_R}, 15")
    a(f"s_cmp_eq_u32 s{S_W}, 4")
    a("s_cbranch_scc1 L_dma_wo")
    a(f"s_cmp_eq_u32 s{S_W}, 7")
    a("s_cbranch_scc1 L_dma_wd")
    a(f"s_cmp_ge_u32 s{S_R}, 28")
    a("s_cbranch_scc1 L_dma_done")
    a(f"s_mul_i32 s{S_T0}, s{S_R}, 37")
    a(f"s_lshr_b32 s{S_T0}, s{S_T0}, 8")
    a(f"s_mul_i32 s{S_T1}, s{S_T0}, 7")
    a(f"s_sub_u32 s{S_T1}, s{S_R}, s{S_T1}")
    a(f"s_mul_i32 s{S_T0}, s{S_T0}, {256*7168}")
    a(f"s_mul_i32 s{S_T2}, s{S_X}, 896")
    a(f"s_lshl_b32 s{S_T1}, s{S_T1}, 7")
    a(f"s_add_u32 s{S_T0}, s{S_T0}, s{S_T2}")
    a(f"s_add_u32 s{S_T0}, s{S_T0}, s{S_T1}")
    a(f"s_cmp_eq_u32 s{S_W}, 5")
    a(f"s_cselect_b32 s{S_B0}, s{P_WG}, s{P_WU}")
    a(f"s_cselect_b32 s{S_B0+1}, s{P_WG+1}, s{P_WU+1}")
    a(f"s_mov_b32 s{S_T3}, {L_WU}")
    a(f"s_cselect_b32 s{S_T3}, {L_WG}, s{S_T3}")
    a(f"s_add_u32 s{S_B0}, s{S_B0}, s{S_T0}")
    a(f"s_addc_u32 s{S_B0+1}, s{S_B0+1}, 0")
    a(f"s_mov_b32 s{S_T0}, 7168")
    a(f"s_mov_b32 s{S_T1}, 32")
    a("s_branch L_dma_go")
    a("L_dma_wo:")
    if cfg.HPERM:
        a(f"s_lshl_b32 s{S_T0}, s{S_T4}, 4")
        a(f"s_add_u32 s{S_T0}, s{S_T0}, s{S_X}")
        a(f"s_lshl_b32 s{S_T0}, s{S_T0}, 18")
    else:
        a(f"s_lshl_b32 s{S_T0}, s{S_X}, 1")
        a(f"s_add_u32 s{S_T0}, s{S_T0}, s{S_T4}")
        a(f"s_lshl_b32 s{S_T0}, s{S_T0}, 19")
    a(f"s_lshl_b32 s{S_T1}, s{S_T5}, 7")
    a(f"s_add_u32 s{S_T0}, s{S_T0}, s{S_T1}")
    a(f"s_add_u32 s{S_B0}, s{P_WO}, s{S_T0}")
    a(f"s_addc_u32 s{S_B0+1}, s{P_WO+1}, 0")
    a(f"s_mov_b32 s{S_T3}, {L_WO}")
    a(f"s_mov_b32 s{S_T0}, 2048")
    a(f"s_mov_b32 s{S_T1}, 32")
    a("s_branch L_dma_go")
    a("L_dma_wd:")
    a(f"s_lshl_b32 s{S_T0}, s{S_X}, 1")
    a(f"s_add_u32 s{S_T0}, s{S_T0}, s{S_T4}")
    a(f"s_mul_i32 s{S_T0}, s{S_T0}, {224*2048}")
    a(f"s_lshl_b32 s{S_T1}, s{S_T5}, 7")
    a(f"s_add_u32 s{S_T0}, s{S_T0}, s{S_T1}")
    a(f"s_add_u32 s{S_B0}, s{P_WD}, s{S_T0}")
    a(f"s_addc_u32 s{S_B0+1}, s{P_WD+1}, 0")
    a(f"s_mov_b32 s{S_T3}, {L_WD}")
    a(f"s_mov_b32 s{S_T0}, 2048")
    a(f"s_mov_b32 s{S_T1}, 28")
    a("L_dma_go:")
    a(f"v_mul_lo_u32 v10, v10, s{S_T0}")
    a(f"s_lshl_b32 s{S_T0}, s{S_T0}, 3")
    a(f"v_add_u32 v10, v10, v11")
    a(f"s_mov_b32 m0, s{S_T3}")
    a("s_nop 0")
    for n in range(cfg.P0):
        a(f"global_load_lds_dwordx4 v10, {sr(S_B0,2)} {cfg.WFLAGS}")
        a(f"s_add_u32 m0, m0, 1024")
        a(f"s_add_u32 s{S_B0}, s{S_B0}, s{S_T0}")
        a(f"s_addc_u32 s{S_B0+1}, s{S_B0+1}, 0")
    a(f"s_sub_u32 s{S_DN}, s{S_T1}, {cfg.P0}")
    a(f"s_mov_b32 s{S_DS}, s{S_T0}")
    a(f"s_mov_b32 s{S_DJ}, 0")
    if cfg.HPERM:
        a(f"s_cmp_eq_u32 s{S_W}, 4")
        a(f"s_cselect_b32 s{S_DJ}, {896*2048}, 0")
    a(f"v_mov_b32 v{V_DMA}, v10")
    a(f"s_mov_b32 s{S_LNW}, 1") if cfg.LNDRY else a(f"s_waitcnt vmcnt({cfg.P0})")
    a("s_branch L_ln1")
    a("L_dma_done:")
    a(f"s_mov_b32 s{S_DN}, 0")
    a(f"s_mov_b32 s{S_B0}, s{P_WS}")
    a(f"s_mov_b32 s{S_B0+1}, s{P_WS+1}")
    a(f"v_mov_b32 v{V_DMA}, 0")
    a(f"s_mov_b32 s{S_LNW}, 0") if cfg.LNDRY else a("s_waitcnt vmcnt(0)")
    a("s_branch L_ln1")

    a.ool(False)
    a("L_lowwaves:")
    a(f"v_lshlrev_b32 v12, 13, v3")
    a(f"v_lshlrev_b32 v11, 1, v3")
    a(f"v_xor_b32 v10, v2, v11")
    a(f"v_xor_b32 v11, 8, v10")
    a(f"v_lshl_add_u32 v10, v10, 4, v12")
    a(f"v_lshl_add_u32 v11, v11, 4, v12")
    a(f"s_lshl_b32 s{S_T0}, s{S_B}, 7")
    a(f"s_lshl_b32 s{S_T1}, s{S_W}, 5")
    a(f"s_add_u32 s{S_T0}, s{S_T0}, s{S_T1}")
    a(f"s_lshl_b32 s{S_T0}, s{S_T0}, 13")
    a(f"s_lshl_b32 s{S_T1}, s{S_HA}, 8")
    a(f"s_add_u32 s{S_T0}, s{S_T0}, s{S_T1}")
    a(f"s_add_u32 s{S_B0}, s{P_WQ}, s{S_T0}")
    a(f"s_addc_u32 s{S_B0+1}, s{P_WQ+1}, 0")
    a(f"s_lshl_b32 s{S_T1}, s{S_W}, 13")
    a(f"s_add_u32 m0, s{S_T1}, {L_WQ}")
    a("s_nop 0")
    for n in range(8):
        a(f"global_load_lds_dwordx4 v{10+((n>>1)&1)}, {sr(S_B0,2)} {cfg.WFLAGS}")
        if n<7:
            a(f"s_add_u32 m0, m0, 1024")
            a(f"s_add_u32 s{S_B0}, s{S_B0}, {4*8192}")
            a(f"s_addc_u32 s{S_B0+1}, s{S_B0+1}, 0")
    if cfg.RING_EARLY:
        a(f"s_cmp_ge_u32 s{S_W}, {NSW}")
        a("s_cbranch_scc1 L_low_nostr")
        a(f"s_lshl_b32 s{S_KOFF}, s{S_W}, 12")
        if cfg.ROT or cfg.ROTX:
            a(f"s_add_u32 s{S_KOFF}, s{S_KOFF}, s{S_ROT}")
            a(f"s_and_b32 s{S_KOFF}, s{S_KOFF}, 0xfffff")
        for j in range(cfg.LS or LK): kload(j)
        a(f"s_mov_b32 s{S_LNW}, 2") if cfg.LNDRY else a(f"s_waitcnt vmcnt({8+(cfg.LS or LK)})")
        a("s_branch L_ln1_low")
        a("L_low_nostr:")
    a(f"s_mov_b32 s{S_LNW}, 3") if cfg.LNDRY else a(f"s_waitcnt vmcnt(8)")
    a("L_ln1_low:")
    a("L_ln1:")
    if cfg.LNDRY:
        a(f"s_or_b32 s{S_LNW}, s{S_LNW}, 0x10")
        a("L_ln1_again:")
    layernorm2(a, V_X, V_X+8, V_X+24, V_T)
    if cfg.LNDRY:
        a(f"s_bitcmp0_b32 s{S_LNW}, 4")
        a("s_cbranch_scc1 L_ln1_done")
        a(f"s_and_b32 s{S_LNW}, s{S_LNW}, 0xf")
        for k,n in ((0,0),(1,cfg.P0),(2,8+LK),(3,8)):
            a(f"s_cmp_lg_u32 s{S_LNW}, {k}")
            a(f"s_cbranch_scc1 L_lnw{k}")
            a(f"s_waitcnt vmcnt({n})")
            a(f"L_lnw{k}:")
        a("s_branch L_ln1_again")
        a("L_ln1_done:")
    a(f"s_lshl_b32 s{S_T0}, s{S_B}, 3")
    a(f"v_subrev_u32 v10, s{S_T0}, v{V_LANE}")
    a(f"v_cmp_gt_u32 vcc, 8, v10")
    a(f"s_mul_i32 s{S_T1}, s{S_W}, {LNA_P}")
    a(f"s_add_u32 s{S_T1}, s{S_T1}, {L_LNA}")
    a(f"v_lshlrev_b32 v10, 5, v10")
    a(f"v_add_u32 v10, s{S_T1}, v10")
    a(f"s_and_saveexec_b64 {sr(S_EX,2)}, vcc")
    a(f"ds_write_b128 v10, {vr(V_X+24,4)}")
    a(f"ds_write_b128 v10, {vr(V_X+28,4)} offset:16")
    a(f"s_mov_b64 exec, {sr(S_EX,2)}")
    a(f"s_cmp_ge_u32 s{S_W}, 4")
    a("s_cbranch_scc1 L_b1")
    if cfg.RING_EARLY:
        a(f"s_cmp_ge_u32 s{S_W}, {NSW}")
        a("s_cbranch_scc1 L_b1_ns")
        a(f"s_waitcnt vmcnt({cfg.LS or LK})")
        a("s_branch L_b1")
        a("L_b1_ns:")
    a("s_waitcnt vmcnt(0)")
    a("L_b1:")
    a("s_waitcnt lgkmcnt(0)")
    a(f"s_cmp_lg_u32 s{S_W}, 0")
    a("s_cbranch_scc1 L_noqf")
    a(f"v_mov_b32 v10, {L_QF}")
    a(f"v_mov_b32 v11, 0")
    a(f"ds_write_b32 v10, v11")
    a(f"ds_write_b32 v10, v11 offset:{L_MODE-L_QF}")
    a("s_waitcnt lgkmcnt(0)")
    a("L_noqf:")
    a("s_barrier")
    stamp(a,cfg,1)
    a(f"s_add_u32 s{S_TAG}, s{S_TAG}, 1")
    a(f"s_addc_u32 s{S_TAG+1}, s{S_TAG+1}, 0")
    a(f"v_and_b32 v10, 1, v2")
    a(f"v_cmp_eq_u32 vcc, 1, v10")
    a(f"v_mov_b32 v11, 0xffff")
    a(f"v_mov_b32 v12, 0xffff0000")
    a(f"v_cndmask_b32 v11, v11, v12, vcc")
    a(f"v_lshrrev_b32 v10, 1, v2")
    for w in range(4):
        a(f"v_cmp_eq_u32 vcc, {w}, v10")
        a("s_nop 1")
        a(f"v_cndmask_b32 v{V_MASK+w}, 0, v11, vcc")
    a(f"v_mov_b32 v{V_MAX}, 0xff800000")
    a(f"s_mov_b32 s{S_SCALE}, 0x3db504f3")
    a(f"s_mov_b32 s{S_LOG2E}, 0x3fb8aa3b")
    for c in range(4):
        a(f"v_mov_b32 v{V_OACC+c}, 0")
    a(f"s_cmp_ge_u32 s{S_W}, 4")
    a("s_cbranch_scc1 L_high2")
    a.ool(True)
    a("L_high2:")
    if cfg.CLR7:
        a(f"s_cmp_lg_u32 s{S_W}, 7")
        a("s_cbranch_scc1 L_h2_noclr")
        if not cfg.NOCLR: emit_clears(a,"7")
        a("L_h2_noclr:")
    if cfg.NODMA2: a(f"s_mov_b32 s{S_DN}, 0")
    a(f"s_cmp_eq_u32 s{S_DN}, 0")
    a("s_cbranch_scc1 L_dma2_done")
    if cfg.DMAPAUSE:
        a(f"v_mov_b32 v10, {L_QF}")
        a(f"s_mov_b32 s{S_SPIN}, {cfg.SPIN}")
        a("L_dp_wait:")
        a(f"ds_read_b32 v11, v10")
        a("s_waitcnt lgkmcnt(0)")
        a(f"v_readfirstlane_b32 s{S_T0}, v11")
        a("s_nop 1")
        a(f"s_cmp_lg_u32 s{S_T0}, 0")
        a("s_cbranch_scc1 L_dma2_loop")
        a("s_sleep 2")
        a(f"s_sub_u32 s{S_SPIN}, s{S_SPIN}, 1")
        a(f"s_cmp_lg_u32 s{S_SPIN}, 0")
        a("s_cbranch_scc1 L_dp_wait")
    a("L_dma2_loop:")
    a(f"s_waitcnt vmcnt({cfg.P-1})")
    a(f"global_load_lds_dwordx4 v{V_DMA}, {sr(S_B0,2)} {cfg.WFLAGS}")
    a(f"s_add_u32 m0, m0, 1024")
    a(f"s_add_u32 s{S_B0}, s{S_B0}, s{S_DS}")
    a(f"s_addc_u32 s{S_B0+1}, s{S_B0+1}, 0")
    a(f"s_sub_u32 s{S_DN}, s{S_DN}, 1")
    if cfg.HPERM:
        a(f"s_cmp_eq_u32 s{S_DN}, 16")
        a(f"s_cselect_b32 s{S_DM2}, s{S_DJ}, 0")
        a(f"s_add_u32 s{S_B0}, s{S_B0}, s{S_DM2}")
        a(f"s_addc_u32 s{S_B0+1}, s{S_B0+1}, 0")
    a(f"s_cmp_lg_u32 s{S_DN}, 0")
    a("s_cbranch_scc1 L_dma2_loop")
    a("L_dma2_done:")
    a("s_waitcnt vmcnt(0)")
    stamp(a,cfg,13)
    if cfg.CLR7:
        a(f"s_cmp_lg_u32 s{S_W}, 7")
        a("s_cbranch_scc1 L_h2_nordy")
        emit_rdy(a)
        a("L_h2_nordy:")
    emit_precompute(a,cfg)
    emit_rdycheck(a,cfg)
    a("s_branch L_kdone")
    a.ool(False)
    a("L_q_low:")
    if not cfg.RING_EARLY:
        a(f"s_cmp_ge_u32 s{S_W}, {NSW}")
        a("s_cbranch_scc1 L_ring_late_skip")
        a(f"s_lshl_b32 s{S_KOFF}, s{S_W}, 12")
        if cfg.ROT or cfg.ROTX:
            a(f"s_add_u32 s{S_KOFF}, s{S_KOFF}, s{S_ROT}")
            a(f"s_and_b32 s{S_KOFF}, s{S_KOFF}, 0xfffff")
        for j in range(cfg.LS or LK): kload(j)
        a("L_ring_late_skip:")
    a(f"s_cmp_lt_u32 s{S_W}, 2")
    a("s_cbranch_scc1 L_q_01")
    a.ool(True)
    a("L_q_01:")
    emit_precompute(a,cfg)
    a(f"s_cmp_eq_u32 s{S_W}, 0")
    a("s_cbranch_scc1 L_q_w0")
    a("s_branch L_q_w1")
    a.ool(False)
    a("L_q_prod:")
    a(f"v_and_b32 v10, 7, v{V_LANE}")
    a(f"v_mul_u32_u24 v10, {LNA_P}, v10")
    a(f"v_lshlrev_b32 v11, 4, v3")
    a(f"v_add_u32 v10, v10, v11")
    a(f"v_add_u32 v10, {L_LNA}, v10")
    for s_ in range(4):
        a(f"ds_read_b128 {vr(V_X+4*s_,4)}, v10 offset:{64*s_}")
    a(f"v_lshlrev_b32 v11, 3, v3")
    a(f"v_add_u32 v11, v11, v4")
    a(f"v_lshlrev_b32 v11, 8, v11")
    a(f"v_lshlrev_b32 v12, 3, v5")
    a(f"v_add3_u32 v11, v11, v12, {0}") if False else None
    a(f"v_add_u32 v11, v11, v12")
    a(f"v_add_u32 v11, {L_WQ}, v11")
    a(f"v_and_b32 v12, 1, v3")
    a(f"v_lshlrev_b32 v12, 2, v12")
    a(f"v_or_b32 v12, v12, v4")
    a(f"s_sub_u32 s{S_T4}, s{S_W}, 2")
    a(f"s_lshl_b32 s{S_T0}, s{S_T4}, 2")
    a(f"v_xor_b32 v12, s{S_T0}, v12")
    for tt in range(4):
        a(f"v_xor_b32 v13, {tt}, v12")
        a(f"v_lshl_add_u32 v{V_T+16+tt}, v13, 5, v11")
    for tt in range(4):
        for s_ in range(4):
            for hf in range(2):
                reg=V_RING+tt*16+s_*4+hf*2
                a(f"ds_read_b64_tr_b16 {vr(reg,2)}, v{V_T+16+tt} offset:{(32*s_+4*hf)*256}")
    a(f"s_lshl_b32 s{S_T0}, s{S_H}, 3")
    a(f"s_add_u32 s{S_T0}, s{S_T0}, s{S_B}")
    a(f"s_lshl_b32 s{S_T0}, s{S_T0}, 13")
    a(f"s_lshl_b32 s{S_T1}, s{S_T4}, 9")
    a(f"s_add_u32 s{S_T0}, s{S_T0}, s{S_T1}")
    a(f"s_add_u32 s{S_T0}, s{S_T0}, {W_QP}")
    a(f"v_and_b32 v10, 7, v2")
    a(f"v_lshlrev_b32 v10, 10, v10")
    a(f"v_lshlrev_b32 v11, 5, v3")
    a(f"v_lshrrev_b32 v12, 3, v2")
    a(f"v_lshl_add_u32 v11, v12, 4, v11")
    a(f"v_add3_u32 v{V_QADDR}, v10, v11, s{S_T0}")
    a(f"v_cmp_eq_u32 {sr(S_B1,2)}, 1, v12")
    G=V_X+16
    for tt in range(4):
        a(f"v_mov_b32 v{G+4*tt+2}, s{S_TAG}")
        a(f"v_mov_b32 v{G+4*tt+3}, s{S_TAG+1}")
    a("s_waitcnt lgkmcnt(0)")
    for s_ in range(4):
        for tt in range(4):
            c = "0" if s_==0 else vr(V_T+4*tt,4)
            a(f"v_mfma_f32_16x16x32_bf16 {vr(V_T+4*tt,4)}, {vr(V_RING+tt*16+s_*4,4)}, {vr(V_X+4*s_,4)}, {c}")
    a("s_nop 7")
    for tt in range(4):
        a(f"v_cndmask_b32 v{G+4*tt}, v{V_T+4*tt}, v{V_T+4*tt+2}, {sr(S_B1,2)}")
        a(f"v_cndmask_b32 v{G+4*tt+1}, v{V_T+4*tt+1}, v{V_T+4*tt+3}, {sr(S_B1,2)}")
    def qstores(fl):
        for tt in range(4):
            a(f"global_store_dwordx4 v{V_QADDR}, {vr(G+4*tt,4)}, {sr(P_WS,2)} offset:{128*tt} {fl}")
    qstores("" if cfg.QFAST else "sc1")
    stamp(a,cfg,13)
    a("s_branch L_prod2")
    a.ool(True)
    a("L_prod2:")
    if cfg.QFAST and cfg.CONDCOPY:
        a(f"v_mov_b32 v10, {L_MODE}")
        a(f"s_mov_b32 s{S_SPIN}, {cfg.SPIN}")
        a("L_qc_wait:")
        a("s_sleep 16")
        a(f"ds_read_b32 v11, v10")
        a("s_waitcnt lgkmcnt(0)")
        a(f"v_readfirstlane_b32 s{S_T0}, v11")
        a("s_nop 1")
        a(f"s_cmp_lg_u32 s{S_T0}, 0")
        a("s_cbranch_scc1 L_qc_go")
        a(f"s_sub_u32 s{S_SPIN}, s{S_SPIN}, 1")
        a(f"s_cmp_lg_u32 s{S_SPIN}, 0")
        a("s_cbranch_scc1 L_qc_wait")
        a("L_qc_go:")
        a(f"s_cmp_eq_u32 s{S_T0}, 2")
        a("s_cbranch_scc1 L_qc_skip")
        qstores("sc1")
        a("L_qc_skip:")
    elif cfg.QFAST:
        a(f"v_mov_b32 v10, {L_QF}")
        a(f"s_mov_b32 s{S_SPIN}, {cfg.QWAIT}")
        a("L_qc_wait:")
        a("s_sleep 4")
        a(f"ds_read_b32 v11, v10")
        a("s_waitcnt lgkmcnt(0)")
        a(f"v_readfirstlane_b32 s{S_T0}, v11")
        a("s_nop 1")
        a(f"s_cmp_lg_u32 s{S_T0}, 0")
        a("s_cbranch_scc1 L_qc_go")
        a(f"s_sub_u32 s{S_SPIN}, s{S_SPIN}, 1")
        a(f"s_cmp_lg_u32 s{S_SPIN}, 0")
        a("s_cbranch_scc1 L_qc_wait")
        a("L_qc_go:")
        if not cfg.NOCOPY: qstores("sc1")
    if not cfg.CLR7:
        a(f"s_cmp_lg_u32 s{S_W}, 3")
        a("s_cbranch_scc1 L_q_prod2")
        if not cfg.NOCLR: emit_clears(a)
        a("s_waitcnt vmcnt(0)")
        emit_rdy(a)
    a("L_q_prod2:")
    emit_precompute(a,cfg)
    if cfg.CODEPF:
        a(f"s_cmp_lg_u32 s{S_W}, 2")
        a("s_cbranch_scc1 L_pf1_skip")
        emit_codepf(a,cfg,"L_pf1","L_q_ready","L_exit")
        a("L_pf1_skip:")
    a(f"global_load_dwordx2 {vr(V_XRES,2)}, v9, {sr(P_X,2)}")
    a("s_branch L_kdone")
    a.ool(False)
    a("L_q_w1:")
    if NSW<2:
        a("s_branch L_kdone")
    a(f"v_mov_b32 v10, {L_QF}")
    a(f"s_mov_b32 s{S_SPIN}, {cfg.SPIN}")
    a("L_qf_wait:")
    a(f"ds_read_b32 v11, v10")
    a("s_waitcnt lgkmcnt(0)")
    a(f"v_readfirstlane_b32 s{S_T0}, v11")
    a("s_nop 1")
    a(f"s_cmp_lg_u32 s{S_T0}, 0")
    a("s_cbranch_scc1 L_q_ready")
    a(f"s_sub_u32 s{S_SPIN}, s{S_SPIN}, 1")
    a(f"s_cmp_lg_u32 s{S_SPIN}, 0")
    a("s_cbranch_scc1 L_qf_wait")
    a("s_branch L_q_ready")
    a("L_q_w0:")
    a(f"s_lshl_b32 s{S_T0}, s{S_H}, 16")
    a(f"s_lshl_b32 s{S_T1}, s{S_B}, 10")
    a(f"s_add_u32 s{S_T0}, s{S_T0}, s{S_T1}")
    a(f"s_add_u32 s{S_T0}, s{S_T0}, {W_QP}")
    a(f"v_add_u32 v10, s{S_T0}, v{V_VOFF}")
    for j in range(8):
        a(f"v_add_u32 v{V_T+8+j}, {j*8192}, v10")
    PQ=V_X+16
    lp=a.label("qpoll"); dn=a.label("qok")
    a(f"s_mov_b32 s{S_SPIN}, {cfg.SPIN}")
    a(f"{lp}:")
    for j in range(8):
        a(f"global_load_dwordx4 {vr(PQ+4*j,4)}, v{V_T+8+j}, {sr(P_WS,2)} sc1")
    a("s_waitcnt vmcnt(0)")
    a(f"v_mov_b32 v11, 0")
    for j in range(8):
        a(f"v_xor_b32 v12, s{S_TAG}, v{PQ+4*j+2}")
        a(f"v_xor_b32 v13, s{S_TAG+1}, v{PQ+4*j+3}")
        a(f"v_or3_b32 v11, v11, v12, v13")
    a(f"v_cmp_ne_u32 vcc, 0, v11")
    a(f"s_cbranch_vccz {dn}")
    if cfg.QSLEEP: a(f"s_sleep {cfg.QSLEEP}")
    a(f"s_sub_u32 s{S_SPIN}, s{S_SPIN}, 1")
    a(f"s_cmp_lg_u32 s{S_SPIN}, 0")
    a(f"s_cbranch_scc1 {lp}")
    a(f"{dn}:")
    stamp(a,cfg,14)
    for j in range(1,8):
        a(f"v_add_f32 v{PQ}, v{PQ}, v{PQ+4*j}")
        a(f"v_add_f32 v{PQ+1}, v{PQ+1}, v{PQ+4*j+1}")
    a(f"v_cvt_pk_bf16_f32 v{PQ+2}, v{PQ}, v{PQ+1}")
    a(f"v_lshlrev_b32 v11, 2, v{V_LANE}")
    a(f"v_add_u32 v11, {L_QS}, v11")
    a(f"ds_write_b32 v11, v{PQ+2}")
    a("s_waitcnt lgkmcnt(0)")
    a(f"v_mov_b32 v10, {L_QF}")
    a(f"v_mov_b32 v11, 1")
    a(f"ds_write_b32 v10, v11")
    a("L_q_ready:")
    stamp(a,cfg,2)
    a(f"v_lshlrev_b32 v10, 2, v3")
    a(f"v_add_u32 v10, v10, v5")
    a(f"v_lshlrev_b32 v10, 4, v10")
    a(f"v_add_u32 v10, {L_QS}, v10")
    a(f"ds_read_b128 {vr(V_T,4)}, v10")
    a(f"s_lshl_b32 s{S_T0}, s{S_W}, 6")
    a(f"s_add_u32 s{S_T0}, s{S_T0}, {L_SC}")
    a(f"v_lshlrev_b32 v10, 4, v4")
    a(f"v_lshlrev_b32 v11, 2, v3")
    a(f"v_add3_u32 v{V_SCW}, v10, v11, s{S_T0}")
    a("s_waitcnt lgkmcnt(0)")
    for n in range(4):
        a(f"v_cmp_eq_u32 vcc, {n}, v4")
        a("s_nop 1")
        for c in range(4):
            a(f"v_cndmask_b32 v{V_QA+4*n+c}, 0, v{V_T+c}, vcc")
    import math
    PERK=LK*4//math.gcd(LK,4)
    def kpost(acc, sc_off):
        t=V_T
        a(f"v_mov_b32_dpp v{t}, v{acc} quad_perm:[0,0,0,0] row_mask:0xf bank_mask:0xf")
        for q in range(1,4):
            a(f"v_add_f32_dpp v{t}, v{acc+q}, v{t} quad_perm:[{q},{q},{q},{q}] row_mask:0xf bank_mask:0xf")
        round_bf16(a,t,t)
        a(f"v_mul_f32 v{t}, s{S_SCALE}, v{t}")
        round_bf16(a,t,t)
        a(f"v_max_f32 v{V_MAX}, v{V_MAX}, v{t}")
        a(f"ds_write_b32 v{V_SCW}, v{t} offset:{sc_off}")
    def kbody(j, wait_n, reissue, sc_off, prev_off=None, last=False):
        a(f"s_waitcnt vmcnt({wait_n})")
        a("s_nop 0")
        n=j%4
        if cfg.KEXP==2:
            acc=V_SACC if (j//4)%2==0 else V_SACC2
        else:
            acc=V_SACC
        c="0" if n==0 else vr(acc,4)
        a(f"v_mfma_f32_16x16x32_bf16 {vr(acc,4)}, {vr(V_QA+4*n,4)}, {vr(V_RING+(j%LK)*4,4)}, {c}")
        reissue()
        if cfg.KEXP==2:
            if n==1 and prev_off is not None:
                kpost(V_SACC2 if (j//4)%2==0 else V_SACC, prev_off)
            if n==3 and last:
                a("s_nop 7")
                kpost(acc, sc_off)
        elif n==3:
            if cfg.KEXP==1: return
            a("s_nop 7")
            kpost(acc, sc_off)
    if cfg.KEXP==2 and (PERK//4)%2: PERK*=2
    nloop=(NK-LK)//PERK
    TS=NSW*64
    if cfg.KEXP==2:
        for j in range(4):
            kbody(j, LK-1, (lambda j=j: kload(j+LK)), 0, None)
        base=4
        nloop=(NK-LK-4)//PERK
    else:
        base=0
    if cfg.LS:
        assert cfg.KEXP!=2 and cfg.KS0%PERK==0
        for j in range(cfg.KS0):
            kbody(j, cfg.LS-1, (lambda j=j: kload(j+cfg.LS)), (j//4)*TS)
        for m in range(cfg.KS0+cfg.LS, cfg.KS0+LK): kload(m)
        a(f"v_add_u32 v{V_SCW}, {(cfg.KS0//4)*TS}, v{V_SCW}")
        nloop=(NK-LK-cfg.KS0)//PERK
    a(f"s_mov_b32 s{S_LOOP}, {nloop}")
    a(".p2align 6")
    a("L_kloop:")
    for j in range(base,base+PERK):
        kbody(j, LK-1, (lambda j=j: kload(j+LK)), ((j-0)//4)*TS, ((j//4)-1)*TS)
    a(f"v_add_u32 v{V_SCW}, {(PERK//4)*TS}, v{V_SCW}")
    a(f"s_sub_u32 s{S_LOOP}, s{S_LOOP}, 1")
    a(f"s_cmp_lg_u32 s{S_LOOP}, 0")
    a("s_cbranch_scc1 L_kloop")
    done=base+nloop*PERK+(cfg.KS0 if cfg.LS else 0)
    for j in range(done, NK):
        m=j+LK
        if m<NK: ri=(lambda m=m: kload(m)); wn=LK-1
        elif m-NK<L: ri=(lambda m=m: vload(m-NK, first=(m==NK))); wn=LK-1
        else: ri=(lambda: None); wn=(NK-1-j)+L
        rel=(j-nloop*PERK-(cfg.KS0 if cfg.LS else 0))//4
        kbody(j, wn, ri, rel*TS, (rel-1)*TS, last=(j==NK-1))
    a("L_kdone:")
    stamp(a,cfg,3)
    wave_sum(a, V_MAX, V_T, op="max")
    a(f"s_lshl_b32 s{S_T0}, s{S_W}, 2")
    a(f"s_add_u32 s{S_T0}, s{S_T0}, {L_ML}")
    a(f"v_mov_b32 v11, s{S_T0}")
    a(f"ds_write_b32 v11, v{V_MAX}")
    a("s_waitcnt lgkmcnt(0)")
    a("s_barrier")
    if cfg.LATE_L:
        a(f"s_cmp_lg_u32 s{S_W}, 2")
        a("s_cbranch_scc1 L_nokd")
        a(f"v_mov_b32 v12, {L_MODE}")
        a(f"ds_read_b32 v13, v12")
        a(f"s_lshl_b32 s{S_T0}, s{S_X}, 9")
        a(f"s_add_u32 s{S_T0}, s{S_T0}, {W_KD}")
        a(f"v_and_b32 v10, 31, v{V_LANE}")
        a(f"v_lshlrev_b32 v10, 4, v10")
        a(f"v_add_u32 v10, s{S_T0}, v10")
        a(f"global_load_dwordx4 {vr(V_RDY,4)}, v10, {sr(P_WS,2)} sc1")
        if cfg.LATE_X:
            a(f"s_lshl_b32 s{S_T2}, s{S_R}, 7")
            a(f"s_add_u32 s{S_T2}, s{S_T2}, {W_KX}")
            a(f"v_and_b32 v11, 7, v{V_LANE}")
            a(f"v_lshlrev_b32 v11, 4, v11")
            a(f"v_add_u32 v11, s{S_T2}, v11")
            a(f"global_load_dwordx4 {vr(V_KX,4)}, v11, {sr(P_WS,2)} sc1")
        a(f"s_lshl_b32 s{S_T1}, s{S_R}, 4")
        a(f"s_add_u32 s{S_T0}, s{S_T0}, s{S_T1}")
        a(f"v_mov_b32 v10, s{S_T0}")
        if cfg.LATE_X:
            a(f"s_lshl_b32 s{S_T1}, s{S_X}, 4")
            a(f"s_add_u32 s{S_T2}, s{S_T2}, s{S_T1}")
            a(f"v_mov_b32 v11, s{S_T2}")
        a(f"v_mov_b32 v{V_X+8}, 1")
        a(f"v_mov_b32 v{V_X+9}, 0")
        a(f"v_mov_b32 v{V_X+10}, s{S_TAG}")
        a(f"v_mov_b32 v{V_X+11}, s{S_TAG+1}")
        a("s_waitcnt lgkmcnt(0)")
        a(f"v_readfirstlane_b32 s{S_FAST}, v13")
        a("s_nop 1")
        a(f"s_sub_u32 s{S_FAST}, s{S_FAST}, 1")
        set_exec(a,1,0)
        store_mode(a, f"global_store_dwordx4 v10, {vr(V_X+8,4)}, {sr(P_WS,2)}", True)
        if cfg.LATE_X: a(f"global_store_dwordx4 v11, {vr(V_X+8,4)}, {sr(P_WS,2)} sc1")
        full_exec(a)
        a(f"v_mov_b32 v10, {L_SEL}")
        a(f"v_mov_b32 v11, 0")
        a(f"ds_write_b32 v10, v11")
        a("L_nokd:")
    a(f"s_cmp_lt_u32 s{S_W}, {NSW}")
    a("s_cbranch_scc1 L_nohv")
    a(f"s_sub_u32 s{S_T0}, s{S_W}, {NSW}")
    a(f"s_mul_i32 s{S_T0}, s{S_T0}, {HV*4096}")
    if cfg.ROT or cfg.ROTX:
        assert HV==1
        a(f"s_add_u32 s{S_T0}, s{S_T0}, s{S_ROT}")
        a(f"s_and_b32 s{S_T0}, s{S_T0}, 0xfffff")
    for t in range(HV):
        for n in range(4):
            a(f"buffer_load_dwordx4 {vr(V_RING+t*16+n*4,4)}, v{V_VOFF}, {sr(SRD_V,4)}, s{S_T0} offen offset:{n*1024} {cfg.VFLAGS}")
        if t<HV-1: a(f"s_add_u32 s{S_T0}, s{S_T0}, 4096")
    a("L_nohv:")
    a(f"v_mov_b32 v12, {L_MODE}")
    a(f"ds_read_b32 v13, v12")
    a(f"v_mov_b32 v11, {L_ML}")
    a(f"ds_read_b128 {vr(V_X,4)}, v11")
    a(f"ds_read_b128 {vr(V_X+4,4)}, v11 offset:16")
    a(f"s_lshl_b32 s{S_T4}, s{S_W}, 11")
    a(f"s_add_u32 s{S_T4}, s{S_T4}, {L_SC}")
    a(f"v_lshlrev_b32 v10, 5, v{V_LANE}")
    a(f"v_add_u32 v10, s{S_T4}, v10")
    a(f"ds_read_b128 {vr(V_T,4)}, v10")
    a(f"ds_read_b128 {vr(V_T+4,4)}, v10 offset:16")
    a("s_waitcnt lgkmcnt(2)")
    a(f"v_readfirstlane_b32 s{S_FAST}, v13")
    a(f"v_max3_f32 v{V_MAX}, v{V_X}, v{V_X+1}, v{V_X+2}")
    a(f"s_sub_u32 s{S_FAST}, s{S_FAST}, 1")
    a(f"v_max3_f32 v{V_MAX}, v{V_MAX}, v{V_X+3}, v{V_X+4}")
    a(f"v_max3_f32 v{V_MAX}, v{V_MAX}, v{V_X+5}, v{V_X+6}")
    a(f"v_max_f32 v{V_MAX}, v{V_MAX}, v{V_X+7}")
    a("s_waitcnt lgkmcnt(0)")
    for i in range(8):
        a(f"v_sub_f32 v{V_T+8+i}, v{V_T+i}, v{V_MAX}")
        a(f"v_mul_f32 v{V_T+8+i}, s{S_LOG2E}, v{V_T+8+i}")
        a(f"v_exp_f32 v{V_T+8+i}, v{V_T+8+i}")
    a("s_nop 0")
    a(f"v_add_f32 v{V_T+16}, v{V_T+8}, v{V_T+9}")
    for i in range(2,8):
        a(f"v_add_f32 v{V_T+16}, v{V_T+16}, v{V_T+8+i}")
    wave_sum(a, V_T+16, V_T+17)
    a(f"s_lshl_b32 s{S_T0}, s{S_W}, 2")
    a(f"s_add_u32 s{S_T0}, s{S_T0}, {L_LS}")
    a(f"v_mov_b32 v11, s{S_T0}")
    a(f"ds_write_b32 v11, v{V_T+16}")
    a("s_waitcnt lgkmcnt(0)")
    a("s_barrier")
    a(f"v_mov_b32 v11, {L_LS}")
    a(f"ds_read_b128 {vr(V_X,4)}, v11")
    a(f"ds_read_b128 {vr(V_X+4,4)}, v11 offset:16")
    a("s_waitcnt lgkmcnt(0)")
    a(f"v_add_f32 v{V_T+16}, v{V_X}, v{V_X+1}")
    for k in range(2,8):
        a(f"v_add_f32 v{V_T+16}, v{V_T+16}, v{V_X+k}")
    a(f"v_rcp_f32 v{V_T+17}, v{V_T+16}")
    a("s_nop 0")
    a(f"v_fma_f32 v{V_T+18}, -v{V_T+16}, v{V_T+17}, 1.0")
    a(f"v_fma_f32 v{V_T+17}, v{V_T+18}, v{V_T+17}, v{V_T+17}")
    for i in range(8):
        a(f"v_mul_f32 v{V_T+8+i}, v{V_T+8+i}, v{V_T+17}")
        a(f"v_cvt_pk_bf16_f32 v{V_T+8+i}, v{V_T+8+i}, v{V_T+8+i}")
    a(f"ds_write_b128 v10, {vr(V_T+8,4)}")
    a(f"ds_write_b128 v10, {vr(V_T+12,4)} offset:16")
    a("s_waitcnt lgkmcnt(0)")
    a("s_barrier")
    stamp(a,cfg,4)
    def ands(dst,pp):
        for w in range(4):
            a(f"v_and_b32 v{dst+w}, v{pp}, v{V_MASK+w}")
    a(f"s_cmp_lt_u32 s{S_W}, {NSW}")
    a("s_cbranch_scc1 L_vstream")
    if cfg.LATE_L:
        a(f"s_cmp_lg_u32 s{S_W}, 2")
        a("s_cbranch_scc1 L_nokd2")
        a(f"s_waitcnt vmcnt({(2 if cfg.LATE_X else 1)+4*HV})")
        a(f"v_xor_b32 v11, s{S_TAG}, v{V_RDY+2}")
        a(f"v_xor_b32 v15, s{S_TAG+1}, v{V_RDY+3}")
        a(f"v_or_b32 v11, v11, v15")
        a(f"v_cmp_eq_u32 vcc, 0, v11")
        if cfg.LATE_X:
            a(f"v_xor_b32 v11, s{S_TAG}, v{V_KX+2}")
            a(f"v_xor_b32 v15, s{S_TAG+1}, v{V_KX+3}")
            a(f"v_or_b32 v11, v11, v15")
            a(f"v_cmp_eq_u32 {sr(S_B1,2)}, 0, v11")
        a("s_nop 1")
        a(f"s_bcnt1_i32_b32 s{S_T0}, vcc_lo")
        if cfg.LATE_X:
            a(f"s_and_b32 s{S_T1}, s{S_B1}, 0xff")
            a(f"s_bcnt1_i32_b32 s{S_T1}, s{S_T1}")
        if cfg.EARLY_L:
            a(f"s_cmp_le_u32 s{S_T0}, {cfg.EARLY_THR}")
            a(f"s_cselect_b32 s{S_T2}, 2, 0")
            a(f"s_cmp_ge_u32 s{S_T0}, {cfg.LATE_THR}")
            a(f"s_cselect_b32 s{S_T0}, 1, s{S_T2}")
        else:
            a(f"s_cmp_ge_u32 s{S_T0}, {cfg.LATE_THR}")
            a(f"s_cselect_b32 s{S_T0}, 1, 0")
        if cfg.LATE_X:
            a(f"s_cmp_ge_u32 s{S_T1}, {cfg.LATE_X}")
            a(f"s_cselect_b32 s{S_T0}, 1, s{S_T0}")
        a(f"v_mov_b32 v11, {L_SEL}")
        a(f"v_mov_b32 v15, s{S_T0}")
        a(f"ds_write_b32 v11, v15")
        a("L_nokd2:")
    a(f"s_sub_u32 s{S_T0}, s{S_W}, {NSW}")
    a(f"s_mul_i32 s{S_T0}, s{S_T0}, {HV*64}")
    a(f"s_add_u32 s{S_T0}, s{S_T0}, {L_SC}")
    a(f"v_lshlrev_b32 v10, 4, v3")
    a(f"v_add_u32 v10, s{S_T0}, v10")
    for t in range(HV):
        a(f"ds_read_b128 {vr(V_PP0,4)}, v10 offset:{t*64}")
        a(f"s_waitcnt vmcnt({4*(HV-1-t)}) lgkmcnt(0)")
        for n in range(4):
            A=V_A0 if n%2==0 else V_A1
            ands(A,V_PP0+n)
            a("s_nop 1")
            a(f"v_mfma_f32_16x16x32_bf16 {vr(V_OACC,4)}, {vr(A,4)}, {vr(V_RING+t*16+4*n,4)}, {vr(V_OACC,4)}")
    a("s_nop 7")
    set_exec(a, -1, 0)
    a(f"ds_write_b128 v{PA_OW}, {vr(V_OACC,4)}")
    full_exec(a)
    frag_reads(a,"ogd")
    if cfg.CODEPF:
        a(f"s_cmp_lg_u32 s{S_W}, 4")
        a("s_cbranch_scc1 L_pf2_skip")
        emit_codepf(a,cfg,"L_pf2","L_vdone","L_exit")
        a("L_pf2_skip:")
    a("s_waitcnt vmcnt(0) lgkmcnt(0)")
    a("s_branch L_vdone")
    a("L_vstream:")
    a(f"s_add_u32 s{S_T0}, s{S_W}, {NH*HV}")
    a(f"s_lshl_b32 s{S_T0}, s{S_T0}, 6")
    a(f"s_add_u32 s{S_T0}, s{S_T0}, {L_SC}")
    a(f"v_lshlrev_b32 v10, 4, v3")
    a(f"v_add_u32 v{V_PPR}, s{S_T0}, v10")
    a(f"ds_read_b128 {vr(V_PP0,4)}, v{V_PPR}")
    import math as _m
    base_ring=[(NK-LK+v)%LK for v in range(L)]
    spare=[x for x in range(16) if x not in base_ring]
    def vbody2(jv, rel, wait_n, slot, last_tile):
        n=jv%4; par=(jv//4)%2
        pp = V_PP0 if par==0 else V_PP1
        ppn = V_PP1 if par==0 else V_PP0
        if n==0:
            if not last_tile:
                a(f"ds_read_b128 {vr(ppn,4)}, v{V_PPR} offset:{(rel+1)*NSW*64}")
                a(f"s_waitcnt lgkmcnt(1)")
                a("s_nop 0")
            else:
                a(f"s_waitcnt lgkmcnt(0)")
                a("s_nop 0")
        A=V_A0 if n%2==0 else V_A1
        ands(A,pp+n)
        a(f"s_waitcnt vmcnt({wait_n})")
        a("s_nop 0")
        a(f"v_mfma_f32_16x16x32_bf16 {vr(V_OACC,4)}, {vr(A,4)}, {vr(V_RING+slot*4,4)}, {vr(V_OACC,4)}")
    def vissue(jn, slot):
        a(f"buffer_load_dwordx4 {vr(V_RING+slot*4,4)}, v{V_VOFF}, {sr(SRD_V,4)}, s{S_KOFF} offen offset:{(jn%4)*1024} {cfg.VFLAGS}")
        if jn%4==3:
            a(f"s_add_u32 s{S_KOFF}, s{S_KOFF}, {TSTEP}")
            if cfg.ROT or cfg.ROTX: a(f"s_and_b32 s{S_KOFF}, s{S_KOFF}, 0xfffff")
    S0=cfg.SEG0 if cfg.LATE_L else 0
    assert S0%8==0
    for jv in range(S0):
        vbody2(jv, jv//4, L-1, base_ring[jv%L], False)
        vissue(jv+L, base_ring[jv%L])
    if S0: a(f"v_add_u32 v{V_PPR}, {(S0//4)*NSW*64}, v{V_PPR}")
    def vstream(LV, sfx):
        cur=[base_ring[(S0+i)%L] for i in range(L)]
        j0=S0
        if LV<L:
            for d in range(L-LV):
                vbody2(j0, (j0-S0)//4, L-1-d, cur[0], False); cur=cur[1:]; j0+=1
            ring=cur
        else:
            ring=cur+spare[:LV-L]
            for k in range(L,LV): vissue(S0+k, ring[k])
        per=LV*4//_m.gcd(LV,4)
        if (per//4)%2: per*=2
        nl=(NV-j0-LV)//per
        a(f"s_mov_b32 s{S_LOOP}, {nl}")
        a(".p2align 6")
        a(f"L_vloop{sfx}:")
        for i in range(per):
            vbody2(j0+i, (j0+i-S0)//4, LV-1, ring[i%LV], False)
            vissue(j0+i+LV, ring[i%LV])
        a(f"v_add_u32 v{V_PPR}, {(per//4)*NSW*64}, v{V_PPR}")
        a(f"s_sub_u32 s{S_LOOP}, s{S_LOOP}, 1")
        a(f"s_cmp_lg_u32 s{S_LOOP}, 0")
        a(f"s_cbranch_scc1 L_vloop{sfx}")
        start=nl*per
        for i in range(start,NV-j0):
            jv=j0+i
            vbody2(jv, (jv-S0-start)//4, min(LV-1, NV-1-jv), ring[i%LV], jv//4==VT-1)
            if jv+LV<NV: vissue(jv+LV, ring[i%LV])
    if cfg.LATE_L:
        a(f"v_mov_b32 v10, {L_SEL}")
        a(f"ds_read_b32 v11, v10")
        a("s_waitcnt lgkmcnt(0)")
        a(f"v_readfirstlane_b32 s{S_T0}, v11")
        a("s_nop 1")
        a(f"s_cmp_eq_u32 s{S_T0}, 1")
        a("s_cbranch_scc1 L_vlate")
        if cfg.EARLY_L:
            a(f"s_cmp_eq_u32 s{S_T0}, 2")
            a("s_cbranch_scc1 L_vearly")
    vstream(L,"")
    if cfg.LATE_L:
        a("s_branch L_vdone")
        a.ool(True)
        a("L_vlate:")
        vstream(cfg.LATE_L,"b")
        a("s_branch L_vdone")
        if cfg.EARLY_L:
            a("L_vearly:")
            vstream(cfg.EARLY_L,"c")
            a("s_branch L_vdone")
        a.ool(False)
    a("L_vdone:")
    stamp(a,cfg,5)
    return a, None

PA=208
PA_O=PA+0; PA_T2=PA+1; PA_DW=PA+2; PA_R2=PA+3; PA_P2=PA+4; PA_T3A=PA+5; PA_T3B=PA+6; PA_T3W=PA+7; PA_T3R=PA+8; PA_H=PA+9
PA_T4=PA+10; PA_LNBW=PA+11; PA_HSW=PA+12; PA_LNBR=PA+13; PA_GP=PA+14; PA_ACT=PA+15; PA_T6=PA+16; PA_OUT=PA+17; PA_HSR=PA+18
PA_OW=PA+19; PA_OR=PA+20; PA_TR=PA+21
PA_T5B=PA+24
PA_T7=PA+28
V_XRES=PA+36
V_RDY=PA+40
V_KX=PA+44
SM_LNB=8; SM_HS=10
R_T1=2; R_RED0=2
R_W0=3

def emit_precompute(a, cfg):
    global SM_LNB, SM_HS
    T0,T1,T2,T3,T4,T5=S_T0,S_T1,S_T2,S_T3,S_T4,S_T5
    a(f"s_lshl_b32 s{T0}, s{S_H}, 3")
    a(f"s_add_u32 s{T0}, s{T0}, s{S_B}")
    a(f"s_lshl_b32 s{T0}, s{T0}, 8")
    a(f"s_add_u32 s{T0}, s{T0}, {W_OB}")
    a(f"v_lshlrev_b32 v10, 2, v{V_LANE}")
    a(f"v_add_u32 v{PA_O}, s{T0}, v10")
    a(f"s_lshl_b32 s{T0}, s{S_W}, 9")
    a(f"s_add_u32 s{T0}, s{T0}, {L_RED}")
    a(f"v_lshlrev_b32 v11, 5, v2")
    a(f"v_lshlrev_b32 v12, 4, v3")
    a(f"v_add3_u32 v{PA_OW}, v11, v12, s{T0}")
    a(f"v_lshlrev_b32 v11, 3, v{V_LANE}")
    a(f"v_add_u32 v{PA_OR}, {L_RED}, v11")
    a(f"v_lshlrev_b32 v11, 3, v3")
    a(f"v_add_u32 v11, v11, v4")
    a(f"v_lshlrev_b32 v11, 7, v11")
    a(f"v_lshlrev_b32 v13, 3, v5")
    a(f"v_add_u32 v{PA_TR}, v11, v13")
    a(f"s_lshr_b32 s{T4}, s{S_R}, 4")
    a(f"s_and_b32 s{T5}, s{S_R}, 15")
    a(f"v_and_b32 v14, 7, v{V_LANE}")
    a(f"s_lshl_b32 s{T0}, s{S_X}, 2")
    a(f"s_lshl_b32 s{T1}, s{T4}, 1")
    a(f"s_add_u32 s{T0}, s{T0}, s{T1}")
    a(f"s_lshr_b32 s{T1}, s{S_W}, 2")
    a(f"s_add_u32 s{T0}, s{T0}, s{T1}")
    a(f"s_lshl_b32 s{T0}, s{T0}, 11")
    a(f"s_and_b32 s{T1}, s{S_W}, 3")
    a(f"s_lshl_b32 s{T1}, s{T1}, 6")
    a(f"s_add_u32 s{T0}, s{T0}, s{T1}")
    a(f"s_add_u32 s{T0}, s{T0}, {W_OB}")
    a(f"v_lshlrev_b32 v10, 8, v14")
    a(f"v_add3_u32 v{PA_T2}, v10, v12, s{T0}")
    a(f"s_lshl_b32 s{T0}, s{S_W}, 11")
    a(f"s_add_u32 s{T0}, s{T0}, {L_SC}")
    a(f"v_lshlrev_b32 v10, 8, v2")
    a(f"v_xor_b32 v11, v3, v5")
    a(f"v_lshlrev_b32 v11, 4, v11")
    a(f"v_add3_u32 v{PA_DW}, v10, v11, s{T0}")
    a(f"s_sub_u32 s{T0}, s{S_W}, {R_RED0}")
    a(f"s_lshl_b32 s{T0}, s{T0}, 6")
    a(f"v_add_u32 v10, s{T0}, v{V_LANE}")
    a(f"v_and_b32 v10, 127, v10")
    a(f"v_lshrrev_b32 v11, 4, v10")
    a(f"v_and_b32 v13, 3, v11")
    a(f"v_xor_b32 v13, v13, v10")
    a(f"v_lshlrev_b32 v13, 4, v13")
    a(f"v_add_u32 v{PA_R2}, {L_SC}, v13")
    a(f"s_lshl_b32 s{T0}, s{S_X}, 1")
    a(f"s_add_u32 s{T0}, s{T0}, s{T4}")
    a(f"s_lshl_b32 s{T0}, s{T0}, 15")
    a(f"s_lshl_b32 s{T1}, s{T5}, 8")
    a(f"s_add_u32 s{T0}, s{T0}, s{T1}")
    a(f"s_add_u32 s{T0}, s{T0}, {W_AP}")
    a(f"v_lshrrev_b32 v11, 4, v10")
    a(f"v_lshlrev_b32 v11, 12, v11")
    a(f"v_lshlrev_b32 v13, 4, v2")
    a(f"v_add3_u32 v{PA_P2}, v11, v13, s{T0}")
    a(f"s_lshr_b32 s{T0}, s{S_R}, 2")
    a(f"s_lshl_b32 s{T0}, s{T0}, 12")
    a(f"s_and_b32 s{T1}, s{S_R}, 3")
    a(f"s_lshl_b32 s{T1}, s{T1}, 10")
    a(f"s_add_u32 s{T0}, s{T0}, s{T1}")
    a(f"s_lshl_b32 s{T1}, s{S_W}, 16")
    a(f"s_add_u32 s{T0}, s{T0}, s{T1}")
    a(f"s_add_u32 s{T0}, s{T0}, {W_AP}")
    a(f"v_add_u32 v{PA_T3A}, s{T0}, v{V_VOFF}")
    a(f"v_add_u32 v{PA_T3B}, 32768, v{PA_T3A}")
    RED3=L_RED+4096
    a(f"s_lshl_b32 s{T0}, s{S_W}, 10")
    a(f"s_add_u32 s{T0}, s{T0}, {RED3}")
    a(f"v_add_u32 v{PA_T3W}, s{T0}, v{V_VOFF}")
    a(f"v_add_u32 v{PA_T3R}, {RED3}, v{V_VOFF}")
    a(f"s_lshr_b32 s{T0}, s{S_R}, 2")
    a(f"s_lshl_b32 s{T1}, s{S_X}, 3")
    a(f"s_add_u32 s{T0}, s{T0}, s{T1}")
    a(f"s_lshl_b32 s{T0}, s{T0}, 11")
    a(f"s_and_b32 s{T1}, s{S_R}, 3")
    a(f"s_lshl_b32 s{T1}, s{T1}, 9")
    a(f"s_add_u32 s{T0}, s{T0}, s{T1}")
    a(f"s_add_u32 s{T0}, s{T0}, {W_HB}")
    a(f"v_lshlrev_b32 v10, 3, v{V_LANE}")
    a(f"v_add_u32 v{PA_H}, s{T0}, v10")
    a(f"s_lshr_b32 s{T0}, s{S_R}, 2")
    a(f"s_lshl_b32 s{T0}, s{T0}, 11")
    a(f"s_add_u32 s{T0}, s{T0}, s{T1}")
    a(f"v_add_u32 v9, s{T0}, v10")
    a(f"s_lshl_b32 s{T0}, s{S_X}, 3")
    a(f"s_add_u32 s{T0}, s{T0}, s{S_W}")
    a(f"s_lshl_b32 s{T0}, s{T0}, 11")
    a(f"s_add_u32 s{T0}, s{T0}, {W_HB}")
    a(f"v_lshlrev_b32 v10, 5, v{V_LANE}")
    a(f"v_add_u32 v{PA_T4}, s{T0}, v10")
    a(f"s_mul_i32 s{T2}, s{S_R}, 37")
    a(f"s_lshr_b32 s{T2}, s{T2}, 8")
    a(f"s_mul_i32 s{T3}, s{T2}, 7")
    a(f"s_sub_u32 s{T3}, s{S_R}, s{T3}")
    a(f"s_lshl_b32 s{T0}, s{T2}, 4")
    a(f"v_subrev_u32 v10, s{T0}, v{V_LANE}")
    a(f"v_cmp_gt_u32 {sr(SM_LNB,2)}, 16, v10")
    a(f"s_mul_i32 s{T1}, s{S_W}, {LNB_P}")
    a(f"s_add_u32 s{T1}, s{T1}, {L_LNB}")
    a(f"v_lshlrev_b32 v10, 5, v10")
    a(f"v_add_u32 v{PA_LNBW}, s{T1}, v10")
    a(f"s_lshl_b32 s{T0}, s{S_R}, 1")
    a(f"v_subrev_u32 v10, s{T0}, v{V_LANE}")
    a(f"v_cmp_gt_u32 {sr(SM_HS,2)}, 2, v10")
    a(f"v_lshlrev_b32 v10, 5, v10")
    a(f"v_add_u32 v{PA_HSW}, {L_HS}, v10")
    a(f"v_mul_u32_u24 v10, {LNB_P}, v14")
    a(f"v_add_u32 v10, v10, v12")
    a(f"v_add_u32 v{PA_LNBR}, {L_LNB}, v10")
    a(f"s_mul_i32 s{T0}, s{S_X}, 28")
    a(f"s_add_u32 s{T0}, s{T0}, s{S_R}")
    a(f"s_lshl_b32 s{T0}, s{T0}, 12")
    a(f"s_lshr_b32 s{T1}, s{S_W}, 2")
    a(f"s_lshl_b32 s{T1}, s{T1}, 11")
    a(f"s_add_u32 s{T0}, s{T0}, s{T1}")
    a(f"s_and_b32 s{T1}, s{S_W}, 3")
    a(f"s_lshl_b32 s{T1}, s{T1}, 9")
    a(f"s_add_u32 s{T0}, s{T0}, s{T1}")
    a(f"s_add_u32 s{T0}, s{T0}, {W_GP}")
    a(f"v_lshlrev_b32 v10, 6, v2")
    a(f"v_add3_u32 v{PA_GP}, v10, v12, s{T0}")
    a(f"s_mul_i32 s{T0}, s{S_X}, 28")
    a(f"s_add_u32 s{T0}, s{T0}, s{T3}")
    a(f"s_lshl_b32 s{T0}, s{T0}, 12")
    a(f"s_lshl_b32 s{T1}, s{T2}, 7")
    a(f"s_add_u32 s{T0}, s{T0}, s{T1}")
    a(f"s_add_u32 s{T0}, s{T0}, {W_GP}")
    a(f"v_lshrrev_b32 v10, 5, v{V_LANE}")
    a(f"v_and_b32 v11, 31, v{V_LANE}")
    a(f"v_lshrrev_b32 v13, 3, v11")
    a(f"v_lshlrev_b32 v13, 9, v13")
    a(f"v_lshl_add_u32 v13, v10, 6, v13")
    a(f"v_and_b32 v15, 7, v11")
    a(f"v_lshlrev_b32 v15, 3, v15")
    a(f"v_add3_u32 v{PA_T5B}, v13, v15, s{T0}")
    for k in range(1,4):
        a(f"v_add_u32 v{PA_T5B+k}, {k*7*4096}, v{PA_T5B}")
    a(f"s_lshl_b32 s{T0}, s{S_X}, 3")
    a(f"s_lshl_b32 s{T1}, s{T2}, 1")
    a(f"s_add_u32 s{T0}, s{T0}, s{T1}")
    a(f"s_mul_i32 s{T0}, s{T0}, 896")
    a(f"s_lshl_b32 s{T1}, s{T3}, 7")
    a(f"s_add_u32 s{T0}, s{T0}, s{T1}")
    a(f"s_add_u32 s{T0}, s{T0}, {W_ACT}")
    a(f"v_mul_u32_u24 v13, 896, v10")
    a(f"v_lshlrev_b32 v15, 2, v11")
    a(f"v_add3_u32 v{PA_ACT}, v13, v15, s{T0}")
    a(f"s_mul_i32 s{T0}, s{S_X}, {8*896}")
    a(f"s_mul_i32 s{T1}, s{T4}, 448")
    a(f"s_add_u32 s{T0}, s{T0}, s{T1}")
    a(f"s_lshl_b32 s{T1}, s{S_W}, 6")
    a(f"s_add_u32 s{T0}, s{T0}, s{T1}")
    a(f"s_add_u32 s{T0}, s{T0}, {W_ACT}")
    a(f"v_mul_u32_u24 v13, 896, v14")
    a(f"v_add3_u32 v{PA_T6}, v13, v12, s{T0}")
    a(f"s_lshl_b32 s{T0}, s{S_X}, 12")
    a(f"s_lshl_b32 s{T1}, s{S_R}, 7")
    a(f"s_add_u32 s{T0}, s{T0}, s{T1}")
    a(f"s_add_u32 s{T0}, s{T0}, {W_DP}")
    a(f"v_lshlrev_b32 v13, 18, v10")
    a(f"v_lshlrev_b32 v15, 2, v11")
    a(f"v_add3_u32 v{PA_T7}, v13, v15, s{T0}")
    for k in range(1,8):
        a(f"v_add_u32 v{PA_T7+k}, {k*32768}, v{PA_T7}")
    a(f"s_lshl_b32 s{T0}, s{S_X}, 11")
    a(f"s_lshl_b32 s{T1}, s{S_R}, 6")
    a(f"s_add_u32 s{T0}, s{T0}, s{T1}")
    a(f"v_lshlrev_b32 v15, 1, v11")
    a(f"v_add_u32 v{PA_OUT}, s{T0}, v15")
    a(f"v_add_u32 v{PA_HSR}, {L_HS}, v15")

def emit_codepf(a, cfg, lab, first, last):
    a(f"s_getpc_b64 {sr(S_B1,2)}")
    a(f"{lab}:")
    a(f"s_add_u32 s{S_B1}, s{S_B1}, ({first}-{lab})&0xffffffff")
    a(f"s_addc_u32 s{S_B1+1}, s{S_B1+1}, ({first}-{lab})>>32")
    a(f"v_lshlrev_b32 v10, 6, v{V_LANE}")
    a(f"s_mov_b32 s{S_T0}, {last}-{first}")
    a(f"{lab}_loop:")
    a(f"v_cmp_gt_u32 vcc, s{S_T0}, v10")
    a(f"s_and_saveexec_b64 {sr(S_EX,2)}, vcc")
    a(f"s_cbranch_execz {lab}_done")
    a(f"global_load_dword v11, v10, {sr(S_B1,2)}")
    a(f"s_mov_b64 exec, {sr(S_EX,2)}")
    a(f"v_add_u32 v10, 4096, v10")
    a(f"s_branch {lab}_loop")
    a(f"{lab}_done:")
    a(f"s_mov_b64 exec, {sr(S_EX,2)}")
    a("s_waitcnt vmcnt(0)")

def emit_rdycheck(a, cfg):
    f=1 if cfg.FASTMODE else 0
    a(f"s_cmp_lg_u32 s{S_W}, 4")
    a("s_cbranch_scc1 L_rdy_b")
    a(f"s_cmp_lg_u32 s{S_R}, 0")
    a("s_cbranch_scc1 L_rdy_done")
    a(f"s_lshl_b32 s{S_T0}, s{S_X}, 9")
    a(f"s_add_u32 s{S_T0}, s{S_T0}, {W_RDY}")
    a(f"v_and_b32 v10, 31, v{V_LANE}")
    a(f"v_lshlrev_b32 v10, 4, v10")
    a(f"v_add_u32 v10, s{S_T0}, v10")
    lp=a.label("rdy"); dn=a.label("rdyok")
    a(f"s_mov_b32 s{S_SPIN}, {cfg.SPIN}")
    a(f"{lp}:")
    a(f"global_load_dwordx4 {vr(V_RDY,4)}, v10, {sr(P_WS,2)} sc1")
    a("s_waitcnt vmcnt(0)")
    a(f"v_xor_b32 v11, s{S_TAG}, v{V_RDY+2}")
    a(f"v_xor_b32 v15, s{S_TAG+1}, v{V_RDY+3}")
    a(f"v_or_b32 v11, v11, v15")
    a(f"v_cmp_ne_u32 vcc, 0, v11")
    a(f"s_cbranch_vccz {dn}")
    a("s_sleep 16")
    a(f"s_sub_u32 s{S_SPIN}, s{S_SPIN}, 1")
    a(f"s_cmp_lg_u32 s{S_SPIN}, 0")
    a(f"s_cbranch_scc1 {lp}")
    a(f"{dn}:")
    a(f"v_readfirstlane_b32 s{S_T0}, v{V_RDY}")
    a("s_nop 1")
    a(f"v_cmp_ne_u32 vcc, s{S_T0}, v{V_RDY}")
    a(f"s_mov_b32 s{S_T2}, {f}")
    a("s_nop 1")
    a(f"s_cmp_eq_u64 vcc, 0")
    a(f"s_cselect_b32 s{S_T2}, s{S_T2}, 0")
    a(f"s_lshl_b32 s{S_T0}, s{S_X}, 4")
    a(f"s_add_u32 s{S_T0}, s{S_T0}, {W_GRDY}")
    a(f"v_mov_b32 v10, s{S_T0}")
    a(f"v_mov_b32 v12, s{S_T2}")
    a(f"v_mov_b32 v13, 0")
    a(f"v_mov_b32 v14, s{S_TAG}")
    a(f"v_mov_b32 v15, s{S_TAG+1}")
    set_exec(a,1,0)
    a(f"global_store_dwordx4 v10, v[12:15], {sr(P_WS,2)} sc1")
    full_exec(a)
    a("s_branch L_rdy_done")
    a("L_rdy_b:")
    a(f"s_cmp_lg_u32 s{S_W}, 5")
    a("s_cbranch_scc1 L_rdy_done")
    a(f"v_and_b32 v10, 7, v{V_LANE}")
    a(f"v_lshlrev_b32 v10, 4, v10")
    a(f"v_add_u32 v10, {W_GRDY}, v10")
    lp=a.label("grdy"); dn=a.label("grdyok")
    a(f"s_mov_b32 s{S_SPIN}, {cfg.SPIN}")
    a(f"{lp}:")
    set_exec(a,"0xff",0)
    a(f"global_load_dwordx4 {vr(V_RDY,4)}, v10, {sr(P_WS,2)} sc1")
    a("s_waitcnt vmcnt(0)")
    a(f"v_xor_b32 v11, s{S_TAG}, v{V_RDY+2}")
    a(f"v_xor_b32 v15, s{S_TAG+1}, v{V_RDY+3}")
    a(f"v_or_b32 v11, v11, v15")
    a(f"v_cmp_ne_u32 vcc, 0, v11")
    full_exec(a)
    a(f"s_cbranch_vccz {dn}")
    a("s_sleep 64")
    a(f"s_sub_u32 s{S_SPIN}, s{S_SPIN}, 1")
    a(f"s_cmp_lg_u32 s{S_SPIN}, 0")
    a(f"s_cbranch_scc1 {lp}")
    a(f"{dn}:")
    a(f"v_readlane_b32 s{S_T2}, v{V_RDY}, s{S_X}")
    a(f"v_mov_b32 v10, {L_MODE}")
    a("s_nop 1")
    a(f"s_add_u32 s{S_T2}, s{S_T2}, 1")
    a(f"v_mov_b32 v12, s{S_T2}")
    a(f"ds_write_b32 v10, v12")
    a("L_rdy_done:")

def poll_masked(a, name, loads, regs, cfg, tmp, nloads=1, stagger=0):
    ps = cfg.PSX if name in ('t3','t7') else cfg.PSLEEP
    lp=a.label(name+"_poll"); dn=a.label(name+"_ok")
    a(f"s_mov_b64 {sr(S_EX,2)}, exec")
    a(f"s_mov_b32 s{S_SPIN}, {cfg.SPIN}")
    if stagger:
        loads()
        a(f"s_sleep {stagger}")
    a(f"{lp}:")
    loads()
    a(f"s_waitcnt vmcnt({nloads if stagger else 0})")
    rs=list(regs)
    if len(rs)>=3:
        a(f"v_max3_u32 v{tmp}, v{rs[0]}, v{rs[1]}, v{rs[2]}"); i=3
    else:
        a(f"v_max_u32 v{tmp}, v{rs[0]}, v{rs[1]}"); i=2
    while i<len(rs):
        if i+1<len(rs):
            a(f"v_max3_u32 v{tmp}, v{tmp}, v{rs[i]}, v{rs[i+1]}"); i+=2
        else:
            a(f"v_max_u32 v{tmp}, v{tmp}, v{rs[i]}"); i+=1
    a(f"v_cmp_eq_u32 vcc, -1, v{tmp}")
    a(f"s_mov_b64 exec, vcc")
    a(f"s_cbranch_execz {dn}")
    if ps: a(f"s_sleep {ps}")
    a(f"s_sub_u32 s{S_SPIN}, s{S_SPIN}, 1")
    a(f"s_cmp_lg_u32 s{S_SPIN}, 0")
    a(f"s_cbranch_scc1 {lp}")
    a(f"{dn}:")
    a(f"s_mov_b64 exec, {sr(S_EX,2)}")

def frag_reads(a, which):
    WB=V_RING; WO_F=WB; GU_F=WB+16; WD_F=WB+48
    if "o" in which:
        a(f"s_lshl_b32 s{S_T0}, s{S_W}, 12")
        a(f"s_add_u32 s{S_T1}, s{S_T0}, {L_WO}")
        a(f"v_add_u32 v13, s{S_T1}, v{PA_TR}")
        for t in range(4):
            for hf in range(2):
                a(f"ds_read_b64_tr_b16 {vr(WO_F+4*t+2*hf,2)}, v13 offset:{hf*4*128+32*t}")
    if "g" in which:
        a(f"s_lshr_b32 s{S_T0}, s{S_W}, 2")
        a(f"s_lshl_b32 s{S_T0}, s{S_T0}, 15")
        a(f"s_and_b32 s{S_T1}, s{S_W}, 3")
        a(f"s_lshl_b32 s{S_T1}, s{S_T1}, 5")
        a(f"s_add_u32 s{S_T0}, s{S_T0}, s{S_T1}")
        a(f"s_add_u32 s{S_T0}, s{S_T0}, {L_WG}")
        a(f"v_add_u32 v15, s{S_T0}, v{PA_TR}")
        for s in range(8):
            for hf in range(2):
                a(f"ds_read_b64_tr_b16 {vr(GU_F+4*s+2*hf,2)}, v15 offset:{(32*s+4*hf)*128}")
    if "d" in which:
        a(f"s_lshl_b32 s{S_T0}, s{S_W}, 12")
        a(f"s_add_u32 s{S_T1}, s{S_T0}, {L_WD}")
        a(f"v_add_u32 v11, s{S_T1}, v{PA_TR}")
        for t in range(4):
            for hf in range(2):
                a(f"ds_read_b64_tr_b16 {vr(WD_F+4*t+2*hf,2)}, v11 offset:{hf*4*128+32*t}")

def layernorm2(a, vin, vf, vout, t):
    for i in range(8):
        a(f"v_lshlrev_b32 v{vf+2*i}, 16, v{vin+i}")
        a(f"v_and_b32 v{vf+2*i+1}, 0xffff0000, v{vin+i}")
    a(f"v_readfirstlane_b32 s{S_T4}, v{vf}")
    a("s_nop 1")
    a(f"v_mov_b32 v{t+6}, s{S_T4}")
    a(f"v_mov_b32 v{t+7}, s{S_T4}")
    for i in range(8):
        a(f"v_pk_add_f32 {vr(vf+2*i,2)}, {vr(vf+2*i,2)}, {vr(t+6,2)} neg_lo:[0,1] neg_hi:[0,1]")
    a(f"v_pk_add_f32 {vr(t,2)}, {vr(vf,2)}, {vr(vf+2,2)}")
    a(f"v_pk_mul_f32 {vr(t+2,2)}, {vr(vf,2)}, {vr(vf,2)}")
    a(f"v_pk_fma_f32 {vr(t+2,2)}, {vr(vf+2,2)}, {vr(vf+2,2)}, {vr(t+2,2)}")
    for i in range(2,8):
        a(f"v_pk_add_f32 {vr(t,2)}, {vr(t,2)}, {vr(vf+2*i,2)}")
        a(f"v_pk_fma_f32 {vr(t+2,2)}, {vr(vf+2*i,2)}, {vr(vf+2*i,2)}, {vr(t+2,2)}")
    a(f"v_add_f32 v{t}, v{t}, v{t+1}")
    a(f"v_add_f32 v{t+2}, v{t+2}, v{t+3}")
    for k in (8,4,2,1):
        a("s_nop 0")
        a(f"v_add_f32_dpp v{t}, v{t}, v{t} row_ror:{k} row_mask:0xf bank_mask:0xf")
        a("s_nop 0") if False else None
        a(f"v_add_f32_dpp v{t+2}, v{t+2}, v{t+2} row_ror:{k} row_mask:0xf bank_mask:0xf")
    a(f"v_mov_b32 v{t+1}, v{t}")
    a(f"v_mov_b32 v{t+3}, v{t+2}")
    a("s_nop 1")
    a(f"v_permlane16_swap_b32 v{t}, v{t+1}")
    a(f"v_permlane16_swap_b32 v{t+2}, v{t+3}")
    a("s_nop 1")
    a(f"v_add_f32 v{t}, v{t}, v{t+1}")
    a(f"v_add_f32 v{t+2}, v{t+2}, v{t+3}")
    a(f"v_mov_b32 v{t+1}, v{t}")
    a(f"v_mov_b32 v{t+3}, v{t+2}")
    a("s_nop 1")
    a(f"v_permlane32_swap_b32 v{t}, v{t+1}")
    a(f"v_permlane32_swap_b32 v{t+2}, v{t+3}")
    a("s_nop 1")
    a(f"v_add_f32 v{t}, v{t}, v{t+1}")
    a(f"v_add_f32 v{t+2}, v{t+2}, v{t+3}")
    a(f"v_mul_f32 v{t}, 0x3a800000, v{t}")
    a(f"v_mul_f32 v{t+2}, 0x3a800000, v{t+2}")
    a(f"v_fma_f32 v{t+2}, -v{t}, v{t}, v{t+2}")
    a(f"v_add_f32 v{t}, v{t}, v{t+6}")
    a(f"v_max_f32 v{t+2}, 0, v{t+2}")
    a(f"v_cvt_pk_bf16_f32 v{t}, v{t}, v{t+2}")
    a(f"v_and_b32 v{t+2}, 0xffff0000, v{t}")
    a(f"v_lshlrev_b32 v{t}, 16, v{t}")
    a(f"v_add_f32 v{t+2}, 0x3727c5ac, v{t+2}")
    round_bf16(a, t+2, t+2)
    a(f"v_sqrt_f32 v{t+2}, v{t+2}")
    a(f"v_mov_b32 v{t+1}, v{t}")
    round_bf16(a, t+2, t+2)
    a(f"v_rcp_f32 v{t+2}, v{t+2}")
    a("s_nop 0")
    a(f"v_mov_b32 v{t+3}, v{t+2}")
    for i in range(8):
        a(f"v_lshlrev_b32 v{vf+2*i}, 16, v{vin+i}")
        a(f"v_and_b32 v{vf+2*i+1}, 0xffff0000, v{vin+i}")
        a(f"v_pk_add_f32 {vr(vf+2*i,2)}, {vr(vf+2*i,2)}, {vr(t,2)} neg_lo:[0,1] neg_hi:[0,1]")
        a(f"v_cvt_pk_bf16_f32 v{t+4}, v{vf+2*i}, v{vf+2*i+1}")
        a(f"v_lshlrev_b32 v{vf+2*i}, 16, v{t+4}")
        a(f"v_and_b32 v{vf+2*i+1}, 0xffff0000, v{t+4}")
        a(f"v_pk_mul_f32 {vr(vf+2*i,2)}, {vr(vf+2*i,2)}, {vr(t+2,2)}")
        a(f"v_cvt_pk_bf16_f32 v{vout+i}, v{vf+2*i}, v{vf+2*i+1}")

def gen_tail(a, cfg):
    WB=V_RING; WO_F=WB; GU_F=WB+16; WD_F=WB+48
    TT=V_RING+64
    TMP=V_T+23
    NSW=cfg.NSW
    a(f"s_cmp_ge_u32 s{S_W}, {NSW}")
    a("s_cbranch_scc1 L_t0_b5")
    a("s_nop 7")
    set_exec(a, -1, 0)
    a(f"ds_write_b128 v{PA_OW}, {vr(V_OACC,4)}")
    full_exec(a)
    a("s_waitcnt lgkmcnt(0)")
    a("L_t0_b5:")
    a("s_barrier")
    a(f"s_cmp_lg_u32 s{S_W}, {R_T1}")
    a("s_cbranch_scc1 L_t1_done")
    for w in range(8):
        a(f"ds_read_b64 {vr(TT+2*w,2)}, v{PA_OR} offset:{w*512}")
    a("s_waitcnt lgkmcnt(0)")
    a(f"v_pk_add_f32 {vr(TT,2)}, {vr(TT,2)}, {vr(TT+2,2)}")
    a(f"v_pk_add_f32 {vr(TT+4,2)}, {vr(TT+4,2)}, {vr(TT+6,2)}")
    a(f"v_pk_add_f32 {vr(TT+8,2)}, {vr(TT+8,2)}, {vr(TT+10,2)}")
    a(f"v_pk_add_f32 {vr(TT+12,2)}, {vr(TT+12,2)}, {vr(TT+14,2)}")
    a(f"v_pk_add_f32 {vr(TT,2)}, {vr(TT,2)}, {vr(TT+4,2)}")
    a(f"v_pk_add_f32 {vr(TT+8,2)}, {vr(TT+8,2)}, {vr(TT+12,2)}")
    a(f"v_pk_add_f32 {vr(TT,2)}, {vr(TT,2)}, {vr(TT+8,2)}")
    a(f"v_cvt_pk_bf16_f32 v{TT}, v{TT}, v{TT+1}")
    a(f"v_min_u32 v{TT}, -2, v{TT}")
    store_mode(a, f"global_store_dword v{PA_O}, v{TT}, {sr(P_WS,2)}", True)
    a("L_t1_done:")
    stamp(a,cfg,6)
    a(f"s_cmp_ge_u32 s{S_W}, {NSW}")
    a("s_cbranch_scc1 L_t2_go")
    frag_reads(a,"ogd")
    a("L_t2_go:")
    if cfg.PD2: a(f"s_sleep {cfg.PD2}")
    poll_masked(a,"t2", lambda: a(f"global_load_dwordx4 {vr(TT+32,4)}, v{PA_T2}, {sr(P_WS,2)} sc1"), range(TT+32,TT+36), cfg, TMP, 1, cfg.PIPE_I)
    if cfg.TAILDIAG: stamp(a,cfg,9)
    a("s_waitcnt lgkmcnt(0)")
    def gemm4_reduce_publish(F, B, dp, nw, lab):
        off=16384 if dp else 0
        for t in range(4):
            a(f"v_mfma_f32_16x16x32_bf16 {vr(TT+4*t,4)}, {vr(F+4*t,4)}, {vr(B,4)}, 0")
        if nw<8:
            a(f"s_cmp_ge_u32 s{S_W}, {nw}")
            a(f"s_cbranch_scc1 {lab}_nw")
        set_exec(a, "0x00ff00ff", "0x00ff00ff")
        a("s_nop 2")
        for t in range(4):
            a(f"ds_write_b128 v{PA_DW}, {vr(TT+4*t,4)} offset:{off+64*t}")

        full_exec(a)
        a(f"{lab}_nw:")
        a("s_waitcnt lgkmcnt(0)")
        a("s_barrier")
        a(f"s_sub_u32 s{S_T0}, s{S_W}, {R_RED0}")
        a(f"s_cmp_ge_u32 s{S_T0}, 2")
        a(f"s_cbranch_scc1 {lab}_skip")
        for w in range(nw):
            a(f"ds_read_b128 {vr(TT+4*w,4)}, v{PA_R2} offset:{off+w*2048}")
        if dp: a(f"v_add_u32 v10, {W_DP-W_AP}, v{PA_P2}")
        a("s_waitcnt lgkmcnt(0)")
        n=nw
        step=1
        idx=list(range(nw))
        while len(idx)>1:
            nxt=[]
            for i in range(0,len(idx)-1,2):
                d,s_=idx[i],idx[i+1]
                a(f"v_pk_add_f32 {vr(TT+4*d,2)}, {vr(TT+4*d,2)}, {vr(TT+4*s_,2)}")
                a(f"v_pk_add_f32 {vr(TT+4*d+2,2)}, {vr(TT+4*d+2,2)}, {vr(TT+4*s_+2,2)}")
                nxt.append(d)
            if len(idx)%2: nxt.append(idx[-1])
            idx=nxt
        for c in range(4):
            a(f"v_min_u32 v{TT+c}, -2, v{TT+c}")
        a(f"global_store_dwordx4 v{10 if dp else PA_P2}, {vr(TT,4)}, {sr(P_WS,2)} sc1")
        a(f"{lab}_skip:")
    gemm4_reduce_publish(WO_F, TT+32, False, 8, "L_t2")
    stamp(a,cfg,7)
    def ld3():
        a(f"global_load_dwordx4 {vr(TT+32,4)}, v{PA_T3A}, {sr(P_WS,2)} sc1")
        a(f"global_load_dwordx4 {vr(TT+36,4)}, v{PA_T3B}, {sr(P_WS,2)} sc1")
    if cfg.PD3: a(f"s_sleep {cfg.PD3}")
    poll_masked(a,"t3", ld3, range(TT+32,TT+40), cfg, TMP, 2, cfg.PIPE_X)
    if cfg.TAILDIAG==True and cfg.TAILDIAG!=2: stamp(a,cfg,13)
    a(f"v_pk_add_f32 {vr(TT+40,2)}, {vr(TT+32,2)}, {vr(TT+36,2)}")
    a(f"v_pk_add_f32 {vr(TT+42,2)}, {vr(TT+34,2)}, {vr(TT+38,2)}")
    a(f"ds_write_b128 v{PA_T3W}, {vr(TT+40,4)}")
    a("s_waitcnt lgkmcnt(0)")
    a("s_barrier")
    a(f"s_cmp_lg_u32 s{S_W}, {R_W0}")
    a("s_cbranch_scc1 L_t3_skip")
    for w in range(8):
        a(f"ds_read_b128 {vr(TT+4*w,4)}, v{PA_T3R} offset:{w*1024}")
    a(f"v_lshlrev_b32 v{TT+40}, 16, v{V_XRES}")
    a(f"v_and_b32 v{TT+41}, 0xffff0000, v{V_XRES}")
    a(f"v_lshlrev_b32 v{TT+42}, 16, v{V_XRES+1}")
    a(f"v_and_b32 v{TT+43}, 0xffff0000, v{V_XRES+1}")
    a("s_waitcnt lgkmcnt(0)")
    for (d,s_) in ((0,1),(2,3),(4,5),(6,7),(0,2),(4,6),(0,4)):
        a(f"v_pk_add_f32 {vr(TT+4*d,2)}, {vr(TT+4*d,2)}, {vr(TT+4*s_,2)}")
        a(f"v_pk_add_f32 {vr(TT+4*d+2,2)}, {vr(TT+4*d+2,2)}, {vr(TT+4*s_+2,2)}")
    a(f"v_cvt_pk_bf16_f32 v{TT+4}, v{TT}, v{TT+1}")
    a(f"v_cvt_pk_bf16_f32 v{TT+5}, v{TT+2}, v{TT+3}")
    a(f"v_lshlrev_b32 v{TT+8}, 16, v{TT+4}")
    a(f"v_and_b32 v{TT+9}, 0xffff0000, v{TT+4}")
    a(f"v_lshlrev_b32 v{TT+10}, 16, v{TT+5}")
    a(f"v_and_b32 v{TT+11}, 0xffff0000, v{TT+5}")
    a(f"v_pk_add_f32 {vr(TT+8,2)}, {vr(TT+8,2)}, {vr(TT+40,2)}")
    a(f"v_pk_add_f32 {vr(TT+10,2)}, {vr(TT+10,2)}, {vr(TT+42,2)}")
    a(f"v_cvt_pk_bf16_f32 v{TT+6}, v{TT+8}, v{TT+9}")
    a(f"v_cvt_pk_bf16_f32 v{TT+7}, v{TT+10}, v{TT+11}")
    a(f"v_min_u32 v{TT+6}, -2, v{TT+6}")
    a(f"v_min_u32 v{TT+7}, -2, v{TT+7}")
    store_mode(a, f"global_store_dwordx2 v{PA_H}, {vr(TT+6,2)}, {sr(P_WS,2)}", True)
    a("L_t3_skip:")
    stamp(a,cfg,8)
    def ld4():
        a(f"global_load_dwordx4 {vr(TT,4)}, v{PA_T4}, {sr(P_WS,2)} sc1")
        a(f"global_load_dwordx4 {vr(TT+4,4)}, v{PA_T4}, {sr(P_WS,2)} offset:16 sc1")
    if cfg.PD4: a(f"s_sleep {cfg.PD4}")
    poll_masked(a,"t4", ld4, range(TT,TT+8), cfg, TMP, 2, cfg.PIPE_I)
    if cfg.TAILDIAG: stamp(a,cfg,14)
    a(f"s_cmp_lg_u32 s{S_W}, s{S_X}")
    a("s_cbranch_scc1 L_t4_nohs")
    a(f"s_mov_b64 exec, {sr(SM_HS,2)}")
    a(f"ds_write_b128 v{PA_HSW}, {vr(TT,4)}")
    a(f"ds_write_b128 v{PA_HSW}, {vr(TT+4,4)} offset:16")
    full_exec(a)
    a("L_t4_nohs:")
    a(f"s_cmp_ge_u32 s{S_R}, 28")
    a("s_cbranch_scc1 L_t5_skip_all")
    layernorm2(a, TT, TT+8, TT+24, V_T)
    a(f"s_mov_b64 exec, {sr(SM_LNB,2)}")
    a(f"ds_write_b128 v{PA_LNBW}, {vr(TT+24,4)}")
    a(f"ds_write_b128 v{PA_LNBW}, {vr(TT+28,4)} offset:16")
    full_exec(a)
    a("s_waitcnt lgkmcnt(0)")
    a("s_barrier")
    if not cfg.TAILDIAG: stamp(a,cfg,9)
    if cfg.TAILDIAG: stamp(a,cfg,1)
    a("s_waitcnt vmcnt(0)")
    for s in range(8):
        a(f"ds_read_b128 {vr(TT+4*s,4)}, v{PA_LNBR} offset:{64*s}")
    for s in range(8):
        c="0" if s<2 else vr(V_T+4*(s%2),4)
        a(f"s_waitcnt lgkmcnt({7-s})")
        a(f"v_mfma_f32_16x16x32_bf16 {vr(V_T+4*(s%2),4)}, {vr(GU_F+4*s,4)}, {vr(TT+4*s,4)}, {c}")
    a("s_nop 7")
    a(f"v_pk_add_f32 {vr(V_T,2)}, {vr(V_T,2)}, {vr(V_T+4,2)}")
    a(f"v_pk_add_f32 {vr(V_T+2,2)}, {vr(V_T+2,2)}, {vr(V_T+6,2)}")
    for c in range(4):
        a(f"v_min_u32 v{V_T+c}, -2, v{V_T+c}")
    set_exec(a, "0x00ff00ff", "0x00ff00ff")
    store_mode(a, f"global_store_dwordx4 v{PA_GP}, {vr(V_T,4)}, {sr(P_WS,2)}", True)
    full_exec(a)
    if cfg.TAILDIAG==2: stamp(a,cfg,13)
    a(f"s_cmp_lg_u32 s{S_W}, {R_W0}")
    a("s_cbranch_scc1 L_t5_skip_all")
    a(f"s_mov_b32 s{S_T0}, 0x3d372713")
    a(f"s_mov_b32 s{S_T1}, 0xc0135761")
    def ld5():
        for k in range(4):
            for m in range(2):
                a(f"global_load_dwordx2 {vr(TT+(k*2+m)*2,2)}, v{PA_T5B+k}, {sr(P_WS,2)} offset:{m*2048} sc1")
    if cfg.PD5: a(f"s_sleep {cfg.PD5}")
    poll_masked(a,"t5", ld5, range(TT,TT+16), cfg, TMP, 8, cfg.PIPE_I)
    if cfg.TAILDIAG: stamp(a,cfg,2)
    for h_ in range(2):
        a(f"v_pk_add_f32 {vr(TT+16+2*h_,2)}, {vr(TT+2*h_,2)}, {vr(TT+4+2*h_,2)}")
        a(f"v_pk_add_f32 {vr(TT+20+2*h_,2)}, {vr(TT+8+2*h_,2)}, {vr(TT+12+2*h_,2)}")
        a(f"v_pk_add_f32 {vr(TT+16+2*h_,2)}, {vr(TT+16+2*h_,2)}, {vr(TT+20+2*h_,2)}")
    G=TT+16; U=TT+18; X=TT+20
    TT_=TT; TT=TT+16
    a(f"v_cvt_pk_bf16_f32 v{TT+8}, v{G}, v{G+1}")
    a(f"v_cvt_pk_bf16_f32 v{TT+9}, v{U}, v{U+1}")
    a(f"v_lshlrev_b32 v{G}, 16, v{TT+8}")
    a(f"v_and_b32 v{G+1}, 0xffff0000, v{TT+8}")
    a(f"v_lshlrev_b32 v{U}, 16, v{TT+9}")
    a(f"v_and_b32 v{U+1}, 0xffff0000, v{TT+9}")
    a(f"v_pk_mul_f32 {vr(X,2)}, {vr(G,2)}, {vr(G,2)}")
    a(f"v_pk_mul_f32 {vr(X,2)}, {vr(X,2)}, {vr(G,2)}")
    for c in range(2):
        a(f"v_fma_f32 v{X+c}, v{X+c}, s{S_T0}, v{G+c}")
    for c in range(2):
        a(f"v_mul_f32 v{X+c}, s{S_T1}, v{X+c}")
    for c in range(2):
        a(f"v_exp_f32 v{X+c}, v{X+c}")
    a("s_nop 0")
    for c in range(2):
        a(f"v_add_f32 v{X+c}, 1.0, v{X+c}")
    for c in range(2):
        a(f"v_rcp_f32 v{X+c}, v{X+c}")
    a("s_nop 0")
    a(f"v_pk_mul_f32 {vr(X,2)}, {vr(X,2)}, {vr(G,2)}")
    a(f"v_cvt_pk_bf16_f32 v{TT+8}, v{X}, v{X+1}")
    a(f"v_lshlrev_b32 v{X}, 16, v{TT+8}")
    a(f"v_and_b32 v{X+1}, 0xffff0000, v{TT+8}")
    a(f"v_pk_mul_f32 {vr(X,2)}, {vr(X,2)}, {vr(U,2)}")
    a(f"v_cvt_pk_bf16_f32 v{X}, v{X}, v{X+1}")
    a(f"v_min_u32 v{X}, -2, v{X}")
    store_mode(a, f"global_store_dword v{PA_ACT}, v{X}, {sr(P_WS,2)}", True)
    TT=TT_
    a("L_t5_skip_all:")
    stamp(a,cfg,10)
    a(f"s_cmp_ge_u32 s{S_W}, 7")
    a("s_cbranch_scc1 L_t6_nopoll")
    if cfg.PD6: a(f"s_sleep {cfg.PD6}")
    poll_masked(a,"t6", lambda: a(f"global_load_dwordx4 {vr(TT+32,4)}, v{PA_T6}, {sr(P_WS,2)} sc1"), range(TT+32,TT+36), cfg, TMP, 1, cfg.PIPE_I)
    if cfg.TAILDIAG: stamp(a,cfg,3)
    a("L_t6_nopoll:")
    gemm4_reduce_publish(WD_F, TT+32, True, 7, "L_t6")
    stamp(a,cfg,11)
    a(f"s_cmp_lg_u32 s{S_W}, {R_W0}")
    a("s_cbranch_scc1 L_fin")
    a(f"ds_read_u16 v{TT+10}, v{PA_HSR}")
    def ld7():
        for k in range(8):
            a(f"global_load_dword v{TT+k}, v{PA_T7+k}, {sr(P_WS,2)} sc1")
    if cfg.PD7: a(f"s_sleep {cfg.PD7}")
    poll_masked(a,"t7", ld7, range(TT,TT+8), cfg, TMP, 8, cfg.PIPE_X)
    if cfg.TAILDIAG: stamp(a,cfg,4)
    Z=TT+16
    a(f"v_pk_add_f32 {vr(Z,2)}, {vr(TT,2)}, {vr(TT+2,2)}")
    a(f"v_pk_add_f32 {vr(Z+2,2)}, {vr(TT+4,2)}, {vr(TT+6,2)}")
    a(f"v_pk_add_f32 {vr(Z,2)}, {vr(Z,2)}, {vr(Z+2,2)}")
    a(f"v_add_f32 v{Z}, v{Z}, v{Z+1}")
    a(f"v_mov_b32 v{Z+1}, v{Z}")
    a("s_waitcnt lgkmcnt(0)")
    a("s_nop 0")
    a(f"v_permlane32_swap_b32 v{Z}, v{Z+1}")
    a(f"v_lshlrev_b32 v{TT+10}, 16, v{TT+10}")
    a(f"v_add_f32 v{Z}, v{Z}, v{Z+1}")
    round_bf16(a,Z,Z)
    a(f"v_add_f32 v{Z}, v{Z}, v{TT+10}")
    a(f"v_cvt_pk_bf16_f32 v{Z}, v{Z}, v{Z}")
    set_exec(a, -1, 0)
    a(f"global_store_short v{PA_OUT}, v{Z}, {sr(P_OUT,2)}")
    full_exec(a)
    a(f"s_cmp_lg_u32 s{S_ID}, 0")
    a("s_cbranch_scc1 L_fin")
    a(f"v_mov_b32 v10, {W_EPOCH}")
    a(f"v_mov_b32 v12, s{S_TAG}")
    a(f"v_mov_b32 v13, s{S_TAG+1}")
    set_exec(a, 1, 0)
    a(f"global_store_dwordx2 v10, v[12:13], {sr(P_WS,2)} sc1")
    full_exec(a)
    a("L_fin:")
    TTX=160
    if cfg.STAMPS and cfg.DBGSTAMP:
        stamp(a,cfg,12)
        a("s_waitcnt lgkmcnt(0)")
        a(f"s_cmp_lg_u32 s{S_W}, 0")
        a("s_cbranch_scc1 L_exit")
        lst=[0,1,2,4,6,7,8,10,11,12]
        for i,k in enumerate(lst):
            if k==0:
                a(f"s_not_b32 s{S_T0}, s72")
                a(f"v_mov_b32 v{TTX}, s{S_T0}")
            else:
                a(f"v_mov_b32 v{TTX}, s{72+2*k}")
            a(f"v_mov_b32 v10, {4*i}")
            set_exec(a,1,0)
            a(f"global_atomic_umax v10, v{TTX}, {sr(P_DBG,2)} sc1")
            full_exec(a)
        a(f"v_mov_b32 v{TTX}, s72")
        a(f"v_mov_b32 v10, 40")
        set_exec(a,1,0)
        a(f"global_atomic_umax v10, v{TTX}, {sr(P_DBG,2)} sc1")
        full_exec(a)
        a(f"s_not_b32 s{S_T0}, s{72+12}")
        a(f"v_mov_b32 v{TTX}, s{S_T0}")
        a(f"v_mov_b32 v10, 44")
        set_exec(a,1,0)
        a(f"global_atomic_umax v10, v{TTX}, {sr(P_DBG,2)} sc1")
        full_exec(a)
    elif cfg.STAMPS:
        stamp(a,cfg,12)
        a("s_waitcnt lgkmcnt(0)")
        for k in range(15):
            a(f"v_mov_b32 v{TTX}, s{72+2*k}")
            a(f"v_mov_b32 v{TTX+1}, s{73+2*k}")
            a(f"s_lshl_b32 s{S_T0}, s{S_ID}, 3")
            a(f"s_add_u32 s{S_T0}, s{S_T0}, s{S_W}")
            a(f"s_lshl_b32 s{S_T0}, s{S_T0}, 7")
            a(f"s_add_u32 s{S_T0}, s{S_T0}, {W_STAMP+8*k}")
            a(f"v_mov_b32 v10, s{S_T0}")
            set_exec(a,1,0)
            a(f"global_store_dwordx2 v10, {vr(TTX,2)}, {sr(P_WS,2)}")
            full_exec(a)
    a("L_exit:")
    a("s_endpgm")

HEADER = open("sequential_preLN__mha_block_cached__geglu_ffn__decode.s.ref").read().split("; Override launch geometry")[0]

def build(cfg, path):
    a,_=gen(cfg)
    gen_tail(a,cfg)
    txt = HEADER
    txt += "; Override launch geometry by editing the next line (default: block=256,\n"
    txt += f"; @launch grid=(256,1,1) block=(512,1,1) lds={LDS_BYTES}\n"
    txt += f""".amdgcn_target "amdgcn-amd-amdhsa--gfx950"
.text
.globl {KNAME}
.p2align 8
.type {KNAME},@function
"""
    txt += a.text()
    txt += f""".section .rodata,"a"
.p2align 6
.amdhsa_kernel {KNAME}
  .amdhsa_next_free_vgpr 256
  .amdhsa_next_free_sgpr 102
  .amdhsa_accum_offset 256
  .amdhsa_group_segment_fixed_size 0
  .amdhsa_kernarg_size 96
  .amdhsa_user_sgpr_count 2
  .amdhsa_user_sgpr_kernarg_segment_ptr 1
  .amdhsa_system_sgpr_workgroup_id_x 1
  .amdhsa_float_denorm_mode_32 3
.end_amdhsa_kernel
"""
    open(path,"w").write(txt)

if __name__=="__main__":
    cfg=Cfg()
    out=sys.argv[1]
    for kv in sys.argv[2:]:
        k,v=kv.split("=")
        setattr(cfg,k,eval(v))
    build(cfg,out)
```

```python
import sys

KNAME = "sequential_preLN__mha_block_cached__geglu_ffn__decode_kernel"

class Cfg:
    NSW = 2
    L = 10
    HV = 1
    QFAST = True
    KFLAGS = "nt"
    VFLAGS = "nt"
    WFLAGS = "nt"
    FASTMODE = True
    SPIN = 1 << 20
    STAMPS = False
    P0 = 4
    P = 4
    P1 = 8
    DMAPAUSE = False
    RING_EARLY = True
    RAMP = 0
    CODEPF = True
    LATE_L = 11
    EARLY_L = 0
    EARLY_THR = 6
    LATE_X = 0
    SEG0 = 40
    LATE_THR = 20
    LK = 0
    LS = 0
    KS0 = 80
    ROT = 0
    ROTX = 0
    HPERM = True
    NODMA2 = False
    KNOP = 7
    KEXP = 0
    PIPE_I = 0
    PIPE_X = 0
    HIGH_INLINE = True
    LNDRY = False
    CLR7 = True
    CONDCOPY = True
    NOCLR = False
    NOCOPY = False
    ALTMAP = False
    APB = 4096
    APP = 32768
    PD2 = 0
    PSX = 0
    PD3 = 9
    PD4 = 4
    PD5 = 5
    PD6 = 4
    PD7 = 9
    TAILDIAG = False
    PSLEEP = 0
    QSLEEP = 0
    QWAIT = 64
    DBGSTAMP = False

L_WO   = 0
L_WG   = 32768
L_WU   = 65536
L_WD   = 98304
L_WQ   = 126976
L_SC   = 126976
L_RED  = 143360
L_LNA  = 159744
L_QS   = 161920
L_ML   = 162176
L_HS   = 162208
L_QF   = 162272
L_LS   = 162288
L_MODE = 162320
L_SEL  = 162352
L_END  = 162368
LNA_P  = 272
LNB_P  = 528
L_LNB  = L_SC
LDS_BYTES = 163840

W_QP  = 0x500000
W_RDY = 0x000000
W_EPOCH = 0x010000
W_KX = 0x018000
W_KD = 0x014000
W_GRDY = 0x012000
W_OB  = 0x100000
W_AP  = 0x2000000
W_HB  = 0x1A0000
W_GP  = 0x1C0000
W_ACT = 0x2A0000
W_DP  = 0x2400000
W_STAMP = 0x400000

D_CLR = 32*4
D_XCC = 40*4

S_ID=2; S_W=3; S_X=4; S_R=5; S_H=6; S_B=7
P_X=16; P_K=18; P_V=20; P_WQ=22; P_WO=24; P_WG=28; P_WU=30; P_WD=32; P_OUT=34; P_DBG=36; P_WS=38
SRD_K=40; SRD_V=44
S_KOFF=48
S_FAST=49
S_SPIN=50
S_T0=52; S_T1=53; S_T2=54; S_T3=55; S_T4=56; S_T5=57
S_B0=58
S_B1=60
S_EX=62
S_M=64
S_M2=66
S_SCALE=68; S_LOG2E=69
S_DN=12; S_DS=13; S_DM=14; S_LOOP=15; S_LNW=27; S_ROT=70; S_HA=65; S_DJ=14; S_DM2=64
S_TAG=98
S_TAG=66
S_ST=70

V_TID=0; V_LANE=1
V_MASK=16
V_KOFF=20; V_VOFF=21; V_SCW=22; V_PPR=23; V_MAX=24
V_DMA=25
V_QADDR=26
V_QA=32
V_SACC=48
V_SACC2=140
V_OACC=52
V_A0=56; V_A1=60
V_PP0=64; V_PP1=68
V_T=72
V_RING=96
V_X=160

class Asm:
    def __init__(self):
        self.L=[]; self.n=0; self.main=self.L; self.O=[]
    def ool(self, on):
        self.L = self.O if on else self.main
    def __call__(self, s):
        for line in s.split("\n"):
            line=line.strip()
            if line: self.L.append(("" if line.endswith(":") else "  ")+line)
    def label(self, base):
        self.n+=1
        return f"L_{base}_{self.n}"
    def text(self): return "\n".join(self.main+self.O+["L_codeend:"])+"\n"

def vr(b,n): return f"v[{b}:{b+n-1}]"
def sr(b,n): return f"s[{b}:{b+n-1}]"

def wave_sum(a, v, tmp, op="add"):
    ins = "v_add_f32" if op=="add" else "v_max_f32"
    for k in (8,4,2,1):
        a(f"s_nop 1")
        a(f"{ins}_dpp {'v%d'%v}, v{v}, v{v} row_ror:{k} row_mask:0xf bank_mask:0xf")
    a("s_nop 1")
    a(f"v_readlane_b32 s{S_T0}, v{v}, 0")
    a(f"v_readlane_b32 s{S_T1}, v{v}, 16")
    a(f"v_readlane_b32 s{S_T2}, v{v}, 32")
    a(f"v_readlane_b32 s{S_T3}, v{v}, 48")
    a("s_nop 1")
    a(f"v_mov_b32 v{v}, s{S_T0}")
    a(f"{ins} v{v}, s{S_T1}, v{v}")
    a(f"{ins} v{v}, s{S_T2}, v{v}")
    a(f"{ins} v{v}, s{S_T3}, v{v}")

def round_bf16(a, dst, src):
    a(f"v_cvt_pk_bf16_f32 v{dst}, v{src}, v{src}")
    a(f"v_and_b32 v{dst}, 0xffff0000, v{dst}")

def layernorm(a, vin, vf, vout, t):
    for i in range(8):
        a(f"v_lshlrev_b32 v{vf+2*i}, 16, v{vin+i}")
        a(f"v_and_b32 v{vf+2*i+1}, 0xffff0000, v{vin+i}")
    a(f"v_add_f32 v{t}, v{vf}, v{vf+1}")
    for i in range(2,16):
        a(f"v_add_f32 v{t}, v{t}, v{vf+i}")
    wave_sum(a, t, t+1)
    a(f"v_mul_f32 v{t}, 0x3a800000, v{t}")
    a(f"v_sub_f32 v{t+1}, v{vf}, v{t}")
    a(f"v_mul_f32 v{t+2}, v{t+1}, v{t+1}")
    for i in range(1,16):
        a(f"v_sub_f32 v{t+1}, v{vf+i}, v{t}")
        a(f"v_fmac_f32 v{t+2}, v{t+1}, v{t+1}")
    wave_sum(a, t+2, t+1)
    a(f"v_mul_f32 v{t+2}, 0x3a800000, v{t+2}")
    round_bf16(a, t, t)
    round_bf16(a, t+2, t+2)
    a(f"v_add_f32 v{t+2}, 0x3727c5ac, v{t+2}")
    round_bf16(a, t+2, t+2)
    a(f"v_sqrt_f32 v{t+2}, v{t+2}")
    a("s_nop 0")
    round_bf16(a, t+2, t+2)
    a(f"v_rcp_f32 v{t+2}, v{t+2}")
    a("s_nop 0")
    for i in range(8):
        a(f"v_sub_f32 v{vf+2*i}, v{vf+2*i}, v{t}")
        a(f"v_sub_f32 v{vf+2*i+1}, v{vf+2*i+1}, v{t}")
        a(f"v_cvt_pk_bf16_f32 v{t+1}, v{vf+2*i}, v{vf+2*i+1}")
        a(f"v_lshlrev_b32 v{vf+2*i}, 16, v{t+1}")
        a(f"v_and_b32 v{vf+2*i+1}, 0xffff0000, v{t+1}")
        a(f"v_mul_f32 v{vf+2*i}, v{vf+2*i}, v{t+2}")
        a(f"v_mul_f32 v{vf+2*i+1}, v{vf+2*i+1}, v{t+2}")
        a(f"v_cvt_pk_bf16_f32 v{vout+i}, v{vf+2*i}, v{vf+2*i+1}")

def set_exec(a, lo, hi):
    a(f"s_mov_b32 exec_lo, {lo}")
    a(f"s_mov_b32 exec_hi, {hi}")
def full_exec(a):
    a("s_mov_b64 exec, -1")

def poll_loop(a, name, loads, regs, cfg):
    lp=a.label(name+"_poll"); dn=a.label(name+"_ok")
    a(f"s_mov_b32 s{S_SPIN}, {cfg.SPIN}")
    a(f"{lp}:")
    loads()
    a("s_waitcnt vmcnt(0)")
    t=V_T+23
    rs=list(regs)
    a(f"v_max_u32 v{t}, v{rs[0]}, v{rs[1] if len(rs)>1 else rs[0]}")
    i=2
    while i<len(rs):
        if i+1<len(rs):
            a(f"v_max3_u32 v{t}, v{t}, v{rs[i]}, v{rs[i+1]}"); i+=2
        else:
            a(f"v_max_u32 v{t}, v{t}, v{rs[i]}"); i+=1
    a(f"v_cmp_eq_u32 vcc, -1, v{t}")
    a(f"s_cbranch_vccz {dn}")
    a(f"s_sub_u32 s{S_SPIN}, s{S_SPIN}, 1")
    a(f"s_cmp_lg_u32 s{S_SPIN}, 0")
    a(f"s_cbranch_scc1 {lp}")
    a(f"{dn}:")

def store_mode(a, instr, intra):
    if not intra:
        a(instr+" sc1"); return
    l1=a.label("st_slow"); l2=a.label("st_done")
    a(f"s_cmp_eq_u32 s{S_FAST}, 0")
    a(f"s_cbranch_scc1 {l1}")
    a(instr)
    a(f"s_branch {l2}")
    a(f"{l1}:")
    a(instr+" sc1")
    a(f"{l2}:")

def stamp(a, cfg, idx):
    if not cfg.STAMPS: return
    a(f"s_memrealtime s[{72+2*idx}:{73+2*idx}]")


def emit_clears(a, sfx=''):
    a(f"v_mov_b32 v12, -1\nv_mov_b32 v13, -1\nv_mov_b32 v14, -1\nv_mov_b32 v15, -1")
    a(f"s_lshr_b32 s{S_T4}, s{S_R}, 4")
    a(f"s_and_b32 s{S_T5}, s{S_R}, 15")
    a(f"s_lshl_b32 s{S_T1}, s{S_X}, 1")
    a(f"s_add_u32 s{S_T1}, s{S_T1}, s{S_T4}")
    a(f"s_mul_i32 s{S_T0}, s{S_T1}, {CFG.APP}")
    a(f"s_lshl_b32 s{S_T1}, s{S_T5}, 8")
    a(f"s_add_u32 s{S_T0}, s{S_T0}, s{S_T1}")
    a(f"v_mul_u32_u24 v10, {CFG.APB}, v3")
    a(f"v_lshlrev_b32 v11, 4, v2")
    a(f"v_add3_u32 v10, v10, v11, s{S_T0}")
    for base in (W_AP, W_DP):
        a(f"v_add_u32 v11, {base}, v10")
        a(f"global_store_dwordx4 v11, v[12:15], {sr(P_WS,2)} sc1")
        a(f"v_add_u32 v11, {base}+{4*CFG.APB}, v10")
        a(f"global_store_dwordx4 v11, v[12:15], {sr(P_WS,2)} sc1")
    a(f"s_lshl_b32 s{S_T0}, s{S_H}, 3")
    a(f"s_add_u32 s{S_T0}, s{S_T0}, s{S_B}")
    a(f"s_lshl_b32 s{S_T0}, s{S_T0}, 8")
    a(f"s_add_u32 s{S_T0}, s{S_T0}, {W_OB}")
    a(f"v_add_u32 v10, s{S_T0}, v{V_VOFF}")
    set_exec(a, "0xffff", 0)
    a(f"global_store_dwordx4 v10, v[12:15], {sr(P_WS,2)} sc1")
    full_exec(a)
    a(f"s_lshr_b32 s{S_T0}, s{S_R}, 2")
    a(f"s_lshl_b32 s{S_T1}, s{S_X}, 3")
    a(f"s_add_u32 s{S_T0}, s{S_T0}, s{S_T1}")
    a(f"s_lshl_b32 s{S_T0}, s{S_T0}, 11")
    a(f"s_and_b32 s{S_T1}, s{S_R}, 3")
    a(f"s_lshl_b32 s{S_T1}, s{S_T1}, 9")
    a(f"s_add_u32 s{S_T0}, s{S_T0}, s{S_T1}")
    a(f"s_add_u32 s{S_T0}, s{S_T0}, {W_HB}")
    a(f"v_add_u32 v10, s{S_T0}, v{V_VOFF}")
    set_exec(a, -1, 0)
    a(f"global_store_dwordx4 v10, v[12:15], {sr(P_WS,2)} sc1")
    full_exec(a)
    a(f"s_cmp_ge_u32 s{S_R}, 28")
    a(f"s_cbranch_scc1 L_clr_done{sfx}")
    a(f"s_mul_i32 s{S_T0}, s{S_X}, 28")
    a(f"s_add_u32 s{S_T0}, s{S_T0}, s{S_R}")
    a(f"s_lshl_b32 s{S_T0}, s{S_T0}, 12")
    a(f"s_add_u32 s{S_T0}, s{S_T0}, {W_GP}")
    a(f"v_add_u32 v10, s{S_T0}, v{V_VOFF}")
    for n in range(4):
        a(f"global_store_dwordx4 v10, v[12:15], {sr(P_WS,2)} offset:{n*1024} sc1")
    a(f"s_mul_i32 s{S_T0}, s{S_R}, 37")
    a(f"s_lshr_b32 s{S_T0}, s{S_T0}, 8")
    a(f"s_mul_i32 s{S_T1}, s{S_T0}, 7")
    a(f"s_sub_u32 s{S_T1}, s{S_R}, s{S_T1}")
    a(f"s_lshl_b32 s{S_T0}, s{S_T0}, 1")
    a(f"s_lshl_b32 s{S_T2}, s{S_X}, 3")
    a(f"s_add_u32 s{S_T0}, s{S_T0}, s{S_T2}")
    a(f"s_mul_i32 s{S_T0}, s{S_T0}, 896")
    a(f"s_lshl_b32 s{S_T1}, s{S_T1}, 7")
    a(f"s_add_u32 s{S_T0}, s{S_T0}, s{S_T1}")
    a(f"s_add_u32 s{S_T0}, s{S_T0}, {W_ACT}")
    a(f"v_lshrrev_b32 v10, 3, v{V_LANE}")
    a(f"v_mul_u32_u24 v10, 896, v10")
    a(f"v_and_b32 v11, 7, v{V_LANE}")
    a(f"v_lshlrev_b32 v11, 4, v11")
    a(f"v_add3_u32 v10, v10, v11, s{S_T0}")
    set_exec(a, "0xffff", 0)
    a(f"global_store_dwordx4 v10, v[12:15], {sr(P_WS,2)} sc1")
    full_exec(a)
    a(f"L_clr_done{sfx}:")


def emit_extras(a):
    a(f"s_lshl_b32 s{S_T0}, s{S_W}, 9")
    a(f"v_and_b32 v10, 31, v{V_LANE}")
    a(f"v_lshlrev_b32 v10, 4, v10")
    a(f"v_add_u32 v10, s{S_T0}, v10")
    a(f"v_add_u32 v9, {W_RDY}, v10")
    a(f"global_load_dwordx4 {vr(V_RDY,4)}, v9, {sr(P_WS,2)} sc1")
    a(f"s_lshr_b32 s{S_T0}, s{S_R}, 2")
    a(f"s_lshl_b32 s{S_T0}, s{S_T0}, 11")
    a(f"s_and_b32 s{S_T1}, s{S_R}, 3")
    a(f"s_lshl_b32 s{S_T1}, s{S_T1}, 9")
    a(f"s_add_u32 s{S_T0}, s{S_T0}, s{S_T1}")
    a(f"v_lshlrev_b32 v11, 3, v{V_LANE}")
    a(f"v_add_u32 v11, s{S_T0}, v11")
    a(f"global_load_dwordx2 {vr(V_XRES,2)}, v11, {sr(P_X,2)}")

def koff_init(a):
    a(f"s_lshr_b32 s{S_KOFF}, s{S_W}, 2")
    a(f"s_lshl_b32 s{S_KOFF}, s{S_KOFF}, 7")
    a(f"s_and_b32 s{S_T5}, s{S_W}, 3")
    a(f"s_add_u32 s{S_KOFF}, s{S_KOFF}, s{S_T5}")
    a(f"s_lshl_b32 s{S_KOFF}, s{S_KOFF}, 12")

def emit_rdy(a):
    a(f"s_getreg_b32 s{S_T0}, hwreg(HW_REG_XCC_ID, 0, 4)")
    a(f"s_lshl_b32 s{S_T1}, s{S_X}, 5")
    a(f"s_add_u32 s{S_T1}, s{S_T1}, s{S_R}")
    a(f"s_lshl_b32 s{S_T1}, s{S_T1}, 4")
    a(f"s_add_u32 s{S_T1}, s{S_T1}, {W_RDY}")
    a(f"v_mov_b32 v10, s{S_T1}")
    a(f"v_mov_b32 v12, s{S_T0}")
    a(f"v_mov_b32 v13, 0")
    a(f"v_mov_b32 v14, s{S_TAG}")
    a(f"v_mov_b32 v15, s{S_TAG+1}")
    set_exec(a, 1, 0)
    a(f"global_store_dwordx4 v10, v[12:15], {sr(P_WS,2)} sc1")
    full_exec(a)

def gen(cfg):
    a=Asm()
    NSW=cfg.NSW; L=cfg.L; HV=cfg.HV
    LK=cfg.LK or L
    NH=8-NSW
    KT=256//NSW
    VT=(256-NH*HV)//NSW
    assert VT*NSW+NH*HV==256, "V tiles must split evenly"
    NK=4*KT; NV=4*VT
    TSTEP=NSW*4096
    def kload(j):
        reg=V_RING+(j%LK)*4
        a(f"buffer_load_dwordx4 {vr(reg,4)}, v{V_KOFF}, {sr(SRD_K,4)}, s{S_KOFF} offen offset:{(j%4)*1024} {cfg.KFLAGS}")
        if j%4==3:
            a(f"s_add_u32 s{S_KOFF}, s{S_KOFF}, {TSTEP}")
            if cfg.ROT or cfg.ROTX: a(f"s_and_b32 s{S_KOFF}, s{S_KOFF}, 0xfffff")
    def vload(jv, first=False):
        reg=V_RING+((NK-LK+jv)%LK)*4
        if first:
            a(f"s_add_u32 s{S_KOFF}, s{S_W}, {NH*HV}")
            a(f"s_lshl_b32 s{S_KOFF}, s{S_KOFF}, 12")
            if cfg.ROT or cfg.ROTX:
                a(f"s_add_u32 s{S_KOFF}, s{S_KOFF}, s{S_ROT}")
                a(f"s_and_b32 s{S_KOFF}, s{S_KOFF}, 0xfffff")
        a(f"buffer_load_dwordx4 {vr(reg,4)}, v{V_VOFF}, {sr(SRD_V,4)}, s{S_KOFF} offen offset:{(jv%4)*1024} {cfg.VFLAGS}")
        if jv%4==3:
            a(f"s_add_u32 s{S_KOFF}, s{S_KOFF}, {TSTEP}")
            if cfg.ROT or cfg.ROTX: a(f"s_and_b32 s{S_KOFF}, s{S_KOFF}, 0xfffff")
    a(f"{KNAME}:")
    a(f"s_cmp_ge_u32 s{S_ID}, 256")
    a("s_cbranch_scc1 L_exit")
    a("s_load_dwordx16 s[16:31], s[0:1], 0")
    a("s_load_dwordx8 s[32:39], s[0:1], 64")
    if cfg.CODEPF:
        a(f"s_getpc_b64 {sr(S_B1,2)}")
        a("L_pf0:")
        a(f"s_add_u32 s{S_B1}, s{S_B1}, {KNAME}-L_pf0")
        a(f"s_addc_u32 s{S_B1+1}, s{S_B1+1}, -1")
        a(f"v_lshlrev_b32 v10, 6, v0")
        a(f"v_cmp_gt_u32 vcc, L_codeend-{KNAME}, v10")
        a(f"s_and_saveexec_b64 {sr(S_EX,2)}, vcc")
        a("s_cbranch_execz L_pf0_done")
        a(f"global_load_dword v15, v10, {sr(S_B1,2)}")
        a("L_pf0_done:")
        a(f"s_mov_b64 exec, {sr(S_EX,2)}")
    stamp(a,cfg,0)
    a(f"v_lshrrev_b32 v2, 6, v0")
    a(f"v_and_b32 v{V_LANE}, 63, v0")
    if cfg.ALTMAP: a(f"s_lshr_b32 s{S_X}, s{S_ID}, 5")
    else: a(f"s_and_b32 s{S_X}, s{S_ID}, 7")
    a(f"v_readfirstlane_b32 s{S_W}, v2")
    if cfg.ALTMAP: a(f"s_and_b32 s{S_R}, s{S_ID}, 31")
    else: a(f"s_lshr_b32 s{S_R}, s{S_ID}, 3")
    a(f"s_lshr_b32 s{S_T0}, s{S_R}, 3")
    a(f"s_lshl_b32 s{S_H}, s{S_X}, 2")
    a(f"s_add_u32 s{S_H}, s{S_H}, s{S_T0}")
    a(f"s_and_b32 s{S_B}, s{S_R}, 7")
    if cfg.ROT or cfg.ROTX:
        a(f"s_mul_i32 s{S_ROT}, s{S_R}, {cfg.ROT}")
        a(f"s_mul_i32 s{S_DM2}, s{S_X}, {cfg.ROTX}")
        a(f"s_add_u32 s{S_ROT}, s{S_ROT}, s{S_DM2}")
        a(f"s_and_b32 s{S_ROT}, s{S_ROT}, 0xff000")
    if cfg.HPERM:
        a(f"s_lshl_b32 s{S_HA}, s{S_T0}, 3")
        a(f"s_add_u32 s{S_HA}, s{S_HA}, s{S_X}")
    else:
        a(f"s_mov_b32 s{S_HA}, s{S_H}")
    a(f"v_and_b32 v2, 15, v{V_LANE}")
    a(f"v_lshrrev_b32 v3, 4, v{V_LANE}")
    a(f"v_lshlrev_b32 v{V_VOFF}, 4, v{V_LANE}")
    a(f"v_lshrrev_b32 v4, 2, v2")
    a(f"v_and_b32 v5, 3, v2")
    a(f"v_lshlrev_b32 v6, 8, v4")
    a(f"v_lshlrev_b32 v7, 6, v3")
    a(f"v_lshlrev_b32 v8, 4, v5")
    a(f"v_add3_u32 v{V_KOFF}, v6, v7, v8")
    a(f"v_mov_b32 v{V_DMA}, 0")
    a("s_waitcnt lgkmcnt(0)")
    a(f"s_load_dwordx2 {sr(S_TAG,2)}, {sr(P_WS,2)}, {W_EPOCH}")
    a(f"s_lshl_b32 s{S_T0}, s{S_B}, 5")
    a(f"s_add_u32 s{S_T0}, s{S_T0}, s{S_HA}")
    a(f"s_lshl_b32 s{S_T0}, s{S_T0}, 20")
    for srd,p in ((SRD_K,P_K),(SRD_V,P_V)):
        a(f"s_add_u32 s{srd}, s{p}, s{S_T0}")
        a(f"s_addc_u32 s{srd+1}, s{p+1}, 0")
        a(f"s_and_b32 s{srd+1}, s{srd+1}, 0xffff")
        a(f"s_mov_b32 s{srd+2}, 0x100000")
        a(f"s_mov_b32 s{srd+3}, 0x20000")
    a(f"s_lshl_b32 s{S_T0}, s{S_W}, 11")
    a(f"v_lshlrev_b32 v9, 5, v{V_LANE}")
    a(f"v_add_u32 v9, s{S_T0}, v9")
    a(f"global_load_dwordx4 {vr(V_X,4)}, v9, {sr(P_X,2)}")
    a(f"global_load_dwordx4 {vr(V_X+4,4)}, v9, {sr(P_X,2)} offset:16")
    if cfg.HIGH_INLINE:
        a(f"s_cmp_lt_u32 s{S_W}, 4")
        a("s_cbranch_scc1 L_lowwaves")
    else:
        a(f"s_cmp_ge_u32 s{S_W}, 4")
        a("s_cbranch_scc1 L_high")
        a.ool(True)
    a("L_high:")
    a(f"v_lshrrev_b32 v10, 3, v{V_LANE}")
    a(f"v_and_b32 v11, 7, v{V_LANE}")
    a(f"v_lshlrev_b32 v11, 4, v11")
    a(f"s_lshr_b32 s{S_T4}, s{S_R}, 4")
    a(f"s_and_b32 s{S_T5}, s{S_R}, 15")
    a(f"s_cmp_eq_u32 s{S_W}, 4")
    a("s_cbranch_scc1 L_dma_wo")
    a(f"s_cmp_eq_u32 s{S_W}, 7")
    a("s_cbranch_scc1 L_dma_wd")
    a(f"s_cmp_ge_u32 s{S_R}, 28")
    a("s_cbranch_scc1 L_dma_done")
    a(f"s_mul_i32 s{S_T0}, s{S_R}, 37")
    a(f"s_lshr_b32 s{S_T0}, s{S_T0}, 8")
    a(f"s_mul_i32 s{S_T1}, s{S_T0}, 7")
    a(f"s_sub_u32 s{S_T1}, s{S_R}, s{S_T1}")
    a(f"s_mul_i32 s{S_T0}, s{S_T0}, {256*7168}")
    a(f"s_mul_i32 s{S_T2}, s{S_X}, 896")
    a(f"s_lshl_b32 s{S_T1}, s{S_T1}, 7")
    a(f"s_add_u32 s{S_T0}, s{S_T0}, s{S_T2}")
    a(f"s_add_u32 s{S_T0}, s{S_T0}, s{S_T1}")
    a(f"s_cmp_eq_u32 s{S_W}, 5")
    a(f"s_cselect_b32 s{S_B0}, s{P_WG}, s{P_WU}")
    a(f"s_cselect_b32 s{S_B0+1}, s{P_WG+1}, s{P_WU+1}")
    a(f"s_mov_b32 s{S_T3}, {L_WU}")
    a(f"s_cselect_b32 s{S_T3}, {L_WG}, s{S_T3}")
    a(f"s_add_u32 s{S_B0}, s{S_B0}, s{S_T0}")
    a(f"s_addc_u32 s{S_B0+1}, s{S_B0+1}, 0")
    a(f"s_mov_b32 s{S_T0}, 7168")
    a(f"s_mov_b32 s{S_T1}, 32")
    a("s_branch L_dma_go")
    a("L_dma_wo:")
    if cfg.HPERM:
        a(f"s_lshl_b32 s{S_T0}, s{S_T4}, 4")
        a(f"s_add_u32 s{S_T0}, s{S_T0}, s{S_X}")
        a(f"s_lshl_b32 s{S_T0}, s{S_T0}, 18")
    else:
        a(f"s_lshl_b32 s{S_T0}, s{S_X}, 1")
        a(f"s_add_u32 s{S_T0}, s{S_T0}, s{S_T4}")
        a(f"s_lshl_b32 s{S_T0}, s{S_T0}, 19")
    a(f"s_lshl_b32 s{S_T1}, s{S_T5}, 7")
    a(f"s_add_u32 s{S_T0}, s{S_T0}, s{S_T1}")
    a(f"s_add_u32 s{S_B0}, s{P_WO}, s{S_T0}")
    a(f"s_addc_u32 s{S_B0+1}, s{P_WO+1}, 0")
    a(f"s_mov_b32 s{S_T3}, {L_WO}")
    a(f"s_mov_b32 s{S_T0}, 2048")
    a(f"s_mov_b32 s{S_T1}, 32")
    a("s_branch L_dma_go")
    a("L_dma_wd:")
    a(f"s_lshl_b32 s{S_T0}, s{S_X}, 1")
    a(f"s_add_u32 s{S_T0}, s{S_T0}, s{S_T4}")
    a(f"s_mul_i32 s{S_T0}, s{S_T0}, {224*2048}")
    a(f"s_lshl_b32 s{S_T1}, s{S_T5}, 7")
    a(f"s_add_u32 s{S_T0}, s{S_T0}, s{S_T1}")
    a(f"s_add_u32 s{S_B0}, s{P_WD}, s{S_T0}")
    a(f"s_addc_u32 s{S_B0+1}, s{P_WD+1}, 0")
    a(f"s_mov_b32 s{S_T3}, {L_WD}")
    a(f"s_mov_b32 s{S_T0}, 2048")
    a(f"s_mov_b32 s{S_T1}, 28")
    a("L_dma_go:")
    a(f"v_mul_lo_u32 v10, v10, s{S_T0}")
    a(f"s_lshl_b32 s{S_T0}, s{S_T0}, 3")
    a(f"v_add_u32 v10, v10, v11")
    a(f"s_mov_b32 m0, s{S_T3}")
    a("s_nop 0")
    for n in range(cfg.P0):
        a(f"global_load_lds_dwordx4 v10, {sr(S_B0,2)} {cfg.WFLAGS}")
        a(f"s_add_u32 m0, m0, 1024")
        a(f"s_add_u32 s{S_B0}, s{S_B0}, s{S_T0}")
        a(f"s_addc_u32 s{S_B0+1}, s{S_B0+1}, 0")
    a(f"s_sub_u32 s{S_DN}, s{S_T1}, {cfg.P0}")
    a(f"s_mov_b32 s{S_DS}, s{S_T0}")
    a(f"s_mov_b32 s{S_DJ}, 0")
    if cfg.HPERM:
        a(f"s_cmp_eq_u32 s{S_W}, 4")
        a(f"s_cselect_b32 s{S_DJ}, {896*2048}, 0")
    a(f"v_mov_b32 v{V_DMA}, v10")
    a(f"s_mov_b32 s{S_LNW}, 1") if cfg.LNDRY else a(f"s_waitcnt vmcnt({cfg.P0})")
    a("s_branch L_ln1")
    a("L_dma_done:")
    a(f"s_mov_b32 s{S_DN}, 0")
    a(f"s_mov_b32 s{S_B0}, s{P_WS}")
    a(f"s_mov_b32 s{S_B0+1}, s{P_WS+1}")
    a(f"v_mov_b32 v{V_DMA}, 0")
    a(f"s_mov_b32 s{S_LNW}, 0") if cfg.LNDRY else a("s_waitcnt vmcnt(0)")
    a("s_branch L_ln1")

    a.ool(False)
    a("L_lowwaves:")
    a(f"v_lshlrev_b32 v12, 13, v3")
    a(f"v_lshlrev_b32 v11, 1, v3")
    a(f"v_xor_b32 v10, v2, v11")
    a(f"v_xor_b32 v11, 8, v10")
    a(f"v_lshl_add_u32 v10, v10, 4, v12")
    a(f"v_lshl_add_u32 v11, v11, 4, v12")
    a(f"s_lshl_b32 s{S_T0}, s{S_B}, 7")
    a(f"s_lshl_b32 s{S_T1}, s{S_W}, 5")
    a(f"s_add_u32 s{S_T0}, s{S_T0}, s{S_T1}")
    a(f"s_lshl_b32 s{S_T0}, s{S_T0}, 13")
    a(f"s_lshl_b32 s{S_T1}, s{S_HA}, 8")
    a(f"s_add_u32 s{S_T0}, s{S_T0}, s{S_T1}")
    a(f"s_add_u32 s{S_B0}, s{P_WQ}, s{S_T0}")
    a(f"s_addc_u32 s{S_B0+1}, s{P_WQ+1}, 0")
    a(f"s_lshl_b32 s{S_T1}, s{S_W}, 13")
    a(f"s_add_u32 m0, s{S_T1}, {L_WQ}")
    a("s_nop 0")
    for n in range(8):
        a(f"global_load_lds_dwordx4 v{10+((n>>1)&1)}, {sr(S_B0,2)} {cfg.WFLAGS}")
        if n<7:
            a(f"s_add_u32 m0, m0, 1024")
            a(f"s_add_u32 s{S_B0}, s{S_B0}, {4*8192}")
            a(f"s_addc_u32 s{S_B0+1}, s{S_B0+1}, 0")
    if cfg.RING_EARLY:
        a(f"s_cmp_ge_u32 s{S_W}, {NSW}")
        a("s_cbranch_scc1 L_low_nostr")
        a(f"s_lshl_b32 s{S_KOFF}, s{S_W}, 12")
        if cfg.ROT or cfg.ROTX:
            a(f"s_add_u32 s{S_KOFF}, s{S_KOFF}, s{S_ROT}")
            a(f"s_and_b32 s{S_KOFF}, s{S_KOFF}, 0xfffff")
        for j in range(cfg.LS or LK): kload(j)
        a(f"s_mov_b32 s{S_LNW}, 2") if cfg.LNDRY else a(f"s_waitcnt vmcnt({8+(cfg.LS or LK)})")
        a("s_branch L_ln1_low")
        a("L_low_nostr:")
    a(f"s_mov_b32 s{S_LNW}, 3") if cfg.LNDRY else a(f"s_waitcnt vmcnt(8)")
    a("L_ln1_low:")
    a("L_ln1:")
    if cfg.LNDRY:
        a(f"s_or_b32 s{S_LNW}, s{S_LNW}, 0x10")
        a("L_ln1_again:")
    layernorm2(a, V_X, V_X+8, V_X+24, V_T)
    if cfg.LNDRY:
        a(f"s_bitcmp0_b32 s{S_LNW}, 4")
        a("s_cbranch_scc1 L_ln1_done")
        a(f"s_and_b32 s{S_LNW}, s{S_LNW}, 0xf")
        for k,n in ((0,0),(1,cfg.P0),(2,8+LK),(3,8)):
            a(f"s_cmp_lg_u32 s{S_LNW}, {k}")
            a(f"s_cbranch_scc1 L_lnw{k}")
            a(f"s_waitcnt vmcnt({n})")
            a(f"L_lnw{k}:")
        a("s_branch L_ln1_again")
        a("L_ln1_done:")
    a(f"s_lshl_b32 s{S_T0}, s{S_B}, 3")
    a(f"v_subrev_u32 v10, s{S_T0}, v{V_LANE}")
    a(f"v_cmp_gt_u32 vcc, 8, v10")
    a(f"s_mul_i32 s{S_T1}, s{S_W}, {LNA_P}")
    a(f"s_add_u32 s{S_T1}, s{S_T1}, {L_LNA}")
    a(f"v_lshlrev_b32 v10, 5, v10")
    a(f"v_add_u32 v10, s{S_T1}, v10")
    a(f"s_and_saveexec_b64 {sr(S_EX,2)}, vcc")
    a(f"ds_write_b128 v10, {vr(V_X+24,4)}")
    a(f"ds_write_b128 v10, {vr(V_X+28,4)} offset:16")
    a(f"s_mov_b64 exec, {sr(S_EX,2)}")
    a(f"s_cmp_ge_u32 s{S_W}, 4")
    a("s_cbranch_scc1 L_b1")
    if cfg.RING_EARLY:
        a(f"s_cmp_ge_u32 s{S_W}, {NSW}")
        a("s_cbranch_scc1 L_b1_ns")
        a(f"s_waitcnt vmcnt({cfg.LS or LK})")
        a("s_branch L_b1")
        a("L_b1_ns:")
    a("s_waitcnt vmcnt(0)")
    a("L_b1:")
    a("s_waitcnt lgkmcnt(0)")
    a(f"s_cmp_lg_u32 s{S_W}, 0")
    a("s_cbranch_scc1 L_noqf")
    a(f"v_mov_b32 v10, {L_QF}")
    a(f"v_mov_b32 v11, 0")
    a(f"ds_write_b32 v10, v11")
    a(f"ds_write_b32 v10, v11 offset:{L_MODE-L_QF}")
    a("s_waitcnt lgkmcnt(0)")
    a("L_noqf:")
    a("s_barrier")
    stamp(a,cfg,1)
    a(f"s_add_u32 s{S_TAG}, s{S_TAG}, 1")
    a(f"s_addc_u32 s{S_TAG+1}, s{S_TAG+1}, 0")
    a(f"v_and_b32 v10, 1, v2")
    a(f"v_cmp_eq_u32 vcc, 1, v10")
    a(f"v_mov_b32 v11, 0xffff")
    a(f"v_mov_b32 v12, 0xffff0000")
    a(f"v_cndmask_b32 v11, v11, v12, vcc")
    a(f"v_lshrrev_b32 v10, 1, v2")
    for w in range(4):
        a(f"v_cmp_eq_u32 vcc, {w}, v10")
        a("s_nop 1")
        a(f"v_cndmask_b32 v{V_MASK+w}, 0, v11, vcc")
    a(f"v_mov_b32 v{V_MAX}, 0xff800000")
    a(f"s_mov_b32 s{S_SCALE}, 0x3db504f3")
    a(f"s_mov_b32 s{S_LOG2E}, 0x3fb8aa3b")
    for c in range(4):
        a(f"v_mov_b32 v{V_OACC+c}, 0")
    a(f"s_cmp_ge_u32 s{S_W}, 4")
    a("s_cbranch_scc1 L_high2")
    a.ool(True)
    a("L_high2:")
    if cfg.CLR7:
        a(f"s_cmp_lg_u32 s{S_W}, 7")
        a("s_cbranch_scc1 L_h2_noclr")
        if not cfg.NOCLR: emit_clears(a,"7")
        a("L_h2_noclr:")
    if cfg.NODMA2: a(f"s_mov_b32 s{S_DN}, 0")
    a(f"s_cmp_eq_u32 s{S_DN}, 0")
    a("s_cbranch_scc1 L_dma2_done")
    if cfg.DMAPAUSE:
        a(f"v_mov_b32 v10, {L_QF}")
        a(f"s_mov_b32 s{S_SPIN}, {cfg.SPIN}")
        a("L_dp_wait:")
        a(f"ds_read_b32 v11, v10")
        a("s_waitcnt lgkmcnt(0)")
        a(f"v_readfirstlane_b32 s{S_T0}, v11")
        a("s_nop 1")
        a(f"s_cmp_lg_u32 s{S_T0}, 0")
        a("s_cbranch_scc1 L_dma2_loop")
        a("s_sleep 2")
        a(f"s_sub_u32 s{S_SPIN}, s{S_SPIN}, 1")
        a(f"s_cmp_lg_u32 s{S_SPIN}, 0")
        a("s_cbranch_scc1 L_dp_wait")
    a("L_dma2_loop:")
    a(f"s_waitcnt vmcnt({cfg.P-1})")
    a(f"global_load_lds_dwordx4 v{V_DMA}, {sr(S_B0,2)} {cfg.WFLAGS}")
    a(f"s_add_u32 m0, m0, 1024")
    a(f"s_add_u32 s{S_B0}, s{S_B0}, s{S_DS}")
    a(f"s_addc_u32 s{S_B0+1}, s{S_B0+1}, 0")
    a(f"s_sub_u32 s{S_DN}, s{S_DN}, 1")
    if cfg.HPERM:
        a(f"s_cmp_eq_u32 s{S_DN}, 16")
        a(f"s_cselect_b32 s{S_DM2}, s{S_DJ}, 0")
        a(f"s_add_u32 s{S_B0}, s{S_B0}, s{S_DM2}")
        a(f"s_addc_u32 s{S_B0+1}, s{S_B0+1}, 0")
    a(f"s_cmp_lg_u32 s{S_DN}, 0")
    a("s_cbranch_scc1 L_dma2_loop")
    a("L_dma2_done:")
    a("s_waitcnt vmcnt(0)")
    stamp(a,cfg,13)
    if cfg.CLR7:
        a(f"s_cmp_lg_u32 s{S_W}, 7")
        a("s_cbranch_scc1 L_h2_nordy")
        emit_rdy(a)
        a("L_h2_nordy:")
    emit_precompute(a,cfg)
    emit_rdycheck(a,cfg)
    a("s_branch L_kdone")
    a.ool(False)
    a("L_q_low:")
    if not cfg.RING_EARLY:
        a(f"s_cmp_ge_u32 s{S_W}, {NSW}")
        a("s_cbranch_scc1 L_ring_late_skip")
        a(f"s_lshl_b32 s{S_KOFF}, s{S_W}, 12")
        if cfg.ROT or cfg.ROTX:
            a(f"s_add_u32 s{S_KOFF}, s{S_KOFF}, s{S_ROT}")
            a(f"s_and_b32 s{S_KOFF}, s{S_KOFF}, 0xfffff")
        for j in range(cfg.LS or LK): kload(j)
        a("L_ring_late_skip:")
    a(f"s_cmp_lt_u32 s{S_W}, 2")
    a("s_cbranch_scc1 L_q_01")
    a.ool(True)
    a("L_q_01:")
    emit_precompute(a,cfg)
    a(f"s_cmp_eq_u32 s{S_W}, 0")
    a("s_cbranch_scc1 L_q_w0")
    a("s_branch L_q_w1")
    a.ool(False)
    a("L_q_prod:")
    a(f"v_and_b32 v10, 7, v{V_LANE}")
    a(f"v_mul_u32_u24 v10, {LNA_P}, v10")
    a(f"v_lshlrev_b32 v11, 4, v3")
    a(f"v_add_u32 v10, v10, v11")
    a(f"v_add_u32 v10, {L_LNA}, v10")
    for s_ in range(4):
        a(f"ds_read_b128 {vr(V_X+4*s_,4)}, v10 offset:{64*s_}")
    a(f"v_lshlrev_b32 v11, 3, v3")
    a(f"v_add_u32 v11, v11, v4")
    a(f"v_lshlrev_b32 v11, 8, v11")
    a(f"v_lshlrev_b32 v12, 3, v5")
    a(f"v_add3_u32 v11, v11, v12, {0}") if False else None
    a(f"v_add_u32 v11, v11, v12")
    a(f"v_add_u32 v11, {L_WQ}, v11")
    a(f"v_and_b32 v12, 1, v3")
    a(f"v_lshlrev_b32 v12, 2, v12")
    a(f"v_or_b32 v12, v12, v4")
    a(f"s_sub_u32 s{S_T4}, s{S_W}, 2")
    a(f"s_lshl_b32 s{S_T0}, s{S_T4}, 2")
    a(f"v_xor_b32 v12, s{S_T0}, v12")
    for tt in range(4):
        a(f"v_xor_b32 v13, {tt}, v12")
        a(f"v_lshl_add_u32 v{V_T+16+tt}, v13, 5, v11")
    for tt in range(4):
        for s_ in range(4):
            for hf in range(2):
                reg=V_RING+tt*16+s_*4+hf*2
                a(f"ds_read_b64_tr_b16 {vr(reg,2)}, v{V_T+16+tt} offset:{(32*s_+4*hf)*256}")
    a(f"s_lshl_b32 s{S_T0}, s{S_H}, 3")
    a(f"s_add_u32 s{S_T0}, s{S_T0}, s{S_B}")
    a(f"s_lshl_b32 s{S_T0}, s{S_T0}, 13")
    a(f"s_lshl_b32 s{S_T1}, s{S_T4}, 9")
    a(f"s_add_u32 s{S_T0}, s{S_T0}, s{S_T1}")
    a(f"s_add_u32 s{S_T0}, s{S_T0}, {W_QP}")
    a(f"v_and_b32 v10, 7, v2")
    a(f"v_lshlrev_b32 v10, 10, v10")
    a(f"v_lshlrev_b32 v11, 5, v3")
    a(f"v_lshrrev_b32 v12, 3, v2")
    a(f"v_lshl_add_u32 v11, v12, 4, v11")
    a(f"v_add3_u32 v{V_QADDR}, v10, v11, s{S_T0}")
    a(f"v_cmp_eq_u32 {sr(S_B1,2)}, 1, v12")
    G=V_X+16
    for tt in range(4):
        a(f"v_mov_b32 v{G+4*tt+2}, s{S_TAG}")
        a(f"v_mov_b32 v{G+4*tt+3}, s{S_TAG+1}")
    a("s_waitcnt lgkmcnt(0)")
    for s_ in range(4):
        for tt in range(4):
            c = "0" if s_==0 else vr(V_T+4*tt,4)
            a(f"v_mfma_f32_16x16x32_bf16 {vr(V_T+4*tt,4)}, {vr(V_RING+tt*16+s_*4,4)}, {vr(V_X+4*s_,4)}, {c}")
    a("s_nop 7")
    for tt in range(4):
        a(f"v_cndmask_b32 v{G+4*tt}, v{V_T+4*tt}, v{V_T+4*tt+2}, {sr(S_B1,2)}")
        a(f"v_cndmask_b32 v{G+4*tt+1}, v{V_T+4*tt+1}, v{V_T+4*tt+3}, {sr(S_B1,2)}")
    def qstores(fl):
        for tt in range(4):
            a(f"global_store_dwordx4 v{V_QADDR}, {vr(G+4*tt,4)}, {sr(P_WS,2)} offset:{128*tt} {fl}")
    qstores("" if cfg.QFAST else "sc1")
    stamp(a,cfg,13)
    a("s_branch L_prod2")
    a.ool(True)
    a("L_prod2:")
    if cfg.QFAST and cfg.CONDCOPY:
        a(f"v_mov_b32 v10, {L_MODE}")
        a(f"s_mov_b32 s{S_SPIN}, {cfg.SPIN}")
        a("L_qc_wait:")
        a("s_sleep 16")
        a(f"ds_read_b32 v11, v10")
        a("s_waitcnt lgkmcnt(0)")
        a(f"v_readfirstlane_b32 s{S_T0}, v11")
        a("s_nop 1")
        a(f"s_cmp_lg_u32 s{S_T0}, 0")
        a("s_cbranch_scc1 L_qc_go")
        a(f"s_sub_u32 s{S_SPIN}, s{S_SPIN}, 1")
        a(f"s_cmp_lg_u32 s{S_SPIN}, 0")
        a("s_cbranch_scc1 L_qc_wait")
        a("L_qc_go:")
        a(f"s_cmp_eq_u32 s{S_T0}, 2")
        a("s_cbranch_scc1 L_qc_skip")
        qstores("sc1")
        a("L_qc_skip:")
    elif cfg.QFAST:
        a(f"v_mov_b32 v10, {L_QF}")
        a(f"s_mov_b32 s{S_SPIN}, {cfg.QWAIT}")
        a("L_qc_wait:")
        a("s_sleep 4")
        a(f"ds_read_b32 v11, v10")
        a("s_waitcnt lgkmcnt(0)")
        a(f"v_readfirstlane_b32 s{S_T0}, v11")
        a("s_nop 1")
        a(f"s_cmp_lg_u32 s{S_T0}, 0")
        a("s_cbranch_scc1 L_qc_go")
        a(f"s_sub_u32 s{S_SPIN}, s{S_SPIN}, 1")
        a(f"s_cmp_lg_u32 s{S_SPIN}, 0")
        a("s_cbranch_scc1 L_qc_wait")
        a("L_qc_go:")
        if not cfg.NOCOPY: qstores("sc1")
    if not cfg.CLR7:
        a(f"s_cmp_lg_u32 s{S_W}, 3")
        a("s_cbranch_scc1 L_q_prod2")
        if not cfg.NOCLR: emit_clears(a)
        a("s_waitcnt vmcnt(0)")
        emit_rdy(a)
    a("L_q_prod2:")
    emit_precompute(a,cfg)
    if cfg.CODEPF:
        a(f"s_cmp_lg_u32 s{S_W}, 2")
        a("s_cbranch_scc1 L_pf1_skip")
        emit_codepf(a,cfg,"L_pf1","L_q_ready","L_exit")
        a("L_pf1_skip:")
    a(f"global_load_dwordx2 {vr(V_XRES,2)}, v9, {sr(P_X,2)}")
    a("s_branch L_kdone")
    a.ool(False)
    a("L_q_w1:")
    if NSW<2:
        a("s_branch L_kdone")
    a(f"v_mov_b32 v10, {L_QF}")
    a(f"s_mov_b32 s{S_SPIN}, {cfg.SPIN}")
    a("L_qf_wait:")
    a(f"ds_read_b32 v11, v10")
    a("s_waitcnt lgkmcnt(0)")
    a(f"v_readfirstlane_b32 s{S_T0}, v11")
    a("s_nop 1")
    a(f"s_cmp_lg_u32 s{S_T0}, 0")
    a("s_cbranch_scc1 L_q_ready")
    a(f"s_sub_u32 s{S_SPIN}, s{S_SPIN}, 1")
    a(f"s_cmp_lg_u32 s{S_SPIN}, 0")
    a("s_cbranch_scc1 L_qf_wait")
    a("s_branch L_q_ready")
    a("L_q_w0:")
    a(f"s_lshl_b32 s{S_T0}, s{S_H}, 16")
    a(f"s_lshl_b32 s{S_T1}, s{S_B}, 10")
    a(f"s_add_u32 s{S_T0}, s{S_T0}, s{S_T1}")
    a(f"s_add_u32 s{S_T0}, s{S_T0}, {W_QP}")
    a(f"v_add_u32 v10, s{S_T0}, v{V_VOFF}")
    for j in range(8):
        a(f"v_add_u32 v{V_T+8+j}, {j*8192}, v10")
    PQ=V_X+16
    lp=a.label("qpoll"); dn=a.label("qok")
    a(f"s_mov_b32 s{S_SPIN}, {cfg.SPIN}")
    a(f"{lp}:")
    for j in range(8):
        a(f"global_load_dwordx4 {vr(PQ+4*j,4)}, v{V_T+8+j}, {sr(P_WS,2)} sc1")
    a("s_waitcnt vmcnt(0)")
    a(f"v_mov_b32 v11, 0")
    for j in range(8):
        a(f"v_xor_b32 v12, s{S_TAG}, v{PQ+4*j+2}")
        a(f"v_xor_b32 v13, s{S_TAG+1}, v{PQ+4*j+3}")
        a(f"v_or3_b32 v11, v11, v12, v13")
    a(f"v_cmp_ne_u32 vcc, 0, v11")
    a(f"s_cbranch_vccz {dn}")
    if cfg.QSLEEP: a(f"s_sleep {cfg.QSLEEP}")
    a(f"s_sub_u32 s{S_SPIN}, s{S_SPIN}, 1")
    a(f"s_cmp_lg_u32 s{S_SPIN}, 0")
    a(f"s_cbranch_scc1 {lp}")
    a(f"{dn}:")
    stamp(a,cfg,14)
    for j in range(1,8):
        a(f"v_add_f32 v{PQ}, v{PQ}, v{PQ+4*j}")
        a(f"v_add_f32 v{PQ+1}, v{PQ+1}, v{PQ+4*j+1}")
    a(f"v_cvt_pk_bf16_f32 v{PQ+2}, v{PQ}, v{PQ+1}")
    a(f"v_lshlrev_b32 v11, 2, v{V_LANE}")
    a(f"v_add_u32 v11, {L_QS}, v11")
    a(f"ds_write_b32 v11, v{PQ+2}")
    a("s_waitcnt lgkmcnt(0)")
    a(f"v_mov_b32 v10, {L_QF}")
    a(f"v_mov_b32 v11, 1")
    a(f"ds_write_b32 v10, v11")
    a("L_q_ready:")
    stamp(a,cfg,2)
    a(f"v_lshlrev_b32 v10, 2, v3")
    a(f"v_add_u32 v10, v10, v5")
    a(f"v_lshlrev_b32 v10, 4, v10")
    a(f"v_add_u32 v10, {L_QS}, v10")
    a(f"ds_read_b128 {vr(V_T,4)}, v10")
    a(f"s_lshl_b32 s{S_T0}, s{S_W}, 6")
    a(f"s_add_u32 s{S_T0}, s{S_T0}, {L_SC}")
    a(f"v_lshlrev_b32 v10, 4, v4")
    a(f"v_lshlrev_b32 v11, 2, v3")
    a(f"v_add3_u32 v{V_SCW}, v10, v11, s{S_T0}")
    a("s_waitcnt lgkmcnt(0)")
    for n in range(4):
        a(f"v_cmp_eq_u32 vcc, {n}, v4")
        a("s_nop 1")
        for c in range(4):
            a(f"v_cndmask_b32 v{V_QA+4*n+c}, 0, v{V_T+c}, vcc")
    import math
    PERK=LK*4//math.gcd(LK,4)
    def kpost(acc, sc_off):
        t=V_T
        a(f"v_mov_b32_dpp v{t}, v{acc} quad_perm:[0,0,0,0] row_mask:0xf bank_mask:0xf")
        for q in range(1,4):
            a(f"v_add_f32_dpp v{t}, v{acc+q}, v{t} quad_perm:[{q},{q},{q},{q}] row_mask:0xf bank_mask:0xf")
        round_bf16(a,t,t)
        a(f"v_mul_f32 v{t}, s{S_SCALE}, v{t}")
        round_bf16(a,t,t)
        a(f"v_max_f32 v{V_MAX}, v{V_MAX}, v{t}")
        a(f"ds_write_b32 v{V_SCW}, v{t} offset:{sc_off}")
    def kbody(j, wait_n, reissue, sc_off, prev_off=None, last=False):
        a(f"s_waitcnt vmcnt({wait_n})")
        a("s_nop 0")
        n=j%4
        if cfg.KEXP==2:
            acc=V_SACC if (j//4)%2==0 else V_SACC2
        else:
            acc=V_SACC
        c="0" if n==0 else vr(acc,4)
        a(f"v_mfma_f32_16x16x32_bf16 {vr(acc,4)}, {vr(V_QA+4*n,4)}, {vr(V_RING+(j%LK)*4,4)}, {c}")
        reissue()
        if cfg.KEXP==2:
            if n==1 and prev_off is not None:
                kpost(V_SACC2 if (j//4)%2==0 else V_SACC, prev_off)
            if n==3 and last:
                a("s_nop 7")
                kpost(acc, sc_off)
        elif n==3:
            if cfg.KEXP==1: return
            a("s_nop 7")
            kpost(acc, sc_off)
    if cfg.KEXP==2 and (PERK//4)%2: PERK*=2
    nloop=(NK-LK)//PERK
    TS=NSW*64
    if cfg.KEXP==2:
        for j in range(4):
            kbody(j, LK-1, (lambda j=j: kload(j+LK)), 0, None)
        base=4
        nloop=(NK-LK-4)//PERK
    else:
        base=0
    if cfg.LS:
        assert cfg.KEXP!=2 and cfg.KS0%PERK==0
        for j in range(cfg.KS0):
            kbody(j, cfg.LS-1, (lambda j=j: kload(j+cfg.LS)), (j//4)*TS)
        for m in range(cfg.KS0+cfg.LS, cfg.KS0+LK): kload(m)
        a(f"v_add_u32 v{V_SCW}, {(cfg.KS0//4)*TS}, v{V_SCW}")
        nloop=(NK-LK-cfg.KS0)//PERK
    a(f"s_mov_b32 s{S_LOOP}, {nloop}")
    a(".p2align 6")
    a("L_kloop:")
    for j in range(base,base+PERK):
        kbody(j, LK-1, (lambda j=j: kload(j+LK)), ((j-0)//4)*TS, ((j//4)-1)*TS)
    a(f"v_add_u32 v{V_SCW}, {(PERK//4)*TS}, v{V_SCW}")
    a(f"s_sub_u32 s{S_LOOP}, s{S_LOOP}, 1")
    a(f"s_cmp_lg_u32 s{S_LOOP}, 0")
    a("s_cbranch_scc1 L_kloop")
    done=base+nloop*PERK+(cfg.KS0 if cfg.LS else 0)
    for j in range(done, NK):
        m=j+LK
        if m<NK: ri=(lambda m=m: kload(m)); wn=LK-1
        elif m-NK<L: ri=(lambda m=m: vload(m-NK, first=(m==NK))); wn=LK-1
        else: ri=(lambda: None); wn=(NK-1-j)+L
        rel=(j-nloop*PERK-(cfg.KS0 if cfg.LS else 0))//4
        kbody(j, wn, ri, rel*TS, (rel-1)*TS, last=(j==NK-1))
    a("L_kdone:")
    stamp(a,cfg,3)
    wave_sum(a, V_MAX, V_T, op="max")
    a(f"s_lshl_b32 s{S_T0}, s{S_W}, 2")
    a(f"s_add_u32 s{S_T0}, s{S_T0}, {L_ML}")
    a(f"v_mov_b32 v11, s{S_T0}")
    a(f"ds_write_b32 v11, v{V_MAX}")
    a("s_waitcnt lgkmcnt(0)")
    a("s_barrier")
    if cfg.LATE_L:
        a(f"s_cmp_lg_u32 s{S_W}, 2")
        a("s_cbranch_scc1 L_nokd")
        a(f"v_mov_b32 v12, {L_MODE}")
        a(f"ds_read_b32 v13, v12")
        a(f"s_lshl_b32 s{S_T0}, s{S_X}, 9")
        a(f"s_add_u32 s{S_T0}, s{S_T0}, {W_KD}")
        a(f"v_and_b32 v10, 31, v{V_LANE}")
        a(f"v_lshlrev_b32 v10, 4, v10")
        a(f"v_add_u32 v10, s{S_T0}, v10")
        a(f"global_load_dwordx4 {vr(V_RDY,4)}, v10, {sr(P_WS,2)} sc1")
        if cfg.LATE_X:
            a(f"s_lshl_b32 s{S_T2}, s{S_R}, 7")
            a(f"s_add_u32 s{S_T2}, s{S_T2}, {W_KX}")
            a(f"v_and_b32 v11, 7, v{V_LANE}")
            a(f"v_lshlrev_b32 v11, 4, v11")
            a(f"v_add_u32 v11, s{S_T2}, v11")
            a(f"global_load_dwordx4 {vr(V_KX,4)}, v11, {sr(P_WS,2)} sc1")
        a(f"s_lshl_b32 s{S_T1}, s{S_R}, 4")
        a(f"s_add_u32 s{S_T0}, s{S_T0}, s{S_T1}")
        a(f"v_mov_b32 v10, s{S_T0}")
        if cfg.LATE_X:
            a(f"s_lshl_b32 s{S_T1}, s{S_X}, 4")
            a(f"s_add_u32 s{S_T2}, s{S_T2}, s{S_T1}")
            a(f"v_mov_b32 v11, s{S_T2}")
        a(f"v_mov_b32 v{V_X+8}, 1")
        a(f"v_mov_b32 v{V_X+9}, 0")
        a(f"v_mov_b32 v{V_X+10}, s{S_TAG}")
        a(f"v_mov_b32 v{V_X+11}, s{S_TAG+1}")
        a("s_waitcnt lgkmcnt(0)")
        a(f"v_readfirstlane_b32 s{S_FAST}, v13")
        a("s_nop 1")
        a(f"s_sub_u32 s{S_FAST}, s{S_FAST}, 1")
        set_exec(a,1,0)
        store_mode(a, f"global_store_dwordx4 v10, {vr(V_X+8,4)}, {sr(P_WS,2)}", True)
        if cfg.LATE_X: a(f"global_store_dwordx4 v11, {vr(V_X+8,4)}, {sr(P_WS,2)} sc1")
        full_exec(a)
        a(f"v_mov_b32 v10, {L_SEL}")
        a(f"v_mov_b32 v11, 0")
        a(f"ds_write_b32 v10, v11")
        a("L_nokd:")
    a(f"s_cmp_lt_u32 s{S_W}, {NSW}")
    a("s_cbranch_scc1 L_nohv")
    a(f"s_sub_u32 s{S_T0}, s{S_W}, {NSW}")
    a(f"s_mul_i32 s{S_T0}, s{S_T0}, {HV*4096}")
    if cfg.ROT or cfg.ROTX:
        assert HV==1
        a(f"s_add_u32 s{S_T0}, s{S_T0}, s{S_ROT}")
        a(f"s_and_b32 s{S_T0}, s{S_T0}, 0xfffff")
    for t in range(HV):
        for n in range(4):
            a(f"buffer_load_dwordx4 {vr(V_RING+t*16+n*4,4)}, v{V_VOFF}, {sr(SRD_V,4)}, s{S_T0} offen offset:{n*1024} {cfg.VFLAGS}")
        if t<HV-1: a(f"s_add_u32 s{S_T0}, s{S_T0}, 4096")
    a("L_nohv:")
    a(f"v_mov_b32 v12, {L_MODE}")
    a(f"ds_read_b32 v13, v12")
    a(f"v_mov_b32 v11, {L_ML}")
    a(f"ds_read_b128 {vr(V_X,4)}, v11")
    a(f"ds_read_b128 {vr(V_X+4,4)}, v11 offset:16")
    a(f"s_lshl_b32 s{S_T4}, s{S_W}, 11")
    a(f"s_add_u32 s{S_T4}, s{S_T4}, {L_SC}")
    a(f"v_lshlrev_b32 v10, 5, v{V_LANE}")
    a(f"v_add_u32 v10, s{S_T4}, v10")
    a(f"ds_read_b128 {vr(V_T,4)}, v10")
    a(f"ds_read_b128 {vr(V_T+4,4)}, v10 offset:16")
    a("s_waitcnt lgkmcnt(2)")
    a(f"v_readfirstlane_b32 s{S_FAST}, v13")
    a(f"v_max3_f32 v{V_MAX}, v{V_X}, v{V_X+1}, v{V_X+2}")
    a(f"s_sub_u32 s{S_FAST}, s{S_FAST}, 1")
    a(f"v_max3_f32 v{V_MAX}, v{V_MAX}, v{V_X+3}, v{V_X+4}")
    a(f"v_max3_f32 v{V_MAX}, v{V_MAX}, v{V_X+5}, v{V_X+6}")
    a(f"v_max_f32 v{V_MAX}, v{V_MAX}, v{V_X+7}")
    a("s_waitcnt lgkmcnt(0)")
    for i in range(8):
        a(f"v_sub_f32 v{V_T+8+i}, v{V_T+i}, v{V_MAX}")
        a(f"v_mul_f32 v{V_T+8+i}, s{S_LOG2E}, v{V_T+8+i}")
        a(f"v_exp_f32 v{V_T+8+i}, v{V_T+8+i}")
    a("s_nop 0")
    a(f"v_add_f32 v{V_T+16}, v{V_T+8}, v{V_T+9}")
    for i in range(2,8):
        a(f"v_add_f32 v{V_T+16}, v{V_T+16}, v{V_T+8+i}")
    wave_sum(a, V_T+16, V_T+17)
    a(f"s_lshl_b32 s{S_T0}, s{S_W}, 2")
    a(f"s_add_u32 s{S_T0}, s{S_T0}, {L_LS}")
    a(f"v_mov_b32 v11, s{S_T0}")
    a(f"ds_write_b32 v11, v{V_T+16}")
    a("s_waitcnt lgkmcnt(0)")
    a("s_barrier")
    a(f"v_mov_b32 v11, {L_LS}")
    a(f"ds_read_b128 {vr(V_X,4)}, v11")
    a(f"ds_read_b128 {vr(V_X+4,4)}, v11 offset:16")
    a("s_waitcnt lgkmcnt(0)")
    a(f"v_add_f32 v{V_T+16}, v{V_X}, v{V_X+1}")
    for k in range(2,8):
        a(f"v_add_f32 v{V_T+16}, v{V_T+16}, v{V_X+k}")
    a(f"v_rcp_f32 v{V_T+17}, v{V_T+16}")
    a("s_nop 0")
    a(f"v_fma_f32 v{V_T+18}, -v{V_T+16}, v{V_T+17}, 1.0")
    a(f"v_fma_f32 v{V_T+17}, v{V_T+18}, v{V_T+17}, v{V_T+17}")
    for i in range(8):
        a(f"v_mul_f32 v{V_T+8+i}, v{V_T+8+i}, v{V_T+17}")
        a(f"v_cvt_pk_bf16_f32 v{V_T+8+i}, v{V_T+8+i}, v{V_T+8+i}")
    a(f"ds_write_b128 v10, {vr(V_T+8,4)}")
    a(f"ds_write_b128 v10, {vr(V_T+12,4)} offset:16")
    a("s_waitcnt lgkmcnt(0)")
    a("s_barrier")
    stamp(a,cfg,4)
    def ands(dst,pp):
        for w in range(4):
            a(f"v_and_b32 v{dst+w}, v{pp}, v{V_MASK+w}")
    a(f"s_cmp_lt_u32 s{S_W}, {NSW}")
    a("s_cbranch_scc1 L_vstream")
    if cfg.LATE_L:
        a(f"s_cmp_lg_u32 s{S_W}, 2")
        a("s_cbranch_scc1 L_nokd2")
        a(f"s_waitcnt vmcnt({(2 if cfg.LATE_X else 1)+4*HV})")
        a(f"v_xor_b32 v11, s{S_TAG}, v{V_RDY+2}")
        a(f"v_xor_b32 v15, s{S_TAG+1}, v{V_RDY+3}")
        a(f"v_or_b32 v11, v11, v15")
        a(f"v_cmp_eq_u32 vcc, 0, v11")
        if cfg.LATE_X:
            a(f"v_xor_b32 v11, s{S_TAG}, v{V_KX+2}")
            a(f"v_xor_b32 v15, s{S_TAG+1}, v{V_KX+3}")
            a(f"v_or_b32 v11, v11, v15")
            a(f"v_cmp_eq_u32 {sr(S_B1,2)}, 0, v11")
        a("s_nop 1")
        a(f"s_bcnt1_i32_b32 s{S_T0}, vcc_lo")
        if cfg.LATE_X:
            a(f"s_and_b32 s{S_T1}, s{S_B1}, 0xff")
            a(f"s_bcnt1_i32_b32 s{S_T1}, s{S_T1}")
        if cfg.EARLY_L:
            a(f"s_cmp_le_u32 s{S_T0}, {cfg.EARLY_THR}")
            a(f"s_cselect_b32 s{S_T2}, 2, 0")
            a(f"s_cmp_ge_u32 s{S_T0}, {cfg.LATE_THR}")
            a(f"s_cselect_b32 s{S_T0}, 1, s{S_T2}")
        else:
            a(f"s_cmp_ge_u32 s{S_T0}, {cfg.LATE_THR}")
            a(f"s_cselect_b32 s{S_T0}, 1, 0")
        if cfg.LATE_X:
            a(f"s_cmp_ge_u32 s{S_T1}, {cfg.LATE_X}")
            a(f"s_cselect_b32 s{S_T0}, 1, s{S_T0}")
        a(f"v_mov_b32 v11, {L_SEL}")
        a(f"v_mov_b32 v15, s{S_T0}")
        a(f"ds_write_b32 v11, v15")
        a("L_nokd2:")
    a(f"s_sub_u32 s{S_T0}, s{S_W}, {NSW}")
    a(f"s_mul_i32 s{S_T0}, s{S_T0}, {HV*64}")
    a(f"s_add_u32 s{S_T0}, s{S_T0}, {L_SC}")
    a(f"v_lshlrev_b32 v10, 4, v3")
    a(f"v_add_u32 v10, s{S_T0}, v10")
    for t in range(HV):
        a(f"ds_read_b128 {vr(V_PP0,4)}, v10 offset:{t*64}")
        a(f"s_waitcnt vmcnt({4*(HV-1-t)}) lgkmcnt(0)")
        for n in range(4):
            A=V_A0 if n%2==0 else V_A1
            ands(A,V_PP0+n)
            a("s_nop 1")
            a(f"v_mfma_f32_16x16x32_bf16 {vr(V_OACC,4)}, {vr(A,4)}, {vr(V_RING+t*16+4*n,4)}, {vr(V_OACC,4)}")
    a("s_nop 7")
    set_exec(a, -1, 0)
    a(f"ds_write_b128 v{PA_OW}, {vr(V_OACC,4)}")
    full_exec(a)
    frag_reads(a,"ogd")
    if cfg.CODEPF:
        a(f"s_cmp_lg_u32 s{S_W}, 4")
        a("s_cbranch_scc1 L_pf2_skip")
        emit_codepf(a,cfg,"L_pf2","L_vdone","L_exit")
        a("L_pf2_skip:")
    a("s_waitcnt vmcnt(0) lgkmcnt(0)")
    a("s_branch L_vdone")
    a("L_vstream:")
    a(f"s_add_u32 s{S_T0}, s{S_W}, {NH*HV}")
    a(f"s_lshl_b32 s{S_T0}, s{S_T0}, 6")
    a(f"s_add_u32 s{S_T0}, s{S_T0}, {L_SC}")
    a(f"v_lshlrev_b32 v10, 4, v3")
    a(f"v_add_u32 v{V_PPR}, s{S_T0}, v10")
    a(f"ds_read_b128 {vr(V_PP0,4)}, v{V_PPR}")
    import math as _m
    base_ring=[(NK-LK+v)%LK for v in range(L)]
    spare=[x for x in range(16) if x not in base_ring]
    def vbody2(jv, rel, wait_n, slot, last_tile):
        n=jv%4; par=(jv//4)%2
        pp = V_PP0 if par==0 else V_PP1
        ppn = V_PP1 if par==0 else V_PP0
        if n==0:
            if not last_tile:
                a(f"ds_read_b128 {vr(ppn,4)}, v{V_PPR} offset:{(rel+1)*NSW*64}")
                a(f"s_waitcnt lgkmcnt(1)")
                a("s_nop 0")
            else:
                a(f"s_waitcnt lgkmcnt(0)")
                a("s_nop 0")
        A=V_A0 if n%2==0 else V_A1
        ands(A,pp+n)
        a(f"s_waitcnt vmcnt({wait_n})")
        a("s_nop 0")
        a(f"v_mfma_f32_16x16x32_bf16 {vr(V_OACC,4)}, {vr(A,4)}, {vr(V_RING+slot*4,4)}, {vr(V_OACC,4)}")
    def vissue(jn, slot):
        a(f"buffer_load_dwordx4 {vr(V_RING+slot*4,4)}, v{V_VOFF}, {sr(SRD_V,4)}, s{S_KOFF} offen offset:{(jn%4)*1024} {cfg.VFLAGS}")
        if jn%4==3:
            a(f"s_add_u32 s{S_KOFF}, s{S_KOFF}, {TSTEP}")
            if cfg.ROT or cfg.ROTX: a(f"s_and_b32 s{S_KOFF}, s{S_KOFF}, 0xfffff")
    S0=cfg.SEG0 if cfg.LATE_L else 0
    assert S0%8==0
    for jv in range(S0):
        vbody2(jv, jv//4, L-1, base_ring[jv%L], False)
        vissue(jv+L, base_ring[jv%L])
    if S0: a(f"v_add_u32 v{V_PPR}, {(S0//4)*NSW*64}, v{V_PPR}")
    def vstream(LV, sfx):
        cur=[base_ring[(S0+i)%L] for i in range(L)]
        j0=S0
        if LV<L:
            for d in range(L-LV):
                vbody2(j0, (j0-S0)//4, L-1-d, cur[0], False); cur=cur[1:]; j0+=1
            ring=cur
        else:
            ring=cur+spare[:LV-L]
            for k in range(L,LV): vissue(S0+k, ring[k])
        per=LV*4//_m.gcd(LV,4)
        if (per//4)%2: per*=2
        nl=(NV-j0-LV)//per
        a(f"s_mov_b32 s{S_LOOP}, {nl}")
        a(".p2align 6")
        a(f"L_vloop{sfx}:")
        for i in range(per):
            vbody2(j0+i, (j0+i-S0)//4, LV-1, ring[i%LV], False)
            vissue(j0+i+LV, ring[i%LV])
        a(f"v_add_u32 v{V_PPR}, {(per//4)*NSW*64}, v{V_PPR}")
        a(f"s_sub_u32 s{S_LOOP}, s{S_LOOP}, 1")
        a(f"s_cmp_lg_u32 s{S_LOOP}, 0")
        a(f"s_cbranch_scc1 L_vloop{sfx}")
        start=nl*per
        for i in range(start,NV-j0):
            jv=j0+i
            vbody2(jv, (jv-S0-start)//4, min(LV-1, NV-1-jv), ring[i%LV], jv//4==VT-1)
            if jv+LV<NV: vissue(jv+LV, ring[i%LV])
    if cfg.LATE_L:
        a(f"v_mov_b32 v10, {L_SEL}")
        a(f"ds_read_b32 v11, v10")
        a("s_waitcnt lgkmcnt(0)")
        a(f"v_readfirstlane_b32 s{S_T0}, v11")
        a("s_nop 1")
        a(f"s_cmp_eq_u32 s{S_T0}, 1")
        a("s_cbranch_scc1 L_vlate")
        if cfg.EARLY_L:
            a(f"s_cmp_eq_u32 s{S_T0}, 2")
            a("s_cbranch_scc1 L_vearly")
    vstream(L,"")
    if cfg.LATE_L:
        a("s_branch L_vdone")
        a.ool(True)
        a("L_vlate:")
        vstream(cfg.LATE_L,"b")
        a("s_branch L_vdone")
        if cfg.EARLY_L:
            a("L_vearly:")
            vstream(cfg.EARLY_L,"c")
            a("s_branch L_vdone")
        a.ool(False)
    a("L_vdone:")
    stamp(a,cfg,5)
    return a, None

PA=208
PA_O=PA+0; PA_T2=PA+1; PA_DW=PA+2; PA_R2=PA+3; PA_P2=PA+4; PA_T3A=PA+5; PA_T3B=PA+6; PA_T3W=PA+7; PA_T3R=PA+8; PA_H=PA+9
PA_T4=PA+10; PA_LNBW=PA+11; PA_HSW=PA+12; PA_LNBR=PA+13; PA_GP=PA+14; PA_ACT=PA+15; PA_T6=PA+16; PA_OUT=PA+17; PA_HSR=PA+18
PA_OW=PA+19; PA_OR=PA+20; PA_TR=PA+21
PA_T5B=PA+24
PA_T7=PA+28
V_XRES=PA+36
V_RDY=PA+40
V_KX=PA+44
SM_LNB=8; SM_HS=10
R_T1=2; R_RED0=2
R_W0=3

def emit_precompute(a, cfg):
    global SM_LNB, SM_HS
    T0,T1,T2,T3,T4,T5=S_T0,S_T1,S_T2,S_T3,S_T4,S_T5
    a(f"s_lshl_b32 s{T0}, s{S_H}, 3")
    a(f"s_add_u32 s{T0}, s{T0}, s{S_B}")
    a(f"s_lshl_b32 s{T0}, s{T0}, 8")
    a(f"s_add_u32 s{T0}, s{T0}, {W_OB}")
    a(f"v_lshlrev_b32 v10, 2, v{V_LANE}")
    a(f"v_add_u32 v{PA_O}, s{T0}, v10")
    a(f"s_lshl_b32 s{T0}, s{S_W}, 9")
    a(f"s_add_u32 s{T0}, s{T0}, {L_RED}")
    a(f"v_lshlrev_b32 v11, 5, v2")
    a(f"v_lshlrev_b32 v12, 4, v3")
    a(f"v_add3_u32 v{PA_OW}, v11, v12, s{T0}")
    a(f"v_lshlrev_b32 v11, 3, v{V_LANE}")
    a(f"v_add_u32 v{PA_OR}, {L_RED}, v11")
    a(f"v_lshlrev_b32 v11, 3, v3")
    a(f"v_add_u32 v11, v11, v4")
    a(f"v_lshlrev_b32 v11, 7, v11")
    a(f"v_lshlrev_b32 v13, 3, v5")
    a(f"v_add_u32 v{PA_TR}, v11, v13")
    a(f"s_lshr_b32 s{T4}, s{S_R}, 4")
    a(f"s_and_b32 s{T5}, s{S_R}, 15")
    a(f"v_and_b32 v14, 7, v{V_LANE}")
    a(f"s_lshl_b32 s{T0}, s{S_X}, 2")
    a(f"s_lshl_b32 s{T1}, s{T4}, 1")
    a(f"s_add_u32 s{T0}, s{T0}, s{T1}")
    a(f"s_lshr_b32 s{T1}, s{S_W}, 2")
    a(f"s_add_u32 s{T0}, s{T0}, s{T1}")
    a(f"s_lshl_b32 s{T0}, s{T0}, 11")
    a(f"s_and_b32 s{T1}, s{S_W}, 3")
    a(f"s_lshl_b32 s{T1}, s{T1}, 6")
    a(f"s_add_u32 s{T0}, s{T0}, s{T1}")
    a(f"s_add_u32 s{T0}, s{T0}, {W_OB}")
    a(f"v_lshlrev_b32 v10, 8, v14")
    a(f"v_add3_u32 v{PA_T2}, v10, v12, s{T0}")
    a(f"s_lshl_b32 s{T0}, s{S_W}, 11")
    a(f"s_add_u32 s{T0}, s{T0}, {L_SC}")
    a(f"v_lshlrev_b32 v10, 8, v2")
    a(f"v_xor_b32 v11, v3, v5")
    a(f"v_lshlrev_b32 v11, 4, v11")
    a(f"v_add3_u32 v{PA_DW}, v10, v11, s{T0}")
    a(f"s_sub_u32 s{T0}, s{S_W}, {R_RED0}")
    a(f"s_lshl_b32 s{T0}, s{T0}, 6")
    a(f"v_add_u32 v10, s{T0}, v{V_LANE}")
    a(f"v_and_b32 v10, 127, v10")
    a(f"v_lshrrev_b32 v11, 4, v10")
    a(f"v_and_b32 v13, 3, v11")
    a(f"v_xor_b32 v13, v13, v10")
    a(f"v_lshlrev_b32 v13, 4, v13")
    a(f"v_add_u32 v{PA_R2}, {L_SC}, v13")
    a(f"s_lshl_b32 s{T0}, s{S_X}, 1")
    a(f"s_add_u32 s{T0}, s{T0}, s{T4}")
    a(f"s_mul_i32 s{T0}, s{T0}, {cfg.APP}")
    a(f"s_lshl_b32 s{T1}, s{T5}, 8")
    a(f"s_add_u32 s{T0}, s{T0}, s{T1}")
    a(f"s_add_u32 s{T0}, s{T0}, {W_AP}")
    a(f"v_lshrrev_b32 v11, 4, v10")
    a(f"v_mul_u32_u24 v11, {cfg.APB}, v11")
    a(f"v_lshlrev_b32 v13, 4, v2")
    a(f"v_add3_u32 v{PA_P2}, v11, v13, s{T0}")
    a(f"s_lshr_b32 s{T0}, s{S_R}, 2")
    a(f"s_mul_i32 s{T0}, s{T0}, {cfg.APB}")
    a(f"s_and_b32 s{T1}, s{S_R}, 3")
    a(f"s_lshl_b32 s{T1}, s{T1}, 10")
    a(f"s_add_u32 s{T0}, s{T0}, s{T1}")
    a(f"s_mul_i32 s{T1}, s{S_W}, {2*cfg.APP}")
    a(f"s_add_u32 s{T0}, s{T0}, s{T1}")
    a(f"s_add_u32 s{T0}, s{T0}, {W_AP}")
    a(f"v_add_u32 v{PA_T3A}, s{T0}, v{V_VOFF}")
    a(f"v_add_u32 v{PA_T3B}, {cfg.APP}, v{PA_T3A}")
    RED3=L_RED+4096
    a(f"s_lshl_b32 s{T0}, s{S_W}, 10")
    a(f"s_add_u32 s{T0}, s{T0}, {RED3}")
    a(f"v_add_u32 v{PA_T3W}, s{T0}, v{V_VOFF}")
    a(f"v_add_u32 v{PA_T3R}, {RED3}, v{V_VOFF}")
    a(f"s_lshr_b32 s{T0}, s{S_R}, 2")
    a(f"s_lshl_b32 s{T1}, s{S_X}, 3")
    a(f"s_add_u32 s{T0}, s{T0}, s{T1}")
    a(f"s_lshl_b32 s{T0}, s{T0}, 11")
    a(f"s_and_b32 s{T1}, s{S_R}, 3")
    a(f"s_lshl_b32 s{T1}, s{T1}, 9")
    a(f"s_add_u32 s{T0}, s{T0}, s{T1}")
    a(f"s_add_u32 s{T0}, s{T0}, {W_HB}")
    a(f"v_lshlrev_b32 v10, 3, v{V_LANE}")
    a(f"v_add_u32 v{PA_H}, s{T0}, v10")
    a(f"s_lshr_b32 s{T0}, s{S_R}, 2")
    a(f"s_lshl_b32 s{T0}, s{T0}, 11")
    a(f"s_add_u32 s{T0}, s{T0}, s{T1}")
    a(f"v_add_u32 v9, s{T0}, v10")
    a(f"s_lshl_b32 s{T0}, s{S_X}, 3")
    a(f"s_add_u32 s{T0}, s{T0}, s{S_W}")
    a(f"s_lshl_b32 s{T0}, s{T0}, 11")
    a(f"s_add_u32 s{T0}, s{T0}, {W_HB}")
    a(f"v_lshlrev_b32 v10, 5, v{V_LANE}")
    a(f"v_add_u32 v{PA_T4}, s{T0}, v10")
    a(f"s_mul_i32 s{T2}, s{S_R}, 37")
    a(f"s_lshr_b32 s{T2}, s{T2}, 8")
    a(f"s_mul_i32 s{T3}, s{T2}, 7")
    a(f"s_sub_u32 s{T3}, s{S_R}, s{T3}")
    a(f"s_lshl_b32 s{T0}, s{T2}, 4")
    a(f"v_subrev_u32 v10, s{T0}, v{V_LANE}")
    a(f"v_cmp_gt_u32 {sr(SM_LNB,2)}, 16, v10")
    a(f"s_mul_i32 s{T1}, s{S_W}, {LNB_P}")
    a(f"s_add_u32 s{T1}, s{T1}, {L_LNB}")
    a(f"v_lshlrev_b32 v10, 5, v10")
    a(f"v_add_u32 v{PA_LNBW}, s{T1}, v10")
    a(f"s_lshl_b32 s{T0}, s{S_R}, 1")
    a(f"v_subrev_u32 v10, s{T0}, v{V_LANE}")
    a(f"v_cmp_gt_u32 {sr(SM_HS,2)}, 2, v10")
    a(f"v_lshlrev_b32 v10, 5, v10")
    a(f"v_add_u32 v{PA_HSW}, {L_HS}, v10")
    a(f"v_mul_u32_u24 v10, {LNB_P}, v14")
    a(f"v_add_u32 v10, v10, v12")
    a(f"v_add_u32 v{PA_LNBR}, {L_LNB}, v10")
    a(f"s_mul_i32 s{T0}, s{S_X}, 28")
    a(f"s_add_u32 s{T0}, s{T0}, s{S_R}")
    a(f"s_lshl_b32 s{T0}, s{T0}, 12")
    a(f"s_lshr_b32 s{T1}, s{S_W}, 2")
    a(f"s_lshl_b32 s{T1}, s{T1}, 11")
    a(f"s_add_u32 s{T0}, s{T0}, s{T1}")
    a(f"s_and_b32 s{T1}, s{S_W}, 3")
    a(f"s_lshl_b32 s{T1}, s{T1}, 9")
    a(f"s_add_u32 s{T0}, s{T0}, s{T1}")
    a(f"s_add_u32 s{T0}, s{T0}, {W_GP}")
    a(f"v_lshlrev_b32 v10, 6, v2")
    a(f"v_add3_u32 v{PA_GP}, v10, v12, s{T0}")
    a(f"s_mul_i32 s{T0}, s{S_X}, 28")
    a(f"s_add_u32 s{T0}, s{T0}, s{T3}")
    a(f"s_lshl_b32 s{T0}, s{T0}, 12")
    a(f"s_lshl_b32 s{T1}, s{T2}, 7")
    a(f"s_add_u32 s{T0}, s{T0}, s{T1}")
    a(f"s_add_u32 s{T0}, s{T0}, {W_GP}")
    a(f"v_lshrrev_b32 v10, 5, v{V_LANE}")
    a(f"v_and_b32 v11, 31, v{V_LANE}")
    a(f"v_lshrrev_b32 v13, 3, v11")
    a(f"v_lshlrev_b32 v13, 9, v13")
    a(f"v_lshl_add_u32 v13, v10, 6, v13")
    a(f"v_and_b32 v15, 7, v11")
    a(f"v_lshlrev_b32 v15, 3, v15")
    a(f"v_add3_u32 v{PA_T5B}, v13, v15, s{T0}")
    for k in range(1,4):
        a(f"v_add_u32 v{PA_T5B+k}, {k*7*4096}, v{PA_T5B}")
    a(f"s_lshl_b32 s{T0}, s{S_X}, 3")
    a(f"s_lshl_b32 s{T1}, s{T2}, 1")
    a(f"s_add_u32 s{T0}, s{T0}, s{T1}")
    a(f"s_mul_i32 s{T0}, s{T0}, 896")
    a(f"s_lshl_b32 s{T1}, s{T3}, 7")
    a(f"s_add_u32 s{T0}, s{T0}, s{T1}")
    a(f"s_add_u32 s{T0}, s{T0}, {W_ACT}")
    a(f"v_mul_u32_u24 v13, 896, v10")
    a(f"v_lshlrev_b32 v15, 2, v11")
    a(f"v_add3_u32 v{PA_ACT}, v13, v15, s{T0}")
    a(f"s_mul_i32 s{T0}, s{S_X}, {8*896}")
    a(f"s_mul_i32 s{T1}, s{T4}, 448")
    a(f"s_add_u32 s{T0}, s{T0}, s{T1}")
    a(f"s_lshl_b32 s{T1}, s{S_W}, 6")
    a(f"s_add_u32 s{T0}, s{T0}, s{T1}")
    a(f"s_add_u32 s{T0}, s{T0}, {W_ACT}")
    a(f"v_mul_u32_u24 v13, 896, v14")
    a(f"v_add3_u32 v{PA_T6}, v13, v12, s{T0}")
    a(f"s_mul_i32 s{T0}, s{S_X}, {cfg.APB}")
    a(f"s_lshl_b32 s{T1}, s{S_R}, 7")
    a(f"s_add_u32 s{T0}, s{T0}, s{T1}")
    a(f"s_add_u32 s{T0}, s{T0}, {W_DP}")
    a(f"v_mul_u32_u24 v13, {8*cfg.APP}, v10")
    a(f"v_lshlrev_b32 v15, 2, v11")
    a(f"v_add3_u32 v{PA_T7}, v13, v15, s{T0}")
    for k in range(1,8):
        a(f"v_add_u32 v{PA_T7+k}, {k*cfg.APP}, v{PA_T7}")
    a(f"s_lshl_b32 s{T0}, s{S_X}, 11")
    a(f"s_lshl_b32 s{T1}, s{S_R}, 6")
    a(f"s_add_u32 s{T0}, s{T0}, s{T1}")
    a(f"v_lshlrev_b32 v15, 1, v11")
    a(f"v_add_u32 v{PA_OUT}, s{T0}, v15")
    a(f"v_add_u32 v{PA_HSR}, {L_HS}, v15")

def emit_codepf(a, cfg, lab, first, last):
    a(f"s_getpc_b64 {sr(S_B1,2)}")
    a(f"{lab}:")
    a(f"s_add_u32 s{S_B1}, s{S_B1}, ({first}-{lab})&0xffffffff")
    a(f"s_addc_u32 s{S_B1+1}, s{S_B1+1}, ({first}-{lab})>>32")
    a(f"v_lshlrev_b32 v10, 6, v{V_LANE}")
    a(f"s_mov_b32 s{S_T0}, {last}-{first}")
    a(f"{lab}_loop:")
    a(f"v_cmp_gt_u32 vcc, s{S_T0}, v10")
    a(f"s_and_saveexec_b64 {sr(S_EX,2)}, vcc")
    a(f"s_cbranch_execz {lab}_done")
    a(f"global_load_dword v11, v10, {sr(S_B1,2)}")
    a(f"s_mov_b64 exec, {sr(S_EX,2)}")
    a(f"v_add_u32 v10, 4096, v10")
    a(f"s_branch {lab}_loop")
    a(f"{lab}_done:")
    a(f"s_mov_b64 exec, {sr(S_EX,2)}")
    a("s_waitcnt vmcnt(0)")

def emit_rdycheck(a, cfg):
    f=1 if cfg.FASTMODE else 0
    a(f"s_cmp_lg_u32 s{S_W}, 4")
    a("s_cbranch_scc1 L_rdy_b")
    a(f"s_cmp_lg_u32 s{S_R}, 0")
    a("s_cbranch_scc1 L_rdy_done")
    a(f"s_lshl_b32 s{S_T0}, s{S_X}, 9")
    a(f"s_add_u32 s{S_T0}, s{S_T0}, {W_RDY}")
    a(f"v_and_b32 v10, 31, v{V_LANE}")
    a(f"v_lshlrev_b32 v10, 4, v10")
    a(f"v_add_u32 v10, s{S_T0}, v10")
    lp=a.label("rdy"); dn=a.label("rdyok")
    a(f"s_mov_b32 s{S_SPIN}, {cfg.SPIN}")
    a(f"{lp}:")
    a(f"global_load_dwordx4 {vr(V_RDY,4)}, v10, {sr(P_WS,2)} sc1")
    a("s_waitcnt vmcnt(0)")
    a(f"v_xor_b32 v11, s{S_TAG}, v{V_RDY+2}")
    a(f"v_xor_b32 v15, s{S_TAG+1}, v{V_RDY+3}")
    a(f"v_or_b32 v11, v11, v15")
    a(f"v_cmp_ne_u32 vcc, 0, v11")
    a(f"s_cbranch_vccz {dn}")
    a("s_sleep 16")
    a(f"s_sub_u32 s{S_SPIN}, s{S_SPIN}, 1")
    a(f"s_cmp_lg_u32 s{S_SPIN}, 0")
    a(f"s_cbranch_scc1 {lp}")
    a(f"{dn}:")
    a(f"v_readfirstlane_b32 s{S_T0}, v{V_RDY}")
    a("s_nop 1")
    a(f"v_cmp_ne_u32 vcc, s{S_T0}, v{V_RDY}")
    a(f"s_mov_b32 s{S_T2}, {f}")
    a("s_nop 1")
    a(f"s_cmp_eq_u64 vcc, 0")
    a(f"s_cselect_b32 s{S_T2}, s{S_T2}, 0")
    a(f"s_lshl_b32 s{S_T0}, s{S_X}, 4")
    a(f"s_add_u32 s{S_T0}, s{S_T0}, {W_GRDY}")
    a(f"v_mov_b32 v10, s{S_T0}")
    a(f"v_mov_b32 v12, s{S_T2}")
    a(f"v_mov_b32 v13, 0")
    a(f"v_mov_b32 v14, s{S_TAG}")
    a(f"v_mov_b32 v15, s{S_TAG+1}")
    set_exec(a,1,0)
    a(f"global_store_dwordx4 v10, v[12:15], {sr(P_WS,2)} sc1")
    full_exec(a)
    a("s_branch L_rdy_done")
    a("L_rdy_b:")
    a(f"s_cmp_lg_u32 s{S_W}, 5")
    a("s_cbranch_scc1 L_rdy_done")
    a(f"v_and_b32 v10, 7, v{V_LANE}")
    a(f"v_lshlrev_b32 v10, 4, v10")
    a(f"v_add_u32 v10, {W_GRDY}, v10")
    lp=a.label("grdy"); dn=a.label("grdyok")
    a(f"s_mov_b32 s{S_SPIN}, {cfg.SPIN}")
    a(f"{lp}:")
    set_exec(a,"0xff",0)
    a(f"global_load_dwordx4 {vr(V_RDY,4)}, v10, {sr(P_WS,2)} sc1")
    a("s_waitcnt vmcnt(0)")
    a(f"v_xor_b32 v11, s{S_TAG}, v{V_RDY+2}")
    a(f"v_xor_b32 v15, s{S_TAG+1}, v{V_RDY+3}")
    a(f"v_or_b32 v11, v11, v15")
    a(f"v_cmp_ne_u32 vcc, 0, v11")
    full_exec(a)
    a(f"s_cbranch_vccz {dn}")
    a("s_sleep 64")
    a(f"s_sub_u32 s{S_SPIN}, s{S_SPIN}, 1")
    a(f"s_cmp_lg_u32 s{S_SPIN}, 0")
    a(f"s_cbranch_scc1 {lp}")
    a(f"{dn}:")
    a(f"v_readlane_b32 s{S_T2}, v{V_RDY}, s{S_X}")
    a(f"v_mov_b32 v10, {L_MODE}")
    a("s_nop 1")
    a(f"s_add_u32 s{S_T2}, s{S_T2}, 1")
    a(f"v_mov_b32 v12, s{S_T2}")
    a(f"ds_write_b32 v10, v12")
    a("L_rdy_done:")

def poll_masked(a, name, loads, regs, cfg, tmp, nloads=1, stagger=0):
    ps = cfg.PSX if name in ('t3','t7') else cfg.PSLEEP
    lp=a.label(name+"_poll"); dn=a.label(name+"_ok")
    a(f"s_mov_b64 {sr(S_EX,2)}, exec")
    a(f"s_mov_b32 s{S_SPIN}, {cfg.SPIN}")
    if stagger:
        loads()
        a(f"s_sleep {stagger}")
    a(f"{lp}:")
    loads()
    a(f"s_waitcnt vmcnt({nloads if stagger else 0})")
    rs=list(regs)
    if len(rs)>=3:
        a(f"v_max3_u32 v{tmp}, v{rs[0]}, v{rs[1]}, v{rs[2]}"); i=3
    else:
        a(f"v_max_u32 v{tmp}, v{rs[0]}, v{rs[1]}"); i=2
    while i<len(rs):
        if i+1<len(rs):
            a(f"v_max3_u32 v{tmp}, v{tmp}, v{rs[i]}, v{rs[i+1]}"); i+=2
        else:
            a(f"v_max_u32 v{tmp}, v{tmp}, v{rs[i]}"); i+=1
    a(f"v_cmp_eq_u32 vcc, -1, v{tmp}")
    a(f"s_mov_b64 exec, vcc")
    a(f"s_cbranch_execz {dn}")
    if ps: a(f"s_sleep {ps}")
    a(f"s_sub_u32 s{S_SPIN}, s{S_SPIN}, 1")
    a(f"s_cmp_lg_u32 s{S_SPIN}, 0")
    a(f"s_cbranch_scc1 {lp}")
    a(f"{dn}:")
    a(f"s_mov_b64 exec, {sr(S_EX,2)}")

def frag_reads(a, which):
    WB=V_RING; WO_F=WB; GU_F=WB+16; WD_F=WB+48
    if "o" in which:
        a(f"s_lshl_b32 s{S_T0}, s{S_W}, 12")
        a(f"s_add_u32 s{S_T1}, s{S_T0}, {L_WO}")
        a(f"v_add_u32 v13, s{S_T1}, v{PA_TR}")
        for t in range(4):
            for hf in range(2):
                a(f"ds_read_b64_tr_b16 {vr(WO_F+4*t+2*hf,2)}, v13 offset:{hf*4*128+32*t}")
    if "g" in which:
        a(f"s_lshr_b32 s{S_T0}, s{S_W}, 2")
        a(f"s_lshl_b32 s{S_T0}, s{S_T0}, 15")
        a(f"s_and_b32 s{S_T1}, s{S_W}, 3")
        a(f"s_lshl_b32 s{S_T1}, s{S_T1}, 5")
        a(f"s_add_u32 s{S_T0}, s{S_T0}, s{S_T1}")
        a(f"s_add_u32 s{S_T0}, s{S_T0}, {L_WG}")
        a(f"v_add_u32 v15, s{S_T0}, v{PA_TR}")
        for s in range(8):
            for hf in range(2):
                a(f"ds_read_b64_tr_b16 {vr(GU_F+4*s+2*hf,2)}, v15 offset:{(32*s+4*hf)*128}")
    if "d" in which:
        a(f"s_lshl_b32 s{S_T0}, s{S_W}, 12")
        a(f"s_add_u32 s{S_T1}, s{S_T0}, {L_WD}")
        a(f"v_add_u32 v11, s{S_T1}, v{PA_TR}")
        for t in range(4):
            for hf in range(2):
                a(f"ds_read_b64_tr_b16 {vr(WD_F+4*t+2*hf,2)}, v11 offset:{hf*4*128+32*t}")

def layernorm2(a, vin, vf, vout, t):
    for i in range(8):
        a(f"v_lshlrev_b32 v{vf+2*i}, 16, v{vin+i}")
        a(f"v_and_b32 v{vf+2*i+1}, 0xffff0000, v{vin+i}")
    a(f"v_readfirstlane_b32 s{S_T4}, v{vf}")
    a("s_nop 1")
    a(f"v_mov_b32 v{t+6}, s{S_T4}")
    a(f"v_mov_b32 v{t+7}, s{S_T4}")
    for i in range(8):
        a(f"v_pk_add_f32 {vr(vf+2*i,2)}, {vr(vf+2*i,2)}, {vr(t+6,2)} neg_lo:[0,1] neg_hi:[0,1]")
    a(f"v_pk_add_f32 {vr(t,2)}, {vr(vf,2)}, {vr(vf+2,2)}")
    a(f"v_pk_mul_f32 {vr(t+2,2)}, {vr(vf,2)}, {vr(vf,2)}")
    a(f"v_pk_fma_f32 {vr(t+2,2)}, {vr(vf+2,2)}, {vr(vf+2,2)}, {vr(t+2,2)}")
    for i in range(2,8):
        a(f"v_pk_add_f32 {vr(t,2)}, {vr(t,2)}, {vr(vf+2*i,2)}")
        a(f"v_pk_fma_f32 {vr(t+2,2)}, {vr(vf+2*i,2)}, {vr(vf+2*i,2)}, {vr(t+2,2)}")
    a(f"v_add_f32 v{t}, v{t}, v{t+1}")
    a(f"v_add_f32 v{t+2}, v{t+2}, v{t+3}")
    for k in (8,4,2,1):
        a("s_nop 0")
        a(f"v_add_f32_dpp v{t}, v{t}, v{t} row_ror:{k} row_mask:0xf bank_mask:0xf")
        a("s_nop 0") if False else None
        a(f"v_add_f32_dpp v{t+2}, v{t+2}, v{t+2} row_ror:{k} row_mask:0xf bank_mask:0xf")
    a(f"v_mov_b32 v{t+1}, v{t}")
    a(f"v_mov_b32 v{t+3}, v{t+2}")
    a("s_nop 1")
    a(f"v_permlane16_swap_b32 v{t}, v{t+1}")
    a(f"v_permlane16_swap_b32 v{t+2}, v{t+3}")
    a("s_nop 1")
    a(f"v_add_f32 v{t}, v{t}, v{t+1}")
    a(f"v_add_f32 v{t+2}, v{t+2}, v{t+3}")
    a(f"v_mov_b32 v{t+1}, v{t}")
    a(f"v_mov_b32 v{t+3}, v{t+2}")
    a("s_nop 1")
    a(f"v_permlane32_swap_b32 v{t}, v{t+1}")
    a(f"v_permlane32_swap_b32 v{t+2}, v{t+3}")
    a("s_nop 1")
    a(f"v_add_f32 v{t}, v{t}, v{t+1}")
    a(f"v_add_f32 v{t+2}, v{t+2}, v{t+3}")
    a(f"v_mul_f32 v{t}, 0x3a800000, v{t}")
    a(f"v_mul_f32 v{t+2}, 0x3a800000, v{t+2}")
    a(f"v_fma_f32 v{t+2}, -v{t}, v{t}, v{t+2}")
    a(f"v_add_f32 v{t}, v{t}, v{t+6}")
    a(f"v_max_f32 v{t+2}, 0, v{t+2}")
    a(f"v_cvt_pk_bf16_f32 v{t}, v{t}, v{t+2}")
    a(f"v_and_b32 v{t+2}, 0xffff0000, v{t}")
    a(f"v_lshlrev_b32 v{t}, 16, v{t}")
    a(f"v_add_f32 v{t+2}, 0x3727c5ac, v{t+2}")
    round_bf16(a, t+2, t+2)
    a(f"v_sqrt_f32 v{t+2}, v{t+2}")
    a(f"v_mov_b32 v{t+1}, v{t}")
    round_bf16(a, t+2, t+2)
    a(f"v_rcp_f32 v{t+2}, v{t+2}")
    a("s_nop 0")
    a(f"v_mov_b32 v{t+3}, v{t+2}")
    for i in range(8):
        a(f"v_lshlrev_b32 v{vf+2*i}, 16, v{vin+i}")
        a(f"v_and_b32 v{vf+2*i+1}, 0xffff0000, v{vin+i}")
        a(f"v_pk_add_f32 {vr(vf+2*i,2)}, {vr(vf+2*i,2)}, {vr(t,2)} neg_lo:[0,1] neg_hi:[0,1]")
        a(f"v_cvt_pk_bf16_f32 v{t+4}, v{vf+2*i}, v{vf+2*i+1}")
        a(f"v_lshlrev_b32 v{vf+2*i}, 16, v{t+4}")
        a(f"v_and_b32 v{vf+2*i+1}, 0xffff0000, v{t+4}")
        a(f"v_pk_mul_f32 {vr(vf+2*i,2)}, {vr(vf+2*i,2)}, {vr(t+2,2)}")
        a(f"v_cvt_pk_bf16_f32 v{vout+i}, v{vf+2*i}, v{vf+2*i+1}")

def gen_tail(a, cfg):
    WB=V_RING; WO_F=WB; GU_F=WB+16; WD_F=WB+48
    TT=V_RING+64
    TMP=V_T+23
    NSW=cfg.NSW
    a(f"s_cmp_ge_u32 s{S_W}, {NSW}")
    a("s_cbranch_scc1 L_t0_b5")
    a("s_nop 7")
    set_exec(a, -1, 0)
    a(f"ds_write_b128 v{PA_OW}, {vr(V_OACC,4)}")
    full_exec(a)
    a("s_waitcnt lgkmcnt(0)")
    a("L_t0_b5:")
    a("s_barrier")
    a(f"s_cmp_lg_u32 s{S_W}, {R_T1}")
    a("s_cbranch_scc1 L_t1_done")
    for w in range(8):
        a(f"ds_read_b64 {vr(TT+2*w,2)}, v{PA_OR} offset:{w*512}")
    a("s_waitcnt lgkmcnt(0)")
    a(f"v_pk_add_f32 {vr(TT,2)}, {vr(TT,2)}, {vr(TT+2,2)}")
    a(f"v_pk_add_f32 {vr(TT+4,2)}, {vr(TT+4,2)}, {vr(TT+6,2)}")
    a(f"v_pk_add_f32 {vr(TT+8,2)}, {vr(TT+8,2)}, {vr(TT+10,2)}")
    a(f"v_pk_add_f32 {vr(TT+12,2)}, {vr(TT+12,2)}, {vr(TT+14,2)}")
    a(f"v_pk_add_f32 {vr(TT,2)}, {vr(TT,2)}, {vr(TT+4,2)}")
    a(f"v_pk_add_f32 {vr(TT+8,2)}, {vr(TT+8,2)}, {vr(TT+12,2)}")
    a(f"v_pk_add_f32 {vr(TT,2)}, {vr(TT,2)}, {vr(TT+8,2)}")
    a(f"v_cvt_pk_bf16_f32 v{TT}, v{TT}, v{TT+1}")
    a(f"v_min_u32 v{TT}, -2, v{TT}")
    store_mode(a, f"global_store_dword v{PA_O}, v{TT}, {sr(P_WS,2)}", True)
    a("L_t1_done:")
    stamp(a,cfg,6)
    a(f"s_cmp_ge_u32 s{S_W}, {NSW}")
    a("s_cbranch_scc1 L_t2_go")
    frag_reads(a,"ogd")
    a("L_t2_go:")
    if cfg.PD2: a(f"s_sleep {cfg.PD2}")
    poll_masked(a,"t2", lambda: a(f"global_load_dwordx4 {vr(TT+32,4)}, v{PA_T2}, {sr(P_WS,2)} sc1"), range(TT+32,TT+36), cfg, TMP, 1, cfg.PIPE_I)
    if cfg.TAILDIAG: stamp(a,cfg,9)
    a("s_waitcnt lgkmcnt(0)")
    def gemm4_reduce_publish(F, B, dp, nw, lab):
        off=16384 if dp else 0
        for t in range(4):
            a(f"v_mfma_f32_16x16x32_bf16 {vr(TT+4*t,4)}, {vr(F+4*t,4)}, {vr(B,4)}, 0")
        if nw<8:
            a(f"s_cmp_ge_u32 s{S_W}, {nw}")
            a(f"s_cbranch_scc1 {lab}_nw")
        set_exec(a, "0x00ff00ff", "0x00ff00ff")
        a("s_nop 2")
        for t in range(4):
            a(f"ds_write_b128 v{PA_DW}, {vr(TT+4*t,4)} offset:{off+64*t}")

        full_exec(a)
        a(f"{lab}_nw:")
        a("s_waitcnt lgkmcnt(0)")
        a("s_barrier")
        a(f"s_sub_u32 s{S_T0}, s{S_W}, {R_RED0}")
        a(f"s_cmp_ge_u32 s{S_T0}, 2")
        a(f"s_cbranch_scc1 {lab}_skip")
        for w in range(nw):
            a(f"ds_read_b128 {vr(TT+4*w,4)}, v{PA_R2} offset:{off+w*2048}")
        if dp: a(f"v_add_u32 v10, {W_DP-W_AP}, v{PA_P2}")
        a("s_waitcnt lgkmcnt(0)")
        n=nw
        step=1
        idx=list(range(nw))
        while len(idx)>1:
            nxt=[]
            for i in range(0,len(idx)-1,2):
                d,s_=idx[i],idx[i+1]
                a(f"v_pk_add_f32 {vr(TT+4*d,2)}, {vr(TT+4*d,2)}, {vr(TT+4*s_,2)}")
                a(f"v_pk_add_f32 {vr(TT+4*d+2,2)}, {vr(TT+4*d+2,2)}, {vr(TT+4*s_+2,2)}")
                nxt.append(d)
            if len(idx)%2: nxt.append(idx[-1])
            idx=nxt
        for c in range(4):
            a(f"v_min_u32 v{TT+c}, -2, v{TT+c}")
        a(f"global_store_dwordx4 v{10 if dp else PA_P2}, {vr(TT,4)}, {sr(P_WS,2)} sc1")
        a(f"{lab}_skip:")
    gemm4_reduce_publish(WO_F, TT+32, False, 8, "L_t2")
    stamp(a,cfg,7)
    def ld3():
        a(f"global_load_dwordx4 {vr(TT+32,4)}, v{PA_T3A}, {sr(P_WS,2)} sc1")
        a(f"global_load_dwordx4 {vr(TT+36,4)}, v{PA_T3B}, {sr(P_WS,2)} sc1")
    if cfg.PD3: a(f"s_sleep {cfg.PD3}")
    poll_masked(a,"t3", ld3, range(TT+32,TT+40), cfg, TMP, 2, cfg.PIPE_X)
    if cfg.TAILDIAG==True and cfg.TAILDIAG!=2: stamp(a,cfg,13)
    a(f"v_pk_add_f32 {vr(TT+40,2)}, {vr(TT+32,2)}, {vr(TT+36,2)}")
    a(f"v_pk_add_f32 {vr(TT+42,2)}, {vr(TT+34,2)}, {vr(TT+38,2)}")
    a(f"ds_write_b128 v{PA_T3W}, {vr(TT+40,4)}")
    a("s_waitcnt lgkmcnt(0)")
    a("s_barrier")
    a(f"s_cmp_lg_u32 s{S_W}, {R_W0}")
    a("s_cbranch_scc1 L_t3_skip")
    for w in range(8):
        a(f"ds_read_b128 {vr(TT+4*w,4)}, v{PA_T3R} offset:{w*1024}")
    a(f"v_lshlrev_b32 v{TT+40}, 16, v{V_XRES}")
    a(f"v_and_b32 v{TT+41}, 0xffff0000, v{V_XRES}")
    a(f"v_lshlrev_b32 v{TT+42}, 16, v{V_XRES+1}")
    a(f"v_and_b32 v{TT+43}, 0xffff0000, v{V_XRES+1}")
    a("s_waitcnt lgkmcnt(0)")
    for (d,s_) in ((0,1),(2,3),(4,5),(6,7),(0,2),(4,6),(0,4)):
        a(f"v_pk_add_f32 {vr(TT+4*d,2)}, {vr(TT+4*d,2)}, {vr(TT+4*s_,2)}")
        a(f"v_pk_add_f32 {vr(TT+4*d+2,2)}, {vr(TT+4*d+2,2)}, {vr(TT+4*s_+2,2)}")
    a(f"v_cvt_pk_bf16_f32 v{TT+4}, v{TT}, v{TT+1}")
    a(f"v_cvt_pk_bf16_f32 v{TT+5}, v{TT+2}, v{TT+3}")
    a(f"v_lshlrev_b32 v{TT+8}, 16, v{TT+4}")
    a(f"v_and_b32 v{TT+9}, 0xffff0000, v{TT+4}")
    a(f"v_lshlrev_b32 v{TT+10}, 16, v{TT+5}")
    a(f"v_and_b32 v{TT+11}, 0xffff0000, v{TT+5}")
    a(f"v_pk_add_f32 {vr(TT+8,2)}, {vr(TT+8,2)}, {vr(TT+40,2)}")
    a(f"v_pk_add_f32 {vr(TT+10,2)}, {vr(TT+10,2)}, {vr(TT+42,2)}")
    a(f"v_cvt_pk_bf16_f32 v{TT+6}, v{TT+8}, v{TT+9}")
    a(f"v_cvt_pk_bf16_f32 v{TT+7}, v{TT+10}, v{TT+11}")
    a(f"v_min_u32 v{TT+6}, -2, v{TT+6}")
    a(f"v_min_u32 v{TT+7}, -2, v{TT+7}")
    store_mode(a, f"global_store_dwordx2 v{PA_H}, {vr(TT+6,2)}, {sr(P_WS,2)}", True)
    a("L_t3_skip:")
    stamp(a,cfg,8)
    def ld4():
        a(f"global_load_dwordx4 {vr(TT,4)}, v{PA_T4}, {sr(P_WS,2)} sc1")
        a(f"global_load_dwordx4 {vr(TT+4,4)}, v{PA_T4}, {sr(P_WS,2)} offset:16 sc1")
    if cfg.PD4: a(f"s_sleep {cfg.PD4}")
    poll_masked(a,"t4", ld4, range(TT,TT+8), cfg, TMP, 2, cfg.PIPE_I)
    if cfg.TAILDIAG: stamp(a,cfg,14)
    a(f"s_cmp_lg_u32 s{S_W}, s{S_X}")
    a("s_cbranch_scc1 L_t4_nohs")
    a(f"s_mov_b64 exec, {sr(SM_HS,2)}")
    a(f"ds_write_b128 v{PA_HSW}, {vr(TT,4)}")
    a(f"ds_write_b128 v{PA_HSW}, {vr(TT+4,4)} offset:16")
    full_exec(a)
    a("L_t4_nohs:")
    a(f"s_cmp_ge_u32 s{S_R}, 28")
    a("s_cbranch_scc1 L_t5_skip_all")
    layernorm2(a, TT, TT+8, TT+24, V_T)
    a(f"s_mov_b64 exec, {sr(SM_LNB,2)}")
    a(f"ds_write_b128 v{PA_LNBW}, {vr(TT+24,4)}")
    a(f"ds_write_b128 v{PA_LNBW}, {vr(TT+28,4)} offset:16")
    full_exec(a)
    a("s_waitcnt lgkmcnt(0)")
    a("s_barrier")
    if not cfg.TAILDIAG: stamp(a,cfg,9)
    if cfg.TAILDIAG: stamp(a,cfg,1)
    a("s_waitcnt vmcnt(0)")
    for s in range(8):
        a(f"ds_read_b128 {vr(TT+4*s,4)}, v{PA_LNBR} offset:{64*s}")
    for s in range(8):
        c="0" if s<2 else vr(V_T+4*(s%2),4)
        a(f"s_waitcnt lgkmcnt({7-s})")
        a(f"v_mfma_f32_16x16x32_bf16 {vr(V_T+4*(s%2),4)}, {vr(GU_F+4*s,4)}, {vr(TT+4*s,4)}, {c}")
    a("s_nop 7")
    a(f"v_pk_add_f32 {vr(V_T,2)}, {vr(V_T,2)}, {vr(V_T+4,2)}")
    a(f"v_pk_add_f32 {vr(V_T+2,2)}, {vr(V_T+2,2)}, {vr(V_T+6,2)}")
    for c in range(4):
        a(f"v_min_u32 v{V_T+c}, -2, v{V_T+c}")
    set_exec(a, "0x00ff00ff", "0x00ff00ff")
    store_mode(a, f"global_store_dwordx4 v{PA_GP}, {vr(V_T,4)}, {sr(P_WS,2)}", True)
    full_exec(a)
    if cfg.TAILDIAG==2: stamp(a,cfg,13)
    a(f"s_cmp_lg_u32 s{S_W}, {R_W0}")
    a("s_cbranch_scc1 L_t5_skip_all")
    a(f"s_mov_b32 s{S_T0}, 0x3d372713")
    a(f"s_mov_b32 s{S_T1}, 0xc0135761")
    def ld5():
        for k in range(4):
            for m in range(2):
                a(f"global_load_dwordx2 {vr(TT+(k*2+m)*2,2)}, v{PA_T5B+k}, {sr(P_WS,2)} offset:{m*2048} sc1")
    if cfg.PD5: a(f"s_sleep {cfg.PD5}")
    poll_masked(a,"t5", ld5, range(TT,TT+16), cfg, TMP, 8, cfg.PIPE_I)
    if cfg.TAILDIAG: stamp(a,cfg,2)
    for h_ in range(2):
        a(f"v_pk_add_f32 {vr(TT+16+2*h_,2)}, {vr(TT+2*h_,2)}, {vr(TT+4+2*h_,2)}")
        a(f"v_pk_add_f32 {vr(TT+20+2*h_,2)}, {vr(TT+8+2*h_,2)}, {vr(TT+12+2*h_,2)}")
        a(f"v_pk_add_f32 {vr(TT+16+2*h_,2)}, {vr(TT+16+2*h_,2)}, {vr(TT+20+2*h_,2)}")
    G=TT+16; U=TT+18; X=TT+20
    TT_=TT; TT=TT+16
    a(f"v_cvt_pk_bf16_f32 v{TT+8}, v{G}, v{G+1}")
    a(f"v_cvt_pk_bf16_f32 v{TT+9}, v{U}, v{U+1}")
    a(f"v_lshlrev_b32 v{G}, 16, v{TT+8}")
    a(f"v_and_b32 v{G+1}, 0xffff0000, v{TT+8}")
    a(f"v_lshlrev_b32 v{U}, 16, v{TT+9}")
    a(f"v_and_b32 v{U+1}, 0xffff0000, v{TT+9}")
    a(f"v_pk_mul_f32 {vr(X,2)}, {vr(G,2)}, {vr(G,2)}")
    a(f"v_pk_mul_f32 {vr(X,2)}, {vr(X,2)}, {vr(G,2)}")
    for c in range(2):
        a(f"v_fma_f32 v{X+c}, v{X+c}, s{S_T0}, v{G+c}")
    for c in range(2):
        a(f"v_mul_f32 v{X+c}, s{S_T1}, v{X+c}")
    for c in range(2):
        a(f"v_exp_f32 v{X+c}, v{X+c}")
    a("s_nop 0")
    for c in range(2):
        a(f"v_add_f32 v{X+c}, 1.0, v{X+c}")
    for c in range(2):
        a(f"v_rcp_f32 v{X+c}, v{X+c}")
    a("s_nop 0")
    a(f"v_pk_mul_f32 {vr(X,2)}, {vr(X,2)}, {vr(G,2)}")
    a(f"v_cvt_pk_bf16_f32 v{TT+8}, v{X}, v{X+1}")
    a(f"v_lshlrev_b32 v{X}, 16, v{TT+8}")
    a(f"v_and_b32 v{X+1}, 0xffff0000, v{TT+8}")
    a(f"v_pk_mul_f32 {vr(X,2)}, {vr(X,2)}, {vr(U,2)}")
    a(f"v_cvt_pk_bf16_f32 v{X}, v{X}, v{X+1}")
    a(f"v_min_u32 v{X}, -2, v{X}")
    store_mode(a, f"global_store_dword v{PA_ACT}, v{X}, {sr(P_WS,2)}", True)
    TT=TT_
    a("L_t5_skip_all:")
    stamp(a,cfg,10)
    a(f"s_cmp_ge_u32 s{S_W}, 7")
    a("s_cbranch_scc1 L_t6_nopoll")
    if cfg.PD6: a(f"s_sleep {cfg.PD6}")
    poll_masked(a,"t6", lambda: a(f"global_load_dwordx4 {vr(TT+32,4)}, v{PA_T6}, {sr(P_WS,2)} sc1"), range(TT+32,TT+36), cfg, TMP, 1, cfg.PIPE_I)
    if cfg.TAILDIAG: stamp(a,cfg,3)
    a("L_t6_nopoll:")
    gemm4_reduce_publish(WD_F, TT+32, True, 7, "L_t6")
    stamp(a,cfg,11)
    a(f"s_cmp_lg_u32 s{S_W}, {R_W0}")
    a("s_cbranch_scc1 L_fin")
    a(f"ds_read_u16 v{TT+10}, v{PA_HSR}")
    def ld7():
        for k in range(8):
            a(f"global_load_dword v{TT+k}, v{PA_T7+k}, {sr(P_WS,2)} sc1")
    if cfg.PD7: a(f"s_sleep {cfg.PD7}")
    poll_masked(a,"t7", ld7, range(TT,TT+8), cfg, TMP, 8, cfg.PIPE_X)
    if cfg.TAILDIAG: stamp(a,cfg,4)
    Z=TT+16
    a(f"v_pk_add_f32 {vr(Z,2)}, {vr(TT,2)}, {vr(TT+2,2)}")
    a(f"v_pk_add_f32 {vr(Z+2,2)}, {vr(TT+4,2)}, {vr(TT+6,2)}")
    a(f"v_pk_add_f32 {vr(Z,2)}, {vr(Z,2)}, {vr(Z+2,2)}")
    a(f"v_add_f32 v{Z}, v{Z}, v{Z+1}")
    a(f"v_mov_b32 v{Z+1}, v{Z}")
    a("s_waitcnt lgkmcnt(0)")
    a("s_nop 0")
    a(f"v_permlane32_swap_b32 v{Z}, v{Z+1}")
    a(f"v_lshlrev_b32 v{TT+10}, 16, v{TT+10}")
    a(f"v_add_f32 v{Z}, v{Z}, v{Z+1}")
    round_bf16(a,Z,Z)
    a(f"v_add_f32 v{Z}, v{Z}, v{TT+10}")
    a(f"v_cvt_pk_bf16_f32 v{Z}, v{Z}, v{Z}")
    set_exec(a, -1, 0)
    a(f"global_store_short v{PA_OUT}, v{Z}, {sr(P_OUT,2)}")
    full_exec(a)
    a(f"s_cmp_lg_u32 s{S_ID}, 0")
    a("s_cbranch_scc1 L_fin")
    a(f"v_mov_b32 v10, {W_EPOCH}")
    a(f"v_mov_b32 v12, s{S_TAG}")
    a(f"v_mov_b32 v13, s{S_TAG+1}")
    set_exec(a, 1, 0)
    a(f"global_store_dwordx2 v10, v[12:13], {sr(P_WS,2)} sc1")
    full_exec(a)
    a("L_fin:")
    TTX=160
    if cfg.STAMPS and cfg.DBGSTAMP:
        stamp(a,cfg,12)
        a("s_waitcnt lgkmcnt(0)")
        a(f"s_cmp_lg_u32 s{S_W}, 0")
        a("s_cbranch_scc1 L_exit")
        lst=[0,1,2,4,6,7,8,10,11,12]
        for i,k in enumerate(lst):
            if k==0:
                a(f"s_not_b32 s{S_T0}, s72")
                a(f"v_mov_b32 v{TTX}, s{S_T0}")
            else:
                a(f"v_mov_b32 v{TTX}, s{72+2*k}")
            a(f"v_mov_b32 v10, {4*i}")
            set_exec(a,1,0)
            a(f"global_atomic_umax v10, v{TTX}, {sr(P_DBG,2)} sc1")
            full_exec(a)
        a(f"v_mov_b32 v{TTX}, s72")
        a(f"v_mov_b32 v10, 40")
        set_exec(a,1,0)
        a(f"global_atomic_umax v10, v{TTX}, {sr(P_DBG,2)} sc1")
        full_exec(a)
        a(f"s_not_b32 s{S_T0}, s{72+12}")
        a(f"v_mov_b32 v{TTX}, s{S_T0}")
        a(f"v_mov_b32 v10, 44")
        set_exec(a,1,0)
        a(f"global_atomic_umax v10, v{TTX}, {sr(P_DBG,2)} sc1")
        full_exec(a)
    elif cfg.STAMPS:
        stamp(a,cfg,12)
        a("s_waitcnt lgkmcnt(0)")
        for k in range(15):
            a(f"v_mov_b32 v{TTX}, s{72+2*k}")
            a(f"v_mov_b32 v{TTX+1}, s{73+2*k}")
            a(f"s_lshl_b32 s{S_T0}, s{S_ID}, 3")
            a(f"s_add_u32 s{S_T0}, s{S_T0}, s{S_W}")
            a(f"s_lshl_b32 s{S_T0}, s{S_T0}, 7")
            a(f"s_add_u32 s{S_T0}, s{S_T0}, {W_STAMP+8*k}")
            a(f"v_mov_b32 v10, s{S_T0}")
            set_exec(a,1,0)
            a(f"global_store_dwordx2 v10, {vr(TTX,2)}, {sr(P_WS,2)}")
            full_exec(a)
    a("L_exit:")
    a("s_endpgm")

HEADER = open("sequential_preLN__mha_block_cached__geglu_ffn__decode.s.ref").read().split("; Override launch geometry")[0]

CFG=None
def build(cfg, path):
    global CFG
    CFG=cfg
    a,_=gen(cfg)
    gen_tail(a,cfg)
    txt = HEADER
    txt += "; Override launch geometry by editing the next line (default: block=256,\n"
    txt += f"; @launch grid=(256,1,1) block=(512,1,1) lds={LDS_BYTES}\n"
    txt += f""".amdgcn_target "amdgcn-amd-amdhsa--gfx950"
.text
.globl {KNAME}
.p2align 8
.type {KNAME},@function
"""
    txt += a.text()
    txt += f""".section .rodata,"a"
.p2align 6
.amdhsa_kernel {KNAME}
  .amdhsa_next_free_vgpr 256
  .amdhsa_next_free_sgpr 102
  .amdhsa_accum_offset 256
  .amdhsa_group_segment_fixed_size 0
  .amdhsa_kernarg_size 96
  .amdhsa_user_sgpr_count 2
  .amdhsa_user_sgpr_kernarg_segment_ptr 1
  .amdhsa_system_sgpr_workgroup_id_x 1
  .amdhsa_float_denorm_mode_32 3
.end_amdhsa_kernel
"""
    open(path,"w").write(txt)

if __name__=="__main__":
    cfg=Cfg()
    out=sys.argv[1]
    for kv in sys.argv[2:]:
        k,v=kv.split("=")
        setattr(cfg,k,eval(v))
    build(cfg,out)
```

```python
import sys

KNAME = "sequential_preLN__mha_block_cached__geglu_ffn__decode_kernel"

class Cfg:
    NSW = 2
    L = 10
    HV = 1
    QFAST = True
    KFLAGS = "nt"
    VFLAGS = "nt"
    WFLAGS = "nt"
    FASTMODE = True
    SPIN = 1 << 20
    STAMPS = False
    P0 = 4
    P = 4
    P1 = 8
    DMAPAUSE = False
    RING_EARLY = True
    RAMP = 0
    CODEPF = True
    LATE_L = 11
    EARLY_L = 0
    EARLY_THR = 6
    LATE_X = 0
    SEG0 = 40
    LATE_THR = 20
    LK = 0
    LS = 0
    KS0 = 80
    ROT = 0
    ROTX = 0
    HPERM = True
    NODMA2 = False
    KNOP = 7
    KEXP = 0
    PIPE_I = 0
    PIPE_X = 0
    HIGH_INLINE = True
    LNDRY = False
    CLR7 = True
    CONDCOPY = True
    NOCLR = False
    NOCOPY = False
    ALTMAP = False
    APB = 4096
    APP = 32768
    XLD = "sc1"
    XST = "sc1"
    PIPE2 = 0
    PD2 = 0
    PSX = 0
    PD3 = 9
    PD4 = 4
    PD5 = 5
    PD6 = 4
    PD7 = 9
    TAILDIAG = False
    PSLEEP = 0
    QSLEEP = 0
    QWAIT = 64
    DBGSTAMP = False

L_WO   = 0
L_WG   = 32768
L_WU   = 65536
L_WD   = 98304
L_WQ   = 126976
L_SC   = 126976
L_RED  = 143360
L_LNA  = 159744
L_QS   = 161920
L_ML   = 162176
L_HS   = 162208
L_QF   = 162272
L_LS   = 162288
L_MODE = 162320
L_SEL  = 162352
L_END  = 162368
LNA_P  = 272
LNB_P  = 528
L_LNB  = L_SC
LDS_BYTES = 163840

W_QP  = 0x500000
W_RDY = 0x000000
W_EPOCH = 0x010000
W_KX = 0x018000
W_KD = 0x014000
W_GRDY = 0x012000
W_OB  = 0x100000
W_AP  = 0x2000000
W_HB  = 0x1A0000
W_GP  = 0x1C0000
W_ACT = 0x2A0000
W_DP  = 0x2400000
W_STAMP = 0x400000

D_CLR = 32*4
D_XCC = 40*4

S_ID=2; S_W=3; S_X=4; S_R=5; S_H=6; S_B=7
P_X=16; P_K=18; P_V=20; P_WQ=22; P_WO=24; P_WG=28; P_WU=30; P_WD=32; P_OUT=34; P_DBG=36; P_WS=38
SRD_K=40; SRD_V=44
S_KOFF=48
S_FAST=49
S_SPIN=50
S_T0=52; S_T1=53; S_T2=54; S_T3=55; S_T4=56; S_T5=57
S_B0=58
S_B1=60
S_EX=62
S_M=64
S_M2=66
S_SCALE=68; S_LOG2E=69
S_DN=12; S_DS=13; S_DM=14; S_LOOP=15; S_LNW=27; S_ROT=70; S_HA=65; S_DJ=14; S_DM2=64
S_TAG=98
S_TAG=66
S_ST=70

V_TID=0; V_LANE=1
V_MASK=16
V_KOFF=20; V_VOFF=21; V_SCW=22; V_PPR=23; V_MAX=24
V_DMA=25
V_QADDR=26
V_QA=32
V_SACC=48
V_SACC2=140
V_OACC=52
V_A0=56; V_A1=60
V_PP0=64; V_PP1=68
V_T=72
V_RING=96
V_X=160

class Asm:
    def __init__(self):
        self.L=[]; self.n=0; self.main=self.L; self.O=[]
    def ool(self, on):
        self.L = self.O if on else self.main
    def __call__(self, s):
        for line in s.split("\n"):
            line=line.strip()
            if line: self.L.append(("" if line.endswith(":") else "  ")+line)
    def label(self, base):
        self.n+=1
        return f"L_{base}_{self.n}"
    def text(self): return "\n".join(self.main+self.O+["L_codeend:"])+"\n"

def vr(b,n): return f"v[{b}:{b+n-1}]"
def sr(b,n): return f"s[{b}:{b+n-1}]"

def wave_sum(a, v, tmp, op="add"):
    ins = "v_add_f32" if op=="add" else "v_max_f32"
    for k in (8,4,2,1):
        a(f"s_nop 1")
        a(f"{ins}_dpp {'v%d'%v}, v{v}, v{v} row_ror:{k} row_mask:0xf bank_mask:0xf")
    a("s_nop 1")
    a(f"v_readlane_b32 s{S_T0}, v{v}, 0")
    a(f"v_readlane_b32 s{S_T1}, v{v}, 16")
    a(f"v_readlane_b32 s{S_T2}, v{v}, 32")
    a(f"v_readlane_b32 s{S_T3}, v{v}, 48")
    a("s_nop 1")
    a(f"v_mov_b32 v{v}, s{S_T0}")
    a(f"{ins} v{v}, s{S_T1}, v{v}")
    a(f"{ins} v{v}, s{S_T2}, v{v}")
    a(f"{ins} v{v}, s{S_T3}, v{v}")

def round_bf16(a, dst, src):
    a(f"v_cvt_pk_bf16_f32 v{dst}, v{src}, v{src}")
    a(f"v_and_b32 v{dst}, 0xffff0000, v{dst}")

def layernorm(a, vin, vf, vout, t):
    for i in range(8):
        a(f"v_lshlrev_b32 v{vf+2*i}, 16, v{vin+i}")
        a(f"v_and_b32 v{vf+2*i+1}, 0xffff0000, v{vin+i}")
    a(f"v_add_f32 v{t}, v{vf}, v{vf+1}")
    for i in range(2,16):
        a(f"v_add_f32 v{t}, v{t}, v{vf+i}")
    wave_sum(a, t, t+1)
    a(f"v_mul_f32 v{t}, 0x3a800000, v{t}")
    a(f"v_sub_f32 v{t+1}, v{vf}, v{t}")
    a(f"v_mul_f32 v{t+2}, v{t+1}, v{t+1}")
    for i in range(1,16):
        a(f"v_sub_f32 v{t+1}, v{vf+i}, v{t}")
        a(f"v_fmac_f32 v{t+2}, v{t+1}, v{t+1}")
    wave_sum(a, t+2, t+1)
    a(f"v_mul_f32 v{t+2}, 0x3a800000, v{t+2}")
    round_bf16(a, t, t)
    round_bf16(a, t+2, t+2)
    a(f"v_add_f32 v{t+2}, 0x3727c5ac, v{t+2}")
    round_bf16(a, t+2, t+2)
    a(f"v_sqrt_f32 v{t+2}, v{t+2}")
    a("s_nop 0")
    round_bf16(a, t+2, t+2)
    a(f"v_rcp_f32 v{t+2}, v{t+2}")
    a("s_nop 0")
    for i in range(8):
        a(f"v_sub_f32 v{vf+2*i}, v{vf+2*i}, v{t}")
        a(f"v_sub_f32 v{vf+2*i+1}, v{vf+2*i+1}, v{t}")
        a(f"v_cvt_pk_bf16_f32 v{t+1}, v{vf+2*i}, v{vf+2*i+1}")
        a(f"v_lshlrev_b32 v{vf+2*i}, 16, v{t+1}")
        a(f"v_and_b32 v{vf+2*i+1}, 0xffff0000, v{t+1}")
        a(f"v_mul_f32 v{vf+2*i}, v{vf+2*i}, v{t+2}")
        a(f"v_mul_f32 v{vf+2*i+1}, v{vf+2*i+1}, v{t+2}")
        a(f"v_cvt_pk_bf16_f32 v{vout+i}, v{vf+2*i}, v{vf+2*i+1}")

def set_exec(a, lo, hi):
    a(f"s_mov_b32 exec_lo, {lo}")
    a(f"s_mov_b32 exec_hi, {hi}")
def full_exec(a):
    a("s_mov_b64 exec, -1")

def poll_loop(a, name, loads, regs, cfg):
    lp=a.label(name+"_poll"); dn=a.label(name+"_ok")
    a(f"s_mov_b32 s{S_SPIN}, {cfg.SPIN}")
    a(f"{lp}:")
    loads()
    a("s_waitcnt vmcnt(0)")
    t=V_T+23
    rs=list(regs)
    a(f"v_max_u32 v{t}, v{rs[0]}, v{rs[1] if len(rs)>1 else rs[0]}")
    i=2
    while i<len(rs):
        if i+1<len(rs):
            a(f"v_max3_u32 v{t}, v{t}, v{rs[i]}, v{rs[i+1]}"); i+=2
        else:
            a(f"v_max_u32 v{t}, v{t}, v{rs[i]}"); i+=1
    a(f"v_cmp_eq_u32 vcc, -1, v{t}")
    a(f"s_cbranch_vccz {dn}")
    a(f"s_sub_u32 s{S_SPIN}, s{S_SPIN}, 1")
    a(f"s_cmp_lg_u32 s{S_SPIN}, 0")
    a(f"s_cbranch_scc1 {lp}")
    a(f"{dn}:")

def store_mode(a, instr, intra):
    if not intra:
        a(instr+" sc1"); return
    l1=a.label("st_slow"); l2=a.label("st_done")
    a(f"s_cmp_eq_u32 s{S_FAST}, 0")
    a(f"s_cbranch_scc1 {l1}")
    a(instr)
    a(f"s_branch {l2}")
    a(f"{l1}:")
    a(instr+" sc1")
    a(f"{l2}:")

def stamp(a, cfg, idx):
    if not cfg.STAMPS: return
    a(f"s_memrealtime s[{72+2*idx}:{73+2*idx}]")


def emit_clears(a, sfx=''):
    a(f"v_mov_b32 v12, -1\nv_mov_b32 v13, -1\nv_mov_b32 v14, -1\nv_mov_b32 v15, -1")
    a(f"s_lshr_b32 s{S_T4}, s{S_R}, 4")
    a(f"s_and_b32 s{S_T5}, s{S_R}, 15")
    a(f"s_lshl_b32 s{S_T1}, s{S_X}, 1")
    a(f"s_add_u32 s{S_T1}, s{S_T1}, s{S_T4}")
    a(f"s_mul_i32 s{S_T0}, s{S_T1}, {CFG.APP}")
    a(f"s_lshl_b32 s{S_T1}, s{S_T5}, 8")
    a(f"s_add_u32 s{S_T0}, s{S_T0}, s{S_T1}")
    a(f"v_mul_u32_u24 v10, {CFG.APB}, v3")
    a(f"v_lshlrev_b32 v11, 4, v2")
    a(f"v_add3_u32 v10, v10, v11, s{S_T0}")
    for base in (W_AP, W_DP):
        a(f"v_add_u32 v11, {base}, v10")
        a(f"global_store_dwordx4 v11, v[12:15], {sr(P_WS,2)} sc1")
        a(f"v_add_u32 v11, {base}+{4*CFG.APB}, v10")
        a(f"global_store_dwordx4 v11, v[12:15], {sr(P_WS,2)} sc1")
    a(f"s_lshl_b32 s{S_T0}, s{S_H}, 3")
    a(f"s_add_u32 s{S_T0}, s{S_T0}, s{S_B}")
    a(f"s_lshl_b32 s{S_T0}, s{S_T0}, 8")
    a(f"s_add_u32 s{S_T0}, s{S_T0}, {W_OB}")
    a(f"v_add_u32 v10, s{S_T0}, v{V_VOFF}")
    set_exec(a, "0xffff", 0)
    a(f"global_store_dwordx4 v10, v[12:15], {sr(P_WS,2)} sc1")
    full_exec(a)
    a(f"s_lshr_b32 s{S_T0}, s{S_R}, 2")
    a(f"s_lshl_b32 s{S_T1}, s{S_X}, 3")
    a(f"s_add_u32 s{S_T0}, s{S_T0}, s{S_T1}")
    a(f"s_lshl_b32 s{S_T0}, s{S_T0}, 11")
    a(f"s_and_b32 s{S_T1}, s{S_R}, 3")
    a(f"s_lshl_b32 s{S_T1}, s{S_T1}, 9")
    a(f"s_add_u32 s{S_T0}, s{S_T0}, s{S_T1}")
    a(f"s_add_u32 s{S_T0}, s{S_T0}, {W_HB}")
    a(f"v_add_u32 v10, s{S_T0}, v{V_VOFF}")
    set_exec(a, -1, 0)
    a(f"global_store_dwordx4 v10, v[12:15], {sr(P_WS,2)} sc1")
    full_exec(a)
    a(f"s_cmp_ge_u32 s{S_R}, 28")
    a(f"s_cbranch_scc1 L_clr_done{sfx}")
    a(f"s_mul_i32 s{S_T0}, s{S_X}, 28")
    a(f"s_add_u32 s{S_T0}, s{S_T0}, s{S_R}")
    a(f"s_lshl_b32 s{S_T0}, s{S_T0}, 12")
    a(f"s_add_u32 s{S_T0}, s{S_T0}, {W_GP}")
    a(f"v_add_u32 v10, s{S_T0}, v{V_VOFF}")
    for n in range(4):
        a(f"global_store_dwordx4 v10, v[12:15], {sr(P_WS,2)} offset:{n*1024} sc1")
    a(f"s_mul_i32 s{S_T0}, s{S_R}, 37")
    a(f"s_lshr_b32 s{S_T0}, s{S_T0}, 8")
    a(f"s_mul_i32 s{S_T1}, s{S_T0}, 7")
    a(f"s_sub_u32 s{S_T1}, s{S_R}, s{S_T1}")
    a(f"s_lshl_b32 s{S_T0}, s{S_T0}, 1")
    a(f"s_lshl_b32 s{S_T2}, s{S_X}, 3")
    a(f"s_add_u32 s{S_T0}, s{S_T0}, s{S_T2}")
    a(f"s_mul_i32 s{S_T0}, s{S_T0}, 896")
    a(f"s_lshl_b32 s{S_T1}, s{S_T1}, 7")
    a(f"s_add_u32 s{S_T0}, s{S_T0}, s{S_T1}")
    a(f"s_add_u32 s{S_T0}, s{S_T0}, {W_ACT}")
    a(f"v_lshrrev_b32 v10, 3, v{V_LANE}")
    a(f"v_mul_u32_u24 v10, 896, v10")
    a(f"v_and_b32 v11, 7, v{V_LANE}")
    a(f"v_lshlrev_b32 v11, 4, v11")
    a(f"v_add3_u32 v10, v10, v11, s{S_T0}")
    set_exec(a, "0xffff", 0)
    a(f"global_store_dwordx4 v10, v[12:15], {sr(P_WS,2)} sc1")
    full_exec(a)
    a(f"L_clr_done{sfx}:")


def emit_extras(a):
    a(f"s_lshl_b32 s{S_T0}, s{S_W}, 9")
    a(f"v_and_b32 v10, 31, v{V_LANE}")
    a(f"v_lshlrev_b32 v10, 4, v10")
    a(f"v_add_u32 v10, s{S_T0}, v10")
    a(f"v_add_u32 v9, {W_RDY}, v10")
    a(f"global_load_dwordx4 {vr(V_RDY,4)}, v9, {sr(P_WS,2)} sc1")
    a(f"s_lshr_b32 s{S_T0}, s{S_R}, 2")
    a(f"s_lshl_b32 s{S_T0}, s{S_T0}, 11")
    a(f"s_and_b32 s{S_T1}, s{S_R}, 3")
    a(f"s_lshl_b32 s{S_T1}, s{S_T1}, 9")
    a(f"s_add_u32 s{S_T0}, s{S_T0}, s{S_T1}")
    a(f"v_lshlrev_b32 v11, 3, v{V_LANE}")
    a(f"v_add_u32 v11, s{S_T0}, v11")
    a(f"global_load_dwordx2 {vr(V_XRES,2)}, v11, {sr(P_X,2)}")

def koff_init(a):
    a(f"s_lshr_b32 s{S_KOFF}, s{S_W}, 2")
    a(f"s_lshl_b32 s{S_KOFF}, s{S_KOFF}, 7")
    a(f"s_and_b32 s{S_T5}, s{S_W}, 3")
    a(f"s_add_u32 s{S_KOFF}, s{S_KOFF}, s{S_T5}")
    a(f"s_lshl_b32 s{S_KOFF}, s{S_KOFF}, 12")

def emit_rdy(a):
    a(f"s_getreg_b32 s{S_T0}, hwreg(HW_REG_XCC_ID, 0, 4)")
    a(f"s_lshl_b32 s{S_T1}, s{S_X}, 5")
    a(f"s_add_u32 s{S_T1}, s{S_T1}, s{S_R}")
    a(f"s_lshl_b32 s{S_T1}, s{S_T1}, 4")
    a(f"s_add_u32 s{S_T1}, s{S_T1}, {W_RDY}")
    a(f"v_mov_b32 v10, s{S_T1}")
    a(f"v_mov_b32 v12, s{S_T0}")
    a(f"v_mov_b32 v13, 0")
    a(f"v_mov_b32 v14, s{S_TAG}")
    a(f"v_mov_b32 v15, s{S_TAG+1}")
    set_exec(a, 1, 0)
    a(f"global_store_dwordx4 v10, v[12:15], {sr(P_WS,2)} sc1")
    full_exec(a)

def gen(cfg):
    a=Asm()
    NSW=cfg.NSW; L=cfg.L; HV=cfg.HV
    LK=cfg.LK or L
    NH=8-NSW
    KT=256//NSW
    VT=(256-NH*HV)//NSW
    assert VT*NSW+NH*HV==256, "V tiles must split evenly"
    NK=4*KT; NV=4*VT
    TSTEP=NSW*4096
    def kload(j):
        reg=V_RING+(j%LK)*4
        a(f"buffer_load_dwordx4 {vr(reg,4)}, v{V_KOFF}, {sr(SRD_K,4)}, s{S_KOFF} offen offset:{(j%4)*1024} {cfg.KFLAGS}")
        if j%4==3:
            a(f"s_add_u32 s{S_KOFF}, s{S_KOFF}, {TSTEP}")
            if cfg.ROT or cfg.ROTX: a(f"s_and_b32 s{S_KOFF}, s{S_KOFF}, 0xfffff")
    def vload(jv, first=False):
        reg=V_RING+((NK-LK+jv)%LK)*4
        if first:
            a(f"s_add_u32 s{S_KOFF}, s{S_W}, {NH*HV}")
            a(f"s_lshl_b32 s{S_KOFF}, s{S_KOFF}, 12")
            if cfg.ROT or cfg.ROTX:
                a(f"s_add_u32 s{S_KOFF}, s{S_KOFF}, s{S_ROT}")
                a(f"s_and_b32 s{S_KOFF}, s{S_KOFF}, 0xfffff")
        a(f"buffer_load_dwordx4 {vr(reg,4)}, v{V_VOFF}, {sr(SRD_V,4)}, s{S_KOFF} offen offset:{(jv%4)*1024} {cfg.VFLAGS}")
        if jv%4==3:
            a(f"s_add_u32 s{S_KOFF}, s{S_KOFF}, {TSTEP}")
            if cfg.ROT or cfg.ROTX: a(f"s_and_b32 s{S_KOFF}, s{S_KOFF}, 0xfffff")
    a(f"{KNAME}:")
    a(f"s_cmp_ge_u32 s{S_ID}, 256")
    a("s_cbranch_scc1 L_exit")
    a("s_load_dwordx16 s[16:31], s[0:1], 0")
    a("s_load_dwordx8 s[32:39], s[0:1], 64")
    if cfg.CODEPF:
        a(f"s_getpc_b64 {sr(S_B1,2)}")
        a("L_pf0:")
        a(f"s_add_u32 s{S_B1}, s{S_B1}, {KNAME}-L_pf0")
        a(f"s_addc_u32 s{S_B1+1}, s{S_B1+1}, -1")
        a(f"v_lshlrev_b32 v10, 6, v0")
        a(f"v_cmp_gt_u32 vcc, L_codeend-{KNAME}, v10")
        a(f"s_and_saveexec_b64 {sr(S_EX,2)}, vcc")
        a("s_cbranch_execz L_pf0_done")
        a(f"global_load_dword v15, v10, {sr(S_B1,2)}")
        a("L_pf0_done:")
        a(f"s_mov_b64 exec, {sr(S_EX,2)}")
    stamp(a,cfg,0)
    a(f"v_lshrrev_b32 v2, 6, v0")
    a(f"v_and_b32 v{V_LANE}, 63, v0")
    if cfg.ALTMAP: a(f"s_lshr_b32 s{S_X}, s{S_ID}, 5")
    else: a(f"s_and_b32 s{S_X}, s{S_ID}, 7")
    a(f"v_readfirstlane_b32 s{S_W}, v2")
    if cfg.ALTMAP: a(f"s_and_b32 s{S_R}, s{S_ID}, 31")
    else: a(f"s_lshr_b32 s{S_R}, s{S_ID}, 3")
    a(f"s_lshr_b32 s{S_T0}, s{S_R}, 3")
    a(f"s_lshl_b32 s{S_H}, s{S_X}, 2")
    a(f"s_add_u32 s{S_H}, s{S_H}, s{S_T0}")
    a(f"s_and_b32 s{S_B}, s{S_R}, 7")
    if cfg.ROT or cfg.ROTX:
        a(f"s_mul_i32 s{S_ROT}, s{S_R}, {cfg.ROT}")
        a(f"s_mul_i32 s{S_DM2}, s{S_X}, {cfg.ROTX}")
        a(f"s_add_u32 s{S_ROT}, s{S_ROT}, s{S_DM2}")
        a(f"s_and_b32 s{S_ROT}, s{S_ROT}, 0xff000")
    if cfg.HPERM==2:
        a(f"s_add_u32 s{S_HA}, s{S_X}, s{S_T0}")
        a(f"s_and_b32 s{S_HA}, s{S_HA}, 7")
        a(f"s_lshl_b32 s{S_DM2}, s{S_T0}, 3")
        a(f"s_add_u32 s{S_HA}, s{S_HA}, s{S_DM2}")
    elif cfg.HPERM:
        a(f"s_lshl_b32 s{S_HA}, s{S_T0}, 3")
        a(f"s_add_u32 s{S_HA}, s{S_HA}, s{S_X}")
    else:
        a(f"s_mov_b32 s{S_HA}, s{S_H}")
    a(f"v_and_b32 v2, 15, v{V_LANE}")
    a(f"v_lshrrev_b32 v3, 4, v{V_LANE}")
    a(f"v_lshlrev_b32 v{V_VOFF}, 4, v{V_LANE}")
    a(f"v_lshrrev_b32 v4, 2, v2")
    a(f"v_and_b32 v5, 3, v2")
    a(f"v_lshlrev_b32 v6, 8, v4")
    a(f"v_lshlrev_b32 v7, 6, v3")
    a(f"v_lshlrev_b32 v8, 4, v5")
    a(f"v_add3_u32 v{V_KOFF}, v6, v7, v8")
    a(f"v_mov_b32 v{V_DMA}, 0")
    a("s_waitcnt lgkmcnt(0)")
    a(f"s_load_dwordx2 {sr(S_TAG,2)}, {sr(P_WS,2)}, {W_EPOCH}")
    a(f"s_lshl_b32 s{S_T0}, s{S_B}, 5")
    a(f"s_add_u32 s{S_T0}, s{S_T0}, s{S_HA}")
    a(f"s_lshl_b32 s{S_T0}, s{S_T0}, 20")
    for srd,p in ((SRD_K,P_K),(SRD_V,P_V)):
        a(f"s_add_u32 s{srd}, s{p}, s{S_T0}")
        a(f"s_addc_u32 s{srd+1}, s{p+1}, 0")
        a(f"s_and_b32 s{srd+1}, s{srd+1}, 0xffff")
        a(f"s_mov_b32 s{srd+2}, 0x100000")
        a(f"s_mov_b32 s{srd+3}, 0x20000")
    a(f"s_lshl_b32 s{S_T0}, s{S_W}, 11")
    a(f"v_lshlrev_b32 v9, 5, v{V_LANE}")
    a(f"v_add_u32 v9, s{S_T0}, v9")
    a(f"global_load_dwordx4 {vr(V_X,4)}, v9, {sr(P_X,2)}")
    a(f"global_load_dwordx4 {vr(V_X+4,4)}, v9, {sr(P_X,2)} offset:16")
    if cfg.HIGH_INLINE:
        a(f"s_cmp_lt_u32 s{S_W}, 4")
        a("s_cbranch_scc1 L_lowwaves")
    else:
        a(f"s_cmp_ge_u32 s{S_W}, 4")
        a("s_cbranch_scc1 L_high")
        a.ool(True)
    a("L_high:")
    a(f"v_lshrrev_b32 v10, 3, v{V_LANE}")
    a(f"v_and_b32 v11, 7, v{V_LANE}")
    a(f"v_lshlrev_b32 v11, 4, v11")
    a(f"s_lshr_b32 s{S_T4}, s{S_R}, 4")
    a(f"s_and_b32 s{S_T5}, s{S_R}, 15")
    a(f"s_cmp_eq_u32 s{S_W}, 4")
    a("s_cbranch_scc1 L_dma_wo")
    a(f"s_cmp_eq_u32 s{S_W}, 7")
    a("s_cbranch_scc1 L_dma_wd")
    a(f"s_cmp_ge_u32 s{S_R}, 28")
    a("s_cbranch_scc1 L_dma_done")
    a(f"s_mul_i32 s{S_T0}, s{S_R}, 37")
    a(f"s_lshr_b32 s{S_T0}, s{S_T0}, 8")
    a(f"s_mul_i32 s{S_T1}, s{S_T0}, 7")
    a(f"s_sub_u32 s{S_T1}, s{S_R}, s{S_T1}")
    a(f"s_mul_i32 s{S_T0}, s{S_T0}, {256*7168}")
    a(f"s_mul_i32 s{S_T2}, s{S_X}, 896")
    a(f"s_lshl_b32 s{S_T1}, s{S_T1}, 7")
    a(f"s_add_u32 s{S_T0}, s{S_T0}, s{S_T2}")
    a(f"s_add_u32 s{S_T0}, s{S_T0}, s{S_T1}")
    a(f"s_cmp_eq_u32 s{S_W}, 5")
    a(f"s_cselect_b32 s{S_B0}, s{P_WG}, s{P_WU}")
    a(f"s_cselect_b32 s{S_B0+1}, s{P_WG+1}, s{P_WU+1}")
    a(f"s_mov_b32 s{S_T3}, {L_WU}")
    a(f"s_cselect_b32 s{S_T3}, {L_WG}, s{S_T3}")
    a(f"s_add_u32 s{S_B0}, s{S_B0}, s{S_T0}")
    a(f"s_addc_u32 s{S_B0+1}, s{S_B0+1}, 0")
    a(f"s_mov_b32 s{S_T0}, 7168")
    a(f"s_mov_b32 s{S_T1}, 32")
    a("s_branch L_dma_go")
    a("L_dma_wo:")
    if cfg.HPERM==2:
        a(f"s_lshl_b32 s{S_T0}, s{S_T4}, 1")
        a(f"s_add_u32 s{S_T0}, s{S_T0}, s{S_X}")
        a(f"s_add_u32 s{S_T2}, s{S_T0}, 1")
        a(f"s_and_b32 s{S_T0}, s{S_T0}, 7")
        a(f"s_and_b32 s{S_T2}, s{S_T2}, 7")
        a(f"s_add_u32 s{S_T2}, s{S_T2}, 7")
        a(f"s_sub_u32 s{S_T2}, s{S_T2}, s{S_T0}")
        a(f"s_lshl_b32 s{S_DJ}, s{S_T2}, 18")
        a(f"s_lshl_b32 s{S_T2}, s{S_T4}, 4")
        a(f"s_add_u32 s{S_T0}, s{S_T0}, s{S_T2}")
        a(f"s_lshl_b32 s{S_T0}, s{S_T0}, 18")
    elif cfg.HPERM:
        a(f"s_lshl_b32 s{S_T0}, s{S_T4}, 4")
        a(f"s_add_u32 s{S_T0}, s{S_T0}, s{S_X}")
        a(f"s_lshl_b32 s{S_T0}, s{S_T0}, 18")
    else:
        a(f"s_lshl_b32 s{S_T0}, s{S_X}, 1")
        a(f"s_add_u32 s{S_T0}, s{S_T0}, s{S_T4}")
        a(f"s_lshl_b32 s{S_T0}, s{S_T0}, 19")
    a(f"s_lshl_b32 s{S_T1}, s{S_T5}, 7")
    a(f"s_add_u32 s{S_T0}, s{S_T0}, s{S_T1}")
    a(f"s_add_u32 s{S_B0}, s{P_WO}, s{S_T0}")
    a(f"s_addc_u32 s{S_B0+1}, s{P_WO+1}, 0")
    a(f"s_mov_b32 s{S_T3}, {L_WO}")
    a(f"s_mov_b32 s{S_T0}, 2048")
    a(f"s_mov_b32 s{S_T1}, 32")
    a("s_branch L_dma_go")
    a("L_dma_wd:")
    a(f"s_lshl_b32 s{S_T0}, s{S_X}, 1")
    a(f"s_add_u32 s{S_T0}, s{S_T0}, s{S_T4}")
    a(f"s_mul_i32 s{S_T0}, s{S_T0}, {224*2048}")
    a(f"s_lshl_b32 s{S_T1}, s{S_T5}, 7")
    a(f"s_add_u32 s{S_T0}, s{S_T0}, s{S_T1}")
    a(f"s_add_u32 s{S_B0}, s{P_WD}, s{S_T0}")
    a(f"s_addc_u32 s{S_B0+1}, s{P_WD+1}, 0")
    a(f"s_mov_b32 s{S_T3}, {L_WD}")
    a(f"s_mov_b32 s{S_T0}, 2048")
    a(f"s_mov_b32 s{S_T1}, 28")
    a("L_dma_go:")
    a(f"v_mul_lo_u32 v10, v10, s{S_T0}")
    a(f"s_lshl_b32 s{S_T0}, s{S_T0}, 3")
    a(f"v_add_u32 v10, v10, v11")
    a(f"s_mov_b32 m0, s{S_T3}")
    a("s_nop 0")
    for n in range(cfg.P0):
        a(f"global_load_lds_dwordx4 v10, {sr(S_B0,2)} {cfg.WFLAGS}")
        a(f"s_add_u32 m0, m0, 1024")
        a(f"s_add_u32 s{S_B0}, s{S_B0}, s{S_T0}")
        a(f"s_addc_u32 s{S_B0+1}, s{S_B0+1}, 0")
    a(f"s_sub_u32 s{S_DN}, s{S_T1}, {cfg.P0}")
    a(f"s_mov_b32 s{S_DS}, s{S_T0}")
    if cfg.HPERM==2:
        a(f"s_cmp_eq_u32 s{S_W}, 4")
        a(f"s_cselect_b32 s{S_DJ}, s{S_DJ}, 0")
    else:
        a(f"s_mov_b32 s{S_DJ}, 0")
        if cfg.HPERM:
            a(f"s_cmp_eq_u32 s{S_W}, 4")
            a(f"s_cselect_b32 s{S_DJ}, {896*2048}, 0")
    a(f"v_mov_b32 v{V_DMA}, v10")
    a(f"s_mov_b32 s{S_LNW}, 1") if cfg.LNDRY else a(f"s_waitcnt vmcnt({cfg.P0})")
    a("s_branch L_ln1")
    a("L_dma_done:")
    a(f"s_mov_b32 s{S_DN}, 0")
    a(f"s_mov_b32 s{S_B0}, s{P_WS}")
    a(f"s_mov_b32 s{S_B0+1}, s{P_WS+1}")
    a(f"v_mov_b32 v{V_DMA}, 0")
    a(f"s_mov_b32 s{S_LNW}, 0") if cfg.LNDRY else a("s_waitcnt vmcnt(0)")
    a("s_branch L_ln1")

    a.ool(False)
    a("L_lowwaves:")
    a(f"v_lshlrev_b32 v12, 13, v3")
    a(f"v_lshlrev_b32 v11, 1, v3")
    a(f"v_xor_b32 v10, v2, v11")
    a(f"v_xor_b32 v11, 8, v10")
    a(f"v_lshl_add_u32 v10, v10, 4, v12")
    a(f"v_lshl_add_u32 v11, v11, 4, v12")
    a(f"s_lshl_b32 s{S_T0}, s{S_B}, 7")
    a(f"s_lshl_b32 s{S_T1}, s{S_W}, 5")
    a(f"s_add_u32 s{S_T0}, s{S_T0}, s{S_T1}")
    a(f"s_lshl_b32 s{S_T0}, s{S_T0}, 13")
    a(f"s_lshl_b32 s{S_T1}, s{S_HA}, 8")
    a(f"s_add_u32 s{S_T0}, s{S_T0}, s{S_T1}")
    a(f"s_add_u32 s{S_B0}, s{P_WQ}, s{S_T0}")
    a(f"s_addc_u32 s{S_B0+1}, s{P_WQ+1}, 0")
    a(f"s_lshl_b32 s{S_T1}, s{S_W}, 13")
    a(f"s_add_u32 m0, s{S_T1}, {L_WQ}")
    a("s_nop 0")
    for n in range(8):
        a(f"global_load_lds_dwordx4 v{10+((n>>1)&1)}, {sr(S_B0,2)} {cfg.WFLAGS}")
        if n<7:
            a(f"s_add_u32 m0, m0, 1024")
            a(f"s_add_u32 s{S_B0}, s{S_B0}, {4*8192}")
            a(f"s_addc_u32 s{S_B0+1}, s{S_B0+1}, 0")
    if cfg.RING_EARLY:
        a(f"s_cmp_ge_u32 s{S_W}, {NSW}")
        a("s_cbranch_scc1 L_low_nostr")
        a(f"s_lshl_b32 s{S_KOFF}, s{S_W}, 12")
        if cfg.ROT or cfg.ROTX:
            a(f"s_add_u32 s{S_KOFF}, s{S_KOFF}, s{S_ROT}")
            a(f"s_and_b32 s{S_KOFF}, s{S_KOFF}, 0xfffff")
        for j in range(cfg.LS or LK): kload(j)
        a(f"s_mov_b32 s{S_LNW}, 2") if cfg.LNDRY else a(f"s_waitcnt vmcnt({8+(cfg.LS or LK)})")
        a("s_branch L_ln1_low")
        a("L_low_nostr:")
    a(f"s_mov_b32 s{S_LNW}, 3") if cfg.LNDRY else a(f"s_waitcnt vmcnt(8)")
    a("L_ln1_low:")
    a("L_ln1:")
    if cfg.LNDRY:
        a(f"s_or_b32 s{S_LNW}, s{S_LNW}, 0x10")
        a("L_ln1_again:")
    layernorm2(a, V_X, V_X+8, V_X+24, V_T)
    if cfg.LNDRY:
        a(f"s_bitcmp0_b32 s{S_LNW}, 4")
        a("s_cbranch_scc1 L_ln1_done")
        a(f"s_and_b32 s{S_LNW}, s{S_LNW}, 0xf")
        for k,n in ((0,0),(1,cfg.P0),(2,8+LK),(3,8)):
            a(f"s_cmp_lg_u32 s{S_LNW}, {k}")
            a(f"s_cbranch_scc1 L_lnw{k}")
            a(f"s_waitcnt vmcnt({n})")
            a(f"L_lnw{k}:")
        a("s_branch L_ln1_again")
        a("L_ln1_done:")
    a(f"s_lshl_b32 s{S_T0}, s{S_B}, 3")
    a(f"v_subrev_u32 v10, s{S_T0}, v{V_LANE}")
    a(f"v_cmp_gt_u32 vcc, 8, v10")
    a(f"s_mul_i32 s{S_T1}, s{S_W}, {LNA_P}")
    a(f"s_add_u32 s{S_T1}, s{S_T1}, {L_LNA}")
    a(f"v_lshlrev_b32 v10, 5, v10")
    a(f"v_add_u32 v10, s{S_T1}, v10")
    a(f"s_and_saveexec_b64 {sr(S_EX,2)}, vcc")
    a(f"ds_write_b128 v10, {vr(V_X+24,4)}")
    a(f"ds_write_b128 v10, {vr(V_X+28,4)} offset:16")
    a(f"s_mov_b64 exec, {sr(S_EX,2)}")
    a(f"s_cmp_ge_u32 s{S_W}, 4")
    a("s_cbranch_scc1 L_b1")
    if cfg.RING_EARLY:
        a(f"s_cmp_ge_u32 s{S_W}, {NSW}")
        a("s_cbranch_scc1 L_b1_ns")
        a(f"s_waitcnt vmcnt({cfg.LS or LK})")
        a("s_branch L_b1")
        a("L_b1_ns:")
    a("s_waitcnt vmcnt(0)")
    a("L_b1:")
    a("s_waitcnt lgkmcnt(0)")
    a(f"s_cmp_lg_u32 s{S_W}, 0")
    a("s_cbranch_scc1 L_noqf")
    a(f"v_mov_b32 v10, {L_QF}")
    a(f"v_mov_b32 v11, 0")
    a(f"ds_write_b32 v10, v11")
    a(f"ds_write_b32 v10, v11 offset:{L_MODE-L_QF}")
    a("s_waitcnt lgkmcnt(0)")
    a("L_noqf:")
    a("s_barrier")
    stamp(a,cfg,1)
    a(f"s_add_u32 s{S_TAG}, s{S_TAG}, 1")
    a(f"s_addc_u32 s{S_TAG+1}, s{S_TAG+1}, 0")
    a(f"v_and_b32 v10, 1, v2")
    a(f"v_cmp_eq_u32 vcc, 1, v10")
    a(f"v_mov_b32 v11, 0xffff")
    a(f"v_mov_b32 v12, 0xffff0000")
    a(f"v_cndmask_b32 v11, v11, v12, vcc")
    a(f"v_lshrrev_b32 v10, 1, v2")
    for w in range(4):
        a(f"v_cmp_eq_u32 vcc, {w}, v10")
        a("s_nop 1")
        a(f"v_cndmask_b32 v{V_MASK+w}, 0, v11, vcc")
    a(f"v_mov_b32 v{V_MAX}, 0xff800000")
    a(f"s_mov_b32 s{S_SCALE}, 0x3db504f3")
    a(f"s_mov_b32 s{S_LOG2E}, 0x3fb8aa3b")
    for c in range(4):
        a(f"v_mov_b32 v{V_OACC+c}, 0")
    a(f"s_cmp_ge_u32 s{S_W}, 4")
    a("s_cbranch_scc1 L_high2")
    a.ool(True)
    a("L_high2:")
    if cfg.CLR7:
        a(f"s_cmp_lg_u32 s{S_W}, 7")
        a("s_cbranch_scc1 L_h2_noclr")
        if not cfg.NOCLR: emit_clears(a,"7")
        a("L_h2_noclr:")
    if cfg.NODMA2: a(f"s_mov_b32 s{S_DN}, 0")
    a(f"s_cmp_eq_u32 s{S_DN}, 0")
    a("s_cbranch_scc1 L_dma2_done")
    if cfg.DMAPAUSE:
        a(f"v_mov_b32 v10, {L_QF}")
        a(f"s_mov_b32 s{S_SPIN}, {cfg.SPIN}")
        a("L_dp_wait:")
        a(f"ds_read_b32 v11, v10")
        a("s_waitcnt lgkmcnt(0)")
        a(f"v_readfirstlane_b32 s{S_T0}, v11")
        a("s_nop 1")
        a(f"s_cmp_lg_u32 s{S_T0}, 0")
        a("s_cbranch_scc1 L_dma2_loop")
        a("s_sleep 2")
        a(f"s_sub_u32 s{S_SPIN}, s{S_SPIN}, 1")
        a(f"s_cmp_lg_u32 s{S_SPIN}, 0")
        a("s_cbranch_scc1 L_dp_wait")
    a("L_dma2_loop:")
    a(f"s_waitcnt vmcnt({cfg.P-1})")
    a(f"global_load_lds_dwordx4 v{V_DMA}, {sr(S_B0,2)} {cfg.WFLAGS}")
    a(f"s_add_u32 m0, m0, 1024")
    a(f"s_add_u32 s{S_B0}, s{S_B0}, s{S_DS}")
    a(f"s_addc_u32 s{S_B0+1}, s{S_B0+1}, 0")
    a(f"s_sub_u32 s{S_DN}, s{S_DN}, 1")
    if cfg.HPERM:
        a(f"s_cmp_eq_u32 s{S_DN}, 16")
        a(f"s_cselect_b32 s{S_DM2}, s{S_DJ}, 0")
        a(f"s_add_u32 s{S_B0}, s{S_B0}, s{S_DM2}")
        a(f"s_addc_u32 s{S_B0+1}, s{S_B0+1}, 0")
    a(f"s_cmp_lg_u32 s{S_DN}, 0")
    a("s_cbranch_scc1 L_dma2_loop")
    a("L_dma2_done:")
    a("s_waitcnt vmcnt(0)")
    stamp(a,cfg,13)
    if cfg.CLR7:
        a(f"s_cmp_lg_u32 s{S_W}, 7")
        a("s_cbranch_scc1 L_h2_nordy")
        emit_rdy(a)
        a("L_h2_nordy:")
    emit_precompute(a,cfg)
    emit_rdycheck(a,cfg)
    a("s_branch L_kdone")
    a.ool(False)
    a("L_q_low:")
    if not cfg.RING_EARLY:
        a(f"s_cmp_ge_u32 s{S_W}, {NSW}")
        a("s_cbranch_scc1 L_ring_late_skip")
        a(f"s_lshl_b32 s{S_KOFF}, s{S_W}, 12")
        if cfg.ROT or cfg.ROTX:
            a(f"s_add_u32 s{S_KOFF}, s{S_KOFF}, s{S_ROT}")
            a(f"s_and_b32 s{S_KOFF}, s{S_KOFF}, 0xfffff")
        for j in range(cfg.LS or LK): kload(j)
        a("L_ring_late_skip:")
    a(f"s_cmp_lt_u32 s{S_W}, 2")
    a("s_cbranch_scc1 L_q_01")
    a.ool(True)
    a("L_q_01:")
    emit_precompute(a,cfg)
    a(f"s_cmp_eq_u32 s{S_W}, 0")
    a("s_cbranch_scc1 L_q_w0")
    a("s_branch L_q_w1")
    a.ool(False)
    a("L_q_prod:")
    a(f"v_and_b32 v10, 7, v{V_LANE}")
    a(f"v_mul_u32_u24 v10, {LNA_P}, v10")
    a(f"v_lshlrev_b32 v11, 4, v3")
    a(f"v_add_u32 v10, v10, v11")
    a(f"v_add_u32 v10, {L_LNA}, v10")
    for s_ in range(4):
        a(f"ds_read_b128 {vr(V_X+4*s_,4)}, v10 offset:{64*s_}")
    a(f"v_lshlrev_b32 v11, 3, v3")
    a(f"v_add_u32 v11, v11, v4")
    a(f"v_lshlrev_b32 v11, 8, v11")
    a(f"v_lshlrev_b32 v12, 3, v5")
    a(f"v_add3_u32 v11, v11, v12, {0}") if False else None
    a(f"v_add_u32 v11, v11, v12")
    a(f"v_add_u32 v11, {L_WQ}, v11")
    a(f"v_and_b32 v12, 1, v3")
    a(f"v_lshlrev_b32 v12, 2, v12")
    a(f"v_or_b32 v12, v12, v4")
    a(f"s_sub_u32 s{S_T4}, s{S_W}, 2")
    a(f"s_lshl_b32 s{S_T0}, s{S_T4}, 2")
    a(f"v_xor_b32 v12, s{S_T0}, v12")
    for tt in range(4):
        a(f"v_xor_b32 v13, {tt}, v12")
        a(f"v_lshl_add_u32 v{V_T+16+tt}, v13, 5, v11")
    for tt in range(4):
        for s_ in range(4):
            for hf in range(2):
                reg=V_RING+tt*16+s_*4+hf*2
                a(f"ds_read_b64_tr_b16 {vr(reg,2)}, v{V_T+16+tt} offset:{(32*s_+4*hf)*256}")
    a(f"s_lshl_b32 s{S_T0}, s{S_H}, 3")
    a(f"s_add_u32 s{S_T0}, s{S_T0}, s{S_B}")
    a(f"s_lshl_b32 s{S_T0}, s{S_T0}, 13")
    a(f"s_lshl_b32 s{S_T1}, s{S_T4}, 9")
    a(f"s_add_u32 s{S_T0}, s{S_T0}, s{S_T1}")
    a(f"s_add_u32 s{S_T0}, s{S_T0}, {W_QP}")
    a(f"v_and_b32 v10, 7, v2")
    a(f"v_lshlrev_b32 v10, 10, v10")
    a(f"v_lshlrev_b32 v11, 5, v3")
    a(f"v_lshrrev_b32 v12, 3, v2")
    a(f"v_lshl_add_u32 v11, v12, 4, v11")
    a(f"v_add3_u32 v{V_QADDR}, v10, v11, s{S_T0}")
    a(f"v_cmp_eq_u32 {sr(S_B1,2)}, 1, v12")
    G=V_X+16
    for tt in range(4):
        a(f"v_mov_b32 v{G+4*tt+2}, s{S_TAG}")
        a(f"v_mov_b32 v{G+4*tt+3}, s{S_TAG+1}")
    a("s_waitcnt lgkmcnt(0)")
    for s_ in range(4):
        for tt in range(4):
            c = "0" if s_==0 else vr(V_T+4*tt,4)
            a(f"v_mfma_f32_16x16x32_bf16 {vr(V_T+4*tt,4)}, {vr(V_RING+tt*16+s_*4,4)}, {vr(V_X+4*s_,4)}, {c}")
    a("s_nop 7")
    for tt in range(4):
        a(f"v_cndmask_b32 v{G+4*tt}, v{V_T+4*tt}, v{V_T+4*tt+2}, {sr(S_B1,2)}")
        a(f"v_cndmask_b32 v{G+4*tt+1}, v{V_T+4*tt+1}, v{V_T+4*tt+3}, {sr(S_B1,2)}")
    def qstores(fl):
        for tt in range(4):
            a(f"global_store_dwordx4 v{V_QADDR}, {vr(G+4*tt,4)}, {sr(P_WS,2)} offset:{128*tt} {fl}")
    qstores("" if cfg.QFAST else "sc1")
    stamp(a,cfg,13)
    a("s_branch L_prod2")
    a.ool(True)
    a("L_prod2:")
    if cfg.QFAST and cfg.CONDCOPY:
        a(f"v_mov_b32 v10, {L_MODE}")
        a(f"s_mov_b32 s{S_SPIN}, {cfg.SPIN}")
        a("L_qc_wait:")
        a("s_sleep 16")
        a(f"ds_read_b32 v11, v10")
        a("s_waitcnt lgkmcnt(0)")
        a(f"v_readfirstlane_b32 s{S_T0}, v11")
        a("s_nop 1")
        a(f"s_cmp_lg_u32 s{S_T0}, 0")
        a("s_cbranch_scc1 L_qc_go")
        a(f"s_sub_u32 s{S_SPIN}, s{S_SPIN}, 1")
        a(f"s_cmp_lg_u32 s{S_SPIN}, 0")
        a("s_cbranch_scc1 L_qc_wait")
        a("L_qc_go:")
        a(f"s_cmp_eq_u32 s{S_T0}, 2")
        a("s_cbranch_scc1 L_qc_skip")
        qstores("sc1")
        a("L_qc_skip:")
    elif cfg.QFAST:
        a(f"v_mov_b32 v10, {L_QF}")
        a(f"s_mov_b32 s{S_SPIN}, {cfg.QWAIT}")
        a("L_qc_wait:")
        a("s_sleep 4")
        a(f"ds_read_b32 v11, v10")
        a("s_waitcnt lgkmcnt(0)")
        a(f"v_readfirstlane_b32 s{S_T0}, v11")
        a("s_nop 1")
        a(f"s_cmp_lg_u32 s{S_T0}, 0")
        a("s_cbranch_scc1 L_qc_go")
        a(f"s_sub_u32 s{S_SPIN}, s{S_SPIN}, 1")
        a(f"s_cmp_lg_u32 s{S_SPIN}, 0")
        a("s_cbranch_scc1 L_qc_wait")
        a("L_qc_go:")
        if not cfg.NOCOPY: qstores("sc1")
    if not cfg.CLR7:
        a(f"s_cmp_lg_u32 s{S_W}, 3")
        a("s_cbranch_scc1 L_q_prod2")
        if not cfg.NOCLR: emit_clears(a)
        a("s_waitcnt vmcnt(0)")
        emit_rdy(a)
    a("L_q_prod2:")
    emit_precompute(a,cfg)
    if cfg.CODEPF:
        a(f"s_cmp_lg_u32 s{S_W}, 2")
        a("s_cbranch_scc1 L_pf1_skip")
        emit_codepf(a,cfg,"L_pf1","L_q_ready","L_exit")
        a("L_pf1_skip:")
    a(f"global_load_dwordx2 {vr(V_XRES,2)}, v9, {sr(P_X,2)}")
    a("s_branch L_kdone")
    a.ool(False)
    a("L_q_w1:")
    if NSW<2:
        a("s_branch L_kdone")
    a(f"v_mov_b32 v10, {L_QF}")
    a(f"s_mov_b32 s{S_SPIN}, {cfg.SPIN}")
    a("L_qf_wait:")
    a(f"ds_read_b32 v11, v10")
    a("s_waitcnt lgkmcnt(0)")
    a(f"v_readfirstlane_b32 s{S_T0}, v11")
    a("s_nop 1")
    a(f"s_cmp_lg_u32 s{S_T0}, 0")
    a("s_cbranch_scc1 L_q_ready")
    a(f"s_sub_u32 s{S_SPIN}, s{S_SPIN}, 1")
    a(f"s_cmp_lg_u32 s{S_SPIN}, 0")
    a("s_cbranch_scc1 L_qf_wait")
    a("s_branch L_q_ready")
    a("L_q_w0:")
    a(f"s_lshl_b32 s{S_T0}, s{S_H}, 16")
    a(f"s_lshl_b32 s{S_T1}, s{S_B}, 10")
    a(f"s_add_u32 s{S_T0}, s{S_T0}, s{S_T1}")
    a(f"s_add_u32 s{S_T0}, s{S_T0}, {W_QP}")
    a(f"v_add_u32 v10, s{S_T0}, v{V_VOFF}")
    for j in range(8):
        a(f"v_add_u32 v{V_T+8+j}, {j*8192}, v10")
    PQ=V_X+16
    lp=a.label("qpoll"); dn=a.label("qok")
    a(f"s_mov_b32 s{S_SPIN}, {cfg.SPIN}")
    a(f"{lp}:")
    for j in range(8):
        a(f"global_load_dwordx4 {vr(PQ+4*j,4)}, v{V_T+8+j}, {sr(P_WS,2)} sc1")
    a("s_waitcnt vmcnt(0)")
    a(f"v_mov_b32 v11, 0")
    for j in range(8):
        a(f"v_xor_b32 v12, s{S_TAG}, v{PQ+4*j+2}")
        a(f"v_xor_b32 v13, s{S_TAG+1}, v{PQ+4*j+3}")
        a(f"v_or3_b32 v11, v11, v12, v13")
    a(f"v_cmp_ne_u32 vcc, 0, v11")
    a(f"s_cbranch_vccz {dn}")
    if cfg.QSLEEP: a(f"s_sleep {cfg.QSLEEP}")
    a(f"s_sub_u32 s{S_SPIN}, s{S_SPIN}, 1")
    a(f"s_cmp_lg_u32 s{S_SPIN}, 0")
    a(f"s_cbranch_scc1 {lp}")
    a(f"{dn}:")
    stamp(a,cfg,14)
    for j in range(1,8):
        a(f"v_add_f32 v{PQ}, v{PQ}, v{PQ+4*j}")
        a(f"v_add_f32 v{PQ+1}, v{PQ+1}, v{PQ+4*j+1}")
    a(f"v_cvt_pk_bf16_f32 v{PQ+2}, v{PQ}, v{PQ+1}")
    a(f"v_lshlrev_b32 v11, 2, v{V_LANE}")
    a(f"v_add_u32 v11, {L_QS}, v11")
    a(f"ds_write_b32 v11, v{PQ+2}")
    a("s_waitcnt lgkmcnt(0)")
    a(f"v_mov_b32 v10, {L_QF}")
    a(f"v_mov_b32 v11, 1")
    a(f"ds_write_b32 v10, v11")
    a("L_q_ready:")
    stamp(a,cfg,2)
    a(f"v_lshlrev_b32 v10, 2, v3")
    a(f"v_add_u32 v10, v10, v5")
    a(f"v_lshlrev_b32 v10, 4, v10")
    a(f"v_add_u32 v10, {L_QS}, v10")
    a(f"ds_read_b128 {vr(V_T,4)}, v10")
    a(f"s_lshl_b32 s{S_T0}, s{S_W}, 6")
    a(f"s_add_u32 s{S_T0}, s{S_T0}, {L_SC}")
    a(f"v_lshlrev_b32 v10, 4, v4")
    a(f"v_lshlrev_b32 v11, 2, v3")
    a(f"v_add3_u32 v{V_SCW}, v10, v11, s{S_T0}")
    a("s_waitcnt lgkmcnt(0)")
    for n in range(4):
        a(f"v_cmp_eq_u32 vcc, {n}, v4")
        a("s_nop 1")
        for c in range(4):
            a(f"v_cndmask_b32 v{V_QA+4*n+c}, 0, v{V_T+c}, vcc")
    import math
    PERK=LK*4//math.gcd(LK,4)
    def kpost(acc, sc_off):
        t=V_T
        a(f"v_mov_b32_dpp v{t}, v{acc} quad_perm:[0,0,0,0] row_mask:0xf bank_mask:0xf")
        for q in range(1,4):
            a(f"v_add_f32_dpp v{t}, v{acc+q}, v{t} quad_perm:[{q},{q},{q},{q}] row_mask:0xf bank_mask:0xf")
        round_bf16(a,t,t)
        a(f"v_mul_f32 v{t}, s{S_SCALE}, v{t}")
        round_bf16(a,t,t)
        a(f"v_max_f32 v{V_MAX}, v{V_MAX}, v{t}")
        a(f"ds_write_b32 v{V_SCW}, v{t} offset:{sc_off}")
    def kbody(j, wait_n, reissue, sc_off, prev_off=None, last=False):
        a(f"s_waitcnt vmcnt({wait_n})")
        a("s_nop 0")
        n=j%4
        if cfg.KEXP==2:
            acc=V_SACC if (j//4)%2==0 else V_SACC2
        else:
            acc=V_SACC
        c="0" if n==0 else vr(acc,4)
        a(f"v_mfma_f32_16x16x32_bf16 {vr(acc,4)}, {vr(V_QA+4*n,4)}, {vr(V_RING+(j%LK)*4,4)}, {c}")
        reissue()
        if cfg.KEXP==2:
            if n==1 and prev_off is not None:
                kpost(V_SACC2 if (j//4)%2==0 else V_SACC, prev_off)
            if n==3 and last:
                a("s_nop 7")
                kpost(acc, sc_off)
        elif n==3:
            if cfg.KEXP==1: return
            a("s_nop 7")
            kpost(acc, sc_off)
    if cfg.KEXP==2 and (PERK//4)%2: PERK*=2
    nloop=(NK-LK)//PERK
    TS=NSW*64
    if cfg.KEXP==2:
        for j in range(4):
            kbody(j, LK-1, (lambda j=j: kload(j+LK)), 0, None)
        base=4
        nloop=(NK-LK-4)//PERK
    else:
        base=0
    if cfg.LS:
        assert cfg.KEXP!=2 and cfg.KS0%PERK==0
        for j in range(cfg.KS0):
            kbody(j, cfg.LS-1, (lambda j=j: kload(j+cfg.LS)), (j//4)*TS)
        for m in range(cfg.KS0+cfg.LS, cfg.KS0+LK): kload(m)
        a(f"v_add_u32 v{V_SCW}, {(cfg.KS0//4)*TS}, v{V_SCW}")
        nloop=(NK-LK-cfg.KS0)//PERK
    a(f"s_mov_b32 s{S_LOOP}, {nloop}")
    a(".p2align 6")
    a("L_kloop:")
    for j in range(base,base+PERK):
        kbody(j, LK-1, (lambda j=j: kload(j+LK)), ((j-0)//4)*TS, ((j//4)-1)*TS)
    a(f"v_add_u32 v{V_SCW}, {(PERK//4)*TS}, v{V_SCW}")
    a(f"s_sub_u32 s{S_LOOP}, s{S_LOOP}, 1")
    a(f"s_cmp_lg_u32 s{S_LOOP}, 0")
    a("s_cbranch_scc1 L_kloop")
    done=base+nloop*PERK+(cfg.KS0 if cfg.LS else 0)
    for j in range(done, NK):
        m=j+LK
        if m<NK: ri=(lambda m=m: kload(m)); wn=LK-1
        elif m-NK<L: ri=(lambda m=m: vload(m-NK, first=(m==NK))); wn=LK-1
        else: ri=(lambda: None); wn=(NK-1-j)+L
        rel=(j-nloop*PERK-(cfg.KS0 if cfg.LS else 0))//4
        kbody(j, wn, ri, rel*TS, (rel-1)*TS, last=(j==NK-1))
    a("L_kdone:")
    stamp(a,cfg,3)
    wave_sum(a, V_MAX, V_T, op="max")
    a(f"s_lshl_b32 s{S_T0}, s{S_W}, 2")
    a(f"s_add_u32 s{S_T0}, s{S_T0}, {L_ML}")
    a(f"v_mov_b32 v11, s{S_T0}")
    a(f"ds_write_b32 v11, v{V_MAX}")
    a("s_waitcnt lgkmcnt(0)")
    a("s_barrier")
    if cfg.LATE_L:
        a(f"s_cmp_lg_u32 s{S_W}, 2")
        a("s_cbranch_scc1 L_nokd")
        a(f"v_mov_b32 v12, {L_MODE}")
        a(f"ds_read_b32 v13, v12")
        a(f"s_lshl_b32 s{S_T0}, s{S_X}, 9")
        a(f"s_add_u32 s{S_T0}, s{S_T0}, {W_KD}")
        a(f"v_and_b32 v10, 31, v{V_LANE}")
        a(f"v_lshlrev_b32 v10, 4, v10")
        a(f"v_add_u32 v10, s{S_T0}, v10")
        a(f"global_load_dwordx4 {vr(V_RDY,4)}, v10, {sr(P_WS,2)} sc1")
        if cfg.LATE_X:
            a(f"s_lshl_b32 s{S_T2}, s{S_R}, 7")
            a(f"s_add_u32 s{S_T2}, s{S_T2}, {W_KX}")
            a(f"v_and_b32 v11, 7, v{V_LANE}")
            a(f"v_lshlrev_b32 v11, 4, v11")
            a(f"v_add_u32 v11, s{S_T2}, v11")
            a(f"global_load_dwordx4 {vr(V_KX,4)}, v11, {sr(P_WS,2)} sc1")
        a(f"s_lshl_b32 s{S_T1}, s{S_R}, 4")
        a(f"s_add_u32 s{S_T0}, s{S_T0}, s{S_T1}")
        a(f"v_mov_b32 v10, s{S_T0}")
        if cfg.LATE_X:
            a(f"s_lshl_b32 s{S_T1}, s{S_X}, 4")
            a(f"s_add_u32 s{S_T2}, s{S_T2}, s{S_T1}")
            a(f"v_mov_b32 v11, s{S_T2}")
        a(f"v_mov_b32 v{V_X+8}, 1")
        a(f"v_mov_b32 v{V_X+9}, 0")
        a(f"v_mov_b32 v{V_X+10}, s{S_TAG}")
        a(f"v_mov_b32 v{V_X+11}, s{S_TAG+1}")
        a("s_waitcnt lgkmcnt(0)")
        a(f"v_readfirstlane_b32 s{S_FAST}, v13")
        a("s_nop 1")
        a(f"s_sub_u32 s{S_FAST}, s{S_FAST}, 1")
        set_exec(a,1,0)
        store_mode(a, f"global_store_dwordx4 v10, {vr(V_X+8,4)}, {sr(P_WS,2)}", True)
        if cfg.LATE_X: a(f"global_store_dwordx4 v11, {vr(V_X+8,4)}, {sr(P_WS,2)} sc1")
        full_exec(a)
        a(f"v_mov_b32 v10, {L_SEL}")
        a(f"v_mov_b32 v11, 0")
        a(f"ds_write_b32 v10, v11")
        a("L_nokd:")
    a(f"s_cmp_lt_u32 s{S_W}, {NSW}")
    a("s_cbranch_scc1 L_nohv")
    a(f"s_sub_u32 s{S_T0}, s{S_W}, {NSW}")
    a(f"s_mul_i32 s{S_T0}, s{S_T0}, {HV*4096}")
    if cfg.ROT or cfg.ROTX:
        assert HV==1
        a(f"s_add_u32 s{S_T0}, s{S_T0}, s{S_ROT}")
        a(f"s_and_b32 s{S_T0}, s{S_T0}, 0xfffff")
    for t in range(HV):
        for n in range(4):
            a(f"buffer_load_dwordx4 {vr(V_RING+t*16+n*4,4)}, v{V_VOFF}, {sr(SRD_V,4)}, s{S_T0} offen offset:{n*1024} {cfg.VFLAGS}")
        if t<HV-1: a(f"s_add_u32 s{S_T0}, s{S_T0}, 4096")
    a("L_nohv:")
    a(f"v_mov_b32 v12, {L_MODE}")
    a(f"ds_read_b32 v13, v12")
    a(f"v_mov_b32 v11, {L_ML}")
    a(f"ds_read_b128 {vr(V_X,4)}, v11")
    a(f"ds_read_b128 {vr(V_X+4,4)}, v11 offset:16")
    a(f"s_lshl_b32 s{S_T4}, s{S_W}, 11")
    a(f"s_add_u32 s{S_T4}, s{S_T4}, {L_SC}")
    a(f"v_lshlrev_b32 v10, 5, v{V_LANE}")
    a(f"v_add_u32 v10, s{S_T4}, v10")
    a(f"ds_read_b128 {vr(V_T,4)}, v10")
    a(f"ds_read_b128 {vr(V_T+4,4)}, v10 offset:16")
    a("s_waitcnt lgkmcnt(2)")
    a(f"v_readfirstlane_b32 s{S_FAST}, v13")
    a(f"v_max3_f32 v{V_MAX}, v{V_X}, v{V_X+1}, v{V_X+2}")
    a(f"s_sub_u32 s{S_FAST}, s{S_FAST}, 1")
    a(f"v_max3_f32 v{V_MAX}, v{V_MAX}, v{V_X+3}, v{V_X+4}")
    a(f"v_max3_f32 v{V_MAX}, v{V_MAX}, v{V_X+5}, v{V_X+6}")
    a(f"v_max_f32 v{V_MAX}, v{V_MAX}, v{V_X+7}")
    a("s_waitcnt lgkmcnt(0)")
    for i in range(8):
        a(f"v_sub_f32 v{V_T+8+i}, v{V_T+i}, v{V_MAX}")
        a(f"v_mul_f32 v{V_T+8+i}, s{S_LOG2E}, v{V_T+8+i}")
        a(f"v_exp_f32 v{V_T+8+i}, v{V_T+8+i}")
    a("s_nop 0")
    a(f"v_add_f32 v{V_T+16}, v{V_T+8}, v{V_T+9}")
    for i in range(2,8):
        a(f"v_add_f32 v{V_T+16}, v{V_T+16}, v{V_T+8+i}")
    wave_sum(a, V_T+16, V_T+17)
    a(f"s_lshl_b32 s{S_T0}, s{S_W}, 2")
    a(f"s_add_u32 s{S_T0}, s{S_T0}, {L_LS}")
    a(f"v_mov_b32 v11, s{S_T0}")
    a(f"ds_write_b32 v11, v{V_T+16}")
    a("s_waitcnt lgkmcnt(0)")
    a("s_barrier")
    a(f"v_mov_b32 v11, {L_LS}")
    a(f"ds_read_b128 {vr(V_X,4)}, v11")
    a(f"ds_read_b128 {vr(V_X+4,4)}, v11 offset:16")
    a("s_waitcnt lgkmcnt(0)")
    a(f"v_add_f32 v{V_T+16}, v{V_X}, v{V_X+1}")
    for k in range(2,8):
        a(f"v_add_f32 v{V_T+16}, v{V_T+16}, v{V_X+k}")
    a(f"v_rcp_f32 v{V_T+17}, v{V_T+16}")
    a("s_nop 0")
    a(f"v_fma_f32 v{V_T+18}, -v{V_T+16}, v{V_T+17}, 1.0")
    a(f"v_fma_f32 v{V_T+17}, v{V_T+18}, v{V_T+17}, v{V_T+17}")
    for i in range(8):
        a(f"v_mul_f32 v{V_T+8+i}, v{V_T+8+i}, v{V_T+17}")
        a(f"v_cvt_pk_bf16_f32 v{V_T+8+i}, v{V_T+8+i}, v{V_T+8+i}")
    a(f"ds_write_b128 v10, {vr(V_T+8,4)}")
    a(f"ds_write_b128 v10, {vr(V_T+12,4)} offset:16")
    a("s_waitcnt lgkmcnt(0)")
    a("s_barrier")
    stamp(a,cfg,4)
    def ands(dst,pp):
        for w in range(4):
            a(f"v_and_b32 v{dst+w}, v{pp}, v{V_MASK+w}")
    a(f"s_cmp_lt_u32 s{S_W}, {NSW}")
    a("s_cbranch_scc1 L_vstream")
    if cfg.LATE_L:
        a(f"s_cmp_lg_u32 s{S_W}, 2")
        a("s_cbranch_scc1 L_nokd2")
        a(f"s_waitcnt vmcnt({(2 if cfg.LATE_X else 1)+4*HV})")
        a(f"v_xor_b32 v11, s{S_TAG}, v{V_RDY+2}")
        a(f"v_xor_b32 v15, s{S_TAG+1}, v{V_RDY+3}")
        a(f"v_or_b32 v11, v11, v15")
        a(f"v_cmp_eq_u32 vcc, 0, v11")
        if cfg.LATE_X:
            a(f"v_xor_b32 v11, s{S_TAG}, v{V_KX+2}")
            a(f"v_xor_b32 v15, s{S_TAG+1}, v{V_KX+3}")
            a(f"v_or_b32 v11, v11, v15")
            a(f"v_cmp_eq_u32 {sr(S_B1,2)}, 0, v11")
        a("s_nop 1")
        a(f"s_bcnt1_i32_b32 s{S_T0}, vcc_lo")
        if cfg.LATE_X:
            a(f"s_and_b32 s{S_T1}, s{S_B1}, 0xff")
            a(f"s_bcnt1_i32_b32 s{S_T1}, s{S_T1}")
        if cfg.EARLY_L:
            a(f"s_cmp_le_u32 s{S_T0}, {cfg.EARLY_THR}")
            a(f"s_cselect_b32 s{S_T2}, 2, 0")
            a(f"s_cmp_ge_u32 s{S_T0}, {cfg.LATE_THR}")
            a(f"s_cselect_b32 s{S_T0}, 1, s{S_T2}")
        else:
            a(f"s_cmp_ge_u32 s{S_T0}, {cfg.LATE_THR}")
            a(f"s_cselect_b32 s{S_T0}, 1, 0")
        if cfg.LATE_X:
            a(f"s_cmp_ge_u32 s{S_T1}, {cfg.LATE_X}")
            a(f"s_cselect_b32 s{S_T0}, 1, s{S_T0}")
        a(f"v_mov_b32 v11, {L_SEL}")
        a(f"v_mov_b32 v15, s{S_T0}")
        a(f"ds_write_b32 v11, v15")
        a("L_nokd2:")
    a(f"s_sub_u32 s{S_T0}, s{S_W}, {NSW}")
    a(f"s_mul_i32 s{S_T0}, s{S_T0}, {HV*64}")
    a(f"s_add_u32 s{S_T0}, s{S_T0}, {L_SC}")
    a(f"v_lshlrev_b32 v10, 4, v3")
    a(f"v_add_u32 v10, s{S_T0}, v10")
    for t in range(HV):
        a(f"ds_read_b128 {vr(V_PP0,4)}, v10 offset:{t*64}")
        a(f"s_waitcnt vmcnt({4*(HV-1-t)}) lgkmcnt(0)")
        for n in range(4):
            A=V_A0 if n%2==0 else V_A1
            ands(A,V_PP0+n)
            a("s_nop 1")
            a(f"v_mfma_f32_16x16x32_bf16 {vr(V_OACC,4)}, {vr(A,4)}, {vr(V_RING+t*16+4*n,4)}, {vr(V_OACC,4)}")
    a("s_nop 7")
    set_exec(a, -1, 0)
    a(f"ds_write_b128 v{PA_OW}, {vr(V_OACC,4)}")
    full_exec(a)
    frag_reads(a,"ogd")
    if cfg.CODEPF:
        a(f"s_cmp_lg_u32 s{S_W}, 4")
        a("s_cbranch_scc1 L_pf2_skip")
        emit_codepf(a,cfg,"L_pf2","L_vdone","L_exit")
        a("L_pf2_skip:")
    a("s_waitcnt vmcnt(0) lgkmcnt(0)")
    a("s_branch L_vdone")
    a("L_vstream:")
    a(f"s_add_u32 s{S_T0}, s{S_W}, {NH*HV}")
    a(f"s_lshl_b32 s{S_T0}, s{S_T0}, 6")
    a(f"s_add_u32 s{S_T0}, s{S_T0}, {L_SC}")
    a(f"v_lshlrev_b32 v10, 4, v3")
    a(f"v_add_u32 v{V_PPR}, s{S_T0}, v10")
    a(f"ds_read_b128 {vr(V_PP0,4)}, v{V_PPR}")
    import math as _m
    base_ring=[(NK-LK+v)%LK for v in range(L)]
    spare=[x for x in range(16) if x not in base_ring]
    def vbody2(jv, rel, wait_n, slot, last_tile):
        n=jv%4; par=(jv//4)%2
        pp = V_PP0 if par==0 else V_PP1
        ppn = V_PP1 if par==0 else V_PP0
        if n==0:
            if not last_tile:
                a(f"ds_read_b128 {vr(ppn,4)}, v{V_PPR} offset:{(rel+1)*NSW*64}")
                a(f"s_waitcnt lgkmcnt(1)")
                a("s_nop 0")
            else:
                a(f"s_waitcnt lgkmcnt(0)")
                a("s_nop 0")
        A=V_A0 if n%2==0 else V_A1
        ands(A,pp+n)
        a(f"s_waitcnt vmcnt({wait_n})")
        a("s_nop 0")
        a(f"v_mfma_f32_16x16x32_bf16 {vr(V_OACC,4)}, {vr(A,4)}, {vr(V_RING+slot*4,4)}, {vr(V_OACC,4)}")
    def vissue(jn, slot):
        a(f"buffer_load_dwordx4 {vr(V_RING+slot*4,4)}, v{V_VOFF}, {sr(SRD_V,4)}, s{S_KOFF} offen offset:{(jn%4)*1024} {cfg.VFLAGS}")
        if jn%4==3:
            a(f"s_add_u32 s{S_KOFF}, s{S_KOFF}, {TSTEP}")
            if cfg.ROT or cfg.ROTX: a(f"s_and_b32 s{S_KOFF}, s{S_KOFF}, 0xfffff")
    S0=cfg.SEG0 if cfg.LATE_L else 0
    assert S0%8==0
    for jv in range(S0):
        vbody2(jv, jv//4, L-1, base_ring[jv%L], False)
        vissue(jv+L, base_ring[jv%L])
    if S0: a(f"v_add_u32 v{V_PPR}, {(S0//4)*NSW*64}, v{V_PPR}")
    def vstream(LV, sfx):
        cur=[base_ring[(S0+i)%L] for i in range(L)]
        j0=S0
        if LV<L:
            for d in range(L-LV):
                vbody2(j0, (j0-S0)//4, L-1-d, cur[0], False); cur=cur[1:]; j0+=1
            ring=cur
        else:
            ring=cur+spare[:LV-L]
            for k in range(L,LV): vissue(S0+k, ring[k])
        per=LV*4//_m.gcd(LV,4)
        if (per//4)%2: per*=2
        nl=(NV-j0-LV)//per
        a(f"s_mov_b32 s{S_LOOP}, {nl}")
        a(".p2align 6")
        a(f"L_vloop{sfx}:")
        for i in range(per):
            vbody2(j0+i, (j0+i-S0)//4, LV-1, ring[i%LV], False)
            vissue(j0+i+LV, ring[i%LV])
        a(f"v_add_u32 v{V_PPR}, {(per//4)*NSW*64}, v{V_PPR}")
        a(f"s_sub_u32 s{S_LOOP}, s{S_LOOP}, 1")
        a(f"s_cmp_lg_u32 s{S_LOOP}, 0")
        a(f"s_cbranch_scc1 L_vloop{sfx}")
        start=nl*per
        for i in range(start,NV-j0):
            jv=j0+i
            vbody2(jv, (jv-S0-start)//4, min(LV-1, NV-1-jv), ring[i%LV], jv//4==VT-1)
            if jv+LV<NV: vissue(jv+LV, ring[i%LV])
    if cfg.LATE_L:
        a(f"v_mov_b32 v10, {L_SEL}")
        a(f"ds_read_b32 v11, v10")
        a("s_waitcnt lgkmcnt(0)")
        a(f"v_readfirstlane_b32 s{S_T0}, v11")
        a("s_nop 1")
        a(f"s_cmp_eq_u32 s{S_T0}, 1")
        a("s_cbranch_scc1 L_vlate")
        if cfg.EARLY_L:
            a(f"s_cmp_eq_u32 s{S_T0}, 2")
            a("s_cbranch_scc1 L_vearly")
    vstream(L,"")
    if cfg.LATE_L:
        a("s_branch L_vdone")
        a.ool(True)
        a("L_vlate:")
        vstream(cfg.LATE_L,"b")
        a("s_branch L_vdone")
        if cfg.EARLY_L:
            a("L_vearly:")
            vstream(cfg.EARLY_L,"c")
            a("s_branch L_vdone")
        a.ool(False)
    a("L_vdone:")
    stamp(a,cfg,5)
    return a, None

PA=208
PA_O=PA+0; PA_T2=PA+1; PA_DW=PA+2; PA_R2=PA+3; PA_P2=PA+4; PA_T3A=PA+5; PA_T3B=PA+6; PA_T3W=PA+7; PA_T3R=PA+8; PA_H=PA+9
PA_T4=PA+10; PA_LNBW=PA+11; PA_HSW=PA+12; PA_LNBR=PA+13; PA_GP=PA+14; PA_ACT=PA+15; PA_T6=PA+16; PA_OUT=PA+17; PA_HSR=PA+18
PA_OW=PA+19; PA_OR=PA+20; PA_TR=PA+21
PA_T5B=PA+24
PA_T7=PA+28
V_XRES=PA+36
V_RDY=PA+40
V_KX=PA+44
SM_LNB=8; SM_HS=10
R_T1=2; R_RED0=2
R_W0=3

def emit_precompute(a, cfg):
    global SM_LNB, SM_HS
    T0,T1,T2,T3,T4,T5=S_T0,S_T1,S_T2,S_T3,S_T4,S_T5
    a(f"s_lshl_b32 s{T0}, s{S_H}, 3")
    a(f"s_add_u32 s{T0}, s{T0}, s{S_B}")
    a(f"s_lshl_b32 s{T0}, s{T0}, 8")
    a(f"s_add_u32 s{T0}, s{T0}, {W_OB}")
    a(f"v_lshlrev_b32 v10, 2, v{V_LANE}")
    a(f"v_add_u32 v{PA_O}, s{T0}, v10")
    a(f"s_lshl_b32 s{T0}, s{S_W}, 9")
    a(f"s_add_u32 s{T0}, s{T0}, {L_RED}")
    a(f"v_lshlrev_b32 v11, 5, v2")
    a(f"v_lshlrev_b32 v12, 4, v3")
    a(f"v_add3_u32 v{PA_OW}, v11, v12, s{T0}")
    a(f"v_lshlrev_b32 v11, 3, v{V_LANE}")
    a(f"v_add_u32 v{PA_OR}, {L_RED}, v11")
    a(f"v_lshlrev_b32 v11, 3, v3")
    a(f"v_add_u32 v11, v11, v4")
    a(f"v_lshlrev_b32 v11, 7, v11")
    a(f"v_lshlrev_b32 v13, 3, v5")
    a(f"v_add_u32 v{PA_TR}, v11, v13")
    a(f"s_lshr_b32 s{T4}, s{S_R}, 4")
    a(f"s_and_b32 s{T5}, s{S_R}, 15")
    a(f"v_and_b32 v14, 7, v{V_LANE}")
    a(f"s_lshl_b32 s{T0}, s{S_X}, 2")
    a(f"s_lshl_b32 s{T1}, s{T4}, 1")
    a(f"s_add_u32 s{T0}, s{T0}, s{T1}")
    a(f"s_lshr_b32 s{T1}, s{S_W}, 2")
    a(f"s_add_u32 s{T0}, s{T0}, s{T1}")
    a(f"s_lshl_b32 s{T0}, s{T0}, 11")
    a(f"s_and_b32 s{T1}, s{S_W}, 3")
    a(f"s_lshl_b32 s{T1}, s{T1}, 6")
    a(f"s_add_u32 s{T0}, s{T0}, s{T1}")
    a(f"s_add_u32 s{T0}, s{T0}, {W_OB}")
    a(f"v_lshlrev_b32 v10, 8, v14")
    a(f"v_add3_u32 v{PA_T2}, v10, v12, s{T0}")
    a(f"s_lshl_b32 s{T0}, s{S_W}, 11")
    a(f"s_add_u32 s{T0}, s{T0}, {L_SC}")
    a(f"v_lshlrev_b32 v10, 8, v2")
    a(f"v_xor_b32 v11, v3, v5")
    a(f"v_lshlrev_b32 v11, 4, v11")
    a(f"v_add3_u32 v{PA_DW}, v10, v11, s{T0}")
    a(f"s_sub_u32 s{T0}, s{S_W}, {R_RED0}")
    a(f"s_lshl_b32 s{T0}, s{T0}, 6")
    a(f"v_add_u32 v10, s{T0}, v{V_LANE}")
    a(f"v_and_b32 v10, 127, v10")
    a(f"v_lshrrev_b32 v11, 4, v10")
    a(f"v_and_b32 v13, 3, v11")
    a(f"v_xor_b32 v13, v13, v10")
    a(f"v_lshlrev_b32 v13, 4, v13")
    a(f"v_add_u32 v{PA_R2}, {L_SC}, v13")
    a(f"s_lshl_b32 s{T0}, s{S_X}, 1")
    a(f"s_add_u32 s{T0}, s{T0}, s{T4}")
    a(f"s_mul_i32 s{T0}, s{T0}, {cfg.APP}")
    a(f"s_lshl_b32 s{T1}, s{T5}, 8")
    a(f"s_add_u32 s{T0}, s{T0}, s{T1}")
    a(f"s_add_u32 s{T0}, s{T0}, {W_AP}")
    a(f"v_lshrrev_b32 v11, 4, v10")
    a(f"v_mul_u32_u24 v11, {cfg.APB}, v11")
    a(f"v_lshlrev_b32 v13, 4, v2")
    a(f"v_add3_u32 v{PA_P2}, v11, v13, s{T0}")
    a(f"s_lshr_b32 s{T0}, s{S_R}, 2")
    a(f"s_mul_i32 s{T0}, s{T0}, {cfg.APB}")
    a(f"s_and_b32 s{T1}, s{S_R}, 3")
    a(f"s_lshl_b32 s{T1}, s{T1}, 10")
    a(f"s_add_u32 s{T0}, s{T0}, s{T1}")
    a(f"s_mul_i32 s{T1}, s{S_W}, {2*cfg.APP}")
    a(f"s_add_u32 s{T0}, s{T0}, s{T1}")
    a(f"s_add_u32 s{T0}, s{T0}, {W_AP}")
    a(f"v_add_u32 v{PA_T3A}, s{T0}, v{V_VOFF}")
    a(f"v_add_u32 v{PA_T3B}, {cfg.APP}, v{PA_T3A}")
    RED3=L_RED+4096
    a(f"s_lshl_b32 s{T0}, s{S_W}, 10")
    a(f"s_add_u32 s{T0}, s{T0}, {RED3}")
    a(f"v_add_u32 v{PA_T3W}, s{T0}, v{V_VOFF}")
    a(f"v_add_u32 v{PA_T3R}, {RED3}, v{V_VOFF}")
    a(f"s_lshr_b32 s{T0}, s{S_R}, 2")
    a(f"s_lshl_b32 s{T1}, s{S_X}, 3")
    a(f"s_add_u32 s{T0}, s{T0}, s{T1}")
    a(f"s_lshl_b32 s{T0}, s{T0}, 11")
    a(f"s_and_b32 s{T1}, s{S_R}, 3")
    a(f"s_lshl_b32 s{T1}, s{T1}, 9")
    a(f"s_add_u32 s{T0}, s{T0}, s{T1}")
    a(f"s_add_u32 s{T0}, s{T0}, {W_HB}")
    a(f"v_lshlrev_b32 v10, 3, v{V_LANE}")
    a(f"v_add_u32 v{PA_H}, s{T0}, v10")
    a(f"s_lshr_b32 s{T0}, s{S_R}, 2")
    a(f"s_lshl_b32 s{T0}, s{T0}, 11")
    a(f"s_add_u32 s{T0}, s{T0}, s{T1}")
    a(f"v_add_u32 v9, s{T0}, v10")
    a(f"s_lshl_b32 s{T0}, s{S_X}, 3")
    a(f"s_add_u32 s{T0}, s{T0}, s{S_W}")
    a(f"s_lshl_b32 s{T0}, s{T0}, 11")
    a(f"s_add_u32 s{T0}, s{T0}, {W_HB}")
    a(f"v_lshlrev_b32 v10, 5, v{V_LANE}")
    a(f"v_add_u32 v{PA_T4}, s{T0}, v10")
    a(f"s_mul_i32 s{T2}, s{S_R}, 37")
    a(f"s_lshr_b32 s{T2}, s{T2}, 8")
    a(f"s_mul_i32 s{T3}, s{T2}, 7")
    a(f"s_sub_u32 s{T3}, s{S_R}, s{T3}")
    a(f"s_lshl_b32 s{T0}, s{T2}, 4")
    a(f"v_subrev_u32 v10, s{T0}, v{V_LANE}")
    a(f"v_cmp_gt_u32 {sr(SM_LNB,2)}, 16, v10")
    a(f"s_mul_i32 s{T1}, s{S_W}, {LNB_P}")
    a(f"s_add_u32 s{T1}, s{T1}, {L_LNB}")
    a(f"v_lshlrev_b32 v10, 5, v10")
    a(f"v_add_u32 v{PA_LNBW}, s{T1}, v10")
    a(f"s_lshl_b32 s{T0}, s{S_R}, 1")
    a(f"v_subrev_u32 v10, s{T0}, v{V_LANE}")
    a(f"v_cmp_gt_u32 {sr(SM_HS,2)}, 2, v10")
    a(f"v_lshlrev_b32 v10, 5, v10")
    a(f"v_add_u32 v{PA_HSW}, {L_HS}, v10")
    a(f"v_mul_u32_u24 v10, {LNB_P}, v14")
    a(f"v_add_u32 v10, v10, v12")
    a(f"v_add_u32 v{PA_LNBR}, {L_LNB}, v10")
    a(f"s_mul_i32 s{T0}, s{S_X}, 28")
    a(f"s_add_u32 s{T0}, s{T0}, s{S_R}")
    a(f"s_lshl_b32 s{T0}, s{T0}, 12")
    a(f"s_lshr_b32 s{T1}, s{S_W}, 2")
    a(f"s_lshl_b32 s{T1}, s{T1}, 11")
    a(f"s_add_u32 s{T0}, s{T0}, s{T1}")
    a(f"s_and_b32 s{T1}, s{S_W}, 3")
    a(f"s_lshl_b32 s{T1}, s{T1}, 9")
    a(f"s_add_u32 s{T0}, s{T0}, s{T1}")
    a(f"s_add_u32 s{T0}, s{T0}, {W_GP}")
    a(f"v_lshlrev_b32 v10, 6, v2")
    a(f"v_add3_u32 v{PA_GP}, v10, v12, s{T0}")
    a(f"s_mul_i32 s{T0}, s{S_X}, 28")
    a(f"s_add_u32 s{T0}, s{T0}, s{T3}")
    a(f"s_lshl_b32 s{T0}, s{T0}, 12")
    a(f"s_lshl_b32 s{T1}, s{T2}, 7")
    a(f"s_add_u32 s{T0}, s{T0}, s{T1}")
    a(f"s_add_u32 s{T0}, s{T0}, {W_GP}")
    a(f"v_lshrrev_b32 v10, 5, v{V_LANE}")
    a(f"v_and_b32 v11, 31, v{V_LANE}")
    a(f"v_lshrrev_b32 v13, 3, v11")
    a(f"v_lshlrev_b32 v13, 9, v13")
    a(f"v_lshl_add_u32 v13, v10, 6, v13")
    a(f"v_and_b32 v15, 7, v11")
    a(f"v_lshlrev_b32 v15, 3, v15")
    a(f"v_add3_u32 v{PA_T5B}, v13, v15, s{T0}")
    for k in range(1,4):
        a(f"v_add_u32 v{PA_T5B+k}, {k*7*4096}, v{PA_T5B}")
    a(f"s_lshl_b32 s{T0}, s{S_X}, 3")
    a(f"s_lshl_b32 s{T1}, s{T2}, 1")
    a(f"s_add_u32 s{T0}, s{T0}, s{T1}")
    a(f"s_mul_i32 s{T0}, s{T0}, 896")
    a(f"s_lshl_b32 s{T1}, s{T3}, 7")
    a(f"s_add_u32 s{T0}, s{T0}, s{T1}")
    a(f"s_add_u32 s{T0}, s{T0}, {W_ACT}")
    a(f"v_mul_u32_u24 v13, 896, v10")
    a(f"v_lshlrev_b32 v15, 2, v11")
    a(f"v_add3_u32 v{PA_ACT}, v13, v15, s{T0}")
    a(f"s_mul_i32 s{T0}, s{S_X}, {8*896}")
    a(f"s_mul_i32 s{T1}, s{T4}, 448")
    a(f"s_add_u32 s{T0}, s{T0}, s{T1}")
    a(f"s_lshl_b32 s{T1}, s{S_W}, 6")
    a(f"s_add_u32 s{T0}, s{T0}, s{T1}")
    a(f"s_add_u32 s{T0}, s{T0}, {W_ACT}")
    a(f"v_mul_u32_u24 v13, 896, v14")
    a(f"v_add3_u32 v{PA_T6}, v13, v12, s{T0}")
    a(f"s_mul_i32 s{T0}, s{S_X}, {cfg.APB}")
    a(f"s_lshl_b32 s{T1}, s{S_R}, 7")
    a(f"s_add_u32 s{T0}, s{T0}, s{T1}")
    a(f"s_add_u32 s{T0}, s{T0}, {W_DP}")
    a(f"v_mul_u32_u24 v13, {8*cfg.APP}, v10")
    a(f"v_lshlrev_b32 v15, 2, v11")
    a(f"v_add3_u32 v{PA_T7}, v13, v15, s{T0}")
    for k in range(1,8):
        a(f"v_add_u32 v{PA_T7+k}, {k*cfg.APP}, v{PA_T7}")
    a(f"s_lshl_b32 s{T0}, s{S_X}, 11")
    a(f"s_lshl_b32 s{T1}, s{S_R}, 6")
    a(f"s_add_u32 s{T0}, s{T0}, s{T1}")
    a(f"v_lshlrev_b32 v15, 1, v11")
    a(f"v_add_u32 v{PA_OUT}, s{T0}, v15")
    a(f"v_add_u32 v{PA_HSR}, {L_HS}, v15")

def emit_codepf(a, cfg, lab, first, last):
    a(f"s_getpc_b64 {sr(S_B1,2)}")
    a(f"{lab}:")
    a(f"s_add_u32 s{S_B1}, s{S_B1}, ({first}-{lab})&0xffffffff")
    a(f"s_addc_u32 s{S_B1+1}, s{S_B1+1}, ({first}-{lab})>>32")
    a(f"v_lshlrev_b32 v10, 6, v{V_LANE}")
    a(f"s_mov_b32 s{S_T0}, {last}-{first}")
    a(f"{lab}_loop:")
    a(f"v_cmp_gt_u32 vcc, s{S_T0}, v10")
    a(f"s_and_saveexec_b64 {sr(S_EX,2)}, vcc")
    a(f"s_cbranch_execz {lab}_done")
    a(f"global_load_dword v11, v10, {sr(S_B1,2)}")
    a(f"s_mov_b64 exec, {sr(S_EX,2)}")
    a(f"v_add_u32 v10, 4096, v10")
    a(f"s_branch {lab}_loop")
    a(f"{lab}_done:")
    a(f"s_mov_b64 exec, {sr(S_EX,2)}")
    a("s_waitcnt vmcnt(0)")

def emit_rdycheck(a, cfg):
    f=1 if cfg.FASTMODE else 0
    a(f"s_cmp_lg_u32 s{S_W}, 4")
    a("s_cbranch_scc1 L_rdy_b")
    a(f"s_cmp_lg_u32 s{S_R}, 0")
    a("s_cbranch_scc1 L_rdy_done")
    a(f"s_lshl_b32 s{S_T0}, s{S_X}, 9")
    a(f"s_add_u32 s{S_T0}, s{S_T0}, {W_RDY}")
    a(f"v_and_b32 v10, 31, v{V_LANE}")
    a(f"v_lshlrev_b32 v10, 4, v10")
    a(f"v_add_u32 v10, s{S_T0}, v10")
    lp=a.label("rdy"); dn=a.label("rdyok")
    a(f"s_mov_b32 s{S_SPIN}, {cfg.SPIN}")
    a(f"{lp}:")
    a(f"global_load_dwordx4 {vr(V_RDY,4)}, v10, {sr(P_WS,2)} sc1")
    a("s_waitcnt vmcnt(0)")
    a(f"v_xor_b32 v11, s{S_TAG}, v{V_RDY+2}")
    a(f"v_xor_b32 v15, s{S_TAG+1}, v{V_RDY+3}")
    a(f"v_or_b32 v11, v11, v15")
    a(f"v_cmp_ne_u32 vcc, 0, v11")
    a(f"s_cbranch_vccz {dn}")
    a("s_sleep 16")
    a(f"s_sub_u32 s{S_SPIN}, s{S_SPIN}, 1")
    a(f"s_cmp_lg_u32 s{S_SPIN}, 0")
    a(f"s_cbranch_scc1 {lp}")
    a(f"{dn}:")
    a(f"v_readfirstlane_b32 s{S_T0}, v{V_RDY}")
    a("s_nop 1")
    a(f"v_cmp_ne_u32 vcc, s{S_T0}, v{V_RDY}")
    a(f"s_mov_b32 s{S_T2}, {f}")
    a("s_nop 1")
    a(f"s_cmp_eq_u64 vcc, 0")
    a(f"s_cselect_b32 s{S_T2}, s{S_T2}, 0")
    a(f"s_lshl_b32 s{S_T0}, s{S_X}, 4")
    a(f"s_add_u32 s{S_T0}, s{S_T0}, {W_GRDY}")
    a(f"v_mov_b32 v10, s{S_T0}")
    a(f"v_mov_b32 v12, s{S_T2}")
    a(f"v_mov_b32 v13, 0")
    a(f"v_mov_b32 v14, s{S_TAG}")
    a(f"v_mov_b32 v15, s{S_TAG+1}")
    set_exec(a,1,0)
    a(f"global_store_dwordx4 v10, v[12:15], {sr(P_WS,2)} sc1")
    full_exec(a)
    a("s_branch L_rdy_done")
    a("L_rdy_b:")
    a(f"s_cmp_lg_u32 s{S_W}, 5")
    a("s_cbranch_scc1 L_rdy_done")
    a(f"v_and_b32 v10, 7, v{V_LANE}")
    a(f"v_lshlrev_b32 v10, 4, v10")
    a(f"v_add_u32 v10, {W_GRDY}, v10")
    lp=a.label("grdy"); dn=a.label("grdyok")
    a(f"s_mov_b32 s{S_SPIN}, {cfg.SPIN}")
    a(f"{lp}:")
    set_exec(a,"0xff",0)
    a(f"global_load_dwordx4 {vr(V_RDY,4)}, v10, {sr(P_WS,2)} sc1")
    a("s_waitcnt vmcnt(0)")
    a(f"v_xor_b32 v11, s{S_TAG}, v{V_RDY+2}")
    a(f"v_xor_b32 v15, s{S_TAG+1}, v{V_RDY+3}")
    a(f"v_or_b32 v11, v11, v15")
    a(f"v_cmp_ne_u32 vcc, 0, v11")
    full_exec(a)
    a(f"s_cbranch_vccz {dn}")
    a("s_sleep 64")
    a(f"s_sub_u32 s{S_SPIN}, s{S_SPIN}, 1")
    a(f"s_cmp_lg_u32 s{S_SPIN}, 0")
    a(f"s_cbranch_scc1 {lp}")
    a(f"{dn}:")
    a(f"v_readlane_b32 s{S_T2}, v{V_RDY}, s{S_X}")
    a(f"v_mov_b32 v10, {L_MODE}")
    a("s_nop 1")
    a(f"s_add_u32 s{S_T2}, s{S_T2}, 1")
    a(f"v_mov_b32 v12, s{S_T2}")
    a(f"ds_write_b32 v10, v12")
    a("L_rdy_done:")

def poll_masked(a, name, loads, regs, cfg, tmp, nloads=1, stagger=0):
    ps = cfg.PSX if name in ('t3','t7') else cfg.PSLEEP
    lp=a.label(name+"_poll"); dn=a.label(name+"_ok")
    a(f"s_mov_b64 {sr(S_EX,2)}, exec")
    a(f"s_mov_b32 s{S_SPIN}, {cfg.SPIN}")
    if stagger:
        loads()
        a(f"s_sleep {stagger}")
    a(f"{lp}:")
    loads()
    a(f"s_waitcnt vmcnt({nloads if stagger else 0})")
    rs=list(regs)
    if len(rs)>=3:
        a(f"v_max3_u32 v{tmp}, v{rs[0]}, v{rs[1]}, v{rs[2]}"); i=3
    else:
        a(f"v_max_u32 v{tmp}, v{rs[0]}, v{rs[1]}"); i=2
    while i<len(rs):
        if i+1<len(rs):
            a(f"v_max3_u32 v{tmp}, v{tmp}, v{rs[i]}, v{rs[i+1]}"); i+=2
        else:
            a(f"v_max_u32 v{tmp}, v{tmp}, v{rs[i]}"); i+=1
    a(f"v_cmp_eq_u32 vcc, -1, v{tmp}")
    a(f"s_mov_b64 exec, vcc")
    a(f"s_cbranch_execz {dn}")
    if ps: a(f"s_sleep {ps}")
    a(f"s_sub_u32 s{S_SPIN}, s{S_SPIN}, 1")
    a(f"s_cmp_lg_u32 s{S_SPIN}, 0")
    a(f"s_cbranch_scc1 {lp}")
    a(f"{dn}:")
    a(f"s_mov_b64 exec, {sr(S_EX,2)}")

def frag_reads(a, which):
    WB=V_RING; WO_F=WB; GU_F=WB+16; WD_F=WB+48
    if "o" in which:
        a(f"s_lshl_b32 s{S_T0}, s{S_W}, 12")
        a(f"s_add_u32 s{S_T1}, s{S_T0}, {L_WO}")
        a(f"v_add_u32 v13, s{S_T1}, v{PA_TR}")
        for t in range(4):
            for hf in range(2):
                a(f"ds_read_b64_tr_b16 {vr(WO_F+4*t+2*hf,2)}, v13 offset:{hf*4*128+32*t}")
    if "g" in which:
        a(f"s_lshr_b32 s{S_T0}, s{S_W}, 2")
        a(f"s_lshl_b32 s{S_T0}, s{S_T0}, 15")
        a(f"s_and_b32 s{S_T1}, s{S_W}, 3")
        a(f"s_lshl_b32 s{S_T1}, s{S_T1}, 5")
        a(f"s_add_u32 s{S_T0}, s{S_T0}, s{S_T1}")
        a(f"s_add_u32 s{S_T0}, s{S_T0}, {L_WG}")
        a(f"v_add_u32 v15, s{S_T0}, v{PA_TR}")
        for s in range(8):
            for hf in range(2):
                a(f"ds_read_b64_tr_b16 {vr(GU_F+4*s+2*hf,2)}, v15 offset:{(32*s+4*hf)*128}")
    if "d" in which:
        a(f"s_lshl_b32 s{S_T0}, s{S_W}, 12")
        a(f"s_add_u32 s{S_T1}, s{S_T0}, {L_WD}")
        a(f"v_add_u32 v11, s{S_T1}, v{PA_TR}")
        for t in range(4):
            for hf in range(2):
                a(f"ds_read_b64_tr_b16 {vr(WD_F+4*t+2*hf,2)}, v11 offset:{hf*4*128+32*t}")

def layernorm2(a, vin, vf, vout, t):
    for i in range(8):
        a(f"v_lshlrev_b32 v{vf+2*i}, 16, v{vin+i}")
        a(f"v_and_b32 v{vf+2*i+1}, 0xffff0000, v{vin+i}")
    a(f"v_readfirstlane_b32 s{S_T4}, v{vf}")
    a("s_nop 1")
    a(f"v_mov_b32 v{t+6}, s{S_T4}")
    a(f"v_mov_b32 v{t+7}, s{S_T4}")
    for i in range(8):
        a(f"v_pk_add_f32 {vr(vf+2*i,2)}, {vr(vf+2*i,2)}, {vr(t+6,2)} neg_lo:[0,1] neg_hi:[0,1]")
    a(f"v_pk_add_f32 {vr(t,2)}, {vr(vf,2)}, {vr(vf+2,2)}")
    a(f"v_pk_mul_f32 {vr(t+2,2)}, {vr(vf,2)}, {vr(vf,2)}")
    a(f"v_pk_fma_f32 {vr(t+2,2)}, {vr(vf+2,2)}, {vr(vf+2,2)}, {vr(t+2,2)}")
    for i in range(2,8):
        a(f"v_pk_add_f32 {vr(t,2)}, {vr(t,2)}, {vr(vf+2*i,2)}")
        a(f"v_pk_fma_f32 {vr(t+2,2)}, {vr(vf+2*i,2)}, {vr(vf+2*i,2)}, {vr(t+2,2)}")
    a(f"v_add_f32 v{t}, v{t}, v{t+1}")
    a(f"v_add_f32 v{t+2}, v{t+2}, v{t+3}")
    for k in (8,4,2,1):
        a("s_nop 0")
        a(f"v_add_f32_dpp v{t}, v{t}, v{t} row_ror:{k} row_mask:0xf bank_mask:0xf")
        a("s_nop 0") if False else None
        a(f"v_add_f32_dpp v{t+2}, v{t+2}, v{t+2} row_ror:{k} row_mask:0xf bank_mask:0xf")
    a(f"v_mov_b32 v{t+1}, v{t}")
    a(f"v_mov_b32 v{t+3}, v{t+2}")
    a("s_nop 1")
    a(f"v_permlane16_swap_b32 v{t}, v{t+1}")
    a(f"v_permlane16_swap_b32 v{t+2}, v{t+3}")
    a("s_nop 1")
    a(f"v_add_f32 v{t}, v{t}, v{t+1}")
    a(f"v_add_f32 v{t+2}, v{t+2}, v{t+3}")
    a(f"v_mov_b32 v{t+1}, v{t}")
    a(f"v_mov_b32 v{t+3}, v{t+2}")
    a("s_nop 1")
    a(f"v_permlane32_swap_b32 v{t}, v{t+1}")
    a(f"v_permlane32_swap_b32 v{t+2}, v{t+3}")
    a("s_nop 1")
    a(f"v_add_f32 v{t}, v{t}, v{t+1}")
    a(f"v_add_f32 v{t+2}, v{t+2}, v{t+3}")
    a(f"v_mul_f32 v{t}, 0x3a800000, v{t}")
    a(f"v_mul_f32 v{t+2}, 0x3a800000, v{t+2}")
    a(f"v_fma_f32 v{t+2}, -v{t}, v{t}, v{t+2}")
    a(f"v_add_f32 v{t}, v{t}, v{t+6}")
    a(f"v_max_f32 v{t+2}, 0, v{t+2}")
    a(f"v_cvt_pk_bf16_f32 v{t}, v{t}, v{t+2}")
    a(f"v_and_b32 v{t+2}, 0xffff0000, v{t}")
    a(f"v_lshlrev_b32 v{t}, 16, v{t}")
    a(f"v_add_f32 v{t+2}, 0x3727c5ac, v{t+2}")
    round_bf16(a, t+2, t+2)
    a(f"v_sqrt_f32 v{t+2}, v{t+2}")
    a(f"v_mov_b32 v{t+1}, v{t}")
    round_bf16(a, t+2, t+2)
    a(f"v_rcp_f32 v{t+2}, v{t+2}")
    a("s_nop 0")
    a(f"v_mov_b32 v{t+3}, v{t+2}")
    for i in range(8):
        a(f"v_lshlrev_b32 v{vf+2*i}, 16, v{vin+i}")
        a(f"v_and_b32 v{vf+2*i+1}, 0xffff0000, v{vin+i}")
        a(f"v_pk_add_f32 {vr(vf+2*i,2)}, {vr(vf+2*i,2)}, {vr(t,2)} neg_lo:[0,1] neg_hi:[0,1]")
        a(f"v_cvt_pk_bf16_f32 v{t+4}, v{vf+2*i}, v{vf+2*i+1}")
        a(f"v_lshlrev_b32 v{vf+2*i}, 16, v{t+4}")
        a(f"v_and_b32 v{vf+2*i+1}, 0xffff0000, v{t+4}")
        a(f"v_pk_mul_f32 {vr(vf+2*i,2)}, {vr(vf+2*i,2)}, {vr(t+2,2)}")
        a(f"v_cvt_pk_bf16_f32 v{vout+i}, v{vf+2*i}, v{vf+2*i+1}")

def gen_tail(a, cfg):
    WB=V_RING; WO_F=WB; GU_F=WB+16; WD_F=WB+48
    TT=V_RING+64
    TMP=V_T+23
    NSW=cfg.NSW
    a(f"s_cmp_ge_u32 s{S_W}, {NSW}")
    a("s_cbranch_scc1 L_t0_b5")
    a("s_nop 7")
    set_exec(a, -1, 0)
    a(f"ds_write_b128 v{PA_OW}, {vr(V_OACC,4)}")
    full_exec(a)
    a("s_waitcnt lgkmcnt(0)")
    a("L_t0_b5:")
    a("s_barrier")
    a(f"s_cmp_lg_u32 s{S_W}, {R_T1}")
    a("s_cbranch_scc1 L_t1_done")
    for w in range(8):
        a(f"ds_read_b64 {vr(TT+2*w,2)}, v{PA_OR} offset:{w*512}")
    a("s_waitcnt lgkmcnt(0)")
    a(f"v_pk_add_f32 {vr(TT,2)}, {vr(TT,2)}, {vr(TT+2,2)}")
    a(f"v_pk_add_f32 {vr(TT+4,2)}, {vr(TT+4,2)}, {vr(TT+6,2)}")
    a(f"v_pk_add_f32 {vr(TT+8,2)}, {vr(TT+8,2)}, {vr(TT+10,2)}")
    a(f"v_pk_add_f32 {vr(TT+12,2)}, {vr(TT+12,2)}, {vr(TT+14,2)}")
    a(f"v_pk_add_f32 {vr(TT,2)}, {vr(TT,2)}, {vr(TT+4,2)}")
    a(f"v_pk_add_f32 {vr(TT+8,2)}, {vr(TT+8,2)}, {vr(TT+12,2)}")
    a(f"v_pk_add_f32 {vr(TT,2)}, {vr(TT,2)}, {vr(TT+8,2)}")
    a(f"v_cvt_pk_bf16_f32 v{TT}, v{TT}, v{TT+1}")
    a(f"v_min_u32 v{TT}, -2, v{TT}")
    store_mode(a, f"global_store_dword v{PA_O}, v{TT}, {sr(P_WS,2)}", True)
    a("L_t1_done:")
    stamp(a,cfg,6)
    a(f"s_cmp_ge_u32 s{S_W}, {NSW}")
    a("s_cbranch_scc1 L_t2_go")
    frag_reads(a,"ogd")
    a("L_t2_go:")
    if cfg.PD2: a(f"s_sleep {cfg.PD2}")
    poll_masked(a,"t2", lambda: a(f"global_load_dwordx4 {vr(TT+32,4)}, v{PA_T2}, {sr(P_WS,2)} sc1"), range(TT+32,TT+36), cfg, TMP, 1, cfg.PIPE2)
    if cfg.TAILDIAG: stamp(a,cfg,9)
    a("s_waitcnt lgkmcnt(0)")
    def gemm4_reduce_publish(F, B, dp, nw, lab):
        off=16384 if dp else 0
        for t in range(4):
            a(f"v_mfma_f32_16x16x32_bf16 {vr(TT+4*t,4)}, {vr(F+4*t,4)}, {vr(B,4)}, 0")
        if nw<8:
            a(f"s_cmp_ge_u32 s{S_W}, {nw}")
            a(f"s_cbranch_scc1 {lab}_nw")
        set_exec(a, "0x00ff00ff", "0x00ff00ff")
        a("s_nop 2")
        for t in range(4):
            a(f"ds_write_b128 v{PA_DW}, {vr(TT+4*t,4)} offset:{off+64*t}")

        full_exec(a)
        a(f"{lab}_nw:")
        a("s_waitcnt lgkmcnt(0)")
        a("s_barrier")
        a(f"s_sub_u32 s{S_T0}, s{S_W}, {R_RED0}")
        a(f"s_cmp_ge_u32 s{S_T0}, 2")
        a(f"s_cbranch_scc1 {lab}_skip")
        for w in range(nw):
            a(f"ds_read_b128 {vr(TT+4*w,4)}, v{PA_R2} offset:{off+w*2048}")
        if dp: a(f"v_add_u32 v10, {W_DP-W_AP}, v{PA_P2}")
        a("s_waitcnt lgkmcnt(0)")
        n=nw
        step=1
        idx=list(range(nw))
        while len(idx)>1:
            nxt=[]
            for i in range(0,len(idx)-1,2):
                d,s_=idx[i],idx[i+1]
                a(f"v_pk_add_f32 {vr(TT+4*d,2)}, {vr(TT+4*d,2)}, {vr(TT+4*s_,2)}")
                a(f"v_pk_add_f32 {vr(TT+4*d+2,2)}, {vr(TT+4*d+2,2)}, {vr(TT+4*s_+2,2)}")
                nxt.append(d)
            if len(idx)%2: nxt.append(idx[-1])
            idx=nxt
        for c in range(4):
            a(f"v_min_u32 v{TT+c}, -2, v{TT+c}")
        a(f"global_store_dwordx4 v{10 if dp else PA_P2}, {vr(TT,4)}, {sr(P_WS,2)} {cfg.XST}")
        a(f"{lab}_skip:")
    gemm4_reduce_publish(WO_F, TT+32, False, 8, "L_t2")
    stamp(a,cfg,7)
    def ld3():
        a(f"global_load_dwordx4 {vr(TT+32,4)}, v{PA_T3A}, {sr(P_WS,2)} {cfg.XLD}")
        a(f"global_load_dwordx4 {vr(TT+36,4)}, v{PA_T3B}, {sr(P_WS,2)} {cfg.XLD}")
    if cfg.PD3: a(f"s_sleep {cfg.PD3}")
    poll_masked(a,"t3", ld3, range(TT+32,TT+40), cfg, TMP, 2, cfg.PIPE_X)
    if cfg.TAILDIAG==True and cfg.TAILDIAG!=2: stamp(a,cfg,13)
    a(f"v_pk_add_f32 {vr(TT+40,2)}, {vr(TT+32,2)}, {vr(TT+36,2)}")
    a(f"v_pk_add_f32 {vr(TT+42,2)}, {vr(TT+34,2)}, {vr(TT+38,2)}")
    a(f"ds_write_b128 v{PA_T3W}, {vr(TT+40,4)}")
    a("s_waitcnt lgkmcnt(0)")
    a("s_barrier")
    a(f"s_cmp_lg_u32 s{S_W}, {R_W0}")
    a("s_cbranch_scc1 L_t3_skip")
    for w in range(8):
        a(f"ds_read_b128 {vr(TT+4*w,4)}, v{PA_T3R} offset:{w*1024}")
    a(f"v_lshlrev_b32 v{TT+40}, 16, v{V_XRES}")
    a(f"v_and_b32 v{TT+41}, 0xffff0000, v{V_XRES}")
    a(f"v_lshlrev_b32 v{TT+42}, 16, v{V_XRES+1}")
    a(f"v_and_b32 v{TT+43}, 0xffff0000, v{V_XRES+1}")
    a("s_waitcnt lgkmcnt(0)")
    for (d,s_) in ((0,1),(2,3),(4,5),(6,7),(0,2),(4,6),(0,4)):
        a(f"v_pk_add_f32 {vr(TT+4*d,2)}, {vr(TT+4*d,2)}, {vr(TT+4*s_,2)}")
        a(f"v_pk_add_f32 {vr(TT+4*d+2,2)}, {vr(TT+4*d+2,2)}, {vr(TT+4*s_+2,2)}")
    a(f"v_cvt_pk_bf16_f32 v{TT+4}, v{TT}, v{TT+1}")
    a(f"v_cvt_pk_bf16_f32 v{TT+5}, v{TT+2}, v{TT+3}")
    a(f"v_lshlrev_b32 v{TT+8}, 16, v{TT+4}")
    a(f"v_and_b32 v{TT+9}, 0xffff0000, v{TT+4}")
    a(f"v_lshlrev_b32 v{TT+10}, 16, v{TT+5}")
    a(f"v_and_b32 v{TT+11}, 0xffff0000, v{TT+5}")
    a(f"v_pk_add_f32 {vr(TT+8,2)}, {vr(TT+8,2)}, {vr(TT+40,2)}")
    a(f"v_pk_add_f32 {vr(TT+10,2)}, {vr(TT+10,2)}, {vr(TT+42,2)}")
    a(f"v_cvt_pk_bf16_f32 v{TT+6}, v{TT+8}, v{TT+9}")
    a(f"v_cvt_pk_bf16_f32 v{TT+7}, v{TT+10}, v{TT+11}")
    a(f"v_min_u32 v{TT+6}, -2, v{TT+6}")
    a(f"v_min_u32 v{TT+7}, -2, v{TT+7}")
    store_mode(a, f"global_store_dwordx2 v{PA_H}, {vr(TT+6,2)}, {sr(P_WS,2)}", True)
    a("L_t3_skip:")
    stamp(a,cfg,8)
    def ld4():
        a(f"global_load_dwordx4 {vr(TT,4)}, v{PA_T4}, {sr(P_WS,2)} sc1")
        a(f"global_load_dwordx4 {vr(TT+4,4)}, v{PA_T4}, {sr(P_WS,2)} offset:16 sc1")
    if cfg.PD4: a(f"s_sleep {cfg.PD4}")
    poll_masked(a,"t4", ld4, range(TT,TT+8), cfg, TMP, 2, cfg.PIPE_I)
    if cfg.TAILDIAG: stamp(a,cfg,14)
    a(f"s_cmp_lg_u32 s{S_W}, s{S_X}")
    a("s_cbranch_scc1 L_t4_nohs")
    a(f"s_mov_b64 exec, {sr(SM_HS,2)}")
    a(f"ds_write_b128 v{PA_HSW}, {vr(TT,4)}")
    a(f"ds_write_b128 v{PA_HSW}, {vr(TT+4,4)} offset:16")
    full_exec(a)
    a("L_t4_nohs:")
    a(f"s_cmp_ge_u32 s{S_R}, 28")
    a("s_cbranch_scc1 L_t5_skip_all")
    layernorm2(a, TT, TT+8, TT+24, V_T)
    a(f"s_mov_b64 exec, {sr(SM_LNB,2)}")
    a(f"ds_write_b128 v{PA_LNBW}, {vr(TT+24,4)}")
    a(f"ds_write_b128 v{PA_LNBW}, {vr(TT+28,4)} offset:16")
    full_exec(a)
    a("s_waitcnt lgkmcnt(0)")
    a("s_barrier")
    if not cfg.TAILDIAG: stamp(a,cfg,9)
    if cfg.TAILDIAG: stamp(a,cfg,1)
    a("s_waitcnt vmcnt(0)")
    for s in range(8):
        a(f"ds_read_b128 {vr(TT+4*s,4)}, v{PA_LNBR} offset:{64*s}")
    for s in range(8):
        c="0" if s<2 else vr(V_T+4*(s%2),4)
        a(f"s_waitcnt lgkmcnt({7-s})")
        a(f"v_mfma_f32_16x16x32_bf16 {vr(V_T+4*(s%2),4)}, {vr(GU_F+4*s,4)}, {vr(TT+4*s,4)}, {c}")
    a("s_nop 7")
    a(f"v_pk_add_f32 {vr(V_T,2)}, {vr(V_T,2)}, {vr(V_T+4,2)}")
    a(f"v_pk_add_f32 {vr(V_T+2,2)}, {vr(V_T+2,2)}, {vr(V_T+6,2)}")
    for c in range(4):
        a(f"v_min_u32 v{V_T+c}, -2, v{V_T+c}")
    set_exec(a, "0x00ff00ff", "0x00ff00ff")
    store_mode(a, f"global_store_dwordx4 v{PA_GP}, {vr(V_T,4)}, {sr(P_WS,2)}", True)
    full_exec(a)
    if cfg.TAILDIAG==2: stamp(a,cfg,13)
    a(f"s_cmp_lg_u32 s{S_W}, {R_W0}")
    a("s_cbranch_scc1 L_t5_skip_all")
    a(f"s_mov_b32 s{S_T0}, 0x3d372713")
    a(f"s_mov_b32 s{S_T1}, 0xc0135761")
    def ld5():
        for k in range(4):
            for m in range(2):
                a(f"global_load_dwordx2 {vr(TT+(k*2+m)*2,2)}, v{PA_T5B+k}, {sr(P_WS,2)} offset:{m*2048} sc1")
    if cfg.PD5: a(f"s_sleep {cfg.PD5}")
    poll_masked(a,"t5", ld5, range(TT,TT+16), cfg, TMP, 8, cfg.PIPE_I)
    if cfg.TAILDIAG: stamp(a,cfg,2)
    for h_ in range(2):
        a(f"v_pk_add_f32 {vr(TT+16+2*h_,2)}, {vr(TT+2*h_,2)}, {vr(TT+4+2*h_,2)}")
        a(f"v_pk_add_f32 {vr(TT+20+2*h_,2)}, {vr(TT+8+2*h_,2)}, {vr(TT+12+2*h_,2)}")
        a(f"v_pk_add_f32 {vr(TT+16+2*h_,2)}, {vr(TT+16+2*h_,2)}, {vr(TT+20+2*h_,2)}")
    G=TT+16; U=TT+18; X=TT+20
    TT_=TT; TT=TT+16
    a(f"v_cvt_pk_bf16_f32 v{TT+8}, v{G}, v{G+1}")
    a(f"v_cvt_pk_bf16_f32 v{TT+9}, v{U}, v{U+1}")
    a(f"v_lshlrev_b32 v{G}, 16, v{TT+8}")
    a(f"v_and_b32 v{G+1}, 0xffff0000, v{TT+8}")
    a(f"v_lshlrev_b32 v{U}, 16, v{TT+9}")
    a(f"v_and_b32 v{U+1}, 0xffff0000, v{TT+9}")
    a(f"v_pk_mul_f32 {vr(X,2)}, {vr(G,2)}, {vr(G,2)}")
    a(f"v_pk_mul_f32 {vr(X,2)}, {vr(X,2)}, {vr(G,2)}")
    for c in range(2):
        a(f"v_fma_f32 v{X+c}, v{X+c}, s{S_T0}, v{G+c}")
    for c in range(2):
        a(f"v_mul_f32 v{X+c}, s{S_T1}, v{X+c}")
    for c in range(2):
        a(f"v_exp_f32 v{X+c}, v{X+c}")
    a("s_nop 0")
    for c in range(2):
        a(f"v_add_f32 v{X+c}, 1.0, v{X+c}")
    for c in range(2):
        a(f"v_rcp_f32 v{X+c}, v{X+c}")
    a("s_nop 0")
    a(f"v_pk_mul_f32 {vr(X,2)}, {vr(X,2)}, {vr(G,2)}")
    a(f"v_cvt_pk_bf16_f32 v{TT+8}, v{X}, v{X+1}")
    a(f"v_lshlrev_b32 v{X}, 16, v{TT+8}")
    a(f"v_and_b32 v{X+1}, 0xffff0000, v{TT+8}")
    a(f"v_pk_mul_f32 {vr(X,2)}, {vr(X,2)}, {vr(U,2)}")
    a(f"v_cvt_pk_bf16_f32 v{X}, v{X}, v{X+1}")
    a(f"v_min_u32 v{X}, -2, v{X}")
    store_mode(a, f"global_store_dword v{PA_ACT}, v{X}, {sr(P_WS,2)}", True)
    TT=TT_
    a("L_t5_skip_all:")
    stamp(a,cfg,10)
    a(f"s_cmp_ge_u32 s{S_W}, 7")
    a("s_cbranch_scc1 L_t6_nopoll")
    if cfg.PD6: a(f"s_sleep {cfg.PD6}")
    poll_masked(a,"t6", lambda: a(f"global_load_dwordx4 {vr(TT+32,4)}, v{PA_T6}, {sr(P_WS,2)} sc1"), range(TT+32,TT+36), cfg, TMP, 1, cfg.PIPE_I)
    if cfg.TAILDIAG: stamp(a,cfg,3)
    a("L_t6_nopoll:")
    gemm4_reduce_publish(WD_F, TT+32, True, 7, "L_t6")
    stamp(a,cfg,11)
    a(f"s_cmp_lg_u32 s{S_W}, {R_W0}")
    a("s_cbranch_scc1 L_fin")
    a(f"ds_read_u16 v{TT+10}, v{PA_HSR}")
    def ld7():
        for k in range(8):
            a(f"global_load_dword v{TT+k}, v{PA_T7+k}, {sr(P_WS,2)} {cfg.XLD}")
    if cfg.PD7: a(f"s_sleep {cfg.PD7}")
    poll_masked(a,"t7", ld7, range(TT,TT+8), cfg, TMP, 8, cfg.PIPE_X)
    if cfg.TAILDIAG: stamp(a,cfg,4)
    Z=TT+16
    a(f"v_pk_add_f32 {vr(Z,2)}, {vr(TT,2)}, {vr(TT+2,2)}")
    a(f"v_pk_add_f32 {vr(Z+2,2)}, {vr(TT+4,2)}, {vr(TT+6,2)}")
    a(f"v_pk_add_f32 {vr(Z,2)}, {vr(Z,2)}, {vr(Z+2,2)}")
    a(f"v_add_f32 v{Z}, v{Z}, v{Z+1}")
    a(f"v_mov_b32 v{Z+1}, v{Z}")
    a("s_waitcnt lgkmcnt(0)")
    a("s_nop 0")
    a(f"v_permlane32_swap_b32 v{Z}, v{Z+1}")
    a(f"v_lshlrev_b32 v{TT+10}, 16, v{TT+10}")
    a(f"v_add_f32 v{Z}, v{Z}, v{Z+1}")
    round_bf16(a,Z,Z)
    a(f"v_add_f32 v{Z}, v{Z}, v{TT+10}")
    a(f"v_cvt_pk_bf16_f32 v{Z}, v{Z}, v{Z}")
    set_exec(a, -1, 0)
    a(f"global_store_short v{PA_OUT}, v{Z}, {sr(P_OUT,2)}")
    full_exec(a)
    a(f"s_cmp_lg_u32 s{S_ID}, 0")
    a("s_cbranch_scc1 L_fin")
    a(f"v_mov_b32 v10, {W_EPOCH}")
    a(f"v_mov_b32 v12, s{S_TAG}")
    a(f"v_mov_b32 v13, s{S_TAG+1}")
    set_exec(a, 1, 0)
    a(f"global_store_dwordx2 v10, v[12:13], {sr(P_WS,2)} sc1")
    full_exec(a)
    a("L_fin:")
    TTX=160
    if cfg.STAMPS and cfg.DBGSTAMP:
        stamp(a,cfg,12)
        a("s_waitcnt lgkmcnt(0)")
        a(f"s_cmp_lg_u32 s{S_W}, 0")
        a("s_cbranch_scc1 L_exit")
        lst=[0,1,2,4,6,7,8,10,11,12]
        for i,k in enumerate(lst):
            if k==0:
                a(f"s_not_b32 s{S_T0}, s72")
                a(f"v_mov_b32 v{TTX}, s{S_T0}")
            else:
                a(f"v_mov_b32 v{TTX}, s{72+2*k}")
            a(f"v_mov_b32 v10, {4*i}")
            set_exec(a,1,0)
            a(f"global_atomic_umax v10, v{TTX}, {sr(P_DBG,2)} sc1")
            full_exec(a)
        a(f"v_mov_b32 v{TTX}, s72")
        a(f"v_mov_b32 v10, 40")
        set_exec(a,1,0)
        a(f"global_atomic_umax v10, v{TTX}, {sr(P_DBG,2)} sc1")
        full_exec(a)
        a(f"s_not_b32 s{S_T0}, s{72+12}")
        a(f"v_mov_b32 v{TTX}, s{S_T0}")
        a(f"v_mov_b32 v10, 44")
        set_exec(a,1,0)
        a(f"global_atomic_umax v10, v{TTX}, {sr(P_DBG,2)} sc1")
        full_exec(a)
    elif cfg.STAMPS:
        stamp(a,cfg,12)
        a("s_waitcnt lgkmcnt(0)")
        for k in range(15):
            a(f"v_mov_b32 v{TTX}, s{72+2*k}")
            a(f"v_mov_b32 v{TTX+1}, s{73+2*k}")
            a(f"s_lshl_b32 s{S_T0}, s{S_ID}, 3")
            a(f"s_add_u32 s{S_T0}, s{S_T0}, s{S_W}")
            a(f"s_lshl_b32 s{S_T0}, s{S_T0}, 7")
            a(f"s_add_u32 s{S_T0}, s{S_T0}, {W_STAMP+8*k}")
            a(f"v_mov_b32 v10, s{S_T0}")
            set_exec(a,1,0)
            a(f"global_store_dwordx2 v10, {vr(TTX,2)}, {sr(P_WS,2)}")
            full_exec(a)
    a("L_exit:")
    a("s_endpgm")

HEADER = open("sequential_preLN__mha_block_cached__geglu_ffn__decode.s.ref").read().split("; Override launch geometry")[0]

CFG=None
def build(cfg, path):
    global CFG
    CFG=cfg
    a,_=gen(cfg)
    gen_tail(a,cfg)
    txt = HEADER
    txt += "; Override launch geometry by editing the next line (default: block=256,\n"
    txt += f"; @launch grid=(256,1,1) block=(512,1,1) lds={LDS_BYTES}\n"
    txt += f""".amdgcn_target "amdgcn-amd-amdhsa--gfx950"
; ---------------------------------------------------------------------------------------------------------
;   id -> x = id%8 (group, normally one XCD), r = id/8 ; attention head = x + 8*(r/8), batch = r%8
; ---------------------------------------------------------------------------------------------------------
.text
.globl {KNAME}
.p2align 8
.type {KNAME},@function
"""
    txt += a.text()
    txt += f""".section .rodata,"a"
.p2align 6
.amdhsa_kernel {KNAME}
  .amdhsa_next_free_vgpr 256
  .amdhsa_next_free_sgpr 102
  .amdhsa_accum_offset 256
  .amdhsa_group_segment_fixed_size 0
  .amdhsa_kernarg_size 96
  .amdhsa_user_sgpr_count 2
  .amdhsa_user_sgpr_kernarg_segment_ptr 1
  .amdhsa_system_sgpr_workgroup_id_x 1
  .amdhsa_float_denorm_mode_32 3
.end_amdhsa_kernel
"""
    open(path,"w").write(txt)

if __name__=="__main__":
    cfg=Cfg()
    out=sys.argv[1]
    for kv in sys.argv[2:]:
        k,v=kv.split("=")
        setattr(cfg,k,eval(v))
    build(cfg,out)
```

```python
import sys

KNAME = "sequential_preLN__mha_block_cached__geglu_ffn__decode_kernel"

class Cfg:
    NSW = 2
    L = 10
    HV = 1
    QFAST = True
    KFLAGS = "nt"
    VFLAGS = "nt"
    WFLAGS = "nt"
    FASTMODE = True
    SPIN = 1 << 20
    STAMPS = False
    P0 = 4
    P = 4
    P1 = 8
    DMAPAUSE = False
    RING_EARLY = True
    RAMP = 0
    CODEPF = True
    LATE_L = 11
    EARLY_L = 0
    EARLY_THR = 6
    LATE_X = 0
    SEG0 = 40
    LATE_THR = 20
    LK = 0
    LS = 0
    KS0 = 80
    ROT = 0
    ROTX = 0
    HPERM = True
    NODMA2 = False
    KNOP = 7
    KEXP = 0
    PIPE_I = 0
    PIPE_X = 0
    HIGH_INLINE = True
    LNDRY = False
    CLR7 = True
    CONDCOPY = True
    NOCLR = False
    NOCOPY = False
    ALTMAP = False
    APB = 4096
    APP = 32768
    XLD = "sc1"
    XST = "sc1"
    TOUCH = 0
    QPD = 24
    PIPE2 = 0
    PD2 = 0
    PSX = 0
    PD3 = 9
    PD4 = 4
    PD5 = 5
    PD6 = 4
    PD7 = 9
    TAILDIAG = False
    PSLEEP = 0
    QSLEEP = 0
    QWAIT = 64
    DBGSTAMP = False

L_WO   = 0
L_WG   = 32768
L_WU   = 65536
L_WD   = 98304
L_WQ   = 126976
L_SC   = 126976
L_RED  = 143360
L_LNA  = 159744
L_QS   = 161920
L_ML   = 162176
L_HS   = 162208
L_QF   = 162272
L_LS   = 162288
L_MODE = 162320
L_SEL  = 162352
L_END  = 162368
LNA_P  = 272
LNB_P  = 528
L_LNB  = L_SC
LDS_BYTES = 163840

W_QP  = 0x500000
W_RDY = 0x000000
W_EPOCH = 0x010000
W_KX = 0x018000
W_KD = 0x014000
W_GRDY = 0x012000
W_OB  = 0x100000
W_AP  = 0x2000000
W_HB  = 0x1A0000
W_GP  = 0x1C0000
W_ACT = 0x2A0000
W_DP  = 0x2400000
W_STAMP = 0x400000

D_CLR = 32*4
D_XCC = 40*4

S_ID=2; S_W=3; S_X=4; S_R=5; S_H=6; S_B=7
P_X=16; P_K=18; P_V=20; P_WQ=22; P_WO=24; P_WG=28; P_WU=30; P_WD=32; P_OUT=34; P_DBG=36; P_WS=38
SRD_K=40; SRD_V=44
S_KOFF=48
S_FAST=49
S_SPIN=50
S_T0=52; S_T1=53; S_T2=54; S_T3=55; S_T4=56; S_T5=57
S_B0=58
S_B1=60
S_EX=62
S_M=64
S_M2=66
S_SCALE=68; S_LOG2E=69
S_DN=12; S_DS=13; S_DM=14; S_LOOP=15; S_LNW=27; S_ROT=70; S_HA=65; S_DJ=14; S_DM2=64
S_TAG=98
S_TAG=66
S_ST=70

V_TID=0; V_LANE=1
V_MASK=16
V_KOFF=20; V_VOFF=21; V_SCW=22; V_PPR=23; V_MAX=24
V_DMA=25
V_QADDR=26
V_QA=32
V_SACC=48
V_SACC2=140
V_OACC=52
V_A0=56; V_A1=60
V_PP0=64; V_PP1=68
V_T=72
V_RING=96
V_X=160

class Asm:
    def __init__(self):
        self.L=[]; self.n=0; self.main=self.L; self.O=[]
    def ool(self, on):
        self.L = self.O if on else self.main
    def __call__(self, s):
        for line in s.split("\n"):
            line=line.strip()
            if line: self.L.append(("" if line.endswith(":") else "  ")+line)
    def label(self, base):
        self.n+=1
        return f"L_{base}_{self.n}"
    def text(self): return "\n".join(self.main+self.O+["L_codeend:"])+"\n"

def vr(b,n): return f"v[{b}:{b+n-1}]"
def sr(b,n): return f"s[{b}:{b+n-1}]"

def wave_sum(a, v, tmp, op="add"):
    ins = "v_add_f32" if op=="add" else "v_max_f32"
    for k in (8,4,2,1):
        a(f"s_nop 1")
        a(f"{ins}_dpp {'v%d'%v}, v{v}, v{v} row_ror:{k} row_mask:0xf bank_mask:0xf")
    a("s_nop 1")
    a(f"v_readlane_b32 s{S_T0}, v{v}, 0")
    a(f"v_readlane_b32 s{S_T1}, v{v}, 16")
    a(f"v_readlane_b32 s{S_T2}, v{v}, 32")
    a(f"v_readlane_b32 s{S_T3}, v{v}, 48")
    a("s_nop 1")
    a(f"v_mov_b32 v{v}, s{S_T0}")
    a(f"{ins} v{v}, s{S_T1}, v{v}")
    a(f"{ins} v{v}, s{S_T2}, v{v}")
    a(f"{ins} v{v}, s{S_T3}, v{v}")

def round_bf16(a, dst, src):
    a(f"v_cvt_pk_bf16_f32 v{dst}, v{src}, v{src}")
    a(f"v_and_b32 v{dst}, 0xffff0000, v{dst}")

def layernorm(a, vin, vf, vout, t):
    for i in range(8):
        a(f"v_lshlrev_b32 v{vf+2*i}, 16, v{vin+i}")
        a(f"v_and_b32 v{vf+2*i+1}, 0xffff0000, v{vin+i}")
    a(f"v_add_f32 v{t}, v{vf}, v{vf+1}")
    for i in range(2,16):
        a(f"v_add_f32 v{t}, v{t}, v{vf+i}")
    wave_sum(a, t, t+1)
    a(f"v_mul_f32 v{t}, 0x3a800000, v{t}")
    a(f"v_sub_f32 v{t+1}, v{vf}, v{t}")
    a(f"v_mul_f32 v{t+2}, v{t+1}, v{t+1}")
    for i in range(1,16):
        a(f"v_sub_f32 v{t+1}, v{vf+i}, v{t}")
        a(f"v_fmac_f32 v{t+2}, v{t+1}, v{t+1}")
    wave_sum(a, t+2, t+1)
    a(f"v_mul_f32 v{t+2}, 0x3a800000, v{t+2}")
    round_bf16(a, t, t)
    round_bf16(a, t+2, t+2)
    a(f"v_add_f32 v{t+2}, 0x3727c5ac, v{t+2}")
    round_bf16(a, t+2, t+2)
    a(f"v_sqrt_f32 v{t+2}, v{t+2}")
    a("s_nop 0")
    round_bf16(a, t+2, t+2)
    a(f"v_rcp_f32 v{t+2}, v{t+2}")
    a("s_nop 0")
    for i in range(8):
        a(f"v_sub_f32 v{vf+2*i}, v{vf+2*i}, v{t}")
        a(f"v_sub_f32 v{vf+2*i+1}, v{vf+2*i+1}, v{t}")
        a(f"v_cvt_pk_bf16_f32 v{t+1}, v{vf+2*i}, v{vf+2*i+1}")
        a(f"v_lshlrev_b32 v{vf+2*i}, 16, v{t+1}")
        a(f"v_and_b32 v{vf+2*i+1}, 0xffff0000, v{t+1}")
        a(f"v_mul_f32 v{vf+2*i}, v{vf+2*i}, v{t+2}")
        a(f"v_mul_f32 v{vf+2*i+1}, v{vf+2*i+1}, v{t+2}")
        a(f"v_cvt_pk_bf16_f32 v{vout+i}, v{vf+2*i}, v{vf+2*i+1}")

def set_exec(a, lo, hi):
    a(f"s_mov_b32 exec_lo, {lo}")
    a(f"s_mov_b32 exec_hi, {hi}")
def full_exec(a):
    a("s_mov_b64 exec, -1")

def poll_loop(a, name, loads, regs, cfg):
    lp=a.label(name+"_poll"); dn=a.label(name+"_ok")
    a(f"s_mov_b32 s{S_SPIN}, {cfg.SPIN}")
    a(f"{lp}:")
    loads()
    a("s_waitcnt vmcnt(0)")
    t=V_T+23
    rs=list(regs)
    a(f"v_max_u32 v{t}, v{rs[0]}, v{rs[1] if len(rs)>1 else rs[0]}")
    i=2
    while i<len(rs):
        if i+1<len(rs):
            a(f"v_max3_u32 v{t}, v{t}, v{rs[i]}, v{rs[i+1]}"); i+=2
        else:
            a(f"v_max_u32 v{t}, v{t}, v{rs[i]}"); i+=1
    a(f"v_cmp_eq_u32 vcc, -1, v{t}")
    a(f"s_cbranch_vccz {dn}")
    a(f"s_sub_u32 s{S_SPIN}, s{S_SPIN}, 1")
    a(f"s_cmp_lg_u32 s{S_SPIN}, 0")
    a(f"s_cbranch_scc1 {lp}")
    a(f"{dn}:")

def store_mode(a, instr, intra):
    if not intra:
        a(instr+" sc1"); return
    l1=a.label("st_slow"); l2=a.label("st_done")
    a(f"s_cmp_eq_u32 s{S_FAST}, 0")
    a(f"s_cbranch_scc1 {l1}")
    a(instr)
    a(f"s_branch {l2}")
    a(f"{l1}:")
    a(instr+" sc1")
    a(f"{l2}:")

def stamp(a, cfg, idx):
    if not cfg.STAMPS: return
    a(f"s_memrealtime s[{72+2*idx}:{73+2*idx}]")


def emit_clears(a, sfx=''):
    a(f"v_mov_b32 v12, -1\nv_mov_b32 v13, -1\nv_mov_b32 v14, -1\nv_mov_b32 v15, -1")
    a(f"s_lshr_b32 s{S_T4}, s{S_R}, 4")
    a(f"s_and_b32 s{S_T5}, s{S_R}, 15")
    a(f"s_lshl_b32 s{S_T1}, s{S_X}, 1")
    a(f"s_add_u32 s{S_T1}, s{S_T1}, s{S_T4}")
    a(f"s_mul_i32 s{S_T0}, s{S_T1}, {CFG.APP}")
    a(f"s_lshl_b32 s{S_T1}, s{S_T5}, 8")
    a(f"s_add_u32 s{S_T0}, s{S_T0}, s{S_T1}")
    a(f"v_mul_u32_u24 v10, {CFG.APB}, v3")
    a(f"v_lshlrev_b32 v11, 4, v2")
    a(f"v_add3_u32 v10, v10, v11, s{S_T0}")
    for base in (W_AP, W_DP):
        a(f"v_add_u32 v11, {base}, v10")
        a(f"global_store_dwordx4 v11, v[12:15], {sr(P_WS,2)} sc1")
        a(f"v_add_u32 v11, {base}+{4*CFG.APB}, v10")
        a(f"global_store_dwordx4 v11, v[12:15], {sr(P_WS,2)} sc1")
    a(f"s_lshl_b32 s{S_T0}, s{S_H}, 3")
    a(f"s_add_u32 s{S_T0}, s{S_T0}, s{S_B}")
    a(f"s_lshl_b32 s{S_T0}, s{S_T0}, 8")
    a(f"s_add_u32 s{S_T0}, s{S_T0}, {W_OB}")
    a(f"v_add_u32 v10, s{S_T0}, v{V_VOFF}")
    set_exec(a, "0xffff", 0)
    a(f"global_store_dwordx4 v10, v[12:15], {sr(P_WS,2)} sc1")
    full_exec(a)
    a(f"s_lshr_b32 s{S_T0}, s{S_R}, 2")
    a(f"s_lshl_b32 s{S_T1}, s{S_X}, 3")
    a(f"s_add_u32 s{S_T0}, s{S_T0}, s{S_T1}")
    a(f"s_lshl_b32 s{S_T0}, s{S_T0}, 11")
    a(f"s_and_b32 s{S_T1}, s{S_R}, 3")
    a(f"s_lshl_b32 s{S_T1}, s{S_T1}, 9")
    a(f"s_add_u32 s{S_T0}, s{S_T0}, s{S_T1}")
    a(f"s_add_u32 s{S_T0}, s{S_T0}, {W_HB}")
    a(f"v_add_u32 v10, s{S_T0}, v{V_VOFF}")
    set_exec(a, -1, 0)
    a(f"global_store_dwordx4 v10, v[12:15], {sr(P_WS,2)} sc1")
    full_exec(a)
    a(f"s_cmp_ge_u32 s{S_R}, 28")
    a(f"s_cbranch_scc1 L_clr_done{sfx}")
    a(f"s_mul_i32 s{S_T0}, s{S_X}, 28")
    a(f"s_add_u32 s{S_T0}, s{S_T0}, s{S_R}")
    a(f"s_lshl_b32 s{S_T0}, s{S_T0}, 12")
    a(f"s_add_u32 s{S_T0}, s{S_T0}, {W_GP}")
    a(f"v_add_u32 v10, s{S_T0}, v{V_VOFF}")
    for n in range(4):
        a(f"global_store_dwordx4 v10, v[12:15], {sr(P_WS,2)} offset:{n*1024} sc1")
    a(f"s_mul_i32 s{S_T0}, s{S_R}, 37")
    a(f"s_lshr_b32 s{S_T0}, s{S_T0}, 8")
    a(f"s_mul_i32 s{S_T1}, s{S_T0}, 7")
    a(f"s_sub_u32 s{S_T1}, s{S_R}, s{S_T1}")
    a(f"s_lshl_b32 s{S_T0}, s{S_T0}, 1")
    a(f"s_lshl_b32 s{S_T2}, s{S_X}, 3")
    a(f"s_add_u32 s{S_T0}, s{S_T0}, s{S_T2}")
    a(f"s_mul_i32 s{S_T0}, s{S_T0}, 896")
    a(f"s_lshl_b32 s{S_T1}, s{S_T1}, 7")
    a(f"s_add_u32 s{S_T0}, s{S_T0}, s{S_T1}")
    a(f"s_add_u32 s{S_T0}, s{S_T0}, {W_ACT}")
    a(f"v_lshrrev_b32 v10, 3, v{V_LANE}")
    a(f"v_mul_u32_u24 v10, 896, v10")
    a(f"v_and_b32 v11, 7, v{V_LANE}")
    a(f"v_lshlrev_b32 v11, 4, v11")
    a(f"v_add3_u32 v10, v10, v11, s{S_T0}")
    set_exec(a, "0xffff", 0)
    a(f"global_store_dwordx4 v10, v[12:15], {sr(P_WS,2)} sc1")
    full_exec(a)
    a(f"L_clr_done{sfx}:")


def emit_extras(a):
    a(f"s_lshl_b32 s{S_T0}, s{S_W}, 9")
    a(f"v_and_b32 v10, 31, v{V_LANE}")
    a(f"v_lshlrev_b32 v10, 4, v10")
    a(f"v_add_u32 v10, s{S_T0}, v10")
    a(f"v_add_u32 v9, {W_RDY}, v10")
    a(f"global_load_dwordx4 {vr(V_RDY,4)}, v9, {sr(P_WS,2)} sc1")
    a(f"s_lshr_b32 s{S_T0}, s{S_R}, 2")
    a(f"s_lshl_b32 s{S_T0}, s{S_T0}, 11")
    a(f"s_and_b32 s{S_T1}, s{S_R}, 3")
    a(f"s_lshl_b32 s{S_T1}, s{S_T1}, 9")
    a(f"s_add_u32 s{S_T0}, s{S_T0}, s{S_T1}")
    a(f"v_lshlrev_b32 v11, 3, v{V_LANE}")
    a(f"v_add_u32 v11, s{S_T0}, v11")
    a(f"global_load_dwordx2 {vr(V_XRES,2)}, v11, {sr(P_X,2)}")

def koff_init(a):
    a(f"s_lshr_b32 s{S_KOFF}, s{S_W}, 2")
    a(f"s_lshl_b32 s{S_KOFF}, s{S_KOFF}, 7")
    a(f"s_and_b32 s{S_T5}, s{S_W}, 3")
    a(f"s_add_u32 s{S_KOFF}, s{S_KOFF}, s{S_T5}")
    a(f"s_lshl_b32 s{S_KOFF}, s{S_KOFF}, 12")

def emit_rdy(a):
    a(f"s_getreg_b32 s{S_T0}, hwreg(HW_REG_XCC_ID, 0, 4)")
    a(f"s_lshl_b32 s{S_T1}, s{S_X}, 5")
    a(f"s_add_u32 s{S_T1}, s{S_T1}, s{S_R}")
    a(f"s_lshl_b32 s{S_T1}, s{S_T1}, 4")
    a(f"s_add_u32 s{S_T1}, s{S_T1}, {W_RDY}")
    a(f"v_mov_b32 v10, s{S_T1}")
    a(f"v_mov_b32 v12, s{S_T0}")
    a(f"v_mov_b32 v13, 0")
    a(f"v_mov_b32 v14, s{S_TAG}")
    a(f"v_mov_b32 v15, s{S_TAG+1}")
    set_exec(a, 1, 0)
    a(f"global_store_dwordx4 v10, v[12:15], {sr(P_WS,2)} sc1")
    full_exec(a)

def gen(cfg):
    a=Asm()
    NSW=cfg.NSW; L=cfg.L; HV=cfg.HV
    LK=cfg.LK or L
    NH=8-NSW
    KT=256//NSW
    VT=(256-NH*HV)//NSW
    assert VT*NSW+NH*HV==256, "V tiles must split evenly"
    NK=4*KT; NV=4*VT
    TSTEP=NSW*4096
    def kload(j):
        reg=V_RING+(j%LK)*4
        a(f"buffer_load_dwordx4 {vr(reg,4)}, v{V_KOFF}, {sr(SRD_K,4)}, s{S_KOFF} offen offset:{(j%4)*1024} {cfg.KFLAGS}")
        if j%4==3:
            a(f"s_add_u32 s{S_KOFF}, s{S_KOFF}, {TSTEP}")
            if cfg.ROT or cfg.ROTX: a(f"s_and_b32 s{S_KOFF}, s{S_KOFF}, 0xfffff")
    def vload(jv, first=False):
        reg=V_RING+((NK-LK+jv)%LK)*4
        if first:
            a(f"s_add_u32 s{S_KOFF}, s{S_W}, {NH*HV}")
            a(f"s_lshl_b32 s{S_KOFF}, s{S_KOFF}, 12")
            if cfg.ROT or cfg.ROTX:
                a(f"s_add_u32 s{S_KOFF}, s{S_KOFF}, s{S_ROT}")
                a(f"s_and_b32 s{S_KOFF}, s{S_KOFF}, 0xfffff")
        a(f"buffer_load_dwordx4 {vr(reg,4)}, v{V_VOFF}, {sr(SRD_V,4)}, s{S_KOFF} offen offset:{(jv%4)*1024} {cfg.VFLAGS}")
        if jv%4==3:
            a(f"s_add_u32 s{S_KOFF}, s{S_KOFF}, {TSTEP}")
            if cfg.ROT or cfg.ROTX: a(f"s_and_b32 s{S_KOFF}, s{S_KOFF}, 0xfffff")
    a(f"{KNAME}:")
    a(f"s_cmp_ge_u32 s{S_ID}, 256")
    a("s_cbranch_scc1 L_exit")
    a("s_load_dwordx16 s[16:31], s[0:1], 0")
    a("s_load_dwordx8 s[32:39], s[0:1], 64")
    if cfg.CODEPF:
        a(f"s_getpc_b64 {sr(S_B1,2)}")
        a("L_pf0:")
        a(f"s_add_u32 s{S_B1}, s{S_B1}, {KNAME}-L_pf0")
        a(f"s_addc_u32 s{S_B1+1}, s{S_B1+1}, -1")
        a(f"v_lshlrev_b32 v10, 6, v0")
        a(f"v_cmp_gt_u32 vcc, L_codeend-{KNAME}, v10")
        a(f"s_and_saveexec_b64 {sr(S_EX,2)}, vcc")
        a("s_cbranch_execz L_pf0_done")
        a(f"global_load_dword v15, v10, {sr(S_B1,2)}")
        a("L_pf0_done:")
        a(f"s_mov_b64 exec, {sr(S_EX,2)}")
    stamp(a,cfg,0)
    a(f"v_lshrrev_b32 v2, 6, v0")
    a(f"v_and_b32 v{V_LANE}, 63, v0")
    if cfg.ALTMAP: a(f"s_lshr_b32 s{S_X}, s{S_ID}, 5")
    else: a(f"s_and_b32 s{S_X}, s{S_ID}, 7")
    a(f"v_readfirstlane_b32 s{S_W}, v2")
    if cfg.ALTMAP: a(f"s_and_b32 s{S_R}, s{S_ID}, 31")
    else: a(f"s_lshr_b32 s{S_R}, s{S_ID}, 3")
    a(f"s_lshr_b32 s{S_T0}, s{S_R}, 3")
    a(f"s_lshl_b32 s{S_H}, s{S_X}, 2")
    a(f"s_add_u32 s{S_H}, s{S_H}, s{S_T0}")
    a(f"s_and_b32 s{S_B}, s{S_R}, 7")
    if cfg.ROT or cfg.ROTX:
        a(f"s_mul_i32 s{S_ROT}, s{S_R}, {cfg.ROT}")
        a(f"s_mul_i32 s{S_DM2}, s{S_X}, {cfg.ROTX}")
        a(f"s_add_u32 s{S_ROT}, s{S_ROT}, s{S_DM2}")
        a(f"s_and_b32 s{S_ROT}, s{S_ROT}, 0xff000")
    if cfg.HPERM==2:
        a(f"s_add_u32 s{S_HA}, s{S_X}, s{S_T0}")
        a(f"s_and_b32 s{S_HA}, s{S_HA}, 7")
        a(f"s_lshl_b32 s{S_DM2}, s{S_T0}, 3")
        a(f"s_add_u32 s{S_HA}, s{S_HA}, s{S_DM2}")
    elif cfg.HPERM:
        a(f"s_lshl_b32 s{S_HA}, s{S_T0}, 3")
        a(f"s_add_u32 s{S_HA}, s{S_HA}, s{S_X}")
    else:
        a(f"s_mov_b32 s{S_HA}, s{S_H}")
    a(f"v_and_b32 v2, 15, v{V_LANE}")
    a(f"v_lshrrev_b32 v3, 4, v{V_LANE}")
    a(f"v_lshlrev_b32 v{V_VOFF}, 4, v{V_LANE}")
    a(f"v_lshrrev_b32 v4, 2, v2")
    a(f"v_and_b32 v5, 3, v2")
    a(f"v_lshlrev_b32 v6, 8, v4")
    a(f"v_lshlrev_b32 v7, 6, v3")
    a(f"v_lshlrev_b32 v8, 4, v5")
    a(f"v_add3_u32 v{V_KOFF}, v6, v7, v8")
    a(f"v_mov_b32 v{V_DMA}, 0")
    a("s_waitcnt lgkmcnt(0)")
    a(f"s_load_dwordx2 {sr(S_TAG,2)}, {sr(P_WS,2)}, {W_EPOCH}")
    a(f"s_lshl_b32 s{S_T0}, s{S_B}, 5")
    a(f"s_add_u32 s{S_T0}, s{S_T0}, s{S_HA}")
    a(f"s_lshl_b32 s{S_T0}, s{S_T0}, 20")
    for srd,p in ((SRD_K,P_K),(SRD_V,P_V)):
        a(f"s_add_u32 s{srd}, s{p}, s{S_T0}")
        a(f"s_addc_u32 s{srd+1}, s{p+1}, 0")
        a(f"s_and_b32 s{srd+1}, s{srd+1}, 0xffff")
        a(f"s_mov_b32 s{srd+2}, 0x100000")
        a(f"s_mov_b32 s{srd+3}, 0x20000")
    a(f"s_lshl_b32 s{S_T0}, s{S_W}, 11")
    a(f"v_lshlrev_b32 v9, 5, v{V_LANE}")
    a(f"v_add_u32 v9, s{S_T0}, v9")
    a(f"global_load_dwordx4 {vr(V_X,4)}, v9, {sr(P_X,2)}")
    a(f"global_load_dwordx4 {vr(V_X+4,4)}, v9, {sr(P_X,2)} offset:16")
    if cfg.HIGH_INLINE:
        a(f"s_cmp_lt_u32 s{S_W}, 4")
        a("s_cbranch_scc1 L_lowwaves")
    else:
        a(f"s_cmp_ge_u32 s{S_W}, 4")
        a("s_cbranch_scc1 L_high")
        a.ool(True)
    a("L_high:")
    a(f"v_lshrrev_b32 v10, 3, v{V_LANE}")
    a(f"v_and_b32 v11, 7, v{V_LANE}")
    a(f"v_lshlrev_b32 v11, 4, v11")
    a(f"s_lshr_b32 s{S_T4}, s{S_R}, 4")
    a(f"s_and_b32 s{S_T5}, s{S_R}, 15")
    a(f"s_cmp_eq_u32 s{S_W}, 4")
    a("s_cbranch_scc1 L_dma_wo")
    a(f"s_cmp_eq_u32 s{S_W}, 7")
    a("s_cbranch_scc1 L_dma_wd")
    a(f"s_cmp_ge_u32 s{S_R}, 28")
    a("s_cbranch_scc1 L_dma_done")
    a(f"s_mul_i32 s{S_T0}, s{S_R}, 37")
    a(f"s_lshr_b32 s{S_T0}, s{S_T0}, 8")
    a(f"s_mul_i32 s{S_T1}, s{S_T0}, 7")
    a(f"s_sub_u32 s{S_T1}, s{S_R}, s{S_T1}")
    a(f"s_mul_i32 s{S_T0}, s{S_T0}, {256*7168}")
    a(f"s_mul_i32 s{S_T2}, s{S_X}, 896")
    a(f"s_lshl_b32 s{S_T1}, s{S_T1}, 7")
    a(f"s_add_u32 s{S_T0}, s{S_T0}, s{S_T2}")
    a(f"s_add_u32 s{S_T0}, s{S_T0}, s{S_T1}")
    a(f"s_cmp_eq_u32 s{S_W}, 5")
    a(f"s_cselect_b32 s{S_B0}, s{P_WG}, s{P_WU}")
    a(f"s_cselect_b32 s{S_B0+1}, s{P_WG+1}, s{P_WU+1}")
    a(f"s_mov_b32 s{S_T3}, {L_WU}")
    a(f"s_cselect_b32 s{S_T3}, {L_WG}, s{S_T3}")
    a(f"s_add_u32 s{S_B0}, s{S_B0}, s{S_T0}")
    a(f"s_addc_u32 s{S_B0+1}, s{S_B0+1}, 0")
    a(f"s_mov_b32 s{S_T0}, 7168")
    a(f"s_mov_b32 s{S_T1}, 32")
    a("s_branch L_dma_go")
    a("L_dma_wo:")
    if cfg.HPERM==2:
        a(f"s_lshl_b32 s{S_T0}, s{S_T4}, 1")
        a(f"s_add_u32 s{S_T0}, s{S_T0}, s{S_X}")
        a(f"s_add_u32 s{S_T2}, s{S_T0}, 1")
        a(f"s_and_b32 s{S_T0}, s{S_T0}, 7")
        a(f"s_and_b32 s{S_T2}, s{S_T2}, 7")
        a(f"s_add_u32 s{S_T2}, s{S_T2}, 7")
        a(f"s_sub_u32 s{S_T2}, s{S_T2}, s{S_T0}")
        a(f"s_lshl_b32 s{S_DJ}, s{S_T2}, 18")
        a(f"s_lshl_b32 s{S_T2}, s{S_T4}, 4")
        a(f"s_add_u32 s{S_T0}, s{S_T0}, s{S_T2}")
        a(f"s_lshl_b32 s{S_T0}, s{S_T0}, 18")
    elif cfg.HPERM:
        a(f"s_lshl_b32 s{S_T0}, s{S_T4}, 4")
        a(f"s_add_u32 s{S_T0}, s{S_T0}, s{S_X}")
        a(f"s_lshl_b32 s{S_T0}, s{S_T0}, 18")
    else:
        a(f"s_lshl_b32 s{S_T0}, s{S_X}, 1")
        a(f"s_add_u32 s{S_T0}, s{S_T0}, s{S_T4}")
        a(f"s_lshl_b32 s{S_T0}, s{S_T0}, 19")
    a(f"s_lshl_b32 s{S_T1}, s{S_T5}, 7")
    a(f"s_add_u32 s{S_T0}, s{S_T0}, s{S_T1}")
    a(f"s_add_u32 s{S_B0}, s{P_WO}, s{S_T0}")
    a(f"s_addc_u32 s{S_B0+1}, s{P_WO+1}, 0")
    a(f"s_mov_b32 s{S_T3}, {L_WO}")
    a(f"s_mov_b32 s{S_T0}, 2048")
    a(f"s_mov_b32 s{S_T1}, 32")
    a("s_branch L_dma_go")
    a("L_dma_wd:")
    a(f"s_lshl_b32 s{S_T0}, s{S_X}, 1")
    a(f"s_add_u32 s{S_T0}, s{S_T0}, s{S_T4}")
    a(f"s_mul_i32 s{S_T0}, s{S_T0}, {224*2048}")
    a(f"s_lshl_b32 s{S_T1}, s{S_T5}, 7")
    a(f"s_add_u32 s{S_T0}, s{S_T0}, s{S_T1}")
    a(f"s_add_u32 s{S_B0}, s{P_WD}, s{S_T0}")
    a(f"s_addc_u32 s{S_B0+1}, s{P_WD+1}, 0")
    a(f"s_mov_b32 s{S_T3}, {L_WD}")
    a(f"s_mov_b32 s{S_T0}, 2048")
    a(f"s_mov_b32 s{S_T1}, 28")
    a("L_dma_go:")
    a(f"v_mul_lo_u32 v10, v10, s{S_T0}")
    a(f"s_lshl_b32 s{S_T0}, s{S_T0}, 3")
    a(f"v_add_u32 v10, v10, v11")
    a(f"s_mov_b32 m0, s{S_T3}")
    a("s_nop 0")
    for n in range(cfg.P0):
        a(f"global_load_lds_dwordx4 v10, {sr(S_B0,2)} {cfg.WFLAGS}")
        a(f"s_add_u32 m0, m0, 1024")
        a(f"s_add_u32 s{S_B0}, s{S_B0}, s{S_T0}")
        a(f"s_addc_u32 s{S_B0+1}, s{S_B0+1}, 0")
    a(f"s_sub_u32 s{S_DN}, s{S_T1}, {cfg.P0}")
    a(f"s_mov_b32 s{S_DS}, s{S_T0}")
    if cfg.HPERM==2:
        a(f"s_cmp_eq_u32 s{S_W}, 4")
        a(f"s_cselect_b32 s{S_DJ}, s{S_DJ}, 0")
    else:
        a(f"s_mov_b32 s{S_DJ}, 0")
        if cfg.HPERM:
            a(f"s_cmp_eq_u32 s{S_W}, 4")
            a(f"s_cselect_b32 s{S_DJ}, {896*2048}, 0")
    a(f"v_mov_b32 v{V_DMA}, v10")
    a(f"s_mov_b32 s{S_LNW}, 1") if cfg.LNDRY else a(f"s_waitcnt vmcnt({cfg.P0})")
    a("s_branch L_ln1")
    a("L_dma_done:")
    a(f"s_mov_b32 s{S_DN}, 0")
    a(f"s_mov_b32 s{S_B0}, s{P_WS}")
    a(f"s_mov_b32 s{S_B0+1}, s{P_WS+1}")
    a(f"v_mov_b32 v{V_DMA}, 0")
    a(f"s_mov_b32 s{S_LNW}, 0") if cfg.LNDRY else a("s_waitcnt vmcnt(0)")
    a("s_branch L_ln1")

    a.ool(False)
    a("L_lowwaves:")
    a(f"v_lshlrev_b32 v12, 13, v3")
    a(f"v_lshlrev_b32 v11, 1, v3")
    a(f"v_xor_b32 v10, v2, v11")
    a(f"v_xor_b32 v11, 8, v10")
    a(f"v_lshl_add_u32 v10, v10, 4, v12")
    a(f"v_lshl_add_u32 v11, v11, 4, v12")
    a(f"s_lshl_b32 s{S_T0}, s{S_B}, 7")
    a(f"s_lshl_b32 s{S_T1}, s{S_W}, 5")
    a(f"s_add_u32 s{S_T0}, s{S_T0}, s{S_T1}")
    a(f"s_lshl_b32 s{S_T0}, s{S_T0}, 13")
    a(f"s_lshl_b32 s{S_T1}, s{S_HA}, 8")
    a(f"s_add_u32 s{S_T0}, s{S_T0}, s{S_T1}")
    a(f"s_add_u32 s{S_B0}, s{P_WQ}, s{S_T0}")
    a(f"s_addc_u32 s{S_B0+1}, s{P_WQ+1}, 0")
    a(f"s_lshl_b32 s{S_T1}, s{S_W}, 13")
    a(f"s_add_u32 m0, s{S_T1}, {L_WQ}")
    a("s_nop 0")
    for n in range(8):
        a(f"global_load_lds_dwordx4 v{10+((n>>1)&1)}, {sr(S_B0,2)} {cfg.WFLAGS}")
        if n<7:
            a(f"s_add_u32 m0, m0, 1024")
            a(f"s_add_u32 s{S_B0}, s{S_B0}, {4*8192}")
            a(f"s_addc_u32 s{S_B0+1}, s{S_B0+1}, 0")
    if cfg.RING_EARLY:
        a(f"s_cmp_ge_u32 s{S_W}, {NSW}")
        a("s_cbranch_scc1 L_low_nostr")
        a(f"s_lshl_b32 s{S_KOFF}, s{S_W}, 12")
        if cfg.ROT or cfg.ROTX:
            a(f"s_add_u32 s{S_KOFF}, s{S_KOFF}, s{S_ROT}")
            a(f"s_and_b32 s{S_KOFF}, s{S_KOFF}, 0xfffff")
        for j in range(cfg.LS or LK): kload(j)
        a(f"s_mov_b32 s{S_LNW}, 2") if cfg.LNDRY else a(f"s_waitcnt vmcnt({8+(cfg.LS or LK)})")
        a("s_branch L_ln1_low")
        a("L_low_nostr:")
    a(f"s_mov_b32 s{S_LNW}, 3") if cfg.LNDRY else a(f"s_waitcnt vmcnt(8)")
    a("L_ln1_low:")
    a("L_ln1:")
    if cfg.LNDRY:
        a(f"s_or_b32 s{S_LNW}, s{S_LNW}, 0x10")
        a("L_ln1_again:")
    layernorm2(a, V_X, V_X+8, V_X+24, V_T)
    if cfg.LNDRY:
        a(f"s_bitcmp0_b32 s{S_LNW}, 4")
        a("s_cbranch_scc1 L_ln1_done")
        a(f"s_and_b32 s{S_LNW}, s{S_LNW}, 0xf")
        for k,n in ((0,0),(1,cfg.P0),(2,8+LK),(3,8)):
            a(f"s_cmp_lg_u32 s{S_LNW}, {k}")
            a(f"s_cbranch_scc1 L_lnw{k}")
            a(f"s_waitcnt vmcnt({n})")
            a(f"L_lnw{k}:")
        a("s_branch L_ln1_again")
        a("L_ln1_done:")
    a(f"s_lshl_b32 s{S_T0}, s{S_B}, 3")
    a(f"v_subrev_u32 v10, s{S_T0}, v{V_LANE}")
    a(f"v_cmp_gt_u32 vcc, 8, v10")
    a(f"s_mul_i32 s{S_T1}, s{S_W}, {LNA_P}")
    a(f"s_add_u32 s{S_T1}, s{S_T1}, {L_LNA}")
    a(f"v_lshlrev_b32 v10, 5, v10")
    a(f"v_add_u32 v10, s{S_T1}, v10")
    a(f"s_and_saveexec_b64 {sr(S_EX,2)}, vcc")
    a(f"ds_write_b128 v10, {vr(V_X+24,4)}")
    a(f"ds_write_b128 v10, {vr(V_X+28,4)} offset:16")
    a(f"s_mov_b64 exec, {sr(S_EX,2)}")
    a(f"s_cmp_ge_u32 s{S_W}, 4")
    a("s_cbranch_scc1 L_b1")
    if cfg.RING_EARLY:
        a(f"s_cmp_ge_u32 s{S_W}, {NSW}")
        a("s_cbranch_scc1 L_b1_ns")
        a(f"s_waitcnt vmcnt({cfg.LS or LK})")
        a("s_branch L_b1")
        a("L_b1_ns:")
    a("s_waitcnt vmcnt(0)")
    a("L_b1:")
    a("s_waitcnt lgkmcnt(0)")
    a(f"s_cmp_lg_u32 s{S_W}, 0")
    a("s_cbranch_scc1 L_noqf")
    a(f"v_mov_b32 v10, {L_QF}")
    a(f"v_mov_b32 v11, 0")
    a(f"ds_write_b32 v10, v11")
    a(f"ds_write_b32 v10, v11 offset:{L_MODE-L_QF}")
    a("s_waitcnt lgkmcnt(0)")
    a("L_noqf:")
    a("s_barrier")
    stamp(a,cfg,1)
    a(f"s_add_u32 s{S_TAG}, s{S_TAG}, 1")
    a(f"s_addc_u32 s{S_TAG+1}, s{S_TAG+1}, 0")
    a(f"v_and_b32 v10, 1, v2")
    a(f"v_cmp_eq_u32 vcc, 1, v10")
    a(f"v_mov_b32 v11, 0xffff")
    a(f"v_mov_b32 v12, 0xffff0000")
    a(f"v_cndmask_b32 v11, v11, v12, vcc")
    a(f"v_lshrrev_b32 v10, 1, v2")
    for w in range(4):
        a(f"v_cmp_eq_u32 vcc, {w}, v10")
        a("s_nop 1")
        a(f"v_cndmask_b32 v{V_MASK+w}, 0, v11, vcc")
    a(f"v_mov_b32 v{V_MAX}, 0xff800000")
    a(f"s_mov_b32 s{S_SCALE}, 0x3db504f3")
    a(f"s_mov_b32 s{S_LOG2E}, 0x3fb8aa3b")
    for c in range(4):
        a(f"v_mov_b32 v{V_OACC+c}, 0")
    a(f"s_cmp_ge_u32 s{S_W}, 4")
    a("s_cbranch_scc1 L_high2")
    a.ool(True)
    a("L_high2:")
    if cfg.CLR7:
        a(f"s_cmp_lg_u32 s{S_W}, 7")
        a("s_cbranch_scc1 L_h2_noclr")
        if not cfg.NOCLR: emit_clears(a,"7")
        a("L_h2_noclr:")
    if cfg.NODMA2: a(f"s_mov_b32 s{S_DN}, 0")
    a(f"s_cmp_eq_u32 s{S_DN}, 0")
    a("s_cbranch_scc1 L_dma2_done")
    if cfg.DMAPAUSE:
        a(f"v_mov_b32 v10, {L_QF}")
        a(f"s_mov_b32 s{S_SPIN}, {cfg.SPIN}")
        a("L_dp_wait:")
        a(f"ds_read_b32 v11, v10")
        a("s_waitcnt lgkmcnt(0)")
        a(f"v_readfirstlane_b32 s{S_T0}, v11")
        a("s_nop 1")
        a(f"s_cmp_lg_u32 s{S_T0}, 0")
        a("s_cbranch_scc1 L_dma2_loop")
        a("s_sleep 2")
        a(f"s_sub_u32 s{S_SPIN}, s{S_SPIN}, 1")
        a(f"s_cmp_lg_u32 s{S_SPIN}, 0")
        a("s_cbranch_scc1 L_dp_wait")
    a("L_dma2_loop:")
    a(f"s_waitcnt vmcnt({cfg.P-1})")
    a(f"global_load_lds_dwordx4 v{V_DMA}, {sr(S_B0,2)} {cfg.WFLAGS}")
    a(f"s_add_u32 m0, m0, 1024")
    a(f"s_add_u32 s{S_B0}, s{S_B0}, s{S_DS}")
    a(f"s_addc_u32 s{S_B0+1}, s{S_B0+1}, 0")
    a(f"s_sub_u32 s{S_DN}, s{S_DN}, 1")
    if cfg.HPERM:
        a(f"s_cmp_eq_u32 s{S_DN}, 16")
        a(f"s_cselect_b32 s{S_DM2}, s{S_DJ}, 0")
        a(f"s_add_u32 s{S_B0}, s{S_B0}, s{S_DM2}")
        a(f"s_addc_u32 s{S_B0+1}, s{S_B0+1}, 0")
    a(f"s_cmp_lg_u32 s{S_DN}, 0")
    a("s_cbranch_scc1 L_dma2_loop")
    a("L_dma2_done:")
    a("s_waitcnt vmcnt(0)")
    stamp(a,cfg,13)
    if cfg.CLR7:
        a(f"s_cmp_lg_u32 s{S_W}, 7")
        a("s_cbranch_scc1 L_h2_nordy")
        emit_rdy(a)
        a("L_h2_nordy:")
    emit_precompute(a,cfg)
    emit_rdycheck(a,cfg)
    a("s_branch L_kdone")
    a.ool(False)
    a("L_q_low:")
    if not cfg.RING_EARLY:
        a(f"s_cmp_ge_u32 s{S_W}, {NSW}")
        a("s_cbranch_scc1 L_ring_late_skip")
        a(f"s_lshl_b32 s{S_KOFF}, s{S_W}, 12")
        if cfg.ROT or cfg.ROTX:
            a(f"s_add_u32 s{S_KOFF}, s{S_KOFF}, s{S_ROT}")
            a(f"s_and_b32 s{S_KOFF}, s{S_KOFF}, 0xfffff")
        for j in range(cfg.LS or LK): kload(j)
        a("L_ring_late_skip:")
    a(f"s_cmp_lt_u32 s{S_W}, 2")
    a("s_cbranch_scc1 L_q_01")
    a.ool(True)
    a("L_q_01:")
    emit_precompute(a,cfg)
    a(f"s_cmp_eq_u32 s{S_W}, 0")
    a("s_cbranch_scc1 L_q_w0")
    a("s_branch L_q_w1")
    a.ool(False)
    a("L_q_prod:")
    a(f"v_and_b32 v10, 7, v{V_LANE}")
    a(f"v_mul_u32_u24 v10, {LNA_P}, v10")
    a(f"v_lshlrev_b32 v11, 4, v3")
    a(f"v_add_u32 v10, v10, v11")
    a(f"v_add_u32 v10, {L_LNA}, v10")
    for s_ in range(4):
        a(f"ds_read_b128 {vr(V_X+4*s_,4)}, v10 offset:{64*s_}")
    a(f"v_lshlrev_b32 v11, 3, v3")
    a(f"v_add_u32 v11, v11, v4")
    a(f"v_lshlrev_b32 v11, 8, v11")
    a(f"v_lshlrev_b32 v12, 3, v5")
    a(f"v_add3_u32 v11, v11, v12, {0}") if False else None
    a(f"v_add_u32 v11, v11, v12")
    a(f"v_add_u32 v11, {L_WQ}, v11")
    a(f"v_and_b32 v12, 1, v3")
    a(f"v_lshlrev_b32 v12, 2, v12")
    a(f"v_or_b32 v12, v12, v4")
    a(f"s_sub_u32 s{S_T4}, s{S_W}, 2")
    a(f"s_lshl_b32 s{S_T0}, s{S_T4}, 2")
    a(f"v_xor_b32 v12, s{S_T0}, v12")
    for tt in range(4):
        a(f"v_xor_b32 v13, {tt}, v12")
        a(f"v_lshl_add_u32 v{V_T+16+tt}, v13, 5, v11")
    for tt in range(4):
        for s_ in range(4):
            for hf in range(2):
                reg=V_RING+tt*16+s_*4+hf*2
                a(f"ds_read_b64_tr_b16 {vr(reg,2)}, v{V_T+16+tt} offset:{(32*s_+4*hf)*256}")
    a(f"s_lshl_b32 s{S_T0}, s{S_H}, 3")
    a(f"s_add_u32 s{S_T0}, s{S_T0}, s{S_B}")
    a(f"s_lshl_b32 s{S_T0}, s{S_T0}, 13")
    a(f"s_lshl_b32 s{S_T1}, s{S_T4}, 9")
    a(f"s_add_u32 s{S_T0}, s{S_T0}, s{S_T1}")
    a(f"s_add_u32 s{S_T0}, s{S_T0}, {W_QP}")
    a(f"v_and_b32 v10, 7, v2")
    a(f"v_lshlrev_b32 v10, 10, v10")
    a(f"v_lshlrev_b32 v11, 5, v3")
    a(f"v_lshrrev_b32 v12, 3, v2")
    a(f"v_lshl_add_u32 v11, v12, 4, v11")
    a(f"v_add3_u32 v{V_QADDR}, v10, v11, s{S_T0}")
    a(f"v_cmp_eq_u32 {sr(S_B1,2)}, 1, v12")
    G=V_X+16
    for tt in range(4):
        a(f"v_mov_b32 v{G+4*tt+2}, s{S_TAG}")
        a(f"v_mov_b32 v{G+4*tt+3}, s{S_TAG+1}")
    a("s_waitcnt lgkmcnt(0)")
    for s_ in range(4):
        for tt in range(4):
            c = "0" if s_==0 else vr(V_T+4*tt,4)
            a(f"v_mfma_f32_16x16x32_bf16 {vr(V_T+4*tt,4)}, {vr(V_RING+tt*16+s_*4,4)}, {vr(V_X+4*s_,4)}, {c}")
    a("s_nop 7")
    for tt in range(4):
        a(f"v_cndmask_b32 v{G+4*tt}, v{V_T+4*tt}, v{V_T+4*tt+2}, {sr(S_B1,2)}")
        a(f"v_cndmask_b32 v{G+4*tt+1}, v{V_T+4*tt+1}, v{V_T+4*tt+3}, {sr(S_B1,2)}")
    def qstores(fl):
        for tt in range(4):
            a(f"global_store_dwordx4 v{V_QADDR}, {vr(G+4*tt,4)}, {sr(P_WS,2)} offset:{128*tt} {fl}")
    qstores("" if cfg.QFAST else "sc1")
    stamp(a,cfg,13)
    a("s_branch L_prod2")
    a.ool(True)
    a("L_prod2:")
    if cfg.QFAST and cfg.CONDCOPY:
        a(f"v_mov_b32 v10, {L_MODE}")
        a(f"s_mov_b32 s{S_SPIN}, {cfg.SPIN}")
        a("L_qc_wait:")
        a("s_sleep 16")
        a(f"ds_read_b32 v11, v10")
        a("s_waitcnt lgkmcnt(0)")
        a(f"v_readfirstlane_b32 s{S_T0}, v11")
        a("s_nop 1")
        a(f"s_cmp_lg_u32 s{S_T0}, 0")
        a("s_cbranch_scc1 L_qc_go")
        a(f"s_sub_u32 s{S_SPIN}, s{S_SPIN}, 1")
        a(f"s_cmp_lg_u32 s{S_SPIN}, 0")
        a("s_cbranch_scc1 L_qc_wait")
        a("L_qc_go:")
        a(f"s_cmp_eq_u32 s{S_T0}, 2")
        a("s_cbranch_scc1 L_qc_skip")
        qstores("sc1")
        a("L_qc_skip:")
    elif cfg.QFAST:
        a(f"v_mov_b32 v10, {L_QF}")
        a(f"s_mov_b32 s{S_SPIN}, {cfg.QWAIT}")
        a("L_qc_wait:")
        a("s_sleep 4")
        a(f"ds_read_b32 v11, v10")
        a("s_waitcnt lgkmcnt(0)")
        a(f"v_readfirstlane_b32 s{S_T0}, v11")
        a("s_nop 1")
        a(f"s_cmp_lg_u32 s{S_T0}, 0")
        a("s_cbranch_scc1 L_qc_go")
        a(f"s_sub_u32 s{S_SPIN}, s{S_SPIN}, 1")
        a(f"s_cmp_lg_u32 s{S_SPIN}, 0")
        a("s_cbranch_scc1 L_qc_wait")
        a("L_qc_go:")
        if not cfg.NOCOPY: qstores("sc1")
    if not cfg.CLR7:
        a(f"s_cmp_lg_u32 s{S_W}, 3")
        a("s_cbranch_scc1 L_q_prod2")
        if not cfg.NOCLR: emit_clears(a)
        a("s_waitcnt vmcnt(0)")
        emit_rdy(a)
    a("L_q_prod2:")
    emit_precompute(a,cfg)
    if cfg.CODEPF:
        a(f"s_cmp_lg_u32 s{S_W}, 2")
        a("s_cbranch_scc1 L_pf1_skip")
        emit_codepf(a,cfg,"L_pf1","L_q_ready","L_exit")
        a("L_pf1_skip:")
    a(f"global_load_dwordx2 {vr(V_XRES,2)}, v9, {sr(P_X,2)}")
    if cfg.TOUCH & 1: a(f"global_load_ushort v15, v{PA_OUT}, {sr(P_OUT,2)}")
    if cfg.TOUCH & 2:
        set_exec(a,1,0)
        a(f"buffer_load_dword v13, v{V_VOFF}, {sr(SRD_V,4)}, 0 offen nt")
        full_exec(a)
    a("s_waitcnt vmcnt(0)")
    a("s_branch L_kdone")
    a.ool(False)
    a("L_q_w1:")
    if NSW<2:
        a("s_branch L_kdone")
    a(f"v_mov_b32 v10, {L_QF}")
    a(f"s_mov_b32 s{S_SPIN}, {cfg.SPIN}")
    a("L_qf_wait:")
    a(f"ds_read_b32 v11, v10")
    a("s_waitcnt lgkmcnt(0)")
    a(f"v_readfirstlane_b32 s{S_T0}, v11")
    a("s_nop 1")
    a(f"s_cmp_lg_u32 s{S_T0}, 0")
    a("s_cbranch_scc1 L_q_ready")
    a(f"s_sub_u32 s{S_SPIN}, s{S_SPIN}, 1")
    a(f"s_cmp_lg_u32 s{S_SPIN}, 0")
    a("s_cbranch_scc1 L_qf_wait")
    a("s_branch L_q_ready")
    a("L_q_w0:")
    a(f"s_lshl_b32 s{S_T0}, s{S_H}, 16")
    a(f"s_lshl_b32 s{S_T1}, s{S_B}, 10")
    a(f"s_add_u32 s{S_T0}, s{S_T0}, s{S_T1}")
    a(f"s_add_u32 s{S_T0}, s{S_T0}, {W_QP}")
    a(f"v_add_u32 v10, s{S_T0}, v{V_VOFF}")
    for j in range(8):
        a(f"v_add_u32 v{V_T+8+j}, {j*8192}, v10")
    PQ=V_X+16
    lp=a.label("qpoll"); dn=a.label("qok")
    if cfg.QPD: a(f"s_sleep {cfg.QPD}")
    a(f"s_mov_b32 s{S_SPIN}, {cfg.SPIN}")
    a(f"{lp}:")
    for j in range(8):
        a(f"global_load_dwordx4 {vr(PQ+4*j,4)}, v{V_T+8+j}, {sr(P_WS,2)} sc1")
    a("s_waitcnt vmcnt(0)")
    a(f"v_mov_b32 v11, 0")
    for j in range(8):
        a(f"v_xor_b32 v12, s{S_TAG}, v{PQ+4*j+2}")
        a(f"v_xor_b32 v13, s{S_TAG+1}, v{PQ+4*j+3}")
        a(f"v_or3_b32 v11, v11, v12, v13")
    a(f"v_cmp_ne_u32 vcc, 0, v11")
    a(f"s_cbranch_vccz {dn}")
    if cfg.QSLEEP: a(f"s_sleep {cfg.QSLEEP}")
    a(f"s_sub_u32 s{S_SPIN}, s{S_SPIN}, 1")
    a(f"s_cmp_lg_u32 s{S_SPIN}, 0")
    a(f"s_cbranch_scc1 {lp}")
    a(f"{dn}:")
    stamp(a,cfg,14)
    for j in range(1,8):
        a(f"v_add_f32 v{PQ}, v{PQ}, v{PQ+4*j}")
        a(f"v_add_f32 v{PQ+1}, v{PQ+1}, v{PQ+4*j+1}")
    a(f"v_cvt_pk_bf16_f32 v{PQ+2}, v{PQ}, v{PQ+1}")
    a(f"v_lshlrev_b32 v11, 2, v{V_LANE}")
    a(f"v_add_u32 v11, {L_QS}, v11")
    a(f"ds_write_b32 v11, v{PQ+2}")
    a("s_waitcnt lgkmcnt(0)")
    a(f"v_mov_b32 v10, {L_QF}")
    a(f"v_mov_b32 v11, 1")
    a(f"ds_write_b32 v10, v11")
    a("L_q_ready:")
    stamp(a,cfg,2)
    a(f"v_lshlrev_b32 v10, 2, v3")
    a(f"v_add_u32 v10, v10, v5")
    a(f"v_lshlrev_b32 v10, 4, v10")
    a(f"v_add_u32 v10, {L_QS}, v10")
    a(f"ds_read_b128 {vr(V_T,4)}, v10")
    a(f"s_lshl_b32 s{S_T0}, s{S_W}, 6")
    a(f"s_add_u32 s{S_T0}, s{S_T0}, {L_SC}")
    a(f"v_lshlrev_b32 v10, 4, v4")
    a(f"v_lshlrev_b32 v11, 2, v3")
    a(f"v_add3_u32 v{V_SCW}, v10, v11, s{S_T0}")
    a("s_waitcnt lgkmcnt(0)")
    for n in range(4):
        a(f"v_cmp_eq_u32 vcc, {n}, v4")
        a("s_nop 1")
        for c in range(4):
            a(f"v_cndmask_b32 v{V_QA+4*n+c}, 0, v{V_T+c}, vcc")
    import math
    PERK=LK*4//math.gcd(LK,4)
    def kpost(acc, sc_off):
        t=V_T
        a(f"v_mov_b32_dpp v{t}, v{acc} quad_perm:[0,0,0,0] row_mask:0xf bank_mask:0xf")
        for q in range(1,4):
            a(f"v_add_f32_dpp v{t}, v{acc+q}, v{t} quad_perm:[{q},{q},{q},{q}] row_mask:0xf bank_mask:0xf")
        round_bf16(a,t,t)
        a(f"v_mul_f32 v{t}, s{S_SCALE}, v{t}")
        round_bf16(a,t,t)
        a(f"v_max_f32 v{V_MAX}, v{V_MAX}, v{t}")
        a(f"ds_write_b32 v{V_SCW}, v{t} offset:{sc_off}")
    def kbody(j, wait_n, reissue, sc_off, prev_off=None, last=False):
        a(f"s_waitcnt vmcnt({wait_n})")
        a("s_nop 0")
        n=j%4
        if cfg.KEXP==2:
            acc=V_SACC if (j//4)%2==0 else V_SACC2
        else:
            acc=V_SACC
        c="0" if n==0 else vr(acc,4)
        a(f"v_mfma_f32_16x16x32_bf16 {vr(acc,4)}, {vr(V_QA+4*n,4)}, {vr(V_RING+(j%LK)*4,4)}, {c}")
        reissue()
        if cfg.KEXP==2:
            if n==1 and prev_off is not None:
                kpost(V_SACC2 if (j//4)%2==0 else V_SACC, prev_off)
            if n==3 and last:
                a("s_nop 7")
                kpost(acc, sc_off)
        elif n==3:
            if cfg.KEXP==1: return
            a("s_nop 7")
            kpost(acc, sc_off)
    if cfg.KEXP==2 and (PERK//4)%2: PERK*=2
    nloop=(NK-LK)//PERK
    TS=NSW*64
    if cfg.KEXP==2:
        for j in range(4):
            kbody(j, LK-1, (lambda j=j: kload(j+LK)), 0, None)
        base=4
        nloop=(NK-LK-4)//PERK
    else:
        base=0
    if cfg.LS:
        assert cfg.KEXP!=2 and cfg.KS0%PERK==0
        for j in range(cfg.KS0):
            kbody(j, cfg.LS-1, (lambda j=j: kload(j+cfg.LS)), (j//4)*TS)
        for m in range(cfg.KS0+cfg.LS, cfg.KS0+LK): kload(m)
        a(f"v_add_u32 v{V_SCW}, {(cfg.KS0//4)*TS}, v{V_SCW}")
        nloop=(NK-LK-cfg.KS0)//PERK
    a(f"s_mov_b32 s{S_LOOP}, {nloop}")
    a(".p2align 6")
    a("L_kloop:")
    for j in range(base,base+PERK):
        kbody(j, LK-1, (lambda j=j: kload(j+LK)), ((j-0)//4)*TS, ((j//4)-1)*TS)
    a(f"v_add_u32 v{V_SCW}, {(PERK//4)*TS}, v{V_SCW}")
    a(f"s_sub_u32 s{S_LOOP}, s{S_LOOP}, 1")
    a(f"s_cmp_lg_u32 s{S_LOOP}, 0")
    a("s_cbranch_scc1 L_kloop")
    done=base+nloop*PERK+(cfg.KS0 if cfg.LS else 0)
    for j in range(done, NK):
        m=j+LK
        if m<NK: ri=(lambda m=m: kload(m)); wn=LK-1
        elif m-NK<L: ri=(lambda m=m: vload(m-NK, first=(m==NK))); wn=LK-1
        else: ri=(lambda: None); wn=(NK-1-j)+L
        rel=(j-nloop*PERK-(cfg.KS0 if cfg.LS else 0))//4
        kbody(j, wn, ri, rel*TS, (rel-1)*TS, last=(j==NK-1))
    a("L_kdone:")
    stamp(a,cfg,3)
    wave_sum(a, V_MAX, V_T, op="max")
    a(f"s_lshl_b32 s{S_T0}, s{S_W}, 2")
    a(f"s_add_u32 s{S_T0}, s{S_T0}, {L_ML}")
    a(f"v_mov_b32 v11, s{S_T0}")
    a(f"ds_write_b32 v11, v{V_MAX}")
    a("s_waitcnt lgkmcnt(0)")
    a("s_barrier")
    if cfg.LATE_L:
        a(f"s_cmp_lg_u32 s{S_W}, 2")
        a("s_cbranch_scc1 L_nokd")
        a(f"v_mov_b32 v12, {L_MODE}")
        a(f"ds_read_b32 v13, v12")
        a(f"s_lshl_b32 s{S_T0}, s{S_X}, 9")
        a(f"s_add_u32 s{S_T0}, s{S_T0}, {W_KD}")
        a(f"v_and_b32 v10, 31, v{V_LANE}")
        a(f"v_lshlrev_b32 v10, 4, v10")
        a(f"v_add_u32 v10, s{S_T0}, v10")
        a(f"global_load_dwordx4 {vr(V_RDY,4)}, v10, {sr(P_WS,2)} sc1")
        if cfg.LATE_X:
            a(f"s_lshl_b32 s{S_T2}, s{S_R}, 7")
            a(f"s_add_u32 s{S_T2}, s{S_T2}, {W_KX}")
            a(f"v_and_b32 v11, 7, v{V_LANE}")
            a(f"v_lshlrev_b32 v11, 4, v11")
            a(f"v_add_u32 v11, s{S_T2}, v11")
            a(f"global_load_dwordx4 {vr(V_KX,4)}, v11, {sr(P_WS,2)} sc1")
        a(f"s_lshl_b32 s{S_T1}, s{S_R}, 4")
        a(f"s_add_u32 s{S_T0}, s{S_T0}, s{S_T1}")
        a(f"v_mov_b32 v10, s{S_T0}")
        if cfg.LATE_X:
            a(f"s_lshl_b32 s{S_T1}, s{S_X}, 4")
            a(f"s_add_u32 s{S_T2}, s{S_T2}, s{S_T1}")
            a(f"v_mov_b32 v11, s{S_T2}")
        a(f"v_mov_b32 v{V_X+8}, 1")
        a(f"v_mov_b32 v{V_X+9}, 0")
        a(f"v_mov_b32 v{V_X+10}, s{S_TAG}")
        a(f"v_mov_b32 v{V_X+11}, s{S_TAG+1}")
        a("s_waitcnt lgkmcnt(0)")
        a(f"v_readfirstlane_b32 s{S_FAST}, v13")
        a("s_nop 1")
        a(f"s_sub_u32 s{S_FAST}, s{S_FAST}, 1")
        set_exec(a,1,0)
        store_mode(a, f"global_store_dwordx4 v10, {vr(V_X+8,4)}, {sr(P_WS,2)}", True)
        if cfg.LATE_X: a(f"global_store_dwordx4 v11, {vr(V_X+8,4)}, {sr(P_WS,2)} sc1")
        full_exec(a)
        a(f"v_mov_b32 v10, {L_SEL}")
        a(f"v_mov_b32 v11, 0")
        a(f"ds_write_b32 v10, v11")
        a("L_nokd:")
    a(f"s_cmp_lt_u32 s{S_W}, {NSW}")
    a("s_cbranch_scc1 L_nohv")
    a(f"s_sub_u32 s{S_T0}, s{S_W}, {NSW}")
    a(f"s_mul_i32 s{S_T0}, s{S_T0}, {HV*4096}")
    if cfg.ROT or cfg.ROTX:
        assert HV==1
        a(f"s_add_u32 s{S_T0}, s{S_T0}, s{S_ROT}")
        a(f"s_and_b32 s{S_T0}, s{S_T0}, 0xfffff")
    for t in range(HV):
        for n in range(4):
            a(f"buffer_load_dwordx4 {vr(V_RING+t*16+n*4,4)}, v{V_VOFF}, {sr(SRD_V,4)}, s{S_T0} offen offset:{n*1024} {cfg.VFLAGS}")
        if t<HV-1: a(f"s_add_u32 s{S_T0}, s{S_T0}, 4096")
    a("L_nohv:")
    a(f"v_mov_b32 v12, {L_MODE}")
    a(f"ds_read_b32 v13, v12")
    a(f"v_mov_b32 v11, {L_ML}")
    a(f"ds_read_b128 {vr(V_X,4)}, v11")
    a(f"ds_read_b128 {vr(V_X+4,4)}, v11 offset:16")
    a(f"s_lshl_b32 s{S_T4}, s{S_W}, 11")
    a(f"s_add_u32 s{S_T4}, s{S_T4}, {L_SC}")
    a(f"v_lshlrev_b32 v10, 5, v{V_LANE}")
    a(f"v_add_u32 v10, s{S_T4}, v10")
    a(f"ds_read_b128 {vr(V_T,4)}, v10")
    a(f"ds_read_b128 {vr(V_T+4,4)}, v10 offset:16")
    a("s_waitcnt lgkmcnt(2)")
    a(f"v_readfirstlane_b32 s{S_FAST}, v13")
    a(f"v_max3_f32 v{V_MAX}, v{V_X}, v{V_X+1}, v{V_X+2}")
    a(f"s_sub_u32 s{S_FAST}, s{S_FAST}, 1")
    a(f"v_max3_f32 v{V_MAX}, v{V_MAX}, v{V_X+3}, v{V_X+4}")
    a(f"v_max3_f32 v{V_MAX}, v{V_MAX}, v{V_X+5}, v{V_X+6}")
    a(f"v_max_f32 v{V_MAX}, v{V_MAX}, v{V_X+7}")
    a("s_waitcnt lgkmcnt(0)")
    for i in range(8):
        a(f"v_sub_f32 v{V_T+8+i}, v{V_T+i}, v{V_MAX}")
        a(f"v_mul_f32 v{V_T+8+i}, s{S_LOG2E}, v{V_T+8+i}")
        a(f"v_exp_f32 v{V_T+8+i}, v{V_T+8+i}")
    a("s_nop 0")
    a(f"v_add_f32 v{V_T+16}, v{V_T+8}, v{V_T+9}")
    for i in range(2,8):
        a(f"v_add_f32 v{V_T+16}, v{V_T+16}, v{V_T+8+i}")
    wave_sum(a, V_T+16, V_T+17)
    a(f"s_lshl_b32 s{S_T0}, s{S_W}, 2")
    a(f"s_add_u32 s{S_T0}, s{S_T0}, {L_LS}")
    a(f"v_mov_b32 v11, s{S_T0}")
    a(f"ds_write_b32 v11, v{V_T+16}")
    a("s_waitcnt lgkmcnt(0)")
    a("s_barrier")
    a(f"v_mov_b32 v11, {L_LS}")
    a(f"ds_read_b128 {vr(V_X,4)}, v11")
    a(f"ds_read_b128 {vr(V_X+4,4)}, v11 offset:16")
    a("s_waitcnt lgkmcnt(0)")
    a(f"v_add_f32 v{V_T+16}, v{V_X}, v{V_X+1}")
    for k in range(2,8):
        a(f"v_add_f32 v{V_T+16}, v{V_T+16}, v{V_X+k}")
    a(f"v_rcp_f32 v{V_T+17}, v{V_T+16}")
    a("s_nop 0")
    a(f"v_fma_f32 v{V_T+18}, -v{V_T+16}, v{V_T+17}, 1.0")
    a(f"v_fma_f32 v{V_T+17}, v{V_T+18}, v{V_T+17}, v{V_T+17}")
    for i in range(8):
        a(f"v_mul_f32 v{V_T+8+i}, v{V_T+8+i}, v{V_T+17}")
        a(f"v_cvt_pk_bf16_f32 v{V_T+8+i}, v{V_T+8+i}, v{V_T+8+i}")
    a(f"ds_write_b128 v10, {vr(V_T+8,4)}")
    a(f"ds_write_b128 v10, {vr(V_T+12,4)} offset:16")
    a("s_waitcnt lgkmcnt(0)")
    a("s_barrier")
    stamp(a,cfg,4)
    def ands(dst,pp):
        for w in range(4):
            a(f"v_and_b32 v{dst+w}, v{pp}, v{V_MASK+w}")
    a(f"s_cmp_lt_u32 s{S_W}, {NSW}")
    a("s_cbranch_scc1 L_vstream")
    if cfg.LATE_L:
        a(f"s_cmp_lg_u32 s{S_W}, 2")
        a("s_cbranch_scc1 L_nokd2")
        a(f"s_waitcnt vmcnt({(2 if cfg.LATE_X else 1)+4*HV})")
        a(f"v_xor_b32 v11, s{S_TAG}, v{V_RDY+2}")
        a(f"v_xor_b32 v15, s{S_TAG+1}, v{V_RDY+3}")
        a(f"v_or_b32 v11, v11, v15")
        a(f"v_cmp_eq_u32 vcc, 0, v11")
        if cfg.LATE_X:
            a(f"v_xor_b32 v11, s{S_TAG}, v{V_KX+2}")
            a(f"v_xor_b32 v15, s{S_TAG+1}, v{V_KX+3}")
            a(f"v_or_b32 v11, v11, v15")
            a(f"v_cmp_eq_u32 {sr(S_B1,2)}, 0, v11")
        a("s_nop 1")
        a(f"s_bcnt1_i32_b32 s{S_T0}, vcc_lo")
        if cfg.LATE_X:
            a(f"s_and_b32 s{S_T1}, s{S_B1}, 0xff")
            a(f"s_bcnt1_i32_b32 s{S_T1}, s{S_T1}")
        if cfg.EARLY_L:
            a(f"s_cmp_le_u32 s{S_T0}, {cfg.EARLY_THR}")
            a(f"s_cselect_b32 s{S_T2}, 2, 0")
            a(f"s_cmp_ge_u32 s{S_T0}, {cfg.LATE_THR}")
            a(f"s_cselect_b32 s{S_T0}, 1, s{S_T2}")
        else:
            a(f"s_cmp_ge_u32 s{S_T0}, {cfg.LATE_THR}")
            a(f"s_cselect_b32 s{S_T0}, 1, 0")
        if cfg.LATE_X:
            a(f"s_cmp_ge_u32 s{S_T1}, {cfg.LATE_X}")
            a(f"s_cselect_b32 s{S_T0}, 1, s{S_T0}")
        a(f"v_mov_b32 v11, {L_SEL}")
        a(f"v_mov_b32 v15, s{S_T0}")
        a(f"ds_write_b32 v11, v15")
        a("L_nokd2:")
    a(f"s_sub_u32 s{S_T0}, s{S_W}, {NSW}")
    a(f"s_mul_i32 s{S_T0}, s{S_T0}, {HV*64}")
    a(f"s_add_u32 s{S_T0}, s{S_T0}, {L_SC}")
    a(f"v_lshlrev_b32 v10, 4, v3")
    a(f"v_add_u32 v10, s{S_T0}, v10")
    for t in range(HV):
        a(f"ds_read_b128 {vr(V_PP0,4)}, v10 offset:{t*64}")
        a(f"s_waitcnt vmcnt({4*(HV-1-t)}) lgkmcnt(0)")
        for n in range(4):
            A=V_A0 if n%2==0 else V_A1
            ands(A,V_PP0+n)
            a("s_nop 1")
            a(f"v_mfma_f32_16x16x32_bf16 {vr(V_OACC,4)}, {vr(A,4)}, {vr(V_RING+t*16+4*n,4)}, {vr(V_OACC,4)}")
    a("s_nop 7")
    set_exec(a, -1, 0)
    a(f"ds_write_b128 v{PA_OW}, {vr(V_OACC,4)}")
    full_exec(a)
    frag_reads(a,"ogd")
    if cfg.CODEPF:
        a(f"s_cmp_lg_u32 s{S_W}, 4")
        a("s_cbranch_scc1 L_pf2_skip")
        emit_codepf(a,cfg,"L_pf2","L_vdone","L_exit")
        a("L_pf2_skip:")
    a("s_waitcnt vmcnt(0) lgkmcnt(0)")
    a("s_branch L_vdone")
    a("L_vstream:")
    a(f"s_add_u32 s{S_T0}, s{S_W}, {NH*HV}")
    a(f"s_lshl_b32 s{S_T0}, s{S_T0}, 6")
    a(f"s_add_u32 s{S_T0}, s{S_T0}, {L_SC}")
    a(f"v_lshlrev_b32 v10, 4, v3")
    a(f"v_add_u32 v{V_PPR}, s{S_T0}, v10")
    a(f"ds_read_b128 {vr(V_PP0,4)}, v{V_PPR}")
    import math as _m
    base_ring=[(NK-LK+v)%LK for v in range(L)]
    spare=[x for x in range(16) if x not in base_ring]
    def vbody2(jv, rel, wait_n, slot, last_tile):
        n=jv%4; par=(jv//4)%2
        pp = V_PP0 if par==0 else V_PP1
        ppn = V_PP1 if par==0 else V_PP0
        if n==0:
            if not last_tile:
                a(f"ds_read_b128 {vr(ppn,4)}, v{V_PPR} offset:{(rel+1)*NSW*64}")
                a(f"s_waitcnt lgkmcnt(1)")
                a("s_nop 0")
            else:
                a(f"s_waitcnt lgkmcnt(0)")
                a("s_nop 0")
        A=V_A0 if n%2==0 else V_A1
        ands(A,pp+n)
        a(f"s_waitcnt vmcnt({wait_n})")
        a("s_nop 0")
        a(f"v_mfma_f32_16x16x32_bf16 {vr(V_OACC,4)}, {vr(A,4)}, {vr(V_RING+slot*4,4)}, {vr(V_OACC,4)}")
    def vissue(jn, slot):
        a(f"buffer_load_dwordx4 {vr(V_RING+slot*4,4)}, v{V_VOFF}, {sr(SRD_V,4)}, s{S_KOFF} offen offset:{(jn%4)*1024} {cfg.VFLAGS}")
        if jn%4==3:
            a(f"s_add_u32 s{S_KOFF}, s{S_KOFF}, {TSTEP}")
            if cfg.ROT or cfg.ROTX: a(f"s_and_b32 s{S_KOFF}, s{S_KOFF}, 0xfffff")
    S0=cfg.SEG0 if cfg.LATE_L else 0
    assert S0%8==0
    for jv in range(S0):
        vbody2(jv, jv//4, L-1, base_ring[jv%L], False)
        vissue(jv+L, base_ring[jv%L])
    if S0: a(f"v_add_u32 v{V_PPR}, {(S0//4)*NSW*64}, v{V_PPR}")
    def vstream(LV, sfx):
        cur=[base_ring[(S0+i)%L] for i in range(L)]
        j0=S0
        if LV<L:
            for d in range(L-LV):
                vbody2(j0, (j0-S0)//4, L-1-d, cur[0], False); cur=cur[1:]; j0+=1
            ring=cur
        else:
            ring=cur+spare[:LV-L]
            for k in range(L,LV): vissue(S0+k, ring[k])
        per=LV*4//_m.gcd(LV,4)
        if (per//4)%2: per*=2
        nl=(NV-j0-LV)//per
        a(f"s_mov_b32 s{S_LOOP}, {nl}")
        a(".p2align 6")
        a(f"L_vloop{sfx}:")
        for i in range(per):
            vbody2(j0+i, (j0+i-S0)//4, LV-1, ring[i%LV], False)
            vissue(j0+i+LV, ring[i%LV])
        a(f"v_add_u32 v{V_PPR}, {(per//4)*NSW*64}, v{V_PPR}")
        a(f"s_sub_u32 s{S_LOOP}, s{S_LOOP}, 1")
        a(f"s_cmp_lg_u32 s{S_LOOP}, 0")
        a(f"s_cbranch_scc1 L_vloop{sfx}")
        start=nl*per
        for i in range(start,NV-j0):
            jv=j0+i
            vbody2(jv, (jv-S0-start)//4, min(LV-1, NV-1-jv), ring[i%LV], jv//4==VT-1)
            if jv+LV<NV: vissue(jv+LV, ring[i%LV])
    if cfg.LATE_L:
        a(f"v_mov_b32 v10, {L_SEL}")
        a(f"ds_read_b32 v11, v10")
        a("s_waitcnt lgkmcnt(0)")
        a(f"v_readfirstlane_b32 s{S_T0}, v11")
        a("s_nop 1")
        a(f"s_cmp_eq_u32 s{S_T0}, 1")
        a("s_cbranch_scc1 L_vlate")
        if cfg.EARLY_L:
            a(f"s_cmp_eq_u32 s{S_T0}, 2")
            a("s_cbranch_scc1 L_vearly")
    vstream(L,"")
    if cfg.LATE_L:
        a("s_branch L_vdone")
        a.ool(True)
        a("L_vlate:")
        vstream(cfg.LATE_L,"b")
        a("s_branch L_vdone")
        if cfg.EARLY_L:
            a("L_vearly:")
            vstream(cfg.EARLY_L,"c")
            a("s_branch L_vdone")
        a.ool(False)
    a("L_vdone:")
    stamp(a,cfg,5)
    return a, None

PA=208
PA_O=PA+0; PA_T2=PA+1; PA_DW=PA+2; PA_R2=PA+3; PA_P2=PA+4; PA_T3A=PA+5; PA_T3B=PA+6; PA_T3W=PA+7; PA_T3R=PA+8; PA_H=PA+9
PA_T4=PA+10; PA_LNBW=PA+11; PA_HSW=PA+12; PA_LNBR=PA+13; PA_GP=PA+14; PA_ACT=PA+15; PA_T6=PA+16; PA_OUT=PA+17; PA_HSR=PA+18
PA_OW=PA+19; PA_OR=PA+20; PA_TR=PA+21
PA_T5B=PA+24
PA_T7=PA+28
V_XRES=PA+36
V_RDY=PA+40
V_KX=PA+44
SM_LNB=8; SM_HS=10
R_T1=2; R_RED0=2
R_W0=3

def emit_precompute(a, cfg):
    global SM_LNB, SM_HS
    T0,T1,T2,T3,T4,T5=S_T0,S_T1,S_T2,S_T3,S_T4,S_T5
    a(f"s_lshl_b32 s{T0}, s{S_H}, 3")
    a(f"s_add_u32 s{T0}, s{T0}, s{S_B}")
    a(f"s_lshl_b32 s{T0}, s{T0}, 8")
    a(f"s_add_u32 s{T0}, s{T0}, {W_OB}")
    a(f"v_lshlrev_b32 v10, 2, v{V_LANE}")
    a(f"v_add_u32 v{PA_O}, s{T0}, v10")
    a(f"s_lshl_b32 s{T0}, s{S_W}, 9")
    a(f"s_add_u32 s{T0}, s{T0}, {L_RED}")
    a(f"v_lshlrev_b32 v11, 5, v2")
    a(f"v_lshlrev_b32 v12, 4, v3")
    a(f"v_add3_u32 v{PA_OW}, v11, v12, s{T0}")
    a(f"v_lshlrev_b32 v11, 3, v{V_LANE}")
    a(f"v_add_u32 v{PA_OR}, {L_RED}, v11")
    a(f"v_lshlrev_b32 v11, 3, v3")
    a(f"v_add_u32 v11, v11, v4")
    a(f"v_lshlrev_b32 v11, 7, v11")
    a(f"v_lshlrev_b32 v13, 3, v5")
    a(f"v_add_u32 v{PA_TR}, v11, v13")
    a(f"s_lshr_b32 s{T4}, s{S_R}, 4")
    a(f"s_and_b32 s{T5}, s{S_R}, 15")
    a(f"v_and_b32 v14, 7, v{V_LANE}")
    a(f"s_lshl_b32 s{T0}, s{S_X}, 2")
    a(f"s_lshl_b32 s{T1}, s{T4}, 1")
    a(f"s_add_u32 s{T0}, s{T0}, s{T1}")
    a(f"s_lshr_b32 s{T1}, s{S_W}, 2")
    a(f"s_add_u32 s{T0}, s{T0}, s{T1}")
    a(f"s_lshl_b32 s{T0}, s{T0}, 11")
    a(f"s_and_b32 s{T1}, s{S_W}, 3")
    a(f"s_lshl_b32 s{T1}, s{T1}, 6")
    a(f"s_add_u32 s{T0}, s{T0}, s{T1}")
    a(f"s_add_u32 s{T0}, s{T0}, {W_OB}")
    a(f"v_lshlrev_b32 v10, 8, v14")
    a(f"v_add3_u32 v{PA_T2}, v10, v12, s{T0}")
    a(f"s_lshl_b32 s{T0}, s{S_W}, 11")
    a(f"s_add_u32 s{T0}, s{T0}, {L_SC}")
    a(f"v_lshlrev_b32 v10, 8, v2")
    a(f"v_xor_b32 v11, v3, v5")
    a(f"v_lshlrev_b32 v11, 4, v11")
    a(f"v_add3_u32 v{PA_DW}, v10, v11, s{T0}")
    a(f"s_sub_u32 s{T0}, s{S_W}, {R_RED0}")
    a(f"s_lshl_b32 s{T0}, s{T0}, 6")
    a(f"v_add_u32 v10, s{T0}, v{V_LANE}")
    a(f"v_and_b32 v10, 127, v10")
    a(f"v_lshrrev_b32 v11, 4, v10")
    a(f"v_and_b32 v13, 3, v11")
    a(f"v_xor_b32 v13, v13, v10")
    a(f"v_lshlrev_b32 v13, 4, v13")
    a(f"v_add_u32 v{PA_R2}, {L_SC}, v13")
    a(f"s_lshl_b32 s{T0}, s{S_X}, 1")
    a(f"s_add_u32 s{T0}, s{T0}, s{T4}")
    a(f"s_mul_i32 s{T0}, s{T0}, {cfg.APP}")
    a(f"s_lshl_b32 s{T1}, s{T5}, 8")
    a(f"s_add_u32 s{T0}, s{T0}, s{T1}")
    a(f"s_add_u32 s{T0}, s{T0}, {W_AP}")
    a(f"v_lshrrev_b32 v11, 4, v10")
    a(f"v_mul_u32_u24 v11, {cfg.APB}, v11")
    a(f"v_lshlrev_b32 v13, 4, v2")
    a(f"v_add3_u32 v{PA_P2}, v11, v13, s{T0}")
    a(f"s_lshr_b32 s{T0}, s{S_R}, 2")
    a(f"s_mul_i32 s{T0}, s{T0}, {cfg.APB}")
    a(f"s_and_b32 s{T1}, s{S_R}, 3")
    a(f"s_lshl_b32 s{T1}, s{T1}, 10")
    a(f"s_add_u32 s{T0}, s{T0}, s{T1}")
    a(f"s_mul_i32 s{T1}, s{S_W}, {2*cfg.APP}")
    a(f"s_add_u32 s{T0}, s{T0}, s{T1}")
    a(f"s_add_u32 s{T0}, s{T0}, {W_AP}")
    a(f"v_add_u32 v{PA_T3A}, s{T0}, v{V_VOFF}")
    a(f"v_add_u32 v{PA_T3B}, {cfg.APP}, v{PA_T3A}")
    RED3=L_RED+4096
    a(f"s_lshl_b32 s{T0}, s{S_W}, 10")
    a(f"s_add_u32 s{T0}, s{T0}, {RED3}")
    a(f"v_add_u32 v{PA_T3W}, s{T0}, v{V_VOFF}")
    a(f"v_add_u32 v{PA_T3R}, {RED3}, v{V_VOFF}")
    a(f"s_lshr_b32 s{T0}, s{S_R}, 2")
    a(f"s_lshl_b32 s{T1}, s{S_X}, 3")
    a(f"s_add_u32 s{T0}, s{T0}, s{T1}")
    a(f"s_lshl_b32 s{T0}, s{T0}, 11")
    a(f"s_and_b32 s{T1}, s{S_R}, 3")
    a(f"s_lshl_b32 s{T1}, s{T1}, 9")
    a(f"s_add_u32 s{T0}, s{T0}, s{T1}")
    a(f"s_add_u32 s{T0}, s{T0}, {W_HB}")
    a(f"v_lshlrev_b32 v10, 3, v{V_LANE}")
    a(f"v_add_u32 v{PA_H}, s{T0}, v10")
    a(f"s_lshr_b32 s{T0}, s{S_R}, 2")
    a(f"s_lshl_b32 s{T0}, s{T0}, 11")
    a(f"s_add_u32 s{T0}, s{T0}, s{T1}")
    a(f"v_add_u32 v9, s{T0}, v10")
    a(f"s_lshl_b32 s{T0}, s{S_X}, 3")
    a(f"s_add_u32 s{T0}, s{T0}, s{S_W}")
    a(f"s_lshl_b32 s{T0}, s{T0}, 11")
    a(f"s_add_u32 s{T0}, s{T0}, {W_HB}")
    a(f"v_lshlrev_b32 v10, 5, v{V_LANE}")
    a(f"v_add_u32 v{PA_T4}, s{T0}, v10")
    a(f"s_mul_i32 s{T2}, s{S_R}, 37")
    a(f"s_lshr_b32 s{T2}, s{T2}, 8")
    a(f"s_mul_i32 s{T3}, s{T2}, 7")
    a(f"s_sub_u32 s{T3}, s{S_R}, s{T3}")
    a(f"s_lshl_b32 s{T0}, s{T2}, 4")
    a(f"v_subrev_u32 v10, s{T0}, v{V_LANE}")
    a(f"v_cmp_gt_u32 {sr(SM_LNB,2)}, 16, v10")
    a(f"s_mul_i32 s{T1}, s{S_W}, {LNB_P}")
    a(f"s_add_u32 s{T1}, s{T1}, {L_LNB}")
    a(f"v_lshlrev_b32 v10, 5, v10")
    a(f"v_add_u32 v{PA_LNBW}, s{T1}, v10")
    a(f"s_lshl_b32 s{T0}, s{S_R}, 1")
    a(f"v_subrev_u32 v10, s{T0}, v{V_LANE}")
    a(f"v_cmp_gt_u32 {sr(SM_HS,2)}, 2, v10")
    a(f"v_lshlrev_b32 v10, 5, v10")
    a(f"v_add_u32 v{PA_HSW}, {L_HS}, v10")
    a(f"v_mul_u32_u24 v10, {LNB_P}, v14")
    a(f"v_add_u32 v10, v10, v12")
    a(f"v_add_u32 v{PA_LNBR}, {L_LNB}, v10")
    a(f"s_mul_i32 s{T0}, s{S_X}, 28")
    a(f"s_add_u32 s{T0}, s{T0}, s{S_R}")
    a(f"s_lshl_b32 s{T0}, s{T0}, 12")
    a(f"s_lshr_b32 s{T1}, s{S_W}, 2")
    a(f"s_lshl_b32 s{T1}, s{T1}, 11")
    a(f"s_add_u32 s{T0}, s{T0}, s{T1}")
    a(f"s_and_b32 s{T1}, s{S_W}, 3")
    a(f"s_lshl_b32 s{T1}, s{T1}, 9")
    a(f"s_add_u32 s{T0}, s{T0}, s{T1}")
    a(f"s_add_u32 s{T0}, s{T0}, {W_GP}")
    a(f"v_lshlrev_b32 v10, 6, v2")
    a(f"v_add3_u32 v{PA_GP}, v10, v12, s{T0}")
    a(f"s_mul_i32 s{T0}, s{S_X}, 28")
    a(f"s_add_u32 s{T0}, s{T0}, s{T3}")
    a(f"s_lshl_b32 s{T0}, s{T0}, 12")
    a(f"s_lshl_b32 s{T1}, s{T2}, 7")
    a(f"s_add_u32 s{T0}, s{T0}, s{T1}")
    a(f"s_add_u32 s{T0}, s{T0}, {W_GP}")
    a(f"v_lshrrev_b32 v10, 5, v{V_LANE}")
    a(f"v_and_b32 v11, 31, v{V_LANE}")
    a(f"v_lshrrev_b32 v13, 3, v11")
    a(f"v_lshlrev_b32 v13, 9, v13")
    a(f"v_lshl_add_u32 v13, v10, 6, v13")
    a(f"v_and_b32 v15, 7, v11")
    a(f"v_lshlrev_b32 v15, 3, v15")
    a(f"v_add3_u32 v{PA_T5B}, v13, v15, s{T0}")
    for k in range(1,4):
        a(f"v_add_u32 v{PA_T5B+k}, {k*7*4096}, v{PA_T5B}")
    a(f"s_lshl_b32 s{T0}, s{S_X}, 3")
    a(f"s_lshl_b32 s{T1}, s{T2}, 1")
    a(f"s_add_u32 s{T0}, s{T0}, s{T1}")
    a(f"s_mul_i32 s{T0}, s{T0}, 896")
    a(f"s_lshl_b32 s{T1}, s{T3}, 7")
    a(f"s_add_u32 s{T0}, s{T0}, s{T1}")
    a(f"s_add_u32 s{T0}, s{T0}, {W_ACT}")
    a(f"v_mul_u32_u24 v13, 896, v10")
    a(f"v_lshlrev_b32 v15, 2, v11")
    a(f"v_add3_u32 v{PA_ACT}, v13, v15, s{T0}")
    a(f"s_mul_i32 s{T0}, s{S_X}, {8*896}")
    a(f"s_mul_i32 s{T1}, s{T4}, 448")
    a(f"s_add_u32 s{T0}, s{T0}, s{T1}")
    a(f"s_lshl_b32 s{T1}, s{S_W}, 6")
    a(f"s_add_u32 s{T0}, s{T0}, s{T1}")
    a(f"s_add_u32 s{T0}, s{T0}, {W_ACT}")
    a(f"v_mul_u32_u24 v13, 896, v14")
    a(f"v_add3_u32 v{PA_T6}, v13, v12, s{T0}")
    a(f"s_mul_i32 s{T0}, s{S_X}, {cfg.APB}")
    a(f"s_lshl_b32 s{T1}, s{S_R}, 7")
    a(f"s_add_u32 s{T0}, s{T0}, s{T1}")
    a(f"s_add_u32 s{T0}, s{T0}, {W_DP}")
    a(f"v_mul_u32_u24 v13, {8*cfg.APP}, v10")
    a(f"v_lshlrev_b32 v15, 2, v11")
    a(f"v_add3_u32 v{PA_T7}, v13, v15, s{T0}")
    for k in range(1,8):
        a(f"v_add_u32 v{PA_T7+k}, {k*cfg.APP}, v{PA_T7}")
    a(f"s_lshl_b32 s{T0}, s{S_X}, 11")
    a(f"s_lshl_b32 s{T1}, s{S_R}, 6")
    a(f"s_add_u32 s{T0}, s{T0}, s{T1}")
    a(f"v_lshlrev_b32 v15, 1, v11")
    a(f"v_add_u32 v{PA_OUT}, s{T0}, v15")
    a(f"v_add_u32 v{PA_HSR}, {L_HS}, v15")

def emit_codepf(a, cfg, lab, first, last):
    a(f"s_getpc_b64 {sr(S_B1,2)}")
    a(f"{lab}:")
    a(f"s_add_u32 s{S_B1}, s{S_B1}, ({first}-{lab})&0xffffffff")
    a(f"s_addc_u32 s{S_B1+1}, s{S_B1+1}, ({first}-{lab})>>32")
    a(f"v_lshlrev_b32 v10, 6, v{V_LANE}")
    a(f"s_mov_b32 s{S_T0}, {last}-{first}")
    a(f"{lab}_loop:")
    a(f"v_cmp_gt_u32 vcc, s{S_T0}, v10")
    a(f"s_and_saveexec_b64 {sr(S_EX,2)}, vcc")
    a(f"s_cbranch_execz {lab}_done")
    a(f"global_load_dword v11, v10, {sr(S_B1,2)}")
    a(f"s_mov_b64 exec, {sr(S_EX,2)}")
    a(f"v_add_u32 v10, 4096, v10")
    a(f"s_branch {lab}_loop")
    a(f"{lab}_done:")
    a(f"s_mov_b64 exec, {sr(S_EX,2)}")
    a("s_waitcnt vmcnt(0)")

def emit_rdycheck(a, cfg):
    f=1 if cfg.FASTMODE else 0
    a(f"s_cmp_lg_u32 s{S_W}, 4")
    a("s_cbranch_scc1 L_rdy_b")
    a(f"s_cmp_lg_u32 s{S_R}, 0")
    a("s_cbranch_scc1 L_rdy_done")
    a(f"s_lshl_b32 s{S_T0}, s{S_X}, 9")
    a(f"s_add_u32 s{S_T0}, s{S_T0}, {W_RDY}")
    a(f"v_and_b32 v10, 31, v{V_LANE}")
    a(f"v_lshlrev_b32 v10, 4, v10")
    a(f"v_add_u32 v10, s{S_T0}, v10")
    lp=a.label("rdy"); dn=a.label("rdyok")
    a(f"s_mov_b32 s{S_SPIN}, {cfg.SPIN}")
    a(f"{lp}:")
    a(f"global_load_dwordx4 {vr(V_RDY,4)}, v10, {sr(P_WS,2)} sc1")
    a("s_waitcnt vmcnt(0)")
    a(f"v_xor_b32 v11, s{S_TAG}, v{V_RDY+2}")
    a(f"v_xor_b32 v15, s{S_TAG+1}, v{V_RDY+3}")
    a(f"v_or_b32 v11, v11, v15")
    a(f"v_cmp_ne_u32 vcc, 0, v11")
    a(f"s_cbranch_vccz {dn}")
    a("s_sleep 16")
    a(f"s_sub_u32 s{S_SPIN}, s{S_SPIN}, 1")
    a(f"s_cmp_lg_u32 s{S_SPIN}, 0")
    a(f"s_cbranch_scc1 {lp}")
    a(f"{dn}:")
    a(f"v_readfirstlane_b32 s{S_T0}, v{V_RDY}")
    a("s_nop 1")
    a(f"v_cmp_ne_u32 vcc, s{S_T0}, v{V_RDY}")
    a(f"s_mov_b32 s{S_T2}, {f}")
    a("s_nop 1")
    a(f"s_cmp_eq_u64 vcc, 0")
    a(f"s_cselect_b32 s{S_T2}, s{S_T2}, 0")
    a(f"s_lshl_b32 s{S_T0}, s{S_X}, 4")
    a(f"s_add_u32 s{S_T0}, s{S_T0}, {W_GRDY}")
    a(f"v_mov_b32 v10, s{S_T0}")
    a(f"v_mov_b32 v12, s{S_T2}")
    a(f"v_mov_b32 v13, 0")
    a(f"v_mov_b32 v14, s{S_TAG}")
    a(f"v_mov_b32 v15, s{S_TAG+1}")
    set_exec(a,1,0)
    a(f"global_store_dwordx4 v10, v[12:15], {sr(P_WS,2)} sc1")
    full_exec(a)
    a("s_branch L_rdy_done")
    a("L_rdy_b:")
    a(f"s_cmp_lg_u32 s{S_W}, 5")
    a("s_cbranch_scc1 L_rdy_done")
    a(f"v_and_b32 v10, 7, v{V_LANE}")
    a(f"v_lshlrev_b32 v10, 4, v10")
    a(f"v_add_u32 v10, {W_GRDY}, v10")
    lp=a.label("grdy"); dn=a.label("grdyok")
    a(f"s_mov_b32 s{S_SPIN}, {cfg.SPIN}")
    a(f"{lp}:")
    set_exec(a,"0xff",0)
    a(f"global_load_dwordx4 {vr(V_RDY,4)}, v10, {sr(P_WS,2)} sc1")
    a("s_waitcnt vmcnt(0)")
    a(f"v_xor_b32 v11, s{S_TAG}, v{V_RDY+2}")
    a(f"v_xor_b32 v15, s{S_TAG+1}, v{V_RDY+3}")
    a(f"v_or_b32 v11, v11, v15")
    a(f"v_cmp_ne_u32 vcc, 0, v11")
    full_exec(a)
    a(f"s_cbranch_vccz {dn}")
    a("s_sleep 64")
    a(f"s_sub_u32 s{S_SPIN}, s{S_SPIN}, 1")
    a(f"s_cmp_lg_u32 s{S_SPIN}, 0")
    a(f"s_cbranch_scc1 {lp}")
    a(f"{dn}:")
    a(f"v_readlane_b32 s{S_T2}, v{V_RDY}, s{S_X}")
    a(f"v_mov_b32 v10, {L_MODE}")
    a("s_nop 1")
    a(f"s_add_u32 s{S_T2}, s{S_T2}, 1")
    a(f"v_mov_b32 v12, s{S_T2}")
    a(f"ds_write_b32 v10, v12")
    a("L_rdy_done:")

def poll_masked(a, name, loads, regs, cfg, tmp, nloads=1, stagger=0):
    ps = cfg.PSX if name in ('t3','t7') else cfg.PSLEEP
    lp=a.label(name+"_poll"); dn=a.label(name+"_ok")
    a(f"s_mov_b64 {sr(S_EX,2)}, exec")
    a(f"s_mov_b32 s{S_SPIN}, {cfg.SPIN}")
    if stagger:
        loads()
        a(f"s_sleep {stagger}")
    a(f"{lp}:")
    loads()
    a(f"s_waitcnt vmcnt({nloads if stagger else 0})")
    rs=list(regs)
    if len(rs)>=3:
        a(f"v_max3_u32 v{tmp}, v{rs[0]}, v{rs[1]}, v{rs[2]}"); i=3
    else:
        a(f"v_max_u32 v{tmp}, v{rs[0]}, v{rs[1]}"); i=2
    while i<len(rs):
        if i+1<len(rs):
            a(f"v_max3_u32 v{tmp}, v{tmp}, v{rs[i]}, v{rs[i+1]}"); i+=2
        else:
            a(f"v_max_u32 v{tmp}, v{tmp}, v{rs[i]}"); i+=1
    a(f"v_cmp_eq_u32 vcc, -1, v{tmp}")
    a(f"s_mov_b64 exec, vcc")
    a(f"s_cbranch_execz {dn}")
    if ps: a(f"s_sleep {ps}")
    a(f"s_sub_u32 s{S_SPIN}, s{S_SPIN}, 1")
    a(f"s_cmp_lg_u32 s{S_SPIN}, 0")
    a(f"s_cbranch_scc1 {lp}")
    a(f"{dn}:")
    a(f"s_mov_b64 exec, {sr(S_EX,2)}")

def frag_reads(a, which):
    WB=V_RING; WO_F=WB; GU_F=WB+16; WD_F=WB+48
    if "o" in which:
        a(f"s_lshl_b32 s{S_T0}, s{S_W}, 12")
        a(f"s_add_u32 s{S_T1}, s{S_T0}, {L_WO}")
        a(f"v_add_u32 v13, s{S_T1}, v{PA_TR}")
        for t in range(4):
            for hf in range(2):
                a(f"ds_read_b64_tr_b16 {vr(WO_F+4*t+2*hf,2)}, v13 offset:{hf*4*128+32*t}")
    if "g" in which:
        a(f"s_lshr_b32 s{S_T0}, s{S_W}, 2")
        a(f"s_lshl_b32 s{S_T0}, s{S_T0}, 15")
        a(f"s_and_b32 s{S_T1}, s{S_W}, 3")
        a(f"s_lshl_b32 s{S_T1}, s{S_T1}, 5")
        a(f"s_add_u32 s{S_T0}, s{S_T0}, s{S_T1}")
        a(f"s_add_u32 s{S_T0}, s{S_T0}, {L_WG}")
        a(f"v_add_u32 v15, s{S_T0}, v{PA_TR}")
        for s in range(8):
            for hf in range(2):
                a(f"ds_read_b64_tr_b16 {vr(GU_F+4*s+2*hf,2)}, v15 offset:{(32*s+4*hf)*128}")
    if "d" in which:
        a(f"s_lshl_b32 s{S_T0}, s{S_W}, 12")
        a(f"s_add_u32 s{S_T1}, s{S_T0}, {L_WD}")
        a(f"v_add_u32 v11, s{S_T1}, v{PA_TR}")
        for t in range(4):
            for hf in range(2):
                a(f"ds_read_b64_tr_b16 {vr(WD_F+4*t+2*hf,2)}, v11 offset:{hf*4*128+32*t}")

def layernorm2(a, vin, vf, vout, t):
    for i in range(8):
        a(f"v_lshlrev_b32 v{vf+2*i}, 16, v{vin+i}")
        a(f"v_and_b32 v{vf+2*i+1}, 0xffff0000, v{vin+i}")
    a(f"v_readfirstlane_b32 s{S_T4}, v{vf}")
    a("s_nop 1")
    a(f"v_mov_b32 v{t+6}, s{S_T4}")
    a(f"v_mov_b32 v{t+7}, s{S_T4}")
    for i in range(8):
        a(f"v_pk_add_f32 {vr(vf+2*i,2)}, {vr(vf+2*i,2)}, {vr(t+6,2)} neg_lo:[0,1] neg_hi:[0,1]")
    a(f"v_pk_add_f32 {vr(t,2)}, {vr(vf,2)}, {vr(vf+2,2)}")
    a(f"v_pk_mul_f32 {vr(t+2,2)}, {vr(vf,2)}, {vr(vf,2)}")
    a(f"v_pk_fma_f32 {vr(t+2,2)}, {vr(vf+2,2)}, {vr(vf+2,2)}, {vr(t+2,2)}")
    for i in range(2,8):
        a(f"v_pk_add_f32 {vr(t,2)}, {vr(t,2)}, {vr(vf+2*i,2)}")
        a(f"v_pk_fma_f32 {vr(t+2,2)}, {vr(vf+2*i,2)}, {vr(vf+2*i,2)}, {vr(t+2,2)}")
    a(f"v_add_f32 v{t}, v{t}, v{t+1}")
    a(f"v_add_f32 v{t+2}, v{t+2}, v{t+3}")
    for k in (8,4,2,1):
        a("s_nop 0")
        a(f"v_add_f32_dpp v{t}, v{t}, v{t} row_ror:{k} row_mask:0xf bank_mask:0xf")
        a("s_nop 0") if False else None
        a(f"v_add_f32_dpp v{t+2}, v{t+2}, v{t+2} row_ror:{k} row_mask:0xf bank_mask:0xf")
    a(f"v_mov_b32 v{t+1}, v{t}")
    a(f"v_mov_b32 v{t+3}, v{t+2}")
    a("s_nop 1")
    a(f"v_permlane16_swap_b32 v{t}, v{t+1}")
    a(f"v_permlane16_swap_b32 v{t+2}, v{t+3}")
    a("s_nop 1")
    a(f"v_add_f32 v{t}, v{t}, v{t+1}")
    a(f"v_add_f32 v{t+2}, v{t+2}, v{t+3}")
    a(f"v_mov_b32 v{t+1}, v{t}")
    a(f"v_mov_b32 v{t+3}, v{t+2}")
    a("s_nop 1")
    a(f"v_permlane32_swap_b32 v{t}, v{t+1}")
    a(f"v_permlane32_swap_b32 v{t+2}, v{t+3}")
    a("s_nop 1")
    a(f"v_add_f32 v{t}, v{t}, v{t+1}")
    a(f"v_add_f32 v{t+2}, v{t+2}, v{t+3}")
    a(f"v_mul_f32 v{t}, 0x3a800000, v{t}")
    a(f"v_mul_f32 v{t+2}, 0x3a800000, v{t+2}")
    a(f"v_fma_f32 v{t+2}, -v{t}, v{t}, v{t+2}")
    a(f"v_add_f32 v{t}, v{t}, v{t+6}")
    a(f"v_max_f32 v{t+2}, 0, v{t+2}")
    a(f"v_cvt_pk_bf16_f32 v{t}, v{t}, v{t+2}")
    a(f"v_and_b32 v{t+2}, 0xffff0000, v{t}")
    a(f"v_lshlrev_b32 v{t}, 16, v{t}")
    a(f"v_add_f32 v{t+2}, 0x3727c5ac, v{t+2}")
    round_bf16(a, t+2, t+2)
    a(f"v_sqrt_f32 v{t+2}, v{t+2}")
    a(f"v_mov_b32 v{t+1}, v{t}")
    round_bf16(a, t+2, t+2)
    a(f"v_rcp_f32 v{t+2}, v{t+2}")
    a("s_nop 0")
    a(f"v_mov_b32 v{t+3}, v{t+2}")
    for i in range(8):
        a(f"v_lshlrev_b32 v{vf+2*i}, 16, v{vin+i}")
        a(f"v_and_b32 v{vf+2*i+1}, 0xffff0000, v{vin+i}")
        a(f"v_pk_add_f32 {vr(vf+2*i,2)}, {vr(vf+2*i,2)}, {vr(t,2)} neg_lo:[0,1] neg_hi:[0,1]")
        a(f"v_cvt_pk_bf16_f32 v{t+4}, v{vf+2*i}, v{vf+2*i+1}")
        a(f"v_lshlrev_b32 v{vf+2*i}, 16, v{t+4}")
        a(f"v_and_b32 v{vf+2*i+1}, 0xffff0000, v{t+4}")
        a(f"v_pk_mul_f32 {vr(vf+2*i,2)}, {vr(vf+2*i,2)}, {vr(t+2,2)}")
        a(f"v_cvt_pk_bf16_f32 v{vout+i}, v{vf+2*i}, v{vf+2*i+1}")

def gen_tail(a, cfg):
    WB=V_RING; WO_F=WB; GU_F=WB+16; WD_F=WB+48
    TT=V_RING+64
    TMP=V_T+23
    NSW=cfg.NSW
    a(f"s_cmp_ge_u32 s{S_W}, {NSW}")
    a("s_cbranch_scc1 L_t0_b5")
    a("s_nop 7")
    set_exec(a, -1, 0)
    a(f"ds_write_b128 v{PA_OW}, {vr(V_OACC,4)}")
    full_exec(a)
    a("s_waitcnt lgkmcnt(0)")
    a("L_t0_b5:")
    a("s_barrier")
    a(f"s_cmp_lg_u32 s{S_W}, {R_T1}")
    a("s_cbranch_scc1 L_t1_done")
    for w in range(8):
        a(f"ds_read_b64 {vr(TT+2*w,2)}, v{PA_OR} offset:{w*512}")
    a("s_waitcnt lgkmcnt(0)")
    a(f"v_pk_add_f32 {vr(TT,2)}, {vr(TT,2)}, {vr(TT+2,2)}")
    a(f"v_pk_add_f32 {vr(TT+4,2)}, {vr(TT+4,2)}, {vr(TT+6,2)}")
    a(f"v_pk_add_f32 {vr(TT+8,2)}, {vr(TT+8,2)}, {vr(TT+10,2)}")
    a(f"v_pk_add_f32 {vr(TT+12,2)}, {vr(TT+12,2)}, {vr(TT+14,2)}")
    a(f"v_pk_add_f32 {vr(TT,2)}, {vr(TT,2)}, {vr(TT+4,2)}")
    a(f"v_pk_add_f32 {vr(TT+8,2)}, {vr(TT+8,2)}, {vr(TT+12,2)}")
    a(f"v_pk_add_f32 {vr(TT,2)}, {vr(TT,2)}, {vr(TT+8,2)}")
    a(f"v_cvt_pk_bf16_f32 v{TT}, v{TT}, v{TT+1}")
    a(f"v_min_u32 v{TT}, -2, v{TT}")
    store_mode(a, f"global_store_dword v{PA_O}, v{TT}, {sr(P_WS,2)}", True)
    a("L_t1_done:")
    stamp(a,cfg,6)
    a(f"s_cmp_ge_u32 s{S_W}, {NSW}")
    a("s_cbranch_scc1 L_t2_go")
    frag_reads(a,"ogd")
    a("L_t2_go:")
    if cfg.PD2: a(f"s_sleep {cfg.PD2}")
    poll_masked(a,"t2", lambda: a(f"global_load_dwordx4 {vr(TT+32,4)}, v{PA_T2}, {sr(P_WS,2)} sc1"), range(TT+32,TT+36), cfg, TMP, 1, cfg.PIPE2)
    if cfg.TAILDIAG: stamp(a,cfg,9)
    a("s_waitcnt lgkmcnt(0)")
    def gemm4_reduce_publish(F, B, dp, nw, lab):
        off=16384 if dp else 0
        for t in range(4):
            a(f"v_mfma_f32_16x16x32_bf16 {vr(TT+4*t,4)}, {vr(F+4*t,4)}, {vr(B,4)}, 0")
        if nw<8:
            a(f"s_cmp_ge_u32 s{S_W}, {nw}")
            a(f"s_cbranch_scc1 {lab}_nw")
        set_exec(a, "0x00ff00ff", "0x00ff00ff")
        a("s_nop 2")
        for t in range(4):
            a(f"ds_write_b128 v{PA_DW}, {vr(TT+4*t,4)} offset:{off+64*t}")

        full_exec(a)
        a(f"{lab}_nw:")
        a("s_waitcnt lgkmcnt(0)")
        a("s_barrier")
        a(f"s_sub_u32 s{S_T0}, s{S_W}, {R_RED0}")
        a(f"s_cmp_ge_u32 s{S_T0}, 2")
        a(f"s_cbranch_scc1 {lab}_skip")
        for w in range(nw):
            a(f"ds_read_b128 {vr(TT+4*w,4)}, v{PA_R2} offset:{off+w*2048}")
        if dp: a(f"v_add_u32 v10, {W_DP-W_AP}, v{PA_P2}")
        a("s_waitcnt lgkmcnt(0)")
        n=nw
        step=1
        idx=list(range(nw))
        while len(idx)>1:
            nxt=[]
            for i in range(0,len(idx)-1,2):
                d,s_=idx[i],idx[i+1]
                a(f"v_pk_add_f32 {vr(TT+4*d,2)}, {vr(TT+4*d,2)}, {vr(TT+4*s_,2)}")
                a(f"v_pk_add_f32 {vr(TT+4*d+2,2)}, {vr(TT+4*d+2,2)}, {vr(TT+4*s_+2,2)}")
                nxt.append(d)
            if len(idx)%2: nxt.append(idx[-1])
            idx=nxt
        for c in range(4):
            a(f"v_min_u32 v{TT+c}, -2, v{TT+c}")
        a(f"global_store_dwordx4 v{10 if dp else PA_P2}, {vr(TT,4)}, {sr(P_WS,2)} {cfg.XST}")
        a(f"{lab}_skip:")
    gemm4_reduce_publish(WO_F, TT+32, False, 8, "L_t2")
    stamp(a,cfg,7)
    def ld3():
        a(f"global_load_dwordx4 {vr(TT+32,4)}, v{PA_T3A}, {sr(P_WS,2)} {cfg.XLD}")
        a(f"global_load_dwordx4 {vr(TT+36,4)}, v{PA_T3B}, {sr(P_WS,2)} {cfg.XLD}")
    if cfg.PD3: a(f"s_sleep {cfg.PD3}")
    poll_masked(a,"t3", ld3, range(TT+32,TT+40), cfg, TMP, 2, cfg.PIPE_X)
    if cfg.TAILDIAG==True and cfg.TAILDIAG!=2: stamp(a,cfg,13)
    a(f"v_pk_add_f32 {vr(TT+40,2)}, {vr(TT+32,2)}, {vr(TT+36,2)}")
    a(f"v_pk_add_f32 {vr(TT+42,2)}, {vr(TT+34,2)}, {vr(TT+38,2)}")
    a(f"ds_write_b128 v{PA_T3W}, {vr(TT+40,4)}")
    a("s_waitcnt lgkmcnt(0)")
    a("s_barrier")
    a(f"s_cmp_lg_u32 s{S_W}, {R_W0}")
    a("s_cbranch_scc1 L_t3_skip")
    for w in range(8):
        a(f"ds_read_b128 {vr(TT+4*w,4)}, v{PA_T3R} offset:{w*1024}")
    a(f"v_lshlrev_b32 v{TT+40}, 16, v{V_XRES}")
    a(f"v_and_b32 v{TT+41}, 0xffff0000, v{V_XRES}")
    a(f"v_lshlrev_b32 v{TT+42}, 16, v{V_XRES+1}")
    a(f"v_and_b32 v{TT+43}, 0xffff0000, v{V_XRES+1}")
    a("s_waitcnt lgkmcnt(0)")
    for (d,s_) in ((0,1),(2,3),(4,5),(6,7),(0,2),(4,6),(0,4)):
        a(f"v_pk_add_f32 {vr(TT+4*d,2)}, {vr(TT+4*d,2)}, {vr(TT+4*s_,2)}")
        a(f"v_pk_add_f32 {vr(TT+4*d+2,2)}, {vr(TT+4*d+2,2)}, {vr(TT+4*s_+2,2)}")
    a(f"v_cvt_pk_bf16_f32 v{TT+4}, v{TT}, v{TT+1}")
    a(f"v_cvt_pk_bf16_f32 v{TT+5}, v{TT+2}, v{TT+3}")
    a(f"v_lshlrev_b32 v{TT+8}, 16, v{TT+4}")
    a(f"v_and_b32 v{TT+9}, 0xffff0000, v{TT+4}")
    a(f"v_lshlrev_b32 v{TT+10}, 16, v{TT+5}")
    a(f"v_and_b32 v{TT+11}, 0xffff0000, v{TT+5}")
    a(f"v_pk_add_f32 {vr(TT+8,2)}, {vr(TT+8,2)}, {vr(TT+40,2)}")
    a(f"v_pk_add_f32 {vr(TT+10,2)}, {vr(TT+10,2)}, {vr(TT+42,2)}")
    a(f"v_cvt_pk_bf16_f32 v{TT+6}, v{TT+8}, v{TT+9}")
    a(f"v_cvt_pk_bf16_f32 v{TT+7}, v{TT+10}, v{TT+11}")
    a(f"v_min_u32 v{TT+6}, -2, v{TT+6}")
    a(f"v_min_u32 v{TT+7}, -2, v{TT+7}")
    store_mode(a, f"global_store_dwordx2 v{PA_H}, {vr(TT+6,2)}, {sr(P_WS,2)}", True)
    a("L_t3_skip:")
    stamp(a,cfg,8)
    def ld4():
        a(f"global_load_dwordx4 {vr(TT,4)}, v{PA_T4}, {sr(P_WS,2)} sc1")
        a(f"global_load_dwordx4 {vr(TT+4,4)}, v{PA_T4}, {sr(P_WS,2)} offset:16 sc1")
    if cfg.PD4: a(f"s_sleep {cfg.PD4}")
    poll_masked(a,"t4", ld4, range(TT,TT+8), cfg, TMP, 2, cfg.PIPE_I)
    if cfg.TAILDIAG: stamp(a,cfg,14)
    a(f"s_cmp_lg_u32 s{S_W}, s{S_X}")
    a("s_cbranch_scc1 L_t4_nohs")
    a(f"s_mov_b64 exec, {sr(SM_HS,2)}")
    a(f"ds_write_b128 v{PA_HSW}, {vr(TT,4)}")
    a(f"ds_write_b128 v{PA_HSW}, {vr(TT+4,4)} offset:16")
    full_exec(a)
    a("L_t4_nohs:")
    a(f"s_cmp_ge_u32 s{S_R}, 28")
    a("s_cbranch_scc1 L_t5_skip_all")
    layernorm2(a, TT, TT+8, TT+24, V_T)
    a(f"s_mov_b64 exec, {sr(SM_LNB,2)}")
    a(f"ds_write_b128 v{PA_LNBW}, {vr(TT+24,4)}")
    a(f"ds_write_b128 v{PA_LNBW}, {vr(TT+28,4)} offset:16")
    full_exec(a)
    a("s_waitcnt lgkmcnt(0)")
    a("s_barrier")
    if not cfg.TAILDIAG: stamp(a,cfg,9)
    if cfg.TAILDIAG: stamp(a,cfg,1)
    a("s_waitcnt vmcnt(0)")
    for s in range(8):
        a(f"ds_read_b128 {vr(TT+4*s,4)}, v{PA_LNBR} offset:{64*s}")
    for s in range(8):
        c="0" if s<2 else vr(V_T+4*(s%2),4)
        a(f"s_waitcnt lgkmcnt({7-s})")
        a(f"v_mfma_f32_16x16x32_bf16 {vr(V_T+4*(s%2),4)}, {vr(GU_F+4*s,4)}, {vr(TT+4*s,4)}, {c}")
    a("s_nop 7")
    a(f"v_pk_add_f32 {vr(V_T,2)}, {vr(V_T,2)}, {vr(V_T+4,2)}")
    a(f"v_pk_add_f32 {vr(V_T+2,2)}, {vr(V_T+2,2)}, {vr(V_T+6,2)}")
    for c in range(4):
        a(f"v_min_u32 v{V_T+c}, -2, v{V_T+c}")
    set_exec(a, "0x00ff00ff", "0x00ff00ff")
    store_mode(a, f"global_store_dwordx4 v{PA_GP}, {vr(V_T,4)}, {sr(P_WS,2)}", True)
    full_exec(a)
    if cfg.TAILDIAG==2: stamp(a,cfg,13)
    a(f"s_cmp_lg_u32 s{S_W}, {R_W0}")
    a("s_cbranch_scc1 L_t5_skip_all")
    a(f"s_mov_b32 s{S_T0}, 0x3d372713")
    a(f"s_mov_b32 s{S_T1}, 0xc0135761")
    def ld5():
        for k in range(4):
            for m in range(2):
                a(f"global_load_dwordx2 {vr(TT+(k*2+m)*2,2)}, v{PA_T5B+k}, {sr(P_WS,2)} offset:{m*2048} sc1")
    if cfg.PD5: a(f"s_sleep {cfg.PD5}")
    poll_masked(a,"t5", ld5, range(TT,TT+16), cfg, TMP, 8, cfg.PIPE_I)
    if cfg.TAILDIAG: stamp(a,cfg,2)
    for h_ in range(2):
        a(f"v_pk_add_f32 {vr(TT+16+2*h_,2)}, {vr(TT+2*h_,2)}, {vr(TT+4+2*h_,2)}")
        a(f"v_pk_add_f32 {vr(TT+20+2*h_,2)}, {vr(TT+8+2*h_,2)}, {vr(TT+12+2*h_,2)}")
        a(f"v_pk_add_f32 {vr(TT+16+2*h_,2)}, {vr(TT+16+2*h_,2)}, {vr(TT+20+2*h_,2)}")
    G=TT+16; U=TT+18; X=TT+20
    TT_=TT; TT=TT+16
    a(f"v_cvt_pk_bf16_f32 v{TT+8}, v{G}, v{G+1}")
    a(f"v_cvt_pk_bf16_f32 v{TT+9}, v{U}, v{U+1}")
    a(f"v_lshlrev_b32 v{G}, 16, v{TT+8}")
    a(f"v_and_b32 v{G+1}, 0xffff0000, v{TT+8}")
    a(f"v_lshlrev_b32 v{U}, 16, v{TT+9}")
    a(f"v_and_b32 v{U+1}, 0xffff0000, v{TT+9}")
    a(f"v_pk_mul_f32 {vr(X,2)}, {vr(G,2)}, {vr(G,2)}")
    a(f"v_pk_mul_f32 {vr(X,2)}, {vr(X,2)}, {vr(G,2)}")
    for c in range(2):
        a(f"v_fma_f32 v{X+c}, v{X+c}, s{S_T0}, v{G+c}")
    for c in range(2):
        a(f"v_mul_f32 v{X+c}, s{S_T1}, v{X+c}")
    for c in range(2):
        a(f"v_exp_f32 v{X+c}, v{X+c}")
    a("s_nop 0")
    for c in range(2):
        a(f"v_add_f32 v{X+c}, 1.0, v{X+c}")
    for c in range(2):
        a(f"v_rcp_f32 v{X+c}, v{X+c}")
    a("s_nop 0")
    a(f"v_pk_mul_f32 {vr(X,2)}, {vr(X,2)}, {vr(G,2)}")
    a(f"v_cvt_pk_bf16_f32 v{TT+8}, v{X}, v{X+1}")
    a(f"v_lshlrev_b32 v{X}, 16, v{TT+8}")
    a(f"v_and_b32 v{X+1}, 0xffff0000, v{TT+8}")
    a(f"v_pk_mul_f32 {vr(X,2)}, {vr(X,2)}, {vr(U,2)}")
    a(f"v_cvt_pk_bf16_f32 v{X}, v{X}, v{X+1}")
    a(f"v_min_u32 v{X}, -2, v{X}")
    store_mode(a, f"global_store_dword v{PA_ACT}, v{X}, {sr(P_WS,2)}", True)
    TT=TT_
    a("L_t5_skip_all:")
    stamp(a,cfg,10)
    a(f"s_cmp_ge_u32 s{S_W}, 7")
    a("s_cbranch_scc1 L_t6_nopoll")
    if cfg.PD6: a(f"s_sleep {cfg.PD6}")
    poll_masked(a,"t6", lambda: a(f"global_load_dwordx4 {vr(TT+32,4)}, v{PA_T6}, {sr(P_WS,2)} sc1"), range(TT+32,TT+36), cfg, TMP, 1, cfg.PIPE_I)
    if cfg.TAILDIAG: stamp(a,cfg,3)
    a("L_t6_nopoll:")
    gemm4_reduce_publish(WD_F, TT+32, True, 7, "L_t6")
    stamp(a,cfg,11)
    a(f"s_cmp_lg_u32 s{S_W}, {R_W0}")
    a("s_cbranch_scc1 L_fin")
    a(f"ds_read_u16 v{TT+10}, v{PA_HSR}")
    def ld7():
        for k in range(8):
            a(f"global_load_dword v{TT+k}, v{PA_T7+k}, {sr(P_WS,2)} {cfg.XLD}")
    if cfg.PD7: a(f"s_sleep {cfg.PD7}")
    poll_masked(a,"t7", ld7, range(TT,TT+8), cfg, TMP, 8, cfg.PIPE_X)
    if cfg.TAILDIAG: stamp(a,cfg,4)
    Z=TT+16
    a(f"v_pk_add_f32 {vr(Z,2)}, {vr(TT,2)}, {vr(TT+2,2)}")
    a(f"v_pk_add_f32 {vr(Z+2,2)}, {vr(TT+4,2)}, {vr(TT+6,2)}")
    a(f"v_pk_add_f32 {vr(Z,2)}, {vr(Z,2)}, {vr(Z+2,2)}")
    a(f"v_add_f32 v{Z}, v{Z}, v{Z+1}")
    a(f"v_mov_b32 v{Z+1}, v{Z}")
    a("s_waitcnt lgkmcnt(0)")
    a("s_nop 0")
    a(f"v_permlane32_swap_b32 v{Z}, v{Z+1}")
    a(f"v_lshlrev_b32 v{TT+10}, 16, v{TT+10}")
    a(f"v_add_f32 v{Z}, v{Z}, v{Z+1}")
    round_bf16(a,Z,Z)
    a(f"v_add_f32 v{Z}, v{Z}, v{TT+10}")
    a(f"v_cvt_pk_bf16_f32 v{Z}, v{Z}, v{Z}")
    set_exec(a, -1, 0)
    a(f"global_store_short v{PA_OUT}, v{Z}, {sr(P_OUT,2)}")
    full_exec(a)
    a(f"s_cmp_lg_u32 s{S_ID}, 0")
    a("s_cbranch_scc1 L_fin")
    a(f"v_mov_b32 v10, {W_EPOCH}")
    a(f"v_mov_b32 v12, s{S_TAG}")
    a(f"v_mov_b32 v13, s{S_TAG+1}")
    set_exec(a, 1, 0)
    a(f"global_store_dwordx2 v10, v[12:13], {sr(P_WS,2)} sc1")
    full_exec(a)
    a("L_fin:")
    TTX=160
    if cfg.STAMPS and cfg.DBGSTAMP:
        stamp(a,cfg,12)
        a("s_waitcnt lgkmcnt(0)")
        a(f"s_cmp_lg_u32 s{S_W}, 0")
        a("s_cbranch_scc1 L_exit")
        lst=[0,1,2,4,6,7,8,10,11,12]
        for i,k in enumerate(lst):
            if k==0:
                a(f"s_not_b32 s{S_T0}, s72")
                a(f"v_mov_b32 v{TTX}, s{S_T0}")
            else:
                a(f"v_mov_b32 v{TTX}, s{72+2*k}")
            a(f"v_mov_b32 v10, {4*i}")
            set_exec(a,1,0)
            a(f"global_atomic_umax v10, v{TTX}, {sr(P_DBG,2)} sc1")
            full_exec(a)
        a(f"v_mov_b32 v{TTX}, s72")
        a(f"v_mov_b32 v10, 40")
        set_exec(a,1,0)
        a(f"global_atomic_umax v10, v{TTX}, {sr(P_DBG,2)} sc1")
        full_exec(a)
        a(f"s_not_b32 s{S_T0}, s{72+12}")
        a(f"v_mov_b32 v{TTX}, s{S_T0}")
        a(f"v_mov_b32 v10, 44")
        set_exec(a,1,0)
        a(f"global_atomic_umax v10, v{TTX}, {sr(P_DBG,2)} sc1")
        full_exec(a)
    elif cfg.STAMPS:
        stamp(a,cfg,12)
        a("s_waitcnt lgkmcnt(0)")
        for k in range(15):
            a(f"v_mov_b32 v{TTX}, s{72+2*k}")
            a(f"v_mov_b32 v{TTX+1}, s{73+2*k}")
            a(f"s_lshl_b32 s{S_T0}, s{S_ID}, 3")
            a(f"s_add_u32 s{S_T0}, s{S_T0}, s{S_W}")
            a(f"s_lshl_b32 s{S_T0}, s{S_T0}, 7")
            a(f"s_add_u32 s{S_T0}, s{S_T0}, {W_STAMP+8*k}")
            a(f"v_mov_b32 v10, s{S_T0}")
            set_exec(a,1,0)
            a(f"global_store_dwordx2 v10, {vr(TTX,2)}, {sr(P_WS,2)}")
            full_exec(a)
    a("L_exit:")
    a("s_endpgm")

HEADER = open("sequential_preLN__mha_block_cached__geglu_ffn__decode.s.ref").read().split("; Override launch geometry")[0]

CFG=None
def build(cfg, path):
    global CFG
    CFG=cfg
    a,_=gen(cfg)
    gen_tail(a,cfg)
    txt = HEADER
    txt += "; Override launch geometry by editing the next line (default: block=256,\n"
    txt += f"; @launch grid=(256,1,1) block=(512,1,1) lds={LDS_BYTES}\n"
    txt += f""".amdgcn_target "amdgcn-amd-amdhsa--gfx950"
; ---------------------------------------------------------------------------------------------------------
;   id -> x = id%8 (group, normally one XCD), r = id/8 ; attention head = x + 8*(r/8), batch = r%8
; ---------------------------------------------------------------------------------------------------------
.text
.globl {KNAME}
.p2align 8
.type {KNAME},@function
"""
    txt += a.text()
    txt += f""".section .rodata,"a"
.p2align 6
.amdhsa_kernel {KNAME}
  .amdhsa_next_free_vgpr 256
  .amdhsa_next_free_sgpr 102
  .amdhsa_accum_offset 256
  .amdhsa_group_segment_fixed_size 0
  .amdhsa_kernarg_size 96
  .amdhsa_user_sgpr_count 2
  .amdhsa_user_sgpr_kernarg_segment_ptr 1
  .amdhsa_system_sgpr_workgroup_id_x 1
  .amdhsa_float_denorm_mode_32 3
.end_amdhsa_kernel
"""
    open(path,"w").write(txt)

if __name__=="__main__":
    cfg=Cfg()
    out=sys.argv[1]
    for kv in sys.argv[2:]:
        k,v=kv.split("=")
        setattr(cfg,k,eval(v))
    build(cfg,out)
```

```python
import sys

KNAME = "sequential_preLN__mha_block_cached__geglu_ffn__decode_kernel"

class Cfg:
    NSW = 2
    L = 10
    HV = 1
    QFAST = True
    KFLAGS = "nt"
    VFLAGS = "nt"
    WFLAGS = "nt"
    FASTMODE = True
    SPIN = 1 << 20
    STAMPS = False
    P0 = 4
    P = 4
    P1 = 8
    DMAPAUSE = False
    RING_EARLY = True
    RAMP = 0
    CODEPF = True
    LATE_L = 11
    EARLY_L = 0
    EARLY_THR = 6
    LATE_X = 0
    SEG0 = 40
    LATE_THR = 20
    LK = 0
    LS = 0
    KS0 = 80
    ROT = 0
    ROTX = 0
    HPERM = True
    NODMA2 = False
    KNOP = 7
    KEXP = 0
    PIPE_I = 0
    PIPE_X = 0
    HIGH_INLINE = True
    LNDRY = False
    CLR7 = True
    CONDCOPY = True
    NOCLR = False
    NOCOPY = False
    ALTMAP = False
    APB = 4096
    APP = 32768
    XLD = "sc1"
    XST = "sc1"
    TOUCH = 0
    QPD = 24
    PRIO = 0
    REFIRST = False
    PIPE2 = 0
    PD2 = 0
    PSX = 0
    PD3 = 9
    PD4 = 4
    PD5 = 5
    PD6 = 4
    PD7 = 9
    TAILDIAG = False
    PSLEEP = 0
    QSLEEP = 0
    QWAIT = 64
    DBGSTAMP = False

L_WO   = 0
L_WG   = 32768
L_WU   = 65536
L_WD   = 98304
L_WQ   = 126976
L_SC   = 126976
L_RED  = 143360
L_LNA  = 159744
L_QS   = 161920
L_ML   = 162176
L_HS   = 162208
L_QF   = 162272
L_LS   = 162288
L_MODE = 162320
L_SEL  = 162352
L_END  = 162368
LNA_P  = 272
LNB_P  = 528
L_LNB  = L_SC
LDS_BYTES = 163840

W_QP  = 0x500000
W_RDY = 0x000000
W_EPOCH = 0x010000
W_KX = 0x018000
W_KD = 0x014000
W_GRDY = 0x012000
W_OB  = 0x100000
W_AP  = 0x2000000
W_HB  = 0x1A0000
W_GP  = 0x1C0000
W_ACT = 0x2A0000
W_DP  = 0x2400000
W_STAMP = 0x400000

D_CLR = 32*4
D_XCC = 40*4

S_ID=2; S_W=3; S_X=4; S_R=5; S_H=6; S_B=7
P_X=16; P_K=18; P_V=20; P_WQ=22; P_WO=24; P_WG=28; P_WU=30; P_WD=32; P_OUT=34; P_DBG=36; P_WS=38
SRD_K=40; SRD_V=44
S_KOFF=48
S_FAST=49
S_SPIN=50
S_T0=52; S_T1=53; S_T2=54; S_T3=55; S_T4=56; S_T5=57
S_B0=58
S_B1=60
S_EX=62
S_M=64
S_M2=66
S_SCALE=68; S_LOG2E=69
S_DN=12; S_DS=13; S_DM=14; S_LOOP=15; S_LNW=27; S_ROT=70; S_HA=65; S_DJ=14; S_DM2=64
S_TAG=98
S_TAG=66
S_ST=70

V_TID=0; V_LANE=1
V_MASK=16
V_KOFF=20; V_VOFF=21; V_SCW=22; V_PPR=23; V_MAX=24
V_DMA=25
V_QADDR=26
V_QA=32
V_SACC=48
V_SACC2=140
V_OACC=52
V_A0=56; V_A1=60
V_PP0=64; V_PP1=68
V_T=72
V_RING=96
V_X=160

class Asm:
    def __init__(self):
        self.L=[]; self.n=0; self.main=self.L; self.O=[]
    def ool(self, on):
        self.L = self.O if on else self.main
    def __call__(self, s):
        for line in s.split("\n"):
            line=line.strip()
            if line: self.L.append(("" if line.endswith(":") else "  ")+line)
    def label(self, base):
        self.n+=1
        return f"L_{base}_{self.n}"
    def text(self): return "\n".join(self.main+self.O+["L_codeend:"])+"\n"

def vr(b,n): return f"v[{b}:{b+n-1}]"
def sr(b,n): return f"s[{b}:{b+n-1}]"

def wave_sum(a, v, tmp, op="add"):
    ins = "v_add_f32" if op=="add" else "v_max_f32"
    for k in (8,4,2,1):
        a(f"s_nop 1")
        a(f"{ins}_dpp {'v%d'%v}, v{v}, v{v} row_ror:{k} row_mask:0xf bank_mask:0xf")
    a("s_nop 1")
    a(f"v_readlane_b32 s{S_T0}, v{v}, 0")
    a(f"v_readlane_b32 s{S_T1}, v{v}, 16")
    a(f"v_readlane_b32 s{S_T2}, v{v}, 32")
    a(f"v_readlane_b32 s{S_T3}, v{v}, 48")
    a("s_nop 1")
    a(f"v_mov_b32 v{v}, s{S_T0}")
    a(f"{ins} v{v}, s{S_T1}, v{v}")
    a(f"{ins} v{v}, s{S_T2}, v{v}")
    a(f"{ins} v{v}, s{S_T3}, v{v}")

def round_bf16(a, dst, src):
    a(f"v_cvt_pk_bf16_f32 v{dst}, v{src}, v{src}")
    a(f"v_and_b32 v{dst}, 0xffff0000, v{dst}")

def layernorm(a, vin, vf, vout, t):
    for i in range(8):
        a(f"v_lshlrev_b32 v{vf+2*i}, 16, v{vin+i}")
        a(f"v_and_b32 v{vf+2*i+1}, 0xffff0000, v{vin+i}")
    a(f"v_add_f32 v{t}, v{vf}, v{vf+1}")
    for i in range(2,16):
        a(f"v_add_f32 v{t}, v{t}, v{vf+i}")
    wave_sum(a, t, t+1)
    a(f"v_mul_f32 v{t}, 0x3a800000, v{t}")
    a(f"v_sub_f32 v{t+1}, v{vf}, v{t}")
    a(f"v_mul_f32 v{t+2}, v{t+1}, v{t+1}")
    for i in range(1,16):
        a(f"v_sub_f32 v{t+1}, v{vf+i}, v{t}")
        a(f"v_fmac_f32 v{t+2}, v{t+1}, v{t+1}")
    wave_sum(a, t+2, t+1)
    a(f"v_mul_f32 v{t+2}, 0x3a800000, v{t+2}")
    round_bf16(a, t, t)
    round_bf16(a, t+2, t+2)
    a(f"v_add_f32 v{t+2}, 0x3727c5ac, v{t+2}")
    round_bf16(a, t+2, t+2)
    a(f"v_sqrt_f32 v{t+2}, v{t+2}")
    a("s_nop 0")
    round_bf16(a, t+2, t+2)
    a(f"v_rcp_f32 v{t+2}, v{t+2}")
    a("s_nop 0")
    for i in range(8):
        a(f"v_sub_f32 v{vf+2*i}, v{vf+2*i}, v{t}")
        a(f"v_sub_f32 v{vf+2*i+1}, v{vf+2*i+1}, v{t}")
        a(f"v_cvt_pk_bf16_f32 v{t+1}, v{vf+2*i}, v{vf+2*i+1}")
        a(f"v_lshlrev_b32 v{vf+2*i}, 16, v{t+1}")
        a(f"v_and_b32 v{vf+2*i+1}, 0xffff0000, v{t+1}")
        a(f"v_mul_f32 v{vf+2*i}, v{vf+2*i}, v{t+2}")
        a(f"v_mul_f32 v{vf+2*i+1}, v{vf+2*i+1}, v{t+2}")
        a(f"v_cvt_pk_bf16_f32 v{vout+i}, v{vf+2*i}, v{vf+2*i+1}")

def set_exec(a, lo, hi):
    a(f"s_mov_b32 exec_lo, {lo}")
    a(f"s_mov_b32 exec_hi, {hi}")
def full_exec(a):
    a("s_mov_b64 exec, -1")

def poll_loop(a, name, loads, regs, cfg):
    lp=a.label(name+"_poll"); dn=a.label(name+"_ok")
    a(f"s_mov_b32 s{S_SPIN}, {cfg.SPIN}")
    a(f"{lp}:")
    loads()
    a("s_waitcnt vmcnt(0)")
    t=V_T+23
    rs=list(regs)
    a(f"v_max_u32 v{t}, v{rs[0]}, v{rs[1] if len(rs)>1 else rs[0]}")
    i=2
    while i<len(rs):
        if i+1<len(rs):
            a(f"v_max3_u32 v{t}, v{t}, v{rs[i]}, v{rs[i+1]}"); i+=2
        else:
            a(f"v_max_u32 v{t}, v{t}, v{rs[i]}"); i+=1
    a(f"v_cmp_eq_u32 vcc, -1, v{t}")
    a(f"s_cbranch_vccz {dn}")
    a(f"s_sub_u32 s{S_SPIN}, s{S_SPIN}, 1")
    a(f"s_cmp_lg_u32 s{S_SPIN}, 0")
    a(f"s_cbranch_scc1 {lp}")
    a(f"{dn}:")

def store_mode(a, instr, intra):
    if not intra:
        a(instr+" sc1"); return
    l1=a.label("st_slow"); l2=a.label("st_done")
    a(f"s_cmp_eq_u32 s{S_FAST}, 0")
    a(f"s_cbranch_scc1 {l1}")
    a(instr)
    a(f"s_branch {l2}")
    a(f"{l1}:")
    a(instr+" sc1")
    a(f"{l2}:")

def stamp(a, cfg, idx):
    if not cfg.STAMPS: return
    a(f"s_memrealtime s[{72+2*idx}:{73+2*idx}]")


def emit_clears(a, sfx=''):
    a(f"v_mov_b32 v12, -1\nv_mov_b32 v13, -1\nv_mov_b32 v14, -1\nv_mov_b32 v15, -1")
    a(f"s_lshr_b32 s{S_T4}, s{S_R}, 4")
    a(f"s_and_b32 s{S_T5}, s{S_R}, 15")
    a(f"s_lshl_b32 s{S_T1}, s{S_X}, 1")
    a(f"s_add_u32 s{S_T1}, s{S_T1}, s{S_T4}")
    a(f"s_mul_i32 s{S_T0}, s{S_T1}, {CFG.APP}")
    a(f"s_lshl_b32 s{S_T1}, s{S_T5}, 8")
    a(f"s_add_u32 s{S_T0}, s{S_T0}, s{S_T1}")
    a(f"v_mul_u32_u24 v10, {CFG.APB}, v3")
    a(f"v_lshlrev_b32 v11, 4, v2")
    a(f"v_add3_u32 v10, v10, v11, s{S_T0}")
    for base in (W_AP, W_DP):
        a(f"v_add_u32 v11, {base}, v10")
        a(f"global_store_dwordx4 v11, v[12:15], {sr(P_WS,2)} sc1")
        a(f"v_add_u32 v11, {base}+{4*CFG.APB}, v10")
        a(f"global_store_dwordx4 v11, v[12:15], {sr(P_WS,2)} sc1")
    a(f"s_lshl_b32 s{S_T0}, s{S_H}, 3")
    a(f"s_add_u32 s{S_T0}, s{S_T0}, s{S_B}")
    a(f"s_lshl_b32 s{S_T0}, s{S_T0}, 8")
    a(f"s_add_u32 s{S_T0}, s{S_T0}, {W_OB}")
    a(f"v_add_u32 v10, s{S_T0}, v{V_VOFF}")
    set_exec(a, "0xffff", 0)
    a(f"global_store_dwordx4 v10, v[12:15], {sr(P_WS,2)} sc1")
    full_exec(a)
    a(f"s_lshr_b32 s{S_T0}, s{S_R}, 2")
    a(f"s_lshl_b32 s{S_T1}, s{S_X}, 3")
    a(f"s_add_u32 s{S_T0}, s{S_T0}, s{S_T1}")
    a(f"s_lshl_b32 s{S_T0}, s{S_T0}, 11")
    a(f"s_and_b32 s{S_T1}, s{S_R}, 3")
    a(f"s_lshl_b32 s{S_T1}, s{S_T1}, 9")
    a(f"s_add_u32 s{S_T0}, s{S_T0}, s{S_T1}")
    a(f"s_add_u32 s{S_T0}, s{S_T0}, {W_HB}")
    a(f"v_add_u32 v10, s{S_T0}, v{V_VOFF}")
    set_exec(a, -1, 0)
    a(f"global_store_dwordx4 v10, v[12:15], {sr(P_WS,2)} sc1")
    full_exec(a)
    a(f"s_cmp_ge_u32 s{S_R}, 28")
    a(f"s_cbranch_scc1 L_clr_done{sfx}")
    a(f"s_mul_i32 s{S_T0}, s{S_X}, 28")
    a(f"s_add_u32 s{S_T0}, s{S_T0}, s{S_R}")
    a(f"s_lshl_b32 s{S_T0}, s{S_T0}, 12")
    a(f"s_add_u32 s{S_T0}, s{S_T0}, {W_GP}")
    a(f"v_add_u32 v10, s{S_T0}, v{V_VOFF}")
    for n in range(4):
        a(f"global_store_dwordx4 v10, v[12:15], {sr(P_WS,2)} offset:{n*1024} sc1")
    a(f"s_mul_i32 s{S_T0}, s{S_R}, 37")
    a(f"s_lshr_b32 s{S_T0}, s{S_T0}, 8")
    a(f"s_mul_i32 s{S_T1}, s{S_T0}, 7")
    a(f"s_sub_u32 s{S_T1}, s{S_R}, s{S_T1}")
    a(f"s_lshl_b32 s{S_T0}, s{S_T0}, 1")
    a(f"s_lshl_b32 s{S_T2}, s{S_X}, 3")
    a(f"s_add_u32 s{S_T0}, s{S_T0}, s{S_T2}")
    a(f"s_mul_i32 s{S_T0}, s{S_T0}, 896")
    a(f"s_lshl_b32 s{S_T1}, s{S_T1}, 7")
    a(f"s_add_u32 s{S_T0}, s{S_T0}, s{S_T1}")
    a(f"s_add_u32 s{S_T0}, s{S_T0}, {W_ACT}")
    a(f"v_lshrrev_b32 v10, 3, v{V_LANE}")
    a(f"v_mul_u32_u24 v10, 896, v10")
    a(f"v_and_b32 v11, 7, v{V_LANE}")
    a(f"v_lshlrev_b32 v11, 4, v11")
    a(f"v_add3_u32 v10, v10, v11, s{S_T0}")
    set_exec(a, "0xffff", 0)
    a(f"global_store_dwordx4 v10, v[12:15], {sr(P_WS,2)} sc1")
    full_exec(a)
    a(f"L_clr_done{sfx}:")


def emit_extras(a):
    a(f"s_lshl_b32 s{S_T0}, s{S_W}, 9")
    a(f"v_and_b32 v10, 31, v{V_LANE}")
    a(f"v_lshlrev_b32 v10, 4, v10")
    a(f"v_add_u32 v10, s{S_T0}, v10")
    a(f"v_add_u32 v9, {W_RDY}, v10")
    a(f"global_load_dwordx4 {vr(V_RDY,4)}, v9, {sr(P_WS,2)} sc1")
    a(f"s_lshr_b32 s{S_T0}, s{S_R}, 2")
    a(f"s_lshl_b32 s{S_T0}, s{S_T0}, 11")
    a(f"s_and_b32 s{S_T1}, s{S_R}, 3")
    a(f"s_lshl_b32 s{S_T1}, s{S_T1}, 9")
    a(f"s_add_u32 s{S_T0}, s{S_T0}, s{S_T1}")
    a(f"v_lshlrev_b32 v11, 3, v{V_LANE}")
    a(f"v_add_u32 v11, s{S_T0}, v11")
    a(f"global_load_dwordx2 {vr(V_XRES,2)}, v11, {sr(P_X,2)}")

def koff_init(a):
    a(f"s_lshr_b32 s{S_KOFF}, s{S_W}, 2")
    a(f"s_lshl_b32 s{S_KOFF}, s{S_KOFF}, 7")
    a(f"s_and_b32 s{S_T5}, s{S_W}, 3")
    a(f"s_add_u32 s{S_KOFF}, s{S_KOFF}, s{S_T5}")
    a(f"s_lshl_b32 s{S_KOFF}, s{S_KOFF}, 12")

def emit_rdy(a):
    a(f"s_getreg_b32 s{S_T0}, hwreg(HW_REG_XCC_ID, 0, 4)")
    a(f"s_lshl_b32 s{S_T1}, s{S_X}, 5")
    a(f"s_add_u32 s{S_T1}, s{S_T1}, s{S_R}")
    a(f"s_lshl_b32 s{S_T1}, s{S_T1}, 4")
    a(f"s_add_u32 s{S_T1}, s{S_T1}, {W_RDY}")
    a(f"v_mov_b32 v10, s{S_T1}")
    a(f"v_mov_b32 v12, s{S_T0}")
    a(f"v_mov_b32 v13, 0")
    a(f"v_mov_b32 v14, s{S_TAG}")
    a(f"v_mov_b32 v15, s{S_TAG+1}")
    set_exec(a, 1, 0)
    a(f"global_store_dwordx4 v10, v[12:15], {sr(P_WS,2)} sc1")
    full_exec(a)

def gen(cfg):
    a=Asm()
    NSW=cfg.NSW; L=cfg.L; HV=cfg.HV
    LK=cfg.LK or L
    NH=8-NSW
    KT=256//NSW
    VT=(256-NH*HV)//NSW
    assert VT*NSW+NH*HV==256, "V tiles must split evenly"
    NK=4*KT; NV=4*VT
    TSTEP=NSW*4096
    def kload(j):
        reg=V_RING+(j%LK)*4
        a(f"buffer_load_dwordx4 {vr(reg,4)}, v{V_KOFF}, {sr(SRD_K,4)}, s{S_KOFF} offen offset:{(j%4)*1024} {cfg.KFLAGS}")
        if j%4==3:
            a(f"s_add_u32 s{S_KOFF}, s{S_KOFF}, {TSTEP}")
            if cfg.ROT or cfg.ROTX: a(f"s_and_b32 s{S_KOFF}, s{S_KOFF}, 0xfffff")
    def vload(jv, first=False):
        reg=V_RING+((NK-LK+jv)%LK)*4
        if first:
            a(f"s_add_u32 s{S_KOFF}, s{S_W}, {NH*HV}")
            a(f"s_lshl_b32 s{S_KOFF}, s{S_KOFF}, 12")
            if cfg.ROT or cfg.ROTX:
                a(f"s_add_u32 s{S_KOFF}, s{S_KOFF}, s{S_ROT}")
                a(f"s_and_b32 s{S_KOFF}, s{S_KOFF}, 0xfffff")
        a(f"buffer_load_dwordx4 {vr(reg,4)}, v{V_VOFF}, {sr(SRD_V,4)}, s{S_KOFF} offen offset:{(jv%4)*1024} {cfg.VFLAGS}")
        if jv%4==3:
            a(f"s_add_u32 s{S_KOFF}, s{S_KOFF}, {TSTEP}")
            if cfg.ROT or cfg.ROTX: a(f"s_and_b32 s{S_KOFF}, s{S_KOFF}, 0xfffff")
    a(f"{KNAME}:")
    a(f"s_cmp_ge_u32 s{S_ID}, 256")
    a("s_cbranch_scc1 L_exit")
    a("s_load_dwordx16 s[16:31], s[0:1], 0")
    a("s_load_dwordx8 s[32:39], s[0:1], 64")
    if cfg.CODEPF:
        a(f"s_getpc_b64 {sr(S_B1,2)}")
        a("L_pf0:")
        a(f"s_add_u32 s{S_B1}, s{S_B1}, {KNAME}-L_pf0")
        a(f"s_addc_u32 s{S_B1+1}, s{S_B1+1}, -1")
        a(f"v_lshlrev_b32 v10, 6, v0")
        a(f"v_cmp_gt_u32 vcc, L_codeend-{KNAME}, v10")
        a(f"s_and_saveexec_b64 {sr(S_EX,2)}, vcc")
        a("s_cbranch_execz L_pf0_done")
        a(f"global_load_dword v15, v10, {sr(S_B1,2)}")
        a("L_pf0_done:")
        a(f"s_mov_b64 exec, {sr(S_EX,2)}")
    stamp(a,cfg,0)
    a(f"v_lshrrev_b32 v2, 6, v0")
    a(f"v_and_b32 v{V_LANE}, 63, v0")
    if cfg.ALTMAP: a(f"s_lshr_b32 s{S_X}, s{S_ID}, 5")
    else: a(f"s_and_b32 s{S_X}, s{S_ID}, 7")
    a(f"v_readfirstlane_b32 s{S_W}, v2")
    if cfg.ALTMAP: a(f"s_and_b32 s{S_R}, s{S_ID}, 31")
    else: a(f"s_lshr_b32 s{S_R}, s{S_ID}, 3")
    a(f"s_lshr_b32 s{S_T0}, s{S_R}, 3")
    a(f"s_lshl_b32 s{S_H}, s{S_X}, 2")
    a(f"s_add_u32 s{S_H}, s{S_H}, s{S_T0}")
    a(f"s_and_b32 s{S_B}, s{S_R}, 7")
    if cfg.ROT or cfg.ROTX:
        a(f"s_mul_i32 s{S_ROT}, s{S_R}, {cfg.ROT}")
        a(f"s_mul_i32 s{S_DM2}, s{S_X}, {cfg.ROTX}")
        a(f"s_add_u32 s{S_ROT}, s{S_ROT}, s{S_DM2}")
        a(f"s_and_b32 s{S_ROT}, s{S_ROT}, 0xff000")
    if cfg.HPERM==2:
        a(f"s_add_u32 s{S_HA}, s{S_X}, s{S_T0}")
        a(f"s_and_b32 s{S_HA}, s{S_HA}, 7")
        a(f"s_lshl_b32 s{S_DM2}, s{S_T0}, 3")
        a(f"s_add_u32 s{S_HA}, s{S_HA}, s{S_DM2}")
    elif cfg.HPERM:
        a(f"s_lshl_b32 s{S_HA}, s{S_T0}, 3")
        a(f"s_add_u32 s{S_HA}, s{S_HA}, s{S_X}")
    else:
        a(f"s_mov_b32 s{S_HA}, s{S_H}")
    a(f"v_and_b32 v2, 15, v{V_LANE}")
    a(f"v_lshrrev_b32 v3, 4, v{V_LANE}")
    a(f"v_lshlrev_b32 v{V_VOFF}, 4, v{V_LANE}")
    a(f"v_lshrrev_b32 v4, 2, v2")
    a(f"v_and_b32 v5, 3, v2")
    a(f"v_lshlrev_b32 v6, 8, v4")
    a(f"v_lshlrev_b32 v7, 6, v3")
    a(f"v_lshlrev_b32 v8, 4, v5")
    a(f"v_add3_u32 v{V_KOFF}, v6, v7, v8")
    a(f"v_mov_b32 v{V_DMA}, 0")
    a("s_waitcnt lgkmcnt(0)")
    a(f"s_load_dwordx2 {sr(S_TAG,2)}, {sr(P_WS,2)}, {W_EPOCH}")
    a(f"s_lshl_b32 s{S_T0}, s{S_B}, 5")
    a(f"s_add_u32 s{S_T0}, s{S_T0}, s{S_HA}")
    a(f"s_lshl_b32 s{S_T0}, s{S_T0}, 20")
    for srd,p in ((SRD_K,P_K),(SRD_V,P_V)):
        a(f"s_add_u32 s{srd}, s{p}, s{S_T0}")
        a(f"s_addc_u32 s{srd+1}, s{p+1}, 0")
        a(f"s_and_b32 s{srd+1}, s{srd+1}, 0xffff")
        a(f"s_mov_b32 s{srd+2}, 0x100000")
        a(f"s_mov_b32 s{srd+3}, 0x20000")
    a(f"s_lshl_b32 s{S_T0}, s{S_W}, 11")
    a(f"v_lshlrev_b32 v9, 5, v{V_LANE}")
    a(f"v_add_u32 v9, s{S_T0}, v9")
    a(f"global_load_dwordx4 {vr(V_X,4)}, v9, {sr(P_X,2)}")
    a(f"global_load_dwordx4 {vr(V_X+4,4)}, v9, {sr(P_X,2)} offset:16")
    if cfg.HIGH_INLINE:
        a(f"s_cmp_lt_u32 s{S_W}, 4")
        a("s_cbranch_scc1 L_lowwaves")
    else:
        a(f"s_cmp_ge_u32 s{S_W}, 4")
        a("s_cbranch_scc1 L_high")
        a.ool(True)
    a("L_high:")
    a(f"v_lshrrev_b32 v10, 3, v{V_LANE}")
    a(f"v_and_b32 v11, 7, v{V_LANE}")
    a(f"v_lshlrev_b32 v11, 4, v11")
    a(f"s_lshr_b32 s{S_T4}, s{S_R}, 4")
    a(f"s_and_b32 s{S_T5}, s{S_R}, 15")
    a(f"s_cmp_eq_u32 s{S_W}, 4")
    a("s_cbranch_scc1 L_dma_wo")
    a(f"s_cmp_eq_u32 s{S_W}, 7")
    a("s_cbranch_scc1 L_dma_wd")
    a(f"s_cmp_ge_u32 s{S_R}, 28")
    a("s_cbranch_scc1 L_dma_done")
    a(f"s_mul_i32 s{S_T0}, s{S_R}, 37")
    a(f"s_lshr_b32 s{S_T0}, s{S_T0}, 8")
    a(f"s_mul_i32 s{S_T1}, s{S_T0}, 7")
    a(f"s_sub_u32 s{S_T1}, s{S_R}, s{S_T1}")
    a(f"s_mul_i32 s{S_T0}, s{S_T0}, {256*7168}")
    a(f"s_mul_i32 s{S_T2}, s{S_X}, 896")
    a(f"s_lshl_b32 s{S_T1}, s{S_T1}, 7")
    a(f"s_add_u32 s{S_T0}, s{S_T0}, s{S_T2}")
    a(f"s_add_u32 s{S_T0}, s{S_T0}, s{S_T1}")
    a(f"s_cmp_eq_u32 s{S_W}, 5")
    a(f"s_cselect_b32 s{S_B0}, s{P_WG}, s{P_WU}")
    a(f"s_cselect_b32 s{S_B0+1}, s{P_WG+1}, s{P_WU+1}")
    a(f"s_mov_b32 s{S_T3}, {L_WU}")
    a(f"s_cselect_b32 s{S_T3}, {L_WG}, s{S_T3}")
    a(f"s_add_u32 s{S_B0}, s{S_B0}, s{S_T0}")
    a(f"s_addc_u32 s{S_B0+1}, s{S_B0+1}, 0")
    a(f"s_mov_b32 s{S_T0}, 7168")
    a(f"s_mov_b32 s{S_T1}, 32")
    a("s_branch L_dma_go")
    a("L_dma_wo:")
    if cfg.HPERM==2:
        a(f"s_lshl_b32 s{S_T0}, s{S_T4}, 1")
        a(f"s_add_u32 s{S_T0}, s{S_T0}, s{S_X}")
        a(f"s_add_u32 s{S_T2}, s{S_T0}, 1")
        a(f"s_and_b32 s{S_T0}, s{S_T0}, 7")
        a(f"s_and_b32 s{S_T2}, s{S_T2}, 7")
        a(f"s_add_u32 s{S_T2}, s{S_T2}, 7")
        a(f"s_sub_u32 s{S_T2}, s{S_T2}, s{S_T0}")
        a(f"s_lshl_b32 s{S_DJ}, s{S_T2}, 18")
        a(f"s_lshl_b32 s{S_T2}, s{S_T4}, 4")
        a(f"s_add_u32 s{S_T0}, s{S_T0}, s{S_T2}")
        a(f"s_lshl_b32 s{S_T0}, s{S_T0}, 18")
    elif cfg.HPERM:
        a(f"s_lshl_b32 s{S_T0}, s{S_T4}, 4")
        a(f"s_add_u32 s{S_T0}, s{S_T0}, s{S_X}")
        a(f"s_lshl_b32 s{S_T0}, s{S_T0}, 18")
    else:
        a(f"s_lshl_b32 s{S_T0}, s{S_X}, 1")
        a(f"s_add_u32 s{S_T0}, s{S_T0}, s{S_T4}")
        a(f"s_lshl_b32 s{S_T0}, s{S_T0}, 19")
    a(f"s_lshl_b32 s{S_T1}, s{S_T5}, 7")
    a(f"s_add_u32 s{S_T0}, s{S_T0}, s{S_T1}")
    a(f"s_add_u32 s{S_B0}, s{P_WO}, s{S_T0}")
    a(f"s_addc_u32 s{S_B0+1}, s{P_WO+1}, 0")
    a(f"s_mov_b32 s{S_T3}, {L_WO}")
    a(f"s_mov_b32 s{S_T0}, 2048")
    a(f"s_mov_b32 s{S_T1}, 32")
    a("s_branch L_dma_go")
    a("L_dma_wd:")
    a(f"s_lshl_b32 s{S_T0}, s{S_X}, 1")
    a(f"s_add_u32 s{S_T0}, s{S_T0}, s{S_T4}")
    a(f"s_mul_i32 s{S_T0}, s{S_T0}, {224*2048}")
    a(f"s_lshl_b32 s{S_T1}, s{S_T5}, 7")
    a(f"s_add_u32 s{S_T0}, s{S_T0}, s{S_T1}")
    a(f"s_add_u32 s{S_B0}, s{P_WD}, s{S_T0}")
    a(f"s_addc_u32 s{S_B0+1}, s{P_WD+1}, 0")
    a(f"s_mov_b32 s{S_T3}, {L_WD}")
    a(f"s_mov_b32 s{S_T0}, 2048")
    a(f"s_mov_b32 s{S_T1}, 28")
    a("L_dma_go:")
    a(f"v_mul_lo_u32 v10, v10, s{S_T0}")
    a(f"s_lshl_b32 s{S_T0}, s{S_T0}, 3")
    a(f"v_add_u32 v10, v10, v11")
    a(f"s_mov_b32 m0, s{S_T3}")
    a("s_nop 0")
    for n in range(cfg.P0):
        a(f"global_load_lds_dwordx4 v10, {sr(S_B0,2)} {cfg.WFLAGS}")
        a(f"s_add_u32 m0, m0, 1024")
        a(f"s_add_u32 s{S_B0}, s{S_B0}, s{S_T0}")
        a(f"s_addc_u32 s{S_B0+1}, s{S_B0+1}, 0")
    a(f"s_sub_u32 s{S_DN}, s{S_T1}, {cfg.P0}")
    a(f"s_mov_b32 s{S_DS}, s{S_T0}")
    if cfg.HPERM==2:
        a(f"s_cmp_eq_u32 s{S_W}, 4")
        a(f"s_cselect_b32 s{S_DJ}, s{S_DJ}, 0")
    else:
        a(f"s_mov_b32 s{S_DJ}, 0")
        if cfg.HPERM:
            a(f"s_cmp_eq_u32 s{S_W}, 4")
            a(f"s_cselect_b32 s{S_DJ}, {896*2048}, 0")
    a(f"v_mov_b32 v{V_DMA}, v10")
    a(f"s_mov_b32 s{S_LNW}, 1") if cfg.LNDRY else a(f"s_waitcnt vmcnt({cfg.P0})")
    a("s_branch L_ln1")
    a("L_dma_done:")
    a(f"s_mov_b32 s{S_DN}, 0")
    a(f"s_mov_b32 s{S_B0}, s{P_WS}")
    a(f"s_mov_b32 s{S_B0+1}, s{P_WS+1}")
    a(f"v_mov_b32 v{V_DMA}, 0")
    a(f"s_mov_b32 s{S_LNW}, 0") if cfg.LNDRY else a("s_waitcnt vmcnt(0)")
    a("s_branch L_ln1")

    a.ool(False)
    a("L_lowwaves:")
    a(f"v_lshlrev_b32 v12, 13, v3")
    a(f"v_lshlrev_b32 v11, 1, v3")
    a(f"v_xor_b32 v10, v2, v11")
    a(f"v_xor_b32 v11, 8, v10")
    a(f"v_lshl_add_u32 v10, v10, 4, v12")
    a(f"v_lshl_add_u32 v11, v11, 4, v12")
    a(f"s_lshl_b32 s{S_T0}, s{S_B}, 7")
    a(f"s_lshl_b32 s{S_T1}, s{S_W}, 5")
    a(f"s_add_u32 s{S_T0}, s{S_T0}, s{S_T1}")
    a(f"s_lshl_b32 s{S_T0}, s{S_T0}, 13")
    a(f"s_lshl_b32 s{S_T1}, s{S_HA}, 8")
    a(f"s_add_u32 s{S_T0}, s{S_T0}, s{S_T1}")
    a(f"s_add_u32 s{S_B0}, s{P_WQ}, s{S_T0}")
    a(f"s_addc_u32 s{S_B0+1}, s{P_WQ+1}, 0")
    a(f"s_lshl_b32 s{S_T1}, s{S_W}, 13")
    a(f"s_add_u32 m0, s{S_T1}, {L_WQ}")
    a("s_nop 0")
    for n in range(8):
        a(f"global_load_lds_dwordx4 v{10+((n>>1)&1)}, {sr(S_B0,2)} {cfg.WFLAGS}")
        if n<7:
            a(f"s_add_u32 m0, m0, 1024")
            a(f"s_add_u32 s{S_B0}, s{S_B0}, {4*8192}")
            a(f"s_addc_u32 s{S_B0+1}, s{S_B0+1}, 0")
    if cfg.RING_EARLY:
        a(f"s_cmp_ge_u32 s{S_W}, {NSW}")
        a("s_cbranch_scc1 L_low_nostr")
        a(f"s_lshl_b32 s{S_KOFF}, s{S_W}, 12")
        if cfg.ROT or cfg.ROTX:
            a(f"s_add_u32 s{S_KOFF}, s{S_KOFF}, s{S_ROT}")
            a(f"s_and_b32 s{S_KOFF}, s{S_KOFF}, 0xfffff")
        for j in range(cfg.LS or LK): kload(j)
        a(f"s_mov_b32 s{S_LNW}, 2") if cfg.LNDRY else a(f"s_waitcnt vmcnt({8+(cfg.LS or LK)})")
        a("s_branch L_ln1_low")
        a("L_low_nostr:")
    a(f"s_mov_b32 s{S_LNW}, 3") if cfg.LNDRY else a(f"s_waitcnt vmcnt(8)")
    a("L_ln1_low:")
    a("L_ln1:")
    if cfg.LNDRY:
        a(f"s_or_b32 s{S_LNW}, s{S_LNW}, 0x10")
        a("L_ln1_again:")
    layernorm2(a, V_X, V_X+8, V_X+24, V_T)
    if cfg.LNDRY:
        a(f"s_bitcmp0_b32 s{S_LNW}, 4")
        a("s_cbranch_scc1 L_ln1_done")
        a(f"s_and_b32 s{S_LNW}, s{S_LNW}, 0xf")
        for k,n in ((0,0),(1,cfg.P0),(2,8+LK),(3,8)):
            a(f"s_cmp_lg_u32 s{S_LNW}, {k}")
            a(f"s_cbranch_scc1 L_lnw{k}")
            a(f"s_waitcnt vmcnt({n})")
            a(f"L_lnw{k}:")
        a("s_branch L_ln1_again")
        a("L_ln1_done:")
    a(f"s_lshl_b32 s{S_T0}, s{S_B}, 3")
    a(f"v_subrev_u32 v10, s{S_T0}, v{V_LANE}")
    a(f"v_cmp_gt_u32 vcc, 8, v10")
    a(f"s_mul_i32 s{S_T1}, s{S_W}, {LNA_P}")
    a(f"s_add_u32 s{S_T1}, s{S_T1}, {L_LNA}")
    a(f"v_lshlrev_b32 v10, 5, v10")
    a(f"v_add_u32 v10, s{S_T1}, v10")
    a(f"s_and_saveexec_b64 {sr(S_EX,2)}, vcc")
    a(f"ds_write_b128 v10, {vr(V_X+24,4)}")
    a(f"ds_write_b128 v10, {vr(V_X+28,4)} offset:16")
    a(f"s_mov_b64 exec, {sr(S_EX,2)}")
    a(f"s_cmp_ge_u32 s{S_W}, 4")
    a("s_cbranch_scc1 L_b1")
    if cfg.RING_EARLY:
        a(f"s_cmp_ge_u32 s{S_W}, {NSW}")
        a("s_cbranch_scc1 L_b1_ns")
        a(f"s_waitcnt vmcnt({cfg.LS or LK})")
        a("s_branch L_b1")
        a("L_b1_ns:")
    a("s_waitcnt vmcnt(0)")
    a("L_b1:")
    a("s_waitcnt lgkmcnt(0)")
    a(f"s_cmp_lg_u32 s{S_W}, 0")
    a("s_cbranch_scc1 L_noqf")
    a(f"v_mov_b32 v10, {L_QF}")
    a(f"v_mov_b32 v11, 0")
    a(f"ds_write_b32 v10, v11")
    a(f"ds_write_b32 v10, v11 offset:{L_MODE-L_QF}")
    a("s_waitcnt lgkmcnt(0)")
    a("L_noqf:")
    a("s_barrier")
    stamp(a,cfg,1)
    a(f"s_add_u32 s{S_TAG}, s{S_TAG}, 1")
    a(f"s_addc_u32 s{S_TAG+1}, s{S_TAG+1}, 0")
    a(f"v_and_b32 v10, 1, v2")
    a(f"v_cmp_eq_u32 vcc, 1, v10")
    a(f"v_mov_b32 v11, 0xffff")
    a(f"v_mov_b32 v12, 0xffff0000")
    a(f"v_cndmask_b32 v11, v11, v12, vcc")
    a(f"v_lshrrev_b32 v10, 1, v2")
    for w in range(4):
        a(f"v_cmp_eq_u32 vcc, {w}, v10")
        a("s_nop 1")
        a(f"v_cndmask_b32 v{V_MASK+w}, 0, v11, vcc")
    a(f"v_mov_b32 v{V_MAX}, 0xff800000")
    a(f"s_mov_b32 s{S_SCALE}, 0x3db504f3")
    a(f"s_mov_b32 s{S_LOG2E}, 0x3fb8aa3b")
    for c in range(4):
        a(f"v_mov_b32 v{V_OACC+c}, 0")
    a(f"s_cmp_ge_u32 s{S_W}, 4")
    a("s_cbranch_scc1 L_high2")
    a.ool(True)
    a("L_high2:")
    if cfg.CLR7:
        a(f"s_cmp_lg_u32 s{S_W}, 7")
        a("s_cbranch_scc1 L_h2_noclr")
        if not cfg.NOCLR: emit_clears(a,"7")
        a("L_h2_noclr:")
    if cfg.NODMA2: a(f"s_mov_b32 s{S_DN}, 0")
    a(f"s_cmp_eq_u32 s{S_DN}, 0")
    a("s_cbranch_scc1 L_dma2_done")
    if cfg.DMAPAUSE:
        a(f"v_mov_b32 v10, {L_QF}")
        a(f"s_mov_b32 s{S_SPIN}, {cfg.SPIN}")
        a("L_dp_wait:")
        a(f"ds_read_b32 v11, v10")
        a("s_waitcnt lgkmcnt(0)")
        a(f"v_readfirstlane_b32 s{S_T0}, v11")
        a("s_nop 1")
        a(f"s_cmp_lg_u32 s{S_T0}, 0")
        a("s_cbranch_scc1 L_dma2_loop")
        a("s_sleep 2")
        a(f"s_sub_u32 s{S_SPIN}, s{S_SPIN}, 1")
        a(f"s_cmp_lg_u32 s{S_SPIN}, 0")
        a("s_cbranch_scc1 L_dp_wait")
    a("L_dma2_loop:")
    a(f"s_waitcnt vmcnt({cfg.P-1})")
    a(f"global_load_lds_dwordx4 v{V_DMA}, {sr(S_B0,2)} {cfg.WFLAGS}")
    a(f"s_add_u32 m0, m0, 1024")
    a(f"s_add_u32 s{S_B0}, s{S_B0}, s{S_DS}")
    a(f"s_addc_u32 s{S_B0+1}, s{S_B0+1}, 0")
    a(f"s_sub_u32 s{S_DN}, s{S_DN}, 1")
    if cfg.HPERM:
        a(f"s_cmp_eq_u32 s{S_DN}, 16")
        a(f"s_cselect_b32 s{S_DM2}, s{S_DJ}, 0")
        a(f"s_add_u32 s{S_B0}, s{S_B0}, s{S_DM2}")
        a(f"s_addc_u32 s{S_B0+1}, s{S_B0+1}, 0")
    a(f"s_cmp_lg_u32 s{S_DN}, 0")
    a("s_cbranch_scc1 L_dma2_loop")
    a("L_dma2_done:")
    a("s_waitcnt vmcnt(0)")
    stamp(a,cfg,13)
    if cfg.CLR7:
        a(f"s_cmp_lg_u32 s{S_W}, 7")
        a("s_cbranch_scc1 L_h2_nordy")
        emit_rdy(a)
        a("L_h2_nordy:")
    emit_precompute(a,cfg)
    emit_rdycheck(a,cfg)
    a("s_branch L_kdone")
    a.ool(False)
    a("L_q_low:")
    if not cfg.RING_EARLY:
        a(f"s_cmp_ge_u32 s{S_W}, {NSW}")
        a("s_cbranch_scc1 L_ring_late_skip")
        a(f"s_lshl_b32 s{S_KOFF}, s{S_W}, 12")
        if cfg.ROT or cfg.ROTX:
            a(f"s_add_u32 s{S_KOFF}, s{S_KOFF}, s{S_ROT}")
            a(f"s_and_b32 s{S_KOFF}, s{S_KOFF}, 0xfffff")
        for j in range(cfg.LS or LK): kload(j)
        a("L_ring_late_skip:")
    a(f"s_cmp_lt_u32 s{S_W}, 2")
    a("s_cbranch_scc1 L_q_01")
    a.ool(True)
    a("L_q_01:")
    emit_precompute(a,cfg)
    a(f"s_cmp_eq_u32 s{S_W}, 0")
    a("s_cbranch_scc1 L_q_w0")
    a("s_branch L_q_w1")
    a.ool(False)
    a("L_q_prod:")
    a(f"v_and_b32 v10, 7, v{V_LANE}")
    a(f"v_mul_u32_u24 v10, {LNA_P}, v10")
    a(f"v_lshlrev_b32 v11, 4, v3")
    a(f"v_add_u32 v10, v10, v11")
    a(f"v_add_u32 v10, {L_LNA}, v10")
    for s_ in range(4):
        a(f"ds_read_b128 {vr(V_X+4*s_,4)}, v10 offset:{64*s_}")
    a(f"v_lshlrev_b32 v11, 3, v3")
    a(f"v_add_u32 v11, v11, v4")
    a(f"v_lshlrev_b32 v11, 8, v11")
    a(f"v_lshlrev_b32 v12, 3, v5")
    a(f"v_add3_u32 v11, v11, v12, {0}") if False else None
    a(f"v_add_u32 v11, v11, v12")
    a(f"v_add_u32 v11, {L_WQ}, v11")
    a(f"v_and_b32 v12, 1, v3")
    a(f"v_lshlrev_b32 v12, 2, v12")
    a(f"v_or_b32 v12, v12, v4")
    a(f"s_sub_u32 s{S_T4}, s{S_W}, 2")
    a(f"s_lshl_b32 s{S_T0}, s{S_T4}, 2")
    a(f"v_xor_b32 v12, s{S_T0}, v12")
    for tt in range(4):
        a(f"v_xor_b32 v13, {tt}, v12")
        a(f"v_lshl_add_u32 v{V_T+16+tt}, v13, 5, v11")
    for tt in range(4):
        for s_ in range(4):
            for hf in range(2):
                reg=V_RING+tt*16+s_*4+hf*2
                a(f"ds_read_b64_tr_b16 {vr(reg,2)}, v{V_T+16+tt} offset:{(32*s_+4*hf)*256}")
    a(f"s_lshl_b32 s{S_T0}, s{S_H}, 3")
    a(f"s_add_u32 s{S_T0}, s{S_T0}, s{S_B}")
    a(f"s_lshl_b32 s{S_T0}, s{S_T0}, 13")
    a(f"s_lshl_b32 s{S_T1}, s{S_T4}, 9")
    a(f"s_add_u32 s{S_T0}, s{S_T0}, s{S_T1}")
    a(f"s_add_u32 s{S_T0}, s{S_T0}, {W_QP}")
    a(f"v_and_b32 v10, 7, v2")
    a(f"v_lshlrev_b32 v10, 10, v10")
    a(f"v_lshlrev_b32 v11, 5, v3")
    a(f"v_lshrrev_b32 v12, 3, v2")
    a(f"v_lshl_add_u32 v11, v12, 4, v11")
    a(f"v_add3_u32 v{V_QADDR}, v10, v11, s{S_T0}")
    a(f"v_cmp_eq_u32 {sr(S_B1,2)}, 1, v12")
    G=V_X+16
    for tt in range(4):
        a(f"v_mov_b32 v{G+4*tt+2}, s{S_TAG}")
        a(f"v_mov_b32 v{G+4*tt+3}, s{S_TAG+1}")
    a("s_waitcnt lgkmcnt(0)")
    for s_ in range(4):
        for tt in range(4):
            c = "0" if s_==0 else vr(V_T+4*tt,4)
            a(f"v_mfma_f32_16x16x32_bf16 {vr(V_T+4*tt,4)}, {vr(V_RING+tt*16+s_*4,4)}, {vr(V_X+4*s_,4)}, {c}")
    a("s_nop 7")
    for tt in range(4):
        a(f"v_cndmask_b32 v{G+4*tt}, v{V_T+4*tt}, v{V_T+4*tt+2}, {sr(S_B1,2)}")
        a(f"v_cndmask_b32 v{G+4*tt+1}, v{V_T+4*tt+1}, v{V_T+4*tt+3}, {sr(S_B1,2)}")
    def qstores(fl):
        for tt in range(4):
            a(f"global_store_dwordx4 v{V_QADDR}, {vr(G+4*tt,4)}, {sr(P_WS,2)} offset:{128*tt} {fl}")
    qstores("" if cfg.QFAST else "sc1")
    stamp(a,cfg,13)
    a("s_branch L_prod2")
    a.ool(True)
    a("L_prod2:")
    if cfg.QFAST and cfg.CONDCOPY:
        a(f"v_mov_b32 v10, {L_MODE}")
        a(f"s_mov_b32 s{S_SPIN}, {cfg.SPIN}")
        a("L_qc_wait:")
        a("s_sleep 16")
        a(f"ds_read_b32 v11, v10")
        a("s_waitcnt lgkmcnt(0)")
        a(f"v_readfirstlane_b32 s{S_T0}, v11")
        a("s_nop 1")
        a(f"s_cmp_lg_u32 s{S_T0}, 0")
        a("s_cbranch_scc1 L_qc_go")
        a(f"s_sub_u32 s{S_SPIN}, s{S_SPIN}, 1")
        a(f"s_cmp_lg_u32 s{S_SPIN}, 0")
        a("s_cbranch_scc1 L_qc_wait")
        a("L_qc_go:")
        a(f"s_cmp_eq_u32 s{S_T0}, 2")
        a("s_cbranch_scc1 L_qc_skip")
        qstores("sc1")
        a("L_qc_skip:")
    elif cfg.QFAST:
        a(f"v_mov_b32 v10, {L_QF}")
        a(f"s_mov_b32 s{S_SPIN}, {cfg.QWAIT}")
        a("L_qc_wait:")
        a("s_sleep 4")
        a(f"ds_read_b32 v11, v10")
        a("s_waitcnt lgkmcnt(0)")
        a(f"v_readfirstlane_b32 s{S_T0}, v11")
        a("s_nop 1")
        a(f"s_cmp_lg_u32 s{S_T0}, 0")
        a("s_cbranch_scc1 L_qc_go")
        a(f"s_sub_u32 s{S_SPIN}, s{S_SPIN}, 1")
        a(f"s_cmp_lg_u32 s{S_SPIN}, 0")
        a("s_cbranch_scc1 L_qc_wait")
        a("L_qc_go:")
        if not cfg.NOCOPY: qstores("sc1")
    if not cfg.CLR7:
        a(f"s_cmp_lg_u32 s{S_W}, 3")
        a("s_cbranch_scc1 L_q_prod2")
        if not cfg.NOCLR: emit_clears(a)
        a("s_waitcnt vmcnt(0)")
        emit_rdy(a)
    a("L_q_prod2:")
    emit_precompute(a,cfg)
    if cfg.CODEPF:
        a(f"s_cmp_lg_u32 s{S_W}, 2")
        a("s_cbranch_scc1 L_pf1_skip")
        emit_codepf(a,cfg,"L_pf1","L_q_ready","L_exit")
        a("L_pf1_skip:")
    a(f"global_load_dwordx2 {vr(V_XRES,2)}, v9, {sr(P_X,2)}")
    if cfg.TOUCH & 1: a(f"global_load_ushort v15, v{PA_OUT}, {sr(P_OUT,2)}")
    if cfg.TOUCH & 2:
        set_exec(a,1,0)
        a(f"buffer_load_dword v13, v{V_VOFF}, {sr(SRD_V,4)}, 0 offen nt")
        full_exec(a)
    a("s_waitcnt vmcnt(0)")
    a("s_branch L_kdone")
    a.ool(False)
    a("L_q_w1:")
    if NSW<2:
        a("s_branch L_kdone")
    a(f"v_mov_b32 v10, {L_QF}")
    a(f"s_mov_b32 s{S_SPIN}, {cfg.SPIN}")
    a("L_qf_wait:")
    a(f"ds_read_b32 v11, v10")
    a("s_waitcnt lgkmcnt(0)")
    a(f"v_readfirstlane_b32 s{S_T0}, v11")
    a("s_nop 1")
    a(f"s_cmp_lg_u32 s{S_T0}, 0")
    a("s_cbranch_scc1 L_q_ready")
    a(f"s_sub_u32 s{S_SPIN}, s{S_SPIN}, 1")
    a(f"s_cmp_lg_u32 s{S_SPIN}, 0")
    a("s_cbranch_scc1 L_qf_wait")
    a("s_branch L_q_ready")
    a("L_q_w0:")
    a(f"s_lshl_b32 s{S_T0}, s{S_H}, 16")
    a(f"s_lshl_b32 s{S_T1}, s{S_B}, 10")
    a(f"s_add_u32 s{S_T0}, s{S_T0}, s{S_T1}")
    a(f"s_add_u32 s{S_T0}, s{S_T0}, {W_QP}")
    a(f"v_add_u32 v10, s{S_T0}, v{V_VOFF}")
    for j in range(8):
        a(f"v_add_u32 v{V_T+8+j}, {j*8192}, v10")
    PQ=V_X+16
    lp=a.label("qpoll"); dn=a.label("qok")
    if cfg.QPD: a(f"s_sleep {cfg.QPD}")
    a(f"s_mov_b32 s{S_SPIN}, {cfg.SPIN}")
    a(f"{lp}:")
    for j in range(8):
        a(f"global_load_dwordx4 {vr(PQ+4*j,4)}, v{V_T+8+j}, {sr(P_WS,2)} sc1")
    a("s_waitcnt vmcnt(0)")
    a(f"v_mov_b32 v11, 0")
    for j in range(8):
        a(f"v_xor_b32 v12, s{S_TAG}, v{PQ+4*j+2}")
        a(f"v_xor_b32 v13, s{S_TAG+1}, v{PQ+4*j+3}")
        a(f"v_or3_b32 v11, v11, v12, v13")
    a(f"v_cmp_ne_u32 vcc, 0, v11")
    a(f"s_cbranch_vccz {dn}")
    if cfg.QSLEEP: a(f"s_sleep {cfg.QSLEEP}")
    a(f"s_sub_u32 s{S_SPIN}, s{S_SPIN}, 1")
    a(f"s_cmp_lg_u32 s{S_SPIN}, 0")
    a(f"s_cbranch_scc1 {lp}")
    a(f"{dn}:")
    stamp(a,cfg,14)
    for j in range(1,8):
        a(f"v_add_f32 v{PQ}, v{PQ}, v{PQ+4*j}")
        a(f"v_add_f32 v{PQ+1}, v{PQ+1}, v{PQ+4*j+1}")
    a(f"v_cvt_pk_bf16_f32 v{PQ+2}, v{PQ}, v{PQ+1}")
    a(f"v_lshlrev_b32 v11, 2, v{V_LANE}")
    a(f"v_add_u32 v11, {L_QS}, v11")
    a(f"ds_write_b32 v11, v{PQ+2}")
    a("s_waitcnt lgkmcnt(0)")
    a(f"v_mov_b32 v10, {L_QF}")
    a(f"v_mov_b32 v11, 1")
    a(f"ds_write_b32 v10, v11")
    a("L_q_ready:")
    if cfg.PRIO: a(f"s_setprio {cfg.PRIO}")
    stamp(a,cfg,2)
    a(f"v_lshlrev_b32 v10, 2, v3")
    a(f"v_add_u32 v10, v10, v5")
    a(f"v_lshlrev_b32 v10, 4, v10")
    a(f"v_add_u32 v10, {L_QS}, v10")
    a(f"ds_read_b128 {vr(V_T,4)}, v10")
    a(f"s_lshl_b32 s{S_T0}, s{S_W}, 6")
    a(f"s_add_u32 s{S_T0}, s{S_T0}, {L_SC}")
    a(f"v_lshlrev_b32 v10, 4, v4")
    a(f"v_lshlrev_b32 v11, 2, v3")
    a(f"v_add3_u32 v{V_SCW}, v10, v11, s{S_T0}")
    a("s_waitcnt lgkmcnt(0)")
    for n in range(4):
        a(f"v_cmp_eq_u32 vcc, {n}, v4")
        a("s_nop 1")
        for c in range(4):
            a(f"v_cndmask_b32 v{V_QA+4*n+c}, 0, v{V_T+c}, vcc")
    import math
    PERK=LK*4//math.gcd(LK,4)
    def kpost(acc, sc_off):
        t=V_T
        a(f"v_mov_b32_dpp v{t}, v{acc} quad_perm:[0,0,0,0] row_mask:0xf bank_mask:0xf")
        for q in range(1,4):
            a(f"v_add_f32_dpp v{t}, v{acc+q}, v{t} quad_perm:[{q},{q},{q},{q}] row_mask:0xf bank_mask:0xf")
        round_bf16(a,t,t)
        a(f"v_mul_f32 v{t}, s{S_SCALE}, v{t}")
        round_bf16(a,t,t)
        a(f"v_max_f32 v{V_MAX}, v{V_MAX}, v{t}")
        a(f"ds_write_b32 v{V_SCW}, v{t} offset:{sc_off}")
    def kbody(j, wait_n, reissue, sc_off, prev_off=None, last=False):
        a(f"s_waitcnt vmcnt({wait_n})")
        n=j%4
        if cfg.KEXP==2:
            acc=V_SACC if (j//4)%2==0 else V_SACC2
        else:
            acc=V_SACC
        c="0" if n==0 else vr(acc,4)
        if cfg.REFIRST:
            reissue()
            a(f"v_mfma_f32_16x16x32_bf16 {vr(acc,4)}, {vr(V_QA+4*n,4)}, {vr(V_RING+(j%LK)*4,4)}, {c}")
            if n==3: a("s_nop 4")
        else:
            a("s_nop 0")
            a(f"v_mfma_f32_16x16x32_bf16 {vr(acc,4)}, {vr(V_QA+4*n,4)}, {vr(V_RING+(j%LK)*4,4)}, {c}")
            reissue()
        if cfg.KEXP==2:
            if n==1 and prev_off is not None:
                kpost(V_SACC2 if (j//4)%2==0 else V_SACC, prev_off)
            if n==3 and last:
                a("s_nop 7")
                kpost(acc, sc_off)
        elif n==3:
            if cfg.KEXP==1: return
            a("s_nop 7")
            kpost(acc, sc_off)
    if cfg.KEXP==2 and (PERK//4)%2: PERK*=2
    nloop=(NK-LK)//PERK
    TS=NSW*64
    if cfg.KEXP==2:
        for j in range(4):
            kbody(j, LK-1, (lambda j=j: kload(j+LK)), 0, None)
        base=4
        nloop=(NK-LK-4)//PERK
    else:
        base=0
    if cfg.LS:
        assert cfg.KEXP!=2 and cfg.KS0%PERK==0
        for j in range(cfg.KS0):
            kbody(j, cfg.LS-1, (lambda j=j: kload(j+cfg.LS)), (j//4)*TS)
        for m in range(cfg.KS0+cfg.LS, cfg.KS0+LK): kload(m)
        a(f"v_add_u32 v{V_SCW}, {(cfg.KS0//4)*TS}, v{V_SCW}")
        nloop=(NK-LK-cfg.KS0)//PERK
    a(f"s_mov_b32 s{S_LOOP}, {nloop}")
    a(".p2align 6")
    a("L_kloop:")
    for j in range(base,base+PERK):
        kbody(j, LK-1, (lambda j=j: kload(j+LK)), ((j-0)//4)*TS, ((j//4)-1)*TS)
    a(f"v_add_u32 v{V_SCW}, {(PERK//4)*TS}, v{V_SCW}")
    a(f"s_sub_u32 s{S_LOOP}, s{S_LOOP}, 1")
    a(f"s_cmp_lg_u32 s{S_LOOP}, 0")
    a("s_cbranch_scc1 L_kloop")
    done=base+nloop*PERK+(cfg.KS0 if cfg.LS else 0)
    for j in range(done, NK):
        m=j+LK
        if m<NK: ri=(lambda m=m: kload(m)); wn=LK-1
        elif m-NK<L: ri=(lambda m=m: vload(m-NK, first=(m==NK))); wn=LK-1
        else: ri=(lambda: None); wn=(NK-1-j)+L
        rel=(j-nloop*PERK-(cfg.KS0 if cfg.LS else 0))//4
        kbody(j, wn, ri, rel*TS, (rel-1)*TS, last=(j==NK-1))
    a("L_kdone:")
    stamp(a,cfg,3)
    wave_sum(a, V_MAX, V_T, op="max")
    a(f"s_lshl_b32 s{S_T0}, s{S_W}, 2")
    a(f"s_add_u32 s{S_T0}, s{S_T0}, {L_ML}")
    a(f"v_mov_b32 v11, s{S_T0}")
    a(f"ds_write_b32 v11, v{V_MAX}")
    a("s_waitcnt lgkmcnt(0)")
    a("s_barrier")
    if cfg.LATE_L:
        a(f"s_cmp_lg_u32 s{S_W}, 2")
        a("s_cbranch_scc1 L_nokd")
        a(f"v_mov_b32 v12, {L_MODE}")
        a(f"ds_read_b32 v13, v12")
        a(f"s_lshl_b32 s{S_T0}, s{S_X}, 9")
        a(f"s_add_u32 s{S_T0}, s{S_T0}, {W_KD}")
        a(f"v_and_b32 v10, 31, v{V_LANE}")
        a(f"v_lshlrev_b32 v10, 4, v10")
        a(f"v_add_u32 v10, s{S_T0}, v10")
        a(f"global_load_dwordx4 {vr(V_RDY,4)}, v10, {sr(P_WS,2)} sc1")
        if cfg.LATE_X:
            a(f"s_lshl_b32 s{S_T2}, s{S_R}, 7")
            a(f"s_add_u32 s{S_T2}, s{S_T2}, {W_KX}")
            a(f"v_and_b32 v11, 7, v{V_LANE}")
            a(f"v_lshlrev_b32 v11, 4, v11")
            a(f"v_add_u32 v11, s{S_T2}, v11")
            a(f"global_load_dwordx4 {vr(V_KX,4)}, v11, {sr(P_WS,2)} sc1")
        a(f"s_lshl_b32 s{S_T1}, s{S_R}, 4")
        a(f"s_add_u32 s{S_T0}, s{S_T0}, s{S_T1}")
        a(f"v_mov_b32 v10, s{S_T0}")
        if cfg.LATE_X:
            a(f"s_lshl_b32 s{S_T1}, s{S_X}, 4")
            a(f"s_add_u32 s{S_T2}, s{S_T2}, s{S_T1}")
            a(f"v_mov_b32 v11, s{S_T2}")
        a(f"v_mov_b32 v{V_X+8}, 1")
        a(f"v_mov_b32 v{V_X+9}, 0")
        a(f"v_mov_b32 v{V_X+10}, s{S_TAG}")
        a(f"v_mov_b32 v{V_X+11}, s{S_TAG+1}")
        a("s_waitcnt lgkmcnt(0)")
        a(f"v_readfirstlane_b32 s{S_FAST}, v13")
        a("s_nop 1")
        a(f"s_sub_u32 s{S_FAST}, s{S_FAST}, 1")
        set_exec(a,1,0)
        store_mode(a, f"global_store_dwordx4 v10, {vr(V_X+8,4)}, {sr(P_WS,2)}", True)
        if cfg.LATE_X: a(f"global_store_dwordx4 v11, {vr(V_X+8,4)}, {sr(P_WS,2)} sc1")
        full_exec(a)
        a(f"v_mov_b32 v10, {L_SEL}")
        a(f"v_mov_b32 v11, 0")
        a(f"ds_write_b32 v10, v11")
        a("L_nokd:")
    a(f"s_cmp_lt_u32 s{S_W}, {NSW}")
    a("s_cbranch_scc1 L_nohv")
    a(f"s_sub_u32 s{S_T0}, s{S_W}, {NSW}")
    a(f"s_mul_i32 s{S_T0}, s{S_T0}, {HV*4096}")
    if cfg.ROT or cfg.ROTX:
        assert HV==1
        a(f"s_add_u32 s{S_T0}, s{S_T0}, s{S_ROT}")
        a(f"s_and_b32 s{S_T0}, s{S_T0}, 0xfffff")
    for t in range(HV):
        for n in range(4):
            a(f"buffer_load_dwordx4 {vr(V_RING+t*16+n*4,4)}, v{V_VOFF}, {sr(SRD_V,4)}, s{S_T0} offen offset:{n*1024} {cfg.VFLAGS}")
        if t<HV-1: a(f"s_add_u32 s{S_T0}, s{S_T0}, 4096")
    a("L_nohv:")
    a(f"v_mov_b32 v12, {L_MODE}")
    a(f"ds_read_b32 v13, v12")
    a(f"v_mov_b32 v11, {L_ML}")
    a(f"ds_read_b128 {vr(V_X,4)}, v11")
    a(f"ds_read_b128 {vr(V_X+4,4)}, v11 offset:16")
    a(f"s_lshl_b32 s{S_T4}, s{S_W}, 11")
    a(f"s_add_u32 s{S_T4}, s{S_T4}, {L_SC}")
    a(f"v_lshlrev_b32 v10, 5, v{V_LANE}")
    a(f"v_add_u32 v10, s{S_T4}, v10")
    a(f"ds_read_b128 {vr(V_T,4)}, v10")
    a(f"ds_read_b128 {vr(V_T+4,4)}, v10 offset:16")
    a("s_waitcnt lgkmcnt(2)")
    a(f"v_readfirstlane_b32 s{S_FAST}, v13")
    a(f"v_max3_f32 v{V_MAX}, v{V_X}, v{V_X+1}, v{V_X+2}")
    a(f"s_sub_u32 s{S_FAST}, s{S_FAST}, 1")
    a(f"v_max3_f32 v{V_MAX}, v{V_MAX}, v{V_X+3}, v{V_X+4}")
    a(f"v_max3_f32 v{V_MAX}, v{V_MAX}, v{V_X+5}, v{V_X+6}")
    a(f"v_max_f32 v{V_MAX}, v{V_MAX}, v{V_X+7}")
    a("s_waitcnt lgkmcnt(0)")
    for i in range(8):
        a(f"v_sub_f32 v{V_T+8+i}, v{V_T+i}, v{V_MAX}")
        a(f"v_mul_f32 v{V_T+8+i}, s{S_LOG2E}, v{V_T+8+i}")
        a(f"v_exp_f32 v{V_T+8+i}, v{V_T+8+i}")
    a("s_nop 0")
    a(f"v_add_f32 v{V_T+16}, v{V_T+8}, v{V_T+9}")
    for i in range(2,8):
        a(f"v_add_f32 v{V_T+16}, v{V_T+16}, v{V_T+8+i}")
    wave_sum(a, V_T+16, V_T+17)
    a(f"s_lshl_b32 s{S_T0}, s{S_W}, 2")
    a(f"s_add_u32 s{S_T0}, s{S_T0}, {L_LS}")
    a(f"v_mov_b32 v11, s{S_T0}")
    a(f"ds_write_b32 v11, v{V_T+16}")
    a("s_waitcnt lgkmcnt(0)")
    a("s_barrier")
    a(f"v_mov_b32 v11, {L_LS}")
    a(f"ds_read_b128 {vr(V_X,4)}, v11")
    a(f"ds_read_b128 {vr(V_X+4,4)}, v11 offset:16")
    a("s_waitcnt lgkmcnt(0)")
    a(f"v_add_f32 v{V_T+16}, v{V_X}, v{V_X+1}")
    for k in range(2,8):
        a(f"v_add_f32 v{V_T+16}, v{V_T+16}, v{V_X+k}")
    a(f"v_rcp_f32 v{V_T+17}, v{V_T+16}")
    a("s_nop 0")
    a(f"v_fma_f32 v{V_T+18}, -v{V_T+16}, v{V_T+17}, 1.0")
    a(f"v_fma_f32 v{V_T+17}, v{V_T+18}, v{V_T+17}, v{V_T+17}")
    for i in range(8):
        a(f"v_mul_f32 v{V_T+8+i}, v{V_T+8+i}, v{V_T+17}")
        a(f"v_cvt_pk_bf16_f32 v{V_T+8+i}, v{V_T+8+i}, v{V_T+8+i}")
    a(f"ds_write_b128 v10, {vr(V_T+8,4)}")
    a(f"ds_write_b128 v10, {vr(V_T+12,4)} offset:16")
    a("s_waitcnt lgkmcnt(0)")
    a("s_barrier")
    stamp(a,cfg,4)
    def ands(dst,pp):
        for w in range(4):
            a(f"v_and_b32 v{dst+w}, v{pp}, v{V_MASK+w}")
    a(f"s_cmp_lt_u32 s{S_W}, {NSW}")
    a("s_cbranch_scc1 L_vstream")
    if cfg.LATE_L:
        a(f"s_cmp_lg_u32 s{S_W}, 2")
        a("s_cbranch_scc1 L_nokd2")
        a(f"s_waitcnt vmcnt({(2 if cfg.LATE_X else 1)+4*HV})")
        a(f"v_xor_b32 v11, s{S_TAG}, v{V_RDY+2}")
        a(f"v_xor_b32 v15, s{S_TAG+1}, v{V_RDY+3}")
        a(f"v_or_b32 v11, v11, v15")
        a(f"v_cmp_eq_u32 vcc, 0, v11")
        if cfg.LATE_X:
            a(f"v_xor_b32 v11, s{S_TAG}, v{V_KX+2}")
            a(f"v_xor_b32 v15, s{S_TAG+1}, v{V_KX+3}")
            a(f"v_or_b32 v11, v11, v15")
            a(f"v_cmp_eq_u32 {sr(S_B1,2)}, 0, v11")
        a("s_nop 1")
        a(f"s_bcnt1_i32_b32 s{S_T0}, vcc_lo")
        if cfg.LATE_X:
            a(f"s_and_b32 s{S_T1}, s{S_B1}, 0xff")
            a(f"s_bcnt1_i32_b32 s{S_T1}, s{S_T1}")
        if cfg.EARLY_L:
            a(f"s_cmp_le_u32 s{S_T0}, {cfg.EARLY_THR}")
            a(f"s_cselect_b32 s{S_T2}, 2, 0")
            a(f"s_cmp_ge_u32 s{S_T0}, {cfg.LATE_THR}")
            a(f"s_cselect_b32 s{S_T0}, 1, s{S_T2}")
        else:
            a(f"s_cmp_ge_u32 s{S_T0}, {cfg.LATE_THR}")
            a(f"s_cselect_b32 s{S_T0}, 1, 0")
        if cfg.LATE_X:
            a(f"s_cmp_ge_u32 s{S_T1}, {cfg.LATE_X}")
            a(f"s_cselect_b32 s{S_T0}, 1, s{S_T0}")
        a(f"v_mov_b32 v11, {L_SEL}")
        a(f"v_mov_b32 v15, s{S_T0}")
        a(f"ds_write_b32 v11, v15")
        a("L_nokd2:")
    a(f"s_sub_u32 s{S_T0}, s{S_W}, {NSW}")
    a(f"s_mul_i32 s{S_T0}, s{S_T0}, {HV*64}")
    a(f"s_add_u32 s{S_T0}, s{S_T0}, {L_SC}")
    a(f"v_lshlrev_b32 v10, 4, v3")
    a(f"v_add_u32 v10, s{S_T0}, v10")
    for t in range(HV):
        a(f"ds_read_b128 {vr(V_PP0,4)}, v10 offset:{t*64}")
        a(f"s_waitcnt vmcnt({4*(HV-1-t)}) lgkmcnt(0)")
        for n in range(4):
            A=V_A0 if n%2==0 else V_A1
            ands(A,V_PP0+n)
            a("s_nop 1")
            a(f"v_mfma_f32_16x16x32_bf16 {vr(V_OACC,4)}, {vr(A,4)}, {vr(V_RING+t*16+4*n,4)}, {vr(V_OACC,4)}")
    a("s_nop 7")
    set_exec(a, -1, 0)
    a(f"ds_write_b128 v{PA_OW}, {vr(V_OACC,4)}")
    full_exec(a)
    frag_reads(a,"ogd")
    if cfg.CODEPF:
        a(f"s_cmp_lg_u32 s{S_W}, 4")
        a("s_cbranch_scc1 L_pf2_skip")
        emit_codepf(a,cfg,"L_pf2","L_vdone","L_exit")
        a("L_pf2_skip:")
    a("s_waitcnt vmcnt(0) lgkmcnt(0)")
    a("s_branch L_vdone")
    a("L_vstream:")
    a(f"s_add_u32 s{S_T0}, s{S_W}, {NH*HV}")
    a(f"s_lshl_b32 s{S_T0}, s{S_T0}, 6")
    a(f"s_add_u32 s{S_T0}, s{S_T0}, {L_SC}")
    a(f"v_lshlrev_b32 v10, 4, v3")
    a(f"v_add_u32 v{V_PPR}, s{S_T0}, v10")
    a(f"ds_read_b128 {vr(V_PP0,4)}, v{V_PPR}")
    import math as _m
    base_ring=[(NK-LK+v)%LK for v in range(L)]
    spare=[x for x in range(16) if x not in base_ring]
    def vbody2(jv, rel, wait_n, slot, last_tile, pre=None):
        n=jv%4; par=(jv//4)%2
        pp = V_PP0 if par==0 else V_PP1
        ppn = V_PP1 if par==0 else V_PP0
        if n==0:
            if not last_tile:
                a(f"ds_read_b128 {vr(ppn,4)}, v{V_PPR} offset:{(rel+1)*NSW*64}")
                a(f"s_waitcnt lgkmcnt(1)")
                a("s_nop 0")
            else:
                a(f"s_waitcnt lgkmcnt(0)")
                a("s_nop 0")
        A=V_A0 if n%2==0 else V_A1
        ands(A,pp+n)
        a(f"s_waitcnt vmcnt({wait_n})")
        if pre is not None and cfg.REFIRST:
            pre()
        else:
            a("s_nop 0")
        a(f"v_mfma_f32_16x16x32_bf16 {vr(V_OACC,4)}, {vr(A,4)}, {vr(V_RING+slot*4,4)}, {vr(V_OACC,4)}")
        if pre is not None and not cfg.REFIRST:
            pre()
    def vissue(jn, slot):
        a(f"buffer_load_dwordx4 {vr(V_RING+slot*4,4)}, v{V_VOFF}, {sr(SRD_V,4)}, s{S_KOFF} offen offset:{(jn%4)*1024} {cfg.VFLAGS}")
        if jn%4==3:
            a(f"s_add_u32 s{S_KOFF}, s{S_KOFF}, {TSTEP}")
            if cfg.ROT or cfg.ROTX: a(f"s_and_b32 s{S_KOFF}, s{S_KOFF}, 0xfffff")
    S0=cfg.SEG0 if cfg.LATE_L else 0
    assert S0%8==0
    for jv in range(S0):
        vbody2(jv, jv//4, L-1, base_ring[jv%L], False, (lambda jv=jv: vissue(jv+L, base_ring[jv%L])))
    if S0: a(f"v_add_u32 v{V_PPR}, {(S0//4)*NSW*64}, v{V_PPR}")
    def vstream(LV, sfx):
        cur=[base_ring[(S0+i)%L] for i in range(L)]
        j0=S0
        if LV<L:
            for d in range(L-LV):
                vbody2(j0, (j0-S0)//4, L-1-d, cur[0], False); cur=cur[1:]; j0+=1
            ring=cur
        else:
            ring=cur+spare[:LV-L]
            for k in range(L,LV): vissue(S0+k, ring[k])
        per=LV*4//_m.gcd(LV,4)
        if (per//4)%2: per*=2
        nl=(NV-j0-LV)//per
        a(f"s_mov_b32 s{S_LOOP}, {nl}")
        a(".p2align 6")
        a(f"L_vloop{sfx}:")
        for i in range(per):
            vbody2(j0+i, (j0+i-S0)//4, LV-1, ring[i%LV], False, (lambda i=i: vissue(j0+i+LV, ring[i%LV])))
        a(f"v_add_u32 v{V_PPR}, {(per//4)*NSW*64}, v{V_PPR}")
        a(f"s_sub_u32 s{S_LOOP}, s{S_LOOP}, 1")
        a(f"s_cmp_lg_u32 s{S_LOOP}, 0")
        a(f"s_cbranch_scc1 L_vloop{sfx}")
        start=nl*per
        for i in range(start,NV-j0):
            jv=j0+i
            vbody2(jv, (jv-S0-start)//4, min(LV-1, NV-1-jv), ring[i%LV], jv//4==VT-1,
                   (lambda jv=jv,i=i: vissue(jv+LV, ring[i%LV])) if jv+LV<NV else None)
    if cfg.LATE_L:
        a(f"v_mov_b32 v10, {L_SEL}")
        a(f"ds_read_b32 v11, v10")
        a("s_waitcnt lgkmcnt(0)")
        a(f"v_readfirstlane_b32 s{S_T0}, v11")
        a("s_nop 1")
        a(f"s_cmp_eq_u32 s{S_T0}, 1")
        a("s_cbranch_scc1 L_vlate")
        if cfg.EARLY_L:
            a(f"s_cmp_eq_u32 s{S_T0}, 2")
            a("s_cbranch_scc1 L_vearly")
    vstream(L,"")
    if cfg.LATE_L:
        a("s_branch L_vdone")
        a.ool(True)
        a("L_vlate:")
        vstream(cfg.LATE_L,"b")
        a("s_branch L_vdone")
        if cfg.EARLY_L:
            a("L_vearly:")
            vstream(cfg.EARLY_L,"c")
            a("s_branch L_vdone")
        a.ool(False)
    a("L_vdone:")
    stamp(a,cfg,5)
    return a, None

PA=208
PA_O=PA+0; PA_T2=PA+1; PA_DW=PA+2; PA_R2=PA+3; PA_P2=PA+4; PA_T3A=PA+5; PA_T3B=PA+6; PA_T3W=PA+7; PA_T3R=PA+8; PA_H=PA+9
PA_T4=PA+10; PA_LNBW=PA+11; PA_HSW=PA+12; PA_LNBR=PA+13; PA_GP=PA+14; PA_ACT=PA+15; PA_T6=PA+16; PA_OUT=PA+17; PA_HSR=PA+18
PA_OW=PA+19; PA_OR=PA+20; PA_TR=PA+21
PA_T5B=PA+24
PA_T7=PA+28
V_XRES=PA+36
V_RDY=PA+40
V_KX=PA+44
SM_LNB=8; SM_HS=10
R_T1=2; R_RED0=2
R_W0=3

def emit_precompute(a, cfg):
    global SM_LNB, SM_HS
    T0,T1,T2,T3,T4,T5=S_T0,S_T1,S_T2,S_T3,S_T4,S_T5
    a(f"s_lshl_b32 s{T0}, s{S_H}, 3")
    a(f"s_add_u32 s{T0}, s{T0}, s{S_B}")
    a(f"s_lshl_b32 s{T0}, s{T0}, 8")
    a(f"s_add_u32 s{T0}, s{T0}, {W_OB}")
    a(f"v_lshlrev_b32 v10, 2, v{V_LANE}")
    a(f"v_add_u32 v{PA_O}, s{T0}, v10")
    a(f"s_lshl_b32 s{T0}, s{S_W}, 9")
    a(f"s_add_u32 s{T0}, s{T0}, {L_RED}")
    a(f"v_lshlrev_b32 v11, 5, v2")
    a(f"v_lshlrev_b32 v12, 4, v3")
    a(f"v_add3_u32 v{PA_OW}, v11, v12, s{T0}")
    a(f"v_lshlrev_b32 v11, 3, v{V_LANE}")
    a(f"v_add_u32 v{PA_OR}, {L_RED}, v11")
    a(f"v_lshlrev_b32 v11, 3, v3")
    a(f"v_add_u32 v11, v11, v4")
    a(f"v_lshlrev_b32 v11, 7, v11")
    a(f"v_lshlrev_b32 v13, 3, v5")
    a(f"v_add_u32 v{PA_TR}, v11, v13")
    a(f"s_lshr_b32 s{T4}, s{S_R}, 4")
    a(f"s_and_b32 s{T5}, s{S_R}, 15")
    a(f"v_and_b32 v14, 7, v{V_LANE}")
    a(f"s_lshl_b32 s{T0}, s{S_X}, 2")
    a(f"s_lshl_b32 s{T1}, s{T4}, 1")
    a(f"s_add_u32 s{T0}, s{T0}, s{T1}")
    a(f"s_lshr_b32 s{T1}, s{S_W}, 2")
    a(f"s_add_u32 s{T0}, s{T0}, s{T1}")
    a(f"s_lshl_b32 s{T0}, s{T0}, 11")
    a(f"s_and_b32 s{T1}, s{S_W}, 3")
    a(f"s_lshl_b32 s{T1}, s{T1}, 6")
    a(f"s_add_u32 s{T0}, s{T0}, s{T1}")
    a(f"s_add_u32 s{T0}, s{T0}, {W_OB}")
    a(f"v_lshlrev_b32 v10, 8, v14")
    a(f"v_add3_u32 v{PA_T2}, v10, v12, s{T0}")
    a(f"s_lshl_b32 s{T0}, s{S_W}, 11")
    a(f"s_add_u32 s{T0}, s{T0}, {L_SC}")
    a(f"v_lshlrev_b32 v10, 8, v2")
    a(f"v_xor_b32 v11, v3, v5")
    a(f"v_lshlrev_b32 v11, 4, v11")
    a(f"v_add3_u32 v{PA_DW}, v10, v11, s{T0}")
    a(f"s_sub_u32 s{T0}, s{S_W}, {R_RED0}")
    a(f"s_lshl_b32 s{T0}, s{T0}, 6")
    a(f"v_add_u32 v10, s{T0}, v{V_LANE}")
    a(f"v_and_b32 v10, 127, v10")
    a(f"v_lshrrev_b32 v11, 4, v10")
    a(f"v_and_b32 v13, 3, v11")
    a(f"v_xor_b32 v13, v13, v10")
    a(f"v_lshlrev_b32 v13, 4, v13")
    a(f"v_add_u32 v{PA_R2}, {L_SC}, v13")
    a(f"s_lshl_b32 s{T0}, s{S_X}, 1")
    a(f"s_add_u32 s{T0}, s{T0}, s{T4}")
    a(f"s_mul_i32 s{T0}, s{T0}, {cfg.APP}")
    a(f"s_lshl_b32 s{T1}, s{T5}, 8")
    a(f"s_add_u32 s{T0}, s{T0}, s{T1}")
    a(f"s_add_u32 s{T0}, s{T0}, {W_AP}")
    a(f"v_lshrrev_b32 v11, 4, v10")
    a(f"v_mul_u32_u24 v11, {cfg.APB}, v11")
    a(f"v_lshlrev_b32 v13, 4, v2")
    a(f"v_add3_u32 v{PA_P2}, v11, v13, s{T0}")
    a(f"s_lshr_b32 s{T0}, s{S_R}, 2")
    a(f"s_mul_i32 s{T0}, s{T0}, {cfg.APB}")
    a(f"s_and_b32 s{T1}, s{S_R}, 3")
    a(f"s_lshl_b32 s{T1}, s{T1}, 10")
    a(f"s_add_u32 s{T0}, s{T0}, s{T1}")
    a(f"s_mul_i32 s{T1}, s{S_W}, {2*cfg.APP}")
    a(f"s_add_u32 s{T0}, s{T0}, s{T1}")
    a(f"s_add_u32 s{T0}, s{T0}, {W_AP}")
    a(f"v_add_u32 v{PA_T3A}, s{T0}, v{V_VOFF}")
    a(f"v_add_u32 v{PA_T3B}, {cfg.APP}, v{PA_T3A}")
    RED3=L_RED+4096
    a(f"s_lshl_b32 s{T0}, s{S_W}, 10")
    a(f"s_add_u32 s{T0}, s{T0}, {RED3}")
    a(f"v_add_u32 v{PA_T3W}, s{T0}, v{V_VOFF}")
    a(f"v_add_u32 v{PA_T3R}, {RED3}, v{V_VOFF}")
    a(f"s_lshr_b32 s{T0}, s{S_R}, 2")
    a(f"s_lshl_b32 s{T1}, s{S_X}, 3")
    a(f"s_add_u32 s{T0}, s{T0}, s{T1}")
    a(f"s_lshl_b32 s{T0}, s{T0}, 11")
    a(f"s_and_b32 s{T1}, s{S_R}, 3")
    a(f"s_lshl_b32 s{T1}, s{T1}, 9")
    a(f"s_add_u32 s{T0}, s{T0}, s{T1}")
    a(f"s_add_u32 s{T0}, s{T0}, {W_HB}")
    a(f"v_lshlrev_b32 v10, 3, v{V_LANE}")
    a(f"v_add_u32 v{PA_H}, s{T0}, v10")
    a(f"s_lshr_b32 s{T0}, s{S_R}, 2")
    a(f"s_lshl_b32 s{T0}, s{T0}, 11")
    a(f"s_add_u32 s{T0}, s{T0}, s{T1}")
    a(f"v_add_u32 v9, s{T0}, v10")
    a(f"s_lshl_b32 s{T0}, s{S_X}, 3")
    a(f"s_add_u32 s{T0}, s{T0}, s{S_W}")
    a(f"s_lshl_b32 s{T0}, s{T0}, 11")
    a(f"s_add_u32 s{T0}, s{T0}, {W_HB}")
    a(f"v_lshlrev_b32 v10, 5, v{V_LANE}")
    a(f"v_add_u32 v{PA_T4}, s{T0}, v10")
    a(f"s_mul_i32 s{T2}, s{S_R}, 37")
    a(f"s_lshr_b32 s{T2}, s{T2}, 8")
    a(f"s_mul_i32 s{T3}, s{T2}, 7")
    a(f"s_sub_u32 s{T3}, s{S_R}, s{T3}")
    a(f"s_lshl_b32 s{T0}, s{T2}, 4")
    a(f"v_subrev_u32 v10, s{T0}, v{V_LANE}")
    a(f"v_cmp_gt_u32 {sr(SM_LNB,2)}, 16, v10")
    a(f"s_mul_i32 s{T1}, s{S_W}, {LNB_P}")
    a(f"s_add_u32 s{T1}, s{T1}, {L_LNB}")
    a(f"v_lshlrev_b32 v10, 5, v10")
    a(f"v_add_u32 v{PA_LNBW}, s{T1}, v10")
    a(f"s_lshl_b32 s{T0}, s{S_R}, 1")
    a(f"v_subrev_u32 v10, s{T0}, v{V_LANE}")
    a(f"v_cmp_gt_u32 {sr(SM_HS,2)}, 2, v10")
    a(f"v_lshlrev_b32 v10, 5, v10")
    a(f"v_add_u32 v{PA_HSW}, {L_HS}, v10")
    a(f"v_mul_u32_u24 v10, {LNB_P}, v14")
    a(f"v_add_u32 v10, v10, v12")
    a(f"v_add_u32 v{PA_LNBR}, {L_LNB}, v10")
    a(f"s_mul_i32 s{T0}, s{S_X}, 28")
    a(f"s_add_u32 s{T0}, s{T0}, s{S_R}")
    a(f"s_lshl_b32 s{T0}, s{T0}, 12")
    a(f"s_lshr_b32 s{T1}, s{S_W}, 2")
    a(f"s_lshl_b32 s{T1}, s{T1}, 11")
    a(f"s_add_u32 s{T0}, s{T0}, s{T1}")
    a(f"s_and_b32 s{T1}, s{S_W}, 3")
    a(f"s_lshl_b32 s{T1}, s{T1}, 9")
    a(f"s_add_u32 s{T0}, s{T0}, s{T1}")
    a(f"s_add_u32 s{T0}, s{T0}, {W_GP}")
    a(f"v_lshlrev_b32 v10, 6, v2")
    a(f"v_add3_u32 v{PA_GP}, v10, v12, s{T0}")
    a(f"s_mul_i32 s{T0}, s{S_X}, 28")
    a(f"s_add_u32 s{T0}, s{T0}, s{T3}")
    a(f"s_lshl_b32 s{T0}, s{T0}, 12")
    a(f"s_lshl_b32 s{T1}, s{T2}, 7")
    a(f"s_add_u32 s{T0}, s{T0}, s{T1}")
    a(f"s_add_u32 s{T0}, s{T0}, {W_GP}")
    a(f"v_lshrrev_b32 v10, 5, v{V_LANE}")
    a(f"v_and_b32 v11, 31, v{V_LANE}")
    a(f"v_lshrrev_b32 v13, 3, v11")
    a(f"v_lshlrev_b32 v13, 9, v13")
    a(f"v_lshl_add_u32 v13, v10, 6, v13")
    a(f"v_and_b32 v15, 7, v11")
    a(f"v_lshlrev_b32 v15, 3, v15")
    a(f"v_add3_u32 v{PA_T5B}, v13, v15, s{T0}")
    for k in range(1,4):
        a(f"v_add_u32 v{PA_T5B+k}, {k*7*4096}, v{PA_T5B}")
    a(f"s_lshl_b32 s{T0}, s{S_X}, 3")
    a(f"s_lshl_b32 s{T1}, s{T2}, 1")
    a(f"s_add_u32 s{T0}, s{T0}, s{T1}")
    a(f"s_mul_i32 s{T0}, s{T0}, 896")
    a(f"s_lshl_b32 s{T1}, s{T3}, 7")
    a(f"s_add_u32 s{T0}, s{T0}, s{T1}")
    a(f"s_add_u32 s{T0}, s{T0}, {W_ACT}")
    a(f"v_mul_u32_u24 v13, 896, v10")
    a(f"v_lshlrev_b32 v15, 2, v11")
    a(f"v_add3_u32 v{PA_ACT}, v13, v15, s{T0}")
    a(f"s_mul_i32 s{T0}, s{S_X}, {8*896}")
    a(f"s_mul_i32 s{T1}, s{T4}, 448")
    a(f"s_add_u32 s{T0}, s{T0}, s{T1}")
    a(f"s_lshl_b32 s{T1}, s{S_W}, 6")
    a(f"s_add_u32 s{T0}, s{T0}, s{T1}")
    a(f"s_add_u32 s{T0}, s{T0}, {W_ACT}")
    a(f"v_mul_u32_u24 v13, 896, v14")
    a(f"v_add3_u32 v{PA_T6}, v13, v12, s{T0}")
    a(f"s_mul_i32 s{T0}, s{S_X}, {cfg.APB}")
    a(f"s_lshl_b32 s{T1}, s{S_R}, 7")
    a(f"s_add_u32 s{T0}, s{T0}, s{T1}")
    a(f"s_add_u32 s{T0}, s{T0}, {W_DP}")
    a(f"v_mul_u32_u24 v13, {8*cfg.APP}, v10")
    a(f"v_lshlrev_b32 v15, 2, v11")
    a(f"v_add3_u32 v{PA_T7}, v13, v15, s{T0}")
    for k in range(1,8):
        a(f"v_add_u32 v{PA_T7+k}, {k*cfg.APP}, v{PA_T7}")
    a(f"s_lshl_b32 s{T0}, s{S_X}, 11")
    a(f"s_lshl_b32 s{T1}, s{S_R}, 6")
    a(f"s_add_u32 s{T0}, s{T0}, s{T1}")
    a(f"v_lshlrev_b32 v15, 1, v11")
    a(f"v_add_u32 v{PA_OUT}, s{T0}, v15")
    a(f"v_add_u32 v{PA_HSR}, {L_HS}, v15")

def emit_codepf(a, cfg, lab, first, last):
    a(f"s_getpc_b64 {sr(S_B1,2)}")
    a(f"{lab}:")
    a(f"s_add_u32 s{S_B1}, s{S_B1}, ({first}-{lab})&0xffffffff")
    a(f"s_addc_u32 s{S_B1+1}, s{S_B1+1}, ({first}-{lab})>>32")
    a(f"v_lshlrev_b32 v10, 6, v{V_LANE}")
    a(f"s_mov_b32 s{S_T0}, {last}-{first}")
    a(f"{lab}_loop:")
    a(f"v_cmp_gt_u32 vcc, s{S_T0}, v10")
    a(f"s_and_saveexec_b64 {sr(S_EX,2)}, vcc")
    a(f"s_cbranch_execz {lab}_done")
    a(f"global_load_dword v11, v10, {sr(S_B1,2)}")
    a(f"s_mov_b64 exec, {sr(S_EX,2)}")
    a(f"v_add_u32 v10, 4096, v10")
    a(f"s_branch {lab}_loop")
    a(f"{lab}_done:")
    a(f"s_mov_b64 exec, {sr(S_EX,2)}")
    a("s_waitcnt vmcnt(0)")

def emit_rdycheck(a, cfg):
    f=1 if cfg.FASTMODE else 0
    a(f"s_cmp_lg_u32 s{S_W}, 4")
    a("s_cbranch_scc1 L_rdy_b")
    a(f"s_cmp_lg_u32 s{S_R}, 0")
    a("s_cbranch_scc1 L_rdy_done")
    a(f"s_lshl_b32 s{S_T0}, s{S_X}, 9")
    a(f"s_add_u32 s{S_T0}, s{S_T0}, {W_RDY}")
    a(f"v_and_b32 v10, 31, v{V_LANE}")
    a(f"v_lshlrev_b32 v10, 4, v10")
    a(f"v_add_u32 v10, s{S_T0}, v10")
    lp=a.label("rdy"); dn=a.label("rdyok")
    a(f"s_mov_b32 s{S_SPIN}, {cfg.SPIN}")
    a(f"{lp}:")
    a(f"global_load_dwordx4 {vr(V_RDY,4)}, v10, {sr(P_WS,2)} sc1")
    a("s_waitcnt vmcnt(0)")
    a(f"v_xor_b32 v11, s{S_TAG}, v{V_RDY+2}")
    a(f"v_xor_b32 v15, s{S_TAG+1}, v{V_RDY+3}")
    a(f"v_or_b32 v11, v11, v15")
    a(f"v_cmp_ne_u32 vcc, 0, v11")
    a(f"s_cbranch_vccz {dn}")
    a("s_sleep 16")
    a(f"s_sub_u32 s{S_SPIN}, s{S_SPIN}, 1")
    a(f"s_cmp_lg_u32 s{S_SPIN}, 0")
    a(f"s_cbranch_scc1 {lp}")
    a(f"{dn}:")
    a(f"v_readfirstlane_b32 s{S_T0}, v{V_RDY}")
    a("s_nop 1")
    a(f"v_cmp_ne_u32 vcc, s{S_T0}, v{V_RDY}")
    a(f"s_mov_b32 s{S_T2}, {f}")
    a("s_nop 1")
    a(f"s_cmp_eq_u64 vcc, 0")
    a(f"s_cselect_b32 s{S_T2}, s{S_T2}, 0")
    a(f"s_lshl_b32 s{S_T0}, s{S_X}, 4")
    a(f"s_add_u32 s{S_T0}, s{S_T0}, {W_GRDY}")
    a(f"v_mov_b32 v10, s{S_T0}")
    a(f"v_mov_b32 v12, s{S_T2}")
    a(f"v_mov_b32 v13, 0")
    a(f"v_mov_b32 v14, s{S_TAG}")
    a(f"v_mov_b32 v15, s{S_TAG+1}")
    set_exec(a,1,0)
    a(f"global_store_dwordx4 v10, v[12:15], {sr(P_WS,2)} sc1")
    full_exec(a)
    a("s_branch L_rdy_done")
    a("L_rdy_b:")
    a(f"s_cmp_lg_u32 s{S_W}, 5")
    a("s_cbranch_scc1 L_rdy_done")
    a(f"v_and_b32 v10, 7, v{V_LANE}")
    a(f"v_lshlrev_b32 v10, 4, v10")
    a(f"v_add_u32 v10, {W_GRDY}, v10")
    lp=a.label("grdy"); dn=a.label("grdyok")
    a(f"s_mov_b32 s{S_SPIN}, {cfg.SPIN}")
    a(f"{lp}:")
    set_exec(a,"0xff",0)
    a(f"global_load_dwordx4 {vr(V_RDY,4)}, v10, {sr(P_WS,2)} sc1")
    a("s_waitcnt vmcnt(0)")
    a(f"v_xor_b32 v11, s{S_TAG}, v{V_RDY+2}")
    a(f"v_xor_b32 v15, s{S_TAG+1}, v{V_RDY+3}")
    a(f"v_or_b32 v11, v11, v15")
    a(f"v_cmp_ne_u32 vcc, 0, v11")
    full_exec(a)
    a(f"s_cbranch_vccz {dn}")
    a("s_sleep 64")
    a(f"s_sub_u32 s{S_SPIN}, s{S_SPIN}, 1")
    a(f"s_cmp_lg_u32 s{S_SPIN}, 0")
    a(f"s_cbranch_scc1 {lp}")
    a(f"{dn}:")
    a(f"v_readlane_b32 s{S_T2}, v{V_RDY}, s{S_X}")
    a(f"v_mov_b32 v10, {L_MODE}")
    a("s_nop 1")
    a(f"s_add_u32 s{S_T2}, s{S_T2}, 1")
    a(f"v_mov_b32 v12, s{S_T2}")
    a(f"ds_write_b32 v10, v12")
    a("L_rdy_done:")

def poll_masked(a, name, loads, regs, cfg, tmp, nloads=1, stagger=0):
    ps = cfg.PSX if name in ('t3','t7') else cfg.PSLEEP
    lp=a.label(name+"_poll"); dn=a.label(name+"_ok")
    a(f"s_mov_b64 {sr(S_EX,2)}, exec")
    a(f"s_mov_b32 s{S_SPIN}, {cfg.SPIN}")
    if stagger:
        loads()
        a(f"s_sleep {stagger}")
    a(f"{lp}:")
    loads()
    a(f"s_waitcnt vmcnt({nloads if stagger else 0})")
    rs=list(regs)
    if len(rs)>=3:
        a(f"v_max3_u32 v{tmp}, v{rs[0]}, v{rs[1]}, v{rs[2]}"); i=3
    else:
        a(f"v_max_u32 v{tmp}, v{rs[0]}, v{rs[1]}"); i=2
    while i<len(rs):
        if i+1<len(rs):
            a(f"v_max3_u32 v{tmp}, v{tmp}, v{rs[i]}, v{rs[i+1]}"); i+=2
        else:
            a(f"v_max_u32 v{tmp}, v{tmp}, v{rs[i]}"); i+=1
    a(f"v_cmp_eq_u32 vcc, -1, v{tmp}")
    a(f"s_mov_b64 exec, vcc")
    a(f"s_cbranch_execz {dn}")
    if ps: a(f"s_sleep {ps}")
    a(f"s_sub_u32 s{S_SPIN}, s{S_SPIN}, 1")
    a(f"s_cmp_lg_u32 s{S_SPIN}, 0")
    a(f"s_cbranch_scc1 {lp}")
    a(f"{dn}:")
    a(f"s_mov_b64 exec, {sr(S_EX,2)}")

def frag_reads(a, which):
    WB=V_RING; WO_F=WB; GU_F=WB+16; WD_F=WB+48
    if "o" in which:
        a(f"s_lshl_b32 s{S_T0}, s{S_W}, 12")
        a(f"s_add_u32 s{S_T1}, s{S_T0}, {L_WO}")
        a(f"v_add_u32 v13, s{S_T1}, v{PA_TR}")
        for t in range(4):
            for hf in range(2):
                a(f"ds_read_b64_tr_b16 {vr(WO_F+4*t+2*hf,2)}, v13 offset:{hf*4*128+32*t}")
    if "g" in which:
        a(f"s_lshr_b32 s{S_T0}, s{S_W}, 2")
        a(f"s_lshl_b32 s{S_T0}, s{S_T0}, 15")
        a(f"s_and_b32 s{S_T1}, s{S_W}, 3")
        a(f"s_lshl_b32 s{S_T1}, s{S_T1}, 5")
        a(f"s_add_u32 s{S_T0}, s{S_T0}, s{S_T1}")
        a(f"s_add_u32 s{S_T0}, s{S_T0}, {L_WG}")
        a(f"v_add_u32 v15, s{S_T0}, v{PA_TR}")
        for s in range(8):
            for hf in range(2):
                a(f"ds_read_b64_tr_b16 {vr(GU_F+4*s+2*hf,2)}, v15 offset:{(32*s+4*hf)*128}")
    if "d" in which:
        a(f"s_lshl_b32 s{S_T0}, s{S_W}, 12")
        a(f"s_add_u32 s{S_T1}, s{S_T0}, {L_WD}")
        a(f"v_add_u32 v11, s{S_T1}, v{PA_TR}")
        for t in range(4):
            for hf in range(2):
                a(f"ds_read_b64_tr_b16 {vr(WD_F+4*t+2*hf,2)}, v11 offset:{hf*4*128+32*t}")

def layernorm2(a, vin, vf, vout, t):
    for i in range(8):
        a(f"v_lshlrev_b32 v{vf+2*i}, 16, v{vin+i}")
        a(f"v_and_b32 v{vf+2*i+1}, 0xffff0000, v{vin+i}")
    a(f"v_readfirstlane_b32 s{S_T4}, v{vf}")
    a("s_nop 1")
    a(f"v_mov_b32 v{t+6}, s{S_T4}")
    a(f"v_mov_b32 v{t+7}, s{S_T4}")
    for i in range(8):
        a(f"v_pk_add_f32 {vr(vf+2*i,2)}, {vr(vf+2*i,2)}, {vr(t+6,2)} neg_lo:[0,1] neg_hi:[0,1]")
    a(f"v_pk_add_f32 {vr(t,2)}, {vr(vf,2)}, {vr(vf+2,2)}")
    a(f"v_pk_mul_f32 {vr(t+2,2)}, {vr(vf,2)}, {vr(vf,2)}")
    a(f"v_pk_fma_f32 {vr(t+2,2)}, {vr(vf+2,2)}, {vr(vf+2,2)}, {vr(t+2,2)}")
    for i in range(2,8):
        a(f"v_pk_add_f32 {vr(t,2)}, {vr(t,2)}, {vr(vf+2*i,2)}")
        a(f"v_pk_fma_f32 {vr(t+2,2)}, {vr(vf+2*i,2)}, {vr(vf+2*i,2)}, {vr(t+2,2)}")
    a(f"v_add_f32 v{t}, v{t}, v{t+1}")
    a(f"v_add_f32 v{t+2}, v{t+2}, v{t+3}")
    for k in (8,4,2,1):
        a("s_nop 0")
        a(f"v_add_f32_dpp v{t}, v{t}, v{t} row_ror:{k} row_mask:0xf bank_mask:0xf")
        a("s_nop 0") if False else None
        a(f"v_add_f32_dpp v{t+2}, v{t+2}, v{t+2} row_ror:{k} row_mask:0xf bank_mask:0xf")
    a(f"v_mov_b32 v{t+1}, v{t}")
    a(f"v_mov_b32 v{t+3}, v{t+2}")
    a("s_nop 1")
    a(f"v_permlane16_swap_b32 v{t}, v{t+1}")
    a(f"v_permlane16_swap_b32 v{t+2}, v{t+3}")
    a("s_nop 1")
    a(f"v_add_f32 v{t}, v{t}, v{t+1}")
    a(f"v_add_f32 v{t+2}, v{t+2}, v{t+3}")
    a(f"v_mov_b32 v{t+1}, v{t}")
    a(f"v_mov_b32 v{t+3}, v{t+2}")
    a("s_nop 1")
    a(f"v_permlane32_swap_b32 v{t}, v{t+1}")
    a(f"v_permlane32_swap_b32 v{t+2}, v{t+3}")
    a("s_nop 1")
    a(f"v_add_f32 v{t}, v{t}, v{t+1}")
    a(f"v_add_f32 v{t+2}, v{t+2}, v{t+3}")
    a(f"v_mul_f32 v{t}, 0x3a800000, v{t}")
    a(f"v_mul_f32 v{t+2}, 0x3a800000, v{t+2}")
    a(f"v_fma_f32 v{t+2}, -v{t}, v{t}, v{t+2}")
    a(f"v_add_f32 v{t}, v{t}, v{t+6}")
    a(f"v_max_f32 v{t+2}, 0, v{t+2}")
    a(f"v_cvt_pk_bf16_f32 v{t}, v{t}, v{t+2}")
    a(f"v_and_b32 v{t+2}, 0xffff0000, v{t}")
    a(f"v_lshlrev_b32 v{t}, 16, v{t}")
    a(f"v_add_f32 v{t+2}, 0x3727c5ac, v{t+2}")
    round_bf16(a, t+2, t+2)
    a(f"v_sqrt_f32 v{t+2}, v{t+2}")
    a(f"v_mov_b32 v{t+1}, v{t}")
    round_bf16(a, t+2, t+2)
    a(f"v_rcp_f32 v{t+2}, v{t+2}")
    a("s_nop 0")
    a(f"v_mov_b32 v{t+3}, v{t+2}")
    for i in range(8):
        a(f"v_lshlrev_b32 v{vf+2*i}, 16, v{vin+i}")
        a(f"v_and_b32 v{vf+2*i+1}, 0xffff0000, v{vin+i}")
        a(f"v_pk_add_f32 {vr(vf+2*i,2)}, {vr(vf+2*i,2)}, {vr(t,2)} neg_lo:[0,1] neg_hi:[0,1]")
        a(f"v_cvt_pk_bf16_f32 v{t+4}, v{vf+2*i}, v{vf+2*i+1}")
        a(f"v_lshlrev_b32 v{vf+2*i}, 16, v{t+4}")
        a(f"v_and_b32 v{vf+2*i+1}, 0xffff0000, v{t+4}")
        a(f"v_pk_mul_f32 {vr(vf+2*i,2)}, {vr(vf+2*i,2)}, {vr(t+2,2)}")
        a(f"v_cvt_pk_bf16_f32 v{vout+i}, v{vf+2*i}, v{vf+2*i+1}")

def gen_tail(a, cfg):
    WB=V_RING; WO_F=WB; GU_F=WB+16; WD_F=WB+48
    TT=V_RING+64
    TMP=V_T+23
    NSW=cfg.NSW
    a(f"s_cmp_ge_u32 s{S_W}, {NSW}")
    a("s_cbranch_scc1 L_t0_b5")
    a("s_nop 7")
    set_exec(a, -1, 0)
    a(f"ds_write_b128 v{PA_OW}, {vr(V_OACC,4)}")
    full_exec(a)
    a("s_waitcnt lgkmcnt(0)")
    a("L_t0_b5:")
    a("s_barrier")
    a(f"s_cmp_lg_u32 s{S_W}, {R_T1}")
    a("s_cbranch_scc1 L_t1_done")
    for w in range(8):
        a(f"ds_read_b64 {vr(TT+2*w,2)}, v{PA_OR} offset:{w*512}")
    a("s_waitcnt lgkmcnt(0)")
    a(f"v_pk_add_f32 {vr(TT,2)}, {vr(TT,2)}, {vr(TT+2,2)}")
    a(f"v_pk_add_f32 {vr(TT+4,2)}, {vr(TT+4,2)}, {vr(TT+6,2)}")
    a(f"v_pk_add_f32 {vr(TT+8,2)}, {vr(TT+8,2)}, {vr(TT+10,2)}")
    a(f"v_pk_add_f32 {vr(TT+12,2)}, {vr(TT+12,2)}, {vr(TT+14,2)}")
    a(f"v_pk_add_f32 {vr(TT,2)}, {vr(TT,2)}, {vr(TT+4,2)}")
    a(f"v_pk_add_f32 {vr(TT+8,2)}, {vr(TT+8,2)}, {vr(TT+12,2)}")
    a(f"v_pk_add_f32 {vr(TT,2)}, {vr(TT,2)}, {vr(TT+8,2)}")
    a(f"v_cvt_pk_bf16_f32 v{TT}, v{TT}, v{TT+1}")
    a(f"v_min_u32 v{TT}, -2, v{TT}")
    store_mode(a, f"global_store_dword v{PA_O}, v{TT}, {sr(P_WS,2)}", True)
    a("L_t1_done:")
    stamp(a,cfg,6)
    a(f"s_cmp_ge_u32 s{S_W}, {NSW}")
    a("s_cbranch_scc1 L_t2_go")
    frag_reads(a,"ogd")
    a("L_t2_go:")
    if cfg.PD2: a(f"s_sleep {cfg.PD2}")
    poll_masked(a,"t2", lambda: a(f"global_load_dwordx4 {vr(TT+32,4)}, v{PA_T2}, {sr(P_WS,2)} sc1"), range(TT+32,TT+36), cfg, TMP, 1, cfg.PIPE2)
    if cfg.TAILDIAG: stamp(a,cfg,9)
    a("s_waitcnt lgkmcnt(0)")
    def gemm4_reduce_publish(F, B, dp, nw, lab):
        off=16384 if dp else 0
        for t in range(4):
            a(f"v_mfma_f32_16x16x32_bf16 {vr(TT+4*t,4)}, {vr(F+4*t,4)}, {vr(B,4)}, 0")
        if nw<8:
            a(f"s_cmp_ge_u32 s{S_W}, {nw}")
            a(f"s_cbranch_scc1 {lab}_nw")
        set_exec(a, "0x00ff00ff", "0x00ff00ff")
        a("s_nop 2")
        for t in range(4):
            a(f"ds_write_b128 v{PA_DW}, {vr(TT+4*t,4)} offset:{off+64*t}")

        full_exec(a)
        a(f"{lab}_nw:")
        a("s_waitcnt lgkmcnt(0)")
        a("s_barrier")
        a(f"s_sub_u32 s{S_T0}, s{S_W}, {R_RED0}")
        a(f"s_cmp_ge_u32 s{S_T0}, 2")
        a(f"s_cbranch_scc1 {lab}_skip")
        for w in range(nw):
            a(f"ds_read_b128 {vr(TT+4*w,4)}, v{PA_R2} offset:{off+w*2048}")
        if dp: a(f"v_add_u32 v10, {W_DP-W_AP}, v{PA_P2}")
        a("s_waitcnt lgkmcnt(0)")
        n=nw
        step=1
        idx=list(range(nw))
        while len(idx)>1:
            nxt=[]
            for i in range(0,len(idx)-1,2):
                d,s_=idx[i],idx[i+1]
                a(f"v_pk_add_f32 {vr(TT+4*d,2)}, {vr(TT+4*d,2)}, {vr(TT+4*s_,2)}")
                a(f"v_pk_add_f32 {vr(TT+4*d+2,2)}, {vr(TT+4*d+2,2)}, {vr(TT+4*s_+2,2)}")
                nxt.append(d)
            if len(idx)%2: nxt.append(idx[-1])
            idx=nxt
        for c in range(4):
            a(f"v_min_u32 v{TT+c}, -2, v{TT+c}")
        a(f"global_store_dwordx4 v{10 if dp else PA_P2}, {vr(TT,4)}, {sr(P_WS,2)} {cfg.XST}")
        a(f"{lab}_skip:")
    gemm4_reduce_publish(WO_F, TT+32, False, 8, "L_t2")
    stamp(a,cfg,7)
    def ld3():
        a(f"global_load_dwordx4 {vr(TT+32,4)}, v{PA_T3A}, {sr(P_WS,2)} {cfg.XLD}")
        a(f"global_load_dwordx4 {vr(TT+36,4)}, v{PA_T3B}, {sr(P_WS,2)} {cfg.XLD}")
    if cfg.PD3: a(f"s_sleep {cfg.PD3}")
    poll_masked(a,"t3", ld3, range(TT+32,TT+40), cfg, TMP, 2, cfg.PIPE_X)
    if cfg.TAILDIAG==True and cfg.TAILDIAG!=2: stamp(a,cfg,13)
    a(f"v_pk_add_f32 {vr(TT+40,2)}, {vr(TT+32,2)}, {vr(TT+36,2)}")
    a(f"v_pk_add_f32 {vr(TT+42,2)}, {vr(TT+34,2)}, {vr(TT+38,2)}")
    a(f"ds_write_b128 v{PA_T3W}, {vr(TT+40,4)}")
    a("s_waitcnt lgkmcnt(0)")
    a("s_barrier")
    a(f"s_cmp_lg_u32 s{S_W}, {R_W0}")
    a("s_cbranch_scc1 L_t3_skip")
    for w in range(8):
        a(f"ds_read_b128 {vr(TT+4*w,4)}, v{PA_T3R} offset:{w*1024}")
    a(f"v_lshlrev_b32 v{TT+40}, 16, v{V_XRES}")
    a(f"v_and_b32 v{TT+41}, 0xffff0000, v{V_XRES}")
    a(f"v_lshlrev_b32 v{TT+42}, 16, v{V_XRES+1}")
    a(f"v_and_b32 v{TT+43}, 0xffff0000, v{V_XRES+1}")
    a("s_waitcnt lgkmcnt(0)")
    for (d,s_) in ((0,1),(2,3),(4,5),(6,7),(0,2),(4,6),(0,4)):
        a(f"v_pk_add_f32 {vr(TT+4*d,2)}, {vr(TT+4*d,2)}, {vr(TT+4*s_,2)}")
        a(f"v_pk_add_f32 {vr(TT+4*d+2,2)}, {vr(TT+4*d+2,2)}, {vr(TT+4*s_+2,2)}")
    a(f"v_cvt_pk_bf16_f32 v{TT+4}, v{TT}, v{TT+1}")
    a(f"v_cvt_pk_bf16_f32 v{TT+5}, v{TT+2}, v{TT+3}")
    a(f"v_lshlrev_b32 v{TT+8}, 16, v{TT+4}")
    a(f"v_and_b32 v{TT+9}, 0xffff0000, v{TT+4}")
    a(f"v_lshlrev_b32 v{TT+10}, 16, v{TT+5}")
    a(f"v_and_b32 v{TT+11}, 0xffff0000, v{TT+5}")
    a(f"v_pk_add_f32 {vr(TT+8,2)}, {vr(TT+8,2)}, {vr(TT+40,2)}")
    a(f"v_pk_add_f32 {vr(TT+10,2)}, {vr(TT+10,2)}, {vr(TT+42,2)}")
    a(f"v_cvt_pk_bf16_f32 v{TT+6}, v{TT+8}, v{TT+9}")
    a(f"v_cvt_pk_bf16_f32 v{TT+7}, v{TT+10}, v{TT+11}")
    a(f"v_min_u32 v{TT+6}, -2, v{TT+6}")
    a(f"v_min_u32 v{TT+7}, -2, v{TT+7}")
    store_mode(a, f"global_store_dwordx2 v{PA_H}, {vr(TT+6,2)}, {sr(P_WS,2)}", True)
    a("L_t3_skip:")
    stamp(a,cfg,8)
    def ld4():
        a(f"global_load_dwordx4 {vr(TT,4)}, v{PA_T4}, {sr(P_WS,2)} sc1")
        a(f"global_load_dwordx4 {vr(TT+4,4)}, v{PA_T4}, {sr(P_WS,2)} offset:16 sc1")
    if cfg.PD4: a(f"s_sleep {cfg.PD4}")
    poll_masked(a,"t4", ld4, range(TT,TT+8), cfg, TMP, 2, cfg.PIPE_I)
    if cfg.TAILDIAG: stamp(a,cfg,14)
    a(f"s_cmp_lg_u32 s{S_W}, s{S_X}")
    a("s_cbranch_scc1 L_t4_nohs")
    a(f"s_mov_b64 exec, {sr(SM_HS,2)}")
    a(f"ds_write_b128 v{PA_HSW}, {vr(TT,4)}")
    a(f"ds_write_b128 v{PA_HSW}, {vr(TT+4,4)} offset:16")
    full_exec(a)
    a("L_t4_nohs:")
    a(f"s_cmp_ge_u32 s{S_R}, 28")
    a("s_cbranch_scc1 L_t5_skip_all")
    layernorm2(a, TT, TT+8, TT+24, V_T)
    a(f"s_mov_b64 exec, {sr(SM_LNB,2)}")
    a(f"ds_write_b128 v{PA_LNBW}, {vr(TT+24,4)}")
    a(f"ds_write_b128 v{PA_LNBW}, {vr(TT+28,4)} offset:16")
    full_exec(a)
    a("s_waitcnt lgkmcnt(0)")
    a("s_barrier")
    if not cfg.TAILDIAG: stamp(a,cfg,9)
    if cfg.TAILDIAG: stamp(a,cfg,1)
    a("s_waitcnt vmcnt(0)")
    for s in range(8):
        a(f"ds_read_b128 {vr(TT+4*s,4)}, v{PA_LNBR} offset:{64*s}")
    for s in range(8):
        c="0" if s<2 else vr(V_T+4*(s%2),4)
        a(f"s_waitcnt lgkmcnt({7-s})")
        a(f"v_mfma_f32_16x16x32_bf16 {vr(V_T+4*(s%2),4)}, {vr(GU_F+4*s,4)}, {vr(TT+4*s,4)}, {c}")
    a("s_nop 7")
    a(f"v_pk_add_f32 {vr(V_T,2)}, {vr(V_T,2)}, {vr(V_T+4,2)}")
    a(f"v_pk_add_f32 {vr(V_T+2,2)}, {vr(V_T+2,2)}, {vr(V_T+6,2)}")
    for c in range(4):
        a(f"v_min_u32 v{V_T+c}, -2, v{V_T+c}")
    set_exec(a, "0x00ff00ff", "0x00ff00ff")
    store_mode(a, f"global_store_dwordx4 v{PA_GP}, {vr(V_T,4)}, {sr(P_WS,2)}", True)
    full_exec(a)
    if cfg.TAILDIAG==2: stamp(a,cfg,13)
    a(f"s_cmp_lg_u32 s{S_W}, {R_W0}")
    a("s_cbranch_scc1 L_t5_skip_all")
    a(f"s_mov_b32 s{S_T0}, 0x3d372713")
    a(f"s_mov_b32 s{S_T1}, 0xc0135761")
    def ld5():
        for k in range(4):
            for m in range(2):
                a(f"global_load_dwordx2 {vr(TT+(k*2+m)*2,2)}, v{PA_T5B+k}, {sr(P_WS,2)} offset:{m*2048} sc1")
    if cfg.PD5: a(f"s_sleep {cfg.PD5}")
    poll_masked(a,"t5", ld5, range(TT,TT+16), cfg, TMP, 8, cfg.PIPE_I)
    if cfg.TAILDIAG: stamp(a,cfg,2)
    for h_ in range(2):
        a(f"v_pk_add_f32 {vr(TT+16+2*h_,2)}, {vr(TT+2*h_,2)}, {vr(TT+4+2*h_,2)}")
        a(f"v_pk_add_f32 {vr(TT+20+2*h_,2)}, {vr(TT+8+2*h_,2)}, {vr(TT+12+2*h_,2)}")
        a(f"v_pk_add_f32 {vr(TT+16+2*h_,2)}, {vr(TT+16+2*h_,2)}, {vr(TT+20+2*h_,2)}")
    G=TT+16; U=TT+18; X=TT+20
    TT_=TT; TT=TT+16
    a(f"v_cvt_pk_bf16_f32 v{TT+8}, v{G}, v{G+1}")
    a(f"v_cvt_pk_bf16_f32 v{TT+9}, v{U}, v{U+1}")
    a(f"v_lshlrev_b32 v{G}, 16, v{TT+8}")
    a(f"v_and_b32 v{G+1}, 0xffff0000, v{TT+8}")
    a(f"v_lshlrev_b32 v{U}, 16, v{TT+9}")
    a(f"v_and_b32 v{U+1}, 0xffff0000, v{TT+9}")
    a(f"v_pk_mul_f32 {vr(X,2)}, {vr(G,2)}, {vr(G,2)}")
    a(f"v_pk_mul_f32 {vr(X,2)}, {vr(X,2)}, {vr(G,2)}")
    for c in range(2):
        a(f"v_fma_f32 v{X+c}, v{X+c}, s{S_T0}, v{G+c}")
    for c in range(2):
        a(f"v_mul_f32 v{X+c}, s{S_T1}, v{X+c}")
    for c in range(2):
        a(f"v_exp_f32 v{X+c}, v{X+c}")
    a("s_nop 0")
    for c in range(2):
        a(f"v_add_f32 v{X+c}, 1.0, v{X+c}")
    for c in range(2):
        a(f"v_rcp_f32 v{X+c}, v{X+c}")
    a("s_nop 0")
    a(f"v_pk_mul_f32 {vr(X,2)}, {vr(X,2)}, {vr(G,2)}")
    a(f"v_cvt_pk_bf16_f32 v{TT+8}, v{X}, v{X+1}")
    a(f"v_lshlrev_b32 v{X}, 16, v{TT+8}")
    a(f"v_and_b32 v{X+1}, 0xffff0000, v{TT+8}")
    a(f"v_pk_mul_f32 {vr(X,2)}, {vr(X,2)}, {vr(U,2)}")
    a(f"v_cvt_pk_bf16_f32 v{X}, v{X}, v{X+1}")
    a(f"v_min_u32 v{X}, -2, v{X}")
    store_mode(a, f"global_store_dword v{PA_ACT}, v{X}, {sr(P_WS,2)}", True)
    TT=TT_
    a("L_t5_skip_all:")
    stamp(a,cfg,10)
    a(f"s_cmp_ge_u32 s{S_W}, 7")
    a("s_cbranch_scc1 L_t6_nopoll")
    if cfg.PD6: a(f"s_sleep {cfg.PD6}")
    poll_masked(a,"t6", lambda: a(f"global_load_dwordx4 {vr(TT+32,4)}, v{PA_T6}, {sr(P_WS,2)} sc1"), range(TT+32,TT+36), cfg, TMP, 1, cfg.PIPE_I)
    if cfg.TAILDIAG: stamp(a,cfg,3)
    a("L_t6_nopoll:")
    gemm4_reduce_publish(WD_F, TT+32, True, 7, "L_t6")
    stamp(a,cfg,11)
    a(f"s_cmp_lg_u32 s{S_W}, {R_W0}")
    a("s_cbranch_scc1 L_fin")
    a(f"ds_read_u16 v{TT+10}, v{PA_HSR}")
    def ld7():
        for k in range(8):
            a(f"global_load_dword v{TT+k}, v{PA_T7+k}, {sr(P_WS,2)} {cfg.XLD}")
    if cfg.PD7: a(f"s_sleep {cfg.PD7}")
    poll_masked(a,"t7", ld7, range(TT,TT+8), cfg, TMP, 8, cfg.PIPE_X)
    if cfg.TAILDIAG: stamp(a,cfg,4)
    Z=TT+16
    a(f"v_pk_add_f32 {vr(Z,2)}, {vr(TT,2)}, {vr(TT+2,2)}")
    a(f"v_pk_add_f32 {vr(Z+2,2)}, {vr(TT+4,2)}, {vr(TT+6,2)}")
    a(f"v_pk_add_f32 {vr(Z,2)}, {vr(Z,2)}, {vr(Z+2,2)}")
    a(f"v_add_f32 v{Z}, v{Z}, v{Z+1}")
    a(f"v_mov_b32 v{Z+1}, v{Z}")
    a("s_waitcnt lgkmcnt(0)")
    a("s_nop 0")
    a(f"v_permlane32_swap_b32 v{Z}, v{Z+1}")
    a(f"v_lshlrev_b32 v{TT+10}, 16, v{TT+10}")
    a(f"v_add_f32 v{Z}, v{Z}, v{Z+1}")
    round_bf16(a,Z,Z)
    a(f"v_add_f32 v{Z}, v{Z}, v{TT+10}")
    a(f"v_cvt_pk_bf16_f32 v{Z}, v{Z}, v{Z}")
    set_exec(a, -1, 0)
    a(f"global_store_short v{PA_OUT}, v{Z}, {sr(P_OUT,2)}")
    full_exec(a)
    a(f"s_cmp_lg_u32 s{S_ID}, 0")
    a("s_cbranch_scc1 L_fin")
    a(f"v_mov_b32 v10, {W_EPOCH}")
    a(f"v_mov_b32 v12, s{S_TAG}")
    a(f"v_mov_b32 v13, s{S_TAG+1}")
    set_exec(a, 1, 0)
    a(f"global_store_dwordx2 v10, v[12:13], {sr(P_WS,2)} sc1")
    full_exec(a)
    a("L_fin:")
    TTX=160
    if cfg.STAMPS and cfg.DBGSTAMP:
        stamp(a,cfg,12)
        a("s_waitcnt lgkmcnt(0)")
        a(f"s_cmp_lg_u32 s{S_W}, 0")
        a("s_cbranch_scc1 L_exit")
        lst=[0,1,2,4,6,7,8,10,11,12]
        for i,k in enumerate(lst):
            if k==0:
                a(f"s_not_b32 s{S_T0}, s72")
                a(f"v_mov_b32 v{TTX}, s{S_T0}")
            else:
                a(f"v_mov_b32 v{TTX}, s{72+2*k}")
            a(f"v_mov_b32 v10, {4*i}")
            set_exec(a,1,0)
            a(f"global_atomic_umax v10, v{TTX}, {sr(P_DBG,2)} sc1")
            full_exec(a)
        a(f"v_mov_b32 v{TTX}, s72")
        a(f"v_mov_b32 v10, 40")
        set_exec(a,1,0)
        a(f"global_atomic_umax v10, v{TTX}, {sr(P_DBG,2)} sc1")
        full_exec(a)
        a(f"s_not_b32 s{S_T0}, s{72+12}")
        a(f"v_mov_b32 v{TTX}, s{S_T0}")
        a(f"v_mov_b32 v10, 44")
        set_exec(a,1,0)
        a(f"global_atomic_umax v10, v{TTX}, {sr(P_DBG,2)} sc1")
        full_exec(a)
    elif cfg.STAMPS:
        stamp(a,cfg,12)
        a("s_waitcnt lgkmcnt(0)")
        for k in range(15):
            a(f"v_mov_b32 v{TTX}, s{72+2*k}")
            a(f"v_mov_b32 v{TTX+1}, s{73+2*k}")
            a(f"s_lshl_b32 s{S_T0}, s{S_ID}, 3")
            a(f"s_add_u32 s{S_T0}, s{S_T0}, s{S_W}")
            a(f"s_lshl_b32 s{S_T0}, s{S_T0}, 7")
            a(f"s_add_u32 s{S_T0}, s{S_T0}, {W_STAMP+8*k}")
            a(f"v_mov_b32 v10, s{S_T0}")
            set_exec(a,1,0)
            a(f"global_store_dwordx2 v10, {vr(TTX,2)}, {sr(P_WS,2)}")
            full_exec(a)
    a("L_exit:")
    a("s_endpgm")

HEADER = open("sequential_preLN__mha_block_cached__geglu_ffn__decode.s.ref").read().split("; Override launch geometry")[0]

CFG=None
def build(cfg, path):
    global CFG
    CFG=cfg
    a,_=gen(cfg)
    gen_tail(a,cfg)
    txt = HEADER
    txt += "; Override launch geometry by editing the next line (default: block=256,\n"
    txt += f"; @launch grid=(256,1,1) block=(512,1,1) lds={LDS_BYTES}\n"
    txt += f""".amdgcn_target "amdgcn-amd-amdhsa--gfx950"
; ---------------------------------------------------------------------------------------------------------
;   id -> x = id%8 (group, normally one XCD), r = id/8 ; attention head = x + 8*(r/8), batch = r%8
; ---------------------------------------------------------------------------------------------------------
.text
.globl {KNAME}
.p2align 8
.type {KNAME},@function
"""
    txt += a.text()
    txt += f""".section .rodata,"a"
.p2align 6
.amdhsa_kernel {KNAME}
  .amdhsa_next_free_vgpr 256
  .amdhsa_next_free_sgpr 102
  .amdhsa_accum_offset 256
  .amdhsa_group_segment_fixed_size 0
  .amdhsa_kernarg_size 96
  .amdhsa_user_sgpr_count 2
  .amdhsa_user_sgpr_kernarg_segment_ptr 1
  .amdhsa_system_sgpr_workgroup_id_x 1
  .amdhsa_float_denorm_mode_32 3
.end_amdhsa_kernel
"""
    open(path,"w").write(txt)

if __name__=="__main__":
    cfg=Cfg()
    out=sys.argv[1]
    for kv in sys.argv[2:]:
        k,v=kv.split("=")
        setattr(cfg,k,eval(v))
    build(cfg,out)
```
